```python
import torch

def _softmax(x, axis=-1):
    return torch.softmax(x, dim=axis)
def _gelu(x):
    return torch.nn.functional.gelu(x, approximate="tanh")
def _silu(x):
    return torch.nn.functional.silu(x)
def _sigmoid(x):
    return torch.sigmoid(x)
def _layernorm(x, axis=-1, eps=1e-5):
    m = x.mean(dim=axis, keepdim=True)
    v = x.var(dim=axis, keepdim=True, unbiased=False)
    return (x - m) / torch.sqrt(v + eps)
def _scatter_add(tgt, idx, src, axis=0):
    return tgt.clone().index_add_(axis, idx, src)
def _segment_sum(src, seg, n):
    out = torch.zeros((n,) + src.shape[1:], dtype=src.dtype)
    return out.index_add_(0, seg, src)
def _pad(x, pw):
    flat = tuple(v for pair in reversed(pw) for v in pair)
    return torch.nn.functional.pad(x, flat)

kernel_name = 'concat_heads__ssm_conv_h3__linear_attn_block__prompt'

def setup_inputs():

    _w = (lambda a: (lambda t: t.to(torch.bfloat16) if t.is_floating_point() else t)(torch.as_tensor(a)))
    def _A_setup():
        B, S, D = 1, 2048, 640
        ks = 4
        return {
            "q": _w((lambda *s: torch.randn(*s, dtype=torch.bfloat16) * 0.05)(B, S, D)),
            "k": _w((lambda *s: torch.randn(*s, dtype=torch.bfloat16) * 0.4)(B, S, D)),
            "v": _w((lambda *s: torch.randn(*s, dtype=torch.bfloat16) * 0.4)(B, S, D)),
            "shift_k": _w((lambda *s: torch.randn(*s, dtype=torch.bfloat16) * 0.4)(D, ks) * 0.5),
            "ssm_k": _w((lambda *s: torch.randn(*s, dtype=torch.bfloat16) * 0.4)(D, S) * (1.0 / S ** 0.5)),
            "ssm_D": _w((lambda *s: torch.randn(*s, dtype=torch.bfloat16) * 0.4)(D)),
        }
    _A_in = _A_setup()

    def _B_setup():
        B, S, D = 1, 2048, 640
        return {
            "x": _w((lambda *s: torch.randn(*s, dtype=torch.bfloat16) * 0.05)(B, S, D)),
            "wqkv": _w((lambda *s: torch.randn(*s, dtype=torch.bfloat16) * 0.8)(D, 3 * D)),
            "wo": _w((lambda *s: torch.randn(*s, dtype=torch.bfloat16) * 0.05)(D, D)),
        }
    _B_in = _B_setup()

    return {
        "A_q": _A_in["q"],
        "A_k": _A_in["k"],
        "A_v": _A_in["v"],
        "A_shift_k": _A_in["shift_k"],
        "A_ssm_k": _A_in["ssm_k"],
        "A_ssm_D": _A_in["ssm_D"],
        "B_x": _B_in["x"],
        "B_wqkv": _B_in["wqkv"],
        "B_wo": _B_in["wo"],
    }

def reference(A_q, A_k, A_v, A_shift_k, A_ssm_k, A_ssm_D, B_x, B_wqkv, B_wo):
    def _A_ref(q, k, v, shift_k, ssm_k, ssm_D):
        B, S, D = q.shape
        ks = shift_k.shape[-1]
        k_pad = _pad(k, ((0, 0), (ks - 1, 0), (0, 0)))
        k_shift = torch.zeros_like(k)
        for t in range(ks):
            k_shift = k_shift + k_pad[:, t:t + S, :] * shift_k[:, ks - 1 - t][None, None, :]
        kv = k_shift * v
        L = 2 * S
        kv_pad = _pad(kv, ((0, 0), (0, S), (0, 0)))
        kf_pad = _pad(ssm_k, ((0, 0), (0, S)))
        kv_f = (lambda x, axes=(-2,-1): torch.fft.rfft2(x.float(), dim=axes))(kv_pad[:, None, :, :], axes=(1, 2))
        kf_f = (lambda x, axes=(-2,-1): torch.fft.rfft2(x.float(), dim=axes))(kf_pad[:, None, :], axes=(1, 2))
        kf_f = (lambda x, *d: x.permute(*d))(kf_f, 1, 2, 0)
        y_f = kv_f * kf_f[None, :, :, :]
        y = (lambda x, s, axes=(-2,-1): torch.fft.irfft2(x, s=s, dim=axes).to(torch.bfloat16))(y_f, (1, L), axes=(1, 2))[:, 0, :S, :]
        y = y + kv * ssm_D[None, None, :]
        return q * y

    def _B_ref(x, wqkv, wo):
        B, S, D = x.shape
        H = 32; Dh = D // H
        qkv = (lambda x, *d: x.permute(*d))((x @ wqkv).reshape(B, S, 3, H, Dh), 2, 0, 3, 1, 4)
        q, k, v = qkv[0], qkv[1], qkv[2]
        phi = lambda t: torch.where(t > 0, t + 1, torch.exp(t)) + 1e-6
        pq, pk = phi(q), phi(k)
        kv = torch.einsum("bhsd,bhse->bhde", pk, v)
        z = torch.einsum("bhsd->bhd", pk)
        num = torch.einsum("bhqd,bhde->bhqe", pq, kv)
        den = torch.einsum("bhqd,bhd->bhq", pq, z)[..., None] + 1e-6
        o = num / den
        return (lambda x, *d: x.permute(*d))(o, 0, 2, 1, 3).reshape(B, S, D) @ wo

    a = _A_ref(A_q, A_k, A_v, A_shift_k, A_ssm_k, A_ssm_D)
    b = _B_ref(B_x, B_wqkv, B_wo)
    return torch.concatenate([a, b], axis=-1)
```

```python
class Asm:
    def __init__(self):
        self.L = []
        self._n = 0
    def e(self, s):
        for ln in s.strip().split("\n"):
            ln = ln.strip()
            if ln:
                self.L.append("    " + ln)
    def lab(self, n):
        self.L.append(n + ":")
    def raw(self, s):
        self.L.append(s)
    def c(self, s):
        self.L.append("    ; " + s)
    def newlab(self, p="L"):
        self._n += 1
        return "%s_%d" % (p, self._n)
    def text(self):
        return "\n".join(self.L) + "\n"

def v(a, n=1):
    return "v%d" % a if n == 1 else "v[%d:%d]" % (a, a + n - 1)
def s(a, n=1):
    return "s%d" % a if n == 1 else "s[%d:%d]" % (a, a + n - 1)

class RA:
    def __init__(self, start=0, limit=256):
        self.p = start; self.limit = limit; self.hi = start
    def a(self, n=1, al=1):
        if n >= 2 and al == 1:
            al = 2
        self.p = (self.p + al - 1) // al * al
        r = self.p
        self.p += n
        assert self.p <= self.limit, "out of VGPRs %d" % self.p
        self.hi = max(self.hi, self.p)
        return r

def interleave(main, fill, every=1, start=0):
    out = []; fi = 0
    for i, m in enumerate(main):
        out.append(m)
        if i >= start and (i - start) % every == 0 and fi < len(fill):
            out.append(fill[fi]); fi += 1
    out += fill[fi:]
    return out

import struct
def f32(x):
    return "0x%08x" % struct.unpack("<I", struct.pack("<f", x))[0]
```

```python
from asmlib import *

WS_UT, WS_QT, WS_PQ, WS_KV = 0, 0x280000, 0x500000, 0x780000
T_BYTES = 640 * 4096
KV_BYTES = 32 * 22 * 80
S_WG, S_WAVE = 2, 3
P_Q, P_K, P_V, P_SH, P_H, P_D, P_X, P_W, P_WO, P_OUT, P_DBG, P_WS = 8, 10, 12, 14, 16, 18, 20, 22, 24, 26, 28, 30
SRD_A, SRD_B, SRD_C, SRD_D, SRD_E, SRD_F = 32, 36, 40, 44, 48, 52
V_LANE = 1

def prologue(a):
    a.e(f"""
    s_load_dwordx16 s[8:23], s[0:1], 0
    s_load_dwordx8 s[24:31], s[0:1], 64
    v_lshrrev_b32 v2, 6, v0
    v_and_b32 v{V_LANE}, 63, v0
    v_readfirstlane_b32 s{S_WAVE}, v2
    """)

def mk_srd(a, srd, ptr, nbytes, off=0, off_sreg=None):
    if off_sreg is not None:
        a.e(f"s_add_u32 s{srd}, s{ptr}, s{off_sreg}\n s_addc_u32 s{srd+1}, s{ptr+1}, 0")
    elif off:
        a.e(f"s_add_u32 s{srd}, s{ptr}, {off}\n s_addc_u32 s{srd+1}, s{ptr+1}, 0")
    else:
        a.e(f"s_mov_b32 s{srd}, s{ptr}\n s_mov_b32 s{srd+1}, s{ptr+1}")
    a.e(f"s_mov_b32 s{srd+2}, {nbytes}\n s_mov_b32 s{srd+3}, 0x20000")

S_RT, S_G, S_MODE = 56, 57, 58
XST, WBASE, WST = 16384, 65536, 20480
NST = 4
IMG = 32768
IMGP = 7168

def g1_loader(a, lab_done):
    ra = RA(2)
    t0, t1, t2, t3 = [ra.a() for _ in range(4)]
    vx = [ra.a() for _ in range(4)]
    vw = [ra.a() for _ in range(5)]
    z4 = ra.a(4, 4)
    L = V_LANE
    sLW, sSX, sSW, sM0X, sM0W, sC1, sC2, sT = 60, 61, 62, 63, 64, 65, 66, 67
    a.c("G1 loader wave")
    a.e(f"""
    s_sub_u32 s{sLW}, s{S_WAVE}, 4
    s_lshl_b32 s{sT}, s{S_RT}, 2
    s_add_u32 s{sT}, s{sT}, s{sLW}
    s_mul_i32 s{sSX}, s{sT}, {32*1280}
    s_lshl_b32 s{sM0X}, s{sLW}, 12
    v_lshrrev_b32 v{t0}, 3, v{L}
    v_mul_u32_u24 v{t0}, 1280, v{t0}
    v_lshrrev_b32 v{t1}, 4, v{L}
    v_and_b32 v{t2}, 7, v{L}
    v_xor_b32 v{t1}, v{t1}, v{t2}
    v_lshlrev_b32 v{t1}, 4, v{t1}
    v_xor_b32 v{t2}, 64, v{t1}
    v_add_u32 v{vx[0]}, v{t0}, v{t1}
    v_add_u32 v{vx[1]}, v{t0}, v{t2}
    v_add_u32 v{vx[2]}, {2*(8*1280-1024)}, v{vx[0]}
    v_add_u32 v{vx[3]}, {3*(8*1280-1024)}, v{vx[1]}
    v_add_u32 v{vx[1]}, {1*(8*1280-1024)}, v{vx[1]}
    s_waitcnt lgkmcnt(0)
    """)
    mk_srd(a, SRD_A, P_X, 2048 * 1280)
    mk_srd(a, SRD_B, P_W, 640 * 3840)
    def issue_x(st):
        out = [f"s_add_u32 m0, s{sM0X}, {(st % NST) * XST}", "s_nop 0"]
        for j in range(4):
            out.append(f"buffer_load_dwordx4 v{vx[j]}, s[{SRD_A}:{SRD_A+3}], s{sSX} offen offset:{1024*j} lds")
        out.append(f"s_add_u32 s{sSX}, s{sSX}, 128")
        return out
    def issue_w(st):
        out = [f"s_add_u32 m0, s{sM0W}, {(st % NST) * WST}", "s_nop 0"]
        for j in range(4):
            out.append(f"buffer_load_dwordx4 v{vw[j]}, s[{SRD_B}:{SRD_B+3}], s{sSW} offen offset:{1024*j} lds")
        out += [f"s_add_u32 m0, s{sM0W}, {(st % NST) * WST + 4096}", "s_nop 0"]
        out.append(f"buffer_load_dwordx4 v{vw[4]}, s[{SRD_B}:{SRD_B+3}], s{sSW} offen lds")
        out.append(f"s_add_u32 s{sSW}, s{sSW}, {64*3840}")
        return out
    a.e("\n".join(issue_x(0)))
    a.e(f"""
    s_cmp_eq_u32 s{S_MODE}, 0
    s_cselect_b32 s{sC1}, 1200, 0
    s_cselect_b32 s{sC2}, 80, 0
    s_cselect_b32 s{sSW}, 1280, 0
    s_lshl_b32 s{sT}, 160, s{S_MODE}
    s_mul_i32 s{sT}, s{sT}, s{S_G}
    s_add_u32 s{sSW}, s{sSW}, s{sT}
    s_mul_i32 s{sT}, s{sLW}, {16*3840}
    s_add_u32 s{sSW}, s{sSW}, s{sT}
    s_mul_i32 s{sM0W}, s{sLW}, 5120
    s_add_u32 s{sM0W}, s{sM0W}, {WBASE}
    """)
    for x in range(320):
        assert (x * 3277) >> 16 == x // 20
    for x in range(20):
        assert (x * 52) >> 8 == x // 5
    for j in range(5):
        sub = 1024 * j if j < 4 else 0
        a.e(f"""
        v_add_u32 v{t0}, {64*j}, v{L}
        v_mul_u32_u24 v{t1}, 3277, v{t0}
        v_lshrrev_b32 v{t1}, 16, v{t1}
        v_mul_u32_u24 v{t2}, 20, v{t1}
        v_sub_u32 v{t0}, v{t0}, v{t2}
        v_lshrrev_b32 v{t2}, 2, v{t1}
        v_and_b32 v{t2}, 2, v{t2}
        v_xor_b32 v{t0}, v{t0}, v{t2}
        v_mul_u32_u24 v{t2}, 52, v{t0}
        v_lshlrev_b32 v{t0}, 4, v{t0}
        v_bfe_u32 v{t3}, v{t2}, 8, 1
        v_mad_u32_u24 v{t0}, v{t3}, s{sC1}, v{t0}
        v_lshrrev_b32 v{t3}, 9, v{t2}
        v_mul_u32_u24 v{t3}, s{sC2}, v{t3}
        v_sub_u32 v{t0}, v{t0}, v{t3}
        v_mul_u32_u24 v{t1}, 3840, v{t1}
        v_add_u32 v{t0}, v{t0}, v{t1}
        v_subrev_u32 v{vw[j]}, {sub}, v{t0}
        """)
    a.e("\n".join(issue_w(0)))
    for st in (1, 2):
        a.e("\n".join(issue_x(st) + issue_w(st)))
    for i in range(4):
        a.e(f"v_mov_b32 v{z4+i}, 0")
    a.e(f"v_lshlrev_b32 v{t0}, 4, v0")
    for st in range(10):
        out_after = min(2, 9 - st)
        a.e(f"s_waitcnt vmcnt({9*out_after})")
        if st == 9:
            a.e("s_waitcnt lgkmcnt(0)")
        a.e("s_barrier")
        if st + 3 < 10:
            a.e("\n".join(issue_x(st + 3) + issue_w(st + 3)))
        if st == 8:
            for i in range(4):
                a.e(f"ds_write_b128 v{t0}, v[{z4}:{z4+3}] offset:{IMG - 4096 + 4096*i}")
    a.e(f"s_cmp_eq_u32 s{S_MODE}, 0")
    a.e(f"s_cbranch_scc0 {lab_done}")

def g1_kv_atomics(a):
    sT = 67
    a.e(f"s_mul_i32 s{sT}, s{S_G}, 7040\n s_add_u32 s{sT}, s{sT}, {WS_KV}")
    mk_srd(a, SRD_C, P_WS, 7040, off_sreg=sT)
    a.e(f"""
    v_lshlrev_b32 v2, 2, v0
    v_add_u32 v3, {IMG}, v2
    s_barrier
    """)
    for n in range(4):
        a.e(f"ds_read2st64_b32 v[{4+2*n}:{5+2*n}], v3 offset0:{8*n} offset1:{28+8*n}")
    a.e(f"v_add_u32 v12, 4096, v2")
    for n in range(4):
        a.e(f"s_waitcnt lgkmcnt({3-n})")
        a.e(f"v_add_f32 v{4+2*n}, v{4+2*n}, v{5+2*n}")
        a.e(f"buffer_atomic_add_f32 v{4+2*n}, v{2 if n < 2 else 12}, s[{SRD_C}:{SRD_C+3}], 0 offen offset:{2048*(n&1)}")

def phi4(regs, tmps, sLOG, sEPS):
    o = []
    for r, t in zip(regs, tmps): o.append(f"v_mul_f32 v{t}, s{sLOG}, v{r}")
    for r, t in zip(regs, tmps): o.append(f"v_exp_f32_e64 v{t}, v{t} clamp")
    for r, t in zip(regs, tmps): o.append(f"v_max_f32 v{r}, s{sEPS}, v{r}")
    for r, t in zip(regs, tmps): o.append(f"v_add_f32 v{r}, v{r}, v{t}")
    return o

def g1_compute(a, mode):
    ra = RA(2)
    L = V_LANE
    lr, g, t0, t1, t2 = [ra.a() for _ in range(5)]
    xa = [ra.a(), ra.a()]
    wa = [[ra.a() for _ in range(5)] for _ in range(2)]
    aMain, aExtA, aExtB = ra.a(), ra.a(), ra.a()
    ie = ra.a(4, 4); ix = ra.a(4, 4)
    XF = [[ra.a(4, 4) for _ in range(4)] for _ in range(2)]
    WF = [[ra.a(4, 4) for _ in range(5)] for _ in range(2)]
    ACC = [[ra.a(4, 4) for _ in range(5)] for _ in range(4)]
    sRH, sCH, sT, sLOG, sEPS, sSO = 60, 61, 62, 63, 64, 65
    a.c("G1 compute wave mode %d" % mode)
    a.e(f"""
    s_lshr_b32 s{sRH}, s{S_WAVE}, 1
    s_and_b32 s{sCH}, s{S_WAVE}, 1
    s_mov_b32 s{sLOG}, {f32(1.4426950408889634)}
    s_mov_b32 s{sEPS}, {f32(1e-6)}
    v_and_b32 v{lr}, 15, v{L}
    v_lshrrev_b32 v{g}, 4, v{L}
    s_lshl_b32 s{sT}, s{sRH}, 13
    v_lshrrev_b32 v{t0}, 1, v{lr}
    v_xor_b32 v{t0}, v{t0}, v{g}
    v_lshlrev_b32 v{t0}, 4, v{t0}
    v_lshl_add_u32 v{t0}, v{lr}, 7, v{t0}
    v_add_u32 v{xa[0]}, s{sT}, v{t0}
    v_xor_b32 v{xa[1]}, 64, v{xa[0]}
    v_lshrrev_b32 v{t0}, 2, v{lr}
    v_lshl_add_u32 v{t0}, v{g}, 3, v{t0}
    v_mul_u32_u24 v{t0}, 320, v{t0}
    v_add_u32 v{t0}, {WBASE}, v{t0}
    v_and_b32 v{t1}, 1, v{g}
    v_lshlrev_b32 v{t1}, 5, v{t1}
    s_mul_i32 s{sT}, s{sCH}, 160
    v_and_b32 v{t2}, 3, v{lr}
    """)
    for t in range(5):
        w = wa[0][t]
        if t < 4:
            a.e(f"v_lshl_add_u32 v{w}, v{t2}, 3, s{sT}\n v_add_u32 v{w}, {40*t}, v{w}")
        else:
            a.e(f"v_mul_u32_u24 v{w}, 40, v{t2}\n v_add_u32 v{w}, s{sT}, v{w}\n v_add_u32 v{w}, 32, v{w}")
        a.e(f"v_xor_b32 v{w}, v{w}, v{t1}\n v_add_u32 v{w}, v{w}, v{t0}\n v_add_u32 v{wa[1][t]}, 10240, v{w}")
    for i in range(4):
        a.e(f"v_mov_b32 v{ie+i}, s{sEPS}")
    if mode == 0:
        a.e(f"v_cmp_gt_u32 vcc, 8, v{lr}")
        a.e(f"""
        s_mul_i32 s{sT}, s{sRH}, {IMGP}
        s_mul_i32 s{sSO}, s{sCH}, 3520
        s_add_u32 s{sT}, s{sT}, s{sSO}
        s_add_u32 s{sT}, s{sT}, {IMG}
        """)
        for i in range(4):
            a.e(f"v_cndmask_b32 v{ix+i}, 0, v{ie}, vcc")
        a.e(f"""
        v_mul_u32_u24 v{aMain}, 80, v{lr}
        v_lshl_add_u32 v{aMain}, v{g}, 4, v{aMain}
        v_add_u32 v{aMain}, s{sT}, v{aMain}
        v_cmp_eq_u32 vcc, 0, v{lr}
        v_mov_b32 v{t0}, 640
        v_mov_b32 v{t1}, 1600
        v_mov_b32 v{t2}, 320
        v_cndmask_b32 v{t0}, v{t0}, v{t1}, vcc
        v_cndmask_b32 v{t2}, v{t2}, v{t1}, vcc
        v_add_u32 v{aExtA}, v{aMain}, v{t0}
        v_add_u32 v{aExtB}, v{aMain}, v{t2}
        """)
    else:
        a.e(f"""
        v_lshlrev_b32 v{aMain}, 4, v{L}
        v_lshlrev_b32 v{aExtA}, 3, v{L}
        s_lshl_b32 s{sT}, s{S_RT}, 3
        s_lshl_b32 s{sSO}, s{sRH}, 2
        s_add_u32 s{sT}, s{sT}, s{sSO}
        s_lshl_b32 s{sT}, s{sT}, 3
        s_lshl_b32 s{sSO}, s{S_G}, 1
        s_add_u32 s{sT}, s{sT}, s{sSO}
        s_add_u32 s{sT}, s{sT}, s{sCH}
        s_mul_i32 s{sSO}, s{sT}, 2560
        s_waitcnt lgkmcnt(0)
        """)
        mk_srd(a, SRD_C, P_WS, T_BYTES, off=WS_PQ)
    def reads(st, ks):
        sl = st % NST
        o = []
        xs = [f"ds_read_b128 v[{XF[ks][rt]}:{XF[ks][rt]+3}], v{xa[ks]} offset:{sl*XST + rt*2048}" for rt in range(4)]
        ws = []
        for t in range(5):
            for h in range(2):
                ws.append(f"ds_read_b64_tr_b16 v[{WF[ks][t]+2*h}:{WF[ks][t]+2*h+1}], v{wa[ks][t]} offset:{sl*WST + h*1280}")
        return xs + ws
    def mfmas(ks, first=False):
        o = []
        for rt in range(4):
            for t in range(5):
                d = ACC[rt][t]
                c = v(d, 4)
                if first:
                    if mode == 1 or t < 2: c = v(ie, 4)
                    elif t == 4: c = v(ix, 4)
                    else: c = "0"
                x, w = v(XF[ks][rt], 4), v(WF[ks][t], 4)
                A_, B_ = (x, w) if mode == 0 else (w, x)
                o.append(f"v_mfma_f32_16x16x32_bf16 {v(d,4)}, {A_}, {B_}, {c}")
        return o
    for st in range(10):
        a.c(f"step {st}")
        a.e("s_barrier")
        if st == 0:
            a.e("\n".join(reads(0, 0)))
        else:
            a.e("\n".join(interleave(mfmas(1), reads(st, 0))))
        a.e("s_waitcnt lgkmcnt(0)")
        a.e("\n".join(interleave(mfmas(0, first=(st == 0)), reads(st, 1))))
        a.e("s_waitcnt lgkmcnt(0)")
    a.e("\n".join(mfmas(1)))
    fr = XF[0][0]
    assert WF[1][4] + 4 - fr == 72
    tm = [ie, ie + 1, ie + 2, ie + 3]
    if mode == 1:
        order = [0, 4, 1, 2, 3]
        for rt in range(4):
            ob = fr + 12 * rt
            if rt == 0:
                a.e("s_nop 3")
            for pos, t in enumerate(order):
                r = [ACC[rt][t] + i for i in range(4)]
                a.e("\n".join(phi4(r, tm, sLOG, sEPS)))
                a.e(f"v_cvt_pk_bf16_f32 v{ob+2*pos}, v{r[0]}, v{r[1]}")
                a.e(f"v_cvt_pk_bf16_f32 v{ob+2*pos+1}, v{r[2]}, v{r[3]}")
            a.e(f"""
            buffer_store_dwordx4 v[{ob}:{ob+3}], v{aMain}, s[{SRD_C}:{SRD_C+3}], s{sSO} offen
            buffer_store_dwordx4 v[{ob+4}:{ob+7}], v{aMain}, s[{SRD_C}:{SRD_C+3}], s{sSO} offen offset:1024
            buffer_store_dwordx2 v[{ob+8}:{ob+9}], v{aExtA}, s[{SRD_C}:{SRD_C+3}], s{sSO} offen offset:2048
            s_add_u32 s{sSO}, s{sSO}, {8*2560}
            """)
    else:
        P = {n: [fr + (i * 2 + k) * 4 for k in range(2)] for i, n in enumerate(["T0", "T1", "T2", "T3", "T4A", "T4B"])}
        a.e("s_nop 3")
        a.e(f"v_cmp_gt_u32 vcc, 8, v{lr}\n v_mov_b32 v{t0}, 0x3f803f80")
        for rt in range(4):
            k, h = rt >> 1, rt & 1
            for t, n in ((2, "T2"), (3, "T3"), (4, "T4B")):
                r = ACC[rt][t]; d = P[n][k] + 2 * h
                a.e(f"v_cvt_pk_bf16_f32 v{d}, v{r}, v{r+1}\n v_cvt_pk_bf16_f32 v{d+1}, v{r+2}, v{r+3}")
            d = P["T4B"][k] + 2 * h
            a.e(f"v_cndmask_b32 v{d}, v{d}, v{t0}, vcc\n v_cndmask_b32 v{d+1}, v{d+1}, v{t0}, vcc")
            for t, n in ((0, "T0"), (1, "T1"), (4, "T4A")):
                r = [ACC[rt][t] + i for i in range(4)]; d = P[n][k] + 2 * h
                a.e("\n".join(phi4(r, tm, sLOG, sEPS)))
                a.e(f"v_cvt_pk_bf16_f32 v{d}, v{r[0]}, v{r[1]}\n v_cvt_pk_bf16_f32 v{d+1}, v{r[2]}, v{r[3]}")
        prods = [("T0", "T2"), ("T0", "T4B"), ("T4A", "T2"), ("T1", "T3"), ("T1", "T4B"), ("T4A", "T3"), ("T4A", "T4B")]
        R = [ACC[0][0] + 4 * i for i in range(7)]
        a.e("s_nop 1")
        for k in range(2):
            for i, (x, y) in enumerate(prods):
                c = "0" if k == 0 else v(R[i], 4)
                a.e(f"v_mfma_f32_16x16x32_bf16 {v(R[i],4)}, {v(P[x][k],4)}, {v(P[y][k],4)}, {c}")
        a.e("s_nop 7")
        def wr(i, addr, off, lo, hi):
            a.e(f"s_mov_b32 exec_lo, {lo:#x}\n s_mov_b32 exec_hi, {hi:#x}")
            a.e(f"ds_write_b128 v{addr}, {v(R[i],4)} offset:{off}")
        wr(0, aMain, 0, 0xffffffff, 0xffffffff)
        a.e(f"ds_write_b128 v{aMain}, {v(R[3],4)} offset:1760")
        wr(1, aExtA, 0, 0x0f010f01, 0x0f010f01)
        wr(4, aExtB, 1760, 0xf001f001, 0xf001f001)
        wr(2, aMain, 64, 0x0000ffff, 0)
        wr(5, aMain, 1760 + 48, 0xffff0000, 0)
        wr(6, aExtA, 64, 0x00000f01, 0)
        wr(6, aExtB, 1760 + 48, 0xf0010000, 0)
        a.e("s_mov_b64 exec, -1\n s_waitcnt lgkmcnt(0)")
    return ra.hi

def a1(a):
    ra = RA(2)
    L = V_LANE
    t0, t1, t2, t3 = [ra.a() for _ in range(4)]
    vo = [ra.a() for _ in range(5)]
    lr, g, base, baseh, phi, phih, ad, adh, so_u, so_q, otap = [ra.a() for _ in range(11)]
    KB, VB, QB = 5120, 5120 + 40960, 5120 + 2 * 40960
    sTI, sCH, sSO, sM0, sT, sSH, sCG, sU = 60, 61, 62, 63, 64, 65, 66, 67
    NB = 2048 * 1280
    a.c("A1")
    a.e(f"""
    s_lshr_b32 s{sTI}, s{S_RT}, 1
    s_and_b32 s{sCH}, s{S_RT}, 1
    s_lshl_b32 s{sT}, s{sTI}, 3
    s_add_u32 s{sT}, s{sT}, s{S_WAVE}
    s_mul_i32 s{sSO}, s{sT}, {8*1280}
    s_mul_i32 s{sT}, s{sCH}, 640
    s_add_u32 s{sSO}, s{sSO}, s{sT}
    s_mul_i32 s{sM0}, s{S_WAVE}, 5120
    s_and_b32 s{sT}, s{S_WAVE}, 2
    s_lshl_b32 s{sT}, s{sT}, 1
    """)
    for x in range(320):
        assert (x * 1639) >> 16 == x // 40
    for j in range(5):
        sub = 1024 * j if j < 4 else 0
        a.e(f"""
        v_add_u32 v{t0}, {64*j}, v{L}
        v_mul_u32_u24 v{t1}, 1639, v{t0}
        v_lshrrev_b32 v{t1}, 16, v{t1}
        v_mul_u32_u24 v{t2}, 40, v{t1}
        v_sub_u32 v{t0}, v{t0}, v{t2}
        v_and_b32 v{t2}, 2, v{t1}
        v_or_b32 v{t2}, s{sT}, v{t2}
        v_xor_b32 v{t0}, v{t0}, v{t2}
        v_lshlrev_b32 v{t0}, 4, v{t0}
        v_mul_u32_u24 v{t1}, 1280, v{t1}
        v_add_u32 v{t0}, v{t0}, v{t1}
        v_subrev_u32 v{vo[j]}, {sub}, v{t0}
        """)
    a.e("s_waitcnt lgkmcnt(0)")
    mk_srd(a, SRD_A, P_K, NB); mk_srd(a, SRD_B, P_V, NB); mk_srd(a, SRD_C, P_Q, NB)
    mk_srd(a, SRD_D, P_SH, 640 * 8); mk_srd(a, SRD_E, P_WS, 2 * T_BYTES)
    def dma(srd, lbase, so, js=range(5)):
        o = []
        first = True
        for j in js:
            if first and j < 4:
                o += [f"s_add_u32 m0, s{sM0}, {lbase}", "s_nop 0"]; first = False
            if j == 4:
                o += [f"s_add_u32 m0, s{sM0}, {lbase+4096}", "s_nop 0"]
            off = f" offset:{1024*j}" if 0 < j < 4 else ""
            o.append(f"buffer_load_dwordx4 v{vo[j]}, s[{srd}:{srd+3}], s{so} offen{off} lds")
        return o
    a.e("\n".join(dma(SRD_A, KB, sSO)))
    lab = a.newlab("a1_nohalo")
    a.e(f"""
    s_cmp_lg_u32 s{S_WAVE}, 3
    s_cbranch_scc1 {lab}
    s_sub_u32 s{sSH}, s{sSO}, {32*1280}
    s_cmp_eq_u32 s{sTI}, 0
    s_cselect_b32 s{sSH}, {NB}, s{sSH}
    """)
    a.e("\n".join(dma(SRD_A, KB - 4 * 5120, sSH, js=(2, 3, 4))))
    a.lab(lab)
    a.e("\n".join(dma(SRD_B, VB, sSO)))
    a.e("\n".join(dma(SRD_C, QB, sSO)))
    a.e(f"""
    v_and_b32 v{lr}, 15, v{L}
    v_lshrrev_b32 v{g}, 4, v{L}
    v_lshrrev_b32 v{t0}, 2, v{lr}
    v_lshl_add_u32 v{t1}, v{g}, 4, v{t0}
    v_mul_u32_u24 v{base}, 640, v{t1}
    v_and_b32 v{t2}, 3, v{lr}
    v_lshl_add_u32 v{base}, v{t2}, 3, v{base}
    v_add_u32 v{base}, {KB}, v{base}
    v_subrev_u32 v{baseh}, {4*640}, v{base}
    v_lshrrev_b32 v{t0}, 1, v{t0}
    v_and_b32 v{t1}, 1, v{g}
    v_lshl_or_b32 v{phi}, v{t1}, 1, v{t0}
    v_lshlrev_b32 v{phi}, 5, v{phi}
    v_xor_b32 v{phih}, 64, v{phi}
    s_mul_i32 s{sT}, s{sCH}, 320
    v_add_u32 v{t0}, s{sT}, v{lr}
    v_lshlrev_b32 v{otap}, 3, v{t0}
    v_lshlrev_b32 v{t0}, 12, v{t0}
    s_lshl_b32 s{sT}, s{sTI}, 7
    v_lshlrev_b32 v{t1}, 5, v{g}
    v_add_u32 v{t1}, s{sT}, v{t1}
    v_add_u32 v{so_q}, v{t0}, v{t1}
    v_add_u32 v{so_q}, {T_BYTES}, v{so_q}
    v_sub_u32 v{so_u}, 4064, v{t1}
    v_add_u32 v{so_u}, v{so_u}, v{t0}
    """)
    taps = [ra.a(2) for _ in range(3)]
    a.e(f"s_lshl_b32 s{sT}, s{S_WAVE}, 7")
    for n in range(3):
        a.e(f"buffer_load_dwordx2 v[{taps[n]}:{taps[n]+1}], v{otap}, s[{SRD_D}:{SRD_D+3}], s{sT} offen offset:{1024*n}")
    a.e("s_waitcnt vmcnt(0)\n s_barrier")
    KR = ra.a(10, 2); VR = ra.a(8, 4); QR = ra.a(8, 4); KF = ra.a(20); W = ra.a(4); U = ra.a(16); O = ra.a(8, 4)
    ad2 = ra.a()
    done = a.newlab("a1_done")
    for n in range(3):
        if n == 2:
            a.e(f"s_cmp_ge_u32 s{S_WAVE}, 4\n s_cbranch_scc1 {done}")
        a.e(f"""
        s_add_u32 s{sCG}, s{S_WAVE}, {8*n}
        s_lshl_b32 s{sT}, s{sCG}, 5
        s_lshl_b32 s{sU}, s{sCG}, 16
        v_xor_b32 v{ad}, s{sT}, v{phi}
        v_xor_b32 v{adh}, s{sT}, v{phih}
        v_add_u32 v{ad}, v{ad}, v{base}
        v_add_u32 v{adh}, v{adh}, v{baseh}
        v_add_u32 v{ad2}, {QB-KB}, v{ad}
        ds_read_b64_tr_b16 v[{KR}:{KR+1}], v{adh}
        """)
        for m in range(4):
            a.e(f"ds_read_b64_tr_b16 v[{KR+2+2*m}:{KR+3+2*m}], v{ad} offset:{m*2560}")
        for m in range(4):
            a.e(f"ds_read_b64_tr_b16 v[{VR+2*m}:{VR+1+2*m}], v{ad} offset:{VB-KB+m*2560}")
        for m in range(4):
            a.e(f"ds_read_b64_tr_b16 v[{QR+2*m}:{QR+1+2*m}], v{ad2} offset:{m*2560}")
        tp = taps[n]
        a.e(f"""
        v_lshlrev_b32 v{W}, 16, v{tp}
        v_and_b32 v{W+1}, 0xffff0000, v{tp}
        v_lshlrev_b32 v{W+2}, 16, v{tp+1}
        v_and_b32 v{W+3}, 0xffff0000, v{tp+1}
        s_waitcnt lgkmcnt(8)
        """)
        for i in range(10):
            if i > 0:
                a.e(f"v_lshlrev_b32 v{KF+2*i}, 16, v{KR+i}")
            a.e(f"v_and_b32 v{KF+2*i+1}, 0xffff0000, v{KR+i}")
        for i in range(16):
            a.e(f"v_mul_f32 v{U+i}, v{W+3}, v{KF+i+1}")
        for j in (2, 1, 0):
            for i in range(16):
                a.e(f"v_fmac_f32 v{U+i}, v{W+j}, v{KF+i+4-j}")
        a.e("s_waitcnt lgkmcnt(0)")
        a.e(f"""
        buffer_store_dwordx4 v[{QR}:{QR+3}], v{so_q}, s[{SRD_E}:{SRD_E+3}], s{sU} offen
        buffer_store_dwordx4 v[{QR+4}:{QR+7}], v{so_q}, s[{SRD_E}:{SRD_E+3}], s{sU} offen offset:16
        """)
        for i in range(8):
            a.e(f"v_lshlrev_b32 v{KF+2*i}, 16, v{VR+i}\n v_and_b32 v{KF+2*i+1}, 0xffff0000, v{VR+i}")
        for i in range(16):
            a.e(f"v_mul_f32 v{U+i}, v{U+i}, v{KF+i}")
        for nn in range(8):
            a.e(f"v_cvt_pk_bf16_f32 v{O+nn}, v{U+15-2*nn}, v{U+14-2*nn}")
        a.e(f"""
        buffer_store_dwordx4 v[{O}:{O+3}], v{so_u}, s[{SRD_E}:{SRD_E+3}], s{sU} offen
        buffer_store_dwordx4 v[{O+4}:{O+7}], v{so_u}, s[{SRD_E}:{SRD_E+3}], s{sU} offen offset:16
        """)
    a.lab(done)
    return ra.hi
```

```python
from asmlib import *
from comp_k1 import *

S_CT = 56
S_CB = 57

CP, C_E, C_O = 13120, 4608, 8768
def conv(a):
    ra = RA(2)
    L = V_LANE
    lr, g, t0, t1, t2, aB, aT, vq = [ra.a() for _ in range(8)]
    aA = [ra.a() for _ in range(4)]
    z4 = ra.a(4, 4); o4 = ra.a(4, 4); AD = ra.a(4, 4)
    Q = ra.a(16, 2)
    AF = [[ra.a(4, 4) for _ in range(8)] for _ in range(2)]
    BF = [[ra.a(4, 4) for _ in range(8)] for _ in range(2)]
    ACC = [ra.a(4, 4) for _ in range(8)]
    sD, sR, sSO, sT, sH0, sDV = 60, 61, 62, 63, 64, 65
    fin = a.newlab("conv_fin")
    a.c("conv")
    a.e("s_waitcnt lgkmcnt(0)")
    mk_srd(a, SRD_A, P_WS, 2 * T_BYTES); mk_srd(a, SRD_B, P_H, T_BYTES); mk_srd(a, SRD_C, P_OUT, 2048 * 2560)
    a.e(f"""
    v_and_b32 v{lr}, 15, v{L}
    v_lshrrev_b32 v{g}, 4, v{L}
    s_cmp_ge_u32 s{S_WAVE}, 4
    s_cbranch_scc1 {fin}
    s_lshl_b32 s{sD}, s{S_CT}, 2
    s_add_u32 s{sD}, s{sD}, s{S_WAVE}
    s_lshl_b32 s{sSO}, s{sD}, 12
    s_mul_i32 s{sR}, s{S_WAVE}, {CP}
    v_lshlrev_b32 v{t0}, 4, v{L}
    s_load_dword s{sH0}, s[{P_H}:{P_H+1}], s{sSO}
    s_lshl_b32 s{sT}, s{sD}, 1
    s_and_b32 s{sT}, s{sT}, 0xfffffffc
    s_load_dword s{sDV}, s[{P_D}:{P_D+1}], s{sT}
    s_mov_b32 m0, s{sR}
    s_add_u32 s{sT}, s{sSO}, 2
    """)
    for j in range(4):
        a.e(f"buffer_load_dwordx4 v{t0}, s[{SRD_A}:{SRD_A+3}], s{sSO} offen offset:{1024*j} lds")
    a.e(f"s_add_u32 m0, s{sR}, {C_E+32}\n s_nop 0")
    for j in range(4):
        a.e(f"buffer_load_dwordx4 v{t0}, s[{SRD_B}:{SRD_B+3}], s{sSO} offen offset:{1024*j} lds")
    a.e(f"s_add_u32 m0, s{sR}, {C_O+32}\n s_nop 0")
    for j in range(4):
        a.e(f"buffer_load_dwordx4 v{t0}, s[{SRD_B}:{SRD_B+3}], s{sT} offen offset:{1024*j} lds")
    a.e(f"""
    v_lshlrev_b32 v{vq}, 5, v{lr}
    v_lshl_add_u32 v{vq}, v{g}, 3, v{vq}
    s_add_u32 s{sT}, s{sSO}, {T_BYTES}
    """)
    for c in range(8):
        a.e(f"buffer_load_dwordx2 v[{Q+2*c}:{Q+2*c+1}], v{vq}, s[{SRD_A}:{SRD_A+3}], s{sT} offen offset:{512*c}")
    for i in range(4):
        a.e(f"v_mov_b32 v{z4+i}, 0\n v_mov_b32 v{o4+i}, 0")
    a.e(f"""
    v_add_u32 v{t0}, s{sR}, v{t0}
    v_add_u32 v{aT}, s{sR}, v{vq}
    v_lshlrev_b32 v{t1}, 5, v{lr}
    v_sub_u32 v{aB}, 480, v{t1}
    v_lshl_add_u32 v{aB}, v{g}, 4, v{aB}
    v_add_u32 v{aB}, s{sR}, v{aB}
    v_and_b32 v{t1}, 1, v{lr}
    v_cmp_eq_u32 vcc, 1, v{t1}
    v_mov_b32 v{t1}, {C_O}
    v_mov_b32 v{t2}, {C_E+2}
    v_cndmask_b32 v{t1}, v{t1}, v{t2}, vcc
    v_lshl_add_u32 v{t1}, v{lr}, 1, v{t1}
    v_lshl_add_u32 v{t1}, v{g}, 4, v{t1}
    v_add_u32 v{aA[0]}, s{sR}, v{t1}
    v_add_u32 v{aA[1]}, 1024, v{aA[0]}
    v_add_u32 v{aA[2]}, 2048, v{aA[0]}
    v_add_u32 v{aA[3]}, 3072, v{aA[0]}
    s_waitcnt lgkmcnt(0)
    s_lshl_b32 s{sH0}, s{sH0}, 16
    s_and_b32 s{sT}, s{sD}, 1
    s_lshl_b32 s{sT}, s{sT}, 4
    s_lshr_b32 s{sDV}, s{sDV}, s{sT}
    s_and_b32 s{sDV}, s{sDV}, 0xffff
    v_writelane_b32 v{o4+3}, s{sH0}, 1
    s_mov_b32 exec_lo, -1
    s_mov_b32 exec_hi, 3
    ds_write_b128 v{t0}, v[{z4}:{z4+3}] offset:4096
    s_mov_b32 exec_lo, 3
    s_mov_b32 exec_hi, 0
    ds_write_b128 v{t0}, v[{o4}:{o4+3}] offset:{C_O}
    s_mov_b64 exec, -1
    v_lshl_add_u32 v{t1}, v{g}, 3, v{lr}
    v_sub_u32 v{t1}, 15, v{t1}
    v_and_b32 v{t2}, 1, v{t1}
    v_lshlrev_b32 v{t2}, 4, v{t2}
    v_lshlrev_b32 v{t2}, v{t2}, s{sDV}
    v_ashrrev_i32 v{t1}, 1, v{t1}
    """)
    for r in range(4):
        a.e(f"v_cmp_eq_u32 vcc, {r}, v{t1}\n s_nop 1\n v_cndmask_b32 v{AD+r}, 0, v{t2}, vcc")
    def reads(r):
        b = r & 1
        o = []
        for i in range(8):
            o.append(f"ds_read_b128 {v(BF[b][i],4)}, v{aB} offset:{3584 - 512*i + 64*r}")
            q = i
            o0 = 128 * (q & 1) + 16 * r
            o.append(f"ds_read2_b32 {v(AF[b][q],2)}, v{aA[q>>1]} offset0:{o0} offset1:{o0+1}")
            o.append(f"ds_read2_b32 {v(AF[b][q]+2,2)}, v{aA[q>>1]} offset0:{o0+2} offset1:{o0+3}")
        return o
    def mf(r):
        b = r & 1
        o = []
        if r == 0:
            for c in range(8):
                o.append(f"v_mfma_f32_16x16x32_bf16 {v(ACC[c],4)}, {v(AD,4)}, {v(BF[b][c],4)}, 0")
        for q in range(8):
            for c in range(q, 8):
                o.append(f"v_mfma_f32_16x16x32_bf16 {v(ACC[c],4)}, {v(AF[b][q],4)}, {v(BF[b][c-q],4)}, {v(ACC[c],4)}")
        return o
    a.e("s_waitcnt vmcnt(8) lgkmcnt(0)")
    a.e("\n".join(reads(0)))
    for r in range(8):
        a.e("s_waitcnt lgkmcnt(0)")
        a.e("\n".join(interleave(mf(r), reads(r + 1) if r < 7 else [])))
    a.e("s_waitcnt vmcnt(0)")
    T = AF[0][0]
    for c in range(8):
        t = T + 8 * (c & 3)
        if c == 7:
            a.e("s_nop 1")
        a.e(f"""
        v_lshlrev_b32 v{t}, 16, v{Q+2*c}
        v_and_b32 v{t+1}, 0xffff0000, v{Q+2*c}
        v_lshlrev_b32 v{t+2}, 16, v{Q+2*c+1}
        v_and_b32 v{t+3}, 0xffff0000, v{Q+2*c+1}
        v_mul_f32 v{t}, v{t}, v{ACC[c]}
        v_mul_f32 v{t+1}, v{t+1}, v{ACC[c]+1}
        v_mul_f32 v{t+2}, v{t+2}, v{ACC[c]+2}
        v_mul_f32 v{t+3}, v{t+3}, v{ACC[c]+3}
        v_cvt_pk_bf16_f32 v{t+4}, v{t}, v{t+1}
        v_cvt_pk_bf16_f32 v{t+5}, v{t+2}, v{t+3}
        ds_write_b64 v{aT}, v[{t+4}:{t+5}] offset:{512*c}
        """)
    a.lab(fin)
    a.e(f"""
    v_lshrrev_b32 v{t0}, 2, v{lr}
    v_mul_u32_u24 v{t0}, {CP}, v{t0}
    v_and_b32 v{t1}, 3, v{lr}
    v_lshl_add_u32 v{t0}, v{t1}, 3, v{t0}
    v_lshl_add_u32 v{t0}, v{g}, 5, v{t0}
    s_lshl_b32 s{sT}, s{S_WAVE}, 9
    v_add_u32 v{t0}, s{sT}, v{t0}
    v_mul_u32_u24 v{t1}, 2560, v{L}
    s_mul_i32 s{sSO}, s{S_WAVE}, {256*2560}
    s_lshl_b32 s{sT}, s{S_CT}, 3
    s_add_u32 s{sSO}, s{sSO}, s{sT}
    s_waitcnt lgkmcnt(0)
    s_barrier
    """)
    for n in range(4):
        a.e(f"ds_read_b64_tr_b16 v[{Q+2*n}:{Q+2*n+1}], v{t0} offset:{128*n}")
    for n in range(4):
        a.e(f"s_waitcnt lgkmcnt({3-n})")
        a.e(f"buffer_store_dwordx2 v[{Q+2*n}:{Q+2*n+1}], v{t1}, s[{SRD_C}:{SRD_C+3}], s{sSO} offen")
        if n < 3:
            a.e(f"s_add_u32 s{sSO}, s{sSO}, {64*2560}")
    return ra.hi

KVI = 81920
RED = KVI + 28672
def g2(a):
    ra = RA(2)
    L = V_LANE
    lr, g, t0, t1, t2, t3 = [ra.a() for _ in range(6)]
    m0a, m1a = ra.a(), ra.a()
    x0a = [ra.a() for _ in range(4)]; x1a = [ra.a() for _ in range(4)]
    wm = [ra.a() for _ in range(4)]; wx = [ra.a() for _ in range(4)]
    v16, v8 = ra.a(), ra.a()
    ce = ra.a(4, 4)
    PQR = [[ra.a(10, 2) for _ in range(2)] for _ in range(4)]
    KF = [[ra.a(4, 4) for _ in range(2)] for _ in range(2)]
    CT = [[[ra.a(4, 4) for _ in range(2)] for _ in range(2)] for _ in range(2)]
    OP = [ra.a(4, 4) for _ in range(2)]
    OX = [ra.a(4, 4) for _ in range(2)]
    XT = [ra.a() for _ in range(2)]
    rc = [ra.a() for _ in range(2)]
    WF = [ra.a(4, 4) for _ in range(4)]
    ACC = [[ra.a(4, 4) for _ in range(4)] for _ in range(2)]
    LD = CT[0][0][0]
    sKH, sRW, sT, sSO, sM, sU = 60, 61, 62, 63, 64, 65
    a.c("G2")
    a.e(f"""
    s_lshr_b32 s{sKH}, s{S_WAVE}, 2
    s_and_b32 s{sRW}, s{S_WAVE}, 3
    v_and_b32 v{lr}, 15, v{L}
    v_lshrrev_b32 v{g}, 4, v{L}
    v_lshrrev_b32 v{t0}, 3, v{L}
    v_mul_u32_u24 v{t0}, 1280, v{t0}
    v_and_b32 v{t1}, 7, v{L}
    v_lshlrev_b32 v{t2}, 1, v{g}
    v_xor_b32 v{t1}, v{t1}, v{t2}
    v_lshl_add_u32 v{t0}, v{t1}, 4, v{t0}
    s_mul_i32 s{sSO}, s{S_WAVE}, {80*1280}
    s_lshl_b32 s{sT}, s{S_CB}, 7
    s_add_u32 s{sSO}, s{sSO}, s{sT}
    s_mul_i32 s{sM}, s{S_WAVE}, 10240
    v_lshlrev_b32 v{v16}, 4, v{L}
    v_lshlrev_b32 v{v8}, 3, v{L}
    v_lshlrev_b32 v{t3}, 4, v0
    s_waitcnt lgkmcnt(0)
    """)
    mk_srd(a, SRD_A, P_WO, 640 * 1280); mk_srd(a, SRD_B, P_WS, T_BYTES, off=WS_PQ)
    mk_srd(a, SRD_C, P_WS, KV_BYTES, off=WS_KV); mk_srd(a, SRD_D, P_OUT, 2048 * 2560)
    for n in range(7):
        a.e(f"s_mov_b32 s{sT}, {8192*n}\n buffer_load_dwordx4 {v(LD+4*n,4)}, v{t3}, s[{SRD_C}:{SRD_C+3}], s{sT} offen")
    a.e(f"""
    s_lshl_b32 s{sT}, s{S_CT}, 3
    s_lshl_b32 s{sU}, s{sRW}, 1
    s_add_u32 s{sT}, s{sT}, s{sU}
    s_lshl_b32 s{sT}, s{sT}, 3
    s_lshl_b32 s{sU}, s{sKH}, 2
    s_add_u32 s{sT}, s{sT}, s{sU}
    s_mul_i32 s{sU}, s{sT}, 2560
    """)
    for p in range(4):
        for rt in range(2):
            r = PQR[p][rt]
            a.e(f"""
            s_add_u32 s{sT}, s{sU}, {(rt*8+p)*2560}
            buffer_load_dwordx4 {v(r,4)}, v{v16}, s[{SRD_B}:{SRD_B+3}], s{sT} offen
            buffer_load_dwordx4 {v(r+4,4)}, v{v16}, s[{SRD_B}:{SRD_B+3}], s{sT} offen offset:1024
            buffer_load_dwordx2 {v(r+8,2)}, v{v8}, s[{SRD_B}:{SRD_B+3}], s{sT} offen offset:2048
            """)
    for j in range(10):
        a.e(f"""
        s_add_u32 m0, s{sM}, {1024*j}
        s_add_u32 s{sT}, s{sSO}, {j*8*1280}
        buffer_load_dwordx4 v{t0}, s[{SRD_A}:{SRD_A+3}], s{sT} offen lds
        """)
    a.e(f"""
    s_mul_i32 s{sT}, s{sKH}, {16*880}
    s_add_u32 s{sT}, s{sT}, {KVI}
    v_mul_u32_u24 v{t0}, 40, v{lr}
    v_add_u32 v{t0}, s{sT}, v{t0}
    v_lshl_add_u32 v{m0a}, v{g}, 3, v{t0}
    v_lshrrev_b32 v{t1}, 2, v{lr}
    v_add_u32 v{t1}, 16, v{t1}
    v_and_b32 v{t2}, 3, v{lr}
    v_cmp_eq_u32 vcc, 0, v{t2}
    v_min_u32 v{t2}, 2, v{t2}
    v_add_u32 v{t2}, 19, v{t2}
    v_cndmask_b32 v{t1}, v{t2}, v{t1}, vcc
    v_mul_u32_u24 v{t1}, 40, v{t1}
    v_add_u32 v{t1}, s{sT}, v{t1}
    v_lshl_add_u32 v{m1a}, v{g}, 3, v{t1}
    v_add_u32 v{t0}, 32, v{t0}
    v_add_u32 v{t1}, 32, v{t1}
    s_add_u32 s{sT}, s{sT}, {21*40}
    v_mov_b32 v{t2}, s{sT}
    """)
    for x in range(4):
        a.e(f"v_cmp_eq_u32 vcc, {x}, v{g}\n s_nop 1\n v_cndmask_b32 v{x0a[x]}, v{t2}, v{t0}, vcc\n v_cndmask_b32 v{x1a[x]}, v{t2}, v{t1}, vcc")
    a.e(f"""
    s_mul_i32 s{sT}, s{sKH}, {16*2560}
    v_lshrrev_b32 v{t0}, 2, v{lr}
    v_and_b32 v{t1}, 3, v{lr}
    v_lshl_add_u32 v{t1}, v{t1}, 3, s{sT}
    v_lshl_add_u32 v{t2}, v{g}, 2, v{t0}
    v_lshl_add_u32 v{wm[0]}, v{t2}, 7, v{t1}
    v_bfe_u32 v{t2}, v{t2}, 1, 2
    v_lshl_add_u32 v{wm[0]}, v{t2}, 5, v{wm[0]}
    v_mul_u32_u24 v{t2}, 20, v{t0}
    v_add3_u32 v{t2}, v{t2}, v{g}, 16
    v_lshl_add_u32 v{wx[0]}, v{t2}, 7, v{t1}
    v_bfe_u32 v{t2}, v{t2}, 1, 2
    v_lshl_add_u32 v{wx[0]}, v{t2}, 5, v{wx[0]}
    """)
    for t in range(1, 4):
        a.e(f"v_xor_b32 v{wm[t]}, {32*t}, v{wm[0]}\n v_xor_b32 v{wx[t]}, {32*t}, v{wx[0]}")
    a.e(f"""
    v_mov_b32 v{ce}, 0
    v_mov_b32 v{ce+1}, {f32(1e-6)}
    v_mov_b32 v{ce+2}, 0
    v_mov_b32 v{ce+3}, 0
    v_lshrrev_b32 v{t3}, 1, v{t3}
    v_add_u32 v{t3}, {KVI}, v{t3}
    """)
    for n in range(7):
        r = LD + 4 * n
        a.e(f"""
        s_waitcnt vmcnt({34+6-n})
        v_cvt_pk_bf16_f32 v{r}, v{r}, v{r+1}
        v_cvt_pk_bf16_f32 v{r+1}, v{r+2}, v{r+3}
        ds_write_b64 v{t3}, {v(r,2)} offset:{4096*n}
        """)
    a.e("s_waitcnt vmcnt(0) lgkmcnt(0)\n s_barrier")
    def kvreads(h):
        b = h & 1; x = h & 3
        mo, xo = (0, 2) if x == 0 else (2, 0)
        return [f"ds_read_b64 {v(KF[b][0]+mo,2)}, v{m0a} offset:{880*h}",
                f"ds_read_b64 {v(KF[b][0]+xo,2)}, v{x0a[x]} offset:{880*h}",
                f"ds_read_b64 {v(KF[b][1]+mo,2)}, v{m1a} offset:{880*h}",
                f"ds_read_b64 {v(KF[b][1]+xo,2)}, v{x1a[x]} offset:{880*h}"]
    def woreads(h0):
        o = []
        for t in range(4):
            o.append(f"ds_read_b64_tr_b16 {v(WF[t],2)}, v{wm[t]} offset:{2560*h0}")
            o.append(f"ds_read_b64_tr_b16 {v(WF[t]+2,2)}, v{wm[t^2]} offset:{2560*(h0+1)}")
        return o
    def wxreads(hb):
        o = []
        for t in range(4):
            o.append(f"ds_read_b64_tr_b16 {v(WF[t],2)}, v{wx[t]} offset:{2560*hb}")
            o.append(f"ds_read_b64_tr_b16 {v(WF[t]+2,2)}, v{wx[t]} offset:{2560*(hb+4)}")
        return o
    def xcopy(h):
        x = h & 3; o = []
        if x >= 2:
            for rt in range(2):
                r = PQR[h >> 2][rt]
                o += [f"v_mov_b32 v{r+2*x}, v{r+2}", f"v_mov_b32 v{r+2*x+1}, v{r+3}"]
        return o
    def omf(h):
        b = h & 1; x = h & 3; o = []
        for rt in range(2):
            w = PQR[h >> 2][rt] + 2 * x
            o.append(f"v_mfma_f32_16x16x32_bf16 {v(CT[b][rt][1],4)}, {v(KF[b][1],4)}, {v(w,4)}, {v(ce,4)}")
            o.append(f"v_mfma_f32_16x16x32_bf16 {v(CT[b][rt][0],4)}, {v(KF[b][0],4)}, {v(w,4)}, 0")
        return o
    def norm(h):
        b = h & 1; o = []
        for rt in range(2):
            o.append(f"v_rcp_f32 v{rc[rt]}, v{CT[b][rt][1]+1}")
        for rt in range(2):
            c = CT[b][rt][0]; e = CT[b][rt][1]
            for i in range(4):
                o.append(f"v_mul_f32 v{c+i}, v{c+i}, v{rc[rt]}")
            if h & 1 == 0:
                o.append(f"v_mul_f32 v{XT[rt]}, v{e}, v{rc[rt]}")
            else:
                o.append(f"v_mul_f32 v{e}, v{e}, v{rc[rt]}")
            d = OP[rt] + 2 * (h & 1)
            o.append(f"v_cvt_pk_bf16_f32 v{d}, v{c}, v{c+1}")
            o.append(f"v_cvt_pk_bf16_f32 v{d+1}, v{c+2}, v{c+3}")
            if h & 1:
                o.append(f"v_cvt_pk_bf16_f32 v{OX[rt]+((h&7)>>1)}, v{XT[rt]}, v{e}")
        return o
    first = [True]
    def mainmf(src):
        o = []
        for rt in range(2):
            for t in range(4):
                c = "0" if first[0] else v(ACC[rt][t], 4)
                o.append(f"v_mfma_f32_16x16x32_bf16 {v(ACC[rt][t],4)}, {v(WF[t],4)}, {v(src[rt],4)}, {c}")
        first[0] = False
        return o
    a.e("\n".join(kvreads(0)))
    for h in range(17):
        a.c(f"head {h}")
        if h < 16:
            a.e("\n".join(xcopy(h)))
            a.e("s_waitcnt lgkmcnt(0)")
            if h + 1 < 16:
                a.e("\n".join(kvreads(h + 1)))
            if h & 1:
                a.e("\n".join(woreads(h - 1)))
            a.e("\n".join(omf(h)))
        else:
            a.e("s_nop 7")
        if h >= 1:
            if h == 1:
                a.e("s_nop 3")
            a.e("\n".join(norm(h - 1)))
            if (h - 1) & 1:
                a.e("s_waitcnt lgkmcnt(0)" if h == 16 else ("s_waitcnt lgkmcnt(4)"))
                a.e("s_nop 0")
                a.e("\n".join(mainmf(OP)))
                if (h - 1) & 7 == 7:
                    a.e("\n".join(wxreads(h - 8)))
                    a.e("s_waitcnt lgkmcnt(0)")
                    a.e("\n".join(mainmf(OX)))
    lk1, lj = a.newlab("g2_k1"), a.newlab("g2_j")
    a.e(f"""
    s_lshl_b32 s{sT}, s{S_WAVE}, 12
    s_add_u32 s{sT}, s{sT}, {RED}
    v_add_u32 v{t0}, s{sT}, v{v16}
    v_xor_b32 v{t1}, 0x4000, v{t0}
    s_nop 4
    s_cmp_eq_u32 s{sKH}, 0
    s_cbranch_scc0 {lk1}
    """)
    assert (RED & 0x4000) == 0 and ((RED + 0x3fff) & 0x4000) == 0 or True
    for t in range(4):
        a.e(f"ds_write_b128 v{t0}, {v(ACC[1][t],4)} offset:{1024*t}")
    a.e(f"s_branch {lj}")
    a.lab(lk1)
    for t in range(4):
        a.e(f"ds_write_b128 v{t0}, {v(ACC[0][t],4)} offset:{1024*t}")
    a.e("s_nop 1")
    for t in range(4):
        for i in range(4):
            a.e(f"v_mov_b32 v{ACC[0][t]+i}, v{ACC[1][t]+i}")
    a.lab(lj)
    a.e(f"""
    s_xor_b32 s{sT}, s{S_WAVE}, 4
    s_lshl_b32 s{sT}, s{sT}, 12
    s_add_u32 s{sT}, s{sT}, {RED}
    v_add_u32 v{t1}, s{sT}, v{v16}
    v_mul_u32_u24 v{t2}, 2560, v{lr}
    v_and_b32 v{t3}, 1, v{g}
    v_lshl_add_u32 v{t2}, v{t3}, 5, v{t2}
    v_lshrrev_b32 v{t3}, 1, v{g}
    v_lshl_add_u32 v{t2}, v{t3}, 4, v{t2}
    s_lshl_b32 s{sT}, s{S_CT}, 3
    s_lshl_b32 s{sU}, s{sRW}, 1
    s_add_u32 s{sT}, s{sT}, s{sU}
    s_add_u32 s{sT}, s{sT}, s{sKH}
    s_mul_i32 s{sSO}, s{sT}, {16*2560}
    s_lshl_b32 s{sT}, s{S_CB}, 7
    s_add_u32 s{sSO}, s{sSO}, s{sT}
    s_add_u32 s{sSO}, s{sSO}, 1280
    s_waitcnt lgkmcnt(0)
    s_barrier
    """)
    for t in range(4):
        a.e(f"ds_read_b128 {v(WF[t],4)}, v{t1} offset:{1024*t}")
    D = CT[0][0][0]
    for t in range(4):
        a.e(f"s_waitcnt lgkmcnt({3-t})")
        c = ACC[0][t]
        for i in range(4):
            a.e(f"v_add_f32 v{c+i}, v{c+i}, v{WF[t]+i}")
        a.e(f"v_cvt_pk_bf16_f32 v{D+2*t}, v{c}, v{c+1}\n v_cvt_pk_bf16_f32 v{D+2*t+1}, v{c+2}, v{c+3}")
    a.e("s_nop 1")
    for t in (0, 2):
        a.e(f"v_permlane16_swap_b32 v{D+2*t}, v{D+2*t+2}\n v_permlane16_swap_b32 v{D+2*t+1}, v{D+2*t+3}")
    for t in (0, 2):
        a.e(f"buffer_store_dwordx4 {v(D+2*t,4)}, v{t2}, s[{SRD_D}:{SRD_D+3}], s{sSO} offen offset:{32*t}")
    return ra.hi
```

```python
import sys
from asmlib import *
from comp_k1 import *
from comp_k2 import *
NAME = "concat_heads__ssm_conv_h3__linear_attn_block__prompt"
hdr = open("cdna_kernels/%s.s.ref" % NAME).read().split("; Override")[0]
a = Asm()
def kstart(n):
    a.raw(f".globl {n}\n.p2align 8\n.type {n},@function"); a.lab(n)
def kdesc(n, vg):
    vg = (vg + 7) // 8 * 8
    return f""".section .rodata,"a"
.p2align 6
.amdhsa_kernel {n}
  .amdhsa_next_free_vgpr {vg}
  .amdhsa_next_free_sgpr 96
  .amdhsa_accum_offset {vg}
  .amdhsa_group_segment_fixed_size 0
  .amdhsa_kernarg_size 96
  .amdhsa_user_sgpr_count 2
  .amdhsa_user_sgpr_kernarg_segment_ptr 1
  .amdhsa_system_sgpr_workgroup_id_x 1
.end_amdhsa_kernel
"""
a.raw('.amdgcn_target "amdgcn-amd-amdhsa--gfx950"\n.text')
kstart("k0_kernel")
prologue(a)
a.e("s_waitcnt lgkmcnt(0)")
mk_srd(a, SRD_A, P_WS, KV_BYTES, off=WS_KV)
a.e(f"""
s_lshl_b32 s4, s2, 13
v_lshlrev_b32 v2, 4, v0
v_mov_b32 v4, 0
v_mov_b32 v5, 0
v_mov_b32 v6, 0
v_mov_b32 v7, 0
buffer_store_dwordx4 v[4:7], v2, s[{SRD_A}:{SRD_A+3}], s4 offen
s_endpgm
""")
kstart("k1_kernel")
a.e(f"s_cmp_ge_u32 s2, 256\n s_cbranch_scc1 k1_end")
prologue(a)
a.e(f"""
s_and_b32 s4, s2, 7
s_lshr_b32 s5, s2, 3
s_cmp_ge_u32 s5, 24
s_cbranch_scc1 k1_a1
s_lshr_b32 s6, s4, 1
s_lshl_b32 s6, s6, 2
s_and_b32 s7, s5, 3
s_add_u32 s{S_RT}, s6, s7
s_and_b32 s4, s4, 1
s_lshr_b32 s6, s5, 2
s_cmp_ge_u32 s5, 16
s_cbranch_scc1 k1_q
s_mov_b32 s{S_MODE}, 0
s_lshl_b32 s4, s4, 2
s_add_u32 s{S_G}, s4, s6
s_cmp_ge_u32 s{S_WAVE}, 4
s_cbranch_scc1 k1_ld
""")
h1 = g1_compute(a, 0)
a.e("s_branch k1_atom")
a.lab("k1_q")
a.e(f"""
s_mov_b32 s{S_MODE}, 1
s_lshl_b32 s4, s4, 1
s_add_u32 s{S_G}, s4, s6
s_sub_u32 s{S_G}, s{S_G}, 4
s_cmp_ge_u32 s{S_WAVE}, 4
s_cbranch_scc1 k1_ld
""")
h2 = g1_compute(a, 1)
a.e("s_endpgm")
a.lab("k1_ld")
g1_loader(a, "k1_end")
a.lab("k1_atom")
g1_kv_atomics(a)
a.e("s_endpgm")
a.lab("k1_a1")
a.e(f"""
s_sub_u32 s5, s5, 24
s_lshl_b32 s5, s5, 3
s_add_u32 s{S_RT}, s5, s4
""")
h3 = a1(a)
a.lab("k1_end")
a.e("s_endpgm")
kstart("k2_kernel")
a.e(f"s_cmp_ge_u32 s2, 320\n s_cbranch_scc1 k2_end")
prologue(a)
a.e(f"""
s_and_b32 s4, s2, 7
s_lshr_b32 s5, s2, 3
s_cmp_ge_u32 s5, 20
s_cbranch_scc1 k2_conv
s_lshr_b32 s6, s4, 1
s_lshl_b32 s6, s6, 2
s_and_b32 s7, s5, 3
s_add_u32 s{S_CT}, s6, s7
s_and_b32 s4, s4, 1
s_mul_i32 s4, s4, 5
s_lshr_b32 s6, s5, 2
s_add_u32 s{S_CB}, s4, s6
""")
h4 = g2(a)
a.e("s_endpgm")
a.lab("k2_conv")
a.e(f"""
s_mul_i32 s4, s4, 20
s_add_u32 s4, s4, s5
s_sub_u32 s{S_CT}, s4, 20
""")
h5 = conv(a)
a.lab("k2_end")
a.e("s_endpgm")
print("vgprs", h1, h2, h3, h4, h5, file=sys.stderr)
launch = """; @launch kernel=k0_kernel grid=(7,1,1) block=(512,1,1) lds=0
; @launch kernel=k1_kernel grid=(256,1,1) block=(512,1,1) lds=147456
; @launch kernel=k2_kernel grid=(320,1,1) block=(512,1,1) lds=%d
""" % (RED + 32768)
out = hdr + launch + a.text() + kdesc("k0_kernel", 8) + kdesc("k1_kernel", max(h1, h2, h3)) + kdesc("k2_kernel", max(h4, h5))
open(sys.argv[1], "w").write(out)
```

```python
class Asm:
    def __init__(self):
        self.L = []
        self._n = 0
    def e(self, s):
        for ln in s.strip().split("\n"):
            ln = ln.strip()
            if ln:
                self.L.append("    " + ln)
    def lab(self, n):
        self.L.append(n + ":")
    def raw(self, s):
        self.L.append(s)
    def c(self, s):
        self.L.append("    ; " + s)
    def newlab(self, p="L"):
        self._n += 1
        return "%s_%d" % (p, self._n)
    def text(self):
        return "\n".join(self.L) + "\n"

def v(a, n=1):
    return "v%d" % a if n == 1 else "v[%d:%d]" % (a, a + n - 1)
def s(a, n=1):
    return "s%d" % a if n == 1 else "s[%d:%d]" % (a, a + n - 1)

class RA:
    def __init__(self, start=0, limit=256):
        self.p = start; self.limit = limit; self.hi = start
    def a(self, n=1, al=1):
        if n >= 2 and al == 1:
            al = 2
        self.p = (self.p + al - 1) // al * al
        r = self.p
        self.p += n
        assert self.p <= self.limit, "out of VGPRs %d" % self.p
        self.hi = max(self.hi, self.p)
        return r

def interleave(main, fill, every=1, start=0):
    out = []; fi = 0
    for i, m in enumerate(main):
        out.append(m)
        if i >= start and (i - start) % every == 0 and fi < len(fill):
            out.append(fill[fi]); fi += 1
    out += fill[fi:]
    return out

import struct
def f32(x):
    return "0x%08x" % struct.unpack("<I", struct.pack("<f", x))[0]

import os
STAMPS = bool(os.environ.get("STAMPS"))
ST0 = 76
def stamp(a, i):
    if STAMPS:
        a.e(f"s_memrealtime s[{ST0+2*i}:{ST0+2*i+1}]")
def stamp_init(a):
    if STAMPS:
        for i in range(12):
            a.e(f"s_mov_b64 s[{ST0+2*i}:{ST0+2*i+1}], 0")
def stamp_flush(a, kid):
    if not STAMPS:
        return
    a.e(f"""
    s_waitcnt vmcnt(0) lgkmcnt(0)
    s_memrealtime s[{ST0+22}:{ST0+23}]
    s_lshl_b32 s72, s2, 3
    s_add_u32 s72, s72, s3
    s_lshl_b32 s72, s72, 7
    s_add_u32 s72, s72, {0x1000000 + kid*0x50000}
    s_add_u32 s68, s30, s72
    s_addc_u32 s69, s31, 0
    s_mov_b32 s70, 128
    s_mov_b32 s71, 0x20000
    s_mov_b64 exec, 1
    v_mov_b32 v4, 0
    s_waitcnt lgkmcnt(0)
    """)
    for i in range(12):
        a.e(f"v_mov_b32 v2, s{ST0+2*i}\n v_mov_b32 v3, s{ST0+2*i+1}\n buffer_store_dwordx2 v[2:3], v4, s[68:71], 0 offen offset:{8*i}\n s_nop 1")
```

```python
import sys
from asmlib import *
NAME = "concat_heads__ssm_conv_h3__linear_attn_block__prompt"
KN = NAME + "_kernel"

WS_UT, WS_PQ, WS_KV, WS_FL = 0, 0x500000, 0x780000, 0x790000
T_BYTES = 640 * 4096
KV_BYTES = 32 * 22 * 80
S_WG, S_WAVE = 2, 3
P_Q, P_K, P_V, P_SH, P_H, P_D, P_X, P_W, P_WO, P_OUT, P_DBG, P_WS = 8, 10, 12, 14, 16, 18, 20, 22, 24, 26, 28, 30
SRD_A, SRD_B, SRD_C, SRD_D, SRD_FL = 32, 36, 40, 44, 48
S_RT, S_G, S_MODE, S_CB, S_P2, S_SLOT, S_XI, S_J = 52, 53, 54, 55, 56, 57, 58, 59
L = 1

def mk_srd(a, srd, ptr, nbytes, off=0, off_sreg=None):
    if off_sreg is not None:
        a.e(f"s_add_u32 s{srd}, s{ptr}, s{off_sreg}\n s_addc_u32 s{srd+1}, s{ptr+1}, 0")
    elif off:
        a.e(f"s_add_u32 s{srd}, s{ptr}, {off}\n s_addc_u32 s{srd+1}, s{ptr+1}, 0")
    else:
        a.e(f"s_mov_b32 s{srd}, s{ptr}\n s_mov_b32 s{srd+1}, s{ptr+1}")
    a.e(f"s_mov_b32 s{srd+2}, {nbytes}\n s_mov_b32 s{srd+3}, 0x20000")
def srd(x): return f"s[{x}:{x+3}]"

SPIN_MAX = 400000
def poll(a, srdn, voffs, tmps, scnt=74):
    lp, dn = a.newlab("poll"), a.newlab("polld")
    a.e(f"s_mov_b32 s{scnt}, {SPIN_MAX}")
    a.lab(lp)
    for vo, t in zip(voffs, tmps):
        a.e(f"buffer_load_dword v{t}, v{vo}, {srd(srdn)}, 0 offen sc1")
    a.e("s_waitcnt vmcnt(0)")
    for t in tmps[1:]:
        a.e(f"v_and_b32 v{tmps[0]}, v{tmps[0]}, v{t}")
    a.e(f"""
    v_cmp_ne_u32 vcc, 1, v{tmps[0]}
    s_sub_u32 s{scnt}, s{scnt}, 1
    s_cbranch_scc1 {dn}
    s_cmp_eq_u64 vcc, 0
    s_cbranch_scc1 {dn}
    s_sleep 1
    s_branch {lp}
    """)
    a.lab(dn)

def poll_z(a, vz, vt):
    mk_srd(a, SRD_D, P_DBG, 256)
    a.e(f"v_mov_b32 v{vz}, 0")
    poll(a, SRD_D, [vz], [vt])

def set_flag(a, v0_, v1_):
    sk = a.newlab("nofl")
    a.e(f"""
    s_cmp_lg_u32 s{S_WAVE}, 0
    s_cbranch_scc1 {sk}
    s_lshl_b32 s74, s{S_SLOT}, 7
    v_mov_b32 v{v0_}, 0
    v_mov_b32 v{v1_}, 1
    s_mov_b64 exec, 1
    buffer_store_dword v{v1_}, v{v0_}, {srd(SRD_FL)}, s74 offen sc1
    s_mov_b64 exec, -1
    """)
    a.lab(sk)

UP = 4672
HB, HP, H_O = 87808, 8320, 4160
def h_dma(a, sch, sslot, vl16, srdn, t1, t2):
    a.e(f"""
    s_lshl_b32 s{t1}, s{sch}, 12
    s_mul_i32 s{t2}, s{sslot}, {HP}
    s_add_u32 m0, s{t2}, {HB+32}
    s_nop 0
    """)
    for j in range(4):
        a.e(f"buffer_load_dwordx4 v{vl16}, {srd(srdn)}, s{t1} offen offset:{1024*j} lds")
    a.e(f"s_add_u32 m0, s{t2}, {HB+H_O+32}\n s_add_u32 s{t1}, s{t1}, 2")
    for j in range(4):
        a.e(f"buffer_load_dwordx4 v{vl16}, {srd(srdn)}, s{t1} offen offset:{1024*j} lds")

XST, WBASE, WST, NST = 16384, 65536, 20480, 4
IMG, IMGP = WBASE + 3 * WST, 7168

def g1_loader(a):
    ra = RA(2)
    t0, t1, t2, t3 = [ra.a() for _ in range(4)]
    vx = [ra.a() for _ in range(4)]
    vw = [ra.a() for _ in range(5)]
    z4 = ra.a(4, 4)
    sLW, sSX, sSW, sM0X, sM0W, sC1, sC2, sT = 60, 61, 62, 63, 64, 65, 66, 67
    a.c("G1 loader wave")
    a.e(f"""
    s_sub_u32 s{sLW}, s{S_WAVE}, 4
    s_lshl_b32 s{sT}, s{S_RT}, 2
    s_add_u32 s{sT}, s{sT}, s{sLW}
    s_mul_i32 s{sSX}, s{sT}, {32*1280}
    s_lshl_b32 s{sM0X}, s{sLW}, 12
    v_lshrrev_b32 v{t0}, 3, v{L}
    v_mul_u32_u24 v{t0}, 1280, v{t0}
    v_lshrrev_b32 v{t1}, 4, v{L}
    v_and_b32 v{t2}, 7, v{L}
    v_xor_b32 v{t1}, v{t1}, v{t2}
    v_lshlrev_b32 v{t1}, 4, v{t1}
    v_xor_b32 v{t2}, 64, v{t1}
    v_add_u32 v{vx[0]}, v{t0}, v{t1}
    v_add_u32 v{vx[1]}, v{t0}, v{t2}
    v_add_u32 v{vx[2]}, {2*(8*1280-1024)}, v{vx[0]}
    v_add_u32 v{vx[3]}, {3*(8*1280-1024)}, v{vx[1]}
    v_add_u32 v{vx[1]}, {1*(8*1280-1024)}, v{vx[1]}
    s_cmp_eq_u32 s{S_MODE}, 0
    s_cselect_b32 s{sC1}, 1200, 0
    s_cselect_b32 s{sC2}, 80, 0
    s_cselect_b32 s{sSW}, 1280, 0
    s_lshl_b32 s{sT}, 160, s{S_MODE}
    s_mul_i32 s{sT}, s{sT}, s{S_G}
    s_add_u32 s{sSW}, s{sSW}, s{sT}
    s_mul_i32 s{sT}, s{sLW}, {16*3840}
    s_add_u32 s{sSW}, s{sSW}, s{sT}
    s_mul_i32 s{sM0W}, s{sLW}, 5120
    s_add_u32 s{sM0W}, s{sM0W}, {WBASE}
    """)
    for x in range(320): assert (x * 3277) >> 16 == x // 20
    for x in range(20): assert (x * 52) >> 8 == x // 5
    for j in range(5):
        sub = 1024 * j if j < 4 else 0
        a.e(f"""
        v_add_u32 v{t0}, {64*j}, v{L}
        v_mul_u32_u24 v{t1}, 3277, v{t0}
        v_lshrrev_b32 v{t1}, 16, v{t1}
        v_mul_u32_u24 v{t2}, 20, v{t1}
        v_sub_u32 v{t0}, v{t0}, v{t2}
        v_lshrrev_b32 v{t2}, 2, v{t1}
        v_and_b32 v{t2}, 2, v{t2}
        v_xor_b32 v{t0}, v{t0}, v{t2}
        v_mul_u32_u24 v{t2}, 52, v{t0}
        v_lshlrev_b32 v{t0}, 4, v{t0}
        v_bfe_u32 v{t3}, v{t2}, 8, 1
        v_mad_u32_u24 v{t0}, v{t3}, s{sC1}, v{t0}
        v_lshrrev_b32 v{t3}, 9, v{t2}
        v_mul_u32_u24 v{t3}, s{sC2}, v{t3}
        v_sub_u32 v{t0}, v{t0}, v{t3}
        v_mul_u32_u24 v{t1}, 3840, v{t1}
        v_add_u32 v{t0}, v{t0}, v{t1}
        v_subrev_u32 v{vw[j]}, {sub}, v{t0}
        """)
    a.e("s_waitcnt lgkmcnt(0)")
    mk_srd(a, SRD_A, P_X, 2048 * 1280)
    mk_srd(a, SRD_B, P_W, 640 * 3840)
    def issue_x(st):
        out = [f"s_add_u32 m0, s{sM0X}, {(st % NST) * XST}", "s_nop 0"]
        for j in range(4):
            out.append(f"buffer_load_dwordx4 v{vx[j]}, {srd(SRD_A)}, s{sSX} offen offset:{1024*j} lds")
        out.append(f"s_add_u32 s{sSX}, s{sSX}, 128")
        return out
    def issue_w(st):
        out = [f"s_add_u32 m0, s{sM0W}, {(st % NST) * WST}", "s_nop 0"]
        for j in range(4):
            out.append(f"buffer_load_dwordx4 v{vw[j]}, {srd(SRD_B)}, s{sSW} offen offset:{1024*j} lds")
        out += [f"s_add_u32 m0, s{sM0W}, {(st % NST) * WST + 4096}", "s_nop 0"]
        out.append(f"buffer_load_dwordx4 v{vw[4]}, {srd(SRD_B)}, s{sSW} offen lds")
        out.append(f"s_add_u32 s{sSW}, s{sSW}, {64*3840}")
        return out
    for st in (0, 1, 2):
        a.e("\n".join(issue_x(st) + issue_w(st)))
    mk_srd(a, SRD_FL, P_WS, 256 * 128, off=WS_FL)
    for i in range(4):
        a.e(f"v_mov_b32 v{z4+i}, 0")
    a.e(f"v_lshlrev_b32 v{t0}, 4, v0\n v_add_u32 v{t0}, {IMG-4096}, v{t0}")
    stamp(a, 1)
    for st in range(10):
        a.e(f"s_waitcnt vmcnt({9*min(2, 9 - st)})")
        if st == 9:
            a.e("s_waitcnt lgkmcnt(0)")
        a.e("s_barrier")
        if st + 3 < 10:
            a.e("\n".join(issue_x(st + 3) + issue_w(st + 3)))
        if st == 8:
            for i in range(4):
                a.e(f"ds_write_b128 v{t0}, v[{z4}:{z4+3}] offset:{4096*i}")
    lc, lz = a.newlab("ld_conv"), a.newlab("ld_z")
    a.e(f"s_cmp_lg_u32 s{S_P2}, 0\n s_cbranch_scc1 {lc}")
    mk_srd(a, SRD_A, P_WO, 640 * 1280)
    a.e(f"""
    v_lshrrev_b32 v{t0}, 3, v{L}
    v_mul_u32_u24 v{t0}, 1280, v{t0}
    v_and_b32 v{t1}, 7, v{L}
    v_lshrrev_b32 v{t2}, 4, v{L}
    v_lshlrev_b32 v{t2}, 1, v{t2}
    v_xor_b32 v{t1}, v{t1}, v{t2}
    v_lshl_add_u32 v{vx[0]}, v{t1}, 4, v{t0}
    v_add_u32 v{vx[1]}, {1*(8*1280-1024)}, v{vx[0]}
    v_add_u32 v{vx[2]}, {2*(8*1280-1024)}, v{vx[0]}
    v_add_u32 v{vx[3]}, {3*(8*1280-1024)}, v{vx[0]}
    s_mul_i32 s{sSX}, s{sLW}, {160*1280}
    s_lshl_b32 s{sT}, s{S_CB}, 7
    s_add_u32 s{sSX}, s{sSX}, s{sT}
    s_mul_i32 s{sM0X}, s{sLW}, 20480
    s_barrier
    """)
    for q in range(5):
        a.e(f"s_add_u32 m0, s{sM0X}, {4096*q}\n s_nop 0")
        for j in range(4):
            a.e(f"buffer_load_dwordx4 v{vx[j]}, {srd(SRD_A)}, s{sSX} offen offset:{1024*j} lds")
        a.e(f"s_add_u32 s{sSX}, s{sSX}, {32*1280}")
    a.e(f"s_branch {lz}")
    a.lab(lc)
    mk_srd(a, SRD_A, P_H, T_BYTES)
    a.e(f"v_lshlrev_b32 v{t0}, 4, v{L}\n s_add_u32 s{sSX}, s{S_CB}, s{sLW}\n s_barrier")
    h_dma(a, sSX, sLW, t0, SRD_A, sC1, sC2)
    a.lab(lz)
    stamp(a, 2)
    poll_z(a, t1, t2)
    stamp(a, 3)
    a.e("s_barrier")
    a.e(f"s_cmp_lg_u32 s{S_MODE}, 0\n s_cbranch_scc1 L_PHASE2\n s_barrier\n s_branch L_PHASE2")

def phi4(regs, tmps, sLOG, sEPS):
    o = []
    for r, t in zip(regs, tmps): o.append(f"v_mul_f32 v{t}, s{sLOG}, v{r}")
    for r, t in zip(regs, tmps): o.append(f"v_exp_f32_e64 v{t}, v{t} clamp")
    for r, t in zip(regs, tmps): o.append(f"v_max_f32 v{r}, s{sEPS}, v{r}")
    for r, t in zip(regs, tmps): o.append(f"v_add_f32 v{r}, v{r}, v{t}")
    return o

def g1_touch(a):
    t0, t1, t2, t3, d0, d1 = 2, 3, 4, 5, 250, 251
    sU, sT, sO = 60, 61, 62
    lx, le = a.newlab("tx"), a.newlab("te")
    a.e(f"""
    s_lshl_b32 s{sU}, s{S_J}, 2
    s_add_u32 s{sU}, s{sU}, s{S_WAVE}
    v_and_b32 v{t0}, 15, v{L}
    v_min_u32 v{t0}, 14, v{t0}
    v_mul_u32_u24 v{t1}, 52, v{t0}
    v_lshrrev_b32 v{t1}, 8, v{t1}
    v_mul_u32_u24 v{t1}, {1280-5*128}, v{t1}
    v_lshl_add_u32 v{t0}, v{t0}, 7, v{t1}
    v_lshrrev_b32 v{t1}, 4, v{L}
    v_mul_u32_u24 v{t1}, 3840, v{t1}
    v_add_u32 v{t0}, v{t0}, v{t1}
    s_and_b32 s{sT}, s{S_XI}, 1
    s_mul_i32 s{sT}, s{sT}, 640
    s_mul_i32 s{sO}, s{sU}, {4*3840}
    s_add_u32 s{sO}, s{sO}, s{sT}
    s_add_u32 s{sO}, s{sO}, {128*3840}
    s_waitcnt lgkmcnt(0)
    """)
    mk_srd(a, SRD_A, P_X, 2048 * 1280)
    mk_srd(a, SRD_B, P_W, 640 * 3840)
    a.e(f"""
    buffer_load_dword v{d0}, v{t0}, {srd(SRD_B)}, s{sO} offen
    s_cmp_ge_u32 s{sU}, 32
    s_cbranch_scc1 {lx}
    s_add_u32 s{sO}, s{sO}, {384*3840}
    buffer_load_dword v{d1}, v{t0}, {srd(SRD_B)}, s{sO} offen
    s_branch {le}
    """)
    a.lab(lx)
    a.e(f"""
    v_lshrrev_b32 v{t1}, 3, v{L}
    v_mul_u32_u24 v{t1}, 1280, v{t1}
    v_and_b32 v{t2}, 7, v{L}
    v_lshl_add_u32 v{t1}, v{t2}, 7, v{t1}
    s_lshr_b32 s{sT}, s{S_XI}, 1
    s_lshl_b32 s{sT}, s{sT}, 6
    s_add_u32 s{sT}, s{sT}, s{sU}
    s_sub_u32 s{sT}, s{sT}, 32
    s_mul_i32 s{sO}, s{sT}, {8*1280}
    buffer_load_dword v{d1}, v{t1}, {srd(SRD_A)}, s{sO} offen offset:256
    """)
    a.lab(le)
    mk_srd(a, SRD_FL, P_WS, 256 * 128, off=WS_FL)

def g1_compute(a, mode):
    ra = RA(2)
    lr, g, t0, t1, t2 = [ra.a() for _ in range(5)]
    xa = [ra.a(), ra.a()]
    wa = [[ra.a() for _ in range(5)] for _ in range(2)]
    aMain, aExtA, aExtB = ra.a(), ra.a(), ra.a()
    ie = ra.a(4, 4); ix = ra.a(4, 4)
    XF = [[ra.a(4, 4) for _ in range(4)] for _ in range(2)]
    WF = [[ra.a(4, 4) for _ in range(5)] for _ in range(2)]
    ACC = [[ra.a(4, 4) for _ in range(5)] for _ in range(4)]
    sRH, sCH, sT, sLOG, sEPS, sSO = 60, 61, 62, 63, 64, 65
    a.c("G1 compute wave mode %d" % mode)
    if mode == 1:
        nz = a.newlab("nozero")
        a.e(f"s_cmp_lg_u32 s{S_WG}, 128\n s_cbranch_scc1 {nz}")
        mk_srd(a, SRD_C, P_WS, KV_BYTES, off=WS_KV)
        for i in range(4): a.e(f"v_mov_b32 v{ie+i}, 0")
        a.e(f"v_lshlrev_b32 v{t0}, 4, v0\n v_lshlrev_b32 v{t1}, 7, v0")
        a.e(f"buffer_store_dword v{ie}, v{t1}, {srd(SRD_FL)}, 0 offen sc1")
        for n in range(14):
            a.e(f"s_mov_b32 s{sT}, {4096*n}\n buffer_store_dwordx4 {v(ie,4)}, v{t0}, {srd(SRD_C)}, s{sT} offen sc1")
        a.e("s_waitcnt vmcnt(0)")
        a.lab(nz)
    a.e(f"""
    s_lshr_b32 s{sRH}, s{S_WAVE}, 1
    s_and_b32 s{sCH}, s{S_WAVE}, 1
    s_mov_b32 s{sLOG}, {f32(1.4426950408889634)}
    s_mov_b32 s{sEPS}, {f32(1e-6)}
    v_and_b32 v{lr}, 15, v{L}
    v_lshrrev_b32 v{g}, 4, v{L}
    s_lshl_b32 s{sT}, s{sRH}, 13
    v_lshrrev_b32 v{t0}, 1, v{lr}
    v_xor_b32 v{t0}, v{t0}, v{g}
    v_lshlrev_b32 v{t0}, 4, v{t0}
    v_lshl_add_u32 v{t0}, v{lr}, 7, v{t0}
    v_add_u32 v{xa[0]}, s{sT}, v{t0}
    v_xor_b32 v{xa[1]}, 64, v{xa[0]}
    v_lshrrev_b32 v{t0}, 2, v{lr}
    v_lshl_add_u32 v{t0}, v{g}, 3, v{t0}
    v_mul_u32_u24 v{t0}, 320, v{t0}
    v_add_u32 v{t0}, {WBASE}, v{t0}
    v_and_b32 v{t1}, 1, v{g}
    v_lshlrev_b32 v{t1}, 5, v{t1}
    s_mul_i32 s{sT}, s{sCH}, 160
    v_and_b32 v{t2}, 3, v{lr}
    """)
    for t in range(5):
        w = wa[0][t]
        if t < 4:
            a.e(f"v_lshl_add_u32 v{w}, v{t2}, 3, s{sT}\n v_add_u32 v{w}, {40*t}, v{w}")
        else:
            a.e(f"v_mul_u32_u24 v{w}, 40, v{t2}\n v_add_u32 v{w}, s{sT}, v{w}\n v_add_u32 v{w}, 32, v{w}")
        a.e(f"v_xor_b32 v{w}, v{w}, v{t1}\n v_add_u32 v{w}, v{w}, v{t0}\n v_add_u32 v{wa[1][t]}, 10240, v{w}")
    for i in range(4):
        a.e(f"v_mov_b32 v{ie+i}, s{sEPS}")
    if mode == 0:
        a.e(f"v_cmp_gt_u32 vcc, 8, v{lr}")
        a.e(f"""
        s_mul_i32 s{sT}, s{sRH}, {IMGP}
        s_mul_i32 s{sSO}, s{sCH}, 3520
        s_add_u32 s{sT}, s{sT}, s{sSO}
        s_add_u32 s{sT}, s{sT}, {IMG}
        """)
        for i in range(4):
            a.e(f"v_cndmask_b32 v{ix+i}, 0, v{ie}, vcc")
        a.e(f"""
        v_mul_u32_u24 v{aMain}, 80, v{lr}
        v_lshl_add_u32 v{aMain}, v{g}, 4, v{aMain}
        v_add_u32 v{aMain}, s{sT}, v{aMain}
        v_cmp_eq_u32 vcc, 0, v{lr}
        v_mov_b32 v{t0}, 640
        v_mov_b32 v{t1}, 1600
        v_mov_b32 v{t2}, 320
        v_cndmask_b32 v{t0}, v{t0}, v{t1}, vcc
        v_cndmask_b32 v{t2}, v{t2}, v{t1}, vcc
        v_add_u32 v{aExtA}, v{aMain}, v{t0}
        v_add_u32 v{aExtB}, v{aMain}, v{t2}
        s_mul_i32 s{sT}, s{S_G}, 7040
        s_add_u32 s{sT}, s{sT}, {WS_KV}
        """)
        mk_srd(a, SRD_C, P_WS, 7040, off_sreg=sT)
    else:
        a.e(f"""
        v_lshlrev_b32 v{aMain}, 4, v{L}
        v_lshlrev_b32 v{aExtA}, 3, v{L}
        s_lshl_b32 s{sT}, s{S_RT}, 3
        s_lshl_b32 s{sSO}, s{sRH}, 2
        s_add_u32 s{sT}, s{sT}, s{sSO}
        s_lshl_b32 s{sT}, s{sT}, 3
        s_lshl_b32 s{sSO}, s{S_G}, 1
        s_add_u32 s{sT}, s{sT}, s{sSO}
        s_add_u32 s{sT}, s{sT}, s{sCH}
        s_mul_i32 s{sSO}, s{sT}, 2560
        """)
        mk_srd(a, SRD_C, P_WS, T_BYTES, off=WS_PQ)
    def reads(st, ks):
        sl = st % NST
        xs = [f"ds_read_b128 v[{XF[ks][rt]}:{XF[ks][rt]+3}], v{xa[ks]} offset:{sl*XST + rt*2048}" for rt in range(4)]
        ws = []
        for t in range(5):
            for h in range(2):
                ws.append(f"ds_read_b64_tr_b16 v[{WF[ks][t]+2*h}:{WF[ks][t]+2*h+1}], v{wa[ks][t]} offset:{sl*WST + h*1280}")
        return xs + ws
    def mfmas(ks, first=False):
        o = []
        for rt in range(4):
            for t in range(5):
                d = ACC[rt][t]
                c = v(d, 4)
                if first:
                    if mode == 1 or t < 2: c = v(ie, 4)
                    elif t == 4: c = v(ix, 4)
                    else: c = "0"
                x, w = v(XF[ks][rt], 4), v(WF[ks][t], 4)
                A_, B_ = (x, w) if mode == 0 else (w, x)
                o.append(f"v_mfma_f32_16x16x32_bf16 {v(d,4)}, {A_}, {B_}, {c}")
        return o
    for st in range(10):
        a.c(f"step {st}")
        a.e("s_barrier")
        if st in (0, 5): stamp(a, {0: 1, 5: 2}[st])
        if st == 0:
            a.e("\n".join(reads(0, 0)))
            if mode == 1:
                nz = a.newlab("nofz")
                a.e(f"s_lshl_b32 s{sT}, s{S_WAVE}, 8\n s_or_b32 s{sT}, s{sT}, s{S_WG}\n s_cmp_lg_u32 s{sT}, 128\n s_cbranch_scc1 {nz}")
                mk_srd(a, SRD_D, P_DBG, 256)
                a.e(f"""
                v_mov_b32 v{t0}, 0
                v_mov_b32 v{t1}, 1
                s_mov_b64 exec, 1
                buffer_store_dword v{t1}, v{t0}, {srd(SRD_D)}, 0 offen sc1
                s_mov_b64 exec, -1
                """)
                a.lab(nz)
        else:
            a.e("\n".join(interleave(mfmas(1), reads(st, 0))))
        a.e("s_waitcnt lgkmcnt(0)")
        a.e("\n".join(interleave(mfmas(0, first=(st == 0)), reads(st, 1))))
        a.e("s_waitcnt lgkmcnt(0)")
    a.e("s_barrier")
    a.e("\n".join(mfmas(1)))
    stamp(a, 3)
    fr = XF[0][0]
    assert WF[1][4] + 4 - fr == 72
    tm = [ie, ie + 1, ie + 2, ie + 3]
    if mode == 1:
        order = [0, 4, 1, 2, 3]
        for rt in range(4):
            ob = fr + 12 * rt
            for pos, t in enumerate(order):
                r = [ACC[rt][t] + i for i in range(4)]
                a.e("\n".join(phi4(r, tm, sLOG, sEPS)))
                a.e(f"v_cvt_pk_bf16_f32 v{ob+2*pos}, v{r[0]}, v{r[1]}")
                a.e(f"v_cvt_pk_bf16_f32 v{ob+2*pos+1}, v{r[2]}, v{r[3]}")
            a.e(f"""
            buffer_store_dwordx4 v[{ob}:{ob+3}], v{aMain}, {srd(SRD_C)}, s{sSO} offen sc1
            buffer_store_dwordx4 v[{ob+4}:{ob+7}], v{aMain}, {srd(SRD_C)}, s{sSO} offen offset:1024 sc1
            buffer_store_dwordx2 v[{ob+8}:{ob+9}], v{aExtA}, {srd(SRD_C)}, s{sSO} offen offset:2048 sc1
            s_add_u32 s{sSO}, s{sSO}, {8*2560}
            """)
        stamp(a, 4)
        a.e("s_waitcnt vmcnt(0)\n s_barrier")
        set_flag(a, t0, t1)
        a.e("s_branch L_PHASE2")
    else:
        P = {n: [fr + (i * 2 + k) * 4 for k in range(2)] for i, n in enumerate(["T0", "T1", "T2", "T3", "T4A", "T4B"])}
        a.e(f"v_cmp_gt_u32 vcc, 8, v{lr}\n v_mov_b32 v{t0}, 0x3f803f80")
        for rt in range(4):
            k, h = rt >> 1, rt & 1
            for t, n in ((2, "T2"), (3, "T3"), (4, "T4B")):
                r = ACC[rt][t]; d = P[n][k] + 2 * h
                a.e(f"v_cvt_pk_bf16_f32 v{d}, v{r}, v{r+1}\n v_cvt_pk_bf16_f32 v{d+1}, v{r+2}, v{r+3}")
            d = P["T4B"][k] + 2 * h
            a.e(f"v_cndmask_b32 v{d}, v{d}, v{t0}, vcc\n v_cndmask_b32 v{d+1}, v{d+1}, v{t0}, vcc")
            for t, n in ((0, "T0"), (1, "T1"), (4, "T4A")):
                r = [ACC[rt][t] + i for i in range(4)]; d = P[n][k] + 2 * h
                a.e("\n".join(phi4(r, tm, sLOG, sEPS)))
                a.e(f"v_cvt_pk_bf16_f32 v{d}, v{r[0]}, v{r[1]}\n v_cvt_pk_bf16_f32 v{d+1}, v{r[2]}, v{r[3]}")
        prods = [("T0", "T2"), ("T0", "T4B"), ("T4A", "T2"), ("T1", "T3"), ("T1", "T4B"), ("T4A", "T3"), ("T4A", "T4B")]
        R = [ACC[0][0] + 4 * i for i in range(7)]
        a.e("s_nop 1")
        for k in range(2):
            for i, (x, y) in enumerate(prods):
                c = "0" if k == 0 else v(R[i], 4)
                a.e(f"v_mfma_f32_16x16x32_bf16 {v(R[i],4)}, {v(P[x][k],4)}, {v(P[y][k],4)}, {c}")
        a.e(f"v_lshlrev_b32 v{t0}, 2, v0\n v_add_u32 v{t1}, {IMG}, v{t0}\n v_add_u32 v{t2}, 4096, v{t0}\n s_nop 4")
        def wr(i, addr, off, lo, hi):
            a.e(f"s_mov_b32 exec_lo, {lo:#x}\n s_mov_b32 exec_hi, {hi:#x}")
            a.e(f"ds_write_b128 v{addr}, {v(R[i],4)} offset:{off}")
        a.e(f"ds_write_b128 v{aMain}, {v(R[0],4)}")
        a.e(f"ds_write_b128 v{aMain}, {v(R[3],4)} offset:1760")
        wr(1, aExtA, 0, 0x0f010f01, 0x0f010f01)
        wr(4, aExtB, 1760, 0xf001f001, 0xf001f001)
        wr(2, aMain, 64, 0x0000ffff, 0)
        wr(5, aMain, 1760 + 48, 0xffff0000, 0)
        wr(6, aExtA, 64, 0x00000f01, 0)
        wr(6, aExtB, 1760 + 48, 0xf0010000, 0)
        a.e("s_mov_b64 exec, -1")
        stamp(a, 4)
        a.e("s_waitcnt lgkmcnt(0)\n s_barrier")
        for n in range(7):
            a.e(f"ds_read2st64_b32 v[{fr+2*n}:{fr+2*n+1}], v{t1} offset0:{4*n} offset1:{28+4*n}")
        for n in range(7):
            a.e(f"s_waitcnt lgkmcnt({6-n})")
            a.e(f"v_add_f32 v{fr+2*n}, v{fr+2*n}, v{fr+2*n+1}")
            a.e(f"buffer_atomic_add_f32 v{fr+2*n}, v{t0 if n < 4 else t2}, {srd(SRD_C)}, 0 offen offset:{1024*(n&3)}")
        a.e("s_waitcnt vmcnt(0)\n s_barrier")
        set_flag(a, t0, t1)
        a.e("s_branch L_PHASE2")
    return ra.hi

def a1(a):
    ra = RA(2)
    t0, t1, t2, t3 = [ra.a() for _ in range(4)]
    vo = [ra.a() for _ in range(5)]
    lr, g, base, baseh, phi, phih, ad, adh, so_u, otap = [ra.a() for _ in range(10)]
    KB, VB = 5120, 5120 + 40960
    assert VB + 40960 <= HB
    sTI, sCH, sSO, sM0, sT, sSH, sCG, sU = 60, 61, 62, 63, 64, 65, 66, 67
    NB = 2048 * 1280
    a.c("A1")
    a.e(f"""
    s_lshr_b32 s{sTI}, s{S_RT}, 1
    s_and_b32 s{sCH}, s{S_RT}, 1
    s_lshl_b32 s{sT}, s{sTI}, 3
    s_add_u32 s{sT}, s{sT}, s{S_WAVE}
    s_mul_i32 s{sSO}, s{sT}, {8*1280}
    s_mul_i32 s{sT}, s{sCH}, 640
    s_add_u32 s{sSO}, s{sSO}, s{sT}
    s_mul_i32 s{sM0}, s{S_WAVE}, 5120
    s_and_b32 s{sT}, s{S_WAVE}, 2
    s_lshl_b32 s{sT}, s{sT}, 1
    """)
    for x in range(320): assert (x * 1639) >> 16 == x // 40
    for j in range(5):
        sub = 1024 * j if j < 4 else 0
        a.e(f"""
        v_add_u32 v{t0}, {64*j}, v{L}
        v_mul_u32_u24 v{t1}, 1639, v{t0}
        v_lshrrev_b32 v{t1}, 16, v{t1}
        v_mul_u32_u24 v{t2}, 40, v{t1}
        v_sub_u32 v{t0}, v{t0}, v{t2}
        v_and_b32 v{t2}, 2, v{t1}
        v_or_b32 v{t2}, s{sT}, v{t2}
        v_xor_b32 v{t0}, v{t0}, v{t2}
        v_lshlrev_b32 v{t0}, 4, v{t0}
        v_mul_u32_u24 v{t1}, 1280, v{t1}
        v_add_u32 v{t0}, v{t0}, v{t1}
        v_subrev_u32 v{vo[j]}, {sub}, v{t0}
        """)
    a.e("s_waitcnt lgkmcnt(0)")
    mk_srd(a, SRD_A, P_K, NB); mk_srd(a, SRD_B, P_V, NB)
    def dma(srdn, lbase, so, js=range(5)):
        o = []; first = True
        for j in js:
            if first and j < 4:
                o += [f"s_add_u32 m0, s{sM0}, {lbase}", "s_nop 0"]; first = False
            if j == 4:
                o += [f"s_add_u32 m0, s{sM0}, {lbase+4096}", "s_nop 0"]
            off = f" offset:{1024*j}" if 0 < j < 4 else ""
            o.append(f"buffer_load_dwordx4 v{vo[j]}, {srd(srdn)}, s{so} offen{off} lds")
        return o
    a.e("\n".join(dma(SRD_A, KB, sSO)))
    a.e("\n".join(dma(SRD_B, VB, sSO)))
    lab = a.newlab("a1_nohalo")
    a.e(f"""
    s_cmp_lg_u32 s{S_WAVE}, 7
    s_cbranch_scc1 {lab}
    s_sub_u32 s{sSH}, s{sSO}, {64*1280}
    s_cmp_eq_u32 s{sTI}, 0
    s_cselect_b32 s{sSH}, {NB}, s{sSH}
    """)
    a.e("\n".join(dma(SRD_A, KB - 8 * 5120, sSH, js=(2, 3, 4))))
    a.lab(lab)
    mk_srd(a, SRD_D, P_SH, 640 * 8); mk_srd(a, SRD_C, P_WS, T_BYTES)
    mk_srd(a, SRD_FL, P_WS, 256 * 128, off=WS_FL)
    a.e(f"""
    v_and_b32 v{lr}, 15, v{L}
    v_lshrrev_b32 v{g}, 4, v{L}
    v_lshrrev_b32 v{t0}, 2, v{lr}
    v_lshl_add_u32 v{t1}, v{g}, 4, v{t0}
    v_mul_u32_u24 v{base}, 640, v{t1}
    v_and_b32 v{t2}, 3, v{lr}
    v_lshl_add_u32 v{base}, v{t2}, 3, v{base}
    v_add_u32 v{base}, {KB}, v{base}
    v_subrev_u32 v{baseh}, {4*640}, v{base}
    v_lshrrev_b32 v{t0}, 1, v{t0}
    v_and_b32 v{t1}, 1, v{g}
    v_lshl_or_b32 v{phi}, v{t1}, 1, v{t0}
    v_lshlrev_b32 v{phi}, 5, v{phi}
    v_xor_b32 v{phih}, 64, v{phi}
    s_mul_i32 s{sT}, s{sCH}, 320
    v_add_u32 v{t0}, s{sT}, v{lr}
    v_lshlrev_b32 v{otap}, 3, v{t0}
    v_lshlrev_b32 v{t0}, 12, v{t0}
    s_lshl_b32 s{sT}, s{sTI}, 7
    v_lshlrev_b32 v{t1}, 5, v{g}
    v_add_u32 v{t1}, s{sT}, v{t1}
    v_sub_u32 v{so_u}, 4064, v{t1}
    v_add_u32 v{so_u}, v{so_u}, v{t0}
    """)
    taps = [ra.a(2) for _ in range(3)]
    a.e(f"s_lshl_b32 s{sT}, s{S_WAVE}, 7")
    for n in range(3):
        a.e(f"buffer_load_dwordx2 v[{taps[n]}:{taps[n]+1}], v{otap}, {srd(SRD_D)}, s{sT} offen offset:{1024*n}")
    mk_srd(a, SRD_A, P_H, T_BYTES)
    stamp(a, 1)
    a.e("s_waitcnt vmcnt(0)\n s_barrier")
    stamp(a, 2)
    a.e(f"v_lshlrev_b32 v{t3}, 4, v{L}\n s_add_u32 s{sSH}, s{S_CB}, s{S_WAVE}")
    h_dma(a, sSH, S_WAVE, t3, SRD_A, sT, sU)
    a.e("s_waitcnt lgkmcnt(0)")
    KR = ra.a(10, 2); VR = ra.a(8, 4); KF = ra.a(20); W = ra.a(4); U = ra.a(16); O = ra.a(8, 4)
    done = a.newlab("a1_done")
    for n in range(3):
        if n == 2:
            a.e(f"s_cmp_ge_u32 s{S_WAVE}, 4\n s_cbranch_scc1 {done}")
        a.e(f"""
        s_add_u32 s{sCG}, s{S_WAVE}, {8*n}
        s_lshl_b32 s{sT}, s{sCG}, 5
        s_lshl_b32 s{sU}, s{sCG}, 16
        v_xor_b32 v{ad}, s{sT}, v{phi}
        v_xor_b32 v{adh}, s{sT}, v{phih}
        v_add_u32 v{ad}, v{ad}, v{base}
        v_add_u32 v{adh}, v{adh}, v{baseh}
        ds_read_b64_tr_b16 v[{KR}:{KR+1}], v{adh}
        """)
        for m in range(4):
            a.e(f"ds_read_b64_tr_b16 v[{KR+2+2*m}:{KR+3+2*m}], v{ad} offset:{m*2560}")
        for m in range(4):
            a.e(f"ds_read_b64_tr_b16 v[{VR+2*m}:{VR+1+2*m}], v{ad} offset:{VB-KB+m*2560}")
        tp = taps[n]
        a.e(f"""
        v_lshlrev_b32 v{W}, 16, v{tp}
        v_and_b32 v{W+1}, 0xffff0000, v{tp}
        v_lshlrev_b32 v{W+2}, 16, v{tp+1}
        v_and_b32 v{W+3}, 0xffff0000, v{tp+1}
        s_waitcnt lgkmcnt(4)
        """)
        for i in range(10):
            if i > 0:
                a.e(f"v_lshlrev_b32 v{KF+2*i}, 16, v{KR+i}")
            a.e(f"v_and_b32 v{KF+2*i+1}, 0xffff0000, v{KR+i}")
        for i in range(16):
            a.e(f"v_mul_f32 v{U+i}, v{W+3}, v{KF+i+1}")
        for j in (2, 1, 0):
            for i in range(16):
                a.e(f"v_fmac_f32 v{U+i}, v{W+j}, v{KF+i+4-j}")
        a.e("s_waitcnt lgkmcnt(0)")
        for i in range(8):
            a.e(f"v_lshlrev_b32 v{KF+2*i}, 16, v{VR+i}\n v_and_b32 v{KF+2*i+1}, 0xffff0000, v{VR+i}")
        for i in range(16):
            a.e(f"v_mul_f32 v{U+i}, v{U+i}, v{KF+i}")
        for nn in range(8):
            a.e(f"v_cvt_pk_bf16_f32 v{O+nn}, v{U+15-2*nn}, v{U+14-2*nn}")
        a.e(f"""
        buffer_store_dwordx4 v[{O}:{O+3}], v{so_u}, {srd(SRD_C)}, s{sU} offen sc1
        buffer_store_dwordx4 v[{O+4}:{O+7}], v{so_u}, {srd(SRD_C)}, s{sU} offen offset:16 sc1
        """)
    a.lab(done)
    stamp(a, 3)
    nz = a.newlab("a1_nz")
    a.e(f"s_cmp_lg_u32 s{S_WAVE}, 7\n s_cbranch_scc1 {nz}")
    poll_z(a, t0, t1)
    a.lab(nz)
    a.e("s_waitcnt vmcnt(0)\n s_barrier")
    stamp(a, 4)
    set_flag(a, t0, t1)
    return ra.hi

def conv(a):
    ra = RA(2)
    lr, g, t0, t1, t2, aB, aT, vrow = [ra.a() for _ in range(8)]
    aA = [ra.a() for _ in range(4)]
    z4 = ra.a(4, 4); o4 = ra.a(4, 4); AD = ra.a(4, 4)
    Q = ra.a(16, 4)
    AF = [[ra.a(4, 4) for _ in range(8)] for _ in range(2)]
    BF = [[ra.a(4, 4) for _ in range(8)] for _ in range(2)]
    ACC = [ra.a(4, 4) for _ in range(8)]
    sD, sR, sSO, sT, sH0, sDV, sH, sQO = 60, 61, 62, 63, 64, 65, 66, 67
    fin, idle = a.newlab("conv_fin"), a.newlab("conv_idle")
    a.c("conv")
    mk_srd(a, SRD_A, P_WS, T_BYTES); mk_srd(a, SRD_B, P_Q, 2048 * 1280); mk_srd(a, SRD_C, P_OUT, 2048 * 2560)
    def qgather():
        l8, le = a.newlab("q8"), a.newlab("qe")
        a.e(f"s_cmp_eq_u32 s{S_P2}, 8\n s_cbranch_scc1 {l8}")
        for n in range(4):
            a.e(f"s_add_u32 s{sT}, s{sQO}, {n*64*1280}\n buffer_load_dwordx2 {v(Q+4*n,2)}, v{vrow}, {srd(SRD_B)}, s{sT} offen")
        a.e(f"s_branch {le}")
        a.lab(l8)
        for n in range(4):
            a.e(f"s_add_u32 s{sT}, s{sQO}, {n*64*1280}\n buffer_load_dwordx4 {v(Q+4*n,4)}, v{vrow}, {srd(SRD_B)}, s{sT} offen")
        a.lab(le)
    a.e(f"""
    v_and_b32 v{lr}, 15, v{L}
    v_lshrrev_b32 v{g}, 4, v{L}
    v_mul_u32_u24 v{vrow}, 1280, v{L}
    s_mul_i32 s{sQO}, s{S_WAVE}, {256*1280}
    s_lshl_b32 s{sT}, s{S_CB}, 1
    s_add_u32 s{sQO}, s{sQO}, s{sT}
    s_cmp_ge_u32 s{S_WAVE}, s{S_P2}
    s_cbranch_scc1 {idle}
    s_add_u32 s{sD}, s{S_CB}, s{S_WAVE}
    s_lshl_b32 s{sSO}, s{sD}, 12
    s_mul_i32 s{sR}, s{S_WAVE}, {UP}
    s_mul_i32 s{sH}, s{S_WAVE}, {HP}
    s_add_u32 s{sH}, s{sH}, {HB}
    s_load_dword s{sH0}, s[{P_H}:{P_H+1}], s{sSO}
    s_lshl_b32 s{sT}, s{sD}, 1
    s_and_b32 s{sT}, s{sT}, 0xfffffffc
    s_load_dword s{sDV}, s[{P_D}:{P_D+1}], s{sT}
    s_cmp_ge_u32 s{sD}, 320
    s_cselect_b32 s{sT}, 32, 0
    s_add_u32 s{sT}, s{sT}, 192
    v_and_b32 v{t0}, 31, v{L}
    v_add_u32 v{t0}, s{sT}, v{t0}
    v_lshlrev_b32 v{aB}, 7, v{t0}
    """)
    for i in range(4):
        a.e(f"v_mov_b32 v{z4+i}, 0\n v_mov_b32 v{o4+i}, 0")
    a.e(f"""
    v_and_b32 v{t1}, 1, v{lr}
    v_cmp_eq_u32 vcc, 1, v{t1}
    v_mov_b32 v{t1}, {H_O}
    v_mov_b32 v{t2}, 2
    v_cndmask_b32 v{t1}, v{t1}, v{t2}, vcc
    v_lshl_add_u32 v{t1}, v{lr}, 1, v{t1}
    v_lshl_add_u32 v{t1}, v{g}, 4, v{t1}
    v_add_u32 v{aA[0]}, s{sH}, v{t1}
    v_add_u32 v{aA[1]}, 1024, v{aA[0]}
    v_add_u32 v{aA[2]}, 2048, v{aA[0]}
    v_add_u32 v{aA[3]}, 3072, v{aA[0]}
    v_lshlrev_b32 v{t0}, 4, v{L}
    v_add_u32 v{t1}, s{sH}, v{t0}
    v_add_u32 v{aT}, s{sR}, v{t0}
    s_waitcnt lgkmcnt(0)
    s_lshl_b32 s{sH0}, s{sH0}, 16
    s_and_b32 s{sT}, s{sD}, 1
    s_lshl_b32 s{sT}, s{sT}, 4
    s_lshr_b32 s{sDV}, s{sDV}, s{sT}
    s_and_b32 s{sDV}, s{sDV}, 0xffff
    v_writelane_b32 v{o4+3}, s{sH0}, 1
    s_mov_b32 exec_lo, -1
    s_mov_b32 exec_hi, 0
    ds_write_b128 v{aT}, v[{z4}:{z4+3}] offset:4096
    s_mov_b32 exec_lo, 3
    ds_write_b128 v{t1}, v[{z4}:{z4+3}]
    ds_write_b128 v{t1}, v[{o4}:{o4+3}] offset:{H_O}
    s_mov_b64 exec, -1
    v_lshl_add_u32 v{t1}, v{g}, 3, v{lr}
    v_sub_u32 v{t1}, 15, v{t1}
    v_and_b32 v{t2}, 1, v{t1}
    v_lshlrev_b32 v{t2}, 4, v{t2}
    v_lshlrev_b32 v{t2}, v{t2}, s{sDV}
    v_ashrrev_i32 v{t1}, 1, v{t1}
    """)
    for r in range(4):
        a.e(f"v_cmp_eq_u32 vcc, {r}, v{t1}\n s_nop 1\n v_cndmask_b32 v{AD+r}, 0, v{t2}, vcc")
    stamp(a, 5)
    poll(a, SRD_FL, [aB], [t1])
    stamp(a, 6)
    UR = AF[1][0]
    for j in range(4):
        a.e(f"buffer_load_dwordx4 {v(UR+4*j,4)}, v{t0}, {srd(SRD_A)}, s{sSO} offen offset:{1024*j} sc1")
    qgather()
    for j in range(4):
        a.e(f"s_waitcnt vmcnt({7-j})\n ds_write_b128 v{aT}, {v(UR+4*j,4)} offset:{1024*j}")
    a.e(f"""
    v_lshlrev_b32 v{t1}, 5, v{lr}
    v_sub_u32 v{aB}, 480, v{t1}
    v_lshl_add_u32 v{aB}, v{g}, 4, v{aB}
    v_add_u32 v{aB}, s{sR}, v{aB}
    v_lshl_add_u32 v{aT}, v{g}, 3, v{t1}
    v_add_u32 v{aT}, s{sR}, v{aT}
    """)
    def reads(r):
        b = r & 1; o = []
        for i in range(8):
            o.append(f"ds_read_b128 {v(BF[b][i],4)}, v{aB} offset:{3584 - 512*i + 64*r}")
            o0 = 128 * (i & 1) + 16 * r
            o.append(f"ds_read2_b32 {v(AF[b][i],2)}, v{aA[i>>1]} offset0:{o0} offset1:{o0+1}")
            o.append(f"ds_read2_b32 {v(AF[b][i]+2,2)}, v{aA[i>>1]} offset0:{o0+2} offset1:{o0+3}")
        return o
    def mf(r):
        b = r & 1; o = []
        if r == 0:
            for c in range(8):
                o.append(f"v_mfma_f32_16x16x32_bf16 {v(ACC[c],4)}, {v(AD,4)}, {v(BF[b][c],4)}, 0")
        for q in range(8):
            for c in range(q, 8):
                o.append(f"v_mfma_f32_16x16x32_bf16 {v(ACC[c],4)}, {v(AF[b][q],4)}, {v(BF[b][c-q],4)}, {v(ACC[c],4)}")
        return o
    stamp(a, 7)
    a.e("s_waitcnt lgkmcnt(0)")
    a.e("\n".join(reads(0)))
    for r in range(8):
        a.e("s_waitcnt lgkmcnt(0)")
        a.e("\n".join(interleave(mf(r), reads(r + 1) if r < 7 else [])))
    stamp(a, 8)
    T = AF[0][0]
    for c in range(8):
        t = T + 2 * c
        if c == 6: a.e("s_nop 3")
        a.e(f"""
        v_cvt_pk_bf16_f32 v{t}, v{ACC[c]}, v{ACC[c]+1}
        v_cvt_pk_bf16_f32 v{t+1}, v{ACC[c]+2}, v{ACC[c]+3}
        ds_write_b64 v{aT}, v[{t}:{t+1}] offset:{512*c}
        """)
    a.e(f"s_branch {fin}")
    a.lab(idle)
    qgather()
    a.lab(fin)
    a.e(f"""
    v_lshrrev_b32 v{t0}, 2, v{lr}
    v_mul_u32_u24 v{t0}, {UP}, v{t0}
    v_and_b32 v{t1}, 3, v{lr}
    v_lshl_add_u32 v{t0}, v{t1}, 3, v{t0}
    v_lshl_add_u32 v{t0}, v{g}, 5, v{t0}
    s_lshl_b32 s{sT}, s{S_WAVE}, 9
    v_add_u32 v{t0}, s{sT}, v{t0}
    v_lshlrev_b32 v{vrow}, 1, v{vrow}
    s_mul_i32 s{sSO}, s{S_WAVE}, {256*2560}
    s_lshl_b32 s{sT}, s{S_CB}, 1
    s_add_u32 s{sSO}, s{sSO}, s{sT}
    s_waitcnt lgkmcnt(0)
    s_barrier
    """)
    stamp(a, 9)
    Y = BF[0][0]; X = BF[1][0]
    def tail(nd):
        for n in range(4):
            for k in range(nd // 2):
                a.e(f"ds_read_b64_tr_b16 {v(Y+4*n+2*k,2)}, v{t0} offset:{128*n + 4*UP*k}")
        a.e("s_waitcnt vmcnt(0) lgkmcnt(0)")
        for n in range(4):
            for i in range(nd):
                y, q = Y + 4 * n + i, Q + 4 * n + i
                a.e(f"""
                v_lshlrev_b32 v{X}, 16, v{y}
                v_and_b32 v{X+1}, 0xffff0000, v{y}
                v_lshlrev_b32 v{X+2}, 16, v{q}
                v_and_b32 v{X+3}, 0xffff0000, v{q}
                v_mul_f32 v{X}, v{X}, v{X+2}
                v_mul_f32 v{X+1}, v{X+1}, v{X+3}
                v_cvt_pk_bf16_f32 v{y}, v{X}, v{X+1}
                """)
            a.e(f"buffer_store_dwordx{nd} {v(Y+4*n,nd)}, v{vrow}, {srd(SRD_C)}, s{sSO} offen")
            if n < 3: a.e(f"s_add_u32 s{sSO}, s{sSO}, {64*2560}")
    l8 = a.newlab("t8")
    a.e(f"s_cmp_eq_u32 s{S_P2}, 8\n s_cbranch_scc1 {l8}")
    tail(2)
    a.e("s_branch L_FIN")
    a.lab(l8)
    tail(4)
    a.e("s_branch L_FIN")
    return ra.hi

KVI = 81920
RED = KVI + 28672
def g2(a):
    ra = RA(2)
    lr, g, t0, t1, t2, t3 = [ra.a() for _ in range(6)]
    m0a, m1a = ra.a(), ra.a()
    x0a = [ra.a() for _ in range(4)]; x1a = [ra.a() for _ in range(4)]
    wm = [ra.a() for _ in range(4)]; wx = [ra.a() for _ in range(4)]
    v16, v8 = ra.a(), ra.a()
    ce = ra.a(4, 4)
    PQR = [[ra.a(10, 2) for _ in range(2)] for _ in range(4)]
    KF = [[ra.a(4, 4) for _ in range(2)] for _ in range(2)]
    CT = [[[ra.a(4, 4) for _ in range(2)] for _ in range(2)] for _ in range(2)]
    OP = [ra.a(4, 4) for _ in range(2)]
    OX = [ra.a(4, 4) for _ in range(2)]
    XT = [ra.a() for _ in range(2)]
    rc = [ra.a() for _ in range(2)]
    WF = [ra.a(4, 4) for _ in range(4)]
    ACC = [[ra.a(4, 4) for _ in range(4)] for _ in range(2)]
    LD = CT[0][0][0]
    sKH, sRW, sT, sSO, sM, sU = 60, 61, 62, 63, 64, 65
    a.c("G2")
    a.e(f"""
    s_lshr_b32 s{sKH}, s{S_WAVE}, 2
    s_and_b32 s{sRW}, s{S_WAVE}, 3
    v_and_b32 v{lr}, 15, v{L}
    v_lshrrev_b32 v{g}, 4, v{L}
    v_lshlrev_b32 v{v16}, 4, v{L}
    v_lshlrev_b32 v{v8}, 3, v{L}
    s_lshl_b32 s{sT}, s{S_RT}, 2
    s_add_u32 s{sT}, s{sT}, 128
    v_and_b32 v{t0}, 3, v{L}
    v_add_u32 v{t0}, s{sT}, v{t0}
    v_lshlrev_b32 v{t0}, 7, v{t0}
    """)
    mk_srd(a, SRD_B, P_WS, T_BYTES, off=WS_PQ)
    mk_srd(a, SRD_C, P_WS, KV_BYTES, off=WS_KV); mk_srd(a, SRD_D, P_OUT, 2048 * 2560)
    stamp(a, 5)
    poll(a, SRD_FL, [t0], [t1])
    a.e(f"""
    s_lshl_b32 s{sT}, s{S_RT}, 3
    s_lshl_b32 s{sU}, s{sRW}, 1
    s_add_u32 s{sT}, s{sT}, s{sU}
    s_lshl_b32 s{sT}, s{sT}, 3
    s_lshl_b32 s{sU}, s{sKH}, 2
    s_add_u32 s{sT}, s{sT}, s{sU}
    s_mul_i32 s{sU}, s{sT}, 2560
    """)
    for p in range(4):
        for rt in range(2):
            r = PQR[p][rt]
            a.e(f"""
            s_add_u32 s{sT}, s{sU}, {(rt*8+p)*2560}
            buffer_load_dwordx4 {v(r,4)}, v{v16}, {srd(SRD_B)}, s{sT} offen sc1
            buffer_load_dwordx4 {v(r+4,4)}, v{v16}, {srd(SRD_B)}, s{sT} offen offset:1024 sc1
            buffer_load_dwordx2 {v(r+8,2)}, v{v8}, {srd(SRD_B)}, s{sT} offen offset:2048 sc1
            """)
    a.e(f"""
    s_mul_i32 s{sT}, s{sKH}, {16*880}
    s_add_u32 s{sT}, s{sT}, {KVI}
    v_mul_u32_u24 v{t0}, 40, v{lr}
    v_add_u32 v{t0}, s{sT}, v{t0}
    v_lshl_add_u32 v{m0a}, v{g}, 3, v{t0}
    v_lshrrev_b32 v{t1}, 2, v{lr}
    v_add_u32 v{t1}, 16, v{t1}
    v_and_b32 v{t2}, 3, v{lr}
    v_cmp_eq_u32 vcc, 0, v{t2}
    v_min_u32 v{t2}, 2, v{t2}
    v_add_u32 v{t2}, 19, v{t2}
    v_cndmask_b32 v{t1}, v{t2}, v{t1}, vcc
    v_mul_u32_u24 v{t1}, 40, v{t1}
    v_add_u32 v{t1}, s{sT}, v{t1}
    v_lshl_add_u32 v{m1a}, v{g}, 3, v{t1}
    v_add_u32 v{t0}, 32, v{t0}
    v_add_u32 v{t1}, 32, v{t1}
    s_add_u32 s{sT}, s{sT}, {21*40}
    v_mov_b32 v{t2}, s{sT}
    """)
    for x in range(4):
        a.e(f"v_cmp_eq_u32 vcc, {x}, v{g}\n s_nop 1\n v_cndmask_b32 v{x0a[x]}, v{t2}, v{t0}, vcc\n v_cndmask_b32 v{x1a[x]}, v{t2}, v{t1}, vcc")
    a.e(f"""
    s_mul_i32 s{sT}, s{sKH}, {16*2560}
    v_lshrrev_b32 v{t0}, 2, v{lr}
    v_and_b32 v{t1}, 3, v{lr}
    v_lshl_add_u32 v{t1}, v{t1}, 3, s{sT}
    v_lshl_add_u32 v{t2}, v{g}, 2, v{t0}
    v_lshl_add_u32 v{wm[0]}, v{t2}, 7, v{t1}
    v_bfe_u32 v{t2}, v{t2}, 1, 2
    v_lshl_add_u32 v{wm[0]}, v{t2}, 5, v{wm[0]}
    v_mul_u32_u24 v{t2}, 20, v{t0}
    v_add3_u32 v{t2}, v{t2}, v{g}, 16
    v_lshl_add_u32 v{wx[0]}, v{t2}, 7, v{t1}
    v_bfe_u32 v{t2}, v{t2}, 1, 2
    v_lshl_add_u32 v{wx[0]}, v{t2}, 5, v{wx[0]}
    """)
    for t in range(1, 4):
        a.e(f"v_xor_b32 v{wm[t]}, {32*t}, v{wm[0]}\n v_xor_b32 v{wx[t]}, {32*t}, v{wx[0]}")
    a.e(f"""
    v_mov_b32 v{ce}, 0
    v_mov_b32 v{ce+1}, {f32(1e-6)}
    v_mov_b32 v{ce+2}, 0
    v_mov_b32 v{ce+3}, 0
    v_lshlrev_b32 v{t3}, 4, v0
    """)
    stamp(a, 6)
    np_ = a.newlab("g2_np")
    a.e(f"s_cmp_lg_u32 s{S_WAVE}, 0\n s_cbranch_scc1 {np_}")
    a.e(f"v_lshlrev_b32 v{t0}, 7, v{L}\n v_add_u32 v{t1}, {64*128}, v{t0}")
    poll(a, SRD_FL, [t0, t1], [t2, rc[0]])
    a.lab(np_)
    a.e("s_barrier")
    stamp(a, 7)
    for n in range(7):
        a.e(f"s_mov_b32 s{sT}, {8192*n}\n buffer_load_dwordx4 {v(LD+4*n,4)}, v{t3}, {srd(SRD_C)}, s{sT} offen sc1")
    a.e(f"v_lshrrev_b32 v{t3}, 1, v{t3}\n v_add_u32 v{t3}, {KVI}, v{t3}")
    for n in range(7):
        r = LD + 4 * n
        a.e(f"""
        s_waitcnt vmcnt({6-n})
        v_cvt_pk_bf16_f32 v{r}, v{r}, v{r+1}
        v_cvt_pk_bf16_f32 v{r+1}, v{r+2}, v{r+3}
        ds_write_b64 v{t3}, {v(r,2)} offset:{4096*n}
        """)
    a.e("s_waitcnt lgkmcnt(0)\n s_barrier")
    stamp(a, 8)
    def kvreads(h):
        b = h & 1; x = h & 3
        mo, xo = (0, 2) if x == 0 else (2, 0)
        return [f"ds_read_b64 {v(KF[b][0]+mo,2)}, v{m0a} offset:{880*h}",
                f"ds_read_b64 {v(KF[b][0]+xo,2)}, v{x0a[x]} offset:{880*h}",
                f"ds_read_b64 {v(KF[b][1]+mo,2)}, v{m1a} offset:{880*h}",
                f"ds_read_b64 {v(KF[b][1]+xo,2)}, v{x1a[x]} offset:{880*h}"]
    def woreads(h0):
        o = []
        for t in range(4):
            o.append(f"ds_read_b64_tr_b16 {v(WF[t],2)}, v{wm[t]} offset:{2560*h0}")
            o.append(f"ds_read_b64_tr_b16 {v(WF[t]+2,2)}, v{wm[t^2]} offset:{2560*(h0+1)}")
        return o
    def wxreads(hb):
        o = []
        for t in range(4):
            o.append(f"ds_read_b64_tr_b16 {v(WF[t],2)}, v{wx[t]} offset:{2560*hb}")
            o.append(f"ds_read_b64_tr_b16 {v(WF[t]+2,2)}, v{wx[t]} offset:{2560*(hb+4)}")
        return o
    def xcopy(h):
        x = h & 3; o = []
        if x >= 2:
            for rt in range(2):
                r = PQR[h >> 2][rt]
                o += [f"v_mov_b32 v{r+2*x}, v{r+2}", f"v_mov_b32 v{r+2*x+1}, v{r+3}"]
        return o
    def omf(h):
        b = h & 1; x = h & 3; o = []
        for rt in range(2):
            w = PQR[h >> 2][rt] + 2 * x
            o.append(f"v_mfma_f32_16x16x32_bf16 {v(CT[b][rt][1],4)}, {v(KF[b][1],4)}, {v(w,4)}, {v(ce,4)}")
            o.append(f"v_mfma_f32_16x16x32_bf16 {v(CT[b][rt][0],4)}, {v(KF[b][0],4)}, {v(w,4)}, 0")
        return o
    def norm(h):
        b = h & 1; o = []
        for rt in range(2):
            o.append(f"v_rcp_f32 v{rc[rt]}, v{CT[b][rt][1]+1}")
        for rt in range(2):
            c = CT[b][rt][0]; e = CT[b][rt][1]
            for i in range(4):
                o.append(f"v_mul_f32 v{c+i}, v{c+i}, v{rc[rt]}")
            if h & 1 == 0:
                o.append(f"v_mul_f32 v{XT[rt]}, v{e}, v{rc[rt]}")
            else:
                o.append(f"v_mul_f32 v{e}, v{e}, v{rc[rt]}")
            d = OP[rt] + 2 * (h & 1)
            o.append(f"v_cvt_pk_bf16_f32 v{d}, v{c}, v{c+1}")
            o.append(f"v_cvt_pk_bf16_f32 v{d+1}, v{c+2}, v{c+3}")
            if h & 1:
                o.append(f"v_cvt_pk_bf16_f32 v{OX[rt]+((h&7)>>1)}, v{XT[rt]}, v{e}")
        return o
    first = [True]
    def mainmf(src):
        o = []
        for rt in range(2):
            for t in range(4):
                c = "0" if first[0] else v(ACC[rt][t], 4)
                o.append(f"v_mfma_f32_16x16x32_bf16 {v(ACC[rt][t],4)}, {v(WF[t],4)}, {v(src[rt],4)}, {c}")
        first[0] = False
        return o
    a.e("\n".join(kvreads(0)))
    for h in range(17):
        a.c(f"head {h}")
        if h < 16:
            a.e("\n".join(xcopy(h)))
            a.e("s_waitcnt lgkmcnt(0)")
            if h + 1 < 16:
                a.e("\n".join(kvreads(h + 1)))
            if h & 1:
                a.e("\n".join(woreads(h - 1)))
            a.e("\n".join(omf(h)))
        else:
            a.e("s_nop 7")
        if h >= 1:
            a.e("\n".join(norm(h - 1)))
            if (h - 1) & 1:
                a.e("s_waitcnt lgkmcnt(0)" if h == 16 else ("s_waitcnt lgkmcnt(4)"))
                a.e("s_nop 0")
                a.e("\n".join(mainmf(OP)))
                if (h - 1) & 7 == 7:
                    a.e("\n".join(wxreads(h - 8)))
                    a.e("s_waitcnt lgkmcnt(0)")
                    a.e("\n".join(mainmf(OX)))
    lk1, lj = a.newlab("g2_k1"), a.newlab("g2_j")
    stamp(a, 9)
    a.e(f"""
    s_lshl_b32 s{sT}, s{S_WAVE}, 12
    s_add_u32 s{sT}, s{sT}, {RED}
    v_add_u32 v{t0}, s{sT}, v{v16}
    s_nop 5
    s_cmp_eq_u32 s{sKH}, 0
    s_cbranch_scc0 {lk1}
    """)
    for t in range(4):
        a.e(f"ds_write_b128 v{t0}, {v(ACC[1][t],4)} offset:{1024*t}")
    a.e(f"s_branch {lj}")
    a.lab(lk1)
    for t in range(4):
        a.e(f"ds_write_b128 v{t0}, {v(ACC[0][t],4)} offset:{1024*t}")
    a.e("s_nop 1")
    for t in range(4):
        for i in range(4):
            a.e(f"v_mov_b32 v{ACC[0][t]+i}, v{ACC[1][t]+i}")
    a.lab(lj)
    a.e(f"""
    s_xor_b32 s{sT}, s{S_WAVE}, 4
    s_lshl_b32 s{sT}, s{sT}, 12
    s_add_u32 s{sT}, s{sT}, {RED}
    v_add_u32 v{t1}, s{sT}, v{v16}
    v_mul_u32_u24 v{t2}, 2560, v{lr}
    v_and_b32 v{t3}, 1, v{g}
    v_lshl_add_u32 v{t2}, v{t3}, 5, v{t2}
    v_lshrrev_b32 v{t3}, 1, v{g}
    v_lshl_add_u32 v{t2}, v{t3}, 4, v{t2}
    s_lshl_b32 s{sT}, s{S_RT}, 3
    s_lshl_b32 s{sU}, s{sRW}, 1
    s_add_u32 s{sT}, s{sT}, s{sU}
    s_add_u32 s{sT}, s{sT}, s{sKH}
    s_mul_i32 s{sSO}, s{sT}, {16*2560}
    s_lshl_b32 s{sT}, s{S_CB}, 7
    s_add_u32 s{sSO}, s{sSO}, s{sT}
    s_add_u32 s{sSO}, s{sSO}, 1280
    s_waitcnt lgkmcnt(0)
    s_barrier
    """)
    stamp(a, 10)
    a.e("s_waitcnt lgkmcnt(0)" if STAMPS else "")
    for t in range(4):
        a.e(f"ds_read_b128 {v(WF[t],4)}, v{t1} offset:{1024*t}")
    D = CT[0][0][0]
    for t in range(4):
        a.e(f"s_waitcnt lgkmcnt({3-t})")
        c = ACC[0][t]
        for i in range(4):
            a.e(f"v_add_f32 v{c+i}, v{c+i}, v{WF[t]+i}")
        a.e(f"v_cvt_pk_bf16_f32 v{D+2*t}, v{c}, v{c+1}\n v_cvt_pk_bf16_f32 v{D+2*t+1}, v{c+2}, v{c+3}")
    a.e("s_nop 1")
    for t in (0, 2):
        a.e(f"v_permlane16_swap_b32 v{D+2*t}, v{D+2*t+2}\n v_permlane16_swap_b32 v{D+2*t+1}, v{D+2*t+3}")
    for t in (0, 2):
        a.e(f"buffer_store_dwordx4 {v(D+2*t,4)}, v{t2}, {srd(SRD_D)}, s{sSO} offen offset:{32*t}")
    return ra.hi

def build(path):
    hdr = open("cdna_kernels/%s.s.ref" % NAME).read().split("; Override")[0]
    a = Asm()
    a.raw('.amdgcn_target "amdgcn-amd-amdhsa--gfx950"\n.text')
    a.raw(f".globl {KN}\n.p2align 8\n.type {KN},@function"); a.lab(KN)
    a.e(f"s_cmp_ge_u32 s2, 256\n s_cbranch_scc1 L_END")
    stamp_init(a); stamp(a, 0)
    a.e(f"""
    s_load_dwordx16 s[8:23], s[0:1], 0
    s_load_dwordx8 s[24:31], s[0:1], 64
    v_lshrrev_b32 v2, 6, v0
    v_and_b32 v{L}, 63, v0
    v_readfirstlane_b32 s{S_WAVE}, v2
    s_and_b32 s{S_XI}, s2, 7
    s_lshr_b32 s{S_J}, s2, 3
    """)
    a.e(f"""
    s_and_b32 s4, s{S_J}, 28
    s_cmp_lg_u32 s4, 20
    s_cbranch_scc1 L_NOPF
    s_getpc_b64 s[4:5]
    v_lshlrev_b32 v2, 7, v0
    v_min_u32 v2, L_END-{KN}-512, v2
    global_load_dword v252, v2, s[4:5]
    """)
    a.lab("L_NOPF")
    a.e(f"""
    s_cmp_ge_u32 s{S_J}, 24
    s_cbranch_scc1 L_A1
    s_lshr_b32 s6, s{S_XI}, 1
    s_lshl_b32 s6, s6, 2
    s_and_b32 s7, s{S_J}, 3
    s_add_u32 s{S_RT}, s6, s7
    s_and_b32 s4, s{S_XI}, 1
    s_lshr_b32 s6, s{S_J}, 2
    s_mul_i32 s{S_CB}, s4, 5
    s_add_u32 s{S_CB}, s{S_CB}, s6
    s_mov_b32 s{S_P2}, 0
    s_cmp_ge_u32 s{S_J}, 16
    s_cbranch_scc1 L_Q
    s_mov_b32 s{S_MODE}, 0
    s_lshl_b32 s4, s4, 2
    s_add_u32 s{S_G}, s4, s6
    s_lshl_b32 s{S_SLOT}, s{S_RT}, 3
    s_add_u32 s{S_SLOT}, s{S_SLOT}, s{S_G}
    s_branch L_G1
    """)
    a.lab("L_Q")
    a.e(f"""
    s_mov_b32 s{S_MODE}, 1
    s_lshl_b32 s4, s4, 1
    s_add_u32 s{S_G}, s4, s6
    s_sub_u32 s{S_G}, s{S_G}, 4
    s_lshl_b32 s{S_SLOT}, s{S_RT}, 2
    s_add_u32 s{S_SLOT}, s{S_SLOT}, s{S_G}
    s_add_u32 s{S_SLOT}, s{S_SLOT}, 128
    s_cmp_lt_u32 s{S_J}, 20
    s_cbranch_scc1 L_G1
    s_mov_b32 s{S_P2}, 4
    s_lshl_b32 s{S_CB}, s{S_XI}, 4
    s_lshl_b32 s7, s7, 2
    s_add_u32 s{S_CB}, s{S_CB}, s7
    s_add_u32 s{S_CB}, s{S_CB}, 512
    """)
    a.lab("L_G1")
    a.e(f"s_cmp_lt_u32 s{S_WAVE}, 4\n s_cbranch_scc1 L_G1C")
    g1_loader(a)
    a.lab("L_A1")
    a.e(f"""
    s_sub_u32 s5, s{S_J}, 24
    s_lshl_b32 s5, s5, 3
    s_add_u32 s{S_RT}, s5, s{S_XI}
    s_lshl_b32 s{S_CB}, s{S_XI}, 6
    s_add_u32 s{S_CB}, s{S_CB}, s5
    s_mov_b32 s{S_P2}, 8
    s_and_b32 s4, s{S_RT}, 1
    s_lshl_b32 s4, s4, 5
    s_lshr_b32 s5, s{S_RT}, 1
    s_add_u32 s{S_SLOT}, s4, s5
    s_add_u32 s{S_SLOT}, s{S_SLOT}, 192
    """)
    h3 = a1(a)
    a.lab("L_CONV")
    h5 = conv(a)
    a.lab("L_G1C")
    g1_touch(a)
    a.e(f"s_cmp_lg_u32 s{S_MODE}, 0\n s_cbranch_scc1 L_G1Q")
    h1 = g1_compute(a, 0)
    a.lab("L_G1Q")
    h2 = g1_compute(a, 1)
    a.lab("L_PHASE2")
    a.e(f"s_cmp_lg_u32 s{S_P2}, 0\n s_cbranch_scc1 L_CONV")
    h4 = g2(a)
    a.lab("L_FIN")
    stamp_flush(a, 0)
    a.lab("L_END")
    a.e("s_endpgm")
    print("vgprs", h1, h2, h3, h4, h5, file=sys.stderr)
    lds = max(HB + 8 * HP, WBASE + 4 * WST, RED + 32768)
    desc = f""".section .rodata,"a"
.p2align 6
.amdhsa_kernel {KN}
  .amdhsa_next_free_vgpr 256
  .amdhsa_next_free_sgpr 102
  .amdhsa_accum_offset 256
  .amdhsa_group_segment_fixed_size 0
  .amdhsa_kernarg_size 96
  .amdhsa_user_sgpr_count 2
  .amdhsa_user_sgpr_kernarg_segment_ptr 1
  .amdhsa_system_sgpr_workgroup_id_x 1
.end_amdhsa_kernel
"""
    open(path, "w").write(hdr + f"; @launch grid=(256,1,1) block=(512,1,1) lds={lds}\n" + a.text() + desc)
if __name__ == "__main__":
    build(sys.argv[1])
```

```python
class Asm:
    def __init__(self):
        self.L = []
        self._n = 0
    def e(self, s):
        for ln in s.strip().split("\n"):
            ln = ln.strip()
            if ln:
                self.L.append("    " + ln)
    def lab(self, n):
        self.L.append(n + ":")
    def raw(self, s):
        self.L.append(s)
    def c(self, s):
        self.L.append("    ; " + s)
    def newlab(self, p="L"):
        self._n += 1
        return "%s_%d" % (p, self._n)
    def text(self):
        return "\n".join(self.L) + "\n"

def v(a, n=1):
    return "v%d" % a if n == 1 else "v[%d:%d]" % (a, a + n - 1)
def s(a, n=1):
    return "s%d" % a if n == 1 else "s[%d:%d]" % (a, a + n - 1)

class RA:
    def __init__(self, start=0, limit=256):
        self.p = start; self.limit = limit; self.hi = start
    def a(self, n=1, al=1):
        if n >= 2 and al == 1:
            al = 2
        self.p = (self.p + al - 1) // al * al
        r = self.p
        self.p += n
        assert self.p <= self.limit, "out of VGPRs %d" % self.p
        self.hi = max(self.hi, self.p)
        return r

def interleave(main, fill, every=1, start=0):
    out = []; fi = 0
    for i, m in enumerate(main):
        out.append(m)
        if i >= start and (i - start) % every == 0 and fi < len(fill):
            out.append(fill[fi]); fi += 1
    out += fill[fi:]
    return out

import struct
def f32(x):
    return "0x%08x" % struct.unpack("<I", struct.pack("<f", x))[0]

import os
STAMPS = bool(os.environ.get("STAMPS"))
ST0 = 76
def stamp(a, i):
    if STAMPS:
        a.e(f"s_memrealtime s[{ST0+2*i}:{ST0+2*i+1}]")
def stamp_init(a):
    if STAMPS:
        for i in range(12):
            a.e(f"s_mov_b64 s[{ST0+2*i}:{ST0+2*i+1}], 0")
def stamp_flush(a, kid):
    if not STAMPS:
        return
    if os.environ.get("DBGST"):
        kv = [1, 2, 3, 5, 7, 8, 9, 11]; aa = [2, 4, 6, 8, 11]
        a.e(f"""
        s_waitcnt vmcnt(0) lgkmcnt(0)
        s_memrealtime s[{ST0+22}:{ST0+23}]
        s_cmp_lg_u32 s3, 0
        s_cbranch_scc1 L_END
        s_mov_b32 s68, s28
        s_mov_b32 s69, s29
        s_mov_b32 s70, 256
        s_mov_b32 s71, 0x20000
        v_mov_b32 v2, 0
        v_lshlrev_b32 v4, 2, v1
        s_waitcnt lgkmcnt(0)
        s_not_b32 s72, s{ST0}
        v_writelane_b32 v2, s72, 1
        v_writelane_b32 v2, s{ST0}, 2
        s_cmp_ge_u32 s59, 16
        s_cbranch_scc1 L_DB1
        """)
        for n, i in enumerate(kv):
            a.e(f"v_writelane_b32 v2, s{ST0+2*i}, {3+n}")
        a.lab("L_DB1")
        a.e("s_cmp_lt_u32 s59, 24\n s_cbranch_scc1 L_DB2")
        for n, i in enumerate(aa):
            a.e(f"v_writelane_b32 v2, s{ST0+2*i}, {11+n}")
        a.lab("L_DB2")
        a.e("s_mov_b64 exec, 0xfffe\n buffer_atomic_umax v2, v4, s[68:71], 0 offen")
        return
    a.e(f"""
    s_waitcnt vmcnt(0) lgkmcnt(0)
    s_memrealtime s[{ST0+22}:{ST0+23}]
    s_lshl_b32 s72, s2, 3
    s_add_u32 s72, s72, s3
    s_lshl_b32 s72, s72, 7
    s_add_u32 s72, s72, {0x1000000 + kid*0x50000}
    s_add_u32 s68, s30, s72
    s_addc_u32 s69, s31, 0
    s_mov_b32 s70, 128
    s_mov_b32 s71, 0x20000
    s_mov_b64 exec, 1
    v_mov_b32 v4, 0
    s_waitcnt lgkmcnt(0)
    """)
    for i in range(12):
        a.e(f"v_mov_b32 v2, s{ST0+2*i}\n v_mov_b32 v3, s{ST0+2*i+1}\n buffer_store_dwordx2 v[2:3], v4, s[68:71], 0 offen offset:{8*i}\n s_nop 1")
```

```python
class Asm:
    def __init__(self):
        self.L = []
        self._n = 0
    def e(self, s):
        for ln in s.strip().split("\n"):
            ln = ln.strip()
            if ln:
                self.L.append("    " + ln)
    def lab(self, n):
        self.L.append(n + ":")
    def raw(self, s):
        self.L.append(s)
    def c(self, s):
        self.L.append("    ; " + s)
    def newlab(self, p="L"):
        self._n += 1
        return "%s_%d" % (p, self._n)
    def text(self):
        return "\n".join(self.L) + "\n"

def v(a, n=1):
    return "v%d" % a if n == 1 else "v[%d:%d]" % (a, a + n - 1)
def s(a, n=1):
    return "s%d" % a if n == 1 else "s[%d:%d]" % (a, a + n - 1)

class RA:
    def __init__(self, start=0, limit=256):
        self.p = start; self.limit = limit; self.hi = start
    def a(self, n=1, al=1):
        if n >= 2 and al == 1:
            al = 2
        self.p = (self.p + al - 1) // al * al
        r = self.p
        self.p += n
        assert self.p <= self.limit, "out of VGPRs %d" % self.p
        self.hi = max(self.hi, self.p)
        return r

def interleave(main, fill, every=1, start=0):
    out = []; fi = 0
    for i, m in enumerate(main):
        out.append(m)
        if i >= start and (i - start) % every == 0 and fi < len(fill):
            out.append(fill[fi]); fi += 1
    out += fill[fi:]
    return out

import struct
def f32(x):
    return "0x%08x" % struct.unpack("<I", struct.pack("<f", x))[0]

import os
STAMPS = bool(os.environ.get("STAMPS"))
ST0 = 76
CLK = os.environ.get("CLK")
def stamp(a, i):
    if STAMPS and CLK and 0 < i < 11:
        c = [int(x) for x in CLK.split(",")]
        if i in c:
            k = 1 + 2 * c.index(i)
            a.e(f"s_memrealtime s[{ST0+2*k}:{ST0+2*k+1}]\n s_memtime s[{ST0+2*k+2}:{ST0+2*k+3}]")
        return
    if STAMPS:
        op = "s_memtime" if (os.environ.get("CYC") and 0 < i < 11) else "s_memrealtime"
        a.e(f"{op} s[{ST0+2*i}:{ST0+2*i+1}]")
def stamp_init(a):
    if STAMPS:
        for i in range(12):
            a.e(f"s_mov_b64 s[{ST0+2*i}:{ST0+2*i+1}], 0")
def stamp_flush(a, kid):
    if not STAMPS:
        return
    if os.environ.get("DBGST"):
        kv = [1, 2, 3, 5, 7, 8, 9, 11]; aa = [2, 4, 6, 8, 11]
        a.e(f"""
        s_waitcnt vmcnt(0) lgkmcnt(0)
        s_memrealtime s[{ST0+22}:{ST0+23}]
        s_cmp_lg_u32 s3, 0
        s_cbranch_scc1 L_END
        s_mov_b32 s68, s28
        s_mov_b32 s69, s29
        s_mov_b32 s70, 256
        s_mov_b32 s71, 0x20000
        v_mov_b32 v2, 0
        v_lshlrev_b32 v4, 2, v1
        s_waitcnt lgkmcnt(0)
        s_not_b32 s72, s{ST0}
        v_writelane_b32 v2, s72, 1
        v_writelane_b32 v2, s{ST0}, 2
        s_cmp_ge_u32 s59, 16
        s_cbranch_scc1 L_DB1
        """)
        for n, i in enumerate(kv):
            a.e(f"v_writelane_b32 v2, s{ST0+2*i}, {3+n}")
        a.lab("L_DB1")
        a.e("s_cmp_lt_u32 s59, 24\n s_cbranch_scc1 L_DB2")
        for n, i in enumerate(aa):
            a.e(f"v_writelane_b32 v2, s{ST0+2*i}, {11+n}")
        a.lab("L_DB2")
        a.e("s_mov_b64 exec, 0xfffe\n buffer_atomic_umax v2, v4, s[68:71], 0 offen")
        return
    a.e(f"""
    s_waitcnt vmcnt(0) lgkmcnt(0)
    s_memrealtime s[{ST0+22}:{ST0+23}]
    s_lshl_b32 s72, s2, 3
    s_add_u32 s72, s72, s3
    s_lshl_b32 s72, s72, 7
    s_add_u32 s72, s72, {0x1000000 + kid*0x50000}
    s_add_u32 s68, s30, s72
    s_addc_u32 s69, s31, 0
    s_mov_b32 s70, 128
    s_mov_b32 s71, 0x20000
    s_mov_b64 exec, 1
    v_mov_b32 v4, 0
    s_waitcnt lgkmcnt(0)
    """)
    for i in range(12):
        a.e(f"v_mov_b32 v2, s{ST0+2*i}\n v_mov_b32 v3, s{ST0+2*i+1}\n buffer_store_dwordx2 v[2:3], v4, s[68:71], 0 offen offset:{8*i}\n s_nop 1")

def interleave2(main, fill, per):
    out = []; fi = 0
    for m in main:
        out.append(m)
        out += fill[fi:fi + per]; fi += per
    out += fill[fi:]
    return out
```

```python
import sys
from asmlib import *
NAME = "concat_heads__ssm_conv_h3__linear_attn_block__prompt"
KN = NAME + "_kernel"
EX = set(os.environ.get("EX", "").split(","))
XW = "nt" if "xwnt" in EX else ""
ROTR = int(os.environ.get("ROTR", "8530"), 16); ROTC = int(os.environ.get("ROTC", "875320"), 16)
RPG = 2 if "rpg2" in EX else 1
OST = os.environ.get("OSTA", "")
OSTB = os.environ.get("OSTB", "nt")

WS_UT, WS_PQ, WS_KV, WS_FL = 0, 0x500000, 0x780000, 0x790000
T_BYTES = 640 * 4096
KV_BYTES = 32 * 22 * 80
S_WG, S_WAVE = 2, 3
P_Q, P_K, P_V, P_SH, P_H, P_D, P_X, P_W, P_WO, P_OUT, P_DBG, P_WS = 8, 10, 12, 14, 16, 18, 20, 22, 24, 26, 28, 30
SRD_A, SRD_B, SRD_C, SRD_D, SRD_FL = 32, 36, 40, 44, 48
S_RT, S_G, S_MODE, S_CB, S_P2, S_SLOT, S_XI, S_J = 52, 53, 54, 55, 56, 57, 58, 59
L = 1

def mk_srd(a, srd, ptr, nbytes, off=0, off_sreg=None):
    if off_sreg is not None:
        a.e(f"s_add_u32 s{srd}, s{ptr}, s{off_sreg}\n s_addc_u32 s{srd+1}, s{ptr+1}, 0")
    elif off:
        a.e(f"s_add_u32 s{srd}, s{ptr}, {off}\n s_addc_u32 s{srd+1}, s{ptr+1}, 0")
    else:
        a.e(f"s_mov_b32 s{srd}, s{ptr}\n s_mov_b32 s{srd+1}, s{ptr+1}")
    a.e(f"s_mov_b32 s{srd+2}, {nbytes}\n s_mov_b32 s{srd+3}, 0x20000")
def srd(x): return f"s[{x}:{x+3}]"

SPIN_MAX = 400000
def poll(a, srdn, voffs, tmps, scnt=74):
    lp, dn = a.newlab("poll"), a.newlab("polld")
    a.e(f"s_mov_b32 s{scnt}, {SPIN_MAX}")
    a.lab(lp)
    for vo, t in zip(voffs, tmps):
        a.e(f"buffer_load_dword v{t}, v{vo}, {srd(srdn)}, 0 offen sc1")
    a.e("s_waitcnt vmcnt(0)")
    for t in tmps[1:]:
        a.e(f"v_and_b32 v{tmps[0]}, v{tmps[0]}, v{t}")
    a.e(f"""
    v_cmp_ne_u32 vcc, 1, v{tmps[0]}
    s_sub_u32 s{scnt}, s{scnt}, 1
    s_cbranch_scc1 {dn}
    s_cmp_eq_u64 vcc, 0
    s_cbranch_scc1 {dn}
    s_sleep 1
    s_branch {lp}
    """)
    a.lab(dn)

def poll_z(a, vz, vt):
    mk_srd(a, SRD_D, P_DBG, 256)
    a.e(f"v_and_b32 v{vz}, 7, v{L}\n v_lshlrev_b32 v{vz}, 2, v{vz}")
    poll(a, SRD_D, [vz], [vt])

def set_flag(a, v0_, v1_):
    sk = a.newlab("nofl")
    a.e(f"""
    s_cmp_lg_u32 s{S_WAVE}, 0
    s_cbranch_scc1 {sk}
    s_lshl_b32 s74, s{S_SLOT}, 7
    v_mov_b32 v{v0_}, 0
    v_mov_b32 v{v1_}, 1
    s_mov_b64 exec, 1
    buffer_store_dword v{v1_}, v{v0_}, {srd(SRD_FL)}, s74 offen sc1
    s_mov_b64 exec, -1
    """)
    a.lab(sk)

UP = 4672
HB, HP, H_O = 87808, 8320, 4160
def h_dma(a, sch, sslot, vl16, srdn, t1, t2):
    a.e(f"""
    s_lshl_b32 s{t1}, s{sch}, 12
    s_mul_i32 s{t2}, s{sslot}, {HP}
    s_add_u32 m0, s{t2}, {HB+32}
    s_nop 0
    """)
    for j in range(4):
        a.e(f"buffer_load_dwordx4 v{vl16}, {srd(srdn)}, s{t1} offen offset:{1024*j} nt lds")
    a.e(f"s_add_u32 m0, s{t2}, {HB+H_O+32}\n s_add_u32 s{t1}, s{t1}, 2")
    for j in range(4):
        a.e(f"buffer_load_dwordx4 v{vl16}, {srd(srdn)}, s{t1} offen offset:{1024*j} nt lds")

XST, WBASE, WST, NST = 16384, 65536, 20480, 4
IMG, IMGP = WBASE + 3 * WST, 7168
LFL = WBASE + 4 * WST

def lds_wait(a, vaddr, vq, off, need, sv=73, scnt=74, first_check=False):
    lp, ok = a.newlab("lw"), a.newlab("lwok")
    if first_check:
        a.e(f"s_cmp_ge_u32 s{sv}, {need}\n s_cbranch_scc1 {ok}")
    a.e(f"s_mov_b32 s{scnt}, 4000000")
    a.lab(lp)
    a.e(f"""
    ds_read_b128 {v(vq,4)}, v{vaddr} offset:{off}
    s_sub_u32 s{scnt}, s{scnt}, 1
    s_cbranch_scc1 {ok}
    s_waitcnt lgkmcnt(0)
    v_min3_u32 v{vq}, v{vq}, v{vq+1}, v{vq+2}
    v_min_u32 v{vq}, v{vq}, v{vq+3}
    s_nop 0
    v_readfirstlane_b32 s{sv}, v{vq}
    s_nop 0
    s_cmp_ge_u32 s{sv}, {need}
    s_cbranch_scc0 {lp}
    """)
    a.lab(ok)
def lds_pub(a, vaddr, vt, val):
    a.e(f"v_mov_b32 v{vt}, {val}\n s_mov_b64 exec, 1\n ds_write_b32 v{vaddr}, v{vt}\n s_mov_b64 exec, -1")

def g1_loader(a):
    ra = RA(2)
    t0, t1, t2, t3 = [ra.a() for _ in range(4)]
    vx = [ra.a() for _ in range(4)]
    vw = [ra.a() for _ in range(5)]
    z4 = ra.a(4, 4)
    sLW, sSX, sSW, sM0X, sM0W, sC1, sC2, sT = 60, 61, 62, 63, 64, 65, 66, 67
    a.c("G1 loader wave")
    if "prio" in EX: a.e("s_setprio 3")
    a.e(f"""
    s_sub_u32 s{sLW}, s{S_WAVE}, 4
    s_lshl_b32 s{sT}, s{S_RT}, 2
    s_add_u32 s{sT}, s{sT}, s{sLW}
    s_mul_i32 s{sSX}, s{sT}, {32*1280}
    s_lshl_b32 s{sM0X}, s{sLW}, 12
    v_lshrrev_b32 v{t0}, 3, v{L}
    v_mul_u32_u24 v{t0}, 1280, v{t0}
    v_lshrrev_b32 v{t1}, 4, v{L}
    v_and_b32 v{t2}, 7, v{L}
    v_xor_b32 v{t1}, v{t1}, v{t2}
    v_lshlrev_b32 v{t1}, 4, v{t1}
    v_xor_b32 v{t2}, 64, v{t1}
    v_add_u32 v{vx[0]}, v{t0}, v{t1}
    v_add_u32 v{vx[1]}, v{t0}, v{t2}
    v_add_u32 v{vx[2]}, {2*(8*1280-1024)}, v{vx[0]}
    v_add_u32 v{vx[3]}, {3*(8*1280-1024)}, v{vx[1]}
    v_add_u32 v{vx[1]}, {1*(8*1280-1024)}, v{vx[1]}
    s_cmp_eq_u32 s{S_MODE}, 0
    s_cselect_b32 s{sC1}, 1200, 0
    s_cselect_b32 s{sC2}, 80, 0
    s_cselect_b32 s{sSW}, 1280, 0
    s_lshl_b32 s{sT}, 160, s{S_MODE}
    s_mul_i32 s{sT}, s{sT}, s{S_G}
    s_add_u32 s{sSW}, s{sSW}, s{sT}
    s_mul_i32 s{sT}, s{sLW}, {16*3840}
    s_add_u32 s{sSW}, s{sSW}, s{sT}
    s_mul_i32 s{sM0W}, s{sLW}, 5120
    s_add_u32 s{sM0W}, s{sM0W}, {WBASE}
    """)
    sK = 68
    if "norot" in EX:
        a.e(f"s_mov_b32 s{sK}, 0")
    else:
        a.e(f"""
        s_and_b32 s{sT}, s{S_J}, 3
        s_lshl_b32 s{sT}, s{sT}, 2
        s_lshr_b32 s{sK}, {ROTR:#x}, s{sT}
        s_and_b32 s{sK}, s{sK}, 15
        s_and_b32 s{sT}, s{S_J}, 28
        s_lshr_b32 s{sT}, {ROTC:#x}, s{sT}
        s_and_b32 s{sT}, s{sT}, 15
        s_add_u32 s{sK}, s{sK}, s{sT}
        s_cmp_ge_u32 s{sK}, 10
        s_cselect_b32 s{sT}, 10, 0
        s_sub_u32 s{sK}, s{sK}, s{sT}
        s_lshl_b32 s{sT}, s{sK}, 7
        s_add_u32 s{sSX}, s{sSX}, s{sT}
        s_mul_i32 s{sT}, s{sK}, {64*3840}
        s_add_u32 s{sSW}, s{sSW}, s{sT}
        """)
    for x in range(320): assert (x * 3277) >> 16 == x // 20
    for x in range(20): assert (x * 52) >> 8 == x // 5
    for j in range(5):
        sub = 1024 * j if j < 4 else 0
        a.e(f"""
        v_add_u32 v{t0}, {64*j}, v{L}
        v_mul_u32_u24 v{t1}, 3277, v{t0}
        v_lshrrev_b32 v{t1}, 16, v{t1}
        v_mul_u32_u24 v{t2}, 20, v{t1}
        v_sub_u32 v{t0}, v{t0}, v{t2}
        v_lshrrev_b32 v{t2}, 2, v{t1}
        v_and_b32 v{t2}, 2, v{t2}
        v_xor_b32 v{t0}, v{t0}, v{t2}
        v_mul_u32_u24 v{t2}, 52, v{t0}
        v_lshlrev_b32 v{t0}, 4, v{t0}
        v_bfe_u32 v{t3}, v{t2}, 8, 1
        v_mad_u32_u24 v{t0}, v{t3}, s{sC1}, v{t0}
        v_lshrrev_b32 v{t3}, 9, v{t2}
        v_mul_u32_u24 v{t3}, s{sC2}, v{t3}
        v_sub_u32 v{t0}, v{t0}, v{t3}
        v_mul_u32_u24 v{t1}, 3840, v{t1}
        v_add_u32 v{t0}, v{t0}, v{t1}
        v_subrev_u32 v{vw[j]}, {sub}, v{t0}
        """)
    a.e("s_waitcnt lgkmcnt(0)")
    mk_srd(a, SRD_A, P_X, 2048 * 1280)
    mk_srd(a, SRD_B, P_W, 640 * 3840)
    a.e(f"s_mov_b32 s70, {-9*64*3840}\n s_mov_b32 s71, {64*3840}\n s_mov_b32 s72, 128")
    def issue_x(st):
        if "nodma" in EX: return []
        out = [f"s_add_u32 m0, s{sM0X}, {(st % NST) * XST}", "s_nop 0"]
        for j in range(4):
            out.append(f"buffer_load_dwordx4 v{vx[j]}, {srd(SRD_A)}, s{sSX} offen offset:{1024*j} {XW} lds")
        return out
    def issue_w(st):
        if "nodma" in EX: return []
        out = [f"s_add_u32 m0, s{sM0W}, {(st % NST) * WST}", "s_nop 0"]
        for j in range(4):
            out.append(f"buffer_load_dwordx4 v{vw[j]}, {srd(SRD_B)}, s{sSW} offen offset:{1024*j} {XW} lds")
        out += [f"s_add_u32 m0, s{sM0W}, {(st % NST) * WST + 4096}", "s_nop 0"]
        out.append(f"buffer_load_dwordx4 v{vw[4]}, {srd(SRD_B)}, s{sSW} offen {XW} lds")
        return out
    def advance():
        return [f"s_add_u32 s{sK}, s{sK}, 1", f"s_cmp_eq_u32 s{sK}, 10",
                f"s_cselect_b32 s{sT}, {-9*128}, s72", f"s_cselect_b32 s69, s70, s71",
                f"s_add_u32 s{sSX}, s{sSX}, s{sT}", f"s_add_u32 s{sSW}, s{sSW}, s69"]
    SCH = [int(c) for c in os.environ.get("SCH", "211111111")]
    assert sum(SCH) == 10
    issued = 0
    def issue_n(n):
        nonlocal issued
        for _ in range(n):
            a.e("\n".join(issue_x(issued) + issue_w(issued) + advance()))
            issued += 1
    issue_n(SCH[0])
    stamp(a, 1)
    mk_srd(a, SRD_FL, P_WS, 256 * 128, off=WS_FL)
    for i in range(4):
        a.e(f"v_mov_b32 v{z4+i}, 0")
    a.e(f"v_lshlrev_b32 v{t0}, 4, v0\n v_add_u32 v{t0}, {IMG-4096}, v{t0}")
    nb = 0
    while issued < 10:
        a.e(f"s_waitcnt vmcnt({9*(issued - 1 - nb)})\n s_barrier")
        n = SCH[nb + 1]
        assert issued + n <= nb + 4
        issue_n(n)
        nb += 1
    lc, le = a.newlab("tc"), a.newlab("te")
    a.e(f"s_cmp_lg_u32 s{S_P2}, 0\n s_cbranch_scc1 {lc}")
    mk_srd(a, SRD_A, P_WO, 640 * 1280)
    a.e(f"""
    v_min_u32 v{t1}, 39, v{L}
    v_mul_u32_u24 v{t1}, 1280, v{t1}
    s_and_b32 s{sT}, s{S_RT}, 3
    s_lshl_b32 s{sT}, s{sT}, 2
    s_add_u32 s{sT}, s{sT}, s{sLW}
    s_mul_i32 s{sT}, s{sT}, {40*1280}
    s_lshl_b32 s{sC1}, s{S_CB}, 7
    s_add_u32 s{sT}, s{sT}, s{sC1}
    buffer_load_dword v250, v{t1}, {srd(SRD_A)}, s{sT} offen
    s_branch {le}
    """)
    a.lab(lc)
    mk_srd(a, SRD_A, P_H, T_BYTES)
    a.e(f"""
    v_and_b32 v{t1}, 31, v{L}
    v_lshlrev_b32 v{t1}, 7, v{t1}
    s_add_u32 s{sC1}, s{S_CB}, s{sLW}
    s_lshl_b32 s{sT}, s{sC1}, 12
    buffer_load_dword v250, v{t1}, {srd(SRD_A)}, s{sT} offen nt
    """)
    a.lab(le)
    mk_srd(a, SRD_D, P_DBG, 256)
    a.e(f"v_and_b32 v{t2}, 7, v{L}\n v_lshlrev_b32 v{t2}, 2, v{t2}")
    a.e(f"buffer_load_dword v{t3}, v{t2}, {srd(SRD_D)}, 0 offen sc1")
    while nb < 10:
        a.e(f"s_waitcnt vmcnt({9*(9 - nb) + 2})")
        a.e("s_barrier")
        if nb == 8:
            for i in range(4):
                a.e(f"ds_write_b128 v{t0}, v[{z4}:{z4+3}] offset:{4096*i}")
        nb += 1
    if "g1only" in EX: a.e("s_branch L_FIN")
    stamp(a, 2)
    lc = a.newlab("ld_conv")
    a.e(f"s_cmp_lg_u32 s{S_P2}, 0\n s_cbranch_scc1 {lc}")
    a.e(f"""
    v_lshrrev_b32 v{t0}, 3, v{L}
    v_mul_u32_u24 v{t0}, 1280, v{t0}
    v_and_b32 v{t1}, 7, v{L}
    v_lshrrev_b32 v{t2}, 4, v{L}
    v_lshlrev_b32 v{t2}, 1, v{t2}
    v_xor_b32 v{t1}, v{t1}, v{t2}
    v_lshl_add_u32 v{vx[0]}, v{t1}, 4, v{t0}
    v_add_u32 v{vx[1]}, {1*(8*1280-1024)}, v{vx[0]}
    v_add_u32 v{vx[2]}, {2*(8*1280-1024)}, v{vx[0]}
    v_add_u32 v{vx[3]}, {3*(8*1280-1024)}, v{vx[0]}
    s_mul_i32 s{sSX}, s{sLW}, {160*1280}
    s_lshl_b32 s{sT}, s{S_CB}, 7
    s_add_u32 s{sSX}, s{sSX}, s{sT}
    s_mul_i32 s{sM0X}, s{sLW}, 20480
    s_waitcnt lgkmcnt(0)
    s_barrier
    """)
    for q in range(5):
        a.e(f"s_add_u32 m0, s{sM0X}, {4096*q}\n s_nop 0")
        for j in range(4):
            a.e(f"buffer_load_dwordx4 v{vx[j]}, {srd(SRD_A)}, s{sSX} offen offset:{1024*j} lds")
        a.e(f"s_add_u32 s{sSX}, s{sSX}, {32*1280}")
    zok = a.newlab("zok")
    a.e(f"s_waitcnt vmcnt(20)\n v_cmp_ne_u32 vcc, 1, v{t3}\n s_nop 1\n s_cmp_eq_u64 vcc, 0\n s_cbranch_scc1 {zok}")
    poll_z(a, t1, t2)
    a.lab(zok)
    stamp(a, 3)
    a.e("s_barrier")
    a.e(f"s_cmp_lg_u32 s{S_MODE}, 0\n s_cbranch_scc1 L_G2\n s_barrier\n s_branch L_G2")
    a.lab(lc)
    a.e(f"v_lshlrev_b32 v{t0}, 4, v{L}\n s_add_u32 s{sSX}, s{S_CB}, s{sLW}\n s_waitcnt lgkmcnt(0)\n s_barrier")
    h_dma(a, sSX, sLW, t0, SRD_A, sC1, sC2)
    zok = a.newlab("zok")
    a.e(f"s_waitcnt vmcnt(8)\n v_cmp_ne_u32 vcc, 1, v{t3}\n s_nop 1\n s_cmp_eq_u64 vcc, 0\n s_cbranch_scc1 {zok}")
    poll_z(a, t1, t2)
    a.lab(zok)
    stamp(a, 3)
    a.e("s_barrier\n s_waitcnt vmcnt(0)\n s_branch L_CONV")

def phi4(regs, tmps, sLOG, sEPS):
    o = []
    for r, t in zip(regs, tmps): o.append(f"v_mul_f32 v{t}, s{sLOG}, v{r}")
    for r, t in zip(regs, tmps): o.append(f"v_exp_f32_e64 v{t}, v{t} clamp")
    for r, t in zip(regs, tmps): o.append(f"v_max_f32 v{r}, s{sEPS}, v{r}")
    for r, t in zip(regs, tmps): o.append(f"v_add_f32 v{r}, v{r}, v{t}")
    return o

def g1_init(a):
    a.e("s_waitcnt lgkmcnt(0)")
    mk_srd(a, SRD_FL, P_WS, 256 * 128, off=WS_FL)

def g1_compute(a, mode):
    ra = RA(2)
    lr, g, t0, t1, t2 = [ra.a() for _ in range(5)]
    xa = [ra.a(), ra.a()]
    wa = [[ra.a() for _ in range(5)] for _ in range(2)]
    aMain, aExtA, aExtB = ra.a(), ra.a(), ra.a()
    ie = ra.a(4, 4); ix = ra.a(4, 4)
    XF = [[ra.a(4, 4) for _ in range(4)] for _ in range(2)]
    WF = [[ra.a(4, 4) for _ in range(5)] for _ in range(2)]
    ACC = [[ra.a(4, 4) for _ in range(5)] for _ in range(4)]
    sRH, sCH, sT, sLOG, sEPS, sSO = 60, 61, 62, 63, 64, 65
    a.c("G1 compute wave mode %d" % mode)
    if mode == 1:
        nz = a.newlab("nozero")
        a.e(f"s_lshl_b32 s{sT}, s{S_WAVE}, 8\n s_or_b32 s{sT}, s{sT}, s{S_J}\n s_cmp_lg_u32 s{sT}, 16\n s_cbranch_scc1 {nz}")
        a.e(f"s_mul_i32 s{sT}, s{S_XI}, 7040\n s_add_u32 s{sT}, s{sT}, {WS_KV}")
        mk_srd(a, SRD_C, P_WS, 7040, off_sreg=sT)
        mk_srd(a, SRD_D, P_DBG, 256)
        for i in range(4): a.e(f"v_mov_b32 v{ie+i}, 0")
        a.e(f"""
        v_lshlrev_b32 v{t0}, 4, v{L}
        v_and_b32 v{t1}, 31, v{L}
        v_lshlrev_b32 v{t1}, 7, v{t1}
        s_lshl_b32 s{sT}, s{S_XI}, 12
        buffer_store_dword v{ie}, v{t1}, {srd(SRD_FL)}, s{sT} offen sc1
        s_movk_i32 s{sT}, 4096
        """)
        for n in range(7):
            a.e(f"buffer_store_dwordx4 {v(ie,4)}, v{t0}, {srd(SRD_C)}, {'s%d' % sT if n >= 4 else '0'} offen offset:{1024*(n&3)} sc1")
        a.e(f"""
        s_lshl_b32 s{sT}, s{S_XI}, 2
        v_mov_b32 v{t1}, 1
        s_waitcnt vmcnt(0)
        s_mov_b64 exec, 1
        buffer_store_dword v{t1}, v{t0}, {srd(SRD_D)}, s{sT} offen sc1
        s_mov_b64 exec, -1
        """)
        a.lab(nz)
    a.e(f"""
    s_lshr_b32 s{sRH}, s{S_WAVE}, 1
    s_and_b32 s{sCH}, s{S_WAVE}, 1
    s_mov_b32 s{sLOG}, {f32(1.4426950408889634)}
    s_mov_b32 s{sEPS}, {f32(1e-6)}
    v_and_b32 v{lr}, 15, v{L}
    v_lshrrev_b32 v{g}, 4, v{L}
    s_lshl_b32 s{sT}, s{sRH}, 13
    v_lshrrev_b32 v{t0}, 1, v{lr}
    v_xor_b32 v{t0}, v{t0}, v{g}
    v_lshlrev_b32 v{t0}, 4, v{t0}
    v_lshl_add_u32 v{t0}, v{lr}, 7, v{t0}
    v_add_u32 v{xa[0]}, s{sT}, v{t0}
    v_xor_b32 v{xa[1]}, 64, v{xa[0]}
    v_lshrrev_b32 v{t0}, 2, v{lr}
    v_lshl_add_u32 v{t0}, v{g}, 3, v{t0}
    v_mul_u32_u24 v{t0}, 320, v{t0}
    v_add_u32 v{t0}, {WBASE}, v{t0}
    v_and_b32 v{t1}, 1, v{g}
    v_lshlrev_b32 v{t1}, 5, v{t1}
    s_mul_i32 s{sT}, s{sCH}, 160
    v_and_b32 v{t2}, 3, v{lr}
    """)
    for t in range(5):
        w = wa[0][t]
        if t < 4:
            a.e(f"v_lshl_add_u32 v{w}, v{t2}, 3, s{sT}\n v_add_u32 v{w}, {40*t}, v{w}")
        else:
            a.e(f"v_mul_u32_u24 v{w}, 40, v{t2}\n v_add_u32 v{w}, s{sT}, v{w}\n v_add_u32 v{w}, 32, v{w}")
        a.e(f"v_xor_b32 v{w}, v{w}, v{t1}\n v_add_u32 v{w}, v{w}, v{t0}\n v_add_u32 v{wa[1][t]}, 10240, v{w}")
    for i in range(4):
        a.e(f"v_mov_b32 v{ie+i}, s{sEPS}")
    if mode == 0:
        a.e(f"v_cmp_gt_u32 vcc, 8, v{lr}")
        a.e(f"""
        s_mul_i32 s{sT}, s{sRH}, {IMGP}
        s_mul_i32 s{sSO}, s{sCH}, 3520
        s_add_u32 s{sT}, s{sT}, s{sSO}
        s_add_u32 s{sT}, s{sT}, {IMG}
        """)
        for i in range(4):
            a.e(f"v_cndmask_b32 v{ix+i}, 0, v{ie}, vcc")
        a.e(f"""
        v_mul_u32_u24 v{aMain}, 80, v{lr}
        v_lshl_add_u32 v{aMain}, v{g}, 4, v{aMain}
        v_add_u32 v{aMain}, s{sT}, v{aMain}
        v_cmp_eq_u32 vcc, 0, v{lr}
        v_mov_b32 v{t0}, 640
        v_mov_b32 v{t1}, 1600
        v_mov_b32 v{t2}, 320
        v_cndmask_b32 v{t0}, v{t0}, v{t1}, vcc
        v_cndmask_b32 v{t2}, v{t2}, v{t1}, vcc
        v_add_u32 v{aExtA}, v{aMain}, v{t0}
        v_add_u32 v{aExtB}, v{aMain}, v{t2}
        s_mul_i32 s{sT}, s{S_G}, 7040
        s_add_u32 s{sT}, s{sT}, {WS_KV}
        """)
        mk_srd(a, SRD_C, P_WS, 7040, off_sreg=sT)
    else:
        a.e(f"""
        v_lshlrev_b32 v{aMain}, 4, v{L}
        v_lshlrev_b32 v{aExtA}, 3, v{L}
        s_lshl_b32 s{sT}, s{S_RT}, 3
        s_lshl_b32 s{sSO}, s{sRH}, 2
        s_add_u32 s{sT}, s{sT}, s{sSO}
        s_lshl_b32 s{sT}, s{sT}, 3
        s_lshl_b32 s{sSO}, s{S_G}, 1
        s_add_u32 s{sT}, s{sT}, s{sSO}
        s_add_u32 s{sT}, s{sT}, s{sCH}
        s_mul_i32 s{sSO}, s{sT}, 2560
        """)
        mk_srd(a, SRD_C, P_WS, T_BYTES, off=WS_PQ)
    def reads(st, ks):
        sl = st % NST
        xs = [f"ds_read_b128 v[{XF[ks][rt]}:{XF[ks][rt]+3}], v{xa[ks]} offset:{sl*XST + rt*2048}" for rt in range(4)]
        ws = []
        for t in range(5):
            for h in range(2):
                ws.append(f"ds_read_b64_tr_b16 v[{WF[ks][t]+2*h}:{WF[ks][t]+2*h+1}], v{wa[ks][t]} offset:{sl*WST + h*1280}")
        if "noreads" in EX: return []
        if "notr" in EX: return xs
        if "nox" in EX: return ws
        return xs + ws
    def mfmas(ks, first=False):
        o = []
        for rt in range(4):
            for t in range(5):
                d = ACC[rt][t]
                c = v(d, 4)
                if first:
                    if mode == 1 or t < 2: c = v(ie, 4)
                    elif t == 4: c = v(ix, 4)
                    else: c = "0"
                x, w = v(XF[ks][rt], 4), v(WF[ks][t], 4)
                A_, B_ = (x, w) if mode == 0 else (w, x)
                o.append(f"v_mfma_f32_16x16x32_bf16 {v(d,4)}, {A_}, {B_}, {c}")
        return o
    for st in range(10):
        a.c(f"step {st}")
        a.e("s_barrier")
        if "g1only" in EX:
            if "few" not in EX or st in (1, 9): stamp(a, 1 + st)
        elif st in (0, 5): stamp(a, {0: 1, 5: 2}[st])
        if st == 0:
            a.e("\n".join(reads(0, 0)))
        else:
            a.e("\n".join(interleave2(mfmas(1), reads(st, 0), RPG)))
        a.e("s_waitcnt lgkmcnt(0)")
        a.e("\n".join(interleave2(mfmas(0, first=(st == 0)), reads(st, 1), RPG)))
        a.e("s_waitcnt lgkmcnt(0)")
    if "g1only" in EX: a.e("s_branch L_FIN")
    a.e("s_barrier")
    a.e("\n".join(mfmas(1)))
    stamp(a, 3)
    fr = XF[0][0]
    assert WF[1][4] + 4 - fr == 72
    tm = [ie, ie + 1, ie + 2, ie + 3]
    if mode == 1:
        order = [0, 4, 1, 2, 3]
        for rt in range(4):
            ob = fr + 12 * rt
            for pos, t in enumerate(order):
                r = [ACC[rt][t] + i for i in range(4)]
                a.e("\n".join(phi4(r, tm, sLOG, sEPS)))
                a.e(f"v_cvt_pk_bf16_f32 v{ob+2*pos}, v{r[0]}, v{r[1]}")
                a.e(f"v_cvt_pk_bf16_f32 v{ob+2*pos+1}, v{r[2]}, v{r[3]}")
            a.e(f"""
            buffer_store_dwordx4 v[{ob}:{ob+3}], v{aMain}, {srd(SRD_C)}, s{sSO} offen sc1
            buffer_store_dwordx4 v[{ob+4}:{ob+7}], v{aMain}, {srd(SRD_C)}, s{sSO} offen offset:1024 sc1
            buffer_store_dwordx2 v[{ob+8}:{ob+9}], v{aExtA}, {srd(SRD_C)}, s{sSO} offen offset:2048 sc1
            s_add_u32 s{sSO}, s{sSO}, {8*2560}
            """)
        stamp(a, 4)
        a.e("s_waitcnt vmcnt(0)\n s_barrier")
        set_flag(a, t0, t1)
        a.e("s_branch L_PHASE2")
    else:
        P = {n: [fr + (i * 2 + k) * 4 for k in range(2)] for i, n in enumerate(["T0", "T1", "T2", "T3", "T4A", "T4B"])}
        a.e(f"v_cmp_gt_u32 vcc, 8, v{lr}\n v_mov_b32 v{t0}, 0x3f803f80")
        for rt in range(4):
            k, h = rt >> 1, rt & 1
            for t, n in ((2, "T2"), (3, "T3"), (4, "T4B")):
                r = ACC[rt][t]; d = P[n][k] + 2 * h
                a.e(f"v_cvt_pk_bf16_f32 v{d}, v{r}, v{r+1}\n v_cvt_pk_bf16_f32 v{d+1}, v{r+2}, v{r+3}")
            d = P["T4B"][k] + 2 * h
            a.e(f"v_cndmask_b32 v{d}, v{d}, v{t0}, vcc\n v_cndmask_b32 v{d+1}, v{d+1}, v{t0}, vcc")
            for t, n in ((0, "T0"), (1, "T1"), (4, "T4A")):
                r = [ACC[rt][t] + i for i in range(4)]; d = P[n][k] + 2 * h
                a.e("\n".join(phi4(r, tm, sLOG, sEPS)))
                a.e(f"v_cvt_pk_bf16_f32 v{d}, v{r[0]}, v{r[1]}\n v_cvt_pk_bf16_f32 v{d+1}, v{r[2]}, v{r[3]}")
        prods = [("T0", "T2"), ("T0", "T4B"), ("T4A", "T2"), ("T1", "T3"), ("T1", "T4B"), ("T4A", "T3"), ("T4A", "T4B")]
        R = [ACC[0][0] + 4 * i for i in range(7)]
        a.e("s_nop 1")
        for k in range(2):
            for i, (x, y) in enumerate(prods):
                c = "0" if k == 0 else v(R[i], 4)
                a.e(f"v_mfma_f32_16x16x32_bf16 {v(R[i],4)}, {v(P[x][k],4)}, {v(P[y][k],4)}, {c}")
        a.e(f"v_lshlrev_b32 v{t0}, 2, v0\n v_add_u32 v{t1}, {IMG}, v{t0}\n v_add_u32 v{t2}, 4096, v{t0}\n s_nop 4")
        def wr(i, addr, off, lo, hi):
            a.e(f"s_mov_b32 exec_lo, {lo:#x}\n s_mov_b32 exec_hi, {hi:#x}")
            a.e(f"ds_write_b128 v{addr}, {v(R[i],4)} offset:{off}")
        a.e(f"ds_write_b128 v{aMain}, {v(R[0],4)}")
        a.e(f"ds_write_b128 v{aMain}, {v(R[3],4)} offset:1760")
        wr(1, aExtA, 0, 0x0f010f01, 0x0f010f01)
        wr(4, aExtB, 1760, 0xf001f001, 0xf001f001)
        wr(2, aMain, 64, 0x0000ffff, 0)
        wr(5, aMain, 1760 + 48, 0xffff0000, 0)
        wr(6, aExtA, 64, 0x00000f01, 0)
        wr(6, aExtB, 1760 + 48, 0xf0010000, 0)
        a.e("s_mov_b64 exec, -1")
        stamp(a, 4)
        a.e("s_waitcnt lgkmcnt(0)\n s_barrier")
        for n in range(7):
            a.e(f"ds_read2st64_b32 v[{fr+2*n}:{fr+2*n+1}], v{t1} offset0:{4*n} offset1:{28+4*n}")
        for n in range(7):
            a.e(f"s_waitcnt lgkmcnt({6-n})")
            a.e(f"v_add_f32 v{fr+2*n}, v{fr+2*n}, v{fr+2*n+1}")
            a.e(f"buffer_atomic_add_f32 v{fr+2*n}, v{t0 if n < 4 else t2}, {srd(SRD_C)}, 0 offen offset:{1024*(n&3)}")
        a.e("s_waitcnt vmcnt(0)\n s_barrier")
        set_flag(a, t0, t1)
        a.e("s_branch L_PHASE2")
    return ra.hi

def a1(a):
    ra = RA(2)
    t0, t1, t2, t3 = [ra.a() for _ in range(4)]
    vo = [ra.a() for _ in range(5)]
    lr, g, base, baseh, phi, phih, ad, adh, so_u, otap = [ra.a() for _ in range(10)]
    KB, VB = 5120, 5120 + 40960
    assert VB + 40960 <= HB
    sTI, sCH, sSO, sM0, sT, sSH, sCG, sU = 60, 61, 62, 63, 64, 65, 66, 67
    NB = 2048 * 1280
    a.c("A1")
    if "noa1" in EX: a.e("s_waitcnt lgkmcnt(0)\n s_branch L_FIN")
    a.e(f"""
    s_lshr_b32 s{sTI}, s{S_RT}, 1
    s_and_b32 s{sCH}, s{S_RT}, 1
    s_lshl_b32 s{sT}, s{sTI}, 3
    s_add_u32 s{sT}, s{sT}, s{S_WAVE}
    s_mul_i32 s{sSO}, s{sT}, {8*1280}
    s_mul_i32 s{sT}, s{sCH}, 640
    s_add_u32 s{sSO}, s{sSO}, s{sT}
    s_mul_i32 s{sM0}, s{S_WAVE}, 5120
    s_and_b32 s{sT}, s{S_WAVE}, 1
    s_lshl_b32 s{sT}, s{sT}, 2
    """)
    for x in range(320): assert (x * 1639) >> 16 == x // 40
    for j in range(5):
        sub = 1024 * j if j < 4 else 0
        a.e(f"""
        v_add_u32 v{t0}, {64*j}, v{L}
        v_mul_u32_u24 v{t1}, 1639, v{t0}
        v_lshrrev_b32 v{t1}, 16, v{t1}
        v_mul_u32_u24 v{t2}, 40, v{t1}
        v_sub_u32 v{t0}, v{t0}, v{t2}
        v_and_b32 v{t2}, 2, v{t1}
        v_or_b32 v{t2}, s{sT}, v{t2}
        v_xor_b32 v{t0}, v{t0}, v{t2}
        v_lshlrev_b32 v{t0}, 4, v{t0}
        v_mul_u32_u24 v{t1}, 1280, v{t1}
        v_add_u32 v{t0}, v{t0}, v{t1}
        v_subrev_u32 v{vo[j]}, {sub}, v{t0}
        """)
    a.e(f"""
    v_and_b32 v{lr}, 15, v{L}
    s_mul_i32 s{sT}, s{sCH}, 320
    v_add_u32 v{so_u}, s{sT}, v{lr}
    v_lshlrev_b32 v{otap}, 3, v{so_u}
    v_lshlrev_b32 v{t3}, 4, v{L}
    s_waitcnt lgkmcnt(0)
    """)
    mk_srd(a, SRD_A, P_K, NB); mk_srd(a, SRD_B, P_V, NB); mk_srd(a, SRD_D, P_SH, 640 * 8)
    def dma(srdn, lbase, so, js=range(5)):
        o = []; first = True
        for j in js:
            if first and j < 4:
                o += [f"s_add_u32 m0, s{sM0}, {lbase}", "s_nop 0"]; first = False
            if j == 4:
                o += [f"s_add_u32 m0, s{sM0}, {lbase+4096}", "s_nop 0"]
            off = f" offset:{1024*j}" if 0 < j < 4 else ""
            o.append(f"buffer_load_dwordx4 v{vo[j]}, {srd(srdn)}, s{so} offen{off} nt lds")
        return o
    taps = [ra.a(2) for _ in range(3)]
    a.e(f"s_lshl_b32 s{sT}, s{S_WAVE}, 7")
    for n in range(3):
        a.e(f"buffer_load_dwordx2 v[{taps[n]}:{taps[n]+1}], v{otap}, {srd(SRD_D)}, s{sT} offen offset:{1024*n}")
    lab = a.newlab("a1_nohalo")
    a.e(f"""
    s_cmp_lg_u32 s{S_WAVE}, 7
    s_cbranch_scc1 {lab}
    s_sub_u32 s{sSH}, s{sSO}, {64*1280}
    s_cmp_eq_u32 s{sTI}, 0
    s_cselect_b32 s{sSH}, {NB}, s{sSH}
    """)
    a.e("\n".join(dma(SRD_A, KB - 8 * 5120, sSH, js=(2, 3, 4))))
    a.lab(lab)
    a.e("\n".join(dma(SRD_A, KB, sSO)))
    a.e("\n".join(dma(SRD_B, VB, sSO)))
    mk_srd(a, SRD_C, P_WS, T_BYTES)
    mk_srd(a, SRD_FL, P_WS, 256 * 128, off=WS_FL)
    a.e(f"""
    v_lshrrev_b32 v{g}, 4, v{L}
    v_lshrrev_b32 v{t0}, 2, v{lr}
    v_lshl_add_u32 v{t1}, v{g}, 3, v{t0}
    v_mul_u32_u24 v{base}, 640, v{t1}
    v_and_b32 v{t2}, 3, v{lr}
    v_lshl_add_u32 v{base}, v{t2}, 3, v{base}
    v_add_u32 v{base}, {KB}, v{base}
    v_subrev_u32 v{baseh}, {4*640}, v{base}
    v_lshrrev_b32 v{t0}, 1, v{t0}
    v_and_b32 v{t1}, 1, v{g}
    v_lshl_or_b32 v{phi}, v{t1}, 1, v{t0}
    v_lshlrev_b32 v{phi}, 5, v{phi}
    v_xor_b32 v{phih}, 64, v{phi}
    v_lshlrev_b32 v{t0}, 12, v{so_u}
    s_lshl_b32 s{sT}, s{sTI}, 7
    v_lshlrev_b32 v{t1}, 4, v{g}
    v_add_u32 v{t1}, s{sT}, v{t1}
    v_sub_u32 v{so_u}, {4080-64}, v{t1}
    v_add_u32 v{so_u}, v{so_u}, v{t0}
    s_add_u32 s{sSH}, s{S_CB}, s{S_WAVE}
    """)
    mk_srd(a, SRD_A, P_H, T_BYTES)
    h_dma(a, sSH, S_WAVE, t3, SRD_A, sT, sU)
    stamp(a, 1)
    a.e("s_waitcnt vmcnt(8)\n s_barrier")
    stamp(a, 2)
    if "g1only" in EX: a.e("s_branch L_FIN")
    a.e("s_waitcnt lgkmcnt(0)")
    KR = ra.a(12, 2); VR = ra.a(8, 4); W = ra.a(5); U = ra.a(16); O = ra.a(8, 4); X = ra.a(4)
    done = a.newlab("a1_done")
    for n in range(3):
        if n == 2:
            a.e(f"s_cmp_ge_u32 s{S_WAVE}, 4\n s_cbranch_scc1 {done}")
        a.e(f"""
        s_add_u32 s{sCG}, s{S_WAVE}, {8*n}
        s_lshl_b32 s{sT}, s{sCG}, 5
        s_lshl_b32 s{sU}, s{sCG}, 16
        v_xor_b32 v{ad}, s{sT}, v{phi}
        v_xor_b32 v{adh}, s{sT}, v{phih}
        v_add_u32 v{ad}, v{ad}, v{base}
        v_add_u32 v{adh}, v{adh}, v{baseh}
        """)
        for hb in range(2):
            k = KR + 6 * hb; o = hb * 32 * 640
            a.e(f"ds_read_b64_tr_b16 {v(k,2)}, v{adh} offset:{o}")
            a.e(f"ds_read_b64_tr_b16 {v(k+2,2)}, v{ad} offset:{o}")
            a.e(f"ds_read_b64_tr_b16 {v(k+4,2)}, v{ad} offset:{o+2560}")
        for hb in range(2):
            for m in range(2):
                a.e(f"ds_read_b64_tr_b16 {v(VR+4*hb+2*m,2)}, v{ad} offset:{VB-KB+hb*32*640+m*2560}")
        tp = taps[n]
        a.e(f"""
        v_alignbit_b32 v{W}, v{tp}, v{tp}, 16
        v_alignbit_b32 v{W+1}, v{tp+1}, v{tp+1}, 16
        v_and_b32 v{W+2}, 0xffff0000, v{tp}
        v_and_b32 v{W+3}, 0xffff, v{tp}
        v_and_b32 v{W+4}, 0xffff, v{tp+1}
        v_or_b32 v{W+2}, v{W+2}, v{W+4}
        v_and_b32 v{W+4}, 0xffff0000, v{tp+1}
        s_waitcnt lgkmcnt(4)
        """)
        kk = lambda m: KR + 6 * (m >> 2) + (m & 3)
        for m in range(8):
            a.e(f"v_dot2_f32_bf16 v{U+2*m}, v{kk(m)}, v{W+4}, 0")
            a.e(f"v_dot2_f32_bf16 v{U+2*m+1}, v{kk(m)+1}, v{W+1}, 0")
        for m in range(8):
            a.e(f"v_dot2_f32_bf16 v{U+2*m}, v{kk(m)+1}, v{W+2}, v{U+2*m}")
            a.e(f"v_dot2_f32_bf16 v{U+2*m+1}, v{kk(m)+2}, v{W}, v{U+2*m+1}")
        for m in range(8):
            a.e(f"v_dot2_f32_bf16 v{U+2*m}, v{kk(m)+2}, v{W+3}, v{U+2*m}")
        a.e("s_waitcnt lgkmcnt(0)")
        for m in range(8):
            x = X + 2 * (m & 1)
            a.e(f"""
            v_lshlrev_b32 v{x}, 16, v{VR+m}
            v_and_b32 v{x+1}, 0xffff0000, v{VR+m}
            v_mul_f32 v{x+1}, v{x+1}, v{U+2*m+1}
            v_mul_f32 v{x}, v{x}, v{U+2*m}
            v_cvt_pk_bf16_f32 v{O+7-m}, v{x+1}, v{x}
            """)
            if m == 3:
                a.e(f"buffer_store_dwordx4 v[{O+4}:{O+7}], v{so_u}, {srd(SRD_C)}, s{sU} offen offset:64 sc1")
        a.e(f"buffer_store_dwordx4 v[{O}:{O+3}], v{so_u}, {srd(SRD_C)}, s{sU} offen sc1")
    a.lab(done)
    stamp(a, 3)
    nz = a.newlab("a1_nz")
    a.e(f"s_cmp_lg_u32 s{S_WAVE}, 7\n s_cbranch_scc1 {nz}")
    poll_z(a, t0, t1)
    a.lab(nz)
    a.e("s_waitcnt vmcnt(0)\n s_barrier")
    stamp(a, 4)
    set_flag(a, t0, t1)
    return ra.hi

def conv(a):
    ra = RA(2)
    lr, g, t0, t1, t2, aB, aT, vrow = [ra.a() for _ in range(8)]
    aA = [ra.a() for _ in range(4)]
    z4 = ra.a(4, 4); o4 = ra.a(4, 4); AD = ra.a(4, 4)
    Q = ra.a(16, 4)
    AF = [[ra.a(4, 4) for _ in range(8)] for _ in range(2)]
    BF = [[ra.a(4, 4) for _ in range(8)] for _ in range(2)]
    ACC = [ra.a(4, 4) for _ in range(8)]
    sD, sR, sSO, sT, sH0, sDV, sH, sQO = 60, 61, 62, 63, 64, 65, 66, 67
    fin, idle = a.newlab("conv_fin"), a.newlab("conv_idle")
    a.c("conv")
    mk_srd(a, SRD_A, P_WS, T_BYTES); mk_srd(a, SRD_B, P_Q, 2048 * 1280); mk_srd(a, SRD_C, P_OUT, 2048 * 2560)
    def qtouch():
        a.e(f"""
        s_cmp_eq_u32 s{S_P2}, 8
        s_cselect_b32 s68, 63, 31
        s_cselect_b32 s69, 31, 63
        s_and_b32 s{sT}, s{S_J}, 7
        s_lshl_b32 s{sT}, s{sT}, 3
        s_add_u32 s{sT}, s{sT}, s{S_WAVE}
        s_and_b32 s{sT}, s{sT}, s68
        s_add_u32 s70, s69, 1
        s_mul_i32 s{sT}, s{sT}, s70
        s_mul_i32 s{sT}, s{sT}, 1280
        s_lshl_b32 s70, s{S_CB}, 1
        s_add_u32 s{sT}, s{sT}, s70
        v_and_b32 v{t2}, s69, v{L}
        v_mul_u32_u24 v{t2}, 1280, v{t2}
        buffer_load_dword v250, v{t2}, {srd(SRD_B)}, s{sT} offen nt
        """)
    def qgather(ns):
        for n in ns:
            l8, le = a.newlab("q8"), a.newlab("qe")
            a.e(f"""
            s_add_u32 s{sT}, s{sQO}, {n*64*1280}
            s_cmp_eq_u32 s{S_P2}, 8
            s_cbranch_scc1 {l8}
            buffer_load_dwordx2 {v(Q+4*n,2)}, v{vrow}, {srd(SRD_B)}, s{sT} offen
            s_branch {le}
            """)
            a.lab(l8)
            a.e(f"buffer_load_dwordx4 {v(Q+4*n,4)}, v{vrow}, {srd(SRD_B)}, s{sT} offen nt")
            a.lab(le)
    a.e(f"""
    v_and_b32 v{lr}, 15, v{L}
    v_lshrrev_b32 v{g}, 4, v{L}
    v_mul_u32_u24 v{vrow}, 1280, v{L}
    s_mul_i32 s{sQO}, s{S_WAVE}, {256*1280}
    s_lshl_b32 s{sT}, s{S_CB}, 1
    s_add_u32 s{sQO}, s{sQO}, s{sT}
    s_cmp_ge_u32 s{S_WAVE}, s{S_P2}
    s_cbranch_scc1 {idle}
    s_add_u32 s{sD}, s{S_CB}, s{S_WAVE}
    s_lshl_b32 s{sSO}, s{sD}, 12
    s_mul_i32 s{sR}, s{S_WAVE}, {UP}
    s_mul_i32 s{sH}, s{S_WAVE}, {HP}
    s_add_u32 s{sH}, s{sH}, {HB}
    s_load_dword s{sH0}, s[{P_H}:{P_H+1}], s{sSO}
    s_lshl_b32 s{sT}, s{sD}, 1
    s_and_b32 s{sT}, s{sT}, 0xfffffffc
    s_load_dword s{sDV}, s[{P_D}:{P_D+1}], s{sT}
    s_cmp_ge_u32 s{sD}, 320
    s_cselect_b32 s{sT}, 32, 0
    s_add_u32 s{sT}, s{sT}, 192
    v_and_b32 v{t0}, 31, v{L}
    v_add_u32 v{t0}, s{sT}, v{t0}
    v_lshlrev_b32 v{aB}, 7, v{t0}
    """)
    for i in range(4):
        a.e(f"v_mov_b32 v{z4+i}, 0\n v_mov_b32 v{o4+i}, 0")
    a.e(f"""
    v_and_b32 v{t1}, 1, v{lr}
    v_cmp_eq_u32 vcc, 1, v{t1}
    v_mov_b32 v{t1}, {H_O}
    v_mov_b32 v{t2}, 2
    v_cndmask_b32 v{t1}, v{t1}, v{t2}, vcc
    v_lshl_add_u32 v{t1}, v{lr}, 1, v{t1}
    v_lshl_add_u32 v{t1}, v{g}, 4, v{t1}
    v_add_u32 v{aA[0]}, s{sH}, v{t1}
    v_add_u32 v{aA[1]}, 1024, v{aA[0]}
    v_add_u32 v{aA[2]}, 2048, v{aA[0]}
    v_add_u32 v{aA[3]}, 3072, v{aA[0]}
    v_lshlrev_b32 v{t0}, 4, v{L}
    v_add_u32 v{t1}, s{sH}, v{t0}
    v_add_u32 v{aT}, s{sR}, v{t0}
    s_waitcnt lgkmcnt(0)
    s_lshl_b32 s{sH0}, s{sH0}, 16
    s_and_b32 s{sT}, s{sD}, 1
    s_lshl_b32 s{sT}, s{sT}, 4
    s_lshr_b32 s{sDV}, s{sDV}, s{sT}
    s_and_b32 s{sDV}, s{sDV}, 0xffff
    v_writelane_b32 v{o4+3}, s{sH0}, 1
    s_mov_b32 exec_lo, -1
    s_mov_b32 exec_hi, 0
    ds_write_b128 v{aT}, v[{z4}:{z4+3}] offset:4096
    s_mov_b32 exec_lo, 3
    ds_write_b128 v{t1}, v[{z4}:{z4+3}]
    ds_write_b128 v{t1}, v[{o4}:{o4+3}] offset:{H_O}
    s_mov_b64 exec, -1
    v_lshl_add_u32 v{t1}, v{g}, 3, v{lr}
    v_sub_u32 v{t1}, 15, v{t1}
    v_and_b32 v{t2}, 1, v{t1}
    v_lshlrev_b32 v{t2}, 4, v{t2}
    v_lshlrev_b32 v{t2}, v{t2}, s{sDV}
    v_ashrrev_i32 v{t1}, 1, v{t1}
    """)
    for r in range(4):
        a.e(f"v_cmp_eq_u32 vcc, {r}, v{t1}\n s_nop 1\n v_cndmask_b32 v{AD+r}, 0, v{t2}, vcc")
    stamp(a, 5)
    poll(a, SRD_FL, [aB], [t1])
    stamp(a, 6)
    UR = AF[1][0]
    for j in range(4):
        a.e(f"buffer_load_dwordx4 {v(UR+4*j,4)}, v{t0}, {srd(SRD_A)}, s{sSO} offen offset:{1024*j} sc1")
    qtouch()
    for j in range(4):
        a.e(f"s_waitcnt vmcnt({4-j})\n ds_write_b128 v{aT}, {v(UR+4*j,4)} offset:{1024*j}")
    a.e(f"""
    v_lshlrev_b32 v{t1}, 5, v{lr}
    v_sub_u32 v{aB}, 480, v{t1}
    v_lshl_add_u32 v{aB}, v{g}, 4, v{aB}
    v_add_u32 v{aB}, s{sR}, v{aB}
    v_lshl_add_u32 v{aT}, v{g}, 3, v{t1}
    v_add_u32 v{aT}, s{sR}, v{aT}
    """)
    def reads(r):
        b = r & 1; o = []
        for i in range(8):
            o.append(f"ds_read_b128 {v(BF[b][i],4)}, v{aB} offset:{3584 - 512*i + 64*r}")
            o0 = 128 * (i & 1) + 16 * r
            o.append(f"ds_read2_b32 {v(AF[b][i],2)}, v{aA[i>>1]} offset0:{o0} offset1:{o0+1}")
            o.append(f"ds_read2_b32 {v(AF[b][i]+2,2)}, v{aA[i>>1]} offset0:{o0+2} offset1:{o0+3}")
        return o
    def mf(r):
        b = r & 1; o = []
        if r == 0:
            for c in range(8):
                o.append(f"v_mfma_f32_16x16x32_bf16 {v(ACC[c],4)}, {v(AD,4)}, {v(BF[b][c],4)}, 0")
        for q in range(8):
            for c in range(q, 8):
                o.append(f"v_mfma_f32_16x16x32_bf16 {v(ACC[c],4)}, {v(AF[b][q],4)}, {v(BF[b][c-q],4)}, {v(ACC[c],4)}")
        return o
    stamp(a, 7)
    a.e("s_waitcnt lgkmcnt(0)\n s_barrier")
    a.e("\n".join(reads(0)))
    for r in range(8):
        a.e("s_waitcnt lgkmcnt(0)")
        if 3 <= r <= 6: qgather([r - 3])
        a.e("\n".join(interleave(mf(r), reads(r + 1) if r < 7 else [])))
    stamp(a, 8)
    T = AF[0][0]
    for c in range(8):
        t = T + 2 * c
        if c == 6: a.e("s_nop 3")
        a.e(f"""
        v_cvt_pk_bf16_f32 v{t}, v{ACC[c]}, v{ACC[c]+1}
        v_cvt_pk_bf16_f32 v{t+1}, v{ACC[c]+2}, v{ACC[c]+3}
        ds_write_b64 v{aT}, v[{t}:{t+1}] offset:{512*c}
        """)
    a.e(f"s_branch {fin}")
    a.lab(idle)
    a.e("s_barrier")
    qtouch()
    a.e("s_waitcnt vmcnt(0)")
    qgather(range(4))
    a.lab(fin)
    a.e(f"""
    v_lshrrev_b32 v{t0}, 2, v{lr}
    v_mul_u32_u24 v{t0}, {UP}, v{t0}
    v_and_b32 v{t1}, 3, v{lr}
    v_lshl_add_u32 v{t0}, v{t1}, 3, v{t0}
    v_lshl_add_u32 v{t0}, v{g}, 5, v{t0}
    s_lshl_b32 s{sT}, s{S_WAVE}, 9
    v_add_u32 v{t0}, s{sT}, v{t0}
    v_lshlrev_b32 v{vrow}, 1, v{vrow}
    s_mul_i32 s{sSO}, s{S_WAVE}, {256*2560}
    s_lshl_b32 s{sT}, s{S_CB}, 1
    s_add_u32 s{sSO}, s{sSO}, s{sT}
    s_waitcnt lgkmcnt(0)
    s_barrier
    """)
    stamp(a, 9)
    Y = BF[0][0]; X = BF[1][0]
    def tail(nd):
        for n in range(4):
            for k in range(nd // 2):
                a.e(f"ds_read_b64_tr_b16 {v(Y+4*n+2*k,2)}, v{t0} offset:{128*n + 4*UP*k}")
        a.e("s_waitcnt vmcnt(0) lgkmcnt(0)")
        for n in range(4):
            for i in range(nd):
                y, q = Y + 4 * n + i, Q + 4 * n + i
                a.e(f"""
                v_lshlrev_b32 v{X}, 16, v{y}
                v_and_b32 v{X+1}, 0xffff0000, v{y}
                v_lshlrev_b32 v{X+2}, 16, v{q}
                v_and_b32 v{X+3}, 0xffff0000, v{q}
                v_mul_f32 v{X}, v{X}, v{X+2}
                v_mul_f32 v{X+1}, v{X+1}, v{X+3}
                v_cvt_pk_bf16_f32 v{y}, v{X}, v{X+1}
                """)
            a.e(f"buffer_store_dwordx{nd} {v(Y+4*n,nd)}, v{vrow}, {srd(SRD_C)}, s{sSO} offen {OST if nd == 4 else ''}")
            if n < 3: a.e(f"s_add_u32 s{sSO}, s{sSO}, {64*2560}")
    l8 = a.newlab("t8")
    a.e(f"s_cmp_eq_u32 s{S_P2}, 8\n s_cbranch_scc1 {l8}")
    tail(2)
    a.e("s_branch L_FIN")
    a.lab(l8)
    tail(4)
    a.e("s_branch L_FIN")
    return ra.hi

KVI = 81920
RED = KVI + 28672
def g2(a):
    ra = RA(2)
    lr, g, t0, t1, t2, t3 = [ra.a() for _ in range(6)]
    m0a, m1a = ra.a(), ra.a()
    x0a = [ra.a() for _ in range(4)]; x1a = [ra.a() for _ in range(4)]
    wm = [ra.a() for _ in range(4)]; wx = [ra.a() for _ in range(4)]
    v16, v8 = ra.a(), ra.a()
    ce = ra.a(4, 4)
    PQR = [[ra.a(10, 2) for _ in range(2)] for _ in range(4)]
    KF = [[ra.a(4, 4) for _ in range(2)] for _ in range(2)]
    CT = [[[ra.a(4, 4) for _ in range(2)] for _ in range(2)] for _ in range(2)]
    OP = [ra.a(4, 4) for _ in range(2)]
    OX = [ra.a(4, 4) for _ in range(2)]
    XT = [ra.a() for _ in range(2)]
    rc = [ra.a() for _ in range(2)]
    WF = [ra.a(4, 4) for _ in range(4)]
    ACC = [[ra.a(4, 4) for _ in range(4)] for _ in range(2)]
    LD = CT[0][0][0]
    sKH, sRW, sT, sSO, sM, sU = 60, 61, 62, 63, 64, 65
    a.c("G2")
    a.e(f"""
    s_lshr_b32 s{sKH}, s{S_WAVE}, 2
    s_and_b32 s{sRW}, s{S_WAVE}, 3
    v_and_b32 v{lr}, 15, v{L}
    v_lshrrev_b32 v{g}, 4, v{L}
    v_lshlrev_b32 v{v16}, 4, v{L}
    v_lshlrev_b32 v{v8}, 3, v{L}
    s_lshl_b32 s{sT}, s{S_RT}, 2
    s_add_u32 s{sT}, s{sT}, 128
    v_and_b32 v{t0}, 3, v{L}
    v_add_u32 v{t0}, s{sT}, v{t0}
    v_lshlrev_b32 v{t0}, 7, v{t0}
    """)
    mk_srd(a, SRD_B, P_WS, T_BYTES, off=WS_PQ)
    mk_srd(a, SRD_C, P_WS, KV_BYTES, off=WS_KV); mk_srd(a, SRD_D, P_OUT, 2048 * 2560)
    stamp(a, 5)
    poll(a, SRD_FL, [t0], [t1])
    a.e(f"""
    s_lshl_b32 s{sT}, s{S_RT}, 3
    s_lshl_b32 s{sU}, s{sRW}, 1
    s_add_u32 s{sT}, s{sT}, s{sU}
    s_lshl_b32 s{sT}, s{sT}, 3
    s_lshl_b32 s{sU}, s{sKH}, 2
    s_add_u32 s{sT}, s{sT}, s{sU}
    s_mul_i32 s{sU}, s{sT}, 2560
    """)
    def pqload(p):
        for rt in range(2):
            r = PQR[p][rt]
            a.e(f"""
            s_add_u32 s{sM}, s{sU}, {(rt*8+p)*2560}
            buffer_load_dwordx4 {v(r,4)}, v{v16}, {srd(SRD_B)}, s{sM} offen sc1
            buffer_load_dwordx4 {v(r+4,4)}, v{v16}, {srd(SRD_B)}, s{sM} offen offset:1024 sc1
            buffer_load_dwordx2 {v(r+8,2)}, v{v8}, {srd(SRD_B)}, s{sM} offen offset:2048 sc1
            """)
    pqload(0)
    a.e(f"""
    s_mul_i32 s{sT}, s{sKH}, {16*880}
    s_add_u32 s{sT}, s{sT}, {KVI}
    v_mul_u32_u24 v{t0}, 40, v{lr}
    v_add_u32 v{t0}, s{sT}, v{t0}
    v_lshl_add_u32 v{m0a}, v{g}, 3, v{t0}
    v_lshrrev_b32 v{t1}, 2, v{lr}
    v_add_u32 v{t1}, 16, v{t1}
    v_and_b32 v{t2}, 3, v{lr}
    v_cmp_eq_u32 vcc, 0, v{t2}
    v_min_u32 v{t2}, 2, v{t2}
    v_add_u32 v{t2}, 19, v{t2}
    v_cndmask_b32 v{t1}, v{t2}, v{t1}, vcc
    v_mul_u32_u24 v{t1}, 40, v{t1}
    v_add_u32 v{t1}, s{sT}, v{t1}
    v_lshl_add_u32 v{m1a}, v{g}, 3, v{t1}
    v_add_u32 v{t0}, 32, v{t0}
    v_add_u32 v{t1}, 32, v{t1}
    s_add_u32 s{sT}, s{sT}, {21*40}
    v_mov_b32 v{t2}, s{sT}
    """)
    for x in range(4):
        a.e(f"v_cmp_eq_u32 vcc, {x}, v{g}\n s_nop 1\n v_cndmask_b32 v{x0a[x]}, v{t2}, v{t0}, vcc\n v_cndmask_b32 v{x1a[x]}, v{t2}, v{t1}, vcc")
    a.e(f"""
    s_mul_i32 s{sT}, s{sKH}, {16*2560}
    v_lshrrev_b32 v{t0}, 2, v{lr}
    v_and_b32 v{t1}, 3, v{lr}
    v_lshl_add_u32 v{t1}, v{t1}, 3, s{sT}
    v_lshl_add_u32 v{t2}, v{g}, 2, v{t0}
    v_lshl_add_u32 v{wm[0]}, v{t2}, 7, v{t1}
    v_bfe_u32 v{t2}, v{t2}, 1, 2
    v_lshl_add_u32 v{wm[0]}, v{t2}, 5, v{wm[0]}
    v_mul_u32_u24 v{t2}, 20, v{t0}
    v_add3_u32 v{t2}, v{t2}, v{g}, 16
    v_lshl_add_u32 v{wx[0]}, v{t2}, 7, v{t1}
    v_bfe_u32 v{t2}, v{t2}, 1, 2
    v_lshl_add_u32 v{wx[0]}, v{t2}, 5, v{wx[0]}
    """)
    for t in range(1, 4):
        a.e(f"v_xor_b32 v{wm[t]}, {32*t}, v{wm[0]}\n v_xor_b32 v{wx[t]}, {32*t}, v{wx[0]}")
    a.e(f"""
    v_mov_b32 v{ce}, 0
    v_mov_b32 v{ce+1}, {f32(1e-6)}
    v_mov_b32 v{ce+2}, 0
    v_mov_b32 v{ce+3}, 0
    v_lshlrev_b32 v{t3}, 4, v0
    """)
    stamp(a, 6)
    np_ = a.newlab("g2_np")
    a.e(f"s_cmp_lg_u32 s{S_WAVE}, 0\n s_cbranch_scc1 {np_}")
    a.e(f"v_lshlrev_b32 v{t0}, 7, v{L}\n v_add_u32 v{t1}, {64*128}, v{t0}")
    poll(a, SRD_FL, [t0, t1], [t2, rc[0]])
    a.lab(np_)
    a.e("s_barrier")
    stamp(a, 7)
    for n in range(7):
        a.e(f"s_mov_b32 s{sT}, {8192*n}\n buffer_load_dwordx4 {v(LD+4*n,4)}, v{t3}, {srd(SRD_C)}, s{sT} offen sc1")
    a.e(f"v_lshrrev_b32 v{t3}, 1, v{t3}\n v_add_u32 v{t3}, {KVI}, v{t3}")
    for n in range(7):
        r = LD + 4 * n
        a.e(f"""
        s_waitcnt vmcnt({6-n})
        v_cvt_pk_bf16_f32 v{r}, v{r}, v{r+1}
        v_cvt_pk_bf16_f32 v{r+1}, v{r+2}, v{r+3}
        ds_write_b64 v{t3}, {v(r,2)} offset:{4096*n}
        """)
    pqload(1)
    a.e("s_waitcnt lgkmcnt(0)\n s_barrier")
    stamp(a, 8)
    def kvreads(h):
        b = h & 1; x = h & 3
        mo, xo = (0, 2) if x == 0 else (2, 0)
        return [f"ds_read_b64 {v(KF[b][0]+mo,2)}, v{m0a} offset:{880*h}",
                f"ds_read_b64 {v(KF[b][0]+xo,2)}, v{x0a[x]} offset:{880*h}",
                f"ds_read_b64 {v(KF[b][1]+mo,2)}, v{m1a} offset:{880*h}",
                f"ds_read_b64 {v(KF[b][1]+xo,2)}, v{x1a[x]} offset:{880*h}"]
    def woreads(h0):
        o = []
        for t in range(4):
            o.append(f"ds_read_b64_tr_b16 {v(WF[t],2)}, v{wm[t]} offset:{2560*h0}")
            o.append(f"ds_read_b64_tr_b16 {v(WF[t]+2,2)}, v{wm[t^2]} offset:{2560*(h0+1)}")
        return o
    def wxreads(hb):
        o = []
        for t in range(4):
            o.append(f"ds_read_b64_tr_b16 {v(WF[t],2)}, v{wx[t]} offset:{2560*hb}")
            o.append(f"ds_read_b64_tr_b16 {v(WF[t]+2,2)}, v{wx[t]} offset:{2560*(hb+4)}")
        return o
    def xcopy(h):
        x = h & 3; o = []
        if x >= 2:
            for rt in range(2):
                r = PQR[h >> 2][rt]
                o += [f"v_mov_b32 v{r+2*x}, v{r+2}", f"v_mov_b32 v{r+2*x+1}, v{r+3}"]
        return o
    def omf(h):
        b = h & 1; x = h & 3; o = []
        for rt in range(2):
            w = PQR[h >> 2][rt] + 2 * x
            o.append(f"v_mfma_f32_16x16x32_bf16 {v(CT[b][rt][1],4)}, {v(KF[b][1],4)}, {v(w,4)}, {v(ce,4)}")
            o.append(f"v_mfma_f32_16x16x32_bf16 {v(CT[b][rt][0],4)}, {v(KF[b][0],4)}, {v(w,4)}, 0")
        return o
    def norm(h):
        b = h & 1; o = []
        for rt in range(2):
            o.append(f"v_rcp_f32 v{rc[rt]}, v{CT[b][rt][1]+1}")
        for rt in range(2):
            c = CT[b][rt][0]; e = CT[b][rt][1]
            for i in range(4):
                o.append(f"v_mul_f32 v{c+i}, v{c+i}, v{rc[rt]}")
            if h & 1 == 0:
                o.append(f"v_mul_f32 v{XT[rt]}, v{e}, v{rc[rt]}")
            else:
                o.append(f"v_mul_f32 v{e}, v{e}, v{rc[rt]}")
            d = OP[rt] + 2 * (h & 1)
            o.append(f"v_cvt_pk_bf16_f32 v{d}, v{c}, v{c+1}")
            o.append(f"v_cvt_pk_bf16_f32 v{d+1}, v{c+2}, v{c+3}")
            if h & 1:
                o.append(f"v_cvt_pk_bf16_f32 v{OX[rt]+((h&7)>>1)}, v{XT[rt]}, v{e}")
        return o
    first = [True]
    def mainmf(src):
        o = []
        for rt in range(2):
            for t in range(4):
                c = "0" if first[0] else v(ACC[rt][t], 4)
                o.append(f"v_mfma_f32_16x16x32_bf16 {v(ACC[rt][t],4)}, {v(WF[t],4)}, {v(src[rt],4)}, {c}")
        first[0] = False
        return o
    a.e("\n".join(kvreads(0)))
    for h in range(17):
        a.c(f"head {h}")
        if h == 1: pqload(2)
        if h == 5: pqload(3)
        if h in (4, 8): a.e("s_waitcnt vmcnt(6)")
        if h == 12: a.e("s_waitcnt vmcnt(0)")
        if h < 16:
            a.e("\n".join(xcopy(h)))
            a.e("s_waitcnt lgkmcnt(0)")
            if h + 1 < 16:
                a.e("\n".join(kvreads(h + 1)))
            if h & 1:
                a.e("\n".join(woreads(h - 1)))
            a.e("\n".join(omf(h)))
        else:
            a.e("s_nop 7")
        if h >= 1:
            a.e("\n".join(norm(h - 1)))
            if (h - 1) & 1:
                a.e("s_waitcnt lgkmcnt(0)" if h == 16 else ("s_waitcnt lgkmcnt(4)"))
                a.e("s_nop 0")
                a.e("\n".join(mainmf(OP)))
                if (h - 1) & 7 == 7:
                    a.e("\n".join(wxreads(h - 8)))
                    a.e("s_waitcnt lgkmcnt(0)")
                    a.e("\n".join(mainmf(OX)))
    lk1, lj = a.newlab("g2_k1"), a.newlab("g2_j")
    stamp(a, 9)
    a.e(f"""
    s_lshl_b32 s{sT}, s{S_WAVE}, 12
    s_add_u32 s{sT}, s{sT}, {RED}
    v_add_u32 v{t0}, s{sT}, v{v16}
    s_nop 5
    s_cmp_eq_u32 s{sKH}, 0
    s_cbranch_scc0 {lk1}
    """)
    for t in range(4):
        a.e(f"ds_write_b128 v{t0}, {v(ACC[1][t],4)} offset:{1024*t}")
    a.e(f"s_branch {lj}")
    a.lab(lk1)
    for t in range(4):
        a.e(f"ds_write_b128 v{t0}, {v(ACC[0][t],4)} offset:{1024*t}")
    a.e("s_nop 1")
    for t in range(4):
        for i in range(4):
            a.e(f"v_mov_b32 v{ACC[0][t]+i}, v{ACC[1][t]+i}")
    a.lab(lj)
    a.e(f"""
    s_xor_b32 s{sT}, s{S_WAVE}, 4
    s_lshl_b32 s{sT}, s{sT}, 12
    s_add_u32 s{sT}, s{sT}, {RED}
    v_add_u32 v{t1}, s{sT}, v{v16}
    v_mul_u32_u24 v{t2}, 2560, v{lr}
    v_and_b32 v{t3}, 1, v{g}
    v_lshl_add_u32 v{t2}, v{t3}, 5, v{t2}
    v_lshrrev_b32 v{t3}, 1, v{g}
    v_lshl_add_u32 v{t2}, v{t3}, 4, v{t2}
    s_lshl_b32 s{sT}, s{S_RT}, 3
    s_lshl_b32 s{sU}, s{sRW}, 1
    s_add_u32 s{sT}, s{sT}, s{sU}
    s_add_u32 s{sT}, s{sT}, s{sKH}
    s_mul_i32 s{sSO}, s{sT}, {16*2560}
    s_lshl_b32 s{sT}, s{S_CB}, 7
    s_add_u32 s{sSO}, s{sSO}, s{sT}
    s_add_u32 s{sSO}, s{sSO}, 1280
    s_waitcnt lgkmcnt(0)
    s_barrier
    """)
    stamp(a, 10)
    a.e("s_waitcnt lgkmcnt(0)" if STAMPS else "")
    for t in range(4):
        a.e(f"ds_read_b128 {v(WF[t],4)}, v{t1} offset:{1024*t}")
    D = CT[0][0][0]
    for t in range(4):
        a.e(f"s_waitcnt lgkmcnt({3-t})")
        c = ACC[0][t]
        for i in range(4):
            a.e(f"v_add_f32 v{c+i}, v{c+i}, v{WF[t]+i}")
        a.e(f"v_cvt_pk_bf16_f32 v{D+2*t}, v{c}, v{c+1}\n v_cvt_pk_bf16_f32 v{D+2*t+1}, v{c+2}, v{c+3}")
    a.e("s_nop 1")
    for t in (0, 2):
        a.e(f"v_permlane16_swap_b32 v{D+2*t}, v{D+2*t+2}\n v_permlane16_swap_b32 v{D+2*t+1}, v{D+2*t+3}")
    for t in (0, 2):
        a.e(f"buffer_store_dwordx4 {v(D+2*t,4)}, v{t2}, {srd(SRD_D)}, s{sSO} offen offset:{32*t} {OSTB}")
    return ra.hi

def build(path):
    hdr = open("cdna_kernels/%s.s.ref" % NAME).read().split("; Override")[0]
    a = Asm()
    a.raw('.amdgcn_target "amdgcn-amd-amdhsa--gfx950"\n.text')
    a.raw(f".globl {KN}\n.p2align 8\n.type {KN},@function"); a.lab(KN)
    a.e(f"s_cmp_ge_u32 s2, 256\n s_cbranch_scc1 L_END")
    stamp_init(a); stamp(a, 0)
    a.e(f"""
    s_load_dwordx16 s[8:23], s[0:1], 0
    s_load_dwordx8 s[24:31], s[0:1], 64
    v_lshrrev_b32 v2, 6, v0
    v_and_b32 v{L}, 63, v0
    v_readfirstlane_b32 s{S_WAVE}, v2
    s_and_b32 s{S_XI}, s2, 7
    s_lshr_b32 s{S_J}, s2, 3
    """)
    a.e(f"""
    s_and_b32 s4, s{S_J}, 28
    s_cmp_lg_u32 s4, 20
    s_cbranch_scc1 L_NOPF
    s_getpc_b64 s[4:5]
    v_lshlrev_b32 v2, 7, v0
    v_min_u32 v2, L_END-{KN}-512, v2
    global_load_dword v252, v2, s[4:5] nt
    """)
    a.lab("L_NOPF")
    a.e(f"""
    s_cmp_ge_u32 s{S_J}, 24
    s_cbranch_scc1 L_A1
    s_lshr_b32 s6, s{S_XI}, 1
    s_lshl_b32 s6, s6, 2
    s_and_b32 s7, s{S_J}, 3
    s_add_u32 s{S_RT}, s6, s7
    s_and_b32 s4, s{S_XI}, 1
    s_lshr_b32 s6, s{S_J}, 2
    s_mul_i32 s{S_CB}, s4, 5
    s_add_u32 s{S_CB}, s{S_CB}, s6
    s_mov_b32 s{S_P2}, 0
    s_cmp_ge_u32 s{S_J}, 16
    s_cbranch_scc1 L_Q
    s_mov_b32 s{S_MODE}, 0
    s_lshl_b32 s4, s4, 2
    s_add_u32 s{S_G}, s4, s6
    s_lshl_b32 s{S_SLOT}, s{S_RT}, 3
    s_add_u32 s{S_SLOT}, s{S_SLOT}, s{S_G}
    s_branch L_G1
    """)
    a.lab("L_Q")
    a.e(f"""
    s_mov_b32 s{S_MODE}, 1
    s_lshl_b32 s4, s4, 1
    s_add_u32 s{S_G}, s4, s6
    s_sub_u32 s{S_G}, s{S_G}, 4
    s_lshl_b32 s{S_SLOT}, s{S_RT}, 2
    s_add_u32 s{S_SLOT}, s{S_SLOT}, s{S_G}
    s_add_u32 s{S_SLOT}, s{S_SLOT}, 128
    s_cmp_lt_u32 s{S_J}, 20
    s_cbranch_scc1 L_G1
    s_mov_b32 s{S_P2}, 4
    s_lshl_b32 s{S_CB}, s{S_XI}, 4
    s_lshl_b32 s7, s7, 2
    s_add_u32 s{S_CB}, s{S_CB}, s7
    s_add_u32 s{S_CB}, s{S_CB}, 512
    """)
    a.lab("L_G1")
    a.e(f"s_cmp_lt_u32 s{S_WAVE}, 4\n s_cbranch_scc1 L_G1C")
    g1_loader(a)
    a.lab("L_A1")
    a.e(f"""
    s_sub_u32 s5, s{S_J}, 24
    s_lshl_b32 s5, s5, 3
    s_add_u32 s{S_RT}, s5, s{S_XI}
    s_lshl_b32 s{S_CB}, s{S_XI}, 6
    s_add_u32 s{S_CB}, s{S_CB}, s5
    s_mov_b32 s{S_P2}, 8
    s_and_b32 s4, s{S_RT}, 1
    s_lshl_b32 s4, s4, 5
    s_lshr_b32 s5, s{S_RT}, 1
    s_add_u32 s{S_SLOT}, s4, s5
    s_add_u32 s{S_SLOT}, s{S_SLOT}, 192
    """)
    h3 = a1(a)
    a.lab("L_CONV")
    h5 = conv(a)
    a.lab("L_G1C")
    g1_init(a)
    a.e(f"s_cmp_lg_u32 s{S_MODE}, 0\n s_cbranch_scc1 L_G1Q")
    h1 = g1_compute(a, 0)
    a.lab("L_G1Q")
    h2 = g1_compute(a, 1)
    a.lab("L_PHASE2")
    a.e(f"s_cmp_lg_u32 s{S_P2}, 0\n s_cbranch_scc1 L_CONV")
    a.lab("L_G2")
    h4 = g2(a)
    a.lab("L_FIN")
    stamp_flush(a, 0)
    a.lab("L_END")
    a.e("s_endpgm")
    print("vgprs", h1, h2, h3, h4, h5, file=sys.stderr)
    lds = max(HB + 8 * HP, LFL + 64, RED + 32768)
    desc = f""".section .rodata,"a"
.p2align 6
.amdhsa_kernel {KN}
  .amdhsa_next_free_vgpr 256
  .amdhsa_next_free_sgpr 102
  .amdhsa_accum_offset 256
  .amdhsa_group_segment_fixed_size 0
  .amdhsa_kernarg_size 96
  .amdhsa_user_sgpr_count 2
  .amdhsa_user_sgpr_kernarg_segment_ptr 1
  .amdhsa_system_sgpr_workgroup_id_x 1
.end_amdhsa_kernel
"""
    open(path, "w").write(hdr + f"; @launch grid=(256,1,1) block=(512,1,1) lds={lds}\n" + a.text() + desc)
if __name__ == "__main__":
    build(sys.argv[1])
```

```python
import sys
from asmlib import *
NAME = "concat_heads__ssm_conv_h3__linear_attn_block__prompt"
KN = NAME + "_kernel"
EX = set(os.environ.get("EX", "").split(","))
XW = "nt" if "xwnt" in EX else ""
ROTR = int(os.environ.get("ROTR", "8530"), 16); ROTC = int(os.environ.get("ROTC", "875320"), 16)
RPG = 2 if "rpg2" in EX else 1
OST = os.environ.get("OSTA", "")
OSTB = os.environ.get("OSTB", "nt")

WS_UT, WS_PQ, WS_KV, WS_FL = 0, 0x500000, 0x780000, 0x790000
T_BYTES = 640 * 4096
KV_BYTES = 32 * 22 * 80
S_WG, S_WAVE = 2, 3
P_Q, P_K, P_V, P_SH, P_H, P_D, P_X, P_W, P_WO, P_OUT, P_DBG, P_WS = 8, 10, 12, 14, 16, 18, 20, 22, 24, 26, 28, 30
SRD_A, SRD_B, SRD_C, SRD_D, SRD_FL = 32, 36, 40, 44, 48
S_RT, S_G, S_MODE, S_CB, S_P2, S_SLOT, S_XI, S_J = 52, 53, 54, 55, 56, 57, 58, 59
L = 1

def mk_srd(a, srd, ptr, nbytes, off=0, off_sreg=None):
    if off_sreg is not None:
        a.e(f"s_add_u32 s{srd}, s{ptr}, s{off_sreg}\n s_addc_u32 s{srd+1}, s{ptr+1}, 0")
    elif off:
        a.e(f"s_add_u32 s{srd}, s{ptr}, {off}\n s_addc_u32 s{srd+1}, s{ptr+1}, 0")
    else:
        a.e(f"s_mov_b32 s{srd}, s{ptr}\n s_mov_b32 s{srd+1}, s{ptr+1}")
    a.e(f"s_mov_b32 s{srd+2}, {nbytes}\n s_mov_b32 s{srd+3}, 0x20000")
def srd(x): return f"s[{x}:{x+3}]"

SPIN_MAX = 400000
def poll(a, srdn, voffs, tmps, scnt=74):
    lp, dn = a.newlab("poll"), a.newlab("polld")
    a.e(f"s_mov_b32 s{scnt}, {SPIN_MAX}")
    a.lab(lp)
    for vo, t in zip(voffs, tmps):
        a.e(f"buffer_load_dword v{t}, v{vo}, {srd(srdn)}, 0 offen sc1")
    a.e("s_waitcnt vmcnt(0)")
    for t in tmps[1:]:
        a.e(f"v_and_b32 v{tmps[0]}, v{tmps[0]}, v{t}")
    a.e(f"""
    v_cmp_ne_u32 vcc, 1, v{tmps[0]}
    s_sub_u32 s{scnt}, s{scnt}, 1
    s_cbranch_scc1 {dn}
    s_cmp_eq_u64 vcc, 0
    s_cbranch_scc1 {dn}
    s_sleep 1
    s_branch {lp}
    """)
    a.lab(dn)

def poll_z(a, vz, vt):
    mk_srd(a, SRD_D, P_DBG, 256)
    a.e(f"v_and_b32 v{vz}, 7, v{L}\n v_lshlrev_b32 v{vz}, 2, v{vz}")
    poll(a, SRD_D, [vz], [vt])

def set_flag(a, v0_, v1_):
    sk = a.newlab("nofl")
    a.e(f"""
    s_cmp_lg_u32 s{S_WAVE}, 0
    s_cbranch_scc1 {sk}
    s_lshl_b32 s74, s{S_SLOT}, 7
    v_mov_b32 v{v0_}, 0
    v_mov_b32 v{v1_}, 1
    s_mov_b64 exec, 1
    buffer_store_dword v{v1_}, v{v0_}, {srd(SRD_FL)}, s74 offen sc1
    s_mov_b64 exec, -1
    """)
    a.lab(sk)

UP = 4672
HB, HP, H_O = 87808, 8320, 4160
def h_dma(a, sch, sslot, vl16, srdn, t1, t2):
    a.e(f"""
    s_lshl_b32 s{t1}, s{sch}, 12
    s_mul_i32 s{t2}, s{sslot}, {HP}
    s_add_u32 m0, s{t2}, {HB+32}
    s_nop 0
    """)
    for j in range(4):
        a.e(f"buffer_load_dwordx4 v{vl16}, {srd(srdn)}, s{t1} offen offset:{1024*j} nt lds")
    a.e(f"s_add_u32 m0, s{t2}, {HB+H_O+32}\n s_add_u32 s{t1}, s{t1}, 2")
    for j in range(4):
        a.e(f"buffer_load_dwordx4 v{vl16}, {srd(srdn)}, s{t1} offen offset:{1024*j} nt lds")

XST, WBASE, WST, NST = 16384, 65536, 20480, 4
IMG, IMGP = WBASE + 3 * WST, 7168
LFL = WBASE + 4 * WST

def lds_wait(a, vaddr, vq, off, need, sv=73, scnt=74, first_check=False):
    lp, ok = a.newlab("lw"), a.newlab("lwok")
    if first_check:
        a.e(f"s_cmp_ge_u32 s{sv}, {need}\n s_cbranch_scc1 {ok}")
    a.e(f"s_mov_b32 s{scnt}, 4000000")
    a.lab(lp)
    a.e(f"""
    ds_read_b128 {v(vq,4)}, v{vaddr} offset:{off}
    s_sub_u32 s{scnt}, s{scnt}, 1
    s_cbranch_scc1 {ok}
    s_waitcnt lgkmcnt(0)
    v_min3_u32 v{vq}, v{vq}, v{vq+1}, v{vq+2}
    v_min_u32 v{vq}, v{vq}, v{vq+3}
    s_nop 0
    v_readfirstlane_b32 s{sv}, v{vq}
    s_nop 0
    s_cmp_ge_u32 s{sv}, {need}
    s_cbranch_scc0 {lp}
    """)
    a.lab(ok)
def lds_pub(a, vaddr, vt, val):
    a.e(f"v_mov_b32 v{vt}, {val}\n s_mov_b64 exec, 1\n ds_write_b32 v{vaddr}, v{vt}\n s_mov_b64 exec, -1")

def g1_loader(a):
    ra = RA(2)
    t0, t1, t2, t3 = [ra.a() for _ in range(4)]
    vx = [ra.a() for _ in range(4)]
    vw = [ra.a() for _ in range(5)]
    z4 = ra.a(4, 4)
    sLW, sSX, sSW, sM0X, sM0W, sC1, sC2, sT = 60, 61, 62, 63, 64, 65, 66, 67
    a.c("G1 loader wave")
    if "prio" in EX: a.e("s_setprio 3")
    a.e(f"""
    s_sub_u32 s{sLW}, s{S_WAVE}, 4
    s_lshl_b32 s{sT}, s{S_RT}, 2
    s_add_u32 s{sT}, s{sT}, s{sLW}
    s_mul_i32 s{sSX}, s{sT}, {32*1280}
    s_lshl_b32 s{sM0X}, s{sLW}, 12
    v_lshrrev_b32 v{t0}, 3, v{L}
    v_mul_u32_u24 v{t0}, 1280, v{t0}
    v_lshrrev_b32 v{t1}, 4, v{L}
    v_and_b32 v{t2}, 7, v{L}
    v_xor_b32 v{t1}, v{t1}, v{t2}
    v_lshlrev_b32 v{t1}, 4, v{t1}
    v_xor_b32 v{t2}, 64, v{t1}
    v_add_u32 v{vx[0]}, v{t0}, v{t1}
    v_add_u32 v{vx[1]}, v{t0}, v{t2}
    v_add_u32 v{vx[2]}, {2*(8*1280-1024)}, v{vx[0]}
    v_add_u32 v{vx[3]}, {3*(8*1280-1024)}, v{vx[1]}
    v_add_u32 v{vx[1]}, {1*(8*1280-1024)}, v{vx[1]}
    s_cmp_eq_u32 s{S_MODE}, 0
    s_cselect_b32 s{sC1}, 1200, 0
    s_cselect_b32 s{sC2}, 80, 0
    s_cselect_b32 s{sSW}, 1280, 0
    s_lshl_b32 s{sT}, 160, s{S_MODE}
    s_mul_i32 s{sT}, s{sT}, s{S_G}
    s_add_u32 s{sSW}, s{sSW}, s{sT}
    s_mul_i32 s{sT}, s{sLW}, {16*3840}
    s_add_u32 s{sSW}, s{sSW}, s{sT}
    s_mul_i32 s{sM0W}, s{sLW}, 5120
    s_add_u32 s{sM0W}, s{sM0W}, {WBASE}
    """)
    sK = 68
    if "norot" in EX:
        a.e(f"s_mov_b32 s{sK}, 0")
    else:
        a.e(f"""
        s_and_b32 s{sT}, s{S_J}, 3
        s_lshl_b32 s{sT}, s{sT}, 2
        s_lshr_b32 s{sK}, {ROTR:#x}, s{sT}
        s_and_b32 s{sK}, s{sK}, 15
        s_and_b32 s{sT}, s{S_J}, 28
        s_lshr_b32 s{sT}, {ROTC:#x}, s{sT}
        s_and_b32 s{sT}, s{sT}, 15
        s_add_u32 s{sK}, s{sK}, s{sT}
        s_cmp_ge_u32 s{sK}, 10
        s_cselect_b32 s{sT}, 10, 0
        s_sub_u32 s{sK}, s{sK}, s{sT}
        s_lshl_b32 s{sT}, s{sK}, 7
        s_add_u32 s{sSX}, s{sSX}, s{sT}
        s_mul_i32 s{sT}, s{sK}, {64*3840}
        s_add_u32 s{sSW}, s{sSW}, s{sT}
        """)
    for x in range(320): assert (x * 3277) >> 16 == x // 20
    for x in range(20): assert (x * 52) >> 8 == x // 5
    for j in range(5):
        sub = 1024 * j if j < 4 else 0
        a.e(f"""
        v_add_u32 v{t0}, {64*j}, v{L}
        v_mul_u32_u24 v{t1}, 3277, v{t0}
        v_lshrrev_b32 v{t1}, 16, v{t1}
        v_mul_u32_u24 v{t2}, 20, v{t1}
        v_sub_u32 v{t0}, v{t0}, v{t2}
        v_lshrrev_b32 v{t2}, 2, v{t1}
        v_and_b32 v{t2}, 2, v{t2}
        v_xor_b32 v{t0}, v{t0}, v{t2}
        v_mul_u32_u24 v{t2}, 52, v{t0}
        v_lshlrev_b32 v{t0}, 4, v{t0}
        v_bfe_u32 v{t3}, v{t2}, 8, 1
        v_mad_u32_u24 v{t0}, v{t3}, s{sC1}, v{t0}
        v_lshrrev_b32 v{t3}, 9, v{t2}
        v_mul_u32_u24 v{t3}, s{sC2}, v{t3}
        v_sub_u32 v{t0}, v{t0}, v{t3}
        v_mul_u32_u24 v{t1}, 3840, v{t1}
        v_add_u32 v{t0}, v{t0}, v{t1}
        v_subrev_u32 v{vw[j]}, {sub}, v{t0}
        """)
    a.e("s_waitcnt lgkmcnt(0)")
    mk_srd(a, SRD_A, P_X, 2048 * 1280)
    mk_srd(a, SRD_B, P_W, 640 * 3840)
    a.e(f"s_mov_b32 s70, {-9*64*3840}\n s_mov_b32 s71, {64*3840}\n s_mov_b32 s72, 128")
    def issue_x(st):
        if "nodma" in EX: return []
        out = [f"s_add_u32 m0, s{sM0X}, {(st % NST) * XST}", "s_nop 0"]
        for j in range(4):
            out.append(f"buffer_load_dwordx4 v{vx[j]}, {srd(SRD_A)}, s{sSX} offen offset:{1024*j} {XW} lds")
        return out
    def issue_w(st):
        if "nodma" in EX: return []
        out = [f"s_add_u32 m0, s{sM0W}, {(st % NST) * WST}", "s_nop 0"]
        for j in range(4):
            out.append(f"buffer_load_dwordx4 v{vw[j]}, {srd(SRD_B)}, s{sSW} offen offset:{1024*j} {XW} lds")
        out += [f"s_add_u32 m0, s{sM0W}, {(st % NST) * WST + 4096}", "s_nop 0"]
        out.append(f"buffer_load_dwordx4 v{vw[4]}, {srd(SRD_B)}, s{sSW} offen {XW} lds")
        return out
    def advance():
        return [f"s_add_u32 s{sK}, s{sK}, 1", f"s_cmp_eq_u32 s{sK}, 10",
                f"s_cselect_b32 s{sT}, {-9*128}, s72", f"s_cselect_b32 s69, s70, s71",
                f"s_add_u32 s{sSX}, s{sSX}, s{sT}", f"s_add_u32 s{sSW}, s{sSW}, s69"]
    SCH = [int(c) for c in os.environ.get("SCH", "211111111")]
    assert sum(SCH) == 10
    issued = 0
    def issue_n(n):
        nonlocal issued
        for _ in range(n):
            a.e("\n".join(issue_x(issued) + issue_w(issued) + advance()))
            issued += 1
    issue_n(SCH[0])
    stamp(a, 1)
    mk_srd(a, SRD_FL, P_WS, 256 * 128, off=WS_FL)
    for i in range(4):
        a.e(f"v_mov_b32 v{z4+i}, 0")
    a.e(f"v_lshlrev_b32 v{t0}, 4, v0\n v_add_u32 v{t0}, {IMG-4096}, v{t0}")
    nb = 0
    while issued < 10:
        a.e(f"s_waitcnt vmcnt({9*(issued - 1 - nb)})\n s_barrier")
        n = SCH[nb + 1]
        assert issued + n <= nb + 4
        issue_n(n)
        nb += 1
    lc, le = a.newlab("tc"), a.newlab("te")
    a.e(f"s_cmp_lg_u32 s{S_P2}, 0\n s_cbranch_scc1 {lc}")
    mk_srd(a, SRD_A, P_WO, 640 * 1280)
    a.e(f"""
    v_min_u32 v{t1}, 39, v{L}
    v_mul_u32_u24 v{t1}, 1280, v{t1}
    s_and_b32 s{sT}, s{S_RT}, 3
    s_lshl_b32 s{sT}, s{sT}, 2
    s_add_u32 s{sT}, s{sT}, s{sLW}
    s_mul_i32 s{sT}, s{sT}, {40*1280}
    s_lshl_b32 s{sC1}, s{S_CB}, 7
    s_add_u32 s{sT}, s{sT}, s{sC1}
    buffer_load_dword v250, v{t1}, {srd(SRD_A)}, s{sT} offen
    s_branch {le}
    """)
    a.lab(lc)
    mk_srd(a, SRD_A, P_H, T_BYTES)
    a.e(f"""
    v_and_b32 v{t1}, 31, v{L}
    v_lshlrev_b32 v{t1}, 7, v{t1}
    s_add_u32 s{sC1}, s{S_CB}, s{sLW}
    s_lshl_b32 s{sT}, s{sC1}, 12
    buffer_load_dword v250, v{t1}, {srd(SRD_A)}, s{sT} offen nt
    """)
    a.lab(le)
    mk_srd(a, SRD_D, P_DBG, 256)
    a.e(f"v_and_b32 v{t2}, 7, v{L}\n v_lshlrev_b32 v{t2}, 2, v{t2}")
    a.e(f"buffer_load_dword v{t3}, v{t2}, {srd(SRD_D)}, 0 offen sc1")
    while nb < 10:
        a.e(f"s_waitcnt vmcnt({9*(9 - nb) + 2})")
        a.e("s_barrier")
        if nb == 8:
            for i in range(4):
                a.e(f"ds_write_b128 v{t0}, v[{z4}:{z4+3}] offset:{4096*i}")
        nb += 1
    if "g1only" in EX: a.e("s_branch L_FIN")
    stamp(a, 2)
    lc = a.newlab("ld_conv")
    a.e(f"s_cmp_lg_u32 s{S_P2}, 0\n s_cbranch_scc1 {lc}")
    a.e(f"""
    v_lshrrev_b32 v{t0}, 3, v{L}
    v_mul_u32_u24 v{t0}, 1280, v{t0}
    v_and_b32 v{t1}, 7, v{L}
    v_lshrrev_b32 v{t2}, 4, v{L}
    v_lshlrev_b32 v{t2}, 1, v{t2}
    v_xor_b32 v{t1}, v{t1}, v{t2}
    v_lshl_add_u32 v{vx[0]}, v{t1}, 4, v{t0}
    v_add_u32 v{vx[1]}, {1*(8*1280-1024)}, v{vx[0]}
    v_add_u32 v{vx[2]}, {2*(8*1280-1024)}, v{vx[0]}
    v_add_u32 v{vx[3]}, {3*(8*1280-1024)}, v{vx[0]}
    s_mul_i32 s{sSX}, s{sLW}, {160*1280}
    s_lshl_b32 s{sT}, s{S_CB}, 7
    s_add_u32 s{sSX}, s{sSX}, s{sT}
    s_mul_i32 s{sM0X}, s{sLW}, 20480
    s_waitcnt lgkmcnt(0)
    s_barrier
    """)
    for q in range(5):
        a.e(f"s_add_u32 m0, s{sM0X}, {4096*q}\n s_nop 0")
        for j in range(4):
            a.e(f"buffer_load_dwordx4 v{vx[j]}, {srd(SRD_A)}, s{sSX} offen offset:{1024*j} lds")
        a.e(f"s_add_u32 s{sSX}, s{sSX}, {32*1280}")
    zok = a.newlab("zok")
    a.e(f"s_waitcnt vmcnt(20)\n v_cmp_ne_u32 vcc, 1, v{t3}\n s_nop 1\n s_cmp_eq_u64 vcc, 0\n s_cbranch_scc1 {zok}")
    poll_z(a, t1, t2)
    a.lab(zok)
    stamp(a, 3)
    a.e("s_barrier")
    a.e(f"s_cmp_lg_u32 s{S_MODE}, 0\n s_cbranch_scc1 L_G2\n s_barrier\n s_branch L_G2")
    a.lab(lc)
    a.e(f"v_lshlrev_b32 v{t0}, 4, v{L}\n s_add_u32 s{sSX}, s{S_CB}, s{sLW}\n s_waitcnt lgkmcnt(0)\n s_barrier")
    h_dma(a, sSX, sLW, t0, SRD_A, sC1, sC2)
    zok = a.newlab("zok")
    a.e(f"s_waitcnt vmcnt(8)\n v_cmp_ne_u32 vcc, 1, v{t3}\n s_nop 1\n s_cmp_eq_u64 vcc, 0\n s_cbranch_scc1 {zok}")
    poll_z(a, t1, t2)
    a.lab(zok)
    stamp(a, 3)
    a.e("s_barrier\n s_waitcnt vmcnt(0)\n s_branch L_CONV")

def phi4(regs, tmps, sLOG, sEPS):
    o = []
    for r, t in zip(regs, tmps): o.append(f"v_mul_f32 v{t}, s{sLOG}, v{r}")
    for r, t in zip(regs, tmps): o.append(f"v_exp_f32_e64 v{t}, v{t} clamp")
    for r, t in zip(regs, tmps): o.append(f"v_max_f32 v{r}, s{sEPS}, v{r}")
    for r, t in zip(regs, tmps): o.append(f"v_add_f32 v{r}, v{r}, v{t}")
    return o

def g1_init(a):
    a.e("s_waitcnt lgkmcnt(0)")
    mk_srd(a, SRD_FL, P_WS, 256 * 128, off=WS_FL)

def g1_compute(a, mode):
    ra = RA(2)
    lr, g, t0, t1, t2 = [ra.a() for _ in range(5)]
    xa = [ra.a(), ra.a()]
    wa = [[ra.a() for _ in range(5)] for _ in range(2)]
    aMain, aExtA, aExtB = ra.a(), ra.a(), ra.a()
    ie = ra.a(4, 4); ix = ra.a(4, 4)
    XF = [[ra.a(4, 4) for _ in range(4)] for _ in range(2)]
    WF = [[ra.a(4, 4) for _ in range(5)] for _ in range(2)]
    ACC = [[ra.a(4, 4) for _ in range(5)] for _ in range(4)]
    sRH, sCH, sT, sLOG, sEPS, sSO = 60, 61, 62, 63, 64, 65
    a.c("G1 compute wave mode %d" % mode)
    if mode == 1:
        nz = a.newlab("nozero")
        a.e(f"s_lshl_b32 s{sT}, s{S_WAVE}, 8\n s_or_b32 s{sT}, s{sT}, s{S_J}\n s_cmp_lg_u32 s{sT}, 16\n s_cbranch_scc1 {nz}")
        a.e(f"s_mul_i32 s{sT}, s{S_XI}, 7040\n s_add_u32 s{sT}, s{sT}, {WS_KV}")
        mk_srd(a, SRD_C, P_WS, 7040, off_sreg=sT)
        mk_srd(a, SRD_D, P_DBG, 256)
        for i in range(4): a.e(f"v_mov_b32 v{ie+i}, 0")
        a.e(f"""
        v_lshlrev_b32 v{t0}, 4, v{L}
        v_and_b32 v{t1}, 31, v{L}
        v_lshlrev_b32 v{t1}, 7, v{t1}
        s_lshl_b32 s{sT}, s{S_XI}, 12
        buffer_store_dword v{ie}, v{t1}, {srd(SRD_FL)}, s{sT} offen sc1
        s_movk_i32 s{sT}, 4096
        """)
        for n in range(7):
            a.e(f"buffer_store_dwordx4 {v(ie,4)}, v{t0}, {srd(SRD_C)}, {'s%d' % sT if n >= 4 else '0'} offen offset:{1024*(n&3)} sc1")
        a.e(f"""
        s_lshl_b32 s{sT}, s{S_XI}, 2
        v_mov_b32 v{t1}, 1
        s_waitcnt vmcnt(0)
        s_mov_b64 exec, 1
        buffer_store_dword v{t1}, v{t0}, {srd(SRD_D)}, s{sT} offen sc1
        s_mov_b64 exec, -1
        """)
        a.lab(nz)
    a.e(f"""
    s_lshr_b32 s{sRH}, s{S_WAVE}, 1
    s_and_b32 s{sCH}, s{S_WAVE}, 1
    s_mov_b32 s{sLOG}, {f32(1.4426950408889634)}
    s_mov_b32 s{sEPS}, {f32(1e-6)}
    v_and_b32 v{lr}, 15, v{L}
    v_lshrrev_b32 v{g}, 4, v{L}
    s_lshl_b32 s{sT}, s{sRH}, 13
    v_lshrrev_b32 v{t0}, 1, v{lr}
    v_xor_b32 v{t0}, v{t0}, v{g}
    v_lshlrev_b32 v{t0}, 4, v{t0}
    v_lshl_add_u32 v{t0}, v{lr}, 7, v{t0}
    v_add_u32 v{xa[0]}, s{sT}, v{t0}
    v_xor_b32 v{xa[1]}, 64, v{xa[0]}
    v_lshrrev_b32 v{t0}, 2, v{lr}
    v_lshl_add_u32 v{t0}, v{g}, 3, v{t0}
    v_mul_u32_u24 v{t0}, 320, v{t0}
    v_add_u32 v{t0}, {WBASE}, v{t0}
    v_and_b32 v{t1}, 1, v{g}
    v_lshlrev_b32 v{t1}, 5, v{t1}
    s_mul_i32 s{sT}, s{sCH}, 160
    v_and_b32 v{t2}, 3, v{lr}
    """)
    for t in range(5):
        w = wa[0][t]
        if t < 4:
            a.e(f"v_lshl_add_u32 v{w}, v{t2}, 3, s{sT}\n v_add_u32 v{w}, {40*t}, v{w}")
        else:
            a.e(f"v_mul_u32_u24 v{w}, 40, v{t2}\n v_add_u32 v{w}, s{sT}, v{w}\n v_add_u32 v{w}, 32, v{w}")
        a.e(f"v_xor_b32 v{w}, v{w}, v{t1}\n v_add_u32 v{w}, v{w}, v{t0}\n v_add_u32 v{wa[1][t]}, 10240, v{w}")
    for i in range(4):
        a.e(f"v_mov_b32 v{ie+i}, s{sEPS}")
    if mode == 0:
        a.e(f"v_cmp_gt_u32 vcc, 8, v{lr}")
        a.e(f"""
        s_mul_i32 s{sT}, s{sRH}, {IMGP}
        s_mul_i32 s{sSO}, s{sCH}, 3520
        s_add_u32 s{sT}, s{sT}, s{sSO}
        s_add_u32 s{sT}, s{sT}, {IMG}
        """)
        for i in range(4):
            a.e(f"v_cndmask_b32 v{ix+i}, 0, v{ie}, vcc")
        a.e(f"""
        v_mul_u32_u24 v{aMain}, 80, v{lr}
        v_lshl_add_u32 v{aMain}, v{g}, 4, v{aMain}
        v_add_u32 v{aMain}, s{sT}, v{aMain}
        v_cmp_eq_u32 vcc, 0, v{lr}
        v_mov_b32 v{t0}, 640
        v_mov_b32 v{t1}, 1600
        v_mov_b32 v{t2}, 320
        v_cndmask_b32 v{t0}, v{t0}, v{t1}, vcc
        v_cndmask_b32 v{t2}, v{t2}, v{t1}, vcc
        v_add_u32 v{aExtA}, v{aMain}, v{t0}
        v_add_u32 v{aExtB}, v{aMain}, v{t2}
        s_mul_i32 s{sT}, s{S_G}, 7040
        s_add_u32 s{sT}, s{sT}, {WS_KV}
        """)
        mk_srd(a, SRD_C, P_WS, 7040, off_sreg=sT)
    else:
        a.e(f"""
        v_lshlrev_b32 v{aMain}, 4, v{L}
        v_lshlrev_b32 v{aExtA}, 3, v{L}
        s_lshl_b32 s{sT}, s{S_RT}, 3
        s_lshl_b32 s{sSO}, s{sRH}, 2
        s_add_u32 s{sT}, s{sT}, s{sSO}
        s_lshl_b32 s{sT}, s{sT}, 3
        s_lshl_b32 s{sSO}, s{S_G}, 1
        s_add_u32 s{sT}, s{sT}, s{sSO}
        s_add_u32 s{sT}, s{sT}, s{sCH}
        s_mul_i32 s{sSO}, s{sT}, 2560
        """)
        mk_srd(a, SRD_C, P_WS, T_BYTES, off=WS_PQ)
    def reads(st, ks):
        sl = st % NST
        xs = [f"ds_read_b128 v[{XF[ks][rt]}:{XF[ks][rt]+3}], v{xa[ks]} offset:{sl*XST + rt*2048}" for rt in range(4)]
        ws = []
        for t in range(5):
            for h in range(2):
                ws.append(f"ds_read_b64_tr_b16 v[{WF[ks][t]+2*h}:{WF[ks][t]+2*h+1}], v{wa[ks][t]} offset:{sl*WST + h*1280}")
        if "noreads" in EX: return []
        if "notr" in EX: return xs
        if "nox" in EX: return ws
        return xs + ws
    def mfmas(ks, first=False):
        o = []
        for rt in range(4):
            for t in range(5):
                d = ACC[rt][t]
                c = v(d, 4)
                if first:
                    if mode == 1 or t < 2: c = v(ie, 4)
                    elif t == 4: c = v(ix, 4)
                    else: c = "0"
                x, w = v(XF[ks][rt], 4), v(WF[ks][t], 4)
                A_, B_ = (x, w) if mode == 0 else (w, x)
                o.append(f"v_mfma_f32_16x16x32_bf16 {v(d,4)}, {A_}, {B_}, {c}")
        return o
    for st in range(10):
        a.c(f"step {st}")
        a.e("s_barrier")
        if "g1only" in EX:
            if "few" not in EX or st in (1, 9): stamp(a, 1 + st)
        elif st in (0, 5): stamp(a, {0: 1, 5: 2}[st])
        if st == 0:
            a.e("\n".join(reads(0, 0)))
        else:
            a.e("\n".join(interleave2(mfmas(1), reads(st, 0), RPG)))
        a.e("s_waitcnt lgkmcnt(0)")
        a.e("\n".join(interleave2(mfmas(0, first=(st == 0)), reads(st, 1), RPG)))
        a.e("s_waitcnt lgkmcnt(0)")
    if "g1only" in EX: a.e("s_branch L_FIN")
    a.e("s_barrier")
    a.e("\n".join(mfmas(1)))
    stamp(a, 3)
    fr = XF[0][0]
    assert WF[1][4] + 4 - fr == 72
    tm = [ie, ie + 1, ie + 2, ie + 3]
    if mode == 1:
        order = [0, 4, 1, 2, 3]
        for rt in range(4):
            ob = fr + 12 * rt
            for pos, t in enumerate(order):
                r = [ACC[rt][t] + i for i in range(4)]
                a.e("\n".join(phi4(r, tm, sLOG, sEPS)))
                a.e(f"v_cvt_pk_bf16_f32 v{ob+2*pos}, v{r[0]}, v{r[1]}")
                a.e(f"v_cvt_pk_bf16_f32 v{ob+2*pos+1}, v{r[2]}, v{r[3]}")
            a.e(f"""
            buffer_store_dwordx4 v[{ob}:{ob+3}], v{aMain}, {srd(SRD_C)}, s{sSO} offen sc1
            buffer_store_dwordx4 v[{ob+4}:{ob+7}], v{aMain}, {srd(SRD_C)}, s{sSO} offen offset:1024 sc1
            buffer_store_dwordx2 v[{ob+8}:{ob+9}], v{aExtA}, {srd(SRD_C)}, s{sSO} offen offset:2048 sc1
            s_add_u32 s{sSO}, s{sSO}, {8*2560}
            """)
        stamp(a, 4)
        a.e("s_waitcnt vmcnt(0)\n s_barrier")
        set_flag(a, t0, t1)
        a.e("s_branch L_PHASE2")
    else:
        P = {n: [fr + (i * 2 + k) * 4 for k in range(2)] for i, n in enumerate(["T0", "T1", "T2", "T3", "T4A", "T4B"])}
        a.e(f"v_cmp_gt_u32 vcc, 8, v{lr}\n v_mov_b32 v{t0}, 0x3f803f80")
        for rt in range(4):
            k, h = rt >> 1, rt & 1
            for t, n in ((2, "T2"), (3, "T3"), (4, "T4B")):
                r = ACC[rt][t]; d = P[n][k] + 2 * h
                a.e(f"v_cvt_pk_bf16_f32 v{d}, v{r}, v{r+1}\n v_cvt_pk_bf16_f32 v{d+1}, v{r+2}, v{r+3}")
            d = P["T4B"][k] + 2 * h
            a.e(f"v_cndmask_b32 v{d}, v{d}, v{t0}, vcc\n v_cndmask_b32 v{d+1}, v{d+1}, v{t0}, vcc")
            for t, n in ((0, "T0"), (1, "T1"), (4, "T4A")):
                r = [ACC[rt][t] + i for i in range(4)]; d = P[n][k] + 2 * h
                a.e("\n".join(phi4(r, tm, sLOG, sEPS)))
                a.e(f"v_cvt_pk_bf16_f32 v{d}, v{r[0]}, v{r[1]}\n v_cvt_pk_bf16_f32 v{d+1}, v{r[2]}, v{r[3]}")
        prods = [("T0", "T2"), ("T0", "T4B"), ("T4A", "T2"), ("T1", "T3"), ("T1", "T4B"), ("T4A", "T3"), ("T4A", "T4B")]
        R = [ACC[0][0] + 4 * i for i in range(7)]
        a.e("s_nop 1")
        for k in range(2):
            for i, (x, y) in enumerate(prods):
                c = "0" if k == 0 else v(R[i], 4)
                a.e(f"v_mfma_f32_16x16x32_bf16 {v(R[i],4)}, {v(P[x][k],4)}, {v(P[y][k],4)}, {c}")
        a.e(f"v_lshlrev_b32 v{t0}, 2, v0\n v_add_u32 v{t1}, {IMG}, v{t0}\n v_add_u32 v{t2}, 4096, v{t0}\n s_nop 4")
        def wr(i, addr, off, lo, hi):
            a.e(f"s_mov_b32 exec_lo, {lo:#x}\n s_mov_b32 exec_hi, {hi:#x}")
            a.e(f"ds_write_b128 v{addr}, {v(R[i],4)} offset:{off}")
        a.e(f"ds_write_b128 v{aMain}, {v(R[0],4)}")
        a.e(f"ds_write_b128 v{aMain}, {v(R[3],4)} offset:1760")
        wr(1, aExtA, 0, 0x0f010f01, 0x0f010f01)
        wr(4, aExtB, 1760, 0xf001f001, 0xf001f001)
        wr(2, aMain, 64, 0x0000ffff, 0)
        wr(5, aMain, 1760 + 48, 0xffff0000, 0)
        wr(6, aExtA, 64, 0x00000f01, 0)
        wr(6, aExtB, 1760 + 48, 0xf0010000, 0)
        a.e("s_mov_b64 exec, -1")
        stamp(a, 4)
        a.e("s_waitcnt lgkmcnt(0)\n s_barrier")
        for n in range(7):
            a.e(f"ds_read2st64_b32 v[{fr+2*n}:{fr+2*n+1}], v{t1} offset0:{4*n} offset1:{28+4*n}")
        for n in range(7):
            a.e(f"s_waitcnt lgkmcnt({6-n})")
            a.e(f"v_add_f32 v{fr+2*n}, v{fr+2*n}, v{fr+2*n+1}")
            a.e(f"buffer_atomic_add_f32 v{fr+2*n}, v{t0 if n < 4 else t2}, {srd(SRD_C)}, 0 offen offset:{1024*(n&3)}")
        a.e("s_waitcnt vmcnt(0)\n s_barrier")
        set_flag(a, t0, t1)
        a.e("s_branch L_PHASE2")
    return ra.hi

def a1(a):
    ra = RA(2)
    t0, t1, t2, t3 = [ra.a() for _ in range(4)]
    vo = [ra.a() for _ in range(5)]
    lr, g, base, baseh, phi, phih, ad, adh, so_u, otap = [ra.a() for _ in range(10)]
    KB, VB = 5120, 5120 + 40960
    assert VB + 40960 <= HB
    sTI, sCH, sSO, sM0, sT, sSH, sCG, sU = 60, 61, 62, 63, 64, 65, 66, 67
    NB = 2048 * 1280
    a.c("A1")
    if "noa1" in EX: a.e("s_waitcnt lgkmcnt(0)\n s_branch L_FIN")
    a.e(f"""
    s_lshr_b32 s{sTI}, s{S_RT}, 1
    s_and_b32 s{sCH}, s{S_RT}, 1
    s_lshl_b32 s{sT}, s{sTI}, 3
    s_add_u32 s{sT}, s{sT}, s{S_WAVE}
    s_mul_i32 s{sSO}, s{sT}, {8*1280}
    s_mul_i32 s{sT}, s{sCH}, 640
    s_add_u32 s{sSO}, s{sSO}, s{sT}
    s_mul_i32 s{sM0}, s{S_WAVE}, 5120
    s_and_b32 s{sT}, s{S_WAVE}, 1
    s_lshl_b32 s{sT}, s{sT}, 2
    """)
    for x in range(320): assert (x * 1639) >> 16 == x // 40
    for j in range(5):
        sub = 1024 * j if j < 4 else 0
        a.e(f"""
        v_add_u32 v{t0}, {64*j}, v{L}
        v_mul_u32_u24 v{t1}, 1639, v{t0}
        v_lshrrev_b32 v{t1}, 16, v{t1}
        v_mul_u32_u24 v{t2}, 40, v{t1}
        v_sub_u32 v{t0}, v{t0}, v{t2}
        v_and_b32 v{t2}, 2, v{t1}
        v_or_b32 v{t2}, s{sT}, v{t2}
        v_xor_b32 v{t0}, v{t0}, v{t2}
        v_lshlrev_b32 v{t0}, 4, v{t0}
        v_mul_u32_u24 v{t1}, 1280, v{t1}
        v_add_u32 v{t0}, v{t0}, v{t1}
        v_subrev_u32 v{vo[j]}, {sub}, v{t0}
        """)
    a.e(f"""
    v_and_b32 v{lr}, 15, v{L}
    s_mul_i32 s{sT}, s{sCH}, 320
    v_add_u32 v{so_u}, s{sT}, v{lr}
    v_lshlrev_b32 v{otap}, 3, v{so_u}
    v_lshlrev_b32 v{t3}, 4, v{L}
    s_waitcnt lgkmcnt(0)
    """)
    mk_srd(a, SRD_A, P_K, NB); mk_srd(a, SRD_B, P_V, NB); mk_srd(a, SRD_D, P_SH, 640 * 8)
    def dma(srdn, lbase, so, js=range(5)):
        o = []; first = True
        for j in js:
            if first and j < 4:
                o += [f"s_add_u32 m0, s{sM0}, {lbase}", "s_nop 0"]; first = False
            if j == 4:
                o += [f"s_add_u32 m0, s{sM0}, {lbase+4096}", "s_nop 0"]
            off = f" offset:{1024*j}" if 0 < j < 4 else ""
            o.append(f"buffer_load_dwordx4 v{vo[j]}, {srd(srdn)}, s{so} offen{off} nt lds")
        return o
    taps = [ra.a(2) for _ in range(3)]
    a.e(f"s_lshl_b32 s{sT}, s{S_WAVE}, 7")
    for n in range(3):
        a.e(f"buffer_load_dwordx2 v[{taps[n]}:{taps[n]+1}], v{otap}, {srd(SRD_D)}, s{sT} offen offset:{1024*n}")
    lab = a.newlab("a1_nohalo")
    a.e(f"""
    s_cmp_lg_u32 s{S_WAVE}, 7
    s_cbranch_scc1 {lab}
    s_sub_u32 s{sSH}, s{sSO}, {64*1280}
    s_cmp_eq_u32 s{sTI}, 0
    s_cselect_b32 s{sSH}, {NB}, s{sSH}
    """)
    a.e("\n".join(dma(SRD_A, KB - 8 * 5120, sSH, js=(2, 3, 4))))
    a.lab(lab)
    a.e("\n".join(dma(SRD_A, KB, sSO)))
    a.e("\n".join(dma(SRD_B, VB, sSO)))
    mk_srd(a, SRD_C, P_WS, T_BYTES)
    mk_srd(a, SRD_FL, P_WS, 256 * 128, off=WS_FL)
    a.e(f"""
    v_lshrrev_b32 v{g}, 4, v{L}
    v_lshrrev_b32 v{t0}, 2, v{lr}
    v_lshl_add_u32 v{t1}, v{g}, 3, v{t0}
    v_mul_u32_u24 v{base}, 640, v{t1}
    v_and_b32 v{t2}, 3, v{lr}
    v_lshl_add_u32 v{base}, v{t2}, 3, v{base}
    v_add_u32 v{base}, {KB}, v{base}
    v_subrev_u32 v{baseh}, {4*640}, v{base}
    v_lshrrev_b32 v{t0}, 1, v{t0}
    v_and_b32 v{t1}, 1, v{g}
    v_lshl_or_b32 v{phi}, v{t1}, 1, v{t0}
    v_lshlrev_b32 v{phi}, 5, v{phi}
    v_xor_b32 v{phih}, 64, v{phi}
    v_lshlrev_b32 v{t0}, 12, v{so_u}
    s_lshl_b32 s{sT}, s{sTI}, 7
    v_lshlrev_b32 v{t1}, 4, v{g}
    v_add_u32 v{t1}, s{sT}, v{t1}
    v_sub_u32 v{so_u}, {4080-64}, v{t1}
    v_add_u32 v{so_u}, v{so_u}, v{t0}
    s_add_u32 s{sSH}, s{S_CB}, s{S_WAVE}
    """)
    mk_srd(a, SRD_A, P_H, T_BYTES)
    h_dma(a, sSH, S_WAVE, t3, SRD_A, sT, sU)
    stamp(a, 1)
    a.e("s_waitcnt vmcnt(8)\n s_barrier")
    stamp(a, 2)
    if "g1only" in EX: a.e("s_branch L_FIN")
    a.e("s_waitcnt lgkmcnt(0)")
    KR = ra.a(12, 2); VR = ra.a(8, 4); W = ra.a(5); U = ra.a(16); O = ra.a(8, 4); X = ra.a(4)
    done = a.newlab("a1_done")
    for n in range(3):
        if n == 2:
            a.e(f"s_cmp_ge_u32 s{S_WAVE}, 4\n s_cbranch_scc1 {done}")
        a.e(f"""
        s_add_u32 s{sCG}, s{S_WAVE}, {8*n}
        s_lshl_b32 s{sT}, s{sCG}, 5
        s_lshl_b32 s{sU}, s{sCG}, 16
        v_xor_b32 v{ad}, s{sT}, v{phi}
        v_xor_b32 v{adh}, s{sT}, v{phih}
        v_add_u32 v{ad}, v{ad}, v{base}
        v_add_u32 v{adh}, v{adh}, v{baseh}
        """)
        for hb in range(2):
            k = KR + 6 * hb; o = hb * 32 * 640
            a.e(f"ds_read_b64_tr_b16 {v(k,2)}, v{adh} offset:{o}")
            a.e(f"ds_read_b64_tr_b16 {v(k+2,2)}, v{ad} offset:{o}")
            a.e(f"ds_read_b64_tr_b16 {v(k+4,2)}, v{ad} offset:{o+2560}")
        for hb in range(2):
            for m in range(2):
                a.e(f"ds_read_b64_tr_b16 {v(VR+4*hb+2*m,2)}, v{ad} offset:{VB-KB+hb*32*640+m*2560}")
        tp = taps[n]
        a.e(f"""
        v_alignbit_b32 v{W}, v{tp}, v{tp}, 16
        v_alignbit_b32 v{W+1}, v{tp+1}, v{tp+1}, 16
        v_and_b32 v{W+2}, 0xffff0000, v{tp}
        v_and_b32 v{W+3}, 0xffff, v{tp}
        v_and_b32 v{W+4}, 0xffff, v{tp+1}
        v_or_b32 v{W+2}, v{W+2}, v{W+4}
        v_and_b32 v{W+4}, 0xffff0000, v{tp+1}
        s_waitcnt lgkmcnt(4)
        """)
        kk = lambda m: KR + 6 * (m >> 2) + (m & 3)
        for m in range(8):
            a.e(f"v_dot2_f32_bf16 v{U+2*m}, v{kk(m)}, v{W+4}, 0")
            a.e(f"v_dot2_f32_bf16 v{U+2*m+1}, v{kk(m)+1}, v{W+1}, 0")
        for m in range(8):
            a.e(f"v_dot2_f32_bf16 v{U+2*m}, v{kk(m)+1}, v{W+2}, v{U+2*m}")
            a.e(f"v_dot2_f32_bf16 v{U+2*m+1}, v{kk(m)+2}, v{W}, v{U+2*m+1}")
        for m in range(8):
            a.e(f"v_dot2_f32_bf16 v{U+2*m}, v{kk(m)+2}, v{W+3}, v{U+2*m}")
        a.e("s_waitcnt lgkmcnt(0)")
        for m in range(8):
            x = X + 2 * (m & 1)
            a.e(f"""
            v_lshlrev_b32 v{x}, 16, v{VR+m}
            v_and_b32 v{x+1}, 0xffff0000, v{VR+m}
            v_mul_f32 v{x+1}, v{x+1}, v{U+2*m+1}
            v_mul_f32 v{x}, v{x}, v{U+2*m}
            v_cvt_pk_bf16_f32 v{O+7-m}, v{x+1}, v{x}
            """)
            if m == 3:
                a.e(f"buffer_store_dwordx4 v[{O+4}:{O+7}], v{so_u}, {srd(SRD_C)}, s{sU} offen offset:64 sc1")
        a.e(f"buffer_store_dwordx4 v[{O}:{O+3}], v{so_u}, {srd(SRD_C)}, s{sU} offen sc1")
    a.lab(done)
    stamp(a, 3)
    nz = a.newlab("a1_nz")
    a.e(f"s_cmp_lg_u32 s{S_WAVE}, 7\n s_cbranch_scc1 {nz}")
    poll_z(a, t0, t1)
    a.lab(nz)
    a.e("s_waitcnt vmcnt(0)\n s_barrier")
    stamp(a, 4)
    set_flag(a, t0, t1)
    return ra.hi

def conv(a):
    ra = RA(2)
    lr, g, t0, t1, t2, aB, aT, vrow = [ra.a() for _ in range(8)]
    aA = [ra.a() for _ in range(4)]
    z4 = ra.a(4, 4); o4 = ra.a(4, 4); AD = ra.a(4, 4)
    Q = ra.a(16, 4)
    AF = [[ra.a(4, 4) for _ in range(8)] for _ in range(2)]
    BF = [[ra.a(4, 4) for _ in range(8)] for _ in range(2)]
    ACC = [ra.a(4, 4) for _ in range(8)]
    sD, sR, sSO, sT, sH0, sDV, sH, sQO = 60, 61, 62, 63, 64, 65, 66, 67
    fin, idle = a.newlab("conv_fin"), a.newlab("conv_idle")
    a.c("conv")
    mk_srd(a, SRD_A, P_WS, T_BYTES); mk_srd(a, SRD_B, P_Q, 2048 * 1280); mk_srd(a, SRD_C, P_OUT, 2048 * 2560)
    def qtouch():
        a.e(f"""
        s_cmp_eq_u32 s{S_P2}, 8
        s_cselect_b32 s68, 63, 31
        s_cselect_b32 s69, 31, 63
        s_and_b32 s{sT}, s{S_J}, 7
        s_lshl_b32 s{sT}, s{sT}, 3
        s_add_u32 s{sT}, s{sT}, s{S_WAVE}
        s_and_b32 s{sT}, s{sT}, s68
        s_add_u32 s70, s69, 1
        s_mul_i32 s{sT}, s{sT}, s70
        s_mul_i32 s{sT}, s{sT}, 1280
        s_lshl_b32 s70, s{S_CB}, 1
        s_add_u32 s{sT}, s{sT}, s70
        v_and_b32 v{t2}, s69, v{L}
        v_mul_u32_u24 v{t2}, 1280, v{t2}
        buffer_load_dword v250, v{t2}, {srd(SRD_B)}, s{sT} offen nt
        """)
    def qgather(ns):
        for n in ns:
            l8, le = a.newlab("q8"), a.newlab("qe")
            a.e(f"""
            s_add_u32 s{sT}, s{sQO}, {n*64*1280}
            s_cmp_eq_u32 s{S_P2}, 8
            s_cbranch_scc1 {l8}
            buffer_load_dwordx2 {v(Q+4*n,2)}, v{vrow}, {srd(SRD_B)}, s{sT} offen
            s_branch {le}
            """)
            a.lab(l8)
            a.e(f"buffer_load_dwordx4 {v(Q+4*n,4)}, v{vrow}, {srd(SRD_B)}, s{sT} offen nt")
            a.lab(le)
    a.e(f"""
    v_and_b32 v{lr}, 15, v{L}
    v_lshrrev_b32 v{g}, 4, v{L}
    v_mul_u32_u24 v{vrow}, 1280, v{L}
    s_mul_i32 s{sQO}, s{S_WAVE}, {256*1280}
    s_lshl_b32 s{sT}, s{S_CB}, 1
    s_add_u32 s{sQO}, s{sQO}, s{sT}
    s_cmp_ge_u32 s{S_WAVE}, s{S_P2}
    s_cbranch_scc1 {idle}
    s_add_u32 s{sD}, s{S_CB}, s{S_WAVE}
    s_lshl_b32 s{sSO}, s{sD}, 12
    s_mul_i32 s{sR}, s{S_WAVE}, {UP}
    s_mul_i32 s{sH}, s{S_WAVE}, {HP}
    s_add_u32 s{sH}, s{sH}, {HB}
    s_load_dword s{sH0}, s[{P_H}:{P_H+1}], s{sSO}
    s_lshl_b32 s{sT}, s{sD}, 1
    s_and_b32 s{sT}, s{sT}, 0xfffffffc
    s_load_dword s{sDV}, s[{P_D}:{P_D+1}], s{sT}
    s_cmp_ge_u32 s{sD}, 320
    s_cselect_b32 s{sT}, 32, 0
    s_add_u32 s{sT}, s{sT}, 192
    v_and_b32 v{t0}, 31, v{L}
    v_add_u32 v{t0}, s{sT}, v{t0}
    v_lshlrev_b32 v{aB}, 7, v{t0}
    """)
    for i in range(4):
        a.e(f"v_mov_b32 v{z4+i}, 0\n v_mov_b32 v{o4+i}, 0")
    a.e(f"""
    v_and_b32 v{t1}, 1, v{lr}
    v_cmp_eq_u32 vcc, 1, v{t1}
    v_mov_b32 v{t1}, {H_O}
    v_mov_b32 v{t2}, 2
    v_cndmask_b32 v{t1}, v{t1}, v{t2}, vcc
    v_lshl_add_u32 v{t1}, v{lr}, 1, v{t1}
    v_lshl_add_u32 v{t1}, v{g}, 4, v{t1}
    v_add_u32 v{aA[0]}, s{sH}, v{t1}
    v_add_u32 v{aA[1]}, 1024, v{aA[0]}
    v_add_u32 v{aA[2]}, 2048, v{aA[0]}
    v_add_u32 v{aA[3]}, 3072, v{aA[0]}
    v_lshlrev_b32 v{t0}, 4, v{L}
    v_add_u32 v{t1}, s{sH}, v{t0}
    v_add_u32 v{aT}, s{sR}, v{t0}
    s_waitcnt lgkmcnt(0)
    s_lshl_b32 s{sH0}, s{sH0}, 16
    s_and_b32 s{sT}, s{sD}, 1
    s_lshl_b32 s{sT}, s{sT}, 4
    s_lshr_b32 s{sDV}, s{sDV}, s{sT}
    s_and_b32 s{sDV}, s{sDV}, 0xffff
    v_writelane_b32 v{o4+3}, s{sH0}, 1
    s_mov_b32 exec_lo, -1
    s_mov_b32 exec_hi, 0
    ds_write_b128 v{aT}, v[{z4}:{z4+3}] offset:4096
    s_mov_b32 exec_lo, 3
    ds_write_b128 v{t1}, v[{z4}:{z4+3}]
    ds_write_b128 v{t1}, v[{o4}:{o4+3}] offset:{H_O}
    s_mov_b64 exec, -1
    v_lshl_add_u32 v{t1}, v{g}, 3, v{lr}
    v_sub_u32 v{t1}, 15, v{t1}
    v_and_b32 v{t2}, 1, v{t1}
    v_lshlrev_b32 v{t2}, 4, v{t2}
    v_lshlrev_b32 v{t2}, v{t2}, s{sDV}
    v_ashrrev_i32 v{t1}, 1, v{t1}
    """)
    for r in range(4):
        a.e(f"v_cmp_eq_u32 vcc, {r}, v{t1}\n s_nop 1\n v_cndmask_b32 v{AD+r}, 0, v{t2}, vcc")
    stamp(a, 5)
    poll(a, SRD_FL, [aB], [t1])
    stamp(a, 6)
    UR = AF[1][0]
    for j in range(4):
        a.e(f"buffer_load_dwordx4 {v(UR+4*j,4)}, v{t0}, {srd(SRD_A)}, s{sSO} offen offset:{1024*j} sc1")
    qtouch()
    for j in range(4):
        a.e(f"s_waitcnt vmcnt({4-j})\n ds_write_b128 v{aT}, {v(UR+4*j,4)} offset:{1024*j}")
    a.e(f"""
    v_lshlrev_b32 v{t1}, 5, v{lr}
    v_sub_u32 v{aB}, 480, v{t1}
    v_lshl_add_u32 v{aB}, v{g}, 4, v{aB}
    v_add_u32 v{aB}, s{sR}, v{aB}
    v_lshl_add_u32 v{aT}, v{g}, 3, v{t1}
    v_add_u32 v{aT}, s{sR}, v{aT}
    """)
    def reads(r):
        b = r & 1; o = []
        for i in range(8):
            o.append(f"ds_read_b128 {v(BF[b][i],4)}, v{aB} offset:{3584 - 512*i + 64*r}")
            o0 = 128 * (i & 1) + 16 * r
            o.append(f"ds_read2_b32 {v(AF[b][i],2)}, v{aA[i>>1]} offset0:{o0} offset1:{o0+1}")
            o.append(f"ds_read2_b32 {v(AF[b][i]+2,2)}, v{aA[i>>1]} offset0:{o0+2} offset1:{o0+3}")
        return o
    def mf(r):
        b = r & 1; o = []
        if r == 0:
            for c in range(8):
                o.append(f"v_mfma_f32_16x16x32_bf16 {v(ACC[c],4)}, {v(AD,4)}, {v(BF[b][c],4)}, 0")
        for q in range(8):
            for c in range(q, 8):
                o.append(f"v_mfma_f32_16x16x32_bf16 {v(ACC[c],4)}, {v(AF[b][q],4)}, {v(BF[b][c-q],4)}, {v(ACC[c],4)}")
        return o
    stamp(a, 7)
    a.e("s_waitcnt lgkmcnt(0)\n s_barrier")
    a.e("\n".join(reads(0)))
    for r in range(8):
        a.e("s_waitcnt lgkmcnt(0)")
        if 3 <= r <= 6: qgather([r - 3])
        a.e("\n".join(interleave(mf(r), reads(r + 1) if r < 7 else [])))
    stamp(a, 8)
    T = AF[0][0]
    for c in range(8):
        t = T + 2 * c
        if c == 6: a.e("s_nop 3")
        a.e(f"""
        v_cvt_pk_bf16_f32 v{t}, v{ACC[c]}, v{ACC[c]+1}
        v_cvt_pk_bf16_f32 v{t+1}, v{ACC[c]+2}, v{ACC[c]+3}
        ds_write_b64 v{aT}, v[{t}:{t+1}] offset:{512*c}
        """)
    a.e(f"s_branch {fin}")
    a.lab(idle)
    a.e("s_barrier")
    qtouch()
    a.e("s_waitcnt vmcnt(0)")
    qgather(range(4))
    a.lab(fin)
    a.e(f"""
    v_lshrrev_b32 v{t0}, 2, v{lr}
    v_mul_u32_u24 v{t0}, {UP}, v{t0}
    v_and_b32 v{t1}, 3, v{lr}
    v_lshl_add_u32 v{t0}, v{t1}, 3, v{t0}
    v_lshl_add_u32 v{t0}, v{g}, 5, v{t0}
    s_lshl_b32 s{sT}, s{S_WAVE}, 9
    v_add_u32 v{t0}, s{sT}, v{t0}
    v_lshlrev_b32 v{vrow}, 1, v{vrow}
    s_mul_i32 s{sSO}, s{S_WAVE}, {256*2560}
    s_lshl_b32 s{sT}, s{S_CB}, 1
    s_add_u32 s{sSO}, s{sSO}, s{sT}
    s_waitcnt lgkmcnt(0)
    s_barrier
    """)
    stamp(a, 9)
    Y = BF[0][0]; X = BF[1][0]
    def tail(nd):
        for n in range(4):
            for k in range(nd // 2):
                a.e(f"ds_read_b64_tr_b16 {v(Y+4*n+2*k,2)}, v{t0} offset:{128*n + 4*UP*k}")
        a.e("s_waitcnt vmcnt(0) lgkmcnt(0)")
        for n in range(4):
            for i in range(nd):
                y, q = Y + 4 * n + i, Q + 4 * n + i
                a.e(f"""
                v_lshlrev_b32 v{X}, 16, v{y}
                v_and_b32 v{X+1}, 0xffff0000, v{y}
                v_lshlrev_b32 v{X+2}, 16, v{q}
                v_and_b32 v{X+3}, 0xffff0000, v{q}
                v_mul_f32 v{X}, v{X}, v{X+2}
                v_mul_f32 v{X+1}, v{X+1}, v{X+3}
                v_cvt_pk_bf16_f32 v{y}, v{X}, v{X+1}
                """)
            a.e(f"buffer_store_dwordx{nd} {v(Y+4*n,nd)}, v{vrow}, {srd(SRD_C)}, s{sSO} offen {OST if nd == 4 else ''}")
            if n < 3: a.e(f"s_add_u32 s{sSO}, s{sSO}, {64*2560}")
    l8 = a.newlab("t8")
    a.e(f"s_cmp_eq_u32 s{S_P2}, 8\n s_cbranch_scc1 {l8}")
    tail(2)
    a.e("s_branch L_FIN")
    a.lab(l8)
    tail(4)
    a.e("s_branch L_FIN")
    return ra.hi

KVI = 81920
RED = KVI + 28672
def g2(a):
    ra = RA(2)
    lr, g, t0, t1, t2, t3 = [ra.a() for _ in range(6)]
    m0a, m1a = ra.a(), ra.a()
    x0a = [ra.a() for _ in range(4)]; x1a = [ra.a() for _ in range(4)]
    wm = [ra.a() for _ in range(4)]; wx = [ra.a() for _ in range(4)]
    v16, v8 = ra.a(), ra.a()
    ce = ra.a(4, 4)
    PQR = [[ra.a(10, 2) for _ in range(2)] for _ in range(4)]
    KF = [[ra.a(4, 4) for _ in range(2)] for _ in range(2)]
    CT = [[[ra.a(4, 4) for _ in range(2)] for _ in range(2)] for _ in range(2)]
    OP = [ra.a(4, 4) for _ in range(2)]
    OX = [ra.a(4, 4) for _ in range(2)]
    XT = [ra.a() for _ in range(2)]
    rc = [ra.a() for _ in range(2)]
    WF = [ra.a(4, 4) for _ in range(4)]
    ACC = [[ra.a(4, 4) for _ in range(4)] for _ in range(2)]
    LD = CT[0][0][0]
    sKH, sRW, sT, sSO, sM, sU = 60, 61, 62, 63, 64, 65
    a.c("G2")
    a.e(f"""
    s_lshr_b32 s{sKH}, s{S_WAVE}, 2
    s_and_b32 s{sRW}, s{S_WAVE}, 3
    v_and_b32 v{lr}, 15, v{L}
    v_lshrrev_b32 v{g}, 4, v{L}
    v_lshlrev_b32 v{v16}, 4, v{L}
    v_lshlrev_b32 v{v8}, 3, v{L}
    s_lshl_b32 s{sT}, s{S_RT}, 2
    s_add_u32 s{sT}, s{sT}, 128
    v_and_b32 v{t0}, 3, v{L}
    v_add_u32 v{t0}, s{sT}, v{t0}
    v_lshlrev_b32 v{t0}, 7, v{t0}
    """)
    mk_srd(a, SRD_B, P_WS, T_BYTES, off=WS_PQ)
    mk_srd(a, SRD_C, P_WS, KV_BYTES, off=WS_KV); mk_srd(a, SRD_D, P_OUT, 2048 * 2560)
    stamp(a, 5)
    poll(a, SRD_FL, [t0], [t1])
    a.e(f"""
    s_lshl_b32 s{sT}, s{S_RT}, 3
    s_lshl_b32 s{sU}, s{sRW}, 1
    s_add_u32 s{sT}, s{sT}, s{sU}
    s_lshl_b32 s{sT}, s{sT}, 3
    s_lshl_b32 s{sU}, s{sKH}, 2
    s_add_u32 s{sT}, s{sT}, s{sU}
    s_mul_i32 s{sU}, s{sT}, 2560
    """)
    def pqload(p):
        for rt in range(2):
            r = PQR[p][rt]
            a.e(f"""
            s_add_u32 s{sM}, s{sU}, {(rt*8+p)*2560}
            buffer_load_dwordx4 {v(r,4)}, v{v16}, {srd(SRD_B)}, s{sM} offen sc1
            buffer_load_dwordx4 {v(r+4,4)}, v{v16}, {srd(SRD_B)}, s{sM} offen offset:1024 sc1
            buffer_load_dwordx2 {v(r+8,2)}, v{v8}, {srd(SRD_B)}, s{sM} offen offset:2048 sc1
            """)
    pqload(0)
    a.e(f"""
    s_mul_i32 s{sT}, s{sKH}, {16*880}
    s_add_u32 s{sT}, s{sT}, {KVI}
    v_mul_u32_u24 v{t0}, 40, v{lr}
    v_add_u32 v{t0}, s{sT}, v{t0}
    v_lshl_add_u32 v{m0a}, v{g}, 3, v{t0}
    v_lshrrev_b32 v{t1}, 2, v{lr}
    v_add_u32 v{t1}, 16, v{t1}
    v_and_b32 v{t2}, 3, v{lr}
    v_cmp_eq_u32 vcc, 0, v{t2}
    v_min_u32 v{t2}, 2, v{t2}
    v_add_u32 v{t2}, 19, v{t2}
    v_cndmask_b32 v{t1}, v{t2}, v{t1}, vcc
    v_mul_u32_u24 v{t1}, 40, v{t1}
    v_add_u32 v{t1}, s{sT}, v{t1}
    v_lshl_add_u32 v{m1a}, v{g}, 3, v{t1}
    v_add_u32 v{t0}, 32, v{t0}
    v_add_u32 v{t1}, 32, v{t1}
    s_add_u32 s{sT}, s{sT}, {21*40}
    v_mov_b32 v{t2}, s{sT}
    """)
    for x in range(4):
        a.e(f"v_cmp_eq_u32 vcc, {x}, v{g}\n s_nop 1\n v_cndmask_b32 v{x0a[x]}, v{t2}, v{t0}, vcc\n v_cndmask_b32 v{x1a[x]}, v{t2}, v{t1}, vcc")
    a.e(f"""
    s_mul_i32 s{sT}, s{sKH}, {16*2560}
    v_lshrrev_b32 v{t0}, 2, v{lr}
    v_and_b32 v{t1}, 3, v{lr}
    v_lshl_add_u32 v{t1}, v{t1}, 3, s{sT}
    v_lshl_add_u32 v{t2}, v{g}, 2, v{t0}
    v_lshl_add_u32 v{wm[0]}, v{t2}, 7, v{t1}
    v_bfe_u32 v{t2}, v{t2}, 1, 2
    v_lshl_add_u32 v{wm[0]}, v{t2}, 5, v{wm[0]}
    v_mul_u32_u24 v{t2}, 20, v{t0}
    v_add3_u32 v{t2}, v{t2}, v{g}, 16
    v_lshl_add_u32 v{wx[0]}, v{t2}, 7, v{t1}
    v_bfe_u32 v{t2}, v{t2}, 1, 2
    v_lshl_add_u32 v{wx[0]}, v{t2}, 5, v{wx[0]}
    """)
    for t in range(1, 4):
        a.e(f"v_xor_b32 v{wm[t]}, {32*t}, v{wm[0]}\n v_xor_b32 v{wx[t]}, {32*t}, v{wx[0]}")
    a.e(f"""
    v_mov_b32 v{ce}, 0
    v_mov_b32 v{ce+1}, {f32(1e-6)}
    v_mov_b32 v{ce+2}, 0
    v_mov_b32 v{ce+3}, 0
    v_lshlrev_b32 v{t3}, 4, v0
    """)
    stamp(a, 6)
    np_ = a.newlab("g2_np")
    a.e(f"s_cmp_lg_u32 s{S_WAVE}, 0\n s_cbranch_scc1 {np_}")
    a.e(f"v_lshlrev_b32 v{t0}, 7, v{L}\n v_add_u32 v{t1}, {64*128}, v{t0}")
    poll(a, SRD_FL, [t0, t1], [t2, rc[0]])
    a.lab(np_)
    a.e("s_barrier")
    stamp(a, 7)
    for n in range(7):
        a.e(f"s_mov_b32 s{sT}, {8192*n}\n buffer_load_dwordx4 {v(LD+4*n,4)}, v{t3}, {srd(SRD_C)}, s{sT} offen sc1")
    a.e(f"v_lshrrev_b32 v{t3}, 1, v{t3}\n v_add_u32 v{t3}, {KVI}, v{t3}")
    for n in range(7):
        r = LD + 4 * n
        a.e(f"""
        s_waitcnt vmcnt({6-n})
        v_cvt_pk_bf16_f32 v{r}, v{r}, v{r+1}
        v_cvt_pk_bf16_f32 v{r+1}, v{r+2}, v{r+3}
        ds_write_b64 v{t3}, {v(r,2)} offset:{4096*n}
        """)
    pqload(1)
    a.e("s_waitcnt lgkmcnt(0)\n s_barrier")
    stamp(a, 8)
    def kvreads(h):
        b = h & 1; x = h & 3
        mo, xo = (0, 2) if x == 0 else (2, 0)
        return [f"ds_read_b64 {v(KF[b][0]+mo,2)}, v{m0a} offset:{880*h}",
                f"ds_read_b64 {v(KF[b][0]+xo,2)}, v{x0a[x]} offset:{880*h}",
                f"ds_read_b64 {v(KF[b][1]+mo,2)}, v{m1a} offset:{880*h}",
                f"ds_read_b64 {v(KF[b][1]+xo,2)}, v{x1a[x]} offset:{880*h}"]
    def woreads(h0):
        o = []
        for t in range(4):
            o.append(f"ds_read_b64_tr_b16 {v(WF[t],2)}, v{wm[t]} offset:{2560*h0}")
            o.append(f"ds_read_b64_tr_b16 {v(WF[t]+2,2)}, v{wm[t^2]} offset:{2560*(h0+1)}")
        return o
    def wxreads(hb):
        o = []
        for t in range(4):
            o.append(f"ds_read_b64_tr_b16 {v(WF[t],2)}, v{wx[t]} offset:{2560*hb}")
            o.append(f"ds_read_b64_tr_b16 {v(WF[t]+2,2)}, v{wx[t]} offset:{2560*(hb+4)}")
        return o
    def xcopy(h):
        x = h & 3; o = []
        if x >= 2:
            for rt in range(2):
                r = PQR[h >> 2][rt]
                o += [f"v_mov_b32 v{r+2*x}, v{r+2}", f"v_mov_b32 v{r+2*x+1}, v{r+3}"]
        return o
    def omf(h):
        b = h & 1; x = h & 3; o = []
        for rt in range(2):
            w = PQR[h >> 2][rt] + 2 * x
            o.append(f"v_mfma_f32_16x16x32_bf16 {v(CT[b][rt][1],4)}, {v(KF[b][1],4)}, {v(w,4)}, {v(ce,4)}")
            o.append(f"v_mfma_f32_16x16x32_bf16 {v(CT[b][rt][0],4)}, {v(KF[b][0],4)}, {v(w,4)}, 0")
        return o
    def norm(h):
        b = h & 1; o = []
        for rt in range(2):
            o.append(f"v_rcp_f32 v{rc[rt]}, v{CT[b][rt][1]+1}")
        for rt in range(2):
            c = CT[b][rt][0]; e = CT[b][rt][1]
            for i in range(4):
                o.append(f"v_mul_f32 v{c+i}, v{c+i}, v{rc[rt]}")
            if h & 1 == 0:
                o.append(f"v_mul_f32 v{XT[rt]}, v{e}, v{rc[rt]}")
            else:
                o.append(f"v_mul_f32 v{e}, v{e}, v{rc[rt]}")
            d = OP[rt] + 2 * (h & 1)
            o.append(f"v_cvt_pk_bf16_f32 v{d}, v{c}, v{c+1}")
            o.append(f"v_cvt_pk_bf16_f32 v{d+1}, v{c+2}, v{c+3}")
            if h & 1:
                o.append(f"v_cvt_pk_bf16_f32 v{OX[rt]+((h&7)>>1)}, v{XT[rt]}, v{e}")
        return o
    first = [True]
    def mainmf(src):
        o = []
        for rt in range(2):
            for t in range(4):
                c = "0" if first[0] else v(ACC[rt][t], 4)
                o.append(f"v_mfma_f32_16x16x32_bf16 {v(ACC[rt][t],4)}, {v(WF[t],4)}, {v(src[rt],4)}, {c}")
        first[0] = False
        return o
    a.e("\n".join(kvreads(0)))
    for h in range(17):
        a.c(f"head {h}")
        if h == 1: pqload(2)
        if h == 5: pqload(3)
        if h in (4, 8): a.e("s_waitcnt vmcnt(6)")
        if h == 12: a.e("s_waitcnt vmcnt(0)")
        if h < 16:
            a.e("\n".join(xcopy(h)))
            a.e("s_waitcnt lgkmcnt(0)")
            if h + 1 < 16:
                a.e("\n".join(kvreads(h + 1)))
            if h & 1:
                a.e("\n".join(woreads(h - 1)))
            a.e("\n".join(omf(h)))
        else:
            a.e("s_nop 7")
        if h >= 1:
            a.e("\n".join(norm(h - 1)))
            if (h - 1) & 1:
                a.e("s_waitcnt lgkmcnt(0)" if h == 16 else ("s_waitcnt lgkmcnt(4)"))
                a.e("s_nop 0")
                a.e("\n".join(mainmf(OP)))
                if (h - 1) & 7 == 7:
                    a.e("\n".join(wxreads(h - 8)))
                    a.e("s_waitcnt lgkmcnt(0)")
                    a.e("\n".join(mainmf(OX)))
    lk1, lj = a.newlab("g2_k1"), a.newlab("g2_j")
    stamp(a, 9)
    a.e(f"""
    s_lshl_b32 s{sT}, s{S_WAVE}, 12
    s_add_u32 s{sT}, s{sT}, {RED}
    v_add_u32 v{t0}, s{sT}, v{v16}
    s_nop 5
    s_cmp_eq_u32 s{sKH}, 0
    s_cbranch_scc0 {lk1}
    """)
    for t in range(4):
        a.e(f"ds_write_b128 v{t0}, {v(ACC[1][t],4)} offset:{1024*t}")
    a.e(f"s_branch {lj}")
    a.lab(lk1)
    for t in range(4):
        a.e(f"ds_write_b128 v{t0}, {v(ACC[0][t],4)} offset:{1024*t}")
    a.e("s_nop 1")
    for t in range(4):
        for i in range(4):
            a.e(f"v_mov_b32 v{ACC[0][t]+i}, v{ACC[1][t]+i}")
    a.lab(lj)
    a.e(f"""
    s_xor_b32 s{sT}, s{S_WAVE}, 4
    s_lshl_b32 s{sT}, s{sT}, 12
    s_add_u32 s{sT}, s{sT}, {RED}
    v_add_u32 v{t1}, s{sT}, v{v16}
    v_mul_u32_u24 v{t2}, 2560, v{lr}
    v_and_b32 v{t3}, 1, v{g}
    v_lshl_add_u32 v{t2}, v{t3}, 5, v{t2}
    v_lshrrev_b32 v{t3}, 1, v{g}
    v_lshl_add_u32 v{t2}, v{t3}, 4, v{t2}
    s_lshl_b32 s{sT}, s{S_RT}, 3
    s_lshl_b32 s{sU}, s{sRW}, 1
    s_add_u32 s{sT}, s{sT}, s{sU}
    s_add_u32 s{sT}, s{sT}, s{sKH}
    s_mul_i32 s{sSO}, s{sT}, {16*2560}
    s_lshl_b32 s{sT}, s{S_CB}, 7
    s_add_u32 s{sSO}, s{sSO}, s{sT}
    s_add_u32 s{sSO}, s{sSO}, 1280
    s_waitcnt lgkmcnt(0)
    s_barrier
    """)
    stamp(a, 10)
    a.e("s_waitcnt lgkmcnt(0)" if STAMPS else "")
    for t in range(4):
        a.e(f"ds_read_b128 {v(WF[t],4)}, v{t1} offset:{1024*t}")
    D = CT[0][0][0]
    for t in range(4):
        a.e(f"s_waitcnt lgkmcnt({3-t})")
        c = ACC[0][t]
        for i in range(4):
            a.e(f"v_add_f32 v{c+i}, v{c+i}, v{WF[t]+i}")
        a.e(f"v_cvt_pk_bf16_f32 v{D+2*t}, v{c}, v{c+1}\n v_cvt_pk_bf16_f32 v{D+2*t+1}, v{c+2}, v{c+3}")
    a.e("s_nop 1")
    for t in (0, 2):
        a.e(f"v_permlane16_swap_b32 v{D+2*t}, v{D+2*t+2}\n v_permlane16_swap_b32 v{D+2*t+1}, v{D+2*t+3}")
    for t in (0, 2):
        a.e(f"buffer_store_dwordx4 {v(D+2*t,4)}, v{t2}, {srd(SRD_D)}, s{sSO} offen offset:{32*t} {OSTB}")
    return ra.hi

def build(path):
    hdr = open("cdna_kernels/%s.s.ref" % NAME).read().split("; Override")[0]
    a = Asm()
    a.raw('.amdgcn_target "amdgcn-amd-amdhsa--gfx950"\n.text')
    a.raw(f".globl {KN}\n.p2align 8\n.type {KN},@function"); a.lab(KN)
    a.e(f"s_cmp_ge_u32 s2, 256\n s_cbranch_scc1 L_END")
    stamp_init(a); stamp(a, 0)
    a.e(f"""
    s_load_dwordx16 s[8:23], s[0:1], 0
    s_load_dwordx8 s[24:31], s[0:1], 64
    v_lshrrev_b32 v2, 6, v0
    v_and_b32 v{L}, 63, v0
    v_readfirstlane_b32 s{S_WAVE}, v2
    s_and_b32 s{S_XI}, s2, 7
    s_lshr_b32 s{S_J}, s2, 3
    """)
    if "scram" in EX:
        a.e(f"s_lshr_b32 s{S_XI}, s2, 5\n s_and_b32 s{S_J}, s2, 31")
    a.e(f"""
    s_and_b32 s4, s{S_J}, 28
    s_cmp_lg_u32 s4, 20
    s_cbranch_scc1 L_NOPF
    s_getpc_b64 s[4:5]
    v_lshlrev_b32 v2, 7, v0
    v_min_u32 v2, L_END-{KN}-512, v2
    global_load_dword v252, v2, s[4:5] nt
    """)
    a.lab("L_NOPF")
    a.e(f"""
    s_cmp_ge_u32 s{S_J}, 24
    s_cbranch_scc1 L_A1
    s_lshr_b32 s6, s{S_XI}, 1
    s_lshl_b32 s6, s6, 2
    s_and_b32 s7, s{S_J}, 3
    s_add_u32 s{S_RT}, s6, s7
    s_and_b32 s4, s{S_XI}, 1
    s_lshr_b32 s6, s{S_J}, 2
    s_mul_i32 s{S_CB}, s4, 5
    s_add_u32 s{S_CB}, s{S_CB}, s6
    s_mov_b32 s{S_P2}, 0
    s_cmp_ge_u32 s{S_J}, 16
    s_cbranch_scc1 L_Q
    s_mov_b32 s{S_MODE}, 0
    s_lshl_b32 s4, s4, 2
    s_add_u32 s{S_G}, s4, s6
    s_lshl_b32 s{S_SLOT}, s{S_RT}, 3
    s_add_u32 s{S_SLOT}, s{S_SLOT}, s{S_G}
    s_branch L_G1
    """)
    a.lab("L_Q")
    a.e(f"""
    s_mov_b32 s{S_MODE}, 1
    s_lshl_b32 s4, s4, 1
    s_add_u32 s{S_G}, s4, s6
    s_sub_u32 s{S_G}, s{S_G}, 4
    s_lshl_b32 s{S_SLOT}, s{S_RT}, 2
    s_add_u32 s{S_SLOT}, s{S_SLOT}, s{S_G}
    s_add_u32 s{S_SLOT}, s{S_SLOT}, 128
    s_cmp_lt_u32 s{S_J}, 20
    s_cbranch_scc1 L_G1
    s_mov_b32 s{S_P2}, 4
    s_lshl_b32 s{S_CB}, s{S_XI}, 4
    s_lshl_b32 s7, s7, 2
    s_add_u32 s{S_CB}, s{S_CB}, s7
    s_add_u32 s{S_CB}, s{S_CB}, 512
    """)
    a.lab("L_G1")
    a.e(f"s_cmp_lt_u32 s{S_WAVE}, 4\n s_cbranch_scc1 L_G1C")
    g1_loader(a)
    a.lab("L_A1")
    a.e(f"""
    s_sub_u32 s5, s{S_J}, 24
    s_lshl_b32 s5, s5, 3
    s_add_u32 s{S_RT}, s5, s{S_XI}
    s_lshl_b32 s{S_CB}, s{S_XI}, 6
    s_add_u32 s{S_CB}, s{S_CB}, s5
    s_mov_b32 s{S_P2}, 8
    s_and_b32 s4, s{S_RT}, 1
    s_lshl_b32 s4, s4, 5
    s_lshr_b32 s5, s{S_RT}, 1
    s_add_u32 s{S_SLOT}, s4, s5
    s_add_u32 s{S_SLOT}, s{S_SLOT}, 192
    """)
    h3 = a1(a)
    a.lab("L_CONV")
    h5 = conv(a)
    a.lab("L_G1C")
    g1_init(a)
    a.e(f"s_cmp_lg_u32 s{S_MODE}, 0\n s_cbranch_scc1 L_G1Q")
    h1 = g1_compute(a, 0)
    a.lab("L_G1Q")
    h2 = g1_compute(a, 1)
    a.lab("L_PHASE2")
    a.e(f"s_cmp_lg_u32 s{S_P2}, 0\n s_cbranch_scc1 L_CONV")
    a.lab("L_G2")
    h4 = g2(a)
    a.lab("L_FIN")
    stamp_flush(a, 0)
    a.lab("L_END")
    a.e("s_endpgm")
    print("vgprs", h1, h2, h3, h4, h5, file=sys.stderr)
    lds = max(HB + 8 * HP, LFL + 64, RED + 32768)
    desc = f""".section .rodata,"a"
.p2align 6
.amdhsa_kernel {KN}
  .amdhsa_next_free_vgpr 256
  .amdhsa_next_free_sgpr 102
  .amdhsa_accum_offset 256
  .amdhsa_group_segment_fixed_size 0
  .amdhsa_kernarg_size 96
  .amdhsa_user_sgpr_count 2
  .amdhsa_user_sgpr_kernarg_segment_ptr 1
  .amdhsa_system_sgpr_workgroup_id_x 1
.end_amdhsa_kernel
"""
    body = a.text()
    if "nont" in EX:
        body = "\n".join((l.replace(" nt", "") if "_load_" in l else l) for l in body.split("\n"))
    open(path, "w").write(hdr + f"; @launch grid=(256,1,1) block=(512,1,1) lds={lds}\n" + body + desc)
if __name__ == "__main__":
    build(sys.argv[1])
```

```python
import sys
from asmlib import *
NAME = "concat_heads__ssm_conv_h3__linear_attn_block__prompt"
KN = NAME + "_kernel"
EX = set(os.environ.get("EX", "").split(","))
XW = "nt" if "xwnt" in EX else ""
ROTR = int(os.environ.get("ROTR", "8530"), 16); ROTC = int(os.environ.get("ROTC", "875320"), 16)
RPG = 2 if "rpg2" in EX else 1
OST = os.environ.get("OSTA", "")
OSTB = os.environ.get("OSTB", "nt")

WS_UT, WS_PQ, WS_KV, WS_FL = 0, 0x500000, 0x780000, 0x790000
T_BYTES = 640 * 4096
KV_BYTES = 32 * 22 * 80
S_WG, S_WAVE = 2, 3
P_Q, P_K, P_V, P_SH, P_H, P_D, P_X, P_W, P_WO, P_OUT, P_DBG, P_WS = 8, 10, 12, 14, 16, 18, 20, 22, 24, 26, 28, 30
SRD_A, SRD_B, SRD_C, SRD_D, SRD_FL = 32, 36, 40, 44, 48
S_RT, S_G, S_MODE, S_CB, S_P2, S_SLOT, S_XI, S_J = 52, 53, 54, 55, 56, 57, 58, 59
L = 1

def mk_srd(a, srd, ptr, nbytes, off=0, off_sreg=None):
    if off_sreg is not None:
        a.e(f"s_add_u32 s{srd}, s{ptr}, s{off_sreg}\n s_addc_u32 s{srd+1}, s{ptr+1}, 0")
    elif off:
        a.e(f"s_add_u32 s{srd}, s{ptr}, {off}\n s_addc_u32 s{srd+1}, s{ptr+1}, 0")
    else:
        a.e(f"s_mov_b32 s{srd}, s{ptr}\n s_mov_b32 s{srd+1}, s{ptr+1}")
    a.e(f"s_mov_b32 s{srd+2}, {nbytes}\n s_mov_b32 s{srd+3}, 0x20000")
def srd(x): return f"s[{x}:{x+3}]"

SPIN_MAX = 400000
def poll(a, srdn, voffs, tmps, scnt=74):
    lp, dn = a.newlab("poll"), a.newlab("polld")
    a.e(f"s_mov_b32 s{scnt}, {SPIN_MAX}")
    a.lab(lp)
    for vo, t in zip(voffs, tmps):
        a.e(f"buffer_load_dword v{t}, v{vo}, {srd(srdn)}, 0 offen sc1")
    a.e("s_waitcnt vmcnt(0)")
    for t in tmps[1:]:
        a.e(f"v_and_b32 v{tmps[0]}, v{tmps[0]}, v{t}")
    a.e(f"""
    v_cmp_ne_u32 vcc, 1, v{tmps[0]}
    s_sub_u32 s{scnt}, s{scnt}, 1
    s_cbranch_scc1 {dn}
    s_cmp_eq_u64 vcc, 0
    s_cbranch_scc1 {dn}
    s_sleep 1
    s_branch {lp}
    """)
    a.lab(dn)

def poll_z(a, vz, vt):
    mk_srd(a, SRD_D, P_DBG, 256)
    a.e(f"v_and_b32 v{vz}, 7, v{L}\n v_lshlrev_b32 v{vz}, 2, v{vz}")
    poll(a, SRD_D, [vz], [vt])

def set_flag(a, v0_, v1_):
    sk = a.newlab("nofl")
    a.e(f"""
    s_cmp_lg_u32 s{S_WAVE}, 0
    s_cbranch_scc1 {sk}
    s_lshl_b32 s74, s{S_SLOT}, 7
    v_mov_b32 v{v0_}, 0
    v_mov_b32 v{v1_}, 1
    s_mov_b64 exec, 1
    buffer_store_dword v{v1_}, v{v0_}, {srd(SRD_FL)}, s74 offen sc1
    s_mov_b64 exec, -1
    """)
    a.lab(sk)

UP = 4672
HB, HP, H_O = 87808, 8320, 4160
def h_load(a, H, vl16, srdn, soff):
    for j in range(4):
        a.e(f"buffer_load_dwordx4 {v(H+4*j,4)}, v{vl16}, {srd(srdn)}, s{soff} offen offset:{1024*j}")
def h_stage(a, H, G, sslot, vl16, va, st):
    a.e(f"s_mul_i32 s{st}, s{sslot}, {HP}\n s_add_u32 s{st}, s{st}, {HB}\n v_add_u32 v{va}, s{st}, v{vl16}")
    a.e(f"v_readfirstlane_b32 s{st}, v{H}")
    for j in range(4):
        a.e(f"ds_write_b128 v{va}, {v(H+4*j,4)} offset:{32+1024*j}")
    for j in range(4):
        a.e(f"v_mov_b32_dpp v{G+4*j+3}, v{H+4*((j+1)&3)} wave_rol:1 row_mask:0xf bank_mask:0xf")
    for j in range(4):
        a.e(f"v_mov_b32_dpp v{G+4*j+3}, v{H+4*j} wave_shl:1 row_mask:0xf bank_mask:0xf")
    Z = G + 16
    for i in range(4): a.e(f"v_mov_b32 v{Z+i}, 0")
    a.e(f"s_lshl_b32 s{st}, s{st}, 16\n s_mov_b64 exec, 3\n ds_write_b128 v{va}, {v(Z,4)}\n s_mov_b64 exec, -1")
    for j in range(4):
        h, g_ = H + 4 * j, G + 4 * j
        for i in range(3): a.e(f"v_alignbit_b32 v{g_+i}, v{h+i+1}, v{h+i}, 16")
        a.e(f"v_alignbit_b32 v{g_+3}, v{g_+3}, v{h+3}, 16")
        a.e(f"ds_write_b128 v{va}, {v(g_,4)} offset:{H_O+32+1024*j}")
    a.e(f"v_writelane_b32 v{Z+3}, s{st}, 1\n s_mov_b64 exec, 3\n ds_write_b128 v{va}, {v(Z,4)} offset:{H_O}\n s_mov_b64 exec, -1")

def conv_sload(a):
    a.e(f"""
    s_add_u32 s6, s{S_CB}, s{S_WAVE}
    s_lshl_b32 s6, s6, 1
    s_and_b32 s6, s6, 0xfffffffc
    s_load_dword s5, s[{P_D}:{P_D+1}], s6
    """)

XST, WBASE, WST, NST = 16384, 65536, 20480, 4
IMG, IMGP = WBASE + 3 * WST, 7168
LFL = WBASE + 4 * WST

def lds_wait(a, vaddr, vq, off, need, sv=73, scnt=74, first_check=False):
    lp, ok = a.newlab("lw"), a.newlab("lwok")
    if first_check:
        a.e(f"s_cmp_ge_u32 s{sv}, {need}\n s_cbranch_scc1 {ok}")
    a.e(f"s_mov_b32 s{scnt}, 4000000")
    a.lab(lp)
    a.e(f"""
    ds_read_b128 {v(vq,4)}, v{vaddr} offset:{off}
    s_sub_u32 s{scnt}, s{scnt}, 1
    s_cbranch_scc1 {ok}
    s_waitcnt lgkmcnt(0)
    v_min3_u32 v{vq}, v{vq}, v{vq+1}, v{vq+2}
    v_min_u32 v{vq}, v{vq}, v{vq+3}
    s_nop 0
    v_readfirstlane_b32 s{sv}, v{vq}
    s_nop 0
    s_cmp_ge_u32 s{sv}, {need}
    s_cbranch_scc0 {lp}
    """)
    a.lab(ok)
def lds_pub(a, vaddr, vt, val):
    a.e(f"v_mov_b32 v{vt}, {val}\n s_mov_b64 exec, 1\n ds_write_b32 v{vaddr}, v{vt}\n s_mov_b64 exec, -1")

def g1_loader(a):
    ra = RA(2)
    t0, t1, t2, t3 = [ra.a() for _ in range(4)]
    vx = [ra.a() for _ in range(4)]
    vw = [ra.a() for _ in range(5)]
    z4 = ra.a(4, 4)
    sLW, sSX, sSW, sM0X, sM0W, sC1, sC2, sT = 60, 61, 62, 63, 64, 65, 66, 67
    a.c("G1 loader wave")
    if "prio" in EX: a.e("s_setprio 3")
    a.e(f"""
    s_sub_u32 s{sLW}, s{S_WAVE}, 4
    s_lshl_b32 s{sT}, s{S_RT}, 2
    s_add_u32 s{sT}, s{sT}, s{sLW}
    s_mul_i32 s{sSX}, s{sT}, {32*1280}
    s_lshl_b32 s{sM0X}, s{sLW}, 12
    v_lshrrev_b32 v{t0}, 3, v{L}
    v_mul_u32_u24 v{t0}, 1280, v{t0}
    v_lshrrev_b32 v{t1}, 4, v{L}
    v_and_b32 v{t2}, 7, v{L}
    v_xor_b32 v{t1}, v{t1}, v{t2}
    v_lshlrev_b32 v{t1}, 4, v{t1}
    v_xor_b32 v{t2}, 64, v{t1}
    v_add_u32 v{vx[0]}, v{t0}, v{t1}
    v_add_u32 v{vx[1]}, v{t0}, v{t2}
    v_add_u32 v{vx[2]}, {2*(8*1280-1024)}, v{vx[0]}
    v_add_u32 v{vx[3]}, {3*(8*1280-1024)}, v{vx[1]}
    v_add_u32 v{vx[1]}, {1*(8*1280-1024)}, v{vx[1]}
    s_cmp_eq_u32 s{S_MODE}, 0
    s_cselect_b32 s{sC1}, 1200, 0
    s_cselect_b32 s{sC2}, 80, 0
    s_cselect_b32 s{sSW}, 1280, 0
    s_lshl_b32 s{sT}, 160, s{S_MODE}
    s_mul_i32 s{sT}, s{sT}, s{S_G}
    s_add_u32 s{sSW}, s{sSW}, s{sT}
    s_mul_i32 s{sT}, s{sLW}, {16*3840}
    s_add_u32 s{sSW}, s{sSW}, s{sT}
    s_mul_i32 s{sM0W}, s{sLW}, 5120
    s_add_u32 s{sM0W}, s{sM0W}, {WBASE}
    """)
    sK = 68
    if "norot" in EX:
        a.e(f"s_mov_b32 s{sK}, 0")
    else:
        a.e(f"""
        s_and_b32 s{sT}, s{S_J}, 3
        s_lshl_b32 s{sT}, s{sT}, 2
        s_lshr_b32 s{sK}, {ROTR:#x}, s{sT}
        s_and_b32 s{sK}, s{sK}, 15
        s_and_b32 s{sT}, s{S_J}, 28
        s_lshr_b32 s{sT}, {ROTC:#x}, s{sT}
        s_and_b32 s{sT}, s{sT}, 15
        s_add_u32 s{sK}, s{sK}, s{sT}
        s_cmp_ge_u32 s{sK}, 10
        s_cselect_b32 s{sT}, 10, 0
        s_sub_u32 s{sK}, s{sK}, s{sT}
        s_lshl_b32 s{sT}, s{sK}, 7
        s_add_u32 s{sSX}, s{sSX}, s{sT}
        s_mul_i32 s{sT}, s{sK}, {64*3840}
        s_add_u32 s{sSW}, s{sSW}, s{sT}
        """)
    for x in range(320): assert (x * 3277) >> 16 == x // 20
    for x in range(20): assert (x * 52) >> 8 == x // 5
    for j in range(5):
        sub = 1024 * j if j < 4 else 0
        a.e(f"""
        v_add_u32 v{t0}, {64*j}, v{L}
        v_mul_u32_u24 v{t1}, 3277, v{t0}
        v_lshrrev_b32 v{t1}, 16, v{t1}
        v_mul_u32_u24 v{t2}, 20, v{t1}
        v_sub_u32 v{t0}, v{t0}, v{t2}
        v_lshrrev_b32 v{t2}, 2, v{t1}
        v_and_b32 v{t2}, 2, v{t2}
        v_xor_b32 v{t0}, v{t0}, v{t2}
        v_mul_u32_u24 v{t2}, 52, v{t0}
        v_lshlrev_b32 v{t0}, 4, v{t0}
        v_bfe_u32 v{t3}, v{t2}, 8, 1
        v_mad_u32_u24 v{t0}, v{t3}, s{sC1}, v{t0}
        v_lshrrev_b32 v{t3}, 9, v{t2}
        v_mul_u32_u24 v{t3}, s{sC2}, v{t3}
        v_sub_u32 v{t0}, v{t0}, v{t3}
        v_mul_u32_u24 v{t1}, 3840, v{t1}
        v_add_u32 v{t0}, v{t0}, v{t1}
        v_subrev_u32 v{vw[j]}, {sub}, v{t0}
        """)
    a.e("s_waitcnt lgkmcnt(0)")
    mk_srd(a, SRD_A, P_X, 2048 * 1280)
    mk_srd(a, SRD_B, P_W, 640 * 3840)
    a.e(f"s_mov_b32 s70, {-9*64*3840}\n s_mov_b32 s71, {64*3840}\n s_mov_b32 s72, 128")
    def issue_x(st):
        if "nodma" in EX: return []
        out = [f"s_add_u32 m0, s{sM0X}, {(st % NST) * XST}", "s_nop 0"]
        for j in range(4):
            out.append(f"buffer_load_dwordx4 v{vx[j]}, {srd(SRD_A)}, s{sSX} offen offset:{1024*j} {XW} lds")
        return out
    def issue_w(st):
        if "nodma" in EX: return []
        out = [f"s_add_u32 m0, s{sM0W}, {(st % NST) * WST}", "s_nop 0"]
        for j in range(4):
            out.append(f"buffer_load_dwordx4 v{vw[j]}, {srd(SRD_B)}, s{sSW} offen offset:{1024*j} {XW} lds")
        out += [f"s_add_u32 m0, s{sM0W}, {(st % NST) * WST + 4096}", "s_nop 0"]
        out.append(f"buffer_load_dwordx4 v{vw[4]}, {srd(SRD_B)}, s{sSW} offen {XW} lds")
        return out
    def advance():
        return [f"s_add_u32 s{sK}, s{sK}, 1", f"s_cmp_eq_u32 s{sK}, 10",
                f"s_cselect_b32 s{sT}, {-9*128}, s72", f"s_cselect_b32 s69, s70, s71",
                f"s_add_u32 s{sSX}, s{sSX}, s{sT}", f"s_add_u32 s{sSW}, s{sSW}, s69"]
    SCH = [int(c) for c in os.environ.get("SCH", "211111111")]
    assert sum(SCH) == 10
    issued = 0
    def issue_n(n):
        nonlocal issued
        for _ in range(n):
            a.e("\n".join(issue_x(issued) + issue_w(issued) + advance()))
            issued += 1
    issue_n(SCH[0])
    stamp(a, 1)
    mk_srd(a, SRD_FL, P_WS, 256 * 128, off=WS_FL)
    for i in range(4):
        a.e(f"v_mov_b32 v{z4+i}, 0")
    a.e(f"v_lshlrev_b32 v{t0}, 4, v0\n v_add_u32 v{t0}, {IMG-4096}, v{t0}")
    nb = 0
    while issued < 10:
        a.e(f"s_waitcnt vmcnt({9*(issued - 1 - nb)})\n s_barrier")
        n = SCH[nb + 1]
        assert issued + n <= nb + 4
        issue_n(n)
        nb += 1
    lc, le = a.newlab("tc"), a.newlab("te")
    a.e(f"s_cmp_lg_u32 s{S_P2}, 0\n s_cbranch_scc1 {lc}")
    mk_srd(a, SRD_A, P_WO, 640 * 1280)
    a.e(f"""
    v_min_u32 v{t1}, 39, v{L}
    v_mul_u32_u24 v{t1}, 1280, v{t1}
    s_and_b32 s{sT}, s{S_RT}, 3
    s_lshl_b32 s{sT}, s{sT}, 2
    s_add_u32 s{sT}, s{sT}, s{sLW}
    s_mul_i32 s{sT}, s{sT}, {40*1280}
    s_lshl_b32 s{sC1}, s{S_CB}, 7
    s_add_u32 s{sT}, s{sT}, s{sC1}
    buffer_load_dword v250, v{t1}, {srd(SRD_A)}, s{sT} offen
    s_branch {le}
    """)
    a.lab(lc)
    mk_srd(a, SRD_A, P_H, T_BYTES)
    a.e(f"""
    v_and_b32 v{t1}, 31, v{L}
    v_lshlrev_b32 v{t1}, 7, v{t1}
    s_add_u32 s{sC1}, s{S_CB}, s{sLW}
    s_lshl_b32 s{sSX}, s{sC1}, 12
    buffer_load_dword v250, v{t1}, {srd(SRD_A)}, s{sSX} offen
    """)
    a.lab(le)
    mk_srd(a, SRD_D, P_DBG, 256)
    a.e(f"v_and_b32 v{t2}, 7, v{L}\n v_lshlrev_b32 v{t2}, 2, v{t2}")
    a.e(f"buffer_load_dword v{t3}, v{t2}, {srd(SRD_D)}, 0 offen sc1")
    while nb < 10:
        a.e(f"s_waitcnt vmcnt({9*(9 - nb) + 2})")
        a.e("s_barrier")
        if nb == 8:
            for i in range(4):
                a.e(f"ds_write_b128 v{t0}, v[{z4}:{z4+3}] offset:{4096*i}")
        nb += 1
    if "g1only" in EX: a.e("s_branch L_FIN")
    stamp(a, 2)
    lc = a.newlab("ld_conv")
    a.e(f"s_cmp_lg_u32 s{S_P2}, 0\n s_cbranch_scc1 {lc}")
    a.e(f"""
    v_lshrrev_b32 v{t0}, 3, v{L}
    v_mul_u32_u24 v{t0}, 1280, v{t0}
    v_and_b32 v{t1}, 7, v{L}
    v_lshrrev_b32 v{t2}, 4, v{L}
    v_lshlrev_b32 v{t2}, 1, v{t2}
    v_xor_b32 v{t1}, v{t1}, v{t2}
    v_lshl_add_u32 v{vx[0]}, v{t1}, 4, v{t0}
    v_add_u32 v{vx[1]}, {1*(8*1280-1024)}, v{vx[0]}
    v_add_u32 v{vx[2]}, {2*(8*1280-1024)}, v{vx[0]}
    v_add_u32 v{vx[3]}, {3*(8*1280-1024)}, v{vx[0]}
    s_mul_i32 s{sSX}, s{sLW}, {160*1280}
    s_lshl_b32 s{sT}, s{S_CB}, 7
    s_add_u32 s{sSX}, s{sSX}, s{sT}
    s_mul_i32 s{sM0X}, s{sLW}, 20480
    s_waitcnt lgkmcnt(0)
    s_barrier
    """)
    for q in range(5):
        a.e(f"s_add_u32 m0, s{sM0X}, {4096*q}\n s_nop 0")
        for j in range(4):
            a.e(f"buffer_load_dwordx4 v{vx[j]}, {srd(SRD_A)}, s{sSX} offen offset:{1024*j} lds")
        a.e(f"s_add_u32 s{sSX}, s{sSX}, {32*1280}")
    zok = a.newlab("zok")
    a.e(f"s_waitcnt vmcnt(20)\n v_cmp_ne_u32 vcc, 1, v{t3}\n s_nop 1\n s_cmp_eq_u64 vcc, 0\n s_cbranch_scc1 {zok}")
    poll_z(a, t1, t2)
    a.lab(zok)
    stamp(a, 3)
    a.e("s_barrier")
    a.e(f"s_cmp_lg_u32 s{S_MODE}, 0\n s_cbranch_scc1 L_G2\n s_barrier\n s_branch L_G2")
    a.lab(lc)
    H = ra.a(16, 4); G = ra.a(20, 4)
    a.e(f"v_lshlrev_b32 v{t0}, 4, v{L}")
    h_load(a, H, t0, SRD_A, sSX)
    a.e("s_waitcnt lgkmcnt(0)\n s_barrier\n s_waitcnt vmcnt(0)")
    h_stage(a, H, G, sLW, t0, t1, sC1)
    zok = a.newlab("zok")
    a.e(f"v_cmp_ne_u32 vcc, 1, v{t3}\n s_nop 1\n s_cmp_eq_u64 vcc, 0\n s_cbranch_scc1 {zok}")
    poll_z(a, t1, t2)
    a.lab(zok)
    stamp(a, 3)
    a.e("s_waitcnt lgkmcnt(0)\n s_barrier\n s_branch L_CONV")

def phi4(regs, tmps, sLOG, sEPS):
    o = []
    for r, t in zip(regs, tmps): o.append(f"v_mul_f32 v{t}, s{sLOG}, v{r}")
    for r, t in zip(regs, tmps): o.append(f"v_exp_f32_e64 v{t}, v{t} clamp")
    for r, t in zip(regs, tmps): o.append(f"v_max_f32 v{r}, s{sEPS}, v{r}")
    for r, t in zip(regs, tmps): o.append(f"v_add_f32 v{r}, v{r}, v{t}")
    return o

def g1_init(a):
    a.e("s_waitcnt lgkmcnt(0)")
    mk_srd(a, SRD_FL, P_WS, 256 * 128, off=WS_FL)

def g1_compute(a, mode):
    ra = RA(2)
    lr, g, t0, t1, t2 = [ra.a() for _ in range(5)]
    xa = [ra.a(), ra.a()]
    wa = [[ra.a() for _ in range(5)] for _ in range(2)]
    aMain, aExtA, aExtB = ra.a(), ra.a(), ra.a()
    ie = ra.a(4, 4); ix = ra.a(4, 4)
    XF = [[ra.a(4, 4) for _ in range(4)] for _ in range(2)]
    WF = [[ra.a(4, 4) for _ in range(5)] for _ in range(2)]
    ACC = [[ra.a(4, 4) for _ in range(5)] for _ in range(4)]
    sRH, sCH, sT, sLOG, sEPS, sSO = 60, 61, 62, 63, 64, 65
    a.c("G1 compute wave mode %d" % mode)
    if mode == 1:
        conv_sload(a)
        nz = a.newlab("nozero")
        a.e(f"s_lshl_b32 s{sT}, s{S_WAVE}, 8\n s_or_b32 s{sT}, s{sT}, s{S_J}\n s_cmp_lg_u32 s{sT}, 16\n s_cbranch_scc1 {nz}")
        a.e(f"s_mul_i32 s{sT}, s{S_XI}, 7040\n s_add_u32 s{sT}, s{sT}, {WS_KV}")
        mk_srd(a, SRD_C, P_WS, 7040, off_sreg=sT)
        mk_srd(a, SRD_D, P_DBG, 256)
        for i in range(4): a.e(f"v_mov_b32 v{ie+i}, 0")
        a.e(f"""
        v_lshlrev_b32 v{t0}, 4, v{L}
        v_and_b32 v{t1}, 31, v{L}
        v_lshlrev_b32 v{t1}, 7, v{t1}
        s_lshl_b32 s{sT}, s{S_XI}, 12
        buffer_store_dword v{ie}, v{t1}, {srd(SRD_FL)}, s{sT} offen sc1
        s_movk_i32 s{sT}, 4096
        """)
        for n in range(7):
            a.e(f"buffer_store_dwordx4 {v(ie,4)}, v{t0}, {srd(SRD_C)}, {'s%d' % sT if n >= 4 else '0'} offen offset:{1024*(n&3)} sc1")
        a.e(f"""
        s_lshl_b32 s{sT}, s{S_XI}, 2
        v_mov_b32 v{t1}, 1
        s_waitcnt vmcnt(0)
        s_mov_b64 exec, 1
        buffer_store_dword v{t1}, v{t0}, {srd(SRD_D)}, s{sT} offen sc1
        s_mov_b64 exec, -1
        """)
        a.lab(nz)
    a.e(f"""
    s_lshr_b32 s{sRH}, s{S_WAVE}, 1
    s_and_b32 s{sCH}, s{S_WAVE}, 1
    s_mov_b32 s{sLOG}, {f32(1.4426950408889634)}
    s_mov_b32 s{sEPS}, {f32(1e-6)}
    v_and_b32 v{lr}, 15, v{L}
    v_lshrrev_b32 v{g}, 4, v{L}
    s_lshl_b32 s{sT}, s{sRH}, 13
    v_lshrrev_b32 v{t0}, 1, v{lr}
    v_xor_b32 v{t0}, v{t0}, v{g}
    v_lshlrev_b32 v{t0}, 4, v{t0}
    v_lshl_add_u32 v{t0}, v{lr}, 7, v{t0}
    v_add_u32 v{xa[0]}, s{sT}, v{t0}
    v_xor_b32 v{xa[1]}, 64, v{xa[0]}
    v_lshrrev_b32 v{t0}, 2, v{lr}
    v_lshl_add_u32 v{t0}, v{g}, 3, v{t0}
    v_mul_u32_u24 v{t0}, 320, v{t0}
    v_add_u32 v{t0}, {WBASE}, v{t0}
    v_and_b32 v{t1}, 1, v{g}
    v_lshlrev_b32 v{t1}, 5, v{t1}
    s_mul_i32 s{sT}, s{sCH}, 160
    v_and_b32 v{t2}, 3, v{lr}
    """)
    for t in range(5):
        w = wa[0][t]
        if t < 4:
            a.e(f"v_lshl_add_u32 v{w}, v{t2}, 3, s{sT}\n v_add_u32 v{w}, {40*t}, v{w}")
        else:
            a.e(f"v_mul_u32_u24 v{w}, 40, v{t2}\n v_add_u32 v{w}, s{sT}, v{w}\n v_add_u32 v{w}, 32, v{w}")
        a.e(f"v_xor_b32 v{w}, v{w}, v{t1}\n v_add_u32 v{w}, v{w}, v{t0}\n v_add_u32 v{wa[1][t]}, 10240, v{w}")
    for i in range(4):
        a.e(f"v_mov_b32 v{ie+i}, s{sEPS}")
    if mode == 0:
        a.e(f"v_cmp_gt_u32 vcc, 8, v{lr}")
        a.e(f"""
        s_mul_i32 s{sT}, s{sRH}, {IMGP}
        s_mul_i32 s{sSO}, s{sCH}, 3520
        s_add_u32 s{sT}, s{sT}, s{sSO}
        s_add_u32 s{sT}, s{sT}, {IMG}
        """)
        for i in range(4):
            a.e(f"v_cndmask_b32 v{ix+i}, 0, v{ie}, vcc")
        a.e(f"""
        v_mul_u32_u24 v{aMain}, 80, v{lr}
        v_lshl_add_u32 v{aMain}, v{g}, 4, v{aMain}
        v_add_u32 v{aMain}, s{sT}, v{aMain}
        v_cmp_eq_u32 vcc, 0, v{lr}
        v_mov_b32 v{t0}, 640
        v_mov_b32 v{t1}, 1600
        v_mov_b32 v{t2}, 320
        v_cndmask_b32 v{t0}, v{t0}, v{t1}, vcc
        v_cndmask_b32 v{t2}, v{t2}, v{t1}, vcc
        v_add_u32 v{aExtA}, v{aMain}, v{t0}
        v_add_u32 v{aExtB}, v{aMain}, v{t2}
        s_mul_i32 s{sT}, s{S_G}, 7040
        s_add_u32 s{sT}, s{sT}, {WS_KV}
        """)
        mk_srd(a, SRD_C, P_WS, 7040, off_sreg=sT)
    else:
        a.e(f"""
        v_lshlrev_b32 v{aMain}, 4, v{L}
        v_lshlrev_b32 v{aExtA}, 3, v{L}
        s_lshl_b32 s{sT}, s{S_RT}, 3
        s_lshl_b32 s{sSO}, s{sRH}, 2
        s_add_u32 s{sT}, s{sT}, s{sSO}
        s_lshl_b32 s{sT}, s{sT}, 3
        s_lshl_b32 s{sSO}, s{S_G}, 1
        s_add_u32 s{sT}, s{sT}, s{sSO}
        s_add_u32 s{sT}, s{sT}, s{sCH}
        s_mul_i32 s{sSO}, s{sT}, 2560
        """)
        mk_srd(a, SRD_C, P_WS, T_BYTES, off=WS_PQ)
    def reads(st, ks):
        sl = st % NST
        xs = [f"ds_read_b128 v[{XF[ks][rt]}:{XF[ks][rt]+3}], v{xa[ks]} offset:{sl*XST + rt*2048}" for rt in range(4)]
        ws = []
        for t in range(5):
            for h in range(2):
                ws.append(f"ds_read_b64_tr_b16 v[{WF[ks][t]+2*h}:{WF[ks][t]+2*h+1}], v{wa[ks][t]} offset:{sl*WST + h*1280}")
        if "noreads" in EX: return []
        if "notr" in EX: return xs
        if "nox" in EX: return ws
        return xs + ws
    def mfmas(ks, first=False):
        o = []
        for rt in range(4):
            for t in range(5):
                d = ACC[rt][t]
                c = v(d, 4)
                if first:
                    if mode == 1 or t < 2: c = v(ie, 4)
                    elif t == 4: c = v(ix, 4)
                    else: c = "0"
                x, w = v(XF[ks][rt], 4), v(WF[ks][t], 4)
                A_, B_ = (x, w) if mode == 0 else (w, x)
                o.append(f"v_mfma_f32_16x16x32_bf16 {v(d,4)}, {A_}, {B_}, {c}")
        return o
    for st in range(10):
        a.c(f"step {st}")
        a.e("s_barrier")
        if "g1only" in EX:
            if "few" not in EX or st in (1, 9): stamp(a, 1 + st)
        elif st in (0, 5): stamp(a, {0: 1, 5: 2}[st])
        if st == 0:
            a.e("\n".join(reads(0, 0)))
        else:
            a.e("\n".join(interleave2(mfmas(1), reads(st, 0), RPG)))
        a.e("s_waitcnt lgkmcnt(0)")
        a.e("\n".join(interleave2(mfmas(0, first=(st == 0)), reads(st, 1), RPG)))
        a.e("s_waitcnt lgkmcnt(0)")
    if "g1only" in EX: a.e("s_branch L_FIN")
    a.e("s_barrier")
    a.e("\n".join(mfmas(1)))
    stamp(a, 3)
    fr = XF[0][0]
    assert WF[1][4] + 4 - fr == 72
    tm = [ie, ie + 1, ie + 2, ie + 3]
    if mode == 1:
        order = [0, 4, 1, 2, 3]
        for rt in range(4):
            ob = fr + 12 * rt
            for pos, t in enumerate(order):
                r = [ACC[rt][t] + i for i in range(4)]
                a.e("\n".join(phi4(r, tm, sLOG, sEPS)))
                a.e(f"v_cvt_pk_bf16_f32 v{ob+2*pos}, v{r[0]}, v{r[1]}")
                a.e(f"v_cvt_pk_bf16_f32 v{ob+2*pos+1}, v{r[2]}, v{r[3]}")
            a.e(f"""
            buffer_store_dwordx4 v[{ob}:{ob+3}], v{aMain}, {srd(SRD_C)}, s{sSO} offen sc1
            buffer_store_dwordx4 v[{ob+4}:{ob+7}], v{aMain}, {srd(SRD_C)}, s{sSO} offen offset:1024 sc1
            buffer_store_dwordx2 v[{ob+8}:{ob+9}], v{aExtA}, {srd(SRD_C)}, s{sSO} offen offset:2048 sc1
            s_add_u32 s{sSO}, s{sSO}, {8*2560}
            """)
        stamp(a, 4)
        a.e("s_waitcnt vmcnt(0)\n s_barrier")
        set_flag(a, t0, t1)
        a.e("s_branch L_PHASE2")
    else:
        P = {n: [fr + (i * 2 + k) * 4 for k in range(2)] for i, n in enumerate(["T0", "T1", "T2", "T3", "T4A", "T4B"])}
        a.e(f"v_cmp_gt_u32 vcc, 8, v{lr}\n v_mov_b32 v{t0}, 0x3f803f80")
        for rt in range(4):
            k, h = rt >> 1, rt & 1
            for t, n in ((2, "T2"), (3, "T3"), (4, "T4B")):
                r = ACC[rt][t]; d = P[n][k] + 2 * h
                a.e(f"v_cvt_pk_bf16_f32 v{d}, v{r}, v{r+1}\n v_cvt_pk_bf16_f32 v{d+1}, v{r+2}, v{r+3}")
            d = P["T4B"][k] + 2 * h
            a.e(f"v_cndmask_b32 v{d}, v{d}, v{t0}, vcc\n v_cndmask_b32 v{d+1}, v{d+1}, v{t0}, vcc")
            for t, n in ((0, "T0"), (1, "T1"), (4, "T4A")):
                r = [ACC[rt][t] + i for i in range(4)]; d = P[n][k] + 2 * h
                a.e("\n".join(phi4(r, tm, sLOG, sEPS)))
                a.e(f"v_cvt_pk_bf16_f32 v{d}, v{r[0]}, v{r[1]}\n v_cvt_pk_bf16_f32 v{d+1}, v{r[2]}, v{r[3]}")
        prods = [("T0", "T2"), ("T0", "T4B"), ("T4A", "T2"), ("T1", "T3"), ("T1", "T4B"), ("T4A", "T3"), ("T4A", "T4B")]
        R = [ACC[0][0] + 4 * i for i in range(7)]
        a.e("s_nop 1")
        for k in range(2):
            for i, (x, y) in enumerate(prods):
                c = "0" if k == 0 else v(R[i], 4)
                a.e(f"v_mfma_f32_16x16x32_bf16 {v(R[i],4)}, {v(P[x][k],4)}, {v(P[y][k],4)}, {c}")
        a.e(f"v_lshlrev_b32 v{t0}, 2, v0\n v_add_u32 v{t1}, {IMG}, v{t0}\n v_add_u32 v{t2}, 4096, v{t0}\n s_nop 4")
        def wr(i, addr, off, lo, hi):
            a.e(f"s_mov_b32 exec_lo, {lo:#x}\n s_mov_b32 exec_hi, {hi:#x}")
            a.e(f"ds_write_b128 v{addr}, {v(R[i],4)} offset:{off}")
        a.e(f"ds_write_b128 v{aMain}, {v(R[0],4)}")
        a.e(f"ds_write_b128 v{aMain}, {v(R[3],4)} offset:1760")
        wr(1, aExtA, 0, 0x0f010f01, 0x0f010f01)
        wr(4, aExtB, 1760, 0xf001f001, 0xf001f001)
        wr(2, aMain, 64, 0x0000ffff, 0)
        wr(5, aMain, 1760 + 48, 0xffff0000, 0)
        wr(6, aExtA, 64, 0x00000f01, 0)
        wr(6, aExtB, 1760 + 48, 0xf0010000, 0)
        a.e("s_mov_b64 exec, -1")
        stamp(a, 4)
        a.e("s_waitcnt lgkmcnt(0)\n s_barrier")
        for n in range(7):
            a.e(f"ds_read2st64_b32 v[{fr+2*n}:{fr+2*n+1}], v{t1} offset0:{4*n} offset1:{28+4*n}")
        for n in range(7):
            a.e(f"s_waitcnt lgkmcnt({6-n})")
            a.e(f"v_add_f32 v{fr+2*n}, v{fr+2*n}, v{fr+2*n+1}")
            a.e(f"buffer_atomic_add_f32 v{fr+2*n}, v{t0 if n < 4 else t2}, {srd(SRD_C)}, 0 offen offset:{1024*(n&3)}")
        a.e("s_waitcnt vmcnt(0)\n s_barrier")
        set_flag(a, t0, t1)
        a.e("s_branch L_PHASE2")
    return ra.hi

def a1(a):
    ra = RA(2)
    t0, t1, t2, t3 = [ra.a() for _ in range(4)]
    vo = [ra.a() for _ in range(5)]
    lr, g, base, baseh, phi, phih, ad, adh, so_u, otap = [ra.a() for _ in range(10)]
    KB, VB = 5120, 5120 + 40960
    assert VB + 40960 <= HB
    sTI, sCH, sSO, sM0, sT, sSH, sCG, sU = 60, 61, 62, 63, 64, 65, 66, 67
    NB = 2048 * 1280
    a.c("A1")
    if "noa1" in EX: a.e("s_waitcnt lgkmcnt(0)\n s_branch L_FIN")
    a.e(f"""
    s_lshr_b32 s{sTI}, s{S_RT}, 1
    s_and_b32 s{sCH}, s{S_RT}, 1
    s_lshl_b32 s{sT}, s{sTI}, 3
    s_add_u32 s{sT}, s{sT}, s{S_WAVE}
    s_mul_i32 s{sSO}, s{sT}, {8*1280}
    s_mul_i32 s{sT}, s{sCH}, 640
    s_add_u32 s{sSO}, s{sSO}, s{sT}
    s_mul_i32 s{sM0}, s{S_WAVE}, 5120
    s_and_b32 s{sT}, s{S_WAVE}, 1
    s_lshl_b32 s{sT}, s{sT}, 2
    """)
    for x in range(320): assert (x * 1639) >> 16 == x // 40
    for j in range(5):
        sub = 1024 * j if j < 4 else 0
        a.e(f"""
        v_add_u32 v{t0}, {64*j}, v{L}
        v_mul_u32_u24 v{t1}, 1639, v{t0}
        v_lshrrev_b32 v{t1}, 16, v{t1}
        v_mul_u32_u24 v{t2}, 40, v{t1}
        v_sub_u32 v{t0}, v{t0}, v{t2}
        v_and_b32 v{t2}, 2, v{t1}
        v_or_b32 v{t2}, s{sT}, v{t2}
        v_xor_b32 v{t0}, v{t0}, v{t2}
        v_lshlrev_b32 v{t0}, 4, v{t0}
        v_mul_u32_u24 v{t1}, 1280, v{t1}
        v_add_u32 v{t0}, v{t0}, v{t1}
        v_subrev_u32 v{vo[j]}, {sub}, v{t0}
        """)
    a.e(f"""
    v_and_b32 v{lr}, 15, v{L}
    s_mul_i32 s{sT}, s{sCH}, 320
    v_add_u32 v{so_u}, s{sT}, v{lr}
    v_lshlrev_b32 v{otap}, 3, v{so_u}
    v_lshlrev_b32 v{t3}, 4, v{L}
    s_waitcnt lgkmcnt(0)
    """)
    mk_srd(a, SRD_A, P_K, NB); mk_srd(a, SRD_B, P_V, NB); mk_srd(a, SRD_D, P_SH, 640 * 8)
    def dma(srdn, lbase, so, js=range(5)):
        o = []; first = True
        for j in js:
            if first and j < 4:
                o += [f"s_add_u32 m0, s{sM0}, {lbase}", "s_nop 0"]; first = False
            if j == 4:
                o += [f"s_add_u32 m0, s{sM0}, {lbase+4096}", "s_nop 0"]
            off = f" offset:{1024*j}" if 0 < j < 4 else ""
            o.append(f"buffer_load_dwordx4 v{vo[j]}, {srd(srdn)}, s{so} offen{off} nt lds")
        return o
    taps = [ra.a(2) for _ in range(5)]
    a.e(f"s_lshr_b32 s{sCG}, s{S_WAVE}, 1\n s_lshl_b32 s{sT}, s{sCG}, 7")
    for n in range(5):
        a.e(f"buffer_load_dwordx2 v[{taps[n]}:{taps[n]+1}], v{otap}, {srd(SRD_D)}, s{sT} offen offset:{512*n}")
    lab = a.newlab("a1_nohalo")
    a.e(f"""
    s_cmp_lg_u32 s{S_WAVE}, 7
    s_cbranch_scc1 {lab}
    s_sub_u32 s{sSH}, s{sSO}, {64*1280}
    s_cmp_eq_u32 s{sTI}, 0
    s_cselect_b32 s{sSH}, {NB}, s{sSH}
    """)
    a.e("\n".join(dma(SRD_A, KB - 8 * 5120, sSH, js=(2, 3, 4))))
    a.lab(lab)
    a.e("\n".join(dma(SRD_A, KB, sSO)))
    a.e("\n".join(dma(SRD_B, VB, sSO)))
    mk_srd(a, SRD_C, P_WS, T_BYTES)
    mk_srd(a, SRD_FL, P_WS, 256 * 128, off=WS_FL)
    a.e(f"""
    v_lshrrev_b32 v{g}, 4, v{L}
    v_lshrrev_b32 v{t0}, 2, v{lr}
    v_lshl_add_u32 v{t1}, v{g}, 3, v{t0}
    v_mul_u32_u24 v{base}, 640, v{t1}
    v_and_b32 v{t2}, 3, v{lr}
    v_lshl_add_u32 v{base}, v{t2}, 3, v{base}
    s_and_b32 s{sT}, s{S_WAVE}, 1
    s_mul_i32 s{sU}, s{sT}, {32*640}
    s_add_u32 s{sU}, s{sU}, {KB}
    v_add_u32 v{base}, s{sU}, v{base}
    v_lshrrev_b32 v{t0}, 1, v{t0}
    v_and_b32 v{t1}, 1, v{g}
    v_lshl_or_b32 v{phi}, v{t1}, 1, v{t0}
    v_xor_b32 v{phi}, s{sCG}, v{phi}
    v_lshlrev_b32 v{phi}, 5, v{phi}
    v_xor_b32 v{phih}, 64, v{phi}
    v_add_u32 v{ad}, v{phi}, v{base}
    v_add_u32 v{adh}, v{phih}, v{base}
    v_subrev_u32 v{adh}, {4*640}, v{adh}
    v_lshlrev_b32 v{t0}, 12, v{so_u}
    s_lshl_b32 s{sT}, s{sT}, 6
    s_lshl_b32 s{sU}, s{sTI}, 7
    s_add_u32 s{sT}, s{sT}, s{sU}
    v_lshlrev_b32 v{t1}, 4, v{g}
    v_add_u32 v{t1}, s{sT}, v{t1}
    v_sub_u32 v{so_u}, 4080, v{t1}
    v_add_u32 v{so_u}, v{so_u}, v{t0}
    s_add_u32 s{sSH}, s{S_CB}, s{S_WAVE}
    s_lshl_b32 s{sU}, s{sCG}, 16
    s_lshl_b32 s{sT}, s{sSH}, 12
    """)
    mk_srd(a, SRD_A, P_H, T_BYTES)
    H = ra.a(16, 4); G = ra.a(20, 4)
    a.e("s_barrier")
    h_load(a, H, t3, SRD_A, sT)
    conv_sload(a)
    KR = [ra.a(6, 2) for _ in range(5)]; VR = [ra.a(4, 2) for _ in range(5)]
    W = [ra.a(5) for _ in range(5)]; U = ra.a(8); O = [ra.a(4, 4) for _ in range(2)]; X = ra.a(4)
    a.e("s_waitcnt vmcnt(14)")
    for n in range(5):
        tp, w = taps[n], W[n]
        a.e(f"""
        v_alignbit_b32 v{w}, v{tp}, v{tp}, 16
        v_alignbit_b32 v{w+1}, v{tp+1}, v{tp+1}, 16
        v_and_b32 v{w+2}, 0xffff0000, v{tp}
        v_and_b32 v{w+3}, 0xffff, v{tp}
        v_and_b32 v{w+4}, 0xffff, v{tp+1}
        v_or_b32 v{w+2}, v{w+2}, v{w+4}
        v_and_b32 v{w+4}, 0xffff0000, v{tp+1}
        """)
    stamp(a, 1)
    a.e("s_waitcnt vmcnt(4) lgkmcnt(0)\n s_barrier")
    stamp(a, 2)
    if "g1only" in EX: a.e("s_branch L_FIN")
    if STAMPS: a.e("s_waitcnt lgkmcnt(0)")
    def rd(n):
        o = 128 * n
        return [f"ds_read_b64_tr_b16 {v(KR[n],2)}, v{adh} offset:{o}",
                f"ds_read_b64_tr_b16 {v(KR[n]+2,2)}, v{ad} offset:{o}",
                f"ds_read_b64_tr_b16 {v(KR[n]+4,2)}, v{ad} offset:{o+2560}",
                f"ds_read_b64_tr_b16 {v(VR[n],2)}, v{ad} offset:{VB-KB+o}",
                f"ds_read_b64_tr_b16 {v(VR[n]+2,2)}, v{ad} offset:{VB-KB+o+2560}"]
    a.e("\n".join(rd(0) + rd(1) + rd(2)))
    for n in range(5):
        k, w, ob = KR[n], W[n], O[n & 1]
        rem = min(4, n + 2) - n
        a.e(f"s_waitcnt lgkmcnt({5*rem})")
        if n + 3 < 5:
            a.e("\n".join(rd(n + 3)))
        for m in range(4):
            a.e(f"v_dot2_f32_bf16 v{U+2*m}, v{k+m}, v{w+4}, 0")
            a.e(f"v_dot2_f32_bf16 v{U+2*m+1}, v{k+m+1}, v{w+1}, 0")
        for m in range(4):
            a.e(f"v_dot2_f32_bf16 v{U+2*m}, v{k+m+1}, v{w+2}, v{U+2*m}")
            a.e(f"v_dot2_f32_bf16 v{U+2*m+1}, v{k+m+2}, v{w}, v{U+2*m+1}")
        for m in range(4):
            a.e(f"v_dot2_f32_bf16 v{U+2*m}, v{k+m+2}, v{w+3}, v{U+2*m}")
        for m in range(4):
            x = X + 2 * (m & 1)
            a.e(f"""
            v_lshlrev_b32 v{x}, 16, v{VR[n]+m}
            v_and_b32 v{x+1}, 0xffff0000, v{VR[n]+m}
            v_mul_f32 v{x+1}, v{x+1}, v{U+2*m+1}
            v_mul_f32 v{x}, v{x}, v{U+2*m}
            v_cvt_pk_bf16_f32 v{ob+3-m}, v{x+1}, v{x}
            """)
        a.e(f"buffer_store_dwordx4 {v(ob,4)}, v{so_u}, {srd(SRD_C)}, s{sU} offen sc1")
        if n < 4: a.e(f"s_add_u32 s{sU}, s{sU}, {4<<16}")
    stamp(a, 3)
    a.e("s_waitcnt vmcnt(5)")
    h_stage(a, H, G, S_WAVE, t3, t2, sT)
    nz = a.newlab("a1_nz")
    a.e(f"s_cmp_lg_u32 s{S_WAVE}, 0\n s_cbranch_scc1 {nz}")
    poll_z(a, t0, t1)
    a.lab(nz)
    a.e("s_waitcnt vmcnt(0)\n s_barrier")
    stamp(a, 4)
    set_flag(a, t0, t1)
    return ra.hi

def conv(a):
    ra = RA(2)
    lr, g, t0, t1, t2, aB, aT, vrow = [ra.a() for _ in range(8)]
    aA = [ra.a() for _ in range(4)]
    z4 = ra.a(4, 4); o4 = ra.a(4, 4); AD = ra.a(4, 4)
    Q = ra.a(16, 4)
    AF = [[ra.a(4, 4) for _ in range(8)] for _ in range(2)]
    BF = [[ra.a(4, 4) for _ in range(8)] for _ in range(2)]
    ACC = [ra.a(4, 4) for _ in range(8)]
    sD, sR, sSO, sT, sH0, sDV, sH, sQO = 60, 61, 62, 63, 64, 65, 66, 67
    fin, idle = a.newlab("conv_fin"), a.newlab("conv_idle")
    a.c("conv")
    mk_srd(a, SRD_A, P_WS, T_BYTES); mk_srd(a, SRD_B, P_Q, 2048 * 1280); mk_srd(a, SRD_C, P_OUT, 2048 * 2560)
    def qtouch():
        a.e(f"""
        s_cmp_eq_u32 s{S_P2}, 8
        s_cselect_b32 s68, 63, 31
        s_cselect_b32 s69, 31, 63
        s_and_b32 s{sT}, s{S_J}, 7
        s_lshl_b32 s{sT}, s{sT}, 3
        s_add_u32 s{sT}, s{sT}, s{S_WAVE}
        s_and_b32 s{sT}, s{sT}, s68
        s_add_u32 s70, s69, 1
        s_mul_i32 s{sT}, s{sT}, s70
        s_mul_i32 s{sT}, s{sT}, 1280
        s_lshl_b32 s70, s{S_CB}, 1
        s_add_u32 s{sT}, s{sT}, s70
        v_and_b32 v{t2}, s69, v{L}
        v_mul_u32_u24 v{t2}, 1280, v{t2}
        buffer_load_dword v250, v{t2}, {srd(SRD_B)}, s{sT} offen nt
        """)
    def qgather(ns):
        for n in ns:
            l8, le = a.newlab("q8"), a.newlab("qe")
            a.e(f"""
            s_add_u32 s{sT}, s{sQO}, {n*64*1280}
            s_cmp_eq_u32 s{S_P2}, 8
            s_cbranch_scc1 {l8}
            buffer_load_dwordx2 {v(Q+4*n,2)}, v{vrow}, {srd(SRD_B)}, s{sT} offen
            s_branch {le}
            """)
            a.lab(l8)
            a.e(f"buffer_load_dwordx4 {v(Q+4*n,4)}, v{vrow}, {srd(SRD_B)}, s{sT} offen nt")
            a.lab(le)
    a.e(f"""
    v_and_b32 v{lr}, 15, v{L}
    v_lshrrev_b32 v{g}, 4, v{L}
    v_mul_u32_u24 v{vrow}, 1280, v{L}
    s_mul_i32 s{sQO}, s{S_WAVE}, {256*1280}
    s_lshl_b32 s{sT}, s{S_CB}, 1
    s_add_u32 s{sQO}, s{sQO}, s{sT}
    s_cmp_ge_u32 s{S_WAVE}, s{S_P2}
    s_cbranch_scc1 {idle}
    s_add_u32 s{sD}, s{S_CB}, s{S_WAVE}
    s_lshl_b32 s{sSO}, s{sD}, 12
    s_mul_i32 s{sR}, s{S_WAVE}, {UP}
    s_mul_i32 s{sH}, s{S_WAVE}, {HP}
    s_add_u32 s{sH}, s{sH}, {HB}
    s_cmp_ge_u32 s{sD}, 320
    s_cselect_b32 s{sT}, 32, 0
    s_add_u32 s{sT}, s{sT}, 192
    v_and_b32 v{t0}, 31, v{L}
    v_add_u32 v{t0}, s{sT}, v{t0}
    v_lshlrev_b32 v{aB}, 7, v{t0}
    """)
    for i in range(4):
        a.e(f"v_mov_b32 v{z4+i}, 0")
    a.e(f"""
    v_and_b32 v{t1}, 1, v{lr}
    v_cmp_eq_u32 vcc, 1, v{t1}
    v_mov_b32 v{t1}, {H_O}
    v_mov_b32 v{t2}, 2
    v_cndmask_b32 v{t1}, v{t1}, v{t2}, vcc
    v_lshl_add_u32 v{t1}, v{lr}, 1, v{t1}
    v_lshl_add_u32 v{t1}, v{g}, 4, v{t1}
    v_add_u32 v{aA[0]}, s{sH}, v{t1}
    v_add_u32 v{aA[1]}, 1024, v{aA[0]}
    v_add_u32 v{aA[2]}, 2048, v{aA[0]}
    v_add_u32 v{aA[3]}, 3072, v{aA[0]}
    v_lshlrev_b32 v{t0}, 4, v{L}
    v_add_u32 v{aT}, s{sR}, v{t0}
    s_and_b32 s{sT}, s{sD}, 1
    s_lshl_b32 s{sT}, s{sT}, 4
    s_lshr_b32 s{sDV}, s5, s{sT}
    s_and_b32 s{sDV}, s{sDV}, 0xffff
    s_mov_b32 exec_lo, -1
    s_mov_b32 exec_hi, 0
    ds_write_b128 v{aT}, v[{z4}:{z4+3}] offset:4096
    s_mov_b64 exec, -1
    v_lshl_add_u32 v{t1}, v{g}, 3, v{lr}
    v_sub_u32 v{t1}, 15, v{t1}
    v_and_b32 v{t2}, 1, v{t1}
    v_lshlrev_b32 v{t2}, 4, v{t2}
    v_lshlrev_b32 v{t2}, v{t2}, s{sDV}
    v_ashrrev_i32 v{t1}, 1, v{t1}
    """)
    for r in range(4):
        a.e(f"v_cmp_eq_u32 vcc, {r}, v{t1}\n s_nop 1\n v_cndmask_b32 v{AD+r}, 0, v{t2}, vcc")
    stamp(a, 5)
    poll(a, SRD_FL, [aB], [t1])
    stamp(a, 6)
    UR = AF[1][0]
    for j in range(4):
        a.e(f"buffer_load_dwordx4 {v(UR+4*j,4)}, v{t0}, {srd(SRD_A)}, s{sSO} offen offset:{1024*j} sc1")
    for j in range(4):
        a.e(f"s_waitcnt vmcnt({3-j})\n ds_write_b128 v{aT}, {v(UR+4*j,4)} offset:{1024*j}")
    a.e(f"""
    v_lshlrev_b32 v{t1}, 5, v{lr}
    v_sub_u32 v{aB}, 480, v{t1}
    v_lshl_add_u32 v{aB}, v{g}, 4, v{aB}
    v_add_u32 v{aB}, s{sR}, v{aB}
    v_lshl_add_u32 v{aT}, v{g}, 3, v{t1}
    v_add_u32 v{aT}, s{sR}, v{aT}
    """)
    def reads(r):
        b = r & 1; o = []
        for i in range(8):
            o.append(f"ds_read_b128 {v(BF[b][i],4)}, v{aB} offset:{3584 - 512*i + 64*r}")
            o0 = 128 * (i & 1) + 16 * r
            o.append(f"ds_read2_b32 {v(AF[b][i],2)}, v{aA[i>>1]} offset0:{o0} offset1:{o0+1}")
            o.append(f"ds_read2_b32 {v(AF[b][i]+2,2)}, v{aA[i>>1]} offset0:{o0+2} offset1:{o0+3}")
        return o
    def mf(r):
        b = r & 1; o = []
        if r == 0:
            for c in range(8):
                o.append(f"v_mfma_f32_16x16x32_bf16 {v(ACC[c],4)}, {v(AD,4)}, {v(BF[b][c],4)}, 0")
        for q in range(8):
            for c in range(q, 8):
                o.append(f"v_mfma_f32_16x16x32_bf16 {v(ACC[c],4)}, {v(AF[b][q],4)}, {v(BF[b][c-q],4)}, {v(ACC[c],4)}")
        return o
    stamp(a, 7)
    a.e("s_waitcnt lgkmcnt(0)\n s_barrier")
    a.e("\n".join(reads(0)))
    qtouch()
    for r in range(8):
        a.e("s_waitcnt lgkmcnt(0)")
        if "cprio" in EX:
            a.e(f"s_setprio {3 - r // 2}")
        if 3 <= r <= 6: qgather([r - 3])
        a.e("\n".join(interleave(mf(r), reads(r + 1) if r < 7 else [])))
    stamp(a, 8)
    T = AF[0][0]
    for c in range(8):
        t = T + 2 * c
        if c == 6: a.e("s_nop 3")
        a.e(f"""
        v_cvt_pk_bf16_f32 v{t}, v{ACC[c]}, v{ACC[c]+1}
        v_cvt_pk_bf16_f32 v{t+1}, v{ACC[c]+2}, v{ACC[c]+3}
        ds_write_b64 v{aT}, v[{t}:{t+1}] offset:{512*c}
        """)
    a.e(f"s_branch {fin}")
    a.lab(idle)
    a.e("s_barrier")
    qtouch()
    a.e("s_waitcnt vmcnt(0)")
    qgather(range(4))
    a.lab(fin)
    a.e(f"""
    v_lshrrev_b32 v{t0}, 2, v{lr}
    v_mul_u32_u24 v{t0}, {UP}, v{t0}
    v_and_b32 v{t1}, 3, v{lr}
    v_lshl_add_u32 v{t0}, v{t1}, 3, v{t0}
    v_lshl_add_u32 v{t0}, v{g}, 5, v{t0}
    s_lshl_b32 s{sT}, s{S_WAVE}, 9
    v_add_u32 v{t0}, s{sT}, v{t0}
    v_lshlrev_b32 v{vrow}, 1, v{vrow}
    s_mul_i32 s{sSO}, s{S_WAVE}, {256*2560}
    s_lshl_b32 s{sT}, s{S_CB}, 1
    s_add_u32 s{sSO}, s{sSO}, s{sT}
    s_waitcnt lgkmcnt(0)
    s_barrier
    """)
    stamp(a, 9)
    Y = BF[0][0]; X = BF[1][0]
    def tail(nd):
        for n in range(4):
            for k in range(nd // 2):
                a.e(f"ds_read_b64_tr_b16 {v(Y+4*n+2*k,2)}, v{t0} offset:{128*n + 4*UP*k}")
        a.e("s_waitcnt vmcnt(0) lgkmcnt(0)")
        for n in range(4):
            for i in range(nd):
                y, q = Y + 4 * n + i, Q + 4 * n + i
                a.e(f"""
                v_lshlrev_b32 v{X}, 16, v{y}
                v_and_b32 v{X+1}, 0xffff0000, v{y}
                v_lshlrev_b32 v{X+2}, 16, v{q}
                v_and_b32 v{X+3}, 0xffff0000, v{q}
                v_mul_f32 v{X}, v{X}, v{X+2}
                v_mul_f32 v{X+1}, v{X+1}, v{X+3}
                v_cvt_pk_bf16_f32 v{y}, v{X}, v{X+1}
                """)
            a.e(f"buffer_store_dwordx{nd} {v(Y+4*n,nd)}, v{vrow}, {srd(SRD_C)}, s{sSO} offen {OST if nd == 4 else ''}")
            if n < 3: a.e(f"s_add_u32 s{sSO}, s{sSO}, {64*2560}")
    l8 = a.newlab("t8")
    a.e(f"s_cmp_eq_u32 s{S_P2}, 8\n s_cbranch_scc1 {l8}")
    tail(2)
    a.e("s_branch L_FIN")
    a.lab(l8)
    tail(4)
    a.e("s_branch L_FIN")
    return ra.hi

KVI = 81920
RED = KVI + 28672
def g2(a):
    ra = RA(2)
    lr, g, t0, t1, t2, t3 = [ra.a() for _ in range(6)]
    m0a, m1a = ra.a(), ra.a()
    x0a = [ra.a() for _ in range(4)]; x1a = [ra.a() for _ in range(4)]
    wm = [ra.a() for _ in range(4)]; wx = [ra.a() for _ in range(4)]
    v16, v8 = ra.a(), ra.a()
    ce = ra.a(4, 4)
    PQR = [[ra.a(10, 2) for _ in range(2)] for _ in range(4)]
    KF = [[ra.a(4, 4) for _ in range(2)] for _ in range(2)]
    CT = [[[ra.a(4, 4) for _ in range(2)] for _ in range(2)] for _ in range(2)]
    OPB = [[ra.a(4, 4) for _ in range(2)] for _ in range(2)]
    OX = [ra.a(4, 4) for _ in range(2)]
    XT = [ra.a() for _ in range(2)]
    rc = [ra.a() for _ in range(2)]
    WFB = [[ra.a(4, 4) for _ in range(4)] for _ in range(2)]
    WF = WFB[0]
    ACC = [[ra.a(4, 4) for _ in range(4)] for _ in range(2)]
    LD = CT[0][0][0]
    sKH, sRW, sT, sSO, sM, sU = 60, 61, 62, 63, 64, 65
    a.c("G2")
    a.e(f"""
    s_lshr_b32 s{sKH}, s{S_WAVE}, 2
    s_and_b32 s{sRW}, s{S_WAVE}, 3
    v_and_b32 v{lr}, 15, v{L}
    v_lshrrev_b32 v{g}, 4, v{L}
    v_lshlrev_b32 v{v16}, 4, v{L}
    v_lshlrev_b32 v{v8}, 3, v{L}
    s_lshl_b32 s{sT}, s{S_RT}, 2
    s_add_u32 s{sT}, s{sT}, 128
    v_and_b32 v{t0}, 3, v{L}
    v_add_u32 v{t0}, s{sT}, v{t0}
    v_lshlrev_b32 v{t0}, 7, v{t0}
    """)
    mk_srd(a, SRD_B, P_WS, T_BYTES, off=WS_PQ)
    mk_srd(a, SRD_C, P_WS, KV_BYTES, off=WS_KV); mk_srd(a, SRD_D, P_OUT, 2048 * 2560)
    stamp(a, 5)
    poll(a, SRD_FL, [t0], [t1])
    a.e(f"""
    s_lshl_b32 s{sT}, s{S_RT}, 3
    s_lshl_b32 s{sU}, s{sRW}, 1
    s_add_u32 s{sT}, s{sT}, s{sU}
    s_lshl_b32 s{sT}, s{sT}, 3
    s_lshl_b32 s{sU}, s{sKH}, 2
    s_add_u32 s{sT}, s{sT}, s{sU}
    s_mul_i32 s{sU}, s{sT}, 2560
    """)
    def pqload(p):
        for rt in range(2):
            r = PQR[p][rt]
            a.e(f"""
            s_add_u32 s{sM}, s{sU}, {(rt*8+p)*2560}
            buffer_load_dwordx4 {v(r,4)}, v{v16}, {srd(SRD_B)}, s{sM} offen sc1
            buffer_load_dwordx4 {v(r+4,4)}, v{v16}, {srd(SRD_B)}, s{sM} offen offset:1024 sc1
            buffer_load_dwordx2 {v(r+8,2)}, v{v8}, {srd(SRD_B)}, s{sM} offen offset:2048 sc1
            """)
    pqload(0)
    a.e(f"""
    s_mul_i32 s{sT}, s{sKH}, {16*880}
    s_add_u32 s{sT}, s{sT}, {KVI}
    v_mul_u32_u24 v{t0}, 40, v{lr}
    v_add_u32 v{t0}, s{sT}, v{t0}
    v_lshl_add_u32 v{m0a}, v{g}, 3, v{t0}
    v_lshrrev_b32 v{t1}, 2, v{lr}
    v_add_u32 v{t1}, 16, v{t1}
    v_and_b32 v{t2}, 3, v{lr}
    v_cmp_eq_u32 vcc, 0, v{t2}
    v_min_u32 v{t2}, 2, v{t2}
    v_add_u32 v{t2}, 19, v{t2}
    v_cndmask_b32 v{t1}, v{t2}, v{t1}, vcc
    v_mul_u32_u24 v{t1}, 40, v{t1}
    v_add_u32 v{t1}, s{sT}, v{t1}
    v_lshl_add_u32 v{m1a}, v{g}, 3, v{t1}
    v_add_u32 v{t0}, 32, v{t0}
    v_add_u32 v{t1}, 32, v{t1}
    s_add_u32 s{sT}, s{sT}, {21*40}
    v_mov_b32 v{t2}, s{sT}
    """)
    for x in range(4):
        a.e(f"v_cmp_eq_u32 vcc, {x}, v{g}\n s_nop 1\n v_cndmask_b32 v{x0a[x]}, v{t2}, v{t0}, vcc\n v_cndmask_b32 v{x1a[x]}, v{t2}, v{t1}, vcc")
    a.e(f"""
    s_mul_i32 s{sT}, s{sKH}, {16*2560}
    v_lshrrev_b32 v{t0}, 2, v{lr}
    v_and_b32 v{t1}, 3, v{lr}
    v_lshl_add_u32 v{t1}, v{t1}, 3, s{sT}
    v_lshl_add_u32 v{t2}, v{g}, 2, v{t0}
    v_lshl_add_u32 v{wm[0]}, v{t2}, 7, v{t1}
    v_bfe_u32 v{t2}, v{t2}, 1, 2
    v_lshl_add_u32 v{wm[0]}, v{t2}, 5, v{wm[0]}
    v_mul_u32_u24 v{t2}, 20, v{t0}
    v_add3_u32 v{t2}, v{t2}, v{g}, 16
    v_lshl_add_u32 v{wx[0]}, v{t2}, 7, v{t1}
    v_bfe_u32 v{t2}, v{t2}, 1, 2
    v_lshl_add_u32 v{wx[0]}, v{t2}, 5, v{wx[0]}
    """)
    for t in range(1, 4):
        a.e(f"v_xor_b32 v{wm[t]}, {32*t}, v{wm[0]}\n v_xor_b32 v{wx[t]}, {32*t}, v{wx[0]}")
    a.e(f"""
    v_mov_b32 v{ce}, 0
    v_mov_b32 v{ce+1}, {f32(1e-6)}
    v_mov_b32 v{ce+2}, 0
    v_mov_b32 v{ce+3}, 0
    v_lshlrev_b32 v{t3}, 4, v0
    """)
    stamp(a, 6)
    np_ = a.newlab("g2_np")
    a.e(f"s_cmp_lg_u32 s{S_WAVE}, 0\n s_cbranch_scc1 {np_}")
    a.e(f"v_lshlrev_b32 v{t0}, 7, v{L}\n v_add_u32 v{t1}, {64*128}, v{t0}")
    poll(a, SRD_FL, [t0, t1], [t2, rc[0]])
    a.lab(np_)
    a.e("s_barrier")
    stamp(a, 7)
    for n in range(7):
        a.e(f"s_mov_b32 s{sT}, {8192*n}\n buffer_load_dwordx4 {v(LD+4*n,4)}, v{t3}, {srd(SRD_C)}, s{sT} offen sc1")
    pqload(1)
    a.e(f"v_lshrrev_b32 v{t3}, 1, v{t3}\n v_add_u32 v{t3}, {KVI}, v{t3}")
    for n in range(7):
        r = LD + 4 * n
        a.e(f"""
        s_waitcnt vmcnt({12-n})
        v_cvt_pk_bf16_f32 v{r}, v{r}, v{r+1}
        v_cvt_pk_bf16_f32 v{r+1}, v{r+2}, v{r+3}
        ds_write_b64 v{t3}, {v(r,2)} offset:{4096*n}
        """)
    a.e("s_waitcnt lgkmcnt(0)\n s_barrier")
    stamp(a, 8)
    def kvreads(h):
        b = h & 1; x = h & 3
        mo, xo = (0, 2) if x == 0 else (2, 0)
        return [f"ds_read_b64 {v(KF[b][0]+mo,2)}, v{m0a} offset:{880*h}",
                f"ds_read_b64 {v(KF[b][0]+xo,2)}, v{x0a[x]} offset:{880*h}",
                f"ds_read_b64 {v(KF[b][1]+mo,2)}, v{m1a} offset:{880*h}",
                f"ds_read_b64 {v(KF[b][1]+xo,2)}, v{x1a[x]} offset:{880*h}"]
    def woreads(h0, b):
        o = []
        for t in range(4):
            o.append(f"ds_read_b64_tr_b16 {v(WFB[b][t],2)}, v{wm[t]} offset:{2560*h0}")
            o.append(f"ds_read_b64_tr_b16 {v(WFB[b][t]+2,2)}, v{wm[t^2]} offset:{2560*(h0+1)}")
        return o
    def wxreads(hb, b):
        o = []
        for t in range(4):
            o.append(f"ds_read_b64_tr_b16 {v(WFB[b][t],2)}, v{wx[t]} offset:{2560*hb}")
            o.append(f"ds_read_b64_tr_b16 {v(WFB[b][t]+2,2)}, v{wx[t]} offset:{2560*(hb+4)}")
        return o
    def xcopy(h):
        x = h & 3; o = []
        if x >= 2 and h < 16:
            for rt in range(2):
                r = PQR[h >> 2][rt]
                o += [f"v_mov_b32 v{r+2*x}, v{r+2}", f"v_mov_b32 v{r+2*x+1}, v{r+3}"]
        return o
    def omf(h):
        b = h & 1; x = h & 3; o = []
        for rt in range(2):
            w = PQR[h >> 2][rt] + 2 * x
            o.append(f"v_mfma_f32_16x16x32_bf16 {v(CT[b][rt][1],4)}, {v(KF[b][1],4)}, {v(w,4)}, {v(ce,4)}")
        for rt in range(2):
            w = PQR[h >> 2][rt] + 2 * x
            o.append(f"v_mfma_f32_16x16x32_bf16 {v(CT[b][rt][0],4)}, {v(KF[b][0],4)}, {v(w,4)}, 0")
        return o
    def norm(h):
        b = h & 1; o = []
        for rt in range(2):
            o.append(f"v_rcp_f32 v{rc[rt]}, v{CT[b][rt][1]+1}")
        for rt in range(2):
            c = CT[b][rt][0]; e = CT[b][rt][1]
            o.append(f"v_mul_f32 v{XT[rt] if h & 1 == 0 else e}, v{e}, v{rc[rt]}")
            for i in range(4):
                o.append(f"v_mul_f32 v{c+i}, v{c+i}, v{rc[rt]}")
        for rt in range(2):
            c = CT[b][rt][0]; e = CT[b][rt][1]
            d = OPB[(h >> 1) & 1][rt] + 2 * (h & 1)
            if h & 1:
                o.append(f"v_cvt_pk_bf16_f32 v{OX[rt]+((h&7)>>1)}, v{XT[rt]}, v{e}")
            o.append(f"v_cvt_pk_bf16_f32 v{d}, v{c}, v{c+1}")
            o.append(f"v_cvt_pk_bf16_f32 v{d+1}, v{c+2}, v{c+3}")
        return o
    seen = set()
    def mainmf(src, b, rts):
        o = []
        for rt in rts:
            for t in range(4):
                c = v(ACC[rt][t], 4) if rt in seen else "0"
                o.append(f"v_mfma_f32_16x16x32_bf16 {v(ACC[rt][t],4)}, {v(WFB[b][t],4)}, {v(src[rt],4)}, {c}")
            seen.add(rt)
        return o
    P = lambda i: OPB[i & 1]
    mains = {2: [(P(0), 0, [0])], 3: [(P(0), 0, [1])], 4: [(P(1), 1, [0])], 5: [(P(1), 1, [1])],
             6: [(P(2), 0, [0])], 7: [(P(2), 0, [1])], 8: [(OX, 1, [0, 1])], 9: [(P(3), 0, [0, 1])],
             10: [(P(4), 1, [0])], 11: [(P(4), 1, [1])], 12: [(P(5), 0, [0])], 13: [(P(5), 0, [1])],
             14: [(P(6), 1, [0])], 15: [(P(6), 1, [1])], 16: [(OX, 0, [0, 1])], 17: [(P(7), 1, [0, 1])]}
    wl = {0: woreads(0, 0), 2: woreads(2, 1), 4: woreads(4, 0), 6: wxreads(0, 1), 8: woreads(6, 0), 9: woreads(8, 1),
          10: woreads(10, 0), 12: woreads(12, 1), 14: wxreads(8, 0), 16: woreads(14, 1)}
    a.e("\n".join(kvreads(0) + kvreads(1)))
    a.e("s_waitcnt lgkmcnt(4)")
    a.e("\n".join(omf(0)))
    for k in range(18):
        a.c(f"stage {k}")
        if k == 0: pqload(2)
        if k == 3: a.e("s_waitcnt vmcnt(6)")
        if k == 4: pqload(3)
        if k == 7: a.e("s_waitcnt vmcnt(6)")
        if k == 11: a.e("s_waitcnt vmcnt(0)")
        a.e("s_waitcnt lgkmcnt(0)")
        if "gprio" in EX and k % 4 == 0 and k < 16: a.e(f"s_setprio {3 - k // 4}")
        M = (omf(k + 1) if k + 1 < 16 else [])
        for (src, b, rts) in mains.get(k, []):
            M += mainmf(src, b, rts)
        D = (kvreads(k + 2) if k + 2 < 16 else []) + wl.get(k, [])
        V = (norm(k) if k < 16 else [])
        XC = xcopy(k + 2)
        F = D + V[:-2] + XC + V[-2:] if V else D
        if k == 16: a.e("s_nop 0")
        out = []; n = len(M); fi = 0
        for i, m in enumerate(M):
            out.append(m)
            tgt = (len(F) * (i + 1) + n - 1) // n
            out += F[fi:tgt]; fi = tgt
        if XC:
            assert out.index(XC[0]) > out.index(M[3])
        a.e("\n".join(out))
    lk1, lj = a.newlab("g2_k1"), a.newlab("g2_j")
    stamp(a, 9)
    a.e(f"""
    s_lshl_b32 s{sT}, s{S_WAVE}, 12
    s_add_u32 s{sT}, s{sT}, {RED}
    v_add_u32 v{t0}, s{sT}, v{v16}
    s_nop 5
    s_cmp_eq_u32 s{sKH}, 0
    s_cbranch_scc0 {lk1}
    """)
    for t in range(4):
        a.e(f"ds_write_b128 v{t0}, {v(ACC[1][t],4)} offset:{1024*t}")
    a.e(f"s_branch {lj}")
    a.lab(lk1)
    for t in range(4):
        a.e(f"ds_write_b128 v{t0}, {v(ACC[0][t],4)} offset:{1024*t}")
    a.e("s_nop 1")
    for t in range(4):
        for i in range(4):
            a.e(f"v_mov_b32 v{ACC[0][t]+i}, v{ACC[1][t]+i}")
    a.lab(lj)
    a.e(f"""
    s_xor_b32 s{sT}, s{S_WAVE}, 4
    s_lshl_b32 s{sT}, s{sT}, 12
    s_add_u32 s{sT}, s{sT}, {RED}
    v_add_u32 v{t1}, s{sT}, v{v16}
    v_mul_u32_u24 v{t2}, 2560, v{lr}
    v_and_b32 v{t3}, 1, v{g}
    v_lshl_add_u32 v{t2}, v{t3}, 5, v{t2}
    v_lshrrev_b32 v{t3}, 1, v{g}
    v_lshl_add_u32 v{t2}, v{t3}, 4, v{t2}
    s_lshl_b32 s{sT}, s{S_RT}, 3
    s_lshl_b32 s{sU}, s{sRW}, 1
    s_add_u32 s{sT}, s{sT}, s{sU}
    s_add_u32 s{sT}, s{sT}, s{sKH}
    s_mul_i32 s{sSO}, s{sT}, {16*2560}
    s_lshl_b32 s{sT}, s{S_CB}, 7
    s_add_u32 s{sSO}, s{sSO}, s{sT}
    s_add_u32 s{sSO}, s{sSO}, 1280
    s_waitcnt lgkmcnt(0)
    s_barrier
    """)
    stamp(a, 10)
    a.e("s_waitcnt lgkmcnt(0)" if STAMPS else "")
    for t in range(4):
        a.e(f"ds_read_b128 {v(WF[t],4)}, v{t1} offset:{1024*t}")
    D = CT[0][0][0]
    for t in range(4):
        a.e(f"s_waitcnt lgkmcnt({3-t})")
        c = ACC[0][t]
        for i in range(4):
            a.e(f"v_add_f32 v{c+i}, v{c+i}, v{WF[t]+i}")
        a.e(f"v_cvt_pk_bf16_f32 v{D+2*t}, v{c}, v{c+1}\n v_cvt_pk_bf16_f32 v{D+2*t+1}, v{c+2}, v{c+3}")
    a.e("s_nop 1")
    for t in (0, 2):
        a.e(f"v_permlane16_swap_b32 v{D+2*t}, v{D+2*t+2}\n v_permlane16_swap_b32 v{D+2*t+1}, v{D+2*t+3}")
    for t in (0, 2):
        a.e(f"buffer_store_dwordx4 {v(D+2*t,4)}, v{t2}, {srd(SRD_D)}, s{sSO} offen offset:{32*t} {OSTB}")
    return ra.hi

def build(path):
    hdr = open("cdna_kernels/%s.s.ref" % NAME).read().split("; Override")[0]
    a = Asm()
    a.raw('.amdgcn_target "amdgcn-amd-amdhsa--gfx950"\n.text')
    a.raw(f".globl {KN}\n.p2align 8\n.type {KN},@function"); a.lab(KN)
    a.e(f"s_cmp_ge_u32 s2, 256\n s_cbranch_scc1 L_END")
    stamp_init(a); stamp(a, 0)
    a.e(f"""
    s_load_dwordx16 s[8:23], s[0:1], 0
    s_load_dwordx8 s[24:31], s[0:1], 64
    v_lshrrev_b32 v2, 6, v0
    v_and_b32 v{L}, 63, v0
    v_readfirstlane_b32 s{S_WAVE}, v2
    s_and_b32 s{S_XI}, s2, 7
    s_lshr_b32 s{S_J}, s2, 3
    """)
    if "scram" in EX:
        a.e(f"s_lshr_b32 s{S_XI}, s2, 5\n s_and_b32 s{S_J}, s2, 31")
    a.e(f"""
    s_and_b32 s4, s{S_J}, 28
    s_cmp_lg_u32 s4, 20
    s_cbranch_scc1 L_NOPF
    s_getpc_b64 s[4:5]
    v_lshlrev_b32 v2, 7, v0
    v_min_u32 v2, L_END-{KN}-512, v2
    global_load_dword v252, v2, s[4:5] nt
    """)
    a.lab("L_NOPF")
    a.e(f"""
    s_cmp_ge_u32 s{S_J}, 24
    s_cbranch_scc1 L_A1
    s_lshr_b32 s6, s{S_XI}, 1
    s_lshl_b32 s6, s6, 2
    s_and_b32 s7, s{S_J}, 3
    s_add_u32 s{S_RT}, s6, s7
    s_and_b32 s4, s{S_XI}, 1
    s_lshr_b32 s6, s{S_J}, 2
    s_mul_i32 s{S_CB}, s4, 5
    s_add_u32 s{S_CB}, s{S_CB}, s6
    s_mov_b32 s{S_P2}, 0
    s_cmp_ge_u32 s{S_J}, 16
    s_cbranch_scc1 L_Q
    s_mov_b32 s{S_MODE}, 0
    s_lshl_b32 s4, s4, 2
    s_add_u32 s{S_G}, s4, s6
    s_lshl_b32 s{S_SLOT}, s{S_RT}, 3
    s_add_u32 s{S_SLOT}, s{S_SLOT}, s{S_G}
    s_branch L_G1
    """)
    a.lab("L_Q")
    a.e(f"""
    s_mov_b32 s{S_MODE}, 1
    s_lshl_b32 s4, s4, 1
    s_add_u32 s{S_G}, s4, s6
    s_sub_u32 s{S_G}, s{S_G}, 4
    s_lshl_b32 s{S_SLOT}, s{S_RT}, 2
    s_add_u32 s{S_SLOT}, s{S_SLOT}, s{S_G}
    s_add_u32 s{S_SLOT}, s{S_SLOT}, 128
    s_cmp_lt_u32 s{S_J}, 20
    s_cbranch_scc1 L_G1
    s_mov_b32 s{S_P2}, 4
    s_lshl_b32 s{S_CB}, s{S_XI}, 4
    s_lshl_b32 s7, s7, 2
    s_add_u32 s{S_CB}, s{S_CB}, s7
    s_add_u32 s{S_CB}, s{S_CB}, 512
    """)
    a.lab("L_G1")
    a.e(f"s_cmp_lt_u32 s{S_WAVE}, 4\n s_cbranch_scc1 L_G1C")
    g1_loader(a)
    a.lab("L_A1")
    a.e(f"""
    s_sub_u32 s5, s{S_J}, 24
    s_lshl_b32 s5, s5, 3
    s_add_u32 s{S_RT}, s5, s{S_XI}
    s_lshl_b32 s{S_CB}, s{S_XI}, 6
    s_add_u32 s{S_CB}, s{S_CB}, s5
    s_mov_b32 s{S_P2}, 8
    s_and_b32 s4, s{S_RT}, 1
    s_lshl_b32 s4, s4, 5
    s_lshr_b32 s5, s{S_RT}, 1
    s_add_u32 s{S_SLOT}, s4, s5
    s_add_u32 s{S_SLOT}, s{S_SLOT}, 192
    """)
    h3 = a1(a)
    a.lab("L_CONV")
    h5 = conv(a)
    a.lab("L_G1C")
    g1_init(a)
    a.e(f"s_cmp_lg_u32 s{S_MODE}, 0\n s_cbranch_scc1 L_G1Q")
    h1 = g1_compute(a, 0)
    a.lab("L_G1Q")
    h2 = g1_compute(a, 1)
    a.lab("L_PHASE2")
    a.e(f"s_cmp_lg_u32 s{S_P2}, 0\n s_cbranch_scc1 L_CONV")
    a.lab("L_G2")
    h4 = g2(a)
    a.lab("L_FIN")
    stamp_flush(a, 0)
    a.lab("L_END")
    a.e("s_endpgm")
    print("vgprs", h1, h2, h3, h4, h5, file=sys.stderr)
    lds = max(HB + 8 * HP, LFL + 64, RED + 32768)
    desc = f""".section .rodata,"a"
.p2align 6
.amdhsa_kernel {KN}
  .amdhsa_next_free_vgpr 256
  .amdhsa_next_free_sgpr 102
  .amdhsa_accum_offset 256
  .amdhsa_group_segment_fixed_size 0
  .amdhsa_kernarg_size 96
  .amdhsa_user_sgpr_count 2
  .amdhsa_user_sgpr_kernarg_segment_ptr 1
  .amdhsa_system_sgpr_workgroup_id_x 1
.end_amdhsa_kernel
"""
    body = a.text()
    if "ldnt" not in EX:
        body = "\n".join((l.replace(" nt", "") if "_load_" in l else l) for l in body.split("\n"))
    open(path, "w").write(hdr + f"; @launch grid=(256,1,1) block=(512,1,1) lds={lds}\n" + body + desc)
if __name__ == "__main__":
    build(sys.argv[1])
```

```python
import sys
from asmlib import *
NAME = "concat_heads__ssm_conv_h3__linear_attn_block__prompt"
KN = NAME + "_kernel"
EX = set(os.environ.get("EX", "").split(","))
XW = "nt" if "xwnt" in EX else ""
ROTR = int(os.environ.get("ROTR", "8530"), 16); ROTC = int(os.environ.get("ROTC", "875320"), 16)
RPG = 2 if "rpg2" in EX else 1
OST = os.environ.get("OSTA", "")
OSTB = os.environ.get("OSTB", "nt")

WS_UT, WS_PQ, WS_KV, WS_FL = 0, 0x500000, 0x780000, 0x790000
T_BYTES = 640 * 4096
KV_BYTES = 32 * 22 * 80
S_WG, S_WAVE = 2, 3
P_Q, P_K, P_V, P_SH, P_H, P_D, P_X, P_W, P_WO, P_OUT, P_DBG, P_WS = 8, 10, 12, 14, 16, 18, 20, 22, 24, 26, 28, 30
SRD_A, SRD_B, SRD_C, SRD_D, SRD_FL = 32, 36, 40, 44, 48
S_RT, S_G, S_MODE, S_CB, S_P2, S_SLOT, S_XI, S_J = 52, 53, 54, 55, 56, 57, 58, 59
L = 1

def mk_srd(a, srd, ptr, nbytes, off=0, off_sreg=None):
    if off_sreg is not None:
        a.e(f"s_add_u32 s{srd}, s{ptr}, s{off_sreg}\n s_addc_u32 s{srd+1}, s{ptr+1}, 0")
    elif off:
        a.e(f"s_add_u32 s{srd}, s{ptr}, {off}\n s_addc_u32 s{srd+1}, s{ptr+1}, 0")
    else:
        a.e(f"s_mov_b32 s{srd}, s{ptr}\n s_mov_b32 s{srd+1}, s{ptr+1}")
    a.e(f"s_mov_b32 s{srd+2}, {nbytes}\n s_mov_b32 s{srd+3}, 0x20000")
def srd(x): return f"s[{x}:{x+3}]"

SPIN_MAX = 400000
def poll(a, srdn, voffs, tmps, scnt=74):
    lp, dn = a.newlab("poll"), a.newlab("polld")
    a.e(f"s_mov_b32 s{scnt}, {SPIN_MAX}")
    a.lab(lp)
    for vo, t in zip(voffs, tmps):
        a.e(f"buffer_load_dword v{t}, v{vo}, {srd(srdn)}, 0 offen sc1")
    a.e("s_waitcnt vmcnt(0)")
    for t in tmps[1:]:
        a.e(f"v_and_b32 v{tmps[0]}, v{tmps[0]}, v{t}")
    a.e(f"""
    v_cmp_ne_u32 vcc, 1, v{tmps[0]}
    s_sub_u32 s{scnt}, s{scnt}, 1
    s_cbranch_scc1 {dn}
    s_cmp_eq_u64 vcc, 0
    s_cbranch_scc1 {dn}
    s_sleep 1
    s_branch {lp}
    """)
    a.lab(dn)

def poll_z(a, vz, vt):
    mk_srd(a, SRD_D, P_DBG, 256)
    a.e(f"v_and_b32 v{vz}, 7, v{L}\n v_lshlrev_b32 v{vz}, 2, v{vz}")
    poll(a, SRD_D, [vz], [vt])

def set_flag(a, v0_, v1_):
    sk = a.newlab("nofl")
    a.e(f"""
    s_cmp_lg_u32 s{S_WAVE}, 0
    s_cbranch_scc1 {sk}
    s_lshl_b32 s74, s{S_SLOT}, 7
    v_mov_b32 v{v0_}, 0
    v_mov_b32 v{v1_}, 1
    s_mov_b64 exec, 1
    buffer_store_dword v{v1_}, v{v0_}, {srd(SRD_FL)}, s74 offen sc1
    s_mov_b64 exec, -1
    """)
    a.lab(sk)

UP = 4672
HB, HP, H_O = 87808, 8320, 4160
def h_load(a, H, vl16, srdn, soff):
    for j in range(4):
        a.e(f"buffer_load_dwordx4 {v(H+4*j,4)}, v{vl16}, {srd(srdn)}, s{soff} offen offset:{1024*j}")
def h_stage(a, H, G, sslot, vl16, va, st):
    a.e(f"s_mul_i32 s{st}, s{sslot}, {HP}\n s_add_u32 s{st}, s{st}, {HB}\n v_add_u32 v{va}, s{st}, v{vl16}")
    a.e(f"v_readfirstlane_b32 s{st}, v{H}")
    for j in range(4):
        a.e(f"ds_write_b128 v{va}, {v(H+4*j,4)} offset:{32+1024*j}")
    for j in range(4):
        a.e(f"v_mov_b32_dpp v{G+4*j+3}, v{H+4*((j+1)&3)} wave_rol:1 row_mask:0xf bank_mask:0xf")
    for j in range(4):
        a.e(f"v_mov_b32_dpp v{G+4*j+3}, v{H+4*j} wave_shl:1 row_mask:0xf bank_mask:0xf")
    Z = G + 16
    for i in range(4): a.e(f"v_mov_b32 v{Z+i}, 0")
    a.e(f"s_lshl_b32 s{st}, s{st}, 16\n s_mov_b64 exec, 3\n ds_write_b128 v{va}, {v(Z,4)}\n s_mov_b64 exec, -1")
    for j in range(4):
        h, g_ = H + 4 * j, G + 4 * j
        for i in range(3): a.e(f"v_alignbit_b32 v{g_+i}, v{h+i+1}, v{h+i}, 16")
        a.e(f"v_alignbit_b32 v{g_+3}, v{g_+3}, v{h+3}, 16")
        a.e(f"ds_write_b128 v{va}, {v(g_,4)} offset:{H_O+32+1024*j}")
    a.e(f"v_writelane_b32 v{Z+3}, s{st}, 1\n s_mov_b64 exec, 3\n ds_write_b128 v{va}, {v(Z,4)} offset:{H_O}\n s_mov_b64 exec, -1")

def conv_sload(a):
    a.e(f"""
    s_add_u32 s6, s{S_CB}, s{S_WAVE}
    s_lshl_b32 s6, s6, 1
    s_and_b32 s6, s6, 0xfffffffc
    s_load_dword s5, s[{P_D}:{P_D+1}], s6
    """)

XST, WBASE, WST, NST = 16384, 65536, 20480, 4
IMG, IMGP = WBASE + 3 * WST, 7168
LFL = WBASE + 4 * WST

def lds_wait(a, vaddr, vq, off, need, sv=73, scnt=74, first_check=False):
    lp, ok = a.newlab("lw"), a.newlab("lwok")
    if first_check:
        a.e(f"s_cmp_ge_u32 s{sv}, {need}\n s_cbranch_scc1 {ok}")
    a.e(f"s_mov_b32 s{scnt}, 4000000")
    a.lab(lp)
    a.e(f"""
    ds_read_b128 {v(vq,4)}, v{vaddr} offset:{off}
    s_sub_u32 s{scnt}, s{scnt}, 1
    s_cbranch_scc1 {ok}
    s_waitcnt lgkmcnt(0)
    v_min3_u32 v{vq}, v{vq}, v{vq+1}, v{vq+2}
    v_min_u32 v{vq}, v{vq}, v{vq+3}
    s_nop 0
    v_readfirstlane_b32 s{sv}, v{vq}
    s_nop 0
    s_cmp_ge_u32 s{sv}, {need}
    s_cbranch_scc0 {lp}
    """)
    a.lab(ok)
def lds_pub(a, vaddr, vt, val):
    a.e(f"v_mov_b32 v{vt}, {val}\n s_mov_b64 exec, 1\n ds_write_b32 v{vaddr}, v{vt}\n s_mov_b64 exec, -1")

def g1_loader(a):
    ra = RA(2)
    t0, t1, t2, t3 = [ra.a() for _ in range(4)]
    vx = [ra.a() for _ in range(4)]
    vw = [ra.a() for _ in range(5)]
    z4 = ra.a(4, 4)
    sLW, sSX, sSW, sM0X, sM0W, sC1, sC2, sT = 60, 61, 62, 63, 64, 65, 66, 67
    a.c("G1 loader wave")
    if "prio" in EX: a.e("s_setprio 3")
    a.e(f"""
    s_sub_u32 s{sLW}, s{S_WAVE}, 4
    s_lshl_b32 s{sT}, s{S_RT}, 2
    s_add_u32 s{sT}, s{sT}, s{sLW}
    s_mul_i32 s{sSX}, s{sT}, {32*1280}
    s_lshl_b32 s{sM0X}, s{sLW}, 12
    v_lshrrev_b32 v{t0}, 3, v{L}
    v_mul_u32_u24 v{t0}, 1280, v{t0}
    v_lshrrev_b32 v{t1}, 4, v{L}
    v_and_b32 v{t2}, 7, v{L}
    v_xor_b32 v{t1}, v{t1}, v{t2}
    v_lshlrev_b32 v{t1}, 4, v{t1}
    v_xor_b32 v{t2}, 64, v{t1}
    v_add_u32 v{vx[0]}, v{t0}, v{t1}
    v_add_u32 v{vx[1]}, v{t0}, v{t2}
    v_add_u32 v{vx[2]}, {2*(8*1280-1024)}, v{vx[0]}
    v_add_u32 v{vx[3]}, {3*(8*1280-1024)}, v{vx[1]}
    v_add_u32 v{vx[1]}, {1*(8*1280-1024)}, v{vx[1]}
    s_cmp_eq_u32 s{S_MODE}, 0
    s_cselect_b32 s{sC1}, 1200, 0
    s_cselect_b32 s{sC2}, 80, 0
    s_cselect_b32 s{sSW}, 1280, 0
    s_lshl_b32 s{sT}, 160, s{S_MODE}
    s_mul_i32 s{sT}, s{sT}, s{S_G}
    s_add_u32 s{sSW}, s{sSW}, s{sT}
    s_mul_i32 s{sT}, s{sLW}, {16*3840}
    s_add_u32 s{sSW}, s{sSW}, s{sT}
    s_mul_i32 s{sM0W}, s{sLW}, 5120
    s_add_u32 s{sM0W}, s{sM0W}, {WBASE}
    """)
    sK = 68
    if "norot" in EX:
        a.e(f"s_mov_b32 s{sK}, 0")
    else:
        a.e(f"""
        s_and_b32 s{sT}, s{S_J}, 3
        s_lshl_b32 s{sT}, s{sT}, 2
        s_lshr_b32 s{sK}, {ROTR:#x}, s{sT}
        s_and_b32 s{sK}, s{sK}, 15
        s_and_b32 s{sT}, s{S_J}, 28
        s_lshr_b32 s{sT}, {ROTC:#x}, s{sT}
        s_and_b32 s{sT}, s{sT}, 15
        s_add_u32 s{sK}, s{sK}, s{sT}
        s_cmp_ge_u32 s{sK}, 10
        s_cselect_b32 s{sT}, 10, 0
        s_sub_u32 s{sK}, s{sK}, s{sT}
        s_lshl_b32 s{sT}, s{sK}, 7
        s_add_u32 s{sSX}, s{sSX}, s{sT}
        s_mul_i32 s{sT}, s{sK}, {64*3840}
        s_add_u32 s{sSW}, s{sSW}, s{sT}
        """)
    for x in range(320): assert (x * 3277) >> 16 == x // 20
    for x in range(20): assert (x * 52) >> 8 == x // 5
    for j in range(5):
        sub = 1024 * j if j < 4 else 0
        a.e(f"""
        v_add_u32 v{t0}, {64*j}, v{L}
        v_mul_u32_u24 v{t1}, 3277, v{t0}
        v_lshrrev_b32 v{t1}, 16, v{t1}
        v_mul_u32_u24 v{t2}, 20, v{t1}
        v_sub_u32 v{t0}, v{t0}, v{t2}
        v_lshrrev_b32 v{t2}, 2, v{t1}
        v_and_b32 v{t2}, 2, v{t2}
        v_xor_b32 v{t0}, v{t0}, v{t2}
        v_mul_u32_u24 v{t2}, 52, v{t0}
        v_lshlrev_b32 v{t0}, 4, v{t0}
        v_bfe_u32 v{t3}, v{t2}, 8, 1
        v_mad_u32_u24 v{t0}, v{t3}, s{sC1}, v{t0}
        v_lshrrev_b32 v{t3}, 9, v{t2}
        v_mul_u32_u24 v{t3}, s{sC2}, v{t3}
        v_sub_u32 v{t0}, v{t0}, v{t3}
        v_mul_u32_u24 v{t1}, 3840, v{t1}
        v_add_u32 v{t0}, v{t0}, v{t1}
        v_subrev_u32 v{vw[j]}, {sub}, v{t0}
        """)
    a.e("s_waitcnt lgkmcnt(0)")
    mk_srd(a, SRD_A, P_X, 2048 * 1280)
    mk_srd(a, SRD_B, P_W, 640 * 3840)
    a.e(f"s_mov_b32 s70, {-9*64*3840}\n s_mov_b32 s71, {64*3840}\n s_mov_b32 s72, 128")
    def issue_x(st):
        if "nodma" in EX: return []
        out = [f"s_add_u32 m0, s{sM0X}, {(st % NST) * XST}", "s_nop 0"]
        for j in range(4):
            out.append(f"buffer_load_dwordx4 v{vx[j]}, {srd(SRD_A)}, s{sSX} offen offset:{1024*j} {XW} lds")
        return out
    def issue_w(st):
        if "nodma" in EX: return []
        out = [f"s_add_u32 m0, s{sM0W}, {(st % NST) * WST}", "s_nop 0"]
        for j in range(4):
            out.append(f"buffer_load_dwordx4 v{vw[j]}, {srd(SRD_B)}, s{sSW} offen offset:{1024*j} {XW} lds")
        out += [f"s_add_u32 m0, s{sM0W}, {(st % NST) * WST + 4096}", "s_nop 0"]
        out.append(f"buffer_load_dwordx4 v{vw[4]}, {srd(SRD_B)}, s{sSW} offen {XW} lds")
        return out
    def advance():
        return [f"s_add_u32 s{sK}, s{sK}, 1", f"s_cmp_eq_u32 s{sK}, 10",
                f"s_cselect_b32 s{sT}, {-9*128}, s72", f"s_cselect_b32 s69, s70, s71",
                f"s_add_u32 s{sSX}, s{sSX}, s{sT}", f"s_add_u32 s{sSW}, s{sSW}, s69"]
    SCH = [int(c) for c in os.environ.get("SCH", "211111111")]
    assert sum(SCH) == 10
    issued = 0
    def issue_n(n):
        nonlocal issued
        for _ in range(n):
            a.e("\n".join(issue_x(issued) + issue_w(issued) + advance()))
            issued += 1
    issue_n(SCH[0])
    stamp(a, 1)
    mk_srd(a, SRD_FL, P_WS, 256 * 128, off=WS_FL)
    for i in range(4):
        a.e(f"v_mov_b32 v{z4+i}, 0")
    a.e(f"v_lshlrev_b32 v{t0}, 4, v0\n v_add_u32 v{t0}, {IMG-4096}, v{t0}")
    nb = 0
    while issued < 10:
        a.e(f"s_waitcnt vmcnt({9*(issued - 1 - nb)})\n s_barrier")
        n = SCH[nb + 1]
        assert issued + n <= nb + 4
        issue_n(n)
        nb += 1
    lc, le = a.newlab("tc"), a.newlab("te")
    a.e(f"s_cmp_lg_u32 s{S_P2}, 0\n s_cbranch_scc1 {lc}")
    mk_srd(a, SRD_A, P_WO, 640 * 1280)
    a.e(f"""
    v_min_u32 v{t1}, 39, v{L}
    v_mul_u32_u24 v{t1}, 1280, v{t1}
    s_and_b32 s{sT}, s{S_RT}, 3
    s_lshl_b32 s{sT}, s{sT}, 2
    s_add_u32 s{sT}, s{sT}, s{sLW}
    s_mul_i32 s{sT}, s{sT}, {40*1280}
    s_lshl_b32 s{sC1}, s{S_CB}, 7
    s_add_u32 s{sT}, s{sT}, s{sC1}
    buffer_load_dword v250, v{t1}, {srd(SRD_A)}, s{sT} offen
    s_branch {le}
    """)
    a.lab(lc)
    mk_srd(a, SRD_A, P_H, T_BYTES)
    a.e(f"""
    v_and_b32 v{t1}, 31, v{L}
    v_lshlrev_b32 v{t1}, 7, v{t1}
    s_add_u32 s{sC1}, s{S_CB}, s{sLW}
    s_lshl_b32 s{sSX}, s{sC1}, 12
    buffer_load_dword v250, v{t1}, {srd(SRD_A)}, s{sSX} offen
    """)
    a.lab(le)
    mk_srd(a, SRD_D, P_DBG, 256)
    a.e(f"v_and_b32 v{t2}, 7, v{L}\n v_lshlrev_b32 v{t2}, 2, v{t2}")
    a.e(f"buffer_load_dword v{t3}, v{t2}, {srd(SRD_D)}, 0 offen sc1")
    while nb < 10:
        a.e(f"s_waitcnt vmcnt({9*(9 - nb) + 2})")
        a.e("s_barrier")
        if nb == 8:
            for i in range(4):
                a.e(f"ds_write_b128 v{t0}, v[{z4}:{z4+3}] offset:{4096*i}")
        nb += 1
    if "g1only" in EX: a.e("s_branch L_FIN")
    stamp(a, 2)
    lc = a.newlab("ld_conv")
    a.e(f"s_cmp_lg_u32 s{S_P2}, 0\n s_cbranch_scc1 {lc}")
    a.e(f"""
    v_lshrrev_b32 v{t0}, 3, v{L}
    v_mul_u32_u24 v{t0}, 1280, v{t0}
    v_and_b32 v{t1}, 7, v{L}
    v_lshrrev_b32 v{t2}, 4, v{L}
    v_lshlrev_b32 v{t2}, 1, v{t2}
    v_xor_b32 v{t1}, v{t1}, v{t2}
    v_lshl_add_u32 v{vx[0]}, v{t1}, 4, v{t0}
    v_add_u32 v{vx[1]}, {1*(8*1280-1024)}, v{vx[0]}
    v_add_u32 v{vx[2]}, {2*(8*1280-1024)}, v{vx[0]}
    v_add_u32 v{vx[3]}, {3*(8*1280-1024)}, v{vx[0]}
    s_mul_i32 s{sSX}, s{sLW}, {160*1280}
    s_lshl_b32 s{sT}, s{S_CB}, 7
    s_add_u32 s{sSX}, s{sSX}, s{sT}
    s_mul_i32 s{sM0X}, s{sLW}, 20480
    s_waitcnt lgkmcnt(0)
    s_barrier
    """)
    for q in range(5):
        a.e(f"s_add_u32 m0, s{sM0X}, {4096*q}\n s_nop 0")
        for j in range(4):
            a.e(f"buffer_load_dwordx4 v{vx[j]}, {srd(SRD_A)}, s{sSX} offen offset:{1024*j} lds")
        a.e(f"s_add_u32 s{sSX}, s{sSX}, {32*1280}")
    zok = a.newlab("zok")
    a.e(f"s_waitcnt vmcnt(20)\n v_cmp_ne_u32 vcc, 1, v{t3}\n s_nop 1\n s_cmp_eq_u64 vcc, 0\n s_cbranch_scc1 {zok}")
    poll_z(a, t1, t2)
    a.lab(zok)
    stamp(a, 3)
    a.e("s_barrier")
    a.e(f"s_cmp_lg_u32 s{S_MODE}, 0\n s_cbranch_scc1 L_G2\n s_barrier\n s_branch L_G2")
    a.lab(lc)
    H = ra.a(16, 4); G = ra.a(20, 4)
    a.e(f"v_lshlrev_b32 v{t0}, 4, v{L}")
    h_load(a, H, t0, SRD_A, sSX)
    a.e("s_waitcnt lgkmcnt(0)\n s_barrier\n s_waitcnt vmcnt(0)")
    h_stage(a, H, G, sLW, t0, t1, sC1)
    zok = a.newlab("zok")
    a.e(f"v_cmp_ne_u32 vcc, 1, v{t3}\n s_nop 1\n s_cmp_eq_u64 vcc, 0\n s_cbranch_scc1 {zok}")
    poll_z(a, t1, t2)
    a.lab(zok)
    stamp(a, 3)
    a.e("s_waitcnt lgkmcnt(0)\n s_barrier\n s_branch L_CONV")

def phi4(regs, tmps, sLOG, sEPS):
    o = []
    for r, t in zip(regs, tmps): o.append(f"v_mul_f32 v{t}, s{sLOG}, v{r}")
    for r, t in zip(regs, tmps): o.append(f"v_exp_f32_e64 v{t}, v{t} clamp")
    for r, t in zip(regs, tmps): o.append(f"v_max_f32 v{r}, s{sEPS}, v{r}")
    for r, t in zip(regs, tmps): o.append(f"v_add_f32 v{r}, v{r}, v{t}")
    return o

def g1_init(a):
    a.e("s_waitcnt lgkmcnt(0)")
    if "tlb" in EX or "tlball" in EX:
        sk = a.newlab("notlb")
        if "tlball" in EX:
            a.e(f"s_cmp_lg_u32 s{S_WAVE}, 3\n s_cbranch_scc1 {sk}")
        else:
            a.e(f"s_lshl_b32 s60, s{S_WAVE}, 8\n s_or_b32 s60, s60, s{S_J}\n s_cmp_lg_u32 s60, {3*256+17}\n s_cbranch_scc1 {sk}")
        a.e(f"v_lshlrev_b32 v2, 20, v{L}")
        for i, (ptr, nb) in enumerate([(P_WS, WS_FL + 32768), (P_OUT, 2048 * 2560), (P_Q, 2048 * 1280), (P_WO, 640 * 1280), (P_DBG, 256), (P_H, T_BYTES)]):
            mk_srd(a, SRD_A, ptr, nb)
            a.e(f"buffer_load_dword v{244+i}, v2, {srd(SRD_A)}, 0 offen")
        a.lab(sk)
    mk_srd(a, SRD_FL, P_WS, 256 * 128, off=WS_FL)

def g1_compute(a, mode):
    ra = RA(2)
    lr, g, t0, t1, t2 = [ra.a() for _ in range(5)]
    xa = [ra.a(), ra.a()]
    wa = [[ra.a() for _ in range(5)] for _ in range(2)]
    aMain, aExtA, aExtB = ra.a(), ra.a(), ra.a()
    ie = ra.a(4, 4); ix = ra.a(4, 4)
    XF = [[ra.a(4, 4) for _ in range(4)] for _ in range(2)]
    WF = [[ra.a(4, 4) for _ in range(5)] for _ in range(2)]
    ACC = [[ra.a(4, 4) for _ in range(5)] for _ in range(4)]
    sRH, sCH, sT, sLOG, sEPS, sSO = 60, 61, 62, 63, 64, 65
    a.c("G1 compute wave mode %d" % mode)
    if mode == 1:
        conv_sload(a)
        nz = a.newlab("nozero")
        a.e(f"s_lshl_b32 s{sT}, s{S_WAVE}, 8\n s_or_b32 s{sT}, s{sT}, s{S_J}\n s_cmp_lg_u32 s{sT}, 16\n s_cbranch_scc1 {nz}")
        a.e(f"s_mul_i32 s{sT}, s{S_XI}, 7040\n s_add_u32 s{sT}, s{sT}, {WS_KV}")
        mk_srd(a, SRD_C, P_WS, 7040, off_sreg=sT)
        mk_srd(a, SRD_D, P_DBG, 256)
        for i in range(4): a.e(f"v_mov_b32 v{ie+i}, 0")
        a.e(f"""
        v_lshlrev_b32 v{t0}, 4, v{L}
        v_and_b32 v{t1}, 31, v{L}
        v_lshlrev_b32 v{t1}, 7, v{t1}
        s_lshl_b32 s{sT}, s{S_XI}, 12
        buffer_store_dword v{ie}, v{t1}, {srd(SRD_FL)}, s{sT} offen sc1
        s_movk_i32 s{sT}, 4096
        """)
        for n in range(7):
            a.e(f"buffer_store_dwordx4 {v(ie,4)}, v{t0}, {srd(SRD_C)}, {'s%d' % sT if n >= 4 else '0'} offen offset:{1024*(n&3)} sc1")
        a.e(f"""
        s_lshl_b32 s{sT}, s{S_XI}, 2
        v_mov_b32 v{t1}, 1
        s_waitcnt vmcnt(0)
        s_mov_b64 exec, 1
        buffer_store_dword v{t1}, v{t0}, {srd(SRD_D)}, s{sT} offen sc1
        s_mov_b64 exec, -1
        """)
        a.lab(nz)
    a.e(f"""
    s_lshr_b32 s{sRH}, s{S_WAVE}, 1
    s_and_b32 s{sCH}, s{S_WAVE}, 1
    s_mov_b32 s{sLOG}, {f32(1.4426950408889634)}
    s_mov_b32 s{sEPS}, {f32(1e-6)}
    v_and_b32 v{lr}, 15, v{L}
    v_lshrrev_b32 v{g}, 4, v{L}
    s_lshl_b32 s{sT}, s{sRH}, 13
    v_lshrrev_b32 v{t0}, 1, v{lr}
    v_xor_b32 v{t0}, v{t0}, v{g}
    v_lshlrev_b32 v{t0}, 4, v{t0}
    v_lshl_add_u32 v{t0}, v{lr}, 7, v{t0}
    v_add_u32 v{xa[0]}, s{sT}, v{t0}
    v_xor_b32 v{xa[1]}, 64, v{xa[0]}
    v_lshrrev_b32 v{t0}, 2, v{lr}
    v_lshl_add_u32 v{t0}, v{g}, 3, v{t0}
    v_mul_u32_u24 v{t0}, 320, v{t0}
    v_add_u32 v{t0}, {WBASE}, v{t0}
    v_and_b32 v{t1}, 1, v{g}
    v_lshlrev_b32 v{t1}, 5, v{t1}
    s_mul_i32 s{sT}, s{sCH}, 160
    v_and_b32 v{t2}, 3, v{lr}
    """)
    for t in range(5):
        w = wa[0][t]
        if t < 4:
            a.e(f"v_lshl_add_u32 v{w}, v{t2}, 3, s{sT}\n v_add_u32 v{w}, {40*t}, v{w}")
        else:
            a.e(f"v_mul_u32_u24 v{w}, 40, v{t2}\n v_add_u32 v{w}, s{sT}, v{w}\n v_add_u32 v{w}, 32, v{w}")
        a.e(f"v_xor_b32 v{w}, v{w}, v{t1}\n v_add_u32 v{w}, v{w}, v{t0}\n v_add_u32 v{wa[1][t]}, 10240, v{w}")
    for i in range(4):
        a.e(f"v_mov_b32 v{ie+i}, s{sEPS}")
    if mode == 0:
        a.e(f"v_cmp_gt_u32 vcc, 8, v{lr}")
        a.e(f"""
        s_mul_i32 s{sT}, s{sRH}, {IMGP}
        s_mul_i32 s{sSO}, s{sCH}, 3520
        s_add_u32 s{sT}, s{sT}, s{sSO}
        s_add_u32 s{sT}, s{sT}, {IMG}
        """)
        for i in range(4):
            a.e(f"v_cndmask_b32 v{ix+i}, 0, v{ie}, vcc")
        a.e(f"""
        v_mul_u32_u24 v{aMain}, 80, v{lr}
        v_lshl_add_u32 v{aMain}, v{g}, 4, v{aMain}
        v_add_u32 v{aMain}, s{sT}, v{aMain}
        v_cmp_eq_u32 vcc, 0, v{lr}
        v_mov_b32 v{t0}, 640
        v_mov_b32 v{t1}, 1600
        v_mov_b32 v{t2}, 320
        v_cndmask_b32 v{t0}, v{t0}, v{t1}, vcc
        v_cndmask_b32 v{t2}, v{t2}, v{t1}, vcc
        v_add_u32 v{aExtA}, v{aMain}, v{t0}
        v_add_u32 v{aExtB}, v{aMain}, v{t2}
        s_mul_i32 s{sT}, s{S_G}, 7040
        s_add_u32 s{sT}, s{sT}, {WS_KV}
        """)
        mk_srd(a, SRD_C, P_WS, 7040, off_sreg=sT)
    else:
        a.e(f"""
        v_lshlrev_b32 v{aMain}, 4, v{L}
        v_lshlrev_b32 v{aExtA}, 3, v{L}
        s_lshl_b32 s{sT}, s{S_RT}, 3
        s_lshl_b32 s{sSO}, s{sRH}, 2
        s_add_u32 s{sT}, s{sT}, s{sSO}
        s_lshl_b32 s{sT}, s{sT}, 3
        s_lshl_b32 s{sSO}, s{S_G}, 1
        s_add_u32 s{sT}, s{sT}, s{sSO}
        s_add_u32 s{sT}, s{sT}, s{sCH}
        s_mul_i32 s{sSO}, s{sT}, 2560
        """)
        mk_srd(a, SRD_C, P_WS, T_BYTES, off=WS_PQ)
    def reads(st, ks):
        sl = st % NST
        xs = [f"ds_read_b128 v[{XF[ks][rt]}:{XF[ks][rt]+3}], v{xa[ks]} offset:{sl*XST + rt*2048}" for rt in range(4)]
        ws = []
        for t in range(5):
            for h in range(2):
                ws.append(f"ds_read_b64_tr_b16 v[{WF[ks][t]+2*h}:{WF[ks][t]+2*h+1}], v{wa[ks][t]} offset:{sl*WST + h*1280}")
        if "noreads" in EX: return []
        if "notr" in EX: return xs
        if "nox" in EX: return ws
        return xs + ws
    def mfmas(ks, first=False):
        o = []
        for rt in range(4):
            for t in range(5):
                d = ACC[rt][t]
                c = v(d, 4)
                if first:
                    if mode == 1 or t < 2: c = v(ie, 4)
                    elif t == 4: c = v(ix, 4)
                    else: c = "0"
                x, w = v(XF[ks][rt], 4), v(WF[ks][t], 4)
                A_, B_ = (x, w) if mode == 0 else (w, x)
                o.append(f"v_mfma_f32_16x16x32_bf16 {v(d,4)}, {A_}, {B_}, {c}")
        return o
    for st in range(10):
        a.c(f"step {st}")
        a.e("s_barrier")
        if "g1only" in EX:
            if "few" not in EX or st in (1, 9): stamp(a, 1 + st)
        elif st in (0, 5): stamp(a, {0: 1, 5: 2}[st])
        if st == 0:
            a.e("\n".join(reads(0, 0)))
        else:
            a.e("\n".join(interleave2(mfmas(1), reads(st, 0), RPG)))
        a.e("s_waitcnt lgkmcnt(0)")
        a.e("\n".join(interleave2(mfmas(0, first=(st == 0)), reads(st, 1), RPG)))
        a.e("s_waitcnt lgkmcnt(0)")
    if "g1only" in EX: a.e("s_branch L_FIN")
    a.e("s_barrier")
    a.e("\n".join(mfmas(1)))
    stamp(a, 3)
    fr = XF[0][0]
    assert WF[1][4] + 4 - fr == 72
    tm = [ie, ie + 1, ie + 2, ie + 3]
    if mode == 1:
        order = [0, 4, 1, 2, 3]
        for rt in range(4):
            ob = fr + 12 * rt
            for pos, t in enumerate(order):
                r = [ACC[rt][t] + i for i in range(4)]
                a.e("\n".join(phi4(r, tm, sLOG, sEPS)))
                a.e(f"v_cvt_pk_bf16_f32 v{ob+2*pos}, v{r[0]}, v{r[1]}")
                a.e(f"v_cvt_pk_bf16_f32 v{ob+2*pos+1}, v{r[2]}, v{r[3]}")
            a.e(f"""
            buffer_store_dwordx4 v[{ob}:{ob+3}], v{aMain}, {srd(SRD_C)}, s{sSO} offen sc1
            buffer_store_dwordx4 v[{ob+4}:{ob+7}], v{aMain}, {srd(SRD_C)}, s{sSO} offen offset:1024 sc1
            buffer_store_dwordx2 v[{ob+8}:{ob+9}], v{aExtA}, {srd(SRD_C)}, s{sSO} offen offset:2048 sc1
            s_add_u32 s{sSO}, s{sSO}, {8*2560}
            """)
        stamp(a, 4)
        a.e("s_waitcnt vmcnt(0)\n s_barrier")
        set_flag(a, t0, t1)
        a.e("s_branch L_PHASE2")
    else:
        P = {n: [fr + (i * 2 + k) * 4 for k in range(2)] for i, n in enumerate(["T0", "T1", "T2", "T3", "T4A", "T4B"])}
        a.e(f"v_cmp_gt_u32 vcc, 8, v{lr}\n v_mov_b32 v{t0}, 0x3f803f80")
        for rt in range(4):
            k, h = rt >> 1, rt & 1
            for t, n in ((2, "T2"), (3, "T3"), (4, "T4B")):
                r = ACC[rt][t]; d = P[n][k] + 2 * h
                a.e(f"v_cvt_pk_bf16_f32 v{d}, v{r}, v{r+1}\n v_cvt_pk_bf16_f32 v{d+1}, v{r+2}, v{r+3}")
            d = P["T4B"][k] + 2 * h
            a.e(f"v_cndmask_b32 v{d}, v{d}, v{t0}, vcc\n v_cndmask_b32 v{d+1}, v{d+1}, v{t0}, vcc")
            for t, n in ((0, "T0"), (1, "T1"), (4, "T4A")):
                r = [ACC[rt][t] + i for i in range(4)]; d = P[n][k] + 2 * h
                a.e("\n".join(phi4(r, tm, sLOG, sEPS)))
                a.e(f"v_cvt_pk_bf16_f32 v{d}, v{r[0]}, v{r[1]}\n v_cvt_pk_bf16_f32 v{d+1}, v{r[2]}, v{r[3]}")
        prods = [("T0", "T2"), ("T0", "T4B"), ("T4A", "T2"), ("T1", "T3"), ("T1", "T4B"), ("T4A", "T3"), ("T4A", "T4B")]
        R = [ACC[0][0] + 4 * i for i in range(7)]
        a.e("s_nop 1")
        for k in range(2):
            for i, (x, y) in enumerate(prods):
                c = "0" if k == 0 else v(R[i], 4)
                a.e(f"v_mfma_f32_16x16x32_bf16 {v(R[i],4)}, {v(P[x][k],4)}, {v(P[y][k],4)}, {c}")
        a.e(f"v_lshlrev_b32 v{t0}, 2, v0\n v_add_u32 v{t1}, {IMG}, v{t0}\n v_add_u32 v{t2}, 4096, v{t0}\n s_nop 4")
        def wr(i, addr, off, lo, hi):
            a.e(f"s_mov_b32 exec_lo, {lo:#x}\n s_mov_b32 exec_hi, {hi:#x}")
            a.e(f"ds_write_b128 v{addr}, {v(R[i],4)} offset:{off}")
        a.e(f"ds_write_b128 v{aMain}, {v(R[0],4)}")
        a.e(f"ds_write_b128 v{aMain}, {v(R[3],4)} offset:1760")
        wr(1, aExtA, 0, 0x0f010f01, 0x0f010f01)
        wr(4, aExtB, 1760, 0xf001f001, 0xf001f001)
        wr(2, aMain, 64, 0x0000ffff, 0)
        wr(5, aMain, 1760 + 48, 0xffff0000, 0)
        wr(6, aExtA, 64, 0x00000f01, 0)
        wr(6, aExtB, 1760 + 48, 0xf0010000, 0)
        a.e("s_mov_b64 exec, -1")
        stamp(a, 4)
        a.e("s_waitcnt lgkmcnt(0)\n s_barrier")
        for n in range(7):
            a.e(f"ds_read2st64_b32 v[{fr+2*n}:{fr+2*n+1}], v{t1} offset0:{4*n} offset1:{28+4*n}")
        for n in range(7):
            a.e(f"s_waitcnt lgkmcnt({6-n})")
            a.e(f"v_add_f32 v{fr+2*n}, v{fr+2*n}, v{fr+2*n+1}")
            a.e(f"buffer_atomic_add_f32 v{fr+2*n}, v{t0 if n < 4 else t2}, {srd(SRD_C)}, 0 offen offset:{1024*(n&3)}")
        a.e("s_waitcnt vmcnt(0)\n s_barrier")
        set_flag(a, t0, t1)
        a.e("s_branch L_PHASE2")
    return ra.hi

def a1(a):
    ra = RA(2)
    t0, t1, t2, t3 = [ra.a() for _ in range(4)]
    vo = [ra.a() for _ in range(5)]
    lr, g, base, baseh, phi, phih, ad, adh, so_u, otap = [ra.a() for _ in range(10)]
    KB, VB = 5120, 5120 + 40960
    assert VB + 40960 <= HB
    sTI, sCH, sSO, sM0, sT, sSH, sCG, sU = 60, 61, 62, 63, 64, 65, 66, 67
    NB = 2048 * 1280
    a.c("A1")
    if "noa1" in EX: a.e("s_waitcnt lgkmcnt(0)\n s_branch L_FIN")
    a.e(f"""
    s_lshr_b32 s{sTI}, s{S_RT}, 1
    s_and_b32 s{sCH}, s{S_RT}, 1
    s_lshl_b32 s{sT}, s{sTI}, 3
    s_add_u32 s{sT}, s{sT}, s{S_WAVE}
    s_mul_i32 s{sSO}, s{sT}, {8*1280}
    s_mul_i32 s{sT}, s{sCH}, 640
    s_add_u32 s{sSO}, s{sSO}, s{sT}
    s_mul_i32 s{sM0}, s{S_WAVE}, 5120
    s_and_b32 s{sT}, s{S_WAVE}, 1
    s_lshl_b32 s{sT}, s{sT}, 2
    """)
    for x in range(320): assert (x * 1639) >> 16 == x // 40
    for j in range(5):
        sub = 1024 * j if j < 4 else 0
        a.e(f"""
        v_add_u32 v{t0}, {64*j}, v{L}
        v_mul_u32_u24 v{t1}, 1639, v{t0}
        v_lshrrev_b32 v{t1}, 16, v{t1}
        v_mul_u32_u24 v{t2}, 40, v{t1}
        v_sub_u32 v{t0}, v{t0}, v{t2}
        v_and_b32 v{t2}, 2, v{t1}
        v_or_b32 v{t2}, s{sT}, v{t2}
        v_xor_b32 v{t0}, v{t0}, v{t2}
        v_lshlrev_b32 v{t0}, 4, v{t0}
        v_mul_u32_u24 v{t1}, 1280, v{t1}
        v_add_u32 v{t0}, v{t0}, v{t1}
        v_subrev_u32 v{vo[j]}, {sub}, v{t0}
        """)
    a.e(f"""
    v_and_b32 v{lr}, 15, v{L}
    s_mul_i32 s{sT}, s{sCH}, 320
    v_add_u32 v{so_u}, s{sT}, v{lr}
    v_lshlrev_b32 v{otap}, 3, v{so_u}
    v_lshlrev_b32 v{t3}, 4, v{L}
    s_waitcnt lgkmcnt(0)
    """)
    mk_srd(a, SRD_A, P_K, NB); mk_srd(a, SRD_B, P_V, NB); mk_srd(a, SRD_D, P_SH, 640 * 8)
    def dma(srdn, lbase, so, js=range(5)):
        o = []; first = True
        for j in js:
            if first and j < 4:
                o += [f"s_add_u32 m0, s{sM0}, {lbase}", "s_nop 0"]; first = False
            if j == 4:
                o += [f"s_add_u32 m0, s{sM0}, {lbase+4096}", "s_nop 0"]
            off = f" offset:{1024*j}" if 0 < j < 4 else ""
            o.append(f"buffer_load_dwordx4 v{vo[j]}, {srd(srdn)}, s{so} offen{off} nt lds")
        return o
    taps = [ra.a(2) for _ in range(5)]
    a.e(f"s_lshr_b32 s{sCG}, s{S_WAVE}, 1\n s_lshl_b32 s{sT}, s{sCG}, 7")
    for n in range(5):
        a.e(f"buffer_load_dwordx2 v[{taps[n]}:{taps[n]+1}], v{otap}, {srd(SRD_D)}, s{sT} offen offset:{512*n}")
    lab = a.newlab("a1_nohalo")
    a.e(f"""
    s_cmp_lg_u32 s{S_WAVE}, 7
    s_cbranch_scc1 {lab}
    s_sub_u32 s{sSH}, s{sSO}, {64*1280}
    s_cmp_eq_u32 s{sTI}, 0
    s_cselect_b32 s{sSH}, {NB}, s{sSH}
    """)
    a.e("\n".join(dma(SRD_A, KB - 8 * 5120, sSH, js=(2, 3, 4))))
    a.lab(lab)
    a.e("\n".join(dma(SRD_A, KB, sSO)))
    a.e("\n".join(dma(SRD_B, VB, sSO)))
    mk_srd(a, SRD_C, P_WS, T_BYTES)
    mk_srd(a, SRD_FL, P_WS, 256 * 128, off=WS_FL)
    a.e(f"""
    v_lshrrev_b32 v{g}, 4, v{L}
    v_lshrrev_b32 v{t0}, 2, v{lr}
    v_lshl_add_u32 v{t1}, v{g}, 3, v{t0}
    v_mul_u32_u24 v{base}, 640, v{t1}
    v_and_b32 v{t2}, 3, v{lr}
    v_lshl_add_u32 v{base}, v{t2}, 3, v{base}
    s_and_b32 s{sT}, s{S_WAVE}, 1
    s_mul_i32 s{sU}, s{sT}, {32*640}
    s_add_u32 s{sU}, s{sU}, {KB}
    v_add_u32 v{base}, s{sU}, v{base}
    v_lshrrev_b32 v{t0}, 1, v{t0}
    v_and_b32 v{t1}, 1, v{g}
    v_lshl_or_b32 v{phi}, v{t1}, 1, v{t0}
    v_xor_b32 v{phi}, s{sCG}, v{phi}
    v_lshlrev_b32 v{phi}, 5, v{phi}
    v_xor_b32 v{phih}, 64, v{phi}
    v_add_u32 v{ad}, v{phi}, v{base}
    v_add_u32 v{adh}, v{phih}, v{base}
    v_subrev_u32 v{adh}, {4*640}, v{adh}
    v_lshlrev_b32 v{t0}, 12, v{so_u}
    s_lshl_b32 s{sT}, s{sT}, 6
    s_lshl_b32 s{sU}, s{sTI}, 7
    s_add_u32 s{sT}, s{sT}, s{sU}
    v_lshlrev_b32 v{t1}, 4, v{g}
    v_add_u32 v{t1}, s{sT}, v{t1}
    v_sub_u32 v{so_u}, 4080, v{t1}
    v_add_u32 v{so_u}, v{so_u}, v{t0}
    s_add_u32 s{sSH}, s{S_CB}, s{S_WAVE}
    s_lshl_b32 s{sU}, s{sCG}, 16
    s_lshl_b32 s{sT}, s{sSH}, 12
    """)
    mk_srd(a, SRD_A, P_H, T_BYTES)
    H = ra.a(16, 4); G = ra.a(20, 4)
    a.e("s_barrier")
    h_load(a, H, t3, SRD_A, sT)
    conv_sload(a)
    KR = [ra.a(6, 2) for _ in range(5)]; VR = [ra.a(4, 2) for _ in range(5)]
    W = [ra.a(5) for _ in range(5)]; U = ra.a(8); O = [ra.a(4, 4) for _ in range(2)]; X = ra.a(4)
    a.e("s_waitcnt vmcnt(14)")
    for n in range(5):
        tp, w = taps[n], W[n]
        a.e(f"""
        v_alignbit_b32 v{w}, v{tp}, v{tp}, 16
        v_alignbit_b32 v{w+1}, v{tp+1}, v{tp+1}, 16
        v_and_b32 v{w+2}, 0xffff0000, v{tp}
        v_and_b32 v{w+3}, 0xffff, v{tp}
        v_and_b32 v{w+4}, 0xffff, v{tp+1}
        v_or_b32 v{w+2}, v{w+2}, v{w+4}
        v_and_b32 v{w+4}, 0xffff0000, v{tp+1}
        """)
    stamp(a, 1)
    a.e("s_waitcnt vmcnt(4) lgkmcnt(0)\n s_barrier")
    stamp(a, 2)
    if "g1only" in EX: a.e("s_branch L_FIN")
    if STAMPS: a.e("s_waitcnt lgkmcnt(0)")
    def rd(n):
        o = 128 * n
        return [f"ds_read_b64_tr_b16 {v(KR[n],2)}, v{adh} offset:{o}",
                f"ds_read_b64_tr_b16 {v(KR[n]+2,2)}, v{ad} offset:{o}",
                f"ds_read_b64_tr_b16 {v(KR[n]+4,2)}, v{ad} offset:{o+2560}",
                f"ds_read_b64_tr_b16 {v(VR[n],2)}, v{ad} offset:{VB-KB+o}",
                f"ds_read_b64_tr_b16 {v(VR[n]+2,2)}, v{ad} offset:{VB-KB+o+2560}"]
    a.e("\n".join(rd(0) + rd(1) + rd(2)))
    for n in range(5):
        k, w, ob = KR[n], W[n], O[n & 1]
        rem = min(4, n + 2) - n
        a.e(f"s_waitcnt lgkmcnt({5*rem})")
        if n + 3 < 5:
            a.e("\n".join(rd(n + 3)))
        for m in range(4):
            a.e(f"v_dot2_f32_bf16 v{U+2*m}, v{k+m}, v{w+4}, 0")
            a.e(f"v_dot2_f32_bf16 v{U+2*m+1}, v{k+m+1}, v{w+1}, 0")
        for m in range(4):
            a.e(f"v_dot2_f32_bf16 v{U+2*m}, v{k+m+1}, v{w+2}, v{U+2*m}")
            a.e(f"v_dot2_f32_bf16 v{U+2*m+1}, v{k+m+2}, v{w}, v{U+2*m+1}")
        for m in range(4):
            a.e(f"v_dot2_f32_bf16 v{U+2*m}, v{k+m+2}, v{w+3}, v{U+2*m}")
        for m in range(4):
            x = X + 2 * (m & 1)
            a.e(f"""
            v_lshlrev_b32 v{x}, 16, v{VR[n]+m}
            v_and_b32 v{x+1}, 0xffff0000, v{VR[n]+m}
            v_mul_f32 v{x+1}, v{x+1}, v{U+2*m+1}
            v_mul_f32 v{x}, v{x}, v{U+2*m}
            v_cvt_pk_bf16_f32 v{ob+3-m}, v{x+1}, v{x}
            """)
        a.e(f"buffer_store_dwordx4 {v(ob,4)}, v{so_u}, {srd(SRD_C)}, s{sU} offen sc1")
        if n < 4: a.e(f"s_add_u32 s{sU}, s{sU}, {4<<16}")
    stamp(a, 3)
    a.e("s_waitcnt vmcnt(5)")
    h_stage(a, H, G, S_WAVE, t3, t2, sT)
    nz = a.newlab("a1_nz")
    a.e(f"s_cmp_lg_u32 s{S_WAVE}, 0\n s_cbranch_scc1 {nz}")
    poll_z(a, t0, t1)
    a.lab(nz)
    a.e("s_waitcnt vmcnt(0)\n s_barrier")
    stamp(a, 4)
    set_flag(a, t0, t1)
    return ra.hi

def conv(a):
    ra = RA(2)
    lr, g, t0, t1, t2, aB, aT, vrow = [ra.a() for _ in range(8)]
    aA = [ra.a() for _ in range(4)]
    z4 = ra.a(4, 4); o4 = ra.a(4, 4); AD = ra.a(4, 4)
    Q = ra.a(16, 4)
    AF = [[ra.a(4, 4) for _ in range(8)] for _ in range(2)]
    BF = [[ra.a(4, 4) for _ in range(8)] for _ in range(2)]
    ACC = [ra.a(4, 4) for _ in range(8)]
    sD, sR, sSO, sT, sH0, sDV, sH, sQO = 60, 61, 62, 63, 64, 65, 66, 67
    fin, idle = a.newlab("conv_fin"), a.newlab("conv_idle")
    a.c("conv")
    mk_srd(a, SRD_A, P_WS, T_BYTES); mk_srd(a, SRD_B, P_Q, 2048 * 1280); mk_srd(a, SRD_C, P_OUT, 2048 * 2560)
    def qtouch():
        a.e(f"""
        s_cmp_eq_u32 s{S_P2}, 8
        s_cselect_b32 s68, 63, 31
        s_cselect_b32 s69, 31, 63
        s_and_b32 s{sT}, s{S_J}, 7
        s_lshl_b32 s{sT}, s{sT}, 3
        s_add_u32 s{sT}, s{sT}, s{S_WAVE}
        s_and_b32 s{sT}, s{sT}, s68
        s_add_u32 s70, s69, 1
        s_mul_i32 s{sT}, s{sT}, s70
        s_mul_i32 s{sT}, s{sT}, 1280
        s_lshl_b32 s70, s{S_CB}, 1
        s_add_u32 s{sT}, s{sT}, s70
        v_and_b32 v{t2}, s69, v{L}
        v_mul_u32_u24 v{t2}, 1280, v{t2}
        buffer_load_dword v250, v{t2}, {srd(SRD_B)}, s{sT} offen nt
        """)
    def qgather(ns):
        for n in ns:
            l8, le = a.newlab("q8"), a.newlab("qe")
            a.e(f"""
            s_add_u32 s{sT}, s{sQO}, {n*64*1280}
            s_cmp_eq_u32 s{S_P2}, 8
            s_cbranch_scc1 {l8}
            buffer_load_dwordx2 {v(Q+4*n,2)}, v{vrow}, {srd(SRD_B)}, s{sT} offen
            s_branch {le}
            """)
            a.lab(l8)
            a.e(f"buffer_load_dwordx4 {v(Q+4*n,4)}, v{vrow}, {srd(SRD_B)}, s{sT} offen nt")
            a.lab(le)
    a.e(f"""
    v_and_b32 v{lr}, 15, v{L}
    v_lshrrev_b32 v{g}, 4, v{L}
    v_mul_u32_u24 v{vrow}, 1280, v{L}
    s_mul_i32 s{sQO}, s{S_WAVE}, {256*1280}
    s_lshl_b32 s{sT}, s{S_CB}, 1
    s_add_u32 s{sQO}, s{sQO}, s{sT}
    s_cmp_ge_u32 s{S_WAVE}, s{S_P2}
    s_cbranch_scc1 {idle}
    s_add_u32 s{sD}, s{S_CB}, s{S_WAVE}
    s_lshl_b32 s{sSO}, s{sD}, 12
    s_mul_i32 s{sR}, s{S_WAVE}, {UP}
    s_mul_i32 s{sH}, s{S_WAVE}, {HP}
    s_add_u32 s{sH}, s{sH}, {HB}
    s_cmp_ge_u32 s{sD}, 320
    s_cselect_b32 s{sT}, 32, 0
    s_add_u32 s{sT}, s{sT}, 192
    v_and_b32 v{t0}, 31, v{L}
    v_add_u32 v{t0}, s{sT}, v{t0}
    v_lshlrev_b32 v{aB}, 7, v{t0}
    """)
    for i in range(4):
        a.e(f"v_mov_b32 v{z4+i}, 0")
    a.e(f"""
    v_and_b32 v{t1}, 1, v{lr}
    v_cmp_eq_u32 vcc, 1, v{t1}
    v_mov_b32 v{t1}, {H_O}
    v_mov_b32 v{t2}, 2
    v_cndmask_b32 v{t1}, v{t1}, v{t2}, vcc
    v_lshl_add_u32 v{t1}, v{lr}, 1, v{t1}
    v_lshl_add_u32 v{t1}, v{g}, 4, v{t1}
    v_add_u32 v{aA[0]}, s{sH}, v{t1}
    v_add_u32 v{aA[1]}, 1024, v{aA[0]}
    v_add_u32 v{aA[2]}, 2048, v{aA[0]}
    v_add_u32 v{aA[3]}, 3072, v{aA[0]}
    v_lshlrev_b32 v{t0}, 4, v{L}
    v_add_u32 v{aT}, s{sR}, v{t0}
    s_and_b32 s{sT}, s{sD}, 1
    s_lshl_b32 s{sT}, s{sT}, 4
    s_lshr_b32 s{sDV}, s5, s{sT}
    s_and_b32 s{sDV}, s{sDV}, 0xffff
    s_mov_b32 exec_lo, -1
    s_mov_b32 exec_hi, 0
    ds_write_b128 v{aT}, v[{z4}:{z4+3}] offset:4096
    s_mov_b64 exec, -1
    v_lshl_add_u32 v{t1}, v{g}, 3, v{lr}
    v_sub_u32 v{t1}, 15, v{t1}
    v_and_b32 v{t2}, 1, v{t1}
    v_lshlrev_b32 v{t2}, 4, v{t2}
    v_lshlrev_b32 v{t2}, v{t2}, s{sDV}
    v_ashrrev_i32 v{t1}, 1, v{t1}
    """)
    for r in range(4):
        a.e(f"v_cmp_eq_u32 vcc, {r}, v{t1}\n s_nop 1\n v_cndmask_b32 v{AD+r}, 0, v{t2}, vcc")
    stamp(a, 5)
    poll(a, SRD_FL, [aB], [t1])
    stamp(a, 6)
    UR = AF[1][0]
    for j in range(4):
        a.e(f"buffer_load_dwordx4 {v(UR+4*j,4)}, v{t0}, {srd(SRD_A)}, s{sSO} offen offset:{1024*j} sc1")
    for j in range(4):
        a.e(f"s_waitcnt vmcnt({3-j})\n ds_write_b128 v{aT}, {v(UR+4*j,4)} offset:{1024*j}")
    a.e(f"""
    v_lshlrev_b32 v{t1}, 5, v{lr}
    v_sub_u32 v{aB}, 480, v{t1}
    v_lshl_add_u32 v{aB}, v{g}, 4, v{aB}
    v_add_u32 v{aB}, s{sR}, v{aB}
    v_lshl_add_u32 v{aT}, v{g}, 3, v{t1}
    v_add_u32 v{aT}, s{sR}, v{aT}
    """)
    def reads(r):
        b = r & 1; o = []
        for i in range(8):
            o.append(f"ds_read_b128 {v(BF[b][i],4)}, v{aB} offset:{3584 - 512*i + 64*r}")
            o0 = 128 * (i & 1) + 16 * r
            o.append(f"ds_read2_b32 {v(AF[b][i],2)}, v{aA[i>>1]} offset0:{o0} offset1:{o0+1}")
            o.append(f"ds_read2_b32 {v(AF[b][i]+2,2)}, v{aA[i>>1]} offset0:{o0+2} offset1:{o0+3}")
        return o
    def mf(r):
        b = r & 1; o = []
        if r == 0:
            for c in range(8):
                o.append(f"v_mfma_f32_16x16x32_bf16 {v(ACC[c],4)}, {v(AD,4)}, {v(BF[b][c],4)}, 0")
        for q in range(8):
            for c in range(q, 8):
                o.append(f"v_mfma_f32_16x16x32_bf16 {v(ACC[c],4)}, {v(AF[b][q],4)}, {v(BF[b][c-q],4)}, {v(ACC[c],4)}")
        return o
    stamp(a, 7)
    a.e("s_waitcnt lgkmcnt(0)\n s_barrier")
    a.e("\n".join(reads(0)))
    qtouch()
    for r in range(8):
        a.e("s_waitcnt lgkmcnt(0)")
        if "cprio" in EX:
            a.e(f"s_setprio {3 - r // 2}")
        if 3 <= r <= 6: qgather([r - 3])
        a.e("\n".join(interleave(mf(r), reads(r + 1) if r < 7 else [])))
    stamp(a, 8)
    T = AF[0][0]
    for c in range(8):
        t = T + 2 * c
        if c == 6: a.e("s_nop 3")
        a.e(f"""
        v_cvt_pk_bf16_f32 v{t}, v{ACC[c]}, v{ACC[c]+1}
        v_cvt_pk_bf16_f32 v{t+1}, v{ACC[c]+2}, v{ACC[c]+3}
        ds_write_b64 v{aT}, v[{t}:{t+1}] offset:{512*c}
        """)
    a.e(f"s_branch {fin}")
    a.lab(idle)
    a.e("s_barrier")
    qtouch()
    a.e("s_waitcnt vmcnt(0)")
    qgather(range(4))
    a.lab(fin)
    a.e(f"""
    v_lshrrev_b32 v{t0}, 2, v{lr}
    v_mul_u32_u24 v{t0}, {UP}, v{t0}
    v_and_b32 v{t1}, 3, v{lr}
    v_lshl_add_u32 v{t0}, v{t1}, 3, v{t0}
    v_lshl_add_u32 v{t0}, v{g}, 5, v{t0}
    s_lshl_b32 s{sT}, s{S_WAVE}, 9
    v_add_u32 v{t0}, s{sT}, v{t0}
    v_lshlrev_b32 v{vrow}, 1, v{vrow}
    s_mul_i32 s{sSO}, s{S_WAVE}, {256*2560}
    s_lshl_b32 s{sT}, s{S_CB}, 1
    s_add_u32 s{sSO}, s{sSO}, s{sT}
    s_waitcnt lgkmcnt(0)
    s_barrier
    """)
    stamp(a, 9)
    Y = BF[0][0]; X = BF[1][0]
    def tail(nd):
        for n in range(4):
            for k in range(nd // 2):
                a.e(f"ds_read_b64_tr_b16 {v(Y+4*n+2*k,2)}, v{t0} offset:{128*n + 4*UP*k}")
        a.e("s_waitcnt vmcnt(0) lgkmcnt(0)")
        for n in range(4):
            for i in range(nd):
                y, q = Y + 4 * n + i, Q + 4 * n + i
                a.e(f"""
                v_lshlrev_b32 v{X}, 16, v{y}
                v_and_b32 v{X+1}, 0xffff0000, v{y}
                v_lshlrev_b32 v{X+2}, 16, v{q}
                v_and_b32 v{X+3}, 0xffff0000, v{q}
                v_mul_f32 v{X}, v{X}, v{X+2}
                v_mul_f32 v{X+1}, v{X+1}, v{X+3}
                v_cvt_pk_bf16_f32 v{y}, v{X}, v{X+1}
                """)
            a.e(f"buffer_store_dwordx{nd} {v(Y+4*n,nd)}, v{vrow}, {srd(SRD_C)}, s{sSO} offen {OST if nd == 4 else ''}")
            if n < 3: a.e(f"s_add_u32 s{sSO}, s{sSO}, {64*2560}")
    l8 = a.newlab("t8")
    a.e(f"s_cmp_eq_u32 s{S_P2}, 8\n s_cbranch_scc1 {l8}")
    tail(2)
    a.e("s_branch L_FIN")
    a.lab(l8)
    tail(4)
    a.e("s_branch L_FIN")
    return ra.hi

KVI = 81920
RED = KVI + 28672
def g2(a):
    ra = RA(2)
    lr, g, t0, t1, t2, t3 = [ra.a() for _ in range(6)]
    m0a, m1a = ra.a(), ra.a()
    x0a = [ra.a() for _ in range(4)]; x1a = [ra.a() for _ in range(4)]
    wm = [ra.a() for _ in range(4)]; wx = [ra.a() for _ in range(4)]
    v16, v8 = ra.a(), ra.a()
    ce = ra.a(4, 4)
    PQR = [[ra.a(10, 2) for _ in range(2)] for _ in range(4)]
    KF = [[ra.a(4, 4) for _ in range(2)] for _ in range(2)]
    CT = [[[ra.a(4, 4) for _ in range(2)] for _ in range(2)] for _ in range(2)]
    OPB = [[ra.a(4, 4) for _ in range(2)] for _ in range(2)]
    OX = [ra.a(4, 4) for _ in range(2)]
    XT = [ra.a() for _ in range(2)]
    rc = [ra.a() for _ in range(2)]
    WFB = [[ra.a(4, 4) for _ in range(4)] for _ in range(2)]
    WF = WFB[0]
    ACC = [[ra.a(4, 4) for _ in range(4)] for _ in range(2)]
    LD = CT[0][0][0]
    sKH, sRW, sT, sSO, sM, sU = 60, 61, 62, 63, 64, 65
    a.c("G2")
    a.e(f"""
    s_lshr_b32 s{sKH}, s{S_WAVE}, 2
    s_and_b32 s{sRW}, s{S_WAVE}, 3
    v_and_b32 v{lr}, 15, v{L}
    v_lshrrev_b32 v{g}, 4, v{L}
    v_lshlrev_b32 v{v16}, 4, v{L}
    v_lshlrev_b32 v{v8}, 3, v{L}
    s_lshl_b32 s{sT}, s{S_RT}, 2
    s_add_u32 s{sT}, s{sT}, 128
    v_and_b32 v{t0}, 3, v{L}
    v_add_u32 v{t0}, s{sT}, v{t0}
    v_lshlrev_b32 v{t0}, 7, v{t0}
    """)
    mk_srd(a, SRD_B, P_WS, T_BYTES, off=WS_PQ)
    mk_srd(a, SRD_C, P_WS, KV_BYTES, off=WS_KV); mk_srd(a, SRD_D, P_OUT, 2048 * 2560)
    stamp(a, 5)
    poll(a, SRD_FL, [t0], [t1])
    a.e(f"""
    s_lshl_b32 s{sT}, s{S_RT}, 3
    s_lshl_b32 s{sU}, s{sRW}, 1
    s_add_u32 s{sT}, s{sT}, s{sU}
    s_lshl_b32 s{sT}, s{sT}, 3
    s_lshl_b32 s{sU}, s{sKH}, 2
    s_add_u32 s{sT}, s{sT}, s{sU}
    s_mul_i32 s{sU}, s{sT}, 2560
    """)
    def pqload(p):
        for rt in range(2):
            r = PQR[p][rt]
            a.e(f"""
            s_add_u32 s{sM}, s{sU}, {(rt*8+p)*2560}
            buffer_load_dwordx4 {v(r,4)}, v{v16}, {srd(SRD_B)}, s{sM} offen sc1
            buffer_load_dwordx4 {v(r+4,4)}, v{v16}, {srd(SRD_B)}, s{sM} offen offset:1024 sc1
            buffer_load_dwordx2 {v(r+8,2)}, v{v8}, {srd(SRD_B)}, s{sM} offen offset:2048 sc1
            """)
    pqload(0)
    a.e(f"""
    s_mul_i32 s{sT}, s{sKH}, {16*880}
    s_add_u32 s{sT}, s{sT}, {KVI}
    v_mul_u32_u24 v{t0}, 40, v{lr}
    v_add_u32 v{t0}, s{sT}, v{t0}
    v_lshl_add_u32 v{m0a}, v{g}, 3, v{t0}
    v_lshrrev_b32 v{t1}, 2, v{lr}
    v_add_u32 v{t1}, 16, v{t1}
    v_and_b32 v{t2}, 3, v{lr}
    v_cmp_eq_u32 vcc, 0, v{t2}
    v_min_u32 v{t2}, 2, v{t2}
    v_add_u32 v{t2}, 19, v{t2}
    v_cndmask_b32 v{t1}, v{t2}, v{t1}, vcc
    v_mul_u32_u24 v{t1}, 40, v{t1}
    v_add_u32 v{t1}, s{sT}, v{t1}
    v_lshl_add_u32 v{m1a}, v{g}, 3, v{t1}
    v_add_u32 v{t0}, 32, v{t0}
    v_add_u32 v{t1}, 32, v{t1}
    s_add_u32 s{sT}, s{sT}, {21*40}
    v_mov_b32 v{t2}, s{sT}
    """)
    for x in range(4):
        a.e(f"v_cmp_eq_u32 vcc, {x}, v{g}\n s_nop 1\n v_cndmask_b32 v{x0a[x]}, v{t2}, v{t0}, vcc\n v_cndmask_b32 v{x1a[x]}, v{t2}, v{t1}, vcc")
    a.e(f"""
    s_mul_i32 s{sT}, s{sKH}, {16*2560}
    v_lshrrev_b32 v{t0}, 2, v{lr}
    v_and_b32 v{t1}, 3, v{lr}
    v_lshl_add_u32 v{t1}, v{t1}, 3, s{sT}
    v_lshl_add_u32 v{t2}, v{g}, 2, v{t0}
    v_lshl_add_u32 v{wm[0]}, v{t2}, 7, v{t1}
    v_bfe_u32 v{t2}, v{t2}, 1, 2
    v_lshl_add_u32 v{wm[0]}, v{t2}, 5, v{wm[0]}
    v_mul_u32_u24 v{t2}, 20, v{t0}
    v_add3_u32 v{t2}, v{t2}, v{g}, 16
    v_lshl_add_u32 v{wx[0]}, v{t2}, 7, v{t1}
    v_bfe_u32 v{t2}, v{t2}, 1, 2
    v_lshl_add_u32 v{wx[0]}, v{t2}, 5, v{wx[0]}
    """)
    for t in range(1, 4):
        a.e(f"v_xor_b32 v{wm[t]}, {32*t}, v{wm[0]}\n v_xor_b32 v{wx[t]}, {32*t}, v{wx[0]}")
    a.e(f"""
    v_mov_b32 v{ce}, 0
    v_mov_b32 v{ce+1}, {f32(1e-6)}
    v_mov_b32 v{ce+2}, 0
    v_mov_b32 v{ce+3}, 0
    v_lshlrev_b32 v{t3}, 4, v0
    """)
    stamp(a, 6)
    np_ = a.newlab("g2_np")
    a.e(f"s_cmp_lg_u32 s{S_WAVE}, 0\n s_cbranch_scc1 {np_}")
    a.e(f"v_lshlrev_b32 v{t0}, 7, v{L}\n v_add_u32 v{t1}, {64*128}, v{t0}")
    poll(a, SRD_FL, [t0, t1], [t2, rc[0]])
    a.lab(np_)
    a.e("s_barrier")
    stamp(a, 7)
    for n in range(7):
        a.e(f"s_mov_b32 s{sT}, {8192*n}\n buffer_load_dwordx4 {v(LD+4*n,4)}, v{t3}, {srd(SRD_C)}, s{sT} offen sc1")
    pqload(1)
    a.e(f"v_lshrrev_b32 v{t3}, 1, v{t3}\n v_add_u32 v{t3}, {KVI}, v{t3}")
    for n in range(7):
        r = LD + 4 * n
        a.e(f"""
        s_waitcnt vmcnt({12-n})
        v_cvt_pk_bf16_f32 v{r}, v{r}, v{r+1}
        v_cvt_pk_bf16_f32 v{r+1}, v{r+2}, v{r+3}
        ds_write_b64 v{t3}, {v(r,2)} offset:{4096*n}
        """)
    a.e("s_waitcnt lgkmcnt(0)\n s_barrier")
    stamp(a, 8)
    def kvreads(h):
        b = h & 1; x = h & 3
        mo, xo = (0, 2) if x == 0 else (2, 0)
        return [f"ds_read_b64 {v(KF[b][0]+mo,2)}, v{m0a} offset:{880*h}",
                f"ds_read_b64 {v(KF[b][0]+xo,2)}, v{x0a[x]} offset:{880*h}",
                f"ds_read_b64 {v(KF[b][1]+mo,2)}, v{m1a} offset:{880*h}",
                f"ds_read_b64 {v(KF[b][1]+xo,2)}, v{x1a[x]} offset:{880*h}"]
    def woreads(h0, b):
        o = []
        for t in range(4):
            o.append(f"ds_read_b64_tr_b16 {v(WFB[b][t],2)}, v{wm[t]} offset:{2560*h0}")
            o.append(f"ds_read_b64_tr_b16 {v(WFB[b][t]+2,2)}, v{wm[t^2]} offset:{2560*(h0+1)}")
        return o
    def wxreads(hb, b):
        o = []
        for t in range(4):
            o.append(f"ds_read_b64_tr_b16 {v(WFB[b][t],2)}, v{wx[t]} offset:{2560*hb}")
            o.append(f"ds_read_b64_tr_b16 {v(WFB[b][t]+2,2)}, v{wx[t]} offset:{2560*(hb+4)}")
        return o
    def xcopy(h):
        x = h & 3; o = []
        if x >= 2 and h < 16:
            for rt in range(2):
                r = PQR[h >> 2][rt]
                o += [f"v_mov_b32 v{r+2*x}, v{r+2}", f"v_mov_b32 v{r+2*x+1}, v{r+3}"]
        return o
    def omf(h):
        b = h & 1; x = h & 3; o = []
        for rt in range(2):
            w = PQR[h >> 2][rt] + 2 * x
            o.append(f"v_mfma_f32_16x16x32_bf16 {v(CT[b][rt][1],4)}, {v(KF[b][1],4)}, {v(w,4)}, {v(ce,4)}")
        for rt in range(2):
            w = PQR[h >> 2][rt] + 2 * x
            o.append(f"v_mfma_f32_16x16x32_bf16 {v(CT[b][rt][0],4)}, {v(KF[b][0],4)}, {v(w,4)}, 0")
        return o
    def norm(h):
        b = h & 1; o = []
        for rt in range(2):
            o.append(f"v_rcp_f32 v{rc[rt]}, v{CT[b][rt][1]+1}")
        for rt in range(2):
            c = CT[b][rt][0]; e = CT[b][rt][1]
            o.append(f"v_mul_f32 v{XT[rt] if h & 1 == 0 else e}, v{e}, v{rc[rt]}")
            for i in range(4):
                o.append(f"v_mul_f32 v{c+i}, v{c+i}, v{rc[rt]}")
        for rt in range(2):
            c = CT[b][rt][0]; e = CT[b][rt][1]
            d = OPB[(h >> 1) & 1][rt] + 2 * (h & 1)
            if h & 1:
                o.append(f"v_cvt_pk_bf16_f32 v{OX[rt]+((h&7)>>1)}, v{XT[rt]}, v{e}")
            o.append(f"v_cvt_pk_bf16_f32 v{d}, v{c}, v{c+1}")
            o.append(f"v_cvt_pk_bf16_f32 v{d+1}, v{c+2}, v{c+3}")
        return o
    seen = set()
    def mainmf(src, b, rts):
        o = []
        for rt in rts:
            for t in range(4):
                c = v(ACC[rt][t], 4) if rt in seen else "0"
                o.append(f"v_mfma_f32_16x16x32_bf16 {v(ACC[rt][t],4)}, {v(WFB[b][t],4)}, {v(src[rt],4)}, {c}")
            seen.add(rt)
        return o
    P = lambda i: OPB[i & 1]
    mains = {2: [(P(0), 0, [0])], 3: [(P(0), 0, [1])], 4: [(P(1), 1, [0])], 5: [(P(1), 1, [1])],
             6: [(P(2), 0, [0])], 7: [(P(2), 0, [1])], 8: [(OX, 1, [0, 1])], 9: [(P(3), 0, [0, 1])],
             10: [(P(4), 1, [0])], 11: [(P(4), 1, [1])], 12: [(P(5), 0, [0])], 13: [(P(5), 0, [1])],
             14: [(P(6), 1, [0])], 15: [(P(6), 1, [1])], 16: [(OX, 0, [0, 1])], 17: [(P(7), 1, [0, 1])]}
    wl = {0: woreads(0, 0), 2: woreads(2, 1), 4: woreads(4, 0), 6: wxreads(0, 1), 8: woreads(6, 0), 9: woreads(8, 1),
          10: woreads(10, 0), 12: woreads(12, 1), 14: wxreads(8, 0), 16: woreads(14, 1)}
    a.e("\n".join(kvreads(0) + kvreads(1)))
    a.e("s_waitcnt lgkmcnt(4)")
    a.e("\n".join(omf(0)))
    for k in range(18):
        a.c(f"stage {k}")
        if k == 0: pqload(2)
        if k == 3: a.e("s_waitcnt vmcnt(6)")
        if k == 4: pqload(3)
        if k == 7: a.e("s_waitcnt vmcnt(6)")
        if k == 11: a.e("s_waitcnt vmcnt(0)")
        a.e("s_waitcnt lgkmcnt(0)")
        if "gprio" in EX and k % 4 == 0 and k < 16: a.e(f"s_setprio {3 - k // 4}")
        M = (omf(k + 1) if k + 1 < 16 else [])
        for (src, b, rts) in mains.get(k, []):
            M += mainmf(src, b, rts)
        D = (kvreads(k + 2) if k + 2 < 16 else []) + wl.get(k, [])
        V = (norm(k) if k < 16 else [])
        XC = xcopy(k + 2)
        F = D + V[:-2] + XC + V[-2:] if V else D
        if k == 16: a.e("s_nop 0")
        out = []; n = len(M); fi = 0
        for i, m in enumerate(M):
            out.append(m)
            tgt = (len(F) * (i + 1) + n - 1) // n
            out += F[fi:tgt]; fi = tgt
        if XC:
            assert out.index(XC[0]) > out.index(M[3])
        a.e("\n".join(out))
    lk1, lj = a.newlab("g2_k1"), a.newlab("g2_j")
    stamp(a, 9)
    a.e(f"""
    s_lshl_b32 s{sT}, s{S_WAVE}, 12
    s_add_u32 s{sT}, s{sT}, {RED}
    v_add_u32 v{t0}, s{sT}, v{v16}
    s_nop 5
    s_cmp_eq_u32 s{sKH}, 0
    s_cbranch_scc0 {lk1}
    """)
    for t in range(4):
        a.e(f"ds_write_b128 v{t0}, {v(ACC[1][t],4)} offset:{1024*t}")
    a.e(f"s_branch {lj}")
    a.lab(lk1)
    for t in range(4):
        a.e(f"ds_write_b128 v{t0}, {v(ACC[0][t],4)} offset:{1024*t}")
    a.e("s_nop 1")
    for t in range(4):
        for i in range(4):
            a.e(f"v_mov_b32 v{ACC[0][t]+i}, v{ACC[1][t]+i}")
    a.lab(lj)
    a.e(f"""
    s_xor_b32 s{sT}, s{S_WAVE}, 4
    s_lshl_b32 s{sT}, s{sT}, 12
    s_add_u32 s{sT}, s{sT}, {RED}
    v_add_u32 v{t1}, s{sT}, v{v16}
    v_mul_u32_u24 v{t2}, 2560, v{lr}
    v_and_b32 v{t3}, 1, v{g}
    v_lshl_add_u32 v{t2}, v{t3}, 5, v{t2}
    v_lshrrev_b32 v{t3}, 1, v{g}
    v_lshl_add_u32 v{t2}, v{t3}, 4, v{t2}
    s_lshl_b32 s{sT}, s{S_RT}, 3
    s_lshl_b32 s{sU}, s{sRW}, 1
    s_add_u32 s{sT}, s{sT}, s{sU}
    s_add_u32 s{sT}, s{sT}, s{sKH}
    s_mul_i32 s{sSO}, s{sT}, {16*2560}
    s_lshl_b32 s{sT}, s{S_CB}, 7
    s_add_u32 s{sSO}, s{sSO}, s{sT}
    s_add_u32 s{sSO}, s{sSO}, 1280
    s_waitcnt lgkmcnt(0)
    s_barrier
    """)
    stamp(a, 10)
    a.e("s_waitcnt lgkmcnt(0)" if STAMPS else "")
    for t in range(4):
        a.e(f"ds_read_b128 {v(WF[t],4)}, v{t1} offset:{1024*t}")
    D = CT[0][0][0]
    for t in range(4):
        a.e(f"s_waitcnt lgkmcnt({3-t})")
        c = ACC[0][t]
        for i in range(4):
            a.e(f"v_add_f32 v{c+i}, v{c+i}, v{WF[t]+i}")
        a.e(f"v_cvt_pk_bf16_f32 v{D+2*t}, v{c}, v{c+1}\n v_cvt_pk_bf16_f32 v{D+2*t+1}, v{c+2}, v{c+3}")
    a.e("s_nop 1")
    for t in (0, 2):
        a.e(f"v_permlane16_swap_b32 v{D+2*t}, v{D+2*t+2}\n v_permlane16_swap_b32 v{D+2*t+1}, v{D+2*t+3}")
    for t in (0, 2):
        a.e(f"buffer_store_dwordx4 {v(D+2*t,4)}, v{t2}, {srd(SRD_D)}, s{sSO} offen offset:{32*t} {OSTB}")
    return ra.hi

def build(path):
    hdr = open("cdna_kernels/%s.s.ref" % NAME).read().split("; Override")[0]
    a = Asm()
    a.raw('.amdgcn_target "amdgcn-amd-amdhsa--gfx950"\n.text')
    a.raw(f".globl {KN}\n.p2align 8\n.type {KN},@function"); a.lab(KN)
    a.e(f"s_cmp_ge_u32 s2, 256\n s_cbranch_scc1 L_END")
    stamp_init(a); stamp(a, 0)
    a.e(f"""
    s_load_dwordx16 s[8:23], s[0:1], 0
    s_load_dwordx8 s[24:31], s[0:1], 64
    v_lshrrev_b32 v2, 6, v0
    v_and_b32 v{L}, 63, v0
    v_readfirstlane_b32 s{S_WAVE}, v2
    s_and_b32 s{S_XI}, s2, 7
    s_lshr_b32 s{S_J}, s2, 3
    """)
    if "scram" in EX:
        a.e(f"s_lshr_b32 s{S_XI}, s2, 5\n s_and_b32 s{S_J}, s2, 31")
    a.e(f"""
    s_and_b32 s4, s{S_J}, 28
    s_cmp_lg_u32 s4, 20
    s_cbranch_scc1 L_NOPF
    s_getpc_b64 s[4:5]
    v_lshlrev_b32 v2, 7, v0
    v_min_u32 v2, L_END-{KN}-512, v2
    global_load_dword v252, v2, s[4:5] nt
    """)
    a.lab("L_NOPF")
    a.e(f"""
    s_cmp_ge_u32 s{S_J}, 24
    s_cbranch_scc1 L_A1
    s_lshr_b32 s6, s{S_XI}, 1
    s_lshl_b32 s6, s6, 2
    s_and_b32 s7, s{S_J}, 3
    s_add_u32 s{S_RT}, s6, s7
    s_and_b32 s4, s{S_XI}, 1
    s_lshr_b32 s6, s{S_J}, 2
    s_mul_i32 s{S_CB}, s4, 5
    s_add_u32 s{S_CB}, s{S_CB}, s6
    s_mov_b32 s{S_P2}, 0
    s_cmp_ge_u32 s{S_J}, 16
    s_cbranch_scc1 L_Q
    s_mov_b32 s{S_MODE}, 0
    s_lshl_b32 s4, s4, 2
    s_add_u32 s{S_G}, s4, s6
    s_lshl_b32 s{S_SLOT}, s{S_RT}, 3
    s_add_u32 s{S_SLOT}, s{S_SLOT}, s{S_G}
    s_branch L_G1
    """)
    a.lab("L_Q")
    a.e(f"""
    s_mov_b32 s{S_MODE}, 1
    s_lshl_b32 s4, s4, 1
    s_add_u32 s{S_G}, s4, s6
    s_sub_u32 s{S_G}, s{S_G}, 4
    s_lshl_b32 s{S_SLOT}, s{S_RT}, 2
    s_add_u32 s{S_SLOT}, s{S_SLOT}, s{S_G}
    s_add_u32 s{S_SLOT}, s{S_SLOT}, 128
    s_cmp_lt_u32 s{S_J}, 20
    s_cbranch_scc1 L_G1
    s_mov_b32 s{S_P2}, 4
    s_lshl_b32 s{S_CB}, s{S_XI}, 4
    s_lshl_b32 s7, s7, 2
    s_add_u32 s{S_CB}, s{S_CB}, s7
    s_add_u32 s{S_CB}, s{S_CB}, 512
    """)
    a.lab("L_G1")
    a.e(f"s_cmp_lt_u32 s{S_WAVE}, 4\n s_cbranch_scc1 L_G1C")
    g1_loader(a)
    a.lab("L_A1")
    a.e(f"""
    s_sub_u32 s5, s{S_J}, 24
    s_lshl_b32 s5, s5, 3
    s_add_u32 s{S_RT}, s5, s{S_XI}
    s_lshl_b32 s{S_CB}, s{S_XI}, 6
    s_add_u32 s{S_CB}, s{S_CB}, s5
    s_mov_b32 s{S_P2}, 8
    s_and_b32 s4, s{S_RT}, 1
    s_lshl_b32 s4, s4, 5
    s_lshr_b32 s5, s{S_RT}, 1
    s_add_u32 s{S_SLOT}, s4, s5
    s_add_u32 s{S_SLOT}, s{S_SLOT}, 192
    """)
    h3 = a1(a)
    a.lab("L_CONV")
    h5 = conv(a)
    a.lab("L_G1C")
    g1_init(a)
    a.e(f"s_cmp_lg_u32 s{S_MODE}, 0\n s_cbranch_scc1 L_G1Q")
    h1 = g1_compute(a, 0)
    a.lab("L_G1Q")
    h2 = g1_compute(a, 1)
    a.lab("L_PHASE2")
    a.e(f"s_cmp_lg_u32 s{S_P2}, 0\n s_cbranch_scc1 L_CONV")
    a.lab("L_G2")
    h4 = g2(a)
    a.lab("L_FIN")
    stamp_flush(a, 0)
    a.lab("L_END")
    a.e("s_endpgm")
    print("vgprs", h1, h2, h3, h4, h5, file=sys.stderr)
    lds = max(HB + 8 * HP, LFL + 64, RED + 32768)
    desc = f""".section .rodata,"a"
.p2align 6
.amdhsa_kernel {KN}
  .amdhsa_next_free_vgpr 256
  .amdhsa_next_free_sgpr 102
  .amdhsa_accum_offset 256
  .amdhsa_group_segment_fixed_size 0
  .amdhsa_kernarg_size 96
  .amdhsa_user_sgpr_count 2
  .amdhsa_user_sgpr_kernarg_segment_ptr 1
  .amdhsa_system_sgpr_workgroup_id_x 1
.end_amdhsa_kernel
"""
    body = a.text()
    if "ldnt" not in EX:
        body = "\n".join((l.replace(" nt", "") if "_load_" in l else l) for l in body.split("\n"))
    open(path, "w").write(hdr + f"; @launch grid=(256,1,1) block=(512,1,1) lds={lds}\n" + body + desc)
if __name__ == "__main__":
    build(sys.argv[1])
```

```python
import sys
from asmlib import *
NAME = "concat_heads__ssm_conv_h3__linear_attn_block__prompt"
KN = NAME + "_kernel"
EX = set(os.environ.get("EX", "").split(","))
XW = "nt" if "xwnt" in EX else ""
ROTR = int(os.environ.get("ROTR", "8530"), 16); ROTC = int(os.environ.get("ROTC", "875320"), 16)
RPG = 2 if "rpg2" in EX else 1
OST = os.environ.get("OSTA", "")
OSTB = os.environ.get("OSTB", "nt")

WS_UT, WS_PQ, WS_KV, WS_FL = 0, 0x500000, 0x780000, 0x790000
T_BYTES = 640 * 4096
KV_BYTES = 32 * 22 * 80
S_WG, S_WAVE = 2, 3
P_Q, P_K, P_V, P_SH, P_H, P_D, P_X, P_W, P_WO, P_OUT, P_DBG, P_WS = 8, 10, 12, 14, 16, 18, 20, 22, 24, 26, 28, 30
SRD_A, SRD_B, SRD_C, SRD_D, SRD_FL = 32, 36, 40, 44, 48
S_RT, S_G, S_MODE, S_CB, S_P2, S_SLOT, S_XI, S_J = 52, 53, 54, 55, 56, 57, 58, 59
L = 1

def mk_srd(a, srd, ptr, nbytes, off=0, off_sreg=None):
    if off_sreg is not None:
        a.e(f"s_add_u32 s{srd}, s{ptr}, s{off_sreg}\n s_addc_u32 s{srd+1}, s{ptr+1}, 0")
    elif off:
        a.e(f"s_add_u32 s{srd}, s{ptr}, {off}\n s_addc_u32 s{srd+1}, s{ptr+1}, 0")
    else:
        a.e(f"s_mov_b32 s{srd}, s{ptr}\n s_mov_b32 s{srd+1}, s{ptr+1}")
    a.e(f"s_mov_b32 s{srd+2}, {nbytes}\n s_mov_b32 s{srd+3}, 0x20000")
def srd(x): return f"s[{x}:{x+3}]"

SPIN_MAX = 400000
def poll(a, srdn, voffs, tmps, scnt=74):
    lp, dn = a.newlab("poll"), a.newlab("polld")
    a.e(f"s_mov_b32 s{scnt}, {SPIN_MAX}")
    a.lab(lp)
    for vo, t in zip(voffs, tmps):
        a.e(f"buffer_load_dword v{t}, v{vo}, {srd(srdn)}, 0 offen sc1")
    a.e("s_waitcnt vmcnt(0)")
    for t in tmps[1:]:
        a.e(f"v_and_b32 v{tmps[0]}, v{tmps[0]}, v{t}")
    a.e(f"""
    v_cmp_ne_u32 vcc, 1, v{tmps[0]}
    s_sub_u32 s{scnt}, s{scnt}, 1
    s_cbranch_scc1 {dn}
    s_cmp_eq_u64 vcc, 0
    s_cbranch_scc1 {dn}
    s_sleep 1
    s_branch {lp}
    """)
    a.lab(dn)

def poll_z(a, vz, vt):
    mk_srd(a, SRD_D, P_DBG, 256)
    a.e(f"v_and_b32 v{vz}, 7, v{L}\n v_lshlrev_b32 v{vz}, 2, v{vz}")
    poll(a, SRD_D, [vz], [vt])

def set_flag(a, v0_, v1_):
    sk = a.newlab("nofl")
    a.e(f"""
    s_cmp_lg_u32 s{S_WAVE}, 0
    s_cbranch_scc1 {sk}
    s_lshl_b32 s74, s{S_SLOT}, 7
    v_mov_b32 v{v0_}, 0
    v_mov_b32 v{v1_}, 1
    s_mov_b64 exec, 1
    buffer_store_dword v{v1_}, v{v0_}, {srd(SRD_FL)}, s74 offen sc1
    s_mov_b64 exec, -1
    """)
    a.lab(sk)

UP = 4672
HB, HP, H_O = 87808, 8320, 4160
def h_load(a, H, vl16, srdn, soff):
    for j in range(4):
        a.e(f"buffer_load_dwordx4 {v(H+4*j,4)}, v{vl16}, {srd(srdn)}, s{soff} offen offset:{1024*j}")
def h_stage(a, H, G, sslot, vl16, va, st):
    a.e(f"s_mul_i32 s{st}, s{sslot}, {HP}\n s_add_u32 s{st}, s{st}, {HB}\n v_add_u32 v{va}, s{st}, v{vl16}")
    a.e(f"v_readfirstlane_b32 s{st}, v{H}")
    for j in range(4):
        a.e(f"ds_write_b128 v{va}, {v(H+4*j,4)} offset:{32+1024*j}")
    for j in range(4):
        a.e(f"v_mov_b32_dpp v{G+4*j+3}, v{H+4*((j+1)&3)} wave_rol:1 row_mask:0xf bank_mask:0xf")
    for j in range(4):
        a.e(f"v_mov_b32_dpp v{G+4*j+3}, v{H+4*j} wave_shl:1 row_mask:0xf bank_mask:0xf")
    Z = G + 16
    for i in range(4): a.e(f"v_mov_b32 v{Z+i}, 0")
    a.e(f"s_lshl_b32 s{st}, s{st}, 16\n s_mov_b64 exec, 3\n ds_write_b128 v{va}, {v(Z,4)}\n s_mov_b64 exec, -1")
    for j in range(4):
        h, g_ = H + 4 * j, G + 4 * j
        for i in range(3): a.e(f"v_alignbit_b32 v{g_+i}, v{h+i+1}, v{h+i}, 16")
        a.e(f"v_alignbit_b32 v{g_+3}, v{g_+3}, v{h+3}, 16")
        a.e(f"ds_write_b128 v{va}, {v(g_,4)} offset:{H_O+32+1024*j}")
    a.e(f"v_writelane_b32 v{Z+3}, s{st}, 1\n s_mov_b64 exec, 3\n ds_write_b128 v{va}, {v(Z,4)} offset:{H_O}\n s_mov_b64 exec, -1")

def conv_sload(a):
    a.e(f"""
    s_add_u32 s6, s{S_CB}, s{S_WAVE}
    s_lshl_b32 s6, s6, 1
    s_and_b32 s6, s6, 0xfffffffc
    s_load_dword s5, s[{P_D}:{P_D+1}], s6
    """)

XST, WBASE, WST, NST = 16384, 65536, 20480, 4
IMG, IMGP = WBASE + 3 * WST, 7168
LFL = WBASE + 4 * WST

def lds_wait(a, vaddr, vq, off, need, sv=73, scnt=74, first_check=False):
    lp, ok = a.newlab("lw"), a.newlab("lwok")
    if first_check:
        a.e(f"s_cmp_ge_u32 s{sv}, {need}\n s_cbranch_scc1 {ok}")
    a.e(f"s_mov_b32 s{scnt}, 4000000")
    a.lab(lp)
    a.e(f"""
    ds_read_b128 {v(vq,4)}, v{vaddr} offset:{off}
    s_sub_u32 s{scnt}, s{scnt}, 1
    s_cbranch_scc1 {ok}
    s_waitcnt lgkmcnt(0)
    v_min3_u32 v{vq}, v{vq}, v{vq+1}, v{vq+2}
    v_min_u32 v{vq}, v{vq}, v{vq+3}
    s_nop 0
    v_readfirstlane_b32 s{sv}, v{vq}
    s_nop 0
    s_cmp_ge_u32 s{sv}, {need}
    s_cbranch_scc0 {lp}
    """)
    a.lab(ok)
def lds_pub(a, vaddr, vt, val):
    a.e(f"v_mov_b32 v{vt}, {val}\n s_mov_b64 exec, 1\n ds_write_b32 v{vaddr}, v{vt}\n s_mov_b64 exec, -1")

def g1_loader(a):
    ra = RA(2)
    t0, t1, t2, t3 = [ra.a() for _ in range(4)]
    vx = [ra.a() for _ in range(4)]
    vw = [ra.a() for _ in range(5)]
    z4 = ra.a(4, 4)
    sLW, sSX, sSW, sM0X, sM0W, sC1, sC2, sT = 60, 61, 62, 63, 64, 65, 66, 67
    a.c("G1 loader wave")
    if "prio" in EX: a.e("s_setprio 3")
    a.e(f"""
    s_sub_u32 s{sLW}, s{S_WAVE}, 4
    s_lshl_b32 s{sT}, s{S_RT}, 2
    s_add_u32 s{sT}, s{sT}, s{sLW}
    s_mul_i32 s{sSX}, s{sT}, {32*1280}
    s_lshl_b32 s{sM0X}, s{sLW}, 12
    v_lshrrev_b32 v{t0}, 3, v{L}
    v_mul_u32_u24 v{t0}, 1280, v{t0}
    v_lshrrev_b32 v{t1}, 4, v{L}
    v_and_b32 v{t2}, 7, v{L}
    v_xor_b32 v{t1}, v{t1}, v{t2}
    v_lshlrev_b32 v{t1}, 4, v{t1}
    v_xor_b32 v{t2}, 64, v{t1}
    v_add_u32 v{vx[0]}, v{t0}, v{t1}
    v_add_u32 v{vx[1]}, v{t0}, v{t2}
    v_add_u32 v{vx[2]}, {2*(8*1280-1024)}, v{vx[0]}
    v_add_u32 v{vx[3]}, {3*(8*1280-1024)}, v{vx[1]}
    v_add_u32 v{vx[1]}, {1*(8*1280-1024)}, v{vx[1]}
    s_cmp_eq_u32 s{S_MODE}, 0
    s_cselect_b32 s{sC1}, 1200, 0
    s_cselect_b32 s{sC2}, 80, 0
    s_cselect_b32 s{sSW}, 1280, 0
    s_lshl_b32 s{sT}, 160, s{S_MODE}
    s_mul_i32 s{sT}, s{sT}, s{S_G}
    s_add_u32 s{sSW}, s{sSW}, s{sT}
    s_mul_i32 s{sT}, s{sLW}, {16*3840}
    s_add_u32 s{sSW}, s{sSW}, s{sT}
    s_mul_i32 s{sM0W}, s{sLW}, 5120
    s_add_u32 s{sM0W}, s{sM0W}, {WBASE}
    """)
    sK = 68
    if "norot" in EX:
        a.e(f"s_mov_b32 s{sK}, 0")
    else:
        a.e(f"""
        s_and_b32 s{sT}, s{S_J}, 3
        s_lshl_b32 s{sT}, s{sT}, 2
        s_lshr_b32 s{sK}, {ROTR:#x}, s{sT}
        s_and_b32 s{sK}, s{sK}, 15
        s_and_b32 s{sT}, s{S_J}, 28
        s_lshr_b32 s{sT}, {ROTC:#x}, s{sT}
        s_and_b32 s{sT}, s{sT}, 15
        s_add_u32 s{sK}, s{sK}, s{sT}
        s_cmp_ge_u32 s{sK}, 10
        s_cselect_b32 s{sT}, 10, 0
        s_sub_u32 s{sK}, s{sK}, s{sT}
        s_lshl_b32 s{sT}, s{sK}, 7
        s_add_u32 s{sSX}, s{sSX}, s{sT}
        s_mul_i32 s{sT}, s{sK}, {64*3840}
        s_add_u32 s{sSW}, s{sSW}, s{sT}
        """)
    for x in range(320): assert (x * 3277) >> 16 == x // 20
    for x in range(20): assert (x * 52) >> 8 == x // 5
    for j in range(5):
        sub = 1024 * j if j < 4 else 0
        a.e(f"""
        v_add_u32 v{t0}, {64*j}, v{L}
        v_mul_u32_u24 v{t1}, 3277, v{t0}
        v_lshrrev_b32 v{t1}, 16, v{t1}
        v_mul_u32_u24 v{t2}, 20, v{t1}
        v_sub_u32 v{t0}, v{t0}, v{t2}
        v_lshrrev_b32 v{t2}, 2, v{t1}
        v_and_b32 v{t2}, 2, v{t2}
        v_xor_b32 v{t0}, v{t0}, v{t2}
        v_mul_u32_u24 v{t2}, 52, v{t0}
        v_lshlrev_b32 v{t0}, 4, v{t0}
        v_bfe_u32 v{t3}, v{t2}, 8, 1
        v_mad_u32_u24 v{t0}, v{t3}, s{sC1}, v{t0}
        v_lshrrev_b32 v{t3}, 9, v{t2}
        v_mul_u32_u24 v{t3}, s{sC2}, v{t3}
        v_sub_u32 v{t0}, v{t0}, v{t3}
        v_mul_u32_u24 v{t1}, 3840, v{t1}
        v_add_u32 v{t0}, v{t0}, v{t1}
        v_subrev_u32 v{vw[j]}, {sub}, v{t0}
        """)
    a.e("s_waitcnt lgkmcnt(0)")
    mk_srd(a, SRD_A, P_X, 2048 * 1280)
    mk_srd(a, SRD_B, P_W, 640 * 3840)
    a.e(f"s_mov_b32 s70, {-9*64*3840}\n s_mov_b32 s71, {64*3840}\n s_mov_b32 s72, 128")
    def issue_x(st):
        if "nodma" in EX: return []
        out = [f"s_add_u32 m0, s{sM0X}, {(st % NST) * XST}", "s_nop 0"]
        for j in range(4):
            out.append(f"buffer_load_dwordx4 v{vx[j]}, {srd(SRD_A)}, s{sSX} offen offset:{1024*j} {XW} lds")
        return out
    def issue_w(st):
        if "nodma" in EX: return []
        out = [f"s_add_u32 m0, s{sM0W}, {(st % NST) * WST}", "s_nop 0"]
        for j in range(4):
            out.append(f"buffer_load_dwordx4 v{vw[j]}, {srd(SRD_B)}, s{sSW} offen offset:{1024*j} {XW} lds")
        out += [f"s_add_u32 m0, s{sM0W}, {(st % NST) * WST + 4096}", "s_nop 0"]
        out.append(f"buffer_load_dwordx4 v{vw[4]}, {srd(SRD_B)}, s{sSW} offen {XW} lds")
        return out
    def advance():
        return [f"s_add_u32 s{sK}, s{sK}, 1", f"s_cmp_eq_u32 s{sK}, 10",
                f"s_cselect_b32 s{sT}, {-9*128}, s72", f"s_cselect_b32 s69, s70, s71",
                f"s_add_u32 s{sSX}, s{sSX}, s{sT}", f"s_add_u32 s{sSW}, s{sSW}, s69"]
    SCH = [int(c) for c in os.environ.get("SCH", "211111111")]
    assert sum(SCH) == 10
    issued = 0
    def issue_n(n):
        nonlocal issued
        for _ in range(n):
            a.e("\n".join(issue_x(issued) + issue_w(issued) + advance()))
            issued += 1
    issue_n(SCH[0])
    stamp(a, 1)
    mk_srd(a, SRD_FL, P_WS, 256 * 128, off=WS_FL)
    for i in range(4):
        a.e(f"v_mov_b32 v{z4+i}, 0")
    a.e(f"v_lshlrev_b32 v{t0}, 4, v0\n v_add_u32 v{t0}, {IMG-4096}, v{t0}")
    nb = 0
    while issued < 10:
        a.e(f"s_waitcnt vmcnt({9*(issued - 1 - nb)})\n s_barrier")
        n = SCH[nb + 1]
        assert issued + n <= nb + 4
        issue_n(n)
        nb += 1
    lc, le = a.newlab("tc"), a.newlab("te")
    a.e(f"s_cmp_lg_u32 s{S_P2}, 0\n s_cbranch_scc1 {lc}")
    mk_srd(a, SRD_A, P_WO, 640 * 1280)
    a.e(f"""
    v_min_u32 v{t1}, 39, v{L}
    v_mul_u32_u24 v{t1}, 1280, v{t1}
    s_and_b32 s{sT}, s{S_RT}, 3
    s_lshl_b32 s{sT}, s{sT}, 2
    s_add_u32 s{sT}, s{sT}, s{sLW}
    s_mul_i32 s{sT}, s{sT}, {40*1280}
    s_lshl_b32 s{sC1}, s{S_CB}, 7
    s_add_u32 s{sT}, s{sT}, s{sC1}
    buffer_load_dword v250, v{t1}, {srd(SRD_A)}, s{sT} offen
    s_branch {le}
    """)
    a.lab(lc)
    mk_srd(a, SRD_A, P_H, T_BYTES)
    a.e(f"""
    v_and_b32 v{t1}, 31, v{L}
    v_lshlrev_b32 v{t1}, 7, v{t1}
    s_add_u32 s{sC1}, s{S_CB}, s{sLW}
    s_lshl_b32 s{sSX}, s{sC1}, 12
    buffer_load_dword v250, v{t1}, {srd(SRD_A)}, s{sSX} offen
    """)
    a.lab(le)
    mk_srd(a, SRD_D, P_DBG, 256)
    a.e(f"v_and_b32 v{t2}, 7, v{L}\n v_lshlrev_b32 v{t2}, 2, v{t2}")
    a.e(f"buffer_load_dword v{t3}, v{t2}, {srd(SRD_D)}, 0 offen sc1")
    while nb < 10:
        a.e(f"s_waitcnt vmcnt({9*(9 - nb) + 2})")
        a.e("s_barrier")
        if nb == 8:
            for i in range(4):
                a.e(f"ds_write_b128 v{t0}, v[{z4}:{z4+3}] offset:{4096*i}")
        nb += 1
    if "g1only" in EX: a.e("s_branch L_FIN")
    stamp(a, 2)
    lc = a.newlab("ld_conv")
    a.e(f"s_cmp_lg_u32 s{S_P2}, 0\n s_cbranch_scc1 {lc}")
    a.e(f"""
    v_lshrrev_b32 v{t0}, 3, v{L}
    v_mul_u32_u24 v{t0}, 1280, v{t0}
    v_and_b32 v{t1}, 7, v{L}
    v_lshrrev_b32 v{t2}, 4, v{L}
    v_lshlrev_b32 v{t2}, 1, v{t2}
    v_xor_b32 v{t1}, v{t1}, v{t2}
    v_lshl_add_u32 v{vx[0]}, v{t1}, 4, v{t0}
    v_add_u32 v{vx[1]}, {1*(8*1280-1024)}, v{vx[0]}
    v_add_u32 v{vx[2]}, {2*(8*1280-1024)}, v{vx[0]}
    v_add_u32 v{vx[3]}, {3*(8*1280-1024)}, v{vx[0]}
    s_mul_i32 s{sSX}, s{sLW}, {160*1280}
    s_lshl_b32 s{sT}, s{S_CB}, 7
    s_add_u32 s{sSX}, s{sSX}, s{sT}
    s_mul_i32 s{sM0X}, s{sLW}, 20480
    s_waitcnt lgkmcnt(0)
    s_barrier
    """)
    for q in range(5):
        a.e(f"s_add_u32 m0, s{sM0X}, {4096*q}\n s_nop 0")
        for j in range(4):
            a.e(f"buffer_load_dwordx4 v{vx[j]}, {srd(SRD_A)}, s{sSX} offen offset:{1024*j} lds")
        a.e(f"s_add_u32 s{sSX}, s{sSX}, {32*1280}")
    zok = a.newlab("zok")
    a.e(f"s_waitcnt vmcnt(20)\n v_cmp_ne_u32 vcc, 1, v{t3}\n s_nop 1\n s_cmp_eq_u64 vcc, 0\n s_cbranch_scc1 {zok}")
    poll_z(a, t1, t2)
    a.lab(zok)
    stamp(a, 3)
    a.e("s_barrier")
    a.e(f"s_cmp_lg_u32 s{S_MODE}, 0\n s_cbranch_scc1 L_G2\n s_barrier\n s_branch L_G2")
    a.lab(lc)
    H = ra.a(16, 4); G = ra.a(20, 4)
    a.e(f"v_lshlrev_b32 v{t0}, 4, v{L}")
    h_load(a, H, t0, SRD_A, sSX)
    a.e("s_waitcnt lgkmcnt(0)\n s_barrier\n s_waitcnt vmcnt(0)")
    h_stage(a, H, G, sLW, t0, t1, sC1)
    zok = a.newlab("zok")
    a.e(f"v_cmp_ne_u32 vcc, 1, v{t3}\n s_nop 1\n s_cmp_eq_u64 vcc, 0\n s_cbranch_scc1 {zok}")
    poll_z(a, t1, t2)
    a.lab(zok)
    stamp(a, 3)
    a.e("s_waitcnt lgkmcnt(0)\n s_barrier\n s_branch L_CONV")

def phi4(regs, tmps, sLOG, sEPS):
    o = []
    for r, t in zip(regs, tmps): o.append(f"v_mul_f32 v{t}, s{sLOG}, v{r}")
    for r, t in zip(regs, tmps): o.append(f"v_exp_f32_e64 v{t}, v{t} clamp")
    for r, t in zip(regs, tmps): o.append(f"v_max_f32 v{r}, s{sEPS}, v{r}")
    for r, t in zip(regs, tmps): o.append(f"v_add_f32 v{r}, v{r}, v{t}")
    return o

def g1_init(a):
    a.e("s_waitcnt lgkmcnt(0)")
    if "notlb" not in EX:
        sk = a.newlab("notlb")
        if "tlball" in EX:
            a.e(f"s_cmp_lg_u32 s{S_WAVE}, 3\n s_cbranch_scc1 {sk}")
        else:
            a.e(f"s_lshl_b32 s60, s{S_WAVE}, 8\n s_or_b32 s60, s60, s{S_J}\n s_cmp_lg_u32 s60, {3*256+17}\n s_cbranch_scc1 {sk}")
        a.e(f"v_lshlrev_b32 v2, 20, v{L}")
        for i, (ptr, nb) in enumerate([(P_WS, WS_FL + 32768), (P_OUT, 2048 * 2560), (P_Q, 2048 * 1280), (P_WO, 640 * 1280), (P_DBG, 256), (P_H, T_BYTES)]):
            mk_srd(a, SRD_A, ptr, nb)
            a.e(f"buffer_load_dword v{244+i}, v2, {srd(SRD_A)}, 0 offen")
        a.lab(sk)
    mk_srd(a, SRD_FL, P_WS, 256 * 128, off=WS_FL)

def g1_compute(a, mode):
    ra = RA(2)
    lr, g, t0, t1, t2 = [ra.a() for _ in range(5)]
    xa = [ra.a(), ra.a()]
    wa = [[ra.a() for _ in range(5)] for _ in range(2)]
    aMain, aExtA, aExtB = ra.a(), ra.a(), ra.a()
    ie = ra.a(4, 4); ix = ra.a(4, 4)
    XF = [[ra.a(4, 4) for _ in range(4)] for _ in range(2)]
    WF = [[ra.a(4, 4) for _ in range(5)] for _ in range(2)]
    ACC = [[ra.a(4, 4) for _ in range(5)] for _ in range(4)]
    sRH, sCH, sT, sLOG, sEPS, sSO = 60, 61, 62, 63, 64, 65
    a.c("G1 compute wave mode %d" % mode)
    if mode == 1:
        conv_sload(a)
        nz = a.newlab("nozero")
        a.e(f"s_lshl_b32 s{sT}, s{S_WAVE}, 8\n s_or_b32 s{sT}, s{sT}, s{S_J}\n s_cmp_lg_u32 s{sT}, 16\n s_cbranch_scc1 {nz}")
        a.e(f"s_mul_i32 s{sT}, s{S_XI}, 7040\n s_add_u32 s{sT}, s{sT}, {WS_KV}")
        mk_srd(a, SRD_C, P_WS, 7040, off_sreg=sT)
        mk_srd(a, SRD_D, P_DBG, 256)
        for i in range(4): a.e(f"v_mov_b32 v{ie+i}, 0")
        a.e(f"""
        v_lshlrev_b32 v{t0}, 4, v{L}
        v_and_b32 v{t1}, 31, v{L}
        v_lshlrev_b32 v{t1}, 7, v{t1}
        s_lshl_b32 s{sT}, s{S_XI}, 12
        buffer_store_dword v{ie}, v{t1}, {srd(SRD_FL)}, s{sT} offen sc1
        s_movk_i32 s{sT}, 4096
        """)
        for n in range(7):
            a.e(f"buffer_store_dwordx4 {v(ie,4)}, v{t0}, {srd(SRD_C)}, {'s%d' % sT if n >= 4 else '0'} offen offset:{1024*(n&3)} sc1")
        a.e(f"""
        s_lshl_b32 s{sT}, s{S_XI}, 2
        v_mov_b32 v{t1}, 1
        s_waitcnt vmcnt(0)
        s_mov_b64 exec, 1
        buffer_store_dword v{t1}, v{t0}, {srd(SRD_D)}, s{sT} offen sc1
        s_mov_b64 exec, -1
        """)
        a.lab(nz)
    a.e(f"""
    s_lshr_b32 s{sRH}, s{S_WAVE}, 1
    s_and_b32 s{sCH}, s{S_WAVE}, 1
    s_mov_b32 s{sLOG}, {f32(1.4426950408889634)}
    s_mov_b32 s{sEPS}, {f32(1e-6)}
    v_and_b32 v{lr}, 15, v{L}
    v_lshrrev_b32 v{g}, 4, v{L}
    s_lshl_b32 s{sT}, s{sRH}, 13
    v_lshrrev_b32 v{t0}, 1, v{lr}
    v_xor_b32 v{t0}, v{t0}, v{g}
    v_lshlrev_b32 v{t0}, 4, v{t0}
    v_lshl_add_u32 v{t0}, v{lr}, 7, v{t0}
    v_add_u32 v{xa[0]}, s{sT}, v{t0}
    v_xor_b32 v{xa[1]}, 64, v{xa[0]}
    v_lshrrev_b32 v{t0}, 2, v{lr}
    v_lshl_add_u32 v{t0}, v{g}, 3, v{t0}
    v_mul_u32_u24 v{t0}, 320, v{t0}
    v_add_u32 v{t0}, {WBASE}, v{t0}
    v_and_b32 v{t1}, 1, v{g}
    v_lshlrev_b32 v{t1}, 5, v{t1}
    s_mul_i32 s{sT}, s{sCH}, 160
    v_and_b32 v{t2}, 3, v{lr}
    """)
    for t in range(5):
        w = wa[0][t]
        if t < 4:
            a.e(f"v_lshl_add_u32 v{w}, v{t2}, 3, s{sT}\n v_add_u32 v{w}, {40*t}, v{w}")
        else:
            a.e(f"v_mul_u32_u24 v{w}, 40, v{t2}\n v_add_u32 v{w}, s{sT}, v{w}\n v_add_u32 v{w}, 32, v{w}")
        a.e(f"v_xor_b32 v{w}, v{w}, v{t1}\n v_add_u32 v{w}, v{w}, v{t0}\n v_add_u32 v{wa[1][t]}, 10240, v{w}")
    for i in range(4):
        a.e(f"v_mov_b32 v{ie+i}, s{sEPS}")
    if mode == 0:
        a.e(f"v_cmp_gt_u32 vcc, 8, v{lr}")
        a.e(f"""
        s_mul_i32 s{sT}, s{sRH}, {IMGP}
        s_mul_i32 s{sSO}, s{sCH}, 3520
        s_add_u32 s{sT}, s{sT}, s{sSO}
        s_add_u32 s{sT}, s{sT}, {IMG}
        """)
        for i in range(4):
            a.e(f"v_cndmask_b32 v{ix+i}, 0, v{ie}, vcc")
        a.e(f"""
        v_mul_u32_u24 v{aMain}, 80, v{lr}
        v_lshl_add_u32 v{aMain}, v{g}, 4, v{aMain}
        v_add_u32 v{aMain}, s{sT}, v{aMain}
        v_cmp_eq_u32 vcc, 0, v{lr}
        v_mov_b32 v{t0}, 640
        v_mov_b32 v{t1}, 1600
        v_mov_b32 v{t2}, 320
        v_cndmask_b32 v{t0}, v{t0}, v{t1}, vcc
        v_cndmask_b32 v{t2}, v{t2}, v{t1}, vcc
        v_add_u32 v{aExtA}, v{aMain}, v{t0}
        v_add_u32 v{aExtB}, v{aMain}, v{t2}
        s_mul_i32 s{sT}, s{S_G}, 7040
        s_add_u32 s{sT}, s{sT}, {WS_KV}
        """)
        mk_srd(a, SRD_C, P_WS, 7040, off_sreg=sT)
    else:
        a.e(f"""
        v_lshlrev_b32 v{aMain}, 4, v{L}
        v_lshlrev_b32 v{aExtA}, 3, v{L}
        s_lshl_b32 s{sT}, s{S_RT}, 3
        s_lshl_b32 s{sSO}, s{sRH}, 2
        s_add_u32 s{sT}, s{sT}, s{sSO}
        s_lshl_b32 s{sT}, s{sT}, 3
        s_lshl_b32 s{sSO}, s{S_G}, 1
        s_add_u32 s{sT}, s{sT}, s{sSO}
        s_add_u32 s{sT}, s{sT}, s{sCH}
        s_mul_i32 s{sSO}, s{sT}, 2560
        """)
        mk_srd(a, SRD_C, P_WS, T_BYTES, off=WS_PQ)
    def reads(st, ks):
        sl = st % NST
        xs = [f"ds_read_b128 v[{XF[ks][rt]}:{XF[ks][rt]+3}], v{xa[ks]} offset:{sl*XST + rt*2048}" for rt in range(4)]
        ws = []
        for t in range(5):
            for h in range(2):
                ws.append(f"ds_read_b64_tr_b16 v[{WF[ks][t]+2*h}:{WF[ks][t]+2*h+1}], v{wa[ks][t]} offset:{sl*WST + h*1280}")
        if "noreads" in EX: return []
        if "notr" in EX: return xs
        if "nox" in EX: return ws
        return xs + ws
    def mfmas(ks, first=False):
        o = []
        for rt in range(4):
            for t in range(5):
                d = ACC[rt][t]
                c = v(d, 4)
                if first:
                    if mode == 1 or t < 2: c = v(ie, 4)
                    elif t == 4: c = v(ix, 4)
                    else: c = "0"
                x, w = v(XF[ks][rt], 4), v(WF[ks][t], 4)
                A_, B_ = (x, w) if mode == 0 else (w, x)
                o.append(f"v_mfma_f32_16x16x32_bf16 {v(d,4)}, {A_}, {B_}, {c}")
        return o
    for st in range(10):
        a.c(f"step {st}")
        a.e("s_barrier")
        if "g1only" in EX:
            if "few" not in EX or st in (1, 9): stamp(a, 1 + st)
        elif st in (0, 5): stamp(a, {0: 1, 5: 2}[st])
        if st == 0:
            a.e("\n".join(reads(0, 0)))
        else:
            a.e("\n".join(interleave2(mfmas(1), reads(st, 0), RPG)))
        a.e("s_waitcnt lgkmcnt(0)")
        a.e("\n".join(interleave2(mfmas(0, first=(st == 0)), reads(st, 1), RPG)))
        a.e("s_waitcnt lgkmcnt(0)")
    if "g1only" in EX: a.e("s_branch L_FIN")
    a.e("s_barrier")
    a.e("\n".join(mfmas(1)))
    stamp(a, 3)
    fr = XF[0][0]
    assert WF[1][4] + 4 - fr == 72
    tm = [ie, ie + 1, ie + 2, ie + 3]
    if mode == 1:
        order = [0, 4, 1, 2, 3]
        for rt in range(4):
            ob = fr + 12 * rt
            for pos, t in enumerate(order):
                r = [ACC[rt][t] + i for i in range(4)]
                a.e("\n".join(phi4(r, tm, sLOG, sEPS)))
                a.e(f"v_cvt_pk_bf16_f32 v{ob+2*pos}, v{r[0]}, v{r[1]}")
                a.e(f"v_cvt_pk_bf16_f32 v{ob+2*pos+1}, v{r[2]}, v{r[3]}")
            a.e(f"""
            buffer_store_dwordx4 v[{ob}:{ob+3}], v{aMain}, {srd(SRD_C)}, s{sSO} offen sc1
            buffer_store_dwordx4 v[{ob+4}:{ob+7}], v{aMain}, {srd(SRD_C)}, s{sSO} offen offset:1024 sc1
            buffer_store_dwordx2 v[{ob+8}:{ob+9}], v{aExtA}, {srd(SRD_C)}, s{sSO} offen offset:2048 sc1
            s_add_u32 s{sSO}, s{sSO}, {8*2560}
            """)
        stamp(a, 4)
        a.e("s_waitcnt vmcnt(0)\n s_barrier")
        set_flag(a, t0, t1)
        a.e("s_branch L_PHASE2")
    else:
        P = {n: [fr + (i * 2 + k) * 4 for k in range(2)] for i, n in enumerate(["T0", "T1", "T2", "T3", "T4A", "T4B"])}
        a.e(f"v_cmp_gt_u32 vcc, 8, v{lr}\n v_mov_b32 v{t0}, 0x3f803f80")
        for rt in range(4):
            k, h = rt >> 1, rt & 1
            for t, n in ((2, "T2"), (3, "T3"), (4, "T4B")):
                r = ACC[rt][t]; d = P[n][k] + 2 * h
                a.e(f"v_cvt_pk_bf16_f32 v{d}, v{r}, v{r+1}\n v_cvt_pk_bf16_f32 v{d+1}, v{r+2}, v{r+3}")
            d = P["T4B"][k] + 2 * h
            a.e(f"v_cndmask_b32 v{d}, v{d}, v{t0}, vcc\n v_cndmask_b32 v{d+1}, v{d+1}, v{t0}, vcc")
            for t, n in ((0, "T0"), (1, "T1"), (4, "T4A")):
                r = [ACC[rt][t] + i for i in range(4)]; d = P[n][k] + 2 * h
                a.e("\n".join(phi4(r, tm, sLOG, sEPS)))
                a.e(f"v_cvt_pk_bf16_f32 v{d}, v{r[0]}, v{r[1]}\n v_cvt_pk_bf16_f32 v{d+1}, v{r[2]}, v{r[3]}")
        prods = [("T0", "T2"), ("T0", "T4B"), ("T4A", "T2"), ("T1", "T3"), ("T1", "T4B"), ("T4A", "T3"), ("T4A", "T4B")]
        R = [ACC[0][0] + 4 * i for i in range(7)]
        a.e("s_nop 1")
        for k in range(2):
            for i, (x, y) in enumerate(prods):
                c = "0" if k == 0 else v(R[i], 4)
                a.e(f"v_mfma_f32_16x16x32_bf16 {v(R[i],4)}, {v(P[x][k],4)}, {v(P[y][k],4)}, {c}")
        a.e(f"v_lshlrev_b32 v{t0}, 2, v0\n v_add_u32 v{t1}, {IMG}, v{t0}\n v_add_u32 v{t2}, 4096, v{t0}\n s_nop 4")
        def wr(i, addr, off, lo, hi):
            a.e(f"s_mov_b32 exec_lo, {lo:#x}\n s_mov_b32 exec_hi, {hi:#x}")
            a.e(f"ds_write_b128 v{addr}, {v(R[i],4)} offset:{off}")
        a.e(f"ds_write_b128 v{aMain}, {v(R[0],4)}")
        a.e(f"ds_write_b128 v{aMain}, {v(R[3],4)} offset:1760")
        wr(1, aExtA, 0, 0x0f010f01, 0x0f010f01)
        wr(4, aExtB, 1760, 0xf001f001, 0xf001f001)
        wr(2, aMain, 64, 0x0000ffff, 0)
        wr(5, aMain, 1760 + 48, 0xffff0000, 0)
        wr(6, aExtA, 64, 0x00000f01, 0)
        wr(6, aExtB, 1760 + 48, 0xf0010000, 0)
        a.e("s_mov_b64 exec, -1")
        stamp(a, 4)
        a.e("s_waitcnt lgkmcnt(0)\n s_barrier")
        for n in range(7):
            a.e(f"ds_read2st64_b32 v[{fr+2*n}:{fr+2*n+1}], v{t1} offset0:{4*n} offset1:{28+4*n}")
        for n in range(7):
            a.e(f"s_waitcnt lgkmcnt({6-n})")
            a.e(f"v_add_f32 v{fr+2*n}, v{fr+2*n}, v{fr+2*n+1}")
            a.e(f"buffer_atomic_add_f32 v{fr+2*n}, v{t0 if n < 4 else t2}, {srd(SRD_C)}, 0 offen offset:{1024*(n&3)}")
        a.e("s_waitcnt vmcnt(0)\n s_barrier")
        set_flag(a, t0, t1)
        a.e("s_branch L_PHASE2")
    return ra.hi

def a1(a):
    ra = RA(2)
    t0, t1, t2, t3 = [ra.a() for _ in range(4)]
    vo = [ra.a() for _ in range(5)]
    lr, g, base, baseh, phi, phih, ad, adh, so_u, otap = [ra.a() for _ in range(10)]
    KB, VB = 5120, 5120 + 40960
    assert VB + 40960 <= HB
    sTI, sCH, sSO, sM0, sT, sSH, sCG, sU = 60, 61, 62, 63, 64, 65, 66, 67
    NB = 2048 * 1280
    a.c("A1")
    if "noa1" in EX: a.e("s_waitcnt lgkmcnt(0)\n s_branch L_FIN")
    a.e(f"""
    s_lshr_b32 s{sTI}, s{S_RT}, 1
    s_and_b32 s{sCH}, s{S_RT}, 1
    s_lshl_b32 s{sT}, s{sTI}, 3
    s_add_u32 s{sT}, s{sT}, s{S_WAVE}
    s_mul_i32 s{sSO}, s{sT}, {8*1280}
    s_mul_i32 s{sT}, s{sCH}, 640
    s_add_u32 s{sSO}, s{sSO}, s{sT}
    s_mul_i32 s{sM0}, s{S_WAVE}, 5120
    s_and_b32 s{sT}, s{S_WAVE}, 1
    s_lshl_b32 s{sT}, s{sT}, 2
    """)
    for x in range(320): assert (x * 1639) >> 16 == x // 40
    for j in range(5):
        sub = 1024 * j if j < 4 else 0
        a.e(f"""
        v_add_u32 v{t0}, {64*j}, v{L}
        v_mul_u32_u24 v{t1}, 1639, v{t0}
        v_lshrrev_b32 v{t1}, 16, v{t1}
        v_mul_u32_u24 v{t2}, 40, v{t1}
        v_sub_u32 v{t0}, v{t0}, v{t2}
        v_and_b32 v{t2}, 2, v{t1}
        v_or_b32 v{t2}, s{sT}, v{t2}
        v_xor_b32 v{t0}, v{t0}, v{t2}
        v_lshlrev_b32 v{t0}, 4, v{t0}
        v_mul_u32_u24 v{t1}, 1280, v{t1}
        v_add_u32 v{t0}, v{t0}, v{t1}
        v_subrev_u32 v{vo[j]}, {sub}, v{t0}
        """)
    a.e(f"""
    v_and_b32 v{lr}, 15, v{L}
    s_mul_i32 s{sT}, s{sCH}, 320
    v_add_u32 v{so_u}, s{sT}, v{lr}
    v_lshlrev_b32 v{otap}, 3, v{so_u}
    v_lshlrev_b32 v{t3}, 4, v{L}
    s_waitcnt lgkmcnt(0)
    """)
    mk_srd(a, SRD_A, P_K, NB); mk_srd(a, SRD_B, P_V, NB); mk_srd(a, SRD_D, P_SH, 640 * 8)
    def dma(srdn, lbase, so, js=range(5)):
        o = []; first = True
        for j in js:
            if first and j < 4:
                o += [f"s_add_u32 m0, s{sM0}, {lbase}", "s_nop 0"]; first = False
            if j == 4:
                o += [f"s_add_u32 m0, s{sM0}, {lbase+4096}", "s_nop 0"]
            off = f" offset:{1024*j}" if 0 < j < 4 else ""
            o.append(f"buffer_load_dwordx4 v{vo[j]}, {srd(srdn)}, s{so} offen{off} nt lds")
        return o
    taps = [ra.a(2) for _ in range(5)]
    a.e(f"s_lshr_b32 s{sCG}, s{S_WAVE}, 1\n s_lshl_b32 s{sT}, s{sCG}, 7")
    for n in range(5):
        a.e(f"buffer_load_dwordx2 v[{taps[n]}:{taps[n]+1}], v{otap}, {srd(SRD_D)}, s{sT} offen offset:{512*n}")
    lab = a.newlab("a1_nohalo")
    a.e(f"""
    s_cmp_lg_u32 s{S_WAVE}, 7
    s_cbranch_scc1 {lab}
    s_sub_u32 s{sSH}, s{sSO}, {64*1280}
    s_cmp_eq_u32 s{sTI}, 0
    s_cselect_b32 s{sSH}, {NB}, s{sSH}
    """)
    a.e("\n".join(dma(SRD_A, KB - 8 * 5120, sSH, js=(2, 3, 4))))
    a.lab(lab)
    a.e("\n".join(dma(SRD_A, KB, sSO)))
    a.e("\n".join(dma(SRD_B, VB, sSO)))
    mk_srd(a, SRD_C, P_WS, T_BYTES)
    mk_srd(a, SRD_FL, P_WS, 256 * 128, off=WS_FL)
    a.e(f"""
    v_lshrrev_b32 v{g}, 4, v{L}
    v_lshrrev_b32 v{t0}, 2, v{lr}
    v_lshl_add_u32 v{t1}, v{g}, 3, v{t0}
    v_mul_u32_u24 v{base}, 640, v{t1}
    v_and_b32 v{t2}, 3, v{lr}
    v_lshl_add_u32 v{base}, v{t2}, 3, v{base}
    s_and_b32 s{sT}, s{S_WAVE}, 1
    s_mul_i32 s{sU}, s{sT}, {32*640}
    s_add_u32 s{sU}, s{sU}, {KB}
    v_add_u32 v{base}, s{sU}, v{base}
    v_lshrrev_b32 v{t0}, 1, v{t0}
    v_and_b32 v{t1}, 1, v{g}
    v_lshl_or_b32 v{phi}, v{t1}, 1, v{t0}
    v_xor_b32 v{phi}, s{sCG}, v{phi}
    v_lshlrev_b32 v{phi}, 5, v{phi}
    v_xor_b32 v{phih}, 64, v{phi}
    v_add_u32 v{ad}, v{phi}, v{base}
    v_add_u32 v{adh}, v{phih}, v{base}
    v_subrev_u32 v{adh}, {4*640}, v{adh}
    v_lshlrev_b32 v{t0}, 12, v{so_u}
    s_lshl_b32 s{sT}, s{sT}, 6
    s_lshl_b32 s{sU}, s{sTI}, 7
    s_add_u32 s{sT}, s{sT}, s{sU}
    v_lshlrev_b32 v{t1}, 4, v{g}
    v_add_u32 v{t1}, s{sT}, v{t1}
    v_sub_u32 v{so_u}, 4080, v{t1}
    v_add_u32 v{so_u}, v{so_u}, v{t0}
    s_add_u32 s{sSH}, s{S_CB}, s{S_WAVE}
    s_lshl_b32 s{sU}, s{sCG}, 16
    s_lshl_b32 s{sT}, s{sSH}, 12
    """)
    mk_srd(a, SRD_A, P_H, T_BYTES)
    H = ra.a(16, 4); G = ra.a(20, 4)
    a.e("s_barrier")
    h_load(a, H, t3, SRD_A, sT)
    conv_sload(a)
    KR = [ra.a(6, 2) for _ in range(5)]; VR = [ra.a(4, 2) for _ in range(5)]
    W = [ra.a(5) for _ in range(5)]; U = ra.a(8); O = [ra.a(4, 4) for _ in range(2)]; X = ra.a(4)
    a.e("s_waitcnt vmcnt(14)")
    for n in range(5):
        tp, w = taps[n], W[n]
        a.e(f"""
        v_alignbit_b32 v{w}, v{tp}, v{tp}, 16
        v_alignbit_b32 v{w+1}, v{tp+1}, v{tp+1}, 16
        v_and_b32 v{w+2}, 0xffff0000, v{tp}
        v_and_b32 v{w+3}, 0xffff, v{tp}
        v_and_b32 v{w+4}, 0xffff, v{tp+1}
        v_or_b32 v{w+2}, v{w+2}, v{w+4}
        v_and_b32 v{w+4}, 0xffff0000, v{tp+1}
        """)
    stamp(a, 1)
    a.e("s_waitcnt vmcnt(4) lgkmcnt(0)\n s_barrier")
    stamp(a, 2)
    if "g1only" in EX: a.e("s_branch L_FIN")
    if STAMPS: a.e("s_waitcnt lgkmcnt(0)")
    def rd(n):
        o = 128 * n
        return [f"ds_read_b64_tr_b16 {v(KR[n],2)}, v{adh} offset:{o}",
                f"ds_read_b64_tr_b16 {v(KR[n]+2,2)}, v{ad} offset:{o}",
                f"ds_read_b64_tr_b16 {v(KR[n]+4,2)}, v{ad} offset:{o+2560}",
                f"ds_read_b64_tr_b16 {v(VR[n],2)}, v{ad} offset:{VB-KB+o}",
                f"ds_read_b64_tr_b16 {v(VR[n]+2,2)}, v{ad} offset:{VB-KB+o+2560}"]
    a.e("\n".join(rd(0) + rd(1) + rd(2)))
    for n in range(5):
        k, w, ob = KR[n], W[n], O[n & 1]
        rem = min(4, n + 2) - n
        a.e(f"s_waitcnt lgkmcnt({5*rem})")
        if n + 3 < 5:
            a.e("\n".join(rd(n + 3)))
        for m in range(4):
            a.e(f"v_dot2_f32_bf16 v{U+2*m}, v{k+m}, v{w+4}, 0")
            a.e(f"v_dot2_f32_bf16 v{U+2*m+1}, v{k+m+1}, v{w+1}, 0")
        for m in range(4):
            a.e(f"v_dot2_f32_bf16 v{U+2*m}, v{k+m+1}, v{w+2}, v{U+2*m}")
            a.e(f"v_dot2_f32_bf16 v{U+2*m+1}, v{k+m+2}, v{w}, v{U+2*m+1}")
        for m in range(4):
            a.e(f"v_dot2_f32_bf16 v{U+2*m}, v{k+m+2}, v{w+3}, v{U+2*m}")
        for m in range(4):
            x = X + 2 * (m & 1)
            a.e(f"""
            v_lshlrev_b32 v{x}, 16, v{VR[n]+m}
            v_and_b32 v{x+1}, 0xffff0000, v{VR[n]+m}
            v_mul_f32 v{x+1}, v{x+1}, v{U+2*m+1}
            v_mul_f32 v{x}, v{x}, v{U+2*m}
            v_cvt_pk_bf16_f32 v{ob+3-m}, v{x+1}, v{x}
            """)
        a.e(f"buffer_store_dwordx4 {v(ob,4)}, v{so_u}, {srd(SRD_C)}, s{sU} offen sc1")
        if n < 4: a.e(f"s_add_u32 s{sU}, s{sU}, {4<<16}")
    stamp(a, 3)
    a.e("s_waitcnt vmcnt(5)")
    h_stage(a, H, G, S_WAVE, t3, t2, sT)
    nz = a.newlab("a1_nz")
    a.e(f"s_cmp_lg_u32 s{S_WAVE}, 0\n s_cbranch_scc1 {nz}")
    poll_z(a, t0, t1)
    a.lab(nz)
    a.e("s_waitcnt vmcnt(0)\n s_barrier")
    stamp(a, 4)
    set_flag(a, t0, t1)
    return ra.hi

def conv(a):
    ra = RA(2)
    lr, g, t0, t1, t2, aB, aT, vrow = [ra.a() for _ in range(8)]
    aA = [ra.a() for _ in range(4)]
    z4 = ra.a(4, 4); o4 = ra.a(4, 4); AD = ra.a(4, 4)
    Q = ra.a(16, 4)
    AF = [[ra.a(4, 4) for _ in range(8)] for _ in range(2)]
    BF = [[ra.a(4, 4) for _ in range(8)] for _ in range(2)]
    ACC = [ra.a(4, 4) for _ in range(8)]
    sD, sR, sSO, sT, sH0, sDV, sH, sQO = 60, 61, 62, 63, 64, 65, 66, 67
    fin, idle = a.newlab("conv_fin"), a.newlab("conv_idle")
    a.c("conv")
    mk_srd(a, SRD_A, P_WS, T_BYTES); mk_srd(a, SRD_B, P_Q, 2048 * 1280); mk_srd(a, SRD_C, P_OUT, 2048 * 2560)
    def qtouch():
        a.e(f"""
        s_cmp_eq_u32 s{S_P2}, 8
        s_cselect_b32 s68, 63, 31
        s_cselect_b32 s69, 31, 63
        s_and_b32 s{sT}, s{S_J}, 7
        s_lshl_b32 s{sT}, s{sT}, 3
        s_add_u32 s{sT}, s{sT}, s{S_WAVE}
        s_and_b32 s{sT}, s{sT}, s68
        s_add_u32 s70, s69, 1
        s_mul_i32 s{sT}, s{sT}, s70
        s_mul_i32 s{sT}, s{sT}, 1280
        s_lshl_b32 s70, s{S_CB}, 1
        s_add_u32 s{sT}, s{sT}, s70
        v_and_b32 v{t2}, s69, v{L}
        v_mul_u32_u24 v{t2}, 1280, v{t2}
        buffer_load_dword v250, v{t2}, {srd(SRD_B)}, s{sT} offen nt
        """)
    def qgather(ns):
        for n in ns:
            l8, le = a.newlab("q8"), a.newlab("qe")
            a.e(f"""
            s_add_u32 s{sT}, s{sQO}, {n*64*1280}
            s_cmp_eq_u32 s{S_P2}, 8
            s_cbranch_scc1 {l8}
            buffer_load_dwordx2 {v(Q+4*n,2)}, v{vrow}, {srd(SRD_B)}, s{sT} offen
            s_branch {le}
            """)
            a.lab(l8)
            a.e(f"buffer_load_dwordx4 {v(Q+4*n,4)}, v{vrow}, {srd(SRD_B)}, s{sT} offen nt")
            a.lab(le)
    a.e(f"""
    v_and_b32 v{lr}, 15, v{L}
    v_lshrrev_b32 v{g}, 4, v{L}
    v_mul_u32_u24 v{vrow}, 1280, v{L}
    s_mul_i32 s{sQO}, s{S_WAVE}, {256*1280}
    s_lshl_b32 s{sT}, s{S_CB}, 1
    s_add_u32 s{sQO}, s{sQO}, s{sT}
    s_cmp_ge_u32 s{S_WAVE}, s{S_P2}
    s_cbranch_scc1 {idle}
    s_add_u32 s{sD}, s{S_CB}, s{S_WAVE}
    s_lshl_b32 s{sSO}, s{sD}, 12
    s_mul_i32 s{sR}, s{S_WAVE}, {UP}
    s_mul_i32 s{sH}, s{S_WAVE}, {HP}
    s_add_u32 s{sH}, s{sH}, {HB}
    s_cmp_ge_u32 s{sD}, 320
    s_cselect_b32 s{sT}, 32, 0
    s_add_u32 s{sT}, s{sT}, 192
    v_and_b32 v{t0}, 31, v{L}
    v_add_u32 v{t0}, s{sT}, v{t0}
    v_lshlrev_b32 v{aB}, 7, v{t0}
    """)
    for i in range(4):
        a.e(f"v_mov_b32 v{z4+i}, 0")
    a.e(f"""
    v_and_b32 v{t1}, 1, v{lr}
    v_cmp_eq_u32 vcc, 1, v{t1}
    v_mov_b32 v{t1}, {H_O}
    v_mov_b32 v{t2}, 2
    v_cndmask_b32 v{t1}, v{t1}, v{t2}, vcc
    v_lshl_add_u32 v{t1}, v{lr}, 1, v{t1}
    v_lshl_add_u32 v{t1}, v{g}, 4, v{t1}
    v_add_u32 v{aA[0]}, s{sH}, v{t1}
    v_add_u32 v{aA[1]}, 1024, v{aA[0]}
    v_add_u32 v{aA[2]}, 2048, v{aA[0]}
    v_add_u32 v{aA[3]}, 3072, v{aA[0]}
    v_lshlrev_b32 v{t0}, 4, v{L}
    v_add_u32 v{aT}, s{sR}, v{t0}
    s_and_b32 s{sT}, s{sD}, 1
    s_lshl_b32 s{sT}, s{sT}, 4
    s_lshr_b32 s{sDV}, s5, s{sT}
    s_and_b32 s{sDV}, s{sDV}, 0xffff
    s_mov_b32 exec_lo, -1
    s_mov_b32 exec_hi, 0
    ds_write_b128 v{aT}, v[{z4}:{z4+3}] offset:4096
    s_mov_b64 exec, -1
    v_lshl_add_u32 v{t1}, v{g}, 3, v{lr}
    v_sub_u32 v{t1}, 15, v{t1}
    v_and_b32 v{t2}, 1, v{t1}
    v_lshlrev_b32 v{t2}, 4, v{t2}
    v_lshlrev_b32 v{t2}, v{t2}, s{sDV}
    v_ashrrev_i32 v{t1}, 1, v{t1}
    """)
    for r in range(4):
        a.e(f"v_cmp_eq_u32 vcc, {r}, v{t1}\n s_nop 1\n v_cndmask_b32 v{AD+r}, 0, v{t2}, vcc")
    stamp(a, 5)
    poll(a, SRD_FL, [aB], [t1])
    stamp(a, 6)
    UR = AF[1][0]
    for j in range(4):
        a.e(f"buffer_load_dwordx4 {v(UR+4*j,4)}, v{t0}, {srd(SRD_A)}, s{sSO} offen offset:{1024*j} sc1")
    for j in range(4):
        a.e(f"s_waitcnt vmcnt({3-j})\n ds_write_b128 v{aT}, {v(UR+4*j,4)} offset:{1024*j}")
    a.e(f"""
    v_lshlrev_b32 v{t1}, 5, v{lr}
    v_sub_u32 v{aB}, 480, v{t1}
    v_lshl_add_u32 v{aB}, v{g}, 4, v{aB}
    v_add_u32 v{aB}, s{sR}, v{aB}
    v_lshl_add_u32 v{aT}, v{g}, 3, v{t1}
    v_add_u32 v{aT}, s{sR}, v{aT}
    """)
    def reads(r):
        b = r & 1; o = []
        for i in range(8):
            o.append(f"ds_read_b128 {v(BF[b][i],4)}, v{aB} offset:{3584 - 512*i + 64*r}")
            o0 = 128 * (i & 1) + 16 * r
            o.append(f"ds_read2_b32 {v(AF[b][i],2)}, v{aA[i>>1]} offset0:{o0} offset1:{o0+1}")
            o.append(f"ds_read2_b32 {v(AF[b][i]+2,2)}, v{aA[i>>1]} offset0:{o0+2} offset1:{o0+3}")
        return o
    def mf(r):
        b = r & 1; o = []
        if r == 0:
            for c in range(8):
                o.append(f"v_mfma_f32_16x16x32_bf16 {v(ACC[c],4)}, {v(AD,4)}, {v(BF[b][c],4)}, 0")
        for q in range(8):
            for c in range(q, 8):
                o.append(f"v_mfma_f32_16x16x32_bf16 {v(ACC[c],4)}, {v(AF[b][q],4)}, {v(BF[b][c-q],4)}, {v(ACC[c],4)}")
        return o
    stamp(a, 7)
    a.e("s_waitcnt lgkmcnt(0)\n s_barrier")
    a.e("\n".join(reads(0)))
    qtouch()
    for r in range(8):
        a.e("s_waitcnt lgkmcnt(0)")
        if "cprio" in EX:
            a.e(f"s_setprio {3 - r // 2}")
        if 3 <= r <= 6: qgather([r - 3])
        a.e("\n".join(interleave(mf(r), reads(r + 1) if r < 7 else [])))
    stamp(a, 8)
    T = AF[0][0]
    for c in range(8):
        t = T + 2 * c
        if c == 6: a.e("s_nop 3")
        a.e(f"""
        v_cvt_pk_bf16_f32 v{t}, v{ACC[c]}, v{ACC[c]+1}
        v_cvt_pk_bf16_f32 v{t+1}, v{ACC[c]+2}, v{ACC[c]+3}
        ds_write_b64 v{aT}, v[{t}:{t+1}] offset:{512*c}
        """)
    a.e(f"s_branch {fin}")
    a.lab(idle)
    a.e("s_barrier")
    qtouch()
    a.e("s_waitcnt vmcnt(0)")
    qgather(range(4))
    a.lab(fin)
    a.e(f"""
    v_lshrrev_b32 v{t0}, 2, v{lr}
    v_mul_u32_u24 v{t0}, {UP}, v{t0}
    v_and_b32 v{t1}, 3, v{lr}
    v_lshl_add_u32 v{t0}, v{t1}, 3, v{t0}
    v_lshl_add_u32 v{t0}, v{g}, 5, v{t0}
    s_lshl_b32 s{sT}, s{S_WAVE}, 9
    v_add_u32 v{t0}, s{sT}, v{t0}
    v_lshlrev_b32 v{vrow}, 1, v{vrow}
    s_mul_i32 s{sSO}, s{S_WAVE}, {256*2560}
    s_lshl_b32 s{sT}, s{S_CB}, 1
    s_add_u32 s{sSO}, s{sSO}, s{sT}
    s_waitcnt lgkmcnt(0)
    s_barrier
    """)
    stamp(a, 9)
    Y = BF[0][0]; X = BF[1][0]
    def tail(nd):
        for n in range(4):
            for k in range(nd // 2):
                a.e(f"ds_read_b64_tr_b16 {v(Y+4*n+2*k,2)}, v{t0} offset:{128*n + 4*UP*k}")
        a.e("s_waitcnt vmcnt(0) lgkmcnt(0)")
        for n in range(4):
            for i in range(nd):
                y, q = Y + 4 * n + i, Q + 4 * n + i
                a.e(f"""
                v_lshlrev_b32 v{X}, 16, v{y}
                v_and_b32 v{X+1}, 0xffff0000, v{y}
                v_lshlrev_b32 v{X+2}, 16, v{q}
                v_and_b32 v{X+3}, 0xffff0000, v{q}
                v_mul_f32 v{X}, v{X}, v{X+2}
                v_mul_f32 v{X+1}, v{X+1}, v{X+3}
                v_cvt_pk_bf16_f32 v{y}, v{X}, v{X+1}
                """)
            a.e(f"buffer_store_dwordx{nd} {v(Y+4*n,nd)}, v{vrow}, {srd(SRD_C)}, s{sSO} offen {OST if nd == 4 else ''}")
            if n < 3: a.e(f"s_add_u32 s{sSO}, s{sSO}, {64*2560}")
    l8 = a.newlab("t8")
    a.e(f"s_cmp_eq_u32 s{S_P2}, 8\n s_cbranch_scc1 {l8}")
    tail(2)
    a.e("s_branch L_CFIN")
    a.lab(l8)
    tail(4)
    a.lab("L_CFIN")
    if "wb" in EX:
        a.e(f"s_waitcnt vmcnt(0)\n s_barrier\n s_cmp_lg_u32 s{S_WAVE}, 0\n s_cbranch_scc1 L_FIN\n buffer_wbl2 sc1\n s_waitcnt vmcnt(0)")
    a.e("s_branch L_FIN")
    return ra.hi

KVI = 81920
RED = KVI + 28672
def g2(a):
    ra = RA(2)
    lr, g, t0, t1, t2, t3 = [ra.a() for _ in range(6)]
    m0a, m1a = ra.a(), ra.a()
    x0a = [ra.a() for _ in range(4)]; x1a = [ra.a() for _ in range(4)]
    wm = [ra.a() for _ in range(4)]; wx = [ra.a() for _ in range(4)]
    v16, v8 = ra.a(), ra.a()
    ce = ra.a(4, 4)
    PQR = [[ra.a(10, 2) for _ in range(2)] for _ in range(4)]
    KF = [[ra.a(4, 4) for _ in range(2)] for _ in range(2)]
    CT = [[[ra.a(4, 4) for _ in range(2)] for _ in range(2)] for _ in range(2)]
    OPB = [[ra.a(4, 4) for _ in range(2)] for _ in range(2)]
    OX = [ra.a(4, 4) for _ in range(2)]
    XT = [ra.a() for _ in range(2)]
    rc = [ra.a() for _ in range(2)]
    WFB = [[ra.a(4, 4) for _ in range(4)] for _ in range(2)]
    WF = WFB[0]
    ACC = [[ra.a(4, 4) for _ in range(4)] for _ in range(2)]
    LD = CT[0][0][0]
    sKH, sRW, sT, sSO, sM, sU = 60, 61, 62, 63, 64, 65
    a.c("G2")
    a.e(f"""
    s_lshr_b32 s{sKH}, s{S_WAVE}, 2
    s_and_b32 s{sRW}, s{S_WAVE}, 3
    v_and_b32 v{lr}, 15, v{L}
    v_lshrrev_b32 v{g}, 4, v{L}
    v_lshlrev_b32 v{v16}, 4, v{L}
    v_lshlrev_b32 v{v8}, 3, v{L}
    s_lshl_b32 s{sT}, s{S_RT}, 2
    s_add_u32 s{sT}, s{sT}, 128
    v_and_b32 v{t0}, 3, v{L}
    v_add_u32 v{t0}, s{sT}, v{t0}
    v_lshlrev_b32 v{t0}, 7, v{t0}
    """)
    mk_srd(a, SRD_B, P_WS, T_BYTES, off=WS_PQ)
    mk_srd(a, SRD_C, P_WS, KV_BYTES, off=WS_KV); mk_srd(a, SRD_D, P_OUT, 2048 * 2560)
    stamp(a, 5)
    poll(a, SRD_FL, [t0], [t1])
    a.e(f"""
    s_lshl_b32 s{sT}, s{S_RT}, 3
    s_lshl_b32 s{sU}, s{sRW}, 1
    s_add_u32 s{sT}, s{sT}, s{sU}
    s_lshl_b32 s{sT}, s{sT}, 3
    s_lshl_b32 s{sU}, s{sKH}, 2
    s_add_u32 s{sT}, s{sT}, s{sU}
    s_mul_i32 s{sU}, s{sT}, 2560
    """)
    def pqload(p):
        for rt in range(2):
            r = PQR[p][rt]
            a.e(f"""
            s_add_u32 s{sM}, s{sU}, {(rt*8+p)*2560}
            buffer_load_dwordx4 {v(r,4)}, v{v16}, {srd(SRD_B)}, s{sM} offen sc1
            buffer_load_dwordx4 {v(r+4,4)}, v{v16}, {srd(SRD_B)}, s{sM} offen offset:1024 sc1
            buffer_load_dwordx2 {v(r+8,2)}, v{v8}, {srd(SRD_B)}, s{sM} offen offset:2048 sc1
            """)
    pqload(0)
    a.e(f"""
    s_mul_i32 s{sT}, s{sKH}, {16*880}
    s_add_u32 s{sT}, s{sT}, {KVI}
    v_mul_u32_u24 v{t0}, 40, v{lr}
    v_add_u32 v{t0}, s{sT}, v{t0}
    v_lshl_add_u32 v{m0a}, v{g}, 3, v{t0}
    v_lshrrev_b32 v{t1}, 2, v{lr}
    v_add_u32 v{t1}, 16, v{t1}
    v_and_b32 v{t2}, 3, v{lr}
    v_cmp_eq_u32 vcc, 0, v{t2}
    v_min_u32 v{t2}, 2, v{t2}
    v_add_u32 v{t2}, 19, v{t2}
    v_cndmask_b32 v{t1}, v{t2}, v{t1}, vcc
    v_mul_u32_u24 v{t1}, 40, v{t1}
    v_add_u32 v{t1}, s{sT}, v{t1}
    v_lshl_add_u32 v{m1a}, v{g}, 3, v{t1}
    v_add_u32 v{t0}, 32, v{t0}
    v_add_u32 v{t1}, 32, v{t1}
    s_add_u32 s{sT}, s{sT}, {21*40}
    v_mov_b32 v{t2}, s{sT}
    """)
    for x in range(4):
        a.e(f"v_cmp_eq_u32 vcc, {x}, v{g}\n s_nop 1\n v_cndmask_b32 v{x0a[x]}, v{t2}, v{t0}, vcc\n v_cndmask_b32 v{x1a[x]}, v{t2}, v{t1}, vcc")
    a.e(f"""
    s_mul_i32 s{sT}, s{sKH}, {16*2560}
    v_lshrrev_b32 v{t0}, 2, v{lr}
    v_and_b32 v{t1}, 3, v{lr}
    v_lshl_add_u32 v{t1}, v{t1}, 3, s{sT}
    v_lshl_add_u32 v{t2}, v{g}, 2, v{t0}
    v_lshl_add_u32 v{wm[0]}, v{t2}, 7, v{t1}
    v_bfe_u32 v{t2}, v{t2}, 1, 2
    v_lshl_add_u32 v{wm[0]}, v{t2}, 5, v{wm[0]}
    v_mul_u32_u24 v{t2}, 20, v{t0}
    v_add3_u32 v{t2}, v{t2}, v{g}, 16
    v_lshl_add_u32 v{wx[0]}, v{t2}, 7, v{t1}
    v_bfe_u32 v{t2}, v{t2}, 1, 2
    v_lshl_add_u32 v{wx[0]}, v{t2}, 5, v{wx[0]}
    """)
    for t in range(1, 4):
        a.e(f"v_xor_b32 v{wm[t]}, {32*t}, v{wm[0]}\n v_xor_b32 v{wx[t]}, {32*t}, v{wx[0]}")
    a.e(f"""
    v_mov_b32 v{ce}, 0
    v_mov_b32 v{ce+1}, {f32(1e-6)}
    v_mov_b32 v{ce+2}, 0
    v_mov_b32 v{ce+3}, 0
    v_lshlrev_b32 v{t3}, 4, v0
    """)
    stamp(a, 6)
    np_ = a.newlab("g2_np")
    a.e(f"s_cmp_lg_u32 s{S_WAVE}, 0\n s_cbranch_scc1 {np_}")
    a.e(f"v_lshlrev_b32 v{t0}, 7, v{L}\n v_add_u32 v{t1}, {64*128}, v{t0}")
    poll(a, SRD_FL, [t0, t1], [t2, rc[0]])
    a.lab(np_)
    a.e("s_barrier")
    stamp(a, 7)
    for n in range(7):
        a.e(f"s_mov_b32 s{sT}, {8192*n}\n buffer_load_dwordx4 {v(LD+4*n,4)}, v{t3}, {srd(SRD_C)}, s{sT} offen sc1")
    pqload(1)
    a.e(f"v_lshrrev_b32 v{t3}, 1, v{t3}\n v_add_u32 v{t3}, {KVI}, v{t3}")
    for n in range(7):
        r = LD + 4 * n
        a.e(f"""
        s_waitcnt vmcnt({12-n})
        v_cvt_pk_bf16_f32 v{r}, v{r}, v{r+1}
        v_cvt_pk_bf16_f32 v{r+1}, v{r+2}, v{r+3}
        ds_write_b64 v{t3}, {v(r,2)} offset:{4096*n}
        """)
    a.e("s_waitcnt lgkmcnt(0)\n s_barrier")
    stamp(a, 8)
    def kvreads(h):
        b = h & 1; x = h & 3
        mo, xo = (0, 2) if x == 0 else (2, 0)
        return [f"ds_read_b64 {v(KF[b][0]+mo,2)}, v{m0a} offset:{880*h}",
                f"ds_read_b64 {v(KF[b][0]+xo,2)}, v{x0a[x]} offset:{880*h}",
                f"ds_read_b64 {v(KF[b][1]+mo,2)}, v{m1a} offset:{880*h}",
                f"ds_read_b64 {v(KF[b][1]+xo,2)}, v{x1a[x]} offset:{880*h}"]
    def woreads(h0, b):
        o = []
        for t in range(4):
            o.append(f"ds_read_b64_tr_b16 {v(WFB[b][t],2)}, v{wm[t]} offset:{2560*h0}")
            o.append(f"ds_read_b64_tr_b16 {v(WFB[b][t]+2,2)}, v{wm[t^2]} offset:{2560*(h0+1)}")
        return o
    def wxreads(hb, b):
        o = []
        for t in range(4):
            o.append(f"ds_read_b64_tr_b16 {v(WFB[b][t],2)}, v{wx[t]} offset:{2560*hb}")
            o.append(f"ds_read_b64_tr_b16 {v(WFB[b][t]+2,2)}, v{wx[t]} offset:{2560*(hb+4)}")
        return o
    def xcopy(h):
        x = h & 3; o = []
        if x >= 2 and h < 16:
            for rt in range(2):
                r = PQR[h >> 2][rt]
                o += [f"v_mov_b32 v{r+2*x}, v{r+2}", f"v_mov_b32 v{r+2*x+1}, v{r+3}"]
        return o
    def omf(h):
        b = h & 1; x = h & 3; o = []
        for rt in range(2):
            w = PQR[h >> 2][rt] + 2 * x
            o.append(f"v_mfma_f32_16x16x32_bf16 {v(CT[b][rt][1],4)}, {v(KF[b][1],4)}, {v(w,4)}, {v(ce,4)}")
        for rt in range(2):
            w = PQR[h >> 2][rt] + 2 * x
            o.append(f"v_mfma_f32_16x16x32_bf16 {v(CT[b][rt][0],4)}, {v(KF[b][0],4)}, {v(w,4)}, 0")
        return o
    def norm(h):
        b = h & 1; o = []
        for rt in range(2):
            o.append(f"v_rcp_f32 v{rc[rt]}, v{CT[b][rt][1]+1}")
        for rt in range(2):
            c = CT[b][rt][0]; e = CT[b][rt][1]
            o.append(f"v_mul_f32 v{XT[rt] if h & 1 == 0 else e}, v{e}, v{rc[rt]}")
            for i in range(4):
                o.append(f"v_mul_f32 v{c+i}, v{c+i}, v{rc[rt]}")
        for rt in range(2):
            c = CT[b][rt][0]; e = CT[b][rt][1]
            d = OPB[(h >> 1) & 1][rt] + 2 * (h & 1)
            if h & 1:
                o.append(f"v_cvt_pk_bf16_f32 v{OX[rt]+((h&7)>>1)}, v{XT[rt]}, v{e}")
            o.append(f"v_cvt_pk_bf16_f32 v{d}, v{c}, v{c+1}")
            o.append(f"v_cvt_pk_bf16_f32 v{d+1}, v{c+2}, v{c+3}")
        return o
    seen = set()
    def mainmf(src, b, rts):
        o = []
        for rt in rts:
            for t in range(4):
                c = v(ACC[rt][t], 4) if rt in seen else "0"
                o.append(f"v_mfma_f32_16x16x32_bf16 {v(ACC[rt][t],4)}, {v(WFB[b][t],4)}, {v(src[rt],4)}, {c}")
            seen.add(rt)
        return o
    P = lambda i: OPB[i & 1]
    mains = {2: [(P(0), 0, [0])], 3: [(P(0), 0, [1])], 4: [(P(1), 1, [0])], 5: [(P(1), 1, [1])],
             6: [(P(2), 0, [0])], 7: [(P(2), 0, [1])], 8: [(OX, 1, [0, 1])], 9: [(P(3), 0, [0, 1])],
             10: [(P(4), 1, [0])], 11: [(P(4), 1, [1])], 12: [(P(5), 0, [0])], 13: [(P(5), 0, [1])],
             14: [(P(6), 1, [0])], 15: [(P(6), 1, [1])], 16: [(OX, 0, [0, 1])], 17: [(P(7), 1, [0, 1])]}
    wl = {0: woreads(0, 0), 2: woreads(2, 1), 4: woreads(4, 0), 6: wxreads(0, 1), 8: woreads(6, 0), 9: woreads(8, 1),
          10: woreads(10, 0), 12: woreads(12, 1), 14: wxreads(8, 0), 16: woreads(14, 1)}
    a.e("\n".join(kvreads(0) + kvreads(1)))
    a.e("s_waitcnt lgkmcnt(4)")
    a.e("\n".join(omf(0)))
    for k in range(18):
        a.c(f"stage {k}")
        if k == 0: pqload(2)
        if k == 3: a.e("s_waitcnt vmcnt(6)")
        if k == 4: pqload(3)
        if k == 7: a.e("s_waitcnt vmcnt(6)")
        if k == 11: a.e("s_waitcnt vmcnt(0)")
        a.e("s_waitcnt lgkmcnt(0)")
        if "gprio" in EX and k % 4 == 0 and k < 16: a.e(f"s_setprio {3 - k // 4}")
        M = (omf(k + 1) if k + 1 < 16 else [])
        for (src, b, rts) in mains.get(k, []):
            M += mainmf(src, b, rts)
        D = (kvreads(k + 2) if k + 2 < 16 else []) + wl.get(k, [])
        V = (norm(k) if k < 16 else [])
        XC = xcopy(k + 2)
        F = D + V[:-2] + XC + V[-2:] if V else D
        if k == 16: a.e("s_nop 0")
        out = []; n = len(M); fi = 0
        for i, m in enumerate(M):
            out.append(m)
            tgt = (len(F) * (i + 1) + n - 1) // n
            out += F[fi:tgt]; fi = tgt
        if XC:
            assert out.index(XC[0]) > out.index(M[3])
        a.e("\n".join(out))
    lk1, lj = a.newlab("g2_k1"), a.newlab("g2_j")
    stamp(a, 9)
    a.e(f"""
    s_lshl_b32 s{sT}, s{S_WAVE}, 12
    s_add_u32 s{sT}, s{sT}, {RED}
    v_add_u32 v{t0}, s{sT}, v{v16}
    s_nop 5
    s_cmp_eq_u32 s{sKH}, 0
    s_cbranch_scc0 {lk1}
    """)
    for t in range(4):
        a.e(f"ds_write_b128 v{t0}, {v(ACC[1][t],4)} offset:{1024*t}")
    a.e(f"s_branch {lj}")
    a.lab(lk1)
    for t in range(4):
        a.e(f"ds_write_b128 v{t0}, {v(ACC[0][t],4)} offset:{1024*t}")
    a.e("s_nop 1")
    for t in range(4):
        for i in range(4):
            a.e(f"v_mov_b32 v{ACC[0][t]+i}, v{ACC[1][t]+i}")
    a.lab(lj)
    a.e(f"""
    s_xor_b32 s{sT}, s{S_WAVE}, 4
    s_lshl_b32 s{sT}, s{sT}, 12
    s_add_u32 s{sT}, s{sT}, {RED}
    v_add_u32 v{t1}, s{sT}, v{v16}
    v_mul_u32_u24 v{t2}, 2560, v{lr}
    v_and_b32 v{t3}, 1, v{g}
    v_lshl_add_u32 v{t2}, v{t3}, 5, v{t2}
    v_lshrrev_b32 v{t3}, 1, v{g}
    v_lshl_add_u32 v{t2}, v{t3}, 4, v{t2}
    s_lshl_b32 s{sT}, s{S_RT}, 3
    s_lshl_b32 s{sU}, s{sRW}, 1
    s_add_u32 s{sT}, s{sT}, s{sU}
    s_add_u32 s{sT}, s{sT}, s{sKH}
    s_mul_i32 s{sSO}, s{sT}, {16*2560}
    s_lshl_b32 s{sT}, s{S_CB}, 7
    s_add_u32 s{sSO}, s{sSO}, s{sT}
    s_add_u32 s{sSO}, s{sSO}, 1280
    s_waitcnt lgkmcnt(0)
    s_barrier
    """)
    stamp(a, 10)
    a.e("s_waitcnt lgkmcnt(0)" if STAMPS else "")
    for t in range(4):
        a.e(f"ds_read_b128 {v(WF[t],4)}, v{t1} offset:{1024*t}")
    D = CT[0][0][0]
    for t in range(4):
        a.e(f"s_waitcnt lgkmcnt({3-t})")
        c = ACC[0][t]
        for i in range(4):
            a.e(f"v_add_f32 v{c+i}, v{c+i}, v{WF[t]+i}")
        a.e(f"v_cvt_pk_bf16_f32 v{D+2*t}, v{c}, v{c+1}\n v_cvt_pk_bf16_f32 v{D+2*t+1}, v{c+2}, v{c+3}")
    a.e("s_nop 1")
    for t in (0, 2):
        a.e(f"v_permlane16_swap_b32 v{D+2*t}, v{D+2*t+2}\n v_permlane16_swap_b32 v{D+2*t+1}, v{D+2*t+3}")
    for t in (0, 2):
        a.e(f"buffer_store_dwordx4 {v(D+2*t,4)}, v{t2}, {srd(SRD_D)}, s{sSO} offen offset:{32*t} {OSTB}")
    return ra.hi

def build(path):
    hdr = open("cdna_kernels/%s.s.ref" % NAME).read().split("; Override")[0]
    a = Asm()
    a.raw('.amdgcn_target "amdgcn-amd-amdhsa--gfx950"\n.text')
    a.raw(f".globl {KN}\n.p2align 8\n.type {KN},@function"); a.lab(KN)
    a.e(f"s_cmp_ge_u32 s2, 256\n s_cbranch_scc1 L_END")
    stamp_init(a); stamp(a, 0)
    a.e(f"""
    s_load_dwordx16 s[8:23], s[0:1], 0
    s_load_dwordx8 s[24:31], s[0:1], 64
    v_lshrrev_b32 v2, 6, v0
    v_and_b32 v{L}, 63, v0
    v_readfirstlane_b32 s{S_WAVE}, v2
    s_and_b32 s{S_XI}, s2, 7
    s_lshr_b32 s{S_J}, s2, 3
    """)
    if "scram" in EX:
        a.e(f"s_lshr_b32 s{S_XI}, s2, 5\n s_and_b32 s{S_J}, s2, 31")
    a.e(f"""
    s_and_b32 s4, s{S_J}, 28
    s_cmp_lg_u32 s4, 20
    s_cbranch_scc1 L_NOPF
    s_getpc_b64 s[4:5]
    v_lshlrev_b32 v2, 7, v0
    v_min_u32 v2, L_END-{KN}-512, v2
    global_load_dword v252, v2, s[4:5] nt
    """)
    a.lab("L_NOPF")
    a.e(f"""
    s_cmp_ge_u32 s{S_J}, 24
    s_cbranch_scc1 L_A1
    s_lshr_b32 s6, s{S_XI}, 1
    s_lshl_b32 s6, s6, 2
    s_and_b32 s7, s{S_J}, 3
    s_add_u32 s{S_RT}, s6, s7
    s_and_b32 s4, s{S_XI}, 1
    s_lshr_b32 s6, s{S_J}, 2
    s_mul_i32 s{S_CB}, s4, 5
    s_add_u32 s{S_CB}, s{S_CB}, s6
    s_mov_b32 s{S_P2}, 0
    s_cmp_ge_u32 s{S_J}, 16
    s_cbranch_scc1 L_Q
    s_mov_b32 s{S_MODE}, 0
    s_lshl_b32 s4, s4, 2
    s_add_u32 s{S_G}, s4, s6
    s_lshl_b32 s{S_SLOT}, s{S_RT}, 3
    s_add_u32 s{S_SLOT}, s{S_SLOT}, s{S_G}
    s_branch L_G1
    """)
    a.lab("L_Q")
    a.e(f"""
    s_mov_b32 s{S_MODE}, 1
    s_lshl_b32 s4, s4, 1
    s_add_u32 s{S_G}, s4, s6
    s_sub_u32 s{S_G}, s{S_G}, 4
    s_lshl_b32 s{S_SLOT}, s{S_RT}, 2
    s_add_u32 s{S_SLOT}, s{S_SLOT}, s{S_G}
    s_add_u32 s{S_SLOT}, s{S_SLOT}, 128
    s_cmp_lt_u32 s{S_J}, 20
    s_cbranch_scc1 L_G1
    s_mov_b32 s{S_P2}, 4
    s_lshl_b32 s{S_CB}, s{S_XI}, 4
    s_lshl_b32 s7, s7, 2
    s_add_u32 s{S_CB}, s{S_CB}, s7
    s_add_u32 s{S_CB}, s{S_CB}, 512
    """)
    a.lab("L_G1")
    a.e(f"s_cmp_lt_u32 s{S_WAVE}, 4\n s_cbranch_scc1 L_G1C")
    g1_loader(a)
    a.lab("L_A1")
    a.e(f"""
    s_sub_u32 s5, s{S_J}, 24
    s_lshl_b32 s5, s5, 3
    s_add_u32 s{S_RT}, s5, s{S_XI}
    s_lshl_b32 s{S_CB}, s{S_XI}, 6
    s_add_u32 s{S_CB}, s{S_CB}, s5
    s_mov_b32 s{S_P2}, 8
    s_and_b32 s4, s{S_RT}, 1
    s_lshl_b32 s4, s4, 5
    s_lshr_b32 s5, s{S_RT}, 1
    s_add_u32 s{S_SLOT}, s4, s5
    s_add_u32 s{S_SLOT}, s{S_SLOT}, 192
    """)
    h3 = a1(a)
    a.lab("L_CONV")
    h5 = conv(a)
    a.lab("L_G1C")
    g1_init(a)
    a.e(f"s_cmp_lg_u32 s{S_MODE}, 0\n s_cbranch_scc1 L_G1Q")
    h1 = g1_compute(a, 0)
    a.lab("L_G1Q")
    h2 = g1_compute(a, 1)
    a.lab("L_PHASE2")
    a.e(f"s_cmp_lg_u32 s{S_P2}, 0\n s_cbranch_scc1 L_CONV")
    a.lab("L_G2")
    h4 = g2(a)
    a.lab("L_FIN")
    stamp_flush(a, 0)
    a.lab("L_END")
    a.e("s_endpgm")
    print("vgprs", h1, h2, h3, h4, h5, file=sys.stderr)
    lds = max(HB + 8 * HP, LFL + 64, RED + 32768)
    desc = f""".section .rodata,"a"
.p2align 6
.amdhsa_kernel {KN}
  .amdhsa_next_free_vgpr 256
  .amdhsa_next_free_sgpr 102
  .amdhsa_accum_offset 256
  .amdhsa_group_segment_fixed_size 0
  .amdhsa_kernarg_size 96
  .amdhsa_user_sgpr_count 2
  .amdhsa_user_sgpr_kernarg_segment_ptr 1
  .amdhsa_system_sgpr_workgroup_id_x 1
.end_amdhsa_kernel
"""
    body = a.text()
    if "ldnt" not in EX:
        body = "\n".join((l.replace(" nt", "") if "_load_" in l else l) for l in body.split("\n"))
    open(path, "w").write(hdr + f"; @launch grid=(256,1,1) block=(512,1,1) lds={lds}\n" + body + desc)
if __name__ == "__main__":
    build(sys.argv[1])
```

```python
import sys
from asmlib import *
NAME = "concat_heads__ssm_conv_h3__linear_attn_block__prompt"
KN = NAME + "_kernel"
EX = set(os.environ.get("EX", "").split(","))
ROTR = int(os.environ.get("ROTR", "8530"), 16); ROTC = int(os.environ.get("ROTC", "875320"), 16)
OST = os.environ.get("OSTA", "")
OSTB = os.environ.get("OSTB", "nt")

T_BYTES = 640 * 4096
WS_UT, WS_PQ = 0, T_BYTES
WS_KV = 2 * T_BYTES
GB = 8960
WS_FL = WS_KV + 8 * GB + 2048
assert WS_FL % 128 == 0
WS_END = WS_FL + 256 * 128
S_WG, S_WAVE = 2, 3
P_Q, P_K, P_V, P_SH, P_H, P_D, P_X, P_W, P_WO, P_OUT, P_DBG, P_WS = 8, 10, 12, 14, 16, 18, 20, 22, 24, 26, 28, 30
SRD_A, SRD_B, SRD_C, SRD_D, SRD_FL = 32, 36, 40, 44, 48
S_RT, S_G, S_MODE, S_CB, S_P2, S_XI, S_J = 52, 53, 54, 55, 56, 58, 59
L = 1
NB = 2048 * 1280

XST, WBASE, WST, NST = 16384, 49152, 20480, 3
HI = WBASE + NST * WST
IMG, IMGP = HI, 12288
HB, HP, H_O = 0, 8320, 4160
UB, UP = 8 * HP, 4672
A_KB, A_VB = UB + 5120, UB + 5120 + 40960
KVI, RED = 81920, HI
LDS_BYTES = A_VB + 40960
assert UB + 8 * UP <= HI and KVI + 32 * 880 <= HI and RED + 32768 <= LDS_BYTES <= 163840

def mk_srd(a, srd, ptr, nbytes, off=0, off_sreg=None):
    if off_sreg is not None:
        a.e(f"s_add_u32 s{srd}, s{ptr}, s{off_sreg}\n s_addc_u32 s{srd+1}, s{ptr+1}, 0")
    elif off:
        a.e(f"s_add_u32 s{srd}, s{ptr}, {off}\n s_addc_u32 s{srd+1}, s{ptr+1}, 0")
    else:
        a.e(f"s_mov_b32 s{srd}, s{ptr}\n s_mov_b32 s{srd+1}, s{ptr+1}")
    a.e(f"s_mov_b32 s{srd+2}, {nbytes}\n s_mov_b32 s{srd+3}, 0x20000")
def srd(x): return f"s[{x}:{x+3}]"
def mk_fl(a): mk_srd(a, SRD_FL, P_WS, 256 * 128, off=WS_FL)

SPIN_MAX = 400000
def poll(a, srdn, vo, t, scnt=74, slp=1):
    lp, dn = a.newlab("poll"), a.newlab("polld")
    a.e(f"s_mov_b32 s{scnt}, {SPIN_MAX}")
    a.lab(lp)
    a.e(f"""
    buffer_load_dword v{t}, v{vo}, {srd(srdn)}, 0 offen sc1
    s_waitcnt vmcnt(0)
    v_cmp_ne_u32 vcc, 1, v{t}
    s_sub_u32 s{scnt}, s{scnt}, 1
    s_cbranch_scc1 {dn}
    s_cmp_eq_u64 vcc, 0
    s_cbranch_scc1 {dn}
    s_sleep {slp}
    s_branch {lp}
    """)
    a.lab(dn)
def poll_z(a, vz, vt):
    mk_srd(a, SRD_D, P_DBG, 256)
    a.e(f"v_and_b32 v{vz}, 7, v{L}\n v_lshlrev_b32 v{vz}, 2, v{vz}")
    poll(a, SRD_D, vz, vt)
def set_flag(a, sslot, v0_, v1_, wave=0):
    sk = a.newlab("nofl")
    a.e(f"""
    s_cmp_lg_u32 s{S_WAVE}, {wave}
    s_cbranch_scc1 {sk}
    s_lshl_b32 s74, s{sslot}, 7
    v_mov_b32 v{v0_}, 0
    v_mov_b32 v{v1_}, 1
    s_mov_b64 exec, 1
    buffer_store_dword v{v1_}, v{v0_}, {srd(SRD_FL)}, s74 offen sc1
    s_mov_b64 exec, -1
    """)
    a.lab(sk)

def h_load(a, H, vl16, srdn, soff):
    for j in range(4):
        a.e(f"buffer_load_dwordx4 {v(H+4*j,4)}, v{vl16}, {srd(srdn)}, s{soff} offen offset:{1024*j}")
def h_stage(a, H, G, sslot, vl16, va, st):
    a.e(f"s_mul_i32 s{st}, s{sslot}, {HP}\n v_add_u32 v{va}, s{st}, v{vl16}")
    a.e(f"v_readfirstlane_b32 s{st}, v{H}")
    for j in range(4):
        a.e(f"ds_write_b128 v{va}, {v(H+4*j,4)} offset:{HB+32+1024*j}")
    for j in range(4):
        a.e(f"v_mov_b32_dpp v{G+4*j+3}, v{H+4*((j+1)&3)} wave_rol:1 row_mask:0xf bank_mask:0xf")
    for j in range(4):
        a.e(f"v_mov_b32_dpp v{G+4*j+3}, v{H+4*j} wave_shl:1 row_mask:0xf bank_mask:0xf")
    Z = G + 16
    for i in range(4): a.e(f"v_mov_b32 v{Z+i}, 0")
    a.e(f"s_lshl_b32 s{st}, s{st}, 16\n s_mov_b64 exec, 3\n ds_write_b128 v{va}, {v(Z,4)} offset:{HB}\n s_mov_b64 exec, -1")
    for j in range(4):
        h, g_ = H + 4 * j, G + 4 * j
        for i in range(3): a.e(f"v_alignbit_b32 v{g_+i}, v{h+i+1}, v{h+i}, 16")
        a.e(f"v_alignbit_b32 v{g_+3}, v{g_+3}, v{h+3}, 16")
        a.e(f"ds_write_b128 v{va}, {v(g_,4)} offset:{HB+H_O+32+1024*j}")
    a.e(f"v_writelane_b32 v{Z+3}, s{st}, 1\n s_mov_b64 exec, 3\n ds_write_b128 v{va}, {v(Z,4)} offset:{HB+H_O}\n s_mov_b64 exec, -1")
def conv_sload(a):
    a.e(f"""
    s_add_u32 s6, s{S_CB}, s{S_WAVE}
    s_lshl_b32 s6, s6, 1
    s_and_b32 s6, s6, 0xfffffffc
    s_load_dword s5, s[{P_D}:{P_D+1}], s6
    """)

def g1_loader(a):
    ra = RA(2)
    t0, t1, t2, t3 = [ra.a() for _ in range(4)]
    vx = [ra.a() for _ in range(4)]
    vw = [ra.a() for _ in range(5)]
    z4 = ra.a(4, 4)
    sLW, sSX, sSW, sM0X, sM0W, sC1, sC2, sT, sK = 60, 61, 62, 63, 64, 65, 66, 67, 68
    a.c("G1 loader wave")
    a.e(f"""
    s_sub_u32 s{sLW}, s{S_WAVE}, 4
    s_lshl_b32 s{sT}, s{S_RT}, 2
    s_add_u32 s{sT}, s{sT}, s{sLW}
    s_mul_i32 s{sSX}, s{sT}, {32*1280}
    s_lshl_b32 s{sM0X}, s{sLW}, 12
    v_lshrrev_b32 v{t0}, 3, v{L}
    v_mul_u32_u24 v{t0}, 1280, v{t0}
    v_lshrrev_b32 v{t1}, 4, v{L}
    v_and_b32 v{t2}, 7, v{L}
    v_xor_b32 v{t1}, v{t1}, v{t2}
    v_lshlrev_b32 v{t1}, 4, v{t1}
    v_xor_b32 v{t2}, 64, v{t1}
    v_add_u32 v{vx[0]}, v{t0}, v{t1}
    v_add_u32 v{vx[1]}, v{t0}, v{t2}
    v_add_u32 v{vx[2]}, {2*(8*1280-1024)}, v{vx[0]}
    v_add_u32 v{vx[3]}, {3*(8*1280-1024)}, v{vx[1]}
    v_add_u32 v{vx[1]}, {1*(8*1280-1024)}, v{vx[1]}
    s_cmp_eq_u32 s{S_MODE}, 0
    s_cselect_b32 s{sC1}, 1200, 0
    s_cselect_b32 s{sC2}, 80, 0
    s_cselect_b32 s{sSW}, 1280, 0
    s_lshl_b32 s{sT}, 160, s{S_MODE}
    s_mul_i32 s{sT}, s{sT}, s{S_G}
    s_add_u32 s{sSW}, s{sSW}, s{sT}
    s_mul_i32 s{sT}, s{sLW}, {16*3840}
    s_add_u32 s{sSW}, s{sSW}, s{sT}
    s_mul_i32 s{sM0W}, s{sLW}, 5120
    s_add_u32 s{sM0W}, s{sM0W}, {WBASE}
    s_and_b32 s{sT}, s{S_J}, 3
    s_lshl_b32 s{sT}, s{sT}, 2
    s_lshr_b32 s{sK}, {ROTR:#x}, s{sT}
    s_and_b32 s{sK}, s{sK}, 15
    s_and_b32 s{sT}, s{S_J}, 28
    s_lshr_b32 s{sT}, {ROTC:#x}, s{sT}
    s_and_b32 s{sT}, s{sT}, 15
    s_add_u32 s{sK}, s{sK}, s{sT}
    s_cmp_ge_u32 s{sK}, 10
    s_cselect_b32 s{sT}, 10, 0
    s_sub_u32 s{sK}, s{sK}, s{sT}
    s_lshl_b32 s{sT}, s{sK}, 7
    s_add_u32 s{sSX}, s{sSX}, s{sT}
    s_mul_i32 s{sT}, s{sK}, {64*3840}
    s_add_u32 s{sSW}, s{sSW}, s{sT}
    s_mov_b32 s70, {-9*64*3840}
    s_mov_b32 s71, {64*3840}
    s_mov_b32 s72, 128
    """)
    for x in range(320): assert (x * 3277) >> 16 == x // 20
    for x in range(20): assert (x * 52) >> 8 == x // 5
    for j in range(5):
        sub = 1024 * j if j < 4 else 0
        a.e(f"""
        v_add_u32 v{t0}, {64*j}, v{L}
        v_mul_u32_u24 v{t1}, 3277, v{t0}
        v_lshrrev_b32 v{t1}, 16, v{t1}
        v_mul_u32_u24 v{t2}, 20, v{t1}
        v_sub_u32 v{t0}, v{t0}, v{t2}
        v_lshrrev_b32 v{t2}, 2, v{t1}
        v_and_b32 v{t2}, 2, v{t2}
        v_xor_b32 v{t0}, v{t0}, v{t2}
        v_mul_u32_u24 v{t2}, 52, v{t0}
        v_lshlrev_b32 v{t0}, 4, v{t0}
        v_bfe_u32 v{t3}, v{t2}, 8, 1
        v_mad_u32_u24 v{t0}, v{t3}, s{sC1}, v{t0}
        v_lshrrev_b32 v{t3}, 9, v{t2}
        v_mul_u32_u24 v{t3}, s{sC2}, v{t3}
        v_sub_u32 v{t0}, v{t0}, v{t3}
        v_mul_u32_u24 v{t1}, 3840, v{t1}
        v_add_u32 v{t0}, v{t0}, v{t1}
        v_subrev_u32 v{vw[j]}, {sub}, v{t0}
        """)
    a.e("s_waitcnt lgkmcnt(0)")
    mk_srd(a, SRD_A, P_X, NB)
    mk_srd(a, SRD_B, P_W, 640 * 3840)
    def issue(st):
        out = [f"s_add_u32 m0, s{sM0X}, {(st % NST) * XST}", "s_nop 0"]
        for j in range(4):
            out.append(f"buffer_load_dwordx4 v{vx[j]}, {srd(SRD_A)}, s{sSX} offen offset:{1024*j} lds")
        out += [f"s_add_u32 m0, s{sM0W}, {(st % NST) * WST}", "s_nop 0"]
        for j in range(4):
            out.append(f"buffer_load_dwordx4 v{vw[j]}, {srd(SRD_B)}, s{sSW} offen offset:{1024*j} lds")
        out += [f"s_add_u32 m0, s{sM0W}, {(st % NST) * WST + 4096}", "s_nop 0"]
        out.append(f"buffer_load_dwordx4 v{vw[4]}, {srd(SRD_B)}, s{sSW} offen lds")
        out += [f"s_add_u32 s{sK}, s{sK}, 1", f"s_cmp_eq_u32 s{sK}, 10",
                f"s_cselect_b32 s{sT}, {-9*128}, s72", f"s_cselect_b32 s69, s70, s71",
                f"s_add_u32 s{sSX}, s{sSX}, s{sT}", f"s_add_u32 s{sSW}, s{sSW}, s69"]
        a.e("\n".join(out))
    def qbar():
        sk = a.newlab("qb")
        a.e(f"s_cmp_eq_u32 s{S_MODE}, 0\n s_cbranch_scc1 {sk}\n s_barrier")
        a.lab(sk)
    issue(0)
    issue(1)
    stamp(a, 1)
    mk_fl(a)
    ni = a.newlab("noimg")
    a.e(f"""
    s_cmp_lg_u32 s{S_MODE}, 0
    s_cbranch_scc1 {ni}
    v_and_b32 v{t1}, 3, v{L}
    v_cmp_eq_u32 vcc, 3, v{t1}
    v_mov_b32 v{z4+1}, 0
    v_mov_b32 v{z4+2}, 0
    v_mov_b32 v{z4+3}, 0
    v_cndmask_b32 v{z4}, 0, 1.0, vcc
    v_lshlrev_b32 v{t0}, 4, v0
    v_add_u32 v{t0}, {IMG-4096}, v{t0}
    """)
    for i in range(3): a.e(f"ds_write_b128 v{t0}, {v(z4,4)} offset:{4096*i}")
    a.e(f"s_waitcnt lgkmcnt(0)\n v_mov_b32 v{z4}, 0")
    for i in range(3): a.e(f"ds_write_b128 v{t0}, {v(z4,4)} offset:{4096*(3+i)}")
    a.e("s_waitcnt lgkmcnt(0)")
    a.lab(ni)
    for nb in range(8):
        a.e("s_waitcnt vmcnt(9)\n s_barrier")
        issue(nb + 2)
    lc, le = a.newlab("tc"), a.newlab("te")
    a.e(f"s_cmp_lg_u32 s{S_P2}, 0\n s_cbranch_scc1 {lc}")
    mk_srd(a, SRD_A, P_WO, 640 * 1280)
    a.e(f"""
    v_min_u32 v{t1}, 39, v{L}
    v_mul_u32_u24 v{t1}, 1280, v{t1}
    s_and_b32 s{sT}, s{S_RT}, 3
    s_lshl_b32 s{sT}, s{sT}, 2
    s_add_u32 s{sT}, s{sT}, s{sLW}
    s_mul_i32 s{sT}, s{sT}, {40*1280}
    s_lshl_b32 s{sC1}, s{S_CB}, 7
    s_add_u32 s{sT}, s{sT}, s{sC1}
    buffer_load_dword v250, v{t1}, {srd(SRD_A)}, s{sT} offen
    s_branch {le}
    """)
    a.lab(lc)
    mk_srd(a, SRD_A, P_H, T_BYTES)
    a.e(f"""
    v_and_b32 v{t1}, 31, v{L}
    v_lshlrev_b32 v{t1}, 7, v{t1}
    s_add_u32 s{sC1}, s{S_CB}, s{sLW}
    s_lshl_b32 s{sSX}, s{sC1}, 12
    buffer_load_dword v250, v{t1}, {srd(SRD_A)}, s{sSX} offen
    """)
    a.lab(le)
    mk_srd(a, SRD_D, P_DBG, 256)
    a.e(f"v_and_b32 v{t2}, 7, v{L}\n v_lshlrev_b32 v{t2}, 2, v{t2}")
    a.e(f"buffer_load_dword v{t3}, v{t2}, {srd(SRD_D)}, 0 offen sc1")
    a.e("s_waitcnt vmcnt(11)\n s_barrier\n s_waitcnt vmcnt(2)\n s_barrier")
    stamp(a, 2)
    lc = a.newlab("ld_conv")
    a.e(f"s_cmp_lg_u32 s{S_P2}, 0\n s_cbranch_scc1 {lc}")
    a.e(f"""
    v_lshrrev_b32 v{t0}, 3, v{L}
    v_mul_u32_u24 v{t0}, 1280, v{t0}
    v_and_b32 v{t1}, 7, v{L}
    v_bfe_u32 v{t2}, v{L}, 4, 1
    v_lshlrev_b32 v{t2}, 2, v{t2}
    v_xor_b32 v{t1}, v{t1}, v{t2}
    v_lshl_add_u32 v{vx[0]}, v{t1}, 4, v{t0}
    v_add_u32 v{vx[1]}, {1*(8*1280-1024)}, v{vx[0]}
    v_add_u32 v{vx[2]}, {2*(8*1280-1024)}, v{vx[0]}
    v_add_u32 v{vx[3]}, {3*(8*1280-1024)}, v{vx[0]}
    s_mul_i32 s{sSX}, s{sLW}, {160*1280}
    s_lshl_b32 s{sT}, s{S_CB}, 7
    s_add_u32 s{sSX}, s{sSX}, s{sT}
    s_mul_i32 s{sM0X}, s{sLW}, 20480
    s_barrier
    """)
    for q in range(5):
        a.e(f"s_add_u32 m0, s{sM0X}, {4096*q}\n s_nop 0")
        for j in range(4):
            a.e(f"buffer_load_dwordx4 v{vx[j]}, {srd(SRD_A)}, s{sSX} offen offset:{1024*j} lds")
        a.e(f"s_add_u32 s{sSX}, s{sSX}, {32*1280}")
    zok = a.newlab("zok")
    a.e(f"s_waitcnt vmcnt(20)\n v_cmp_ne_u32 vcc, 1, v{t3}\n s_nop 1\n s_cmp_eq_u64 vcc, 0\n s_cbranch_scc1 {zok}")
    poll_z(a, t1, t2)
    a.lab(zok)
    a.e("s_call_b64 s[64:65], L_G2S")
    stamp(a, 3)
    a.e("s_barrier\n s_branch L_G2")
    a.lab(lc)
    H = ra.a(16, 4); G = ra.a(20, 4)
    a.e(f"v_lshlrev_b32 v{t0}, 4, v{L}")
    h_load(a, H, t0, SRD_A, sSX)
    a.e("s_barrier\n s_waitcnt vmcnt(0)")
    h_stage(a, H, G, sLW, t0, t1, sC1)
    zok = a.newlab("zok")
    a.e(f"v_cmp_ne_u32 vcc, 1, v{t3}\n s_nop 1\n s_cmp_eq_u64 vcc, 0\n s_cbranch_scc1 {zok}")
    poll_z(a, t1, t2)
    a.lab(zok)
    stamp(a, 3)
    a.e("s_waitcnt lgkmcnt(0)\n s_barrier\n s_branch L_CONV")

def phi4(regs, tmps, sLOG, sEPS):
    o = []
    for r, t in zip(regs, tmps): o.append(f"v_mul_f32 v{t}, s{sLOG}, v{r}")
    for r, t in zip(regs, tmps): o.append(f"v_exp_f32_e64 v{t}, v{t} clamp")
    for r, t in zip(regs, tmps): o.append(f"v_max_f32 v{r}, s{sEPS}, v{r}")
    for r, t in zip(regs, tmps): o.append(f"v_add_f32 v{r}, v{r}, v{t}")
    return o

def housekeeping(a):
    t0, t1, z4 = 2, 3, 4
    sT, sU, sS = 60, 61, 62
    a.e(f"v_lshlrev_b32 v{t0}, 4, v{L}\n s_waitcnt lgkmcnt(0)")
    mk_fl(a)
    conv_sload(a)
    nz, nt = a.newlab("nozero"), a.newlab("notlb")
    a.e(f"s_lshl_b32 s{sT}, s{S_WAVE}, 8\n s_or_b32 s{sS}, s{sT}, s{S_J}\n s_cmp_lg_u32 s{sS}, 17\n s_cbranch_scc1 {nz}")
    a.e(f"s_mul_i32 s{sT}, s{S_XI}, {GB}\n s_add_u32 s{sT}, s{sT}, {WS_KV}")
    mk_srd(a, SRD_C, P_WS, GB, off_sreg=sT)
    mk_srd(a, SRD_D, P_DBG, 256)
    for i in range(4): a.e(f"v_mov_b32 v{z4+i}, 0")
    a.e(f"""
    v_and_b32 v{t1}, 31, v{L}
    v_lshlrev_b32 v{t1}, 7, v{t1}
    s_lshl_b32 s{sT}, s{S_XI}, 12
    buffer_store_dword v{z4}, v{t1}, {srd(SRD_FL)}, s{sT} offen sc1
    s_movk_i32 s{sT}, 4096
    s_movk_i32 s{sU}, 8192
    """)
    for n in range(9):
        a.e(f"buffer_store_dwordx4 {v(z4,4)}, v{t0}, {srd(SRD_C)}, {('0', 's%d' % sT, 's%d' % sU)[n>>2]} offen offset:{1024*(n&3)} sc1")
    a.e(f"""
    s_lshl_b32 s{sT}, s{S_XI}, 2
    v_mov_b32 v{t1}, 1
    s_waitcnt vmcnt(0)
    s_mov_b64 exec, 1
    buffer_store_dword v{t1}, v{t0}, {srd(SRD_D)}, s{sT} offen sc1
    s_mov_b64 exec, -1
    """)
    a.lab(nz)
    a.e(f"s_cmp_lg_u32 s{sS}, 19\n s_cbranch_scc1 {nt}")
    a.e(f"v_lshlrev_b32 v{t1}, 20, v{L}")
    for i, (ptr, nb) in enumerate([(P_WS, WS_END), (P_OUT, 2048 * 2560), (P_Q, NB), (P_WO, 640 * 1280), (P_DBG, 256)]):
        mk_srd(a, SRD_A, ptr, nb)
        a.e(f"buffer_load_dword v{244+i}, v{t1}, {srd(SRD_A)}, 0 offen")
    a.lab(nt)

S_ASLOT = 57
def g1_compute(a, mode):
    ra = RA(2)
    lr, g, t0, t1, t2 = [ra.a() for _ in range(5)]
    xa = [ra.a(), ra.a()]
    wa = [ra.a() for _ in range(5)]
    ad = [ra.a() for _ in range(6)]
    ie = ra.a(4, 4); ix = ra.a(4, 4)
    XF = [[ra.a(4, 4) for _ in range(4)] for _ in range(2)]
    WF = [[ra.a(4, 4) for _ in range(5)] for _ in range(2)]
    ACC = [[ra.a(4, 4) for _ in range(5)] for _ in range(4)]
    sRH, sCH, sT, sLOG, sEPS, sSO = 60, 61, 62, 63, 64, 65
    a.c("G1 compute wave mode %d" % mode)
    if mode == 1:
        housekeeping(a)
    a.e("s_call_b64 s[64:65], L_G2S")
    a.e(f"""
    s_lshr_b32 s{sRH}, s{S_WAVE}, 1
    s_and_b32 s{sCH}, s{S_WAVE}, 1
    s_mov_b32 s{sLOG}, {f32(1.4426950408889634)}
    s_mov_b32 s{sEPS}, {f32(1e-6)}
    v_and_b32 v{lr}, 15, v{L}
    v_lshrrev_b32 v{g}, 4, v{L}
    s_lshl_b32 s{sT}, s{sRH}, 13
    v_lshrrev_b32 v{t0}, 1, v{lr}
    v_xor_b32 v{t0}, v{t0}, v{g}
    v_lshlrev_b32 v{t0}, 4, v{t0}
    v_lshl_add_u32 v{t0}, v{lr}, 7, v{t0}
    v_add_u32 v{xa[0]}, s{sT}, v{t0}
    v_xor_b32 v{xa[1]}, 64, v{xa[0]}
    v_lshrrev_b32 v{t0}, 2, v{lr}
    v_lshl_add_u32 v{t0}, v{g}, 3, v{t0}
    v_mul_u32_u24 v{t0}, 320, v{t0}
    v_add_u32 v{t0}, {WBASE}, v{t0}
    v_and_b32 v{t1}, 1, v{g}
    v_lshlrev_b32 v{t1}, 5, v{t1}
    s_mul_i32 s{sT}, s{sCH}, 160
    v_and_b32 v{t2}, 3, v{lr}
    """)
    for t in range(5):
        w = wa[t]
        if t < 4:
            a.e(f"v_lshl_add_u32 v{w}, v{t2}, 3, s{sT}\n v_add_u32 v{w}, {40*t}, v{w}")
        else:
            a.e(f"v_mul_u32_u24 v{w}, 40, v{t2}\n v_add_u32 v{w}, s{sT}, v{w}\n v_add_u32 v{w}, 32, v{w}")
        a.e(f"v_xor_b32 v{w}, v{w}, v{t1}\n v_add_u32 v{w}, v{w}, v{t0}")
    for i in range(4):
        a.e(f"v_mov_b32 v{ie+i}, s{sEPS}")
    if mode == 0:
        a.e(f"v_cmp_gt_u32 vcc, 8, v{lr}")
        a.e(f"""
        s_mul_i32 s{sT}, s{sRH}, {IMGP}
        s_mul_i32 s{sSO}, s{sCH}, {GB//2}
        s_add_u32 s{sT}, s{sT}, s{sSO}
        s_add_u32 s{sT}, s{sT}, {IMG}
        """)
        for i in range(4):
            a.e(f"v_cndmask_b32 v{ix+i}, 0, v{ie}, vcc")
        for x in range(128): assert (x * 171) >> 9 == x // 3
        a.e(f"""
        v_cmp_eq_u32 vcc, 0, v{lr}
        v_add_u32 v{t0}, 8, v{lr}
        v_add_u32 v{t1}, 4, v{lr}
        v_cndmask_b32 v{t0}, v{t0}, 20, vcc
        v_cndmask_b32 v{t1}, v{t1}, 20, vcc
        """)
        for i, row in enumerate((lr, t0, t1)):
            for k in range(2):
                d = ad[2 * i + k]
                a.e(f"v_mad_u32_u24 v{d}, v{row}, 5, {'v%d' % g if k == 0 else '4'}")
                a.e(f"v_mul_u32_u24 v{t2}, 171, v{d}\n v_lshrrev_b32 v{t2}, 9, v{t2}\n v_add_u32 v{d}, v{d}, v{t2}\n v_lshl_add_u32 v{d}, v{d}, 4, s{sT}")
        a.e(f"s_mul_i32 s{sT}, s{S_G}, {GB}\n s_add_u32 s{sT}, s{sT}, {WS_KV}\n s_waitcnt lgkmcnt(0)")
        mk_srd(a, SRD_C, P_WS, GB, off_sreg=sT)
        mk_fl(a)
    else:
        a.e(f"""
        v_lshlrev_b32 v{ad[0]}, 4, v{L}
        v_add_u32 v{ad[1]}, 4096, v{ad[0]}
        s_lshl_b32 s{sT}, s{S_RT}, 2
        s_lshl_b32 s{sSO}, s{sRH}, 1
        s_add_u32 s{sT}, s{sT}, s{sSO}
        s_lshl_b32 s{sT}, s{sT}, 3
        s_lshl_b32 s{sSO}, s{S_G}, 1
        s_add_u32 s{sT}, s{sT}, s{sSO}
        s_add_u32 s{sT}, s{sT}, s{sCH}
        s_mul_i32 s{sSO}, s{sT}, 5120
        """)
        mk_srd(a, SRD_C, P_WS, T_BYTES, off=WS_PQ)
    def reads(st, ks):
        sl = st % NST
        xs = [f"ds_read_b128 {v(XF[ks][rt],4)}, v{xa[ks]} offset:{sl*XST + rt*2048}" for rt in range(4)]
        ws = []
        for t in range(5):
            for h in range(2):
                ws.append(f"ds_read_b64_tr_b16 {v(WF[ks][t]+2*h,2)}, v{wa[t]} offset:{sl*WST + ks*10240 + h*1280}")
        return xs + ws
    def mfmas(ks, first=False):
        o = []
        for rt in range(4):
            for t in range(5):
                d = ACC[rt][t]
                c = v(d, 4)
                if first:
                    if mode == 1 or t < 2: c = v(ie, 4)
                    elif t == 4: c = v(ix, 4)
                    else: c = "0"
                x, w = v(XF[ks][rt], 4), v(WF[ks][t], 4)
                A_, B_ = (x, w) if mode == 0 else (w, x)
                o.append(f"v_mfma_f32_16x16x32_bf16 {v(d,4)}, {A_}, {B_}, {c}")
        return o
    for st in range(10):
        a.c(f"step {st}")
        a.e("s_barrier")
        if st == 0: stamp(a, 1)
        if st == 5: stamp(a, 2)
        if st == 0:
            a.e("\n".join(reads(0, 0)))
        else:
            a.e("\n".join(interleave2(mfmas(1), reads(st, 0), 1)))
        a.e("s_waitcnt lgkmcnt(0)")
        a.e("\n".join(interleave2(mfmas(0, first=(st == 0)), reads(st, 1), 1)))
        a.e("s_waitcnt lgkmcnt(0)")
    a.e("s_barrier")
    fr = XF[0][0]
    tm = [ie, ie + 1, ie + 2, ie + 3]
    last = mfmas(1)
    if mode == 1:
        OB = [XF[0][i] for i in range(4)] + [WF[0][i] for i in range(5)] + [ix]
        V = []
        for pr in range(2):
            for t in range(5):
                ob = OB[5 * pr + t]
                for h in range(2):
                    r = [ACC[2 * pr + h][t] + i for i in range(4)]
                    V += phi4(r, tm, sLOG, sEPS)
                    V += [f"v_cvt_pk_bf16_f32 v{ob+2*h}, v{r[0]}, v{r[1]}", f"v_cvt_pk_bf16_f32 v{ob+2*h+1}, v{r[2]}, v{r[3]}"]
                V += ["s_nop 1", f"v_permlane16_swap_b32 v{ob}, v{ob+2}", f"v_permlane16_swap_b32 v{ob+1}, v{ob+3}"]
                V += [f"buffer_store_dwordx4 {v(ob,4)}, v{ad[t>>2]}, {srd(SRD_C)}, s{sSO} offen offset:{1024*(t&3)} sc1"]
            if pr == 0: V += [f"s_add_u32 s{sSO}, s{sSO}, {8*5120}"]
        a.e("\n".join(last[:10] + interleave2(last[10:], V, 2)))
        stamp(a, 4)
        a.e(f"s_lshl_b32 s{sT}, s{S_RT}, 2\n s_add_u32 s{sT}, s{sT}, s{S_G}\n s_add_u32 s{sT}, s{sT}, 64")
        a.e("s_waitcnt vmcnt(0)\n s_barrier")
        set_flag(a, sT, t0, t1)
        a.e(f"s_cmp_lg_u32 s{S_P2}, 0\n s_cbranch_scc1 L_CONV\n s_branch L_G2")
    else:
        names = ["T0", "T1", "T2", "T3", "T4A", "T4B"]
        k0 = [XF[0][i] for i in range(4)] + [WF[0][0], WF[0][1]]
        k1 = [WF[0][2], WF[0][3], WF[0][4], XF[1][0], XF[1][1], XF[1][2]]
        P = {n: [k0[i], k1[i]] for i, n in enumerate(names)}
        V = [f"v_cmp_gt_u32 vcc, 8, v{lr}", f"v_mov_b32 v{t0}, 0x3f803f80"]
        for rt in range(4):
            k, h = rt >> 1, rt & 1
            for t, n in ((2, "T2"), (3, "T3"), (4, "T4B")):
                r = ACC[rt][t]; d = P[n][k] + 2 * h
                V += [f"v_cvt_pk_bf16_f32 v{d}, v{r}, v{r+1}", f"v_cvt_pk_bf16_f32 v{d+1}, v{r+2}, v{r+3}"]
            d = P["T4B"][k] + 2 * h
            V += [f"v_cndmask_b32 v{d}, v{d}, v{t0}, vcc", f"v_cndmask_b32 v{d+1}, v{d+1}, v{t0}, vcc"]
            for t, n in ((0, "T0"), (1, "T1"), (4, "T4A")):
                r = [ACC[rt][t] + i for i in range(4)]; d = P[n][k] + 2 * h
                V += phi4(r, tm, sLOG, sEPS)
                V += [f"v_cvt_pk_bf16_f32 v{d}, v{r[0]}, v{r[1]}", f"v_cvt_pk_bf16_f32 v{d+1}, v{r[2]}, v{r[3]}"]
        prods = [("T0", "T2"), ("T0", "T4B"), ("T4A", "T2"), ("T1", "T3"), ("T1", "T4B"), ("T4A", "T3"), ("T4A", "T4B")]
        R = [ACC[0][0] + 4 * i for i in range(7)]
        kvm = lambda k: [f"v_mfma_f32_16x16x32_bf16 {v(R[i],4)}, {v(P[x][k],4)}, {v(P[y][k],4)}, {'0' if k == 0 else v(R[i],4)}" for i, (x, y) in enumerate(prods)]
        half = 2 + (len(V) - 2) // 2
        a.e("\n".join(last[:10] + interleave2(last[10:], V[:half + 4], 2)))
        stamp(a, 3)
        a.e("\n".join(interleave2(kvm(0), V[half + 4:], 8)))
        a.e("s_nop 1")
        a.e("\n".join(kvm(1)))
        a.e(f"v_lshlrev_b32 v{t0}, 2, v0\n v_add_u32 v{t1}, {IMG}, v{t0}\n v_add_u32 v{t2}, 4096, v{t0}\n v_add_u32 v{lr}, 8192, v{t0}\n s_nop 3")
        HBY = GB // 4
        def wr(i, addr, off, lo, hi):
            a.e(f"s_mov_b32 exec_lo, {lo:#x}\n s_mov_b32 exec_hi, {hi:#x}")
            a.e(f"ds_write_b128 v{addr}, {v(R[i],4)} offset:{off}")
        a.e(f"ds_write_b128 v{ad[0]}, {v(R[0],4)}")
        a.e(f"ds_write_b128 v{ad[0]}, {v(R[3],4)} offset:{HBY}")
        wr(1, ad[2], 0, 0x0f010f01, 0x0f010f01)
        wr(4, ad[4], HBY, 0xf001f001, 0xf001f001)
        wr(2, ad[1], 0, 0x0000ffff, 0)
        wr(5, ad[1], HBY, 0xffff0000, 0)
        wr(6, ad[3], 0, 0x00000f01, 0)
        wr(6, ad[5], HBY, 0xf0010000, 0)
        a.e("s_mov_b64 exec, -1")
        stamp(a, 4)
        a.e("s_waitcnt lgkmcnt(0)\n s_barrier")
        for n in range(9):
            a.e(f"ds_read2st64_b32 {v(fr+2*n,2)}, v{t1} offset0:{4*n} offset1:{48+4*n}")
        for n in range(9):
            a.e(f"s_waitcnt lgkmcnt({8-n})")
            a.e(f"v_add_f32 v{fr+2*n}, v{fr+2*n}, v{fr+2*n+1}")
            a.e(f"buffer_atomic_add_f32 v{fr+2*n}, v{(t0, t2, lr)[n>>2]}, {srd(SRD_C)}, 0 offen offset:{1024*(n&3)}")
        a.e(f"s_lshl_b32 s{sT}, s{S_G}, 4\n s_add_u32 s{sT}, s{sT}, s{S_RT}\n s_add_u32 s{sT}, s{sT}, 128")
        if "kvwait" in EX: a.e("s_waitcnt vmcnt(0)")
        set_flag(a, sT, t0, t1, wave=int(os.environ.get("FW", "3")))
        a.e("s_branch L_G2")
    return ra.hi

def a1(a):
    ra = RA(2)
    t0, t1, t2 = [ra.a() for _ in range(3)]
    vo = [ra.a() for _ in range(5)]
    lr, g, ad, adh, so_u, otap = [ra.a() for _ in range(6)]
    taps = [ra.a(2) for _ in range(5)]
    KR = [ra.a(6, 2) for _ in range(5)]; VR = [ra.a(4, 2) for _ in range(5)]
    W = [ra.a(5) for _ in range(5)]; U = ra.a(8); O = [ra.a(4, 4) for _ in range(2)]; X = ra.a(4)
    H = ra.a(16, 4); G = ra.a(20, 4); l16 = ra.a(); vz = ra.a()
    sTI, sCH, sSO, sM0, sT, sSH, sU, sCG = 60, 61, 62, 63, 64, 65, 66, 67
    a.c("A1: 32 rows x 320 channels")
    a.e(f"""
    s_sub_u32 s{sT}, s{S_J}, 24
    s_lshl_b32 s{sT}, s{sT}, 3
    s_add_u32 s{sT}, s{sT}, s{S_XI}
    s_lshr_b32 s{sTI}, s{sT}, 1
    s_and_b32 s{sCH}, s{sT}, 1
    s_lshl_b32 s{S_ASLOT}, s{sCH}, 5
    s_add_u32 s{S_ASLOT}, s{S_ASLOT}, s{sTI}
    s_lshr_b32 s{sCG}, s{S_WAVE}, 1
    s_lshl_b32 s{sT}, s{sTI}, 3
    s_add_u32 s{sT}, s{sT}, s{S_WAVE}
    s_mul_i32 s{sSO}, s{sT}, {8*1280}
    s_mul_i32 s{sT}, s{sCH}, 640
    s_add_u32 s{sSO}, s{sSO}, s{sT}
    s_mul_i32 s{sM0}, s{S_WAVE}, 5120
    s_and_b32 s{sT}, s{S_WAVE}, 1
    s_lshl_b32 s{sT}, s{sT}, 2
    """)
    for x in range(320): assert (x * 1639) >> 16 == x // 40
    for j in range(5):
        sub = 1024 * j if j < 4 else 0
        a.e(f"""
        v_add_u32 v{t0}, {64*j}, v{L}
        v_mul_u32_u24 v{t1}, 1639, v{t0}
        v_lshrrev_b32 v{t1}, 16, v{t1}
        v_mul_u32_u24 v{t2}, 40, v{t1}
        v_sub_u32 v{t0}, v{t0}, v{t2}
        v_and_b32 v{t2}, 2, v{t1}
        v_or_b32 v{t2}, s{sT}, v{t2}
        v_xor_b32 v{t0}, v{t0}, v{t2}
        v_lshlrev_b32 v{t0}, 4, v{t0}
        v_mul_u32_u24 v{t1}, 1280, v{t1}
        v_add_u32 v{t0}, v{t0}, v{t1}
        v_subrev_u32 v{vo[j]}, {sub}, v{t0}
        """)
    a.e(f"""
    v_and_b32 v{lr}, 15, v{L}
    s_mul_i32 s{sT}, s{sCH}, 320
    v_add_u32 v{so_u}, s{sT}, v{lr}
    v_lshlrev_b32 v{otap}, 3, v{so_u}
    s_waitcnt lgkmcnt(0)
    """)
    mk_srd(a, SRD_A, P_K, NB); mk_srd(a, SRD_B, P_V, NB); mk_srd(a, SRD_D, P_SH, 640 * 8)
    def dma(srdn, lbase, so, js=range(5)):
        o = []; first = True
        for j in js:
            if first and j < 4:
                o += [f"s_add_u32 m0, s{sM0}, {lbase}", "s_nop 0"]; first = False
            if j == 4:
                o += [f"s_add_u32 m0, s{sM0}, {lbase+4096}", "s_nop 0"]
            off = f" offset:{1024*j}" if 0 < j < 4 else ""
            o.append(f"buffer_load_dwordx4 v{vo[j]}, {srd(srdn)}, s{so} offen{off} lds")
        return o
    a.e(f"s_lshl_b32 s{sT}, s{sCG}, 7")
    for n in range(5):
        a.e(f"buffer_load_dwordx2 {v(taps[n],2)}, v{otap}, {srd(SRD_D)}, s{sT} offen offset:{512*n}")
    lab = a.newlab("a1_nohalo")
    a.e(f"""
    s_cmp_lg_u32 s{S_WAVE}, 7
    s_cbranch_scc1 {lab}
    s_sub_u32 s{sSH}, s{sSO}, {64*1280}
    s_cmp_eq_u32 s{sTI}, 0
    s_cselect_b32 s{sSH}, {NB}, s{sSH}
    """)
    a.e("\n".join(dma(SRD_A, A_KB - 8 * 5120, sSH, js=(2, 3, 4))))
    a.lab(lab)
    a.e("\n".join(dma(SRD_A, A_KB, sSO)))
    a.e("\n".join(dma(SRD_B, A_VB, sSO)))
    mk_srd(a, SRD_A, P_H, T_BYTES)
    a.e(f"s_add_u32 s{sT}, s{S_CB}, s{S_WAVE}\n s_lshl_b32 s{sT}, s{sT}, 12\n v_lshlrev_b32 v{l16}, 4, v{L}")
    a.e("s_barrier")
    h_load(a, H, l16, SRD_A, sT)
    mk_srd(a, SRD_D, P_DBG, 256)
    a.e(f"v_and_b32 v{t2}, 7, v{L}\n v_lshlrev_b32 v{t2}, 2, v{t2}")
    a.e(f"buffer_load_dword v{vz}, v{t2}, {srd(SRD_D)}, 0 offen sc1")
    mk_srd(a, SRD_C, P_WS, T_BYTES)
    mk_fl(a)
    conv_sload(a)
    a.e(f"""
    v_lshrrev_b32 v{g}, 4, v{L}
    v_lshrrev_b32 v{t0}, 2, v{lr}
    v_lshl_add_u32 v{t1}, v{g}, 3, v{t0}
    v_mul_u32_u24 v{ad}, 640, v{t1}
    v_and_b32 v{t2}, 3, v{lr}
    v_lshl_add_u32 v{ad}, v{t2}, 3, v{ad}
    s_and_b32 s{sSH}, s{S_WAVE}, 1
    s_mul_i32 s{sU}, s{sSH}, {32*640}
    s_add_u32 s{sU}, s{sU}, {A_KB}
    v_add_u32 v{ad}, s{sU}, v{ad}
    v_lshrrev_b32 v{t0}, 1, v{t0}
    v_and_b32 v{t1}, 1, v{g}
    v_lshl_or_b32 v{t0}, v{t1}, 1, v{t0}
    v_xor_b32 v{t0}, s{sCG}, v{t0}
    v_lshlrev_b32 v{t0}, 5, v{t0}
    v_xor_b32 v{t1}, 64, v{t0}
    v_add_u32 v{adh}, v{t1}, v{ad}
    v_subrev_u32 v{adh}, {4*640}, v{adh}
    v_add_u32 v{ad}, v{t0}, v{ad}
    v_lshlrev_b32 v{t0}, 12, v{so_u}
    s_lshl_b32 s{sT}, s{sTI}, 1
    s_add_u32 s{sT}, s{sT}, s{sSH}
    s_lshl_b32 s{sT}, s{sT}, 6
    v_lshlrev_b32 v{t1}, 4, v{g}
    v_add_u32 v{t1}, s{sT}, v{t1}
    v_sub_u32 v{so_u}, 4080, v{t1}
    v_add_u32 v{so_u}, v{so_u}, v{t0}
    s_lshl_b32 s{sU}, s{sCG}, 16
    s_waitcnt vmcnt(15)
    """)
    for n in range(5):
        tp, w = taps[n], W[n]
        a.e(f"""
        v_alignbit_b32 v{w}, v{tp}, v{tp}, 16
        v_alignbit_b32 v{w+1}, v{tp+1}, v{tp+1}, 16
        v_and_b32 v{w+2}, 0xffff0000, v{tp}
        v_and_b32 v{w+3}, 0xffff, v{tp}
        v_and_b32 v{w+4}, 0xffff, v{tp+1}
        v_or_b32 v{w+2}, v{w+2}, v{w+4}
        v_and_b32 v{w+4}, 0xffff0000, v{tp+1}
        """)
    stamp(a, 1)
    a.e("s_waitcnt vmcnt(5) lgkmcnt(0)\n s_barrier")
    stamp(a, 2)
    if STAMPS: a.e("s_waitcnt lgkmcnt(0)")
    def rd(n):
        o = 128 * n
        return [f"ds_read_b64_tr_b16 {v(KR[n],2)}, v{adh} offset:{o}",
                f"ds_read_b64_tr_b16 {v(KR[n]+2,2)}, v{ad} offset:{o}",
                f"ds_read_b64_tr_b16 {v(KR[n]+4,2)}, v{ad} offset:{o+2560}",
                f"ds_read_b64_tr_b16 {v(VR[n],2)}, v{ad} offset:{A_VB-A_KB+o}",
                f"ds_read_b64_tr_b16 {v(VR[n]+2,2)}, v{ad} offset:{A_VB-A_KB+o+2560}"]
    a.e("\n".join(rd(0) + rd(1) + rd(2)))
    for n in range(5):
        k, w, ob = KR[n], W[n], O[n & 1]
        a.e(f"s_waitcnt lgkmcnt({5*(min(4, n + 2) - n)})")
        if n + 3 < 5:
            a.e("\n".join(rd(n + 3)))
        for m in range(4):
            a.e(f"v_dot2_f32_bf16 v{U+2*m}, v{k+m}, v{w+4}, 0")
            a.e(f"v_dot2_f32_bf16 v{U+2*m+1}, v{k+m+1}, v{w+1}, 0")
        for m in range(4):
            a.e(f"v_dot2_f32_bf16 v{U+2*m}, v{k+m+1}, v{w+2}, v{U+2*m}")
            a.e(f"v_dot2_f32_bf16 v{U+2*m+1}, v{k+m+2}, v{w}, v{U+2*m+1}")
        for m in range(4):
            a.e(f"v_dot2_f32_bf16 v{U+2*m}, v{k+m+2}, v{w+3}, v{U+2*m}")
        for m in range(4):
            x = X + 2 * (m & 1)
            a.e(f"""
            v_lshlrev_b32 v{x}, 16, v{VR[n]+m}
            v_and_b32 v{x+1}, 0xffff0000, v{VR[n]+m}
            v_mul_f32 v{x+1}, v{x+1}, v{U+2*m+1}
            v_mul_f32 v{x}, v{x}, v{U+2*m}
            v_cvt_pk_bf16_f32 v{ob+3-m}, v{x+1}, v{x}
            """)
        a.e(f"buffer_store_dwordx4 {v(ob,4)}, v{so_u}, {srd(SRD_C)}, s{sU} offen sc1")
        if n < 4: a.e(f"s_add_u32 s{sU}, s{sU}, {4<<16}")
    a.e("s_waitcnt vmcnt(5)")
    h_stage(a, H, G, S_WAVE, l16, t2, sT)
    nz = a.newlab("a1_nz")
    a.e(f"v_cmp_ne_u32 vcc, 1, v{vz}\n s_nop 1\n s_cmp_eq_u64 vcc, 0\n s_cbranch_scc1 {nz}")
    poll_z(a, t0, t1)
    a.lab(nz)
    return ra.hi

def conv(a):
    ra = RA(2)
    lr, g, t0, t1, t2, aB, aT, vrow, vfl = [ra.a() for _ in range(9)]
    aA = [ra.a() for _ in range(4)]
    z4 = ra.a(4, 4); AD = ra.a(4, 4)
    Q = ra.a(16, 4)
    AF = [[ra.a(4, 4) for _ in range(8)] for _ in range(2)]
    BF = [[ra.a(4, 4) for _ in range(8)] for _ in range(2)]
    ACC = [ra.a(4, 4) for _ in range(8)]
    sD, sR, sSO, sT, sDV, sH, sQO = 60, 61, 62, 63, 65, 66, 67
    fin, idle = a.newlab("conv_fin"), a.newlab("conv_idle")
    a.c("conv")
    mk_srd(a, SRD_A, P_WS, T_BYTES); mk_srd(a, SRD_B, P_Q, NB); mk_srd(a, SRD_C, P_OUT, 2048 * 2560)
    def qtouch():
        a.e(f"""
        s_cmp_eq_u32 s{S_P2}, 8
        s_cselect_b32 s68, 63, 31
        s_cselect_b32 s69, 31, 63
        s_and_b32 s{sT}, s{S_J}, 7
        s_lshl_b32 s{sT}, s{sT}, 3
        s_add_u32 s{sT}, s{sT}, s{S_WAVE}
        s_and_b32 s{sT}, s{sT}, s68
        s_add_u32 s70, s69, 1
        s_mul_i32 s{sT}, s{sT}, s70
        s_mul_i32 s{sT}, s{sT}, 1280
        s_lshl_b32 s70, s{S_CB}, 1
        s_add_u32 s{sT}, s{sT}, s70
        v_and_b32 v{t2}, s69, v{L}
        v_mul_u32_u24 v{t2}, 1280, v{t2}
        buffer_load_dword v250, v{t2}, {srd(SRD_B)}, s{sT} offen
        """)
    def qgather(ns):
        for n in ns:
            l8, le = a.newlab("q8"), a.newlab("qe")
            a.e(f"""
            s_add_u32 s{sT}, s{sQO}, {n*64*1280}
            s_cmp_eq_u32 s{S_P2}, 8
            s_cbranch_scc1 {l8}
            buffer_load_dwordx2 {v(Q+4*n,2)}, v{vrow}, {srd(SRD_B)}, s{sT} offen
            s_branch {le}
            """)
            a.lab(l8)
            a.e(f"buffer_load_dwordx4 {v(Q+4*n,4)}, v{vrow}, {srd(SRD_B)}, s{sT} offen")
            a.lab(le)
    a.e(f"""
    v_and_b32 v{lr}, 15, v{L}
    v_lshrrev_b32 v{g}, 4, v{L}
    v_mul_u32_u24 v{vrow}, 1280, v{L}
    s_mul_i32 s{sQO}, s{S_WAVE}, {256*1280}
    s_lshl_b32 s{sT}, s{S_CB}, 1
    s_add_u32 s{sQO}, s{sQO}, s{sT}
    s_cmp_ge_u32 s{S_WAVE}, s{S_P2}
    s_cbranch_scc1 {idle}
    s_add_u32 s{sD}, s{S_CB}, s{S_WAVE}
    s_lshl_b32 s{sSO}, s{sD}, 12
    s_mul_i32 s{sR}, s{S_WAVE}, {UP}
    s_add_u32 s{sR}, s{sR}, {UB}
    s_mul_i32 s{sH}, s{S_WAVE}, {HP}
    s_cmp_ge_u32 s{sD}, 320
    s_cselect_b32 s{sT}, 32, 0
    v_and_b32 v{vfl}, 31, v{L}
    v_add_u32 v{vfl}, s{sT}, v{vfl}
    v_lshlrev_b32 v{vfl}, 7, v{vfl}
    """)
    for i in range(4):
        a.e(f"v_mov_b32 v{z4+i}, 0")
    a.e(f"""
    v_and_b32 v{t1}, 1, v{lr}
    v_cmp_eq_u32 vcc, 1, v{t1}
    v_mov_b32 v{t1}, {HB+H_O}
    v_mov_b32 v{t2}, {HB+2}
    v_cndmask_b32 v{t1}, v{t1}, v{t2}, vcc
    v_lshl_add_u32 v{t1}, v{lr}, 1, v{t1}
    v_lshl_add_u32 v{t1}, v{g}, 4, v{t1}
    v_add_u32 v{aA[0]}, s{sH}, v{t1}
    v_add_u32 v{aA[1]}, 1024, v{aA[0]}
    v_add_u32 v{aA[2]}, 2048, v{aA[0]}
    v_add_u32 v{aA[3]}, 3072, v{aA[0]}
    v_lshlrev_b32 v{t0}, 4, v{L}
    v_add_u32 v{aT}, s{sR}, v{t0}
    s_and_b32 s{sT}, s{sD}, 1
    s_lshl_b32 s{sT}, s{sT}, 4
    s_lshr_b32 s{sDV}, s5, s{sT}
    s_and_b32 s{sDV}, s{sDV}, 0xffff
    v_lshl_add_u32 v{t1}, v{g}, 3, v{lr}
    v_sub_u32 v{t1}, 15, v{t1}
    v_and_b32 v{t2}, 1, v{t1}
    v_lshlrev_b32 v{t2}, 4, v{t2}
    v_lshlrev_b32 v{t2}, v{t2}, s{sDV}
    v_ashrrev_i32 v{t1}, 1, v{t1}
    """)
    for r in range(4):
        a.e(f"v_cmp_eq_u32 vcc, {r}, v{t1}\n s_nop 1\n v_cndmask_b32 v{AD+r}, 0, v{t2}, vcc")
    a.e(f"""
    v_lshlrev_b32 v{t1}, 5, v{lr}
    v_sub_u32 v{aB}, 480, v{t1}
    v_lshl_add_u32 v{aB}, v{g}, 4, v{aB}
    v_add_u32 v{aB}, s{sR}, v{aB}
    """)
    nf = a.newlab("nobf")
    a.e(f"s_cmp_lg_u32 s{S_P2}, 8\n s_cbranch_scc1 {nf}")
    stamp(a, 3)
    a.e("s_waitcnt vmcnt(0) lgkmcnt(0)\n s_barrier")
    stamp(a, 4)
    set_flag(a, S_ASLOT, t1, t2)
    a.lab(nf)
    a.e(f"s_mov_b32 exec_hi, 0\n ds_write_b128 v{aT}, {v(z4,4)} offset:4096\n s_mov_b64 exec, -1")
    stamp(a, 5)
    npl = a.newlab("nopoll")
    a.e(f"s_cmp_lg_u32 s{S_WAVE}, 1\n s_cbranch_scc1 {npl}")
    poll(a, SRD_FL, vfl, t1, slp=int(os.environ.get("ASL", "2")))
    a.lab(npl)
    a.e("s_barrier")
    stamp(a, 6)
    UR = AF[1][0]
    for j in range(4):
        a.e(f"buffer_load_dwordx4 {v(UR+4*j,4)}, v{t0}, {srd(SRD_A)}, s{sSO} offen offset:{1024*j} sc1")
    for j in range(4):
        a.e(f"s_waitcnt vmcnt({3-j})\n ds_write_b128 v{aT}, {v(UR+4*j,4)} offset:{1024*j}")
    a.e(f"""
    v_lshlrev_b32 v{t1}, 5, v{lr}
    v_lshl_add_u32 v{aT}, v{g}, 3, v{t1}
    v_add_u32 v{aT}, s{sR}, v{aT}
    """)
    def reads(r):
        b = r & 1; o = []
        for i in range(8):
            o.append(f"ds_read_b128 {v(BF[b][i],4)}, v{aB} offset:{3584 - 512*i + 64*r}")
            o0 = 128 * (i & 1) + 16 * r
            o.append(f"ds_read2_b32 {v(AF[b][i],2)}, v{aA[i>>1]} offset0:{o0} offset1:{o0+1}")
            o.append(f"ds_read2_b32 {v(AF[b][i]+2,2)}, v{aA[i>>1]} offset0:{o0+2} offset1:{o0+3}")
        return o
    def mf(r):
        b = r & 1; o = []
        if r == 0:
            for c in range(8):
                o.append(f"v_mfma_f32_16x16x32_bf16 {v(ACC[c],4)}, {v(AD,4)}, {v(BF[b][c],4)}, 0")
        for q in range(8):
            for c in range(q, 8):
                o.append(f"v_mfma_f32_16x16x32_bf16 {v(ACC[c],4)}, {v(AF[b][q],4)}, {v(BF[b][c-q],4)}, {v(ACC[c],4)}")
        return o
    stamp(a, 7)
    a.e("s_waitcnt lgkmcnt(0)\n s_barrier")
    a.e("\n".join(reads(0)))
    qtouch()
    for r in range(8):
        a.e("s_waitcnt lgkmcnt(0)")
        if 3 <= r <= 6: qgather([r - 3])
        a.e("\n".join(interleave(mf(r), reads(r + 1) if r < 7 else [])))
    stamp(a, 8)
    T = AF[0][0]
    for c in range(8):
        t = T + 2 * c
        a.e(f"""
        v_cvt_pk_bf16_f32 v{t}, v{ACC[c]}, v{ACC[c]+1}
        v_cvt_pk_bf16_f32 v{t+1}, v{ACC[c]+2}, v{ACC[c]+3}
        ds_write_b64 v{aT}, v[{t}:{t+1}] offset:{512*c}
        """)
    a.e(f"s_branch {fin}")
    a.lab(idle)
    a.e("s_barrier\n s_barrier")
    qtouch()
    a.e("s_waitcnt vmcnt(0)")
    qgather(range(4))
    a.lab(fin)
    a.e(f"""
    v_lshrrev_b32 v{t0}, 2, v{lr}
    v_mul_u32_u24 v{t0}, {UP}, v{t0}
    v_and_b32 v{t1}, 3, v{lr}
    v_lshl_add_u32 v{t0}, v{t1}, 3, v{t0}
    v_lshl_add_u32 v{t0}, v{g}, 5, v{t0}
    s_lshl_b32 s{sT}, s{S_WAVE}, 9
    s_add_u32 s{sT}, s{sT}, {UB}
    v_add_u32 v{t0}, s{sT}, v{t0}
    v_lshlrev_b32 v{vrow}, 1, v{vrow}
    s_mul_i32 s{sSO}, s{S_WAVE}, {256*2560}
    s_lshl_b32 s{sT}, s{S_CB}, 1
    s_add_u32 s{sSO}, s{sSO}, s{sT}
    s_waitcnt lgkmcnt(0)
    s_barrier
    """)
    stamp(a, 9)
    Y = BF[0][0]; X = BF[1][0]
    def tail(nd):
        for n in range(4):
            for k in range(nd // 2):
                a.e(f"ds_read_b64_tr_b16 {v(Y+4*n+2*k,2)}, v{t0} offset:{128*n + 4*UP*k}")
        a.e("s_waitcnt vmcnt(0) lgkmcnt(0)")
        for n in range(4):
            for i in range(nd):
                y, q = Y + 4 * n + i, Q + 4 * n + i
                a.e(f"""
                v_lshlrev_b32 v{X}, 16, v{y}
                v_and_b32 v{X+1}, 0xffff0000, v{y}
                v_lshlrev_b32 v{X+2}, 16, v{q}
                v_and_b32 v{X+3}, 0xffff0000, v{q}
                v_mul_f32 v{X}, v{X}, v{X+2}
                v_mul_f32 v{X+1}, v{X+1}, v{X+3}
                v_cvt_pk_bf16_f32 v{y}, v{X}, v{X+1}
                """)
            a.e(f"buffer_store_dwordx{nd} {v(Y+4*n,nd)}, v{vrow}, {srd(SRD_C)}, s{sSO} offen {OST if nd == 4 else ''}")
            if n < 3: a.e(f"s_add_u32 s{sSO}, s{sSO}, {64*2560}")
    l8 = a.newlab("t8")
    a.e(f"s_cmp_eq_u32 s{S_P2}, 8\n s_cbranch_scc1 {l8}")
    tail(2)
    a.e("s_branch L_FIN")
    a.lab(l8)
    tail(4)
    a.e("s_branch L_FIN")
    return ra.hi

G2R = dict(v16=224, ka=225, kx=[226, 227], wm=[228, 229], wx=[230, 231], la=list(range(232, 241)), vfl=241, vz=242)
def g2_setup(a):
    t0, t1, t2, rc = 2, 3, 4, 5
    v16, ka, kx, wm, wx, la, vfl, vz = [G2R[k] for k in ("v16", "ka", "kx", "wm", "wx", "la", "vfl", "vz")]
    sKH, sT, sU = 60, 61, 62
    for x in range(144): assert (x * 1873) >> 16 == x // 35
    a.e(f"""
    s_lshr_b32 s{sKH}, s{S_WAVE}, 2
    v_lshlrev_b32 v{v16}, 4, v{L}
    s_lshl_b32 s{sT}, s{S_RT}, 2
    s_lshl_b32 s{sU}, s{sKH}, 1
    s_add_u32 s{sT}, s{sT}, s{sU}
    s_add_u32 s{sT}, s{sT}, 64
    v_and_b32 v{t0}, 1, v{L}
    v_add_u32 v{t0}, s{sT}, v{t0}
    s_lshl_b32 s{sT}, s{S_WAVE}, 4
    s_add_u32 s{sT}, s{sT}, 128
    v_cmp_gt_u32 vcc, 32, v{L}
    v_and_b32 v{t1}, 15, v{L}
    v_add_u32 v{t1}, s{sT}, v{t1}
    v_cndmask_b32 v{t0}, v{t0}, v{t1}, vcc
    v_lshlrev_b32 v{vfl}, 7, v{t0}
    s_mul_i32 s{sT}, s{S_WAVE}, 3520
    s_add_u32 s{sT}, s{sT}, {KVI}
    v_and_b32 v{t0}, 3, v{L}
    v_lshl_add_u32 v{t0}, v{t0}, 3, s{sT}
    v_lshrrev_b32 v{t1}, 2, v{L}
    v_mad_u32_u24 v{t0}, v{t1}, 24, v{t0}
    """)
    for n in range(9):
        a.e(f"v_add_u32 v{t2}, {16*n}, v{t1}\n v_mul_u32_u24 v{t2}, 1873, v{t2}\n v_lshrrev_b32 v{t2}, 16, v{t2}\n v_mad_u32_u24 v{la[n]}, v{t2}, 40, v{t0}")
    a.e(f"""
    v_mul_u32_u24 v{t1}, 52, v{L}
    v_lshrrev_b32 v{t1}, 8, v{t1}
    v_mul_u32_u24 v{t1}, 840, v{t1}
    v_lshl_add_u32 v{t1}, v{L}, 3, v{t1}
    v_add_u32 v{vz}, s{sT}, v{t1}
    v_and_b32 v{t0}, 31, v{L}
    v_and_b32 v{t1}, 15, v{L}
    v_lshlrev_b32 v{t1}, 2, v{t1}
    s_mov_b32 s{sT}, 0x54325410
    v_lshrrev_b32 v{t1}, v{t1}, s{sT}
    v_and_b32 v{t1}, 15, v{t1}
    v_add_u32 v{t1}, 16, v{t1}
    v_cmp_lt_u32 vcc, 23, v{t0}
    s_mul_i32 s{sT}, s{sKH}, {16*880}
    s_add_u32 s{sT}, s{sT}, {KVI}
    v_cndmask_b32 v{t1}, v{t1}, 21, vcc
    v_cmp_gt_u32 vcc, 16, v{t0}
    v_lshrrev_b32 v{t2}, 5, v{L}
    s_add_u32 s{sU}, s{sT}, 840
    v_cndmask_b32 v{t1}, v{t1}, v{t0}, vcc
    v_mad_u32_u24 v{t1}, v{t1}, 40, s{sT}
    v_lshl_add_u32 v{ka}, v{t2}, 4, v{t1}
    v_add_u32 v{t1}, 32, v{t1}
    v_cmp_eq_u32 vcc, 0, v{t2}
    v_mov_b32 v{t0}, s{sU}
    s_nop 0
    v_cndmask_b32 v{kx[0]}, v{t0}, v{t1}, vcc
    v_cndmask_b32 v{kx[1]}, v{t1}, v{t0}, vcc
    s_mul_i32 s{sT}, s{sKH}, {16*2560}
    v_and_b32 v{t0}, 3, v{L}
    v_lshl_add_u32 v{t0}, v{t0}, 3, s{sT}
    v_bfe_u32 v{t1}, v{L}, 4, 1
    v_lshl_add_u32 v{t0}, v{t1}, 5, v{t0}
    v_bfe_u32 v{t1}, v{L}, 2, 2
    v_lshl_add_u32 v{rc}, v{t2}, 2, v{t1}
    v_lshl_add_u32 v{wm[0]}, v{rc}, 7, v{t0}
    v_bfe_u32 v{rc}, v{L}, 3, 1
    v_lshl_add_u32 v{wm[0]}, v{rc}, 6, v{wm[0]}
    v_xor_b32 v{wm[1]}, 64, v{wm[0]}
    v_mul_u32_u24 v{rc}, 20, v{rc}
    v_and_b32 v{t1}, 1, v{t1}
    v_add3_u32 v{rc}, v{rc}, v{t1}, 16
    v_lshl_add_u32 v{rc}, v{t2}, 1, v{rc}
    v_lshl_add_u32 v{wx[0]}, v{rc}, 7, v{t0}
    v_lshl_add_u32 v{wx[0]}, v{t2}, 6, v{wx[0]}
    v_xor_b32 v{wx[1]}, 64, v{wx[0]}
    """)

def g2(a):
    ra = RA(2, 224)
    t0, t1, t2, t3, rc = [ra.a() for _ in range(5)]
    v16, ka, kx, wm, wx, la, vfl, vz = [G2R[k] for k in ("v16", "ka", "kx", "wm", "wx", "la", "vfl", "vz")]
    PQR = [[ra.a(4, 4) for _ in range(5)] for _ in range(4)]
    KF = [ra.a(4, 4) for _ in range(2)]
    KX = ra.a(6, 2)
    OP = [ra.a(4, 4) for _ in range(2)]
    OX = ra.a(4, 4)
    WF = [[ra.a(4, 4) for _ in range(2)] for _ in range(2)]
    WX = [ra.a(4, 4) for _ in range(2)]
    CT = [ra.a(16, 4) for _ in range(2)]
    ACC = [ra.a(16, 4) for _ in range(2)]
    LD = CT[0]
    assert ACC[0] == CT[1] + 16
    sKH, sRW, sT, sSO, sM, sU, sEPS = 60, 61, 62, 63, 64, 65, 66
    M32 = "v_mfma_f32_32x32x16_bf16"
    NPRE = int(os.environ.get("NPRE", "1"))
    a.c("G2")
    stamp(a, 5)
    a.e(f"s_mov_b32 exec_lo, 0\n buffer_load_dword v{t0}, v{vfl}, {srd(SRD_FL)}, 0 offen sc1\n s_mov_b32 exec_lo, -1")
    a.e(f"""
    s_lshr_b32 s{sKH}, s{S_WAVE}, 2
    s_and_b32 s{sRW}, s{S_WAVE}, 3
    s_mov_b32 s{sEPS}, {f32(1e-6)}
    s_mul_i32 s{sT}, s{S_WAVE}, {GB}
    s_add_u32 s{sT}, s{sT}, {WS_KV}
    """)
    mk_srd(a, SRD_C, P_WS, GB, off_sreg=sT)
    mk_srd(a, SRD_B, P_WS, T_BYTES, off=WS_PQ); mk_srd(a, SRD_D, P_OUT, 2048 * 2560)
    a.e(f"""
    s_lshl_b32 s{sT}, s{S_RT}, 2
    s_add_u32 s{sT}, s{sT}, s{sRW}
    s_lshl_b32 s{sT}, s{sT}, 3
    s_lshl_b32 s{sU}, s{sKH}, 2
    s_add_u32 s{sT}, s{sT}, s{sU}
    s_mul_i32 s{sU}, s{sT}, 5120
    v_mov_b32 v{KX+2}, 0
    v_mov_b32 v{KX+3}, 0
    s_mov_b64 exec, 0xfffff
    ds_write_b64 v{vz}, {v(KX+2,2)} offset:840
    s_mov_b64 exec, -1
    s_movk_i32 s67, 4096
    s_movk_i32 s68, 8192
    s_mov_b32 s69, {f32(16.0)}
    s_mov_b32 s70, 0x88888888
    s_mov_b32 s71, 0x88888888
    s_mov_b32 s72, 0x88888888
    s_mov_b32 s73, 0x8888
    s_mov_b32 s74, {SPIN_MAX}
    s_mov_b32 s75, 0
    """)
    def pqload(p):
        a.e(f"s_add_u32 s{sM}, s{sU}, {p*5120}")
        for j in range(4):
            a.e(f"buffer_load_dwordx4 {v(PQR[p][j],4)}, v{v16}, {srd(SRD_B)}, s{sM} offen offset:{1024*j} sc1")
        a.e(f"s_add_u32 s{sM}, s{sM}, 4096\n buffer_load_dwordx4 {v(PQR[p][4],4)}, v{v16}, {srd(SRD_B)}, s{sM} offen sc1")
    def kvload():
        for n in range(9):
            a.e(f"buffer_load_dwordx4 {v(LD+4*n,4)}, v{v16}, {srd(SRD_C)}, {('0', 's67', 's68')[n>>2]} offen offset:{1024*(n&3)} sc1")
    lp, lp2, lw, lgo, lf, lv, ld = [a.newlab(x) for x in ("gp", "gp2", "gw", "ggo", "kvf", "kvv", "kvd")]
    def cond_pq(p):
        sk = a.newlab("cq")
        a.e(f"s_cmp_gt_u32 s75, {p}\n s_cbranch_scc1 {sk}")
        pqload(p)
        a.lab(sk)
    a.e(f"s_branch {lw}")
    a.lab(lp)
    a.e(f"s_sleep {os.environ.get('GSL', '2')}\n s_mov_b32 exec_lo, 0\n buffer_load_dword v{t0}, v{vfl}, {srd(SRD_FL)}, 0 offen sc1\n s_mov_b32 exec_lo, -1")
    a.lab(lw)
    a.e(f"""
    s_waitcnt vmcnt(0)
    v_cmp_ne_u32 vcc, 1, v{t0}
    s_sub_u32 s74, s74, 1
    s_cbranch_scc1 {ld}
    s_cmp_lg_u32 vcc_hi, 0
    s_cbranch_scc1 {lp}
    """)
    for p in range(NPRE): pqload(p)
    a.e(f"s_mov_b32 s75, {NPRE}")
    if "pqw" in EX: a.e("s_waitcnt vmcnt(0)")
    stamp(a, 10)
    a.lab(lp2)
    a.e(f"""
    s_mov_b32 exec_hi, 0
    buffer_load_dword v{t0}, v{vfl}, {srd(SRD_FL)}, 0 offen sc1
    s_mov_b32 exec_hi, -1
    s_waitcnt vmcnt(0)
    v_cmp_ne_u32 vcc, 1, v{t0}
    s_sub_u32 s74, s74, 1
    s_cbranch_scc1 {ld}
    s_cmp_eq_u32 vcc_lo, 0
    s_cbranch_scc1 {lgo}
    s_sleep {os.environ.get('GSL2', '2')}
    s_branch {lp2}
    """)
    a.lab(lgo)
    stamp(a, 6)
    a.lab(lf)
    kvload()
    a.e("s_waitcnt vmcnt(0)")
    a.lab(lv)
    a.e(f"""
    v_min3_f32 v{t0}, v{LD}, v{LD+4}, v{LD+8}
    v_min3_f32 v{t0}, v{t0}, v{LD+12}, v{LD+16}
    v_min3_f32 v{t0}, v{t0}, v{LD+20}, v{LD+24}
    v_min_f32 v{t0}, v{t0}, v{LD+28}
    v_cmp_neq_f32 s[4:5], s69, v{LD+32}
    v_cmp_neq_f32 vcc, s69, v{t0}
    s_sub_u32 s74, s74, 1
    s_cbranch_scc1 {ld}
    s_and_b64 s[4:5], s[4:5], s[72:73]
    s_and_b64 vcc, vcc, s[70:71]
    s_or_b64 vcc, vcc, s[4:5]
    s_cbranch_scc1 {lf}
    """)
    a.lab(ld)
    stamp(a, 7)
    for n in range(9):
        r = LD + 4 * n
        a.e(f"v_cvt_pk_bf16_f32 v{r}, v{r}, v{r+1}\n v_cvt_pk_bf16_f32 v{r+1}, v{r+2}, v{r+3}")
    a.e("s_mov_b32 exec_lo, 0x77777777\n s_mov_b32 exec_hi, 0x77777777")
    for n in range(9):
        if n == 8: a.e("s_mov_b32 exec_hi, 0x7777")
        a.e(f"ds_write_b64 v{la[n]}, {v(LD+4*n,2)} offset:{384*n}")
    a.e("s_mov_b64 exec, -1")
    a.e("s_waitcnt lgkmcnt(0)\n s_barrier")
    stamp(a, 8)
    if STAMPS: a.e("s_waitcnt lgkmcnt(0)")
    def kvreads(h):
        b = h & 1
        return [f"ds_read_b64 {v(KF[b],2)}, v{ka} offset:{880*h}",
                f"ds_read_b64 {v(KF[b]+2,2)}, v{ka} offset:{880*h+8}",
                f"ds_read_b64 {v(KX+4*b,2)}, v{kx[(h>>1)&1]} offset:{880*h}"]
    def woreads(h):
        return [f"ds_read_b64_tr_b16 {v(WF[h&1][nt]+2*i,2)}, v{wm[nt]} offset:{2560*h+1024*i}" for nt in range(2) for i in range(2)]
    def wxreads(p):
        return [f"ds_read_b64_tr_b16 {v(WX[nt]+2*i,2)}, v{wx[nt]} offset:{2560*(4*p+2*i)}" for nt in range(2) for i in range(2)]
    def omf(h):
        b = h & 1; c = v(CT[b], 16)
        return [f"{M32} {c}, {v(KF[b],4)}, {v(PQR[h>>2][h&3],4)}, 0",
                f"{M32} {c}, {v(KX+2*b,4)}, {v(PQR[h>>2][4],4)}, {c}"]
    def norm(h):
        c = CT[h & 1]; d = OP[h & 1]
        o = [f"v_add_f32 v{rc}, s{sEPS}, v{c+10}", f"v_rcp_f32 v{rc}, v{rc}", "s_nop 0"]
        o += [f"v_mul_f32 v{c+i}, v{c+i}, v{rc}" for i in range(10)]
        o += [f"v_cvt_pk_bf16_f32 v{d+i}, v{c+2*i}, v{c+2*i+1}" for i in range(4)]
        o += [f"v_cvt_pk_bf16_f32 v{OX+(h&3)}, v{c+8}, v{c+9}"]
        return o
    first = [True]
    def mainmf(W, src):
        o = [f"{M32} {v(ACC[nt],16)}, {v(W[nt],4)}, {v(src,4)}, {'0' if first[0] else v(ACC[nt],16)}" for nt in range(2)]
        first[0] = False
        return o
    a.e("\n".join(kvreads(0) + kvreads(1)))
    cond_pq(1)
    a.e("s_waitcnt vmcnt(5) lgkmcnt(3)")
    a.e("\n".join(omf(0)))
    for k in range(17):
        a.c(f"stage {k}")
        if k in (2, 6): cond_pq(2 + k // 4)
        if k in (3, 7, 11): a.e(f"s_waitcnt vmcnt({5 if k < 11 else 0})")
        cnt = 1 <= k <= 14
        pwx = 4 if (k - 1) % 4 == 2 else 0
        a.e(f"s_waitcnt lgkmcnt({4 + pwx})" if cnt else "s_waitcnt lgkmcnt(0)")
        M = (omf(k + 1) if k + 1 < 16 else [])
        if k >= 15: a.e("s_nop 0")
        if k >= 1: M += mainmf(WF[(k - 1) & 1], OP[(k - 1) & 1])
        if k >= 4 and k % 4 == 0: M += mainmf(WX, OX)
        D = (kvreads(k + 2) if k + 2 < 16 else []) + (woreads(k) if k < 16 else []) + (wxreads(k >> 2) if k % 4 == 2 else [])
        F = D + (norm(k) if k < 16 else [])
        if k == 0: F = D + ["s_nop 7"] + norm(0)
        if 0 < k < 16:
            V = [x for x in norm(k) if x != "s_nop 0"]
            F = [V[0], D[0], V[1], D[1]] + interleave2(D[2:], V[2:], 2 if len(D) < 10 else 1) if "g2bunch" not in EX else F
        if "g2nov" in EX: F = D
        if "g2nod" in EX: F = [x for x in F if not x.startswith("ds_")]
        if "g2nom" in EX: M = ["s_nop 0"]
        out = []; n = len(M); fi = 0
        for i, m in enumerate(M):
            if cnt and i == 2:
                out.append(f"s_waitcnt lgkmcnt({pwx + sum(x.startswith('ds_') for x in out)})")
            out.append(m)
            tgt = (len(F) * (i + 1) + n - 1) // n
            out += F[fi:tgt]; fi = tgt
        a.e("\n".join(out))
    a.lab("L_G2E")
    lk1, lj = a.newlab("g2_k1"), a.newlab("g2_j")
    stamp(a, 9)
    a.e(f"""
    s_lshl_b32 s{sT}, s{S_WAVE}, 12
    s_add_u32 s{sT}, s{sT}, {RED}
    v_add_u32 v{t0}, s{sT}, v{v16}
    s_xor_b32 s{sT}, s{S_WAVE}, 4
    s_lshl_b32 s{sT}, s{sT}, 12
    s_add_u32 s{sT}, s{sT}, {RED}
    v_add_u32 v{t1}, s{sT}, v{v16}
    v_and_b32 v{t2}, 15, v{L}
    v_mul_u32_u24 v{t2}, 2560, v{t2}
    v_bfe_u32 v{t3}, v{L}, 4, 1
    v_lshl_add_u32 v{t2}, v{t3}, 5, v{t2}
    v_lshrrev_b32 v{t3}, 5, v{L}
    v_lshl_add_u32 v{t2}, v{t3}, 4, v{t2}
    s_cmp_eq_u32 s{sKH}, 0
    s_cbranch_scc0 {lk1}
    """)
    for t in range(4):
        a.e(f"ds_write_b128 v{t0}, {v(ACC[1]+4*t,4)} offset:{1024*t}")
    a.e(f"s_branch {lj}")
    a.lab(lk1)
    for t in range(4):
        a.e(f"ds_write_b128 v{t0}, {v(ACC[0]+4*t,4)} offset:{1024*t}")
    a.e("s_nop 1")
    for i in range(16):
        a.e(f"v_mov_b32 v{ACC[0]+i}, v{ACC[1]+i}")
    a.lab(lj)
    a.e(f"""
    s_lshl_b32 s{sT}, s{S_RT}, 2
    s_add_u32 s{sT}, s{sT}, s{sRW}
    s_mul_i32 s{sSO}, s{sT}, {32*2560}
    s_lshl_b32 s{sT}, s{S_CB}, 7
    s_add_u32 s{sSO}, s{sSO}, s{sT}
    s_lshl_b32 s{sT}, s{sKH}, 6
    s_add_u32 s{sSO}, s{sSO}, s{sT}
    s_add_u32 s{sSO}, s{sSO}, 1280
    s_add_u32 s{sT}, s{sSO}, {16*2560}
    s_waitcnt lgkmcnt(0)
    s_barrier
    """)
    R = CT[0]; D = CT[1]
    for t in range(4):
        a.e(f"ds_read_b128 {v(R+4*t,4)}, v{t1} offset:{1024*t}")
    for t in range(4):
        a.e(f"s_waitcnt lgkmcnt({3-t})")
        c = ACC[0] + 4 * t
        for i in range(4):
            a.e(f"v_add_f32 v{c+i}, v{c+i}, v{R+4*t+i}")
        a.e(f"v_cvt_pk_bf16_f32 v{D+2*t}, v{c}, v{c+1}\n v_cvt_pk_bf16_f32 v{D+2*t+1}, v{c+2}, v{c+3}")
    a.e("s_nop 1")
    for q in (0, 4):
        a.e(f"v_permlane32_swap_b32 v{D+q}, v{D+q+2}\n v_permlane32_swap_b32 v{D+q+1}, v{D+q+3}")
    a.e("s_nop 1")
    for i in range(4):
        a.e(f"v_permlane16_swap_b32 v{D+i}, v{D+4+i}")
    a.e(f"buffer_store_dwordx4 {v(D,4)}, v{t2}, {srd(SRD_D)}, s{sSO} offen {OSTB}")
    a.e(f"buffer_store_dwordx4 {v(D+4,4)}, v{t2}, {srd(SRD_D)}, s{sT} offen {OSTB}")
    return ra.hi

def build(path):
    hdr = open("cdna_kernels/%s.s.ref" % NAME).read().split("; Override")[0]
    a = Asm()
    a.raw('.amdgcn_target "amdgcn-amd-amdhsa--gfx950"\n.text')
    a.raw(f".globl {KN}\n.p2align 8\n.type {KN},@function"); a.lab(KN)
    a.e(f"s_cmp_ge_u32 s2, 256\n s_cbranch_scc1 L_END")
    stamp_init(a); stamp(a, 0)
    a.e(f"""
    s_load_dwordx16 s[8:23], s[0:1], 0
    s_load_dwordx8 s[24:31], s[0:1], 64
    v_lshrrev_b32 v2, 6, v0
    v_and_b32 v{L}, 63, v0
    v_readfirstlane_b32 s{S_WAVE}, v2
    s_and_b32 s{S_XI}, s2, 7
    s_lshr_b32 s{S_J}, s2, 3
    s_cmp_ge_u32 s{S_J}, 24
    s_cbranch_scc1 L_A
    s_lshr_b32 s6, s{S_XI}, 1
    s_lshl_b32 s6, s6, 2
    s_and_b32 s7, s{S_J}, 3
    s_add_u32 s{S_RT}, s6, s7
    s_and_b32 s4, s{S_XI}, 1
    s_lshr_b32 s6, s{S_J}, 2
    s_mul_i32 s{S_CB}, s4, 5
    s_add_u32 s{S_CB}, s{S_CB}, s6
    s_mov_b32 s{S_P2}, 0
    s_cmp_ge_u32 s{S_J}, 16
    s_cbranch_scc1 L_Q
    s_mov_b32 s{S_MODE}, 0
    s_lshl_b32 s4, s4, 2
    s_add_u32 s{S_G}, s4, s6
    s_cmp_lt_u32 s{S_WAVE}, 4
    s_cbranch_scc1 L_G1KV
    s_branch L_LD
    """)
    a.lab("L_Q")
    a.e(f"""
    s_mov_b32 s{S_MODE}, 1
    s_lshl_b32 s4, s4, 1
    s_add_u32 s{S_G}, s4, s6
    s_sub_u32 s{S_G}, s{S_G}, 4
    s_cmp_lt_u32 s{S_J}, 20
    s_cbranch_scc1 L_Q2
    s_mov_b32 s{S_P2}, 4
    s_getpc_b64 s[60:61]
    v_lshlrev_b32 v2, 7, v0
    v_min_u32 v2, L_END-{KN}-512, v2
    global_load_dword v252, v2, s[60:61]
    s_lshl_b32 s{S_CB}, s{S_XI}, 4
    s_lshl_b32 s7, s7, 2
    s_add_u32 s{S_CB}, s{S_CB}, s7
    s_add_u32 s{S_CB}, s{S_CB}, 512
    """)
    a.lab("L_Q2")
    a.e(f"s_cmp_lt_u32 s{S_WAVE}, 4\n s_cbranch_scc1 L_G1Q")
    a.lab("L_LD")
    g1_loader(a)
    a.lab("L_A")
    a.e(f"""
    s_sub_u32 s6, s{S_J}, 24
    s_lshl_b32 s6, s6, 3
    s_lshl_b32 s{S_CB}, s{S_XI}, 6
    s_add_u32 s{S_CB}, s{S_CB}, s6
    s_mov_b32 s{S_P2}, 8
    """)
    h6 = 0
    h3 = a1(a)
    a.lab("L_CONV")
    h5 = conv(a)
    a.lab("L_G2S")
    g2_setup(a)
    a.e("s_setpc_b64 s[64:65]")
    a.lab("L_G1KV")
    h1 = g1_compute(a, 0)
    a.lab("L_G1Q")
    h2 = g1_compute(a, 1)
    a.lab("L_G2")
    h4 = g2(a)
    a.lab("L_FIN")
    stamp_flush(a, 0)
    a.lab("L_END")
    a.e("s_endpgm")
    print("vgprs", h1, h2, h3, h4, h5, h6, file=sys.stderr)
    desc = f""".section .rodata,"a"
.p2align 6
.amdhsa_kernel {KN}
  .amdhsa_next_free_vgpr 256
  .amdhsa_next_free_sgpr 102
  .amdhsa_accum_offset 256
  .amdhsa_group_segment_fixed_size 0
  .amdhsa_kernarg_size 96
  .amdhsa_user_sgpr_count 2
  .amdhsa_user_sgpr_kernarg_segment_ptr 1
  .amdhsa_system_sgpr_workgroup_id_x 1
.end_amdhsa_kernel
"""
    open(path, "w").write(hdr + f"; @launch grid=(256,1,1) block=(512,1,1) lds={LDS_BYTES}\n" + a.text() + desc)
if __name__ == "__main__":
    build(sys.argv[1])
```

```python
import sys
from asmlib import *
NAME = "concat_heads__ssm_conv_h3__linear_attn_block__prompt"
KN = NAME + "_kernel"
EX = set(os.environ.get("EX", "").split(","))
ROTR = int(os.environ.get("ROTR", "0"), 16); ROTC = int(os.environ.get("ROTC", "0"), 16)
OST = os.environ.get("OSTA", "")
OSTB = os.environ.get("OSTB", "nt")

T_BYTES = 640 * 4096
WS_UT, WS_PQ = 0, T_BYTES
WS_KV = 2 * T_BYTES
GB = 8960
WS_FL = WS_KV + 8 * GB + 2048
assert WS_FL % 128 == 0
WS_END = WS_FL + 1024 * 128
S_WG, S_WAVE = 2, 3
P_Q, P_K, P_V, P_SH, P_H, P_D, P_X, P_W, P_WO, P_OUT, P_DBG, P_WS = 8, 10, 12, 14, 16, 18, 20, 22, 24, 26, 28, 30
SRD_A, SRD_B, SRD_C, SRD_D, SRD_FL = 32, 36, 40, 44, 48
S_RT, S_G, S_GC, S_CB, S_P2, S_ASLOT, S_XI, S_J = 52, 53, 54, 55, 56, 57, 58, 59
L = 1
NB = 2048 * 1280

XST, WBASE, WST, NST = 16384, 49152, 20480, 3
HI = WBASE + NST * WST
W2B = 2688
QBASE, QST = HI, 4 * W2B
IMG, IMGP = QBASE + NST * QST, 9216
HB, HP, H_O = 0, 8320, 4160
UB, UP = 8 * HP, 4672
A_KB, A_VB = UB + 5120, UB + 5120 + 40960
KVI, RED = 81920, HI
TB, TP = UB + 8 * UP, 2112
LDS_BYTES = max(A_VB + 40960, IMG + 2 * IMGP)
assert UB + 8 * UP <= HI and RED + 32768 <= LDS_BYTES <= 163840

def mk_srd(a, srd, ptr, nbytes, off=0, off_sreg=None):
    if off_sreg is not None:
        a.e(f"s_add_u32 s{srd}, s{ptr}, s{off_sreg}\n s_addc_u32 s{srd+1}, s{ptr+1}, 0")
    elif off:
        a.e(f"s_add_u32 s{srd}, s{ptr}, {off}\n s_addc_u32 s{srd+1}, s{ptr+1}, 0")
    else:
        a.e(f"s_mov_b32 s{srd}, s{ptr}\n s_mov_b32 s{srd+1}, s{ptr+1}")
    a.e(f"s_mov_b32 s{srd+2}, {nbytes}\n s_mov_b32 s{srd+3}, 0x20000")
def srd(x): return f"s[{x}:{x+3}]"
def mk_fl(a): mk_srd(a, SRD_FL, P_WS, 1024 * 128, off=WS_FL)

SPIN_MAX = 400000 if "noat" not in EX else 2
def poll(a, srdn, vo, t, scnt=74, slp=1):
    lp, dn = a.newlab("poll"), a.newlab("polld")
    a.e(f"s_mov_b32 s{scnt}, {SPIN_MAX}")
    a.lab(lp)
    a.e(f"""
    buffer_load_dword v{t}, v{vo}, {srd(srdn)}, 0 offen sc1
    s_waitcnt vmcnt(0)
    v_cmp_ne_u32 vcc, 1, v{t}
    s_sub_u32 s{scnt}, s{scnt}, 1
    s_cbranch_scc1 {dn}
    s_cmp_eq_u64 vcc, 0
    s_cbranch_scc1 {dn}
    s_sleep {slp}
    s_branch {lp}
    """)
    a.lab(dn)
def poll_z(a, vz, vt):
    mk_srd(a, SRD_D, P_DBG, 256)
    a.e(f"v_and_b32 v{vz}, 7, v{L}\n v_lshlrev_b32 v{vz}, 2, v{vz}")
    poll(a, SRD_D, vz, vt)
def set_flag(a, sslot, v0_, v1_, wave=0):
    sk = a.newlab("nofl")
    if wave is not None: a.e(f"s_cmp_lg_u32 s{S_WAVE}, {wave}\n s_cbranch_scc1 {sk}")
    a.e(f"""
    s_lshl_b32 s74, s{sslot}, 7
    v_mov_b32 v{v0_}, 0
    v_mov_b32 v{v1_}, 1
    s_mov_b64 exec, 1
    buffer_store_dword v{v1_}, v{v0_}, {srd(SRD_FL)}, s74 offen sc1
    s_mov_b64 exec, -1
    """)
    a.lab(sk)

def h_load(a, H, vl16, srdn, soff):
    for j in range(4):
        a.e(f"buffer_load_dwordx4 {v(H+4*j,4)}, v{vl16}, {srd(srdn)}, s{soff} offen offset:{1024*j}")
def h_stage(a, H, G, sslot, vl16, va, st):
    a.e(f"s_mul_i32 s{st}, s{sslot}, {HP}\n v_add_u32 v{va}, s{st}, v{vl16}")
    a.e(f"v_readfirstlane_b32 s{st}, v{H}")
    for j in range(4):
        a.e(f"ds_write_b128 v{va}, {v(H+4*j,4)} offset:{HB+32+1024*j}")
    for j in range(4):
        a.e(f"v_mov_b32_dpp v{G+4*j+3}, v{H+4*((j+1)&3)} wave_rol:1 row_mask:0xf bank_mask:0xf")
    for j in range(4):
        a.e(f"v_mov_b32_dpp v{G+4*j+3}, v{H+4*j} wave_shl:1 row_mask:0xf bank_mask:0xf")
    Z = G + 16
    for i in range(4): a.e(f"v_mov_b32 v{Z+i}, 0")
    a.e(f"s_lshl_b32 s{st}, s{st}, 16\n s_mov_b64 exec, 3\n ds_write_b128 v{va}, {v(Z,4)} offset:{HB}\n s_mov_b64 exec, -1")
    for j in range(4):
        h, g_ = H + 4 * j, G + 4 * j
        for i in range(3): a.e(f"v_alignbit_b32 v{g_+i}, v{h+i+1}, v{h+i}, 16")
        a.e(f"v_alignbit_b32 v{g_+3}, v{g_+3}, v{h+3}, 16")
        a.e(f"ds_write_b128 v{va}, {v(g_,4)} offset:{HB+H_O+32+1024*j}")
    a.e(f"v_writelane_b32 v{Z+3}, s{st}, 1\n s_mov_b64 exec, 3\n ds_write_b128 v{va}, {v(Z,4)} offset:{HB+H_O}\n s_mov_b64 exec, -1")
def conv_sload(a):
    a.e(f"""
    s_add_u32 s6, s{S_CB}, s{S_WAVE}
    s_min_u32 s6, s6, 639
    s_lshl_b32 s6, s6, 1
    s_and_b32 s6, s6, 0xfffffffc
    s_load_dword s5, s[{P_D}:{P_D+1}], s6
    """)

def b_loader(a):
    ra = RA(2)
    t0, t1, t2, t3 = [ra.a() for _ in range(4)]
    vx = [ra.a() for _ in range(4)]
    vw = [ra.a() for _ in range(5)]
    vq = [ra.a() for _ in range(3)]
    l16, la = ra.a(), ra.a()
    LD = ra.a(12, 4); Z = ra.a(2, 2)
    sLW, sSX, sSW, sM0X, sM0W, sM0Q, sSQ, sT, sK = 60, 61, 62, 63, 64, 65, 66, 67, 68
    a.c("B loader wave")
    a.e(f"""
    s_setprio 3
    v_lshrrev_b32 v{t0}, 3, v{L}
    v_lshrrev_b32 v{t1}, 4, v{L}
    v_and_b32 v{t2}, 7, v{L}
    v_mul_u32_u24 v{t0}, 1280, v{t0}
    v_xor_b32 v{t1}, v{t1}, v{t2}
    s_sub_u32 s{sLW}, s{S_WAVE}, 4
    s_lshl_b32 s{sT}, s{S_RT}, 2
    s_add_u32 s{sT}, s{sT}, s{sLW}
    s_mul_i32 s{sSX}, s{sT}, {32*1280}
    s_lshl_b32 s{sM0X}, s{sLW}, 12
    v_lshl_add_u32 v{vx[0]}, v{t1}, 4, v{t0}
    s_and_b32 s{sT}, s{S_J}, 3
    s_lshl_b32 s{sT}, s{sT}, 2
    s_lshr_b32 s{sK}, {ROTR:#x}, s{sT}
    s_and_b32 s{sK}, s{sK}, 15
    v_xor_b32 v{vx[1]}, 64, v{vx[0]}
    s_and_b32 s{sT}, s{S_J}, 28
    s_lshr_b32 s{sT}, {ROTC:#x}, s{sT}
    s_and_b32 s{sT}, s{sT}, 15
    s_add_u32 s{sK}, s{sK}, s{sT}
    v_add_u32 v{vx[2]}, {2*(8*1280-1024)}, v{vx[0]}
    s_cmp_ge_u32 s{sK}, 10
    s_cselect_b32 s{sT}, 10, 0
    s_sub_u32 s{sK}, s{sK}, s{sT}
    v_add_u32 v{vx[3]}, {3*(8*1280-1024)}, v{vx[1]}
    s_lshl_b32 s{sT}, s{sK}, 7
    s_add_u32 s{sSX}, s{sSX}, s{sT}
    v_add_u32 v{vx[1]}, {1*(8*1280-1024)}, v{vx[1]}
    s_movk_i32 s4, 1200
    s_movk_i32 s5, -80
    s_movk_i32 s69, 3840
    """)
    for x in range(320): assert (x * 3277) >> 16 == x // 20
    for x in range(20): assert (x * 52) >> 8 == x // 5
    def woff(j):
        sub = 1024 * j if j < 4 else 0
        o = []; src = L
        if j: o.append(f"v_add_u32 v{t0}, {64*j}, v{L}"); src = t0
        o += [f"v_mul_u32_u24 v{t1}, 3277, v{src}", f"v_lshrrev_b32 v{t1}, 16, v{t1}",
              f"v_mul_u32_u24 v{t2}, 20, v{t1}", f"v_sub_u32 v{t0}, v{src}, v{t2}"]
        if j == 2: o += [f"v_lshrrev_b32 v{t2}, 2, v{t1}", f"v_and_b32 v{t2}, 2, v{t2}", f"v_xor_b32 v{t0}, v{t0}, v{t2}"]
        if j > 2: o += [f"v_xor_b32 v{t0}, 2, v{t0}"]
        o += [f"v_mul_u32_u24 v{t2}, 52, v{t0}", f"v_lshlrev_b32 v{t0}, 4, v{t0}",
              f"v_mad_u32_u24 v{t0}, v{t1}, s69, v{t0}", f"v_bfe_u32 v{t3}, v{t2}, 8, 1",
              f"v_lshrrev_b32 v{t2}, 9, v{t2}", f"v_mad_u32_u24 v{t0}, v{t3}, s4, v{t0}"]
        if sub: o += [f"v_mad_i32_i24 v{t0}, v{t2}, s5, v{t0}", f"v_subrev_u32 v{vw[j]}, {sub}, v{t0}"]
        else: o += [f"v_mad_i32_i24 v{vw[j]}, v{t2}, s5, v{t0}"]
        a.e("\n".join(o))
    woff(0); woff(1)
    a.e("s_waitcnt lgkmcnt(0)")
    mk_srd(a, SRD_A, P_X, NB)
    def issue_x(st):
        a.e(f"s_add_u32 m0, s{sM0X}, {(st % NST) * XST}\n s_nop 0")
        for j in range(4):
            a.e(f"buffer_load_dwordx4 v{vx[j]}, {srd(SRD_A)}, s{sSX} offen offset:{1024*j} lds")
    def adv():
        a.e("\n".join([f"s_add_u32 s{sK}, s{sK}, 1", f"s_cmp_eq_u32 s{sK}, 10", f"s_cselect_b32 s{sK}, 0, s{sK}",
                f"s_cselect_b32 s{sT}, {-9*128}, s72", f"s_cselect_b32 s73, s70, s71",
                f"s_add_u32 s{sSX}, s{sSX}, s{sT}", f"s_add_u32 s{sSW}, s{sSW}, s73"]))
    for x in range(80): assert (x * 205) >> 11 == x // 10
    def qoff(j):
        a.e(f"""
        v_add_u32 v{t0}, {64*j}, v{L}
        v_cmp_le_u32 vcc, 88, v{t0}
        v_subrev_u32 v{t1}, 88, v{t0}
        v_min_u32 v{t0}, 79, v{t0}
        v_min_u32 v{t1}, 79, v{t1}
        v_cndmask_b32 v{t0}, v{t0}, v{t1}, vcc
        v_cndmask_b32 v{t2}, 0, 8, vcc
        v_mul_u32_u24 v{t1}, 205, v{t0}
        v_lshrrev_b32 v{t1}, 11, v{t1}
        v_add_u32 v{t2}, v{t2}, v{t1}
        v_mul_u32_u24 v{t1}, 10, v{t1}
        v_sub_u32 v{t0}, v{t0}, v{t1}
        v_lshlrev_b32 v{t0}, 4, v{t0}
        v_mad_u32_u24 v{t0}, v{t2}, s69, v{t0}
        v_subrev_u32 v{vq[j]}, {1024*j}, v{t0}
        """)
    def issue_w(st, first=False):
        a.e(f"s_add_u32 m0, s{sM0W}, {(st % NST) * WST}\n s_nop 0")
        for j in range(5):
            if first and j >= 2: woff(j)
            if j == 4: a.e(f"s_add_u32 m0, s{sM0W}, {(st % NST) * WST + 4096}\n s_nop 0")
            a.e(f"buffer_load_dwordx4 v{vw[j]}, {srd(SRD_B)}, s{sSW} offen offset:{1024*(j&3)} lds")
        a.e(f"s_add_u32 m0, s{sM0Q}, {(st % NST) * QST}\n s_sub_u32 s{sSQ}, s{sSW}, 1280")
        for j in range(3):
            if first: qoff(j)
            if j == 2: a.e("s_mov_b32 exec_hi, 0xff")
            a.e(f"buffer_load_dwordx4 v{vq[j]}, {srd(SRD_B)}, s{sSQ} offen offset:{1024*j} lds")
        a.e("s_mov_b32 exec_hi, -1")
        adv()
    def issue(st):
        issue_x(st); issue_w(st)
    issue_x(0)
    mk_srd(a, SRD_B, P_W, 640 * 3840)
    a.e(f"""
    s_mul_i32 s{sSW}, s{S_G}, 160
    s_add_u32 s{sSW}, s{sSW}, 1280
    s_lshl_b32 s{sT}, s{sK}, 2
    s_add_u32 s{sT}, s{sT}, s{sLW}
    s_mul_i32 s{sT}, s{sT}, {16*3840}
    s_add_u32 s{sSW}, s{sSW}, s{sT}
    s_mul_i32 s{sM0W}, s{sLW}, 5120
    s_add_u32 s{sM0W}, s{sM0W}, {WBASE}
    s_mov_b32 s70, {-9*64*3840}
    s_mov_b32 s71, {64*3840}
    s_movk_i32 s72, 128
    """)
    a.e(f"s_mul_i32 s{sM0Q}, s{sLW}, {W2B}\n s_add_u32 s{sM0Q}, s{sM0Q}, {QBASE}")
    issue_w(0, True)
    issue(1)
    stamp(a, 1)
    for nb in range(10):
        a.e(f"s_waitcnt vmcnt({12 if nb < 9 else 0})\n s_barrier")
        if nb == 5:
            mk_srd(a, SRD_D, P_DBG, 256)
            a.e(f"v_and_b32 v{l16}, 7, v{L}\n v_lshlrev_b32 v{l16}, 2, v{l16}")
            a.e(f"buffer_load_dword v{la}, v{l16}, {srd(SRD_D)}, 0 offen sc1")
        if nb < 8: issue(nb + 2)
        if nb == 4: mk_fl(a)
        if nb == 8:
            zok = a.newlab("zok")
            a.e(f"s_setprio 0\n v_cmp_ne_u32 vcc, 1, v{la}\n s_nop 1\n s_cmp_eq_u64 vcc, 0\n s_cbranch_scc1 {zok}")
            poll_z(a, t1, t2)
            a.lab(zok)
    stamp(a, 2)
    a.e("s_barrier")
    a.e("s_call_b64 s[72:73], L_WO")
    stamp(a, 3)
    a.e("s_barrier\n s_barrier\n s_branch L_G2")

def phi4(regs, tmps, sLOG, sEPS):
    o = []
    if "nopk" not in EX:
        r, t = regs[0], tmps[0]
        o += [f"v_pk_mul_f32 {v(t+i,2)}, {v(r+i,2)}, s[66:67]" for i in (0, 2)]
        o += [f"v_exp_f32_e64 v{t+i}, v{t+i} clamp" for i in range(4)]
        o += [f"v_max_f32 v{r+i}, s{sEPS}, v{r+i}" for i in range(4)]
        o += [f"v_pk_add_f32 {v(r+i,2)}, {v(r+i,2)}, {v(t+i,2)}" for i in (0, 2)]
        return o
    for r, t in zip(regs, tmps): o.append(f"v_mul_f32 v{t}, s{sLOG}, v{r}")
    for r, t in zip(regs, tmps): o.append(f"v_exp_f32_e64 v{t}, v{t} clamp")
    for r, t in zip(regs, tmps): o.append(f"v_max_f32 v{r}, s{sEPS}, v{r}")
    for r, t in zip(regs, tmps): o.append(f"v_add_f32 v{r}, v{r}, v{t}")
    return o

def b_compute(a):
    if "steps" in EX:
        def stamp2(a, i): pass
    else:
        stamp2 = stamp
    ra = RA(2)
    lr, g, t0, t1, t2 = [ra.a() for _ in range(5)]
    xa = [ra.a(), ra.a()]
    wa = [ra.a() for _ in range(5)]
    ad = [ra.a() for _ in range(6)]
    wb = [ra.a(), ra.a()]; xb = [ra.a(), ra.a()]
    ka, kx = ra.a(), [ra.a(), ra.a()]
    at = [ra.a() for _ in range(4)]
    l16, la = ra.a(), ra.a()
    ix = ra.a(4, 4)
    XF = [[ra.a(4, 4) for _ in range(4)] for _ in range(2)]
    WF = [[ra.a(4, 4) for _ in range(5)] for _ in range(2)]
    QF = [ra.a(4, 4) for _ in range(5)]
    ACC = [[ra.a(4, 4) for _ in range(5)] for _ in range(4)]
    QA = [[ra.a(4, 4) for _ in range(5)] for _ in range(2)]
    sRH, sCH, sT, sLOG, sEPS, sSO = 60, 61, 62, 63, 64, 65
    MF = "v_mfma_f32_16x16x32_bf16"; M32 = "v_mfma_f32_32x32x16_bf16"
    a.c("B compute wave")
    a.e(f"""
    s_lshr_b32 s{sRH}, s{S_WAVE}, 1
    s_and_b32 s{sCH}, s{S_WAVE}, 1
    s_mov_b32 s{sLOG}, {f32(1.4426950408889634)}
    s_mov_b32 s66, s{sLOG}
    s_mov_b32 s67, s{sLOG}
    s_mov_b32 s{sEPS}, {f32(1e-6)}
    v_and_b32 v{lr}, 15, v{L}
    v_lshrrev_b32 v{g}, 4, v{L}
    s_lshl_b32 s{sT}, s{S_WAVE}, 12
    v_lshrrev_b32 v{t0}, 1, v{lr}
    v_xor_b32 v{t0}, v{t0}, v{g}
    v_lshlrev_b32 v{t0}, 4, v{t0}
    v_lshl_add_u32 v{t0}, v{lr}, 7, v{t0}
    v_add_u32 v{xa[0]}, s{sT}, v{t0}
    v_xor_b32 v{xa[1]}, 64, v{xa[0]}
    v_xor_b32 v{xb[0]}, 0x1000, v{xa[0]}
    v_xor_b32 v{xb[1]}, 0x1000, v{xa[1]}
    v_lshrrev_b32 v{t0}, 2, v{lr}
    v_lshl_add_u32 v{t0}, v{g}, 3, v{t0}
    v_mul_u32_u24 v{t0}, 320, v{t0}
    v_add_u32 v{t0}, {WBASE}, v{t0}
    v_and_b32 v{t1}, 1, v{g}
    v_lshlrev_b32 v{t1}, 5, v{t1}
    s_mul_i32 s{sT}, s{sCH}, 160
    v_and_b32 v{t2}, 3, v{lr}
    """)
    for t in range(5):
        w = wa[t]
        if t < 4:
            a.e(f"v_lshl_add_u32 v{w}, v{t2}, 3, s{sT}\n v_add_u32 v{w}, {40*t}, v{w}")
        else:
            a.e(f"v_mul_u32_u24 v{w}, 40, v{t2}\n v_add_u32 v{w}, s{sT}, v{w}\n v_add_u32 v{w}, 32, v{w}")
        a.e(f"v_xor_b32 v{w}, v{w}, v{t1}\n v_add_u32 v{w}, v{w}, v{t0}")
    a.e(f"""
    v_lshrrev_b32 v{t0}, 1, v{g}
    v_mul_u32_u24 v{t0}, {W2B}, v{t0}
    v_and_b32 v{t1}, 1, v{g}
    v_mul_u32_u24 v{t1}, 1408, v{t1}
    v_add3_u32 v{t0}, v{t0}, v{t1}, 32
    v_lshrrev_b32 v{t1}, 2, v{lr}
    v_mul_u32_u24 v{t1}, 160, v{t1}
    v_add_u32 v{t0}, v{t0}, v{t1}
    v_add_u32 v{t0}, {QBASE-32}, v{t0}
    v_lshl_add_u32 v{wb[0]}, v{t2}, 3, v{t0}
    v_mul_u32_u24 v{t1}, 40, v{t2}
    v_add3_u32 v{wb[1]}, v{t0}, v{t1}, 32
    """)
    a.e(f"v_mov_b32 v{t0}, s{sEPS}\n v_cmp_gt_u32 vcc, 8, v{lr}")
    a.e(f"""
    s_mul_i32 s{sT}, s{sRH}, {IMGP}
    s_mul_i32 s{sSO}, s{sCH}, {GB//2}
    s_add_u32 s{sT}, s{sT}, s{sSO}
    s_add_u32 s{sT}, s{sT}, {IMG}
    """)
    for rt in range(4):
        for i in range(4):
            a.e(f"v_cndmask_b32 v{ACC[rt][4]+i}, 0, v{t0}, vcc")
        for i in range(8): a.e(f"v_mov_b32 v{ACC[rt][0]+i}, s{sEPS}")
    for i in range(40): a.e(f"v_mov_b32 v{QA[0][0]+i}, s{sEPS}")
    z4 = XF[0][0]
    a.e(f"v_mov_b32 v{z4}, 1.0")
    for i in range(1, 8): a.e(f"v_mov_b32 v{z4+i}, 0")
    a.e(f"""
    v_min_u32 v{t0}, 143, v0
    v_lshlrev_b32 v{t0}, 6, v{t0}
    v_add_u32 v{t0}, {IMG+48}, v{t0}
    ds_write_b128 v{t0}, {v(z4,4)}
    ds_write_b128 v{t0}, {v(z4+4,4)} offset:{IMGP}
    """)
    for x in range(128): assert (x * 171) >> 9 == x // 3
    a.e(f"""
    v_cmp_eq_u32 vcc, 0, v{lr}
    v_add_u32 v{t0}, 8, v{lr}
    v_add_u32 v{t1}, 4, v{lr}
    v_cndmask_b32 v{t0}, v{t0}, 20, vcc
    v_cndmask_b32 v{t1}, v{t1}, 20, vcc
    """)
    for i, row in enumerate((lr, t0, t1)):
        for k in range(2):
            d = ad[2 * i + k]
            a.e(f"v_mad_u32_u24 v{d}, v{row}, 5, {'v%d' % g if k == 0 else '4'}")
            a.e(f"v_mul_u32_u24 v{t2}, 171, v{d}\n v_lshrrev_b32 v{t2}, 9, v{t2}\n v_add_u32 v{d}, v{d}, v{t2}\n v_lshl_add_u32 v{d}, v{d}, 4, s{sT}")
    a.e(f"""
    v_lshlrev_b32 v{at[0]}, 2, v0
    v_add_u32 v{at[1]}, 4096, v{at[0]}
    v_add_u32 v{at[2]}, 8192, v{at[0]}
    v_add_u32 v{at[3]}, {IMG}, v{at[0]}
    v_lshlrev_b32 v{l16}, 4, v{L}
    v_and_b32 v{t0}, 31, v{L}
    v_lshlrev_b32 v{t1}, 2, v{lr}
    s_mov_b32 s{sT}, 0x54325410
    v_lshrrev_b32 v{t1}, v{t1}, s{sT}
    v_and_b32 v{t1}, 15, v{t1}
    v_add_u32 v{t1}, 16, v{t1}
    v_cmp_lt_u32 vcc, 23, v{t0}
    s_mov_b32 s{sT}, {KVI}
    s_nop 0
    v_cndmask_b32 v{t1}, v{t1}, 21, vcc
    v_cmp_gt_u32 vcc, 16, v{t0}
    v_lshrrev_b32 v{t2}, 5, v{L}
    s_nop 0
    v_cndmask_b32 v{t1}, v{t1}, v{t0}, vcc
    v_mad_u32_u24 v{t1}, v{t1}, 40, s{sT}
    v_lshl_add_u32 v{ka}, v{t2}, 4, v{t1}
    v_add_u32 v{t1}, 32, v{t1}
    v_cmp_eq_u32 vcc, 0, v{t2}
    v_mov_b32 v{t0}, {KVI+840}
    s_nop 0
    v_cndmask_b32 v{kx[0]}, v{t0}, v{t1}, vcc
    v_cndmask_b32 v{kx[1]}, v{t1}, v{t0}, vcc
    s_mul_i32 s{sT}, s{S_WAVE}, 880
    s_add_u32 s{sT}, s{sT}, {KVI}
    v_and_b32 v{t0}, 3, v{L}
    v_lshl_add_u32 v{t0}, v{t0}, 3, s{sT}
    v_lshrrev_b32 v{t1}, 2, v{L}
    v_mad_u32_u24 v{la}, v{t1}, 24, v{t0}
    s_mul_i32 s{sT}, s{S_G}, {GB}
    s_add_u32 s{sT}, s{sT}, {WS_KV}
    s_waitcnt lgkmcnt(0)
    """)
    mk_srd(a, SRD_C, P_WS, GB, off_sreg=sT)
    a.e(f"s_mul_i32 s{sSO}, s{S_WAVE}, {GB//4}\n s_add_u32 s{sT}, s{sT}, s{sSO}")
    mk_srd(a, SRD_A, P_WS, GB // 4, off_sreg=sT)
    mk_srd(a, SRD_B, P_WS, T_BYTES, off=WS_PQ)
    mk_fl(a)
    def reads(st, ks):
        sl = st % NST
        xs = [f"ds_read_b128 {v(XF[ks][rt],4)}, v{xa[ks] if rt < 2 else xb[ks]} offset:{sl*XST + (rt&1)*2048}" for rt in range(4)]
        ws = [f"ds_read_b64_tr_b16 {v(WF[ks][t]+2*h,2)}, v{wa[t]} offset:{sl*WST + ks*10240 + h*1280}" for t in range(5) for h in range(2)]
        qs = [f"ds_read_b64_tr_b16 {v(QF[t]+2*h,2)}, v{wb[t>>2]} offset:{sl*QST + ks*2*W2B + h*640 + 40*(t&3)}" for t in range(5) for h in range(2)]
        return xs + ws[:6] + qs + ws[6:]
    def mfq(ks):
        return [f"{MF} {v(QA[rt][t],4)}, {v(QF[t],4)}, {v(XF[ks][rt],4)}, {v(QA[rt][t],4)}" for t in range(5) for rt in range(2)]
    def mfkv(ks, first=False):
        o = []
        for rt in range(4):
            for t in range(5):
                d = ACC[rt][t]
                o.append(f"{MF} {v(d,4)}, {v(XF[ks][rt],4)}, {v(WF[ks][t],4)}, {'0' if (first and t in (2, 3)) else v(d,4)}")
        return o
    def mfmas(ks, first=False): return mfq(ks) + mfkv(ks, first)
    def spread(M, F):
        out = []; n = len(M); fi = 0
        for i, m in enumerate(M):
            out.append(m)
            tgt = (len(F) * (i + 1) + n - 1) // n
            out += F[fi:tgt]; fi = tgt
        return out
    for st in range(10):
        a.c(f"step {st}")
        a.e("s_barrier")
        if (st == 0 or "steps" in EX) and "steps2" not in EX: stamp(a, 1 + st)
        if st == 0:
            a.e("\n".join(reads(0, 0)))
        else:
            a.e("\n".join(interleave2(mfmas(1), reads(st, 0), 1)))
        a.e("s_waitcnt lgkmcnt(0)")
        a.e("\n".join(interleave2(mfmas(0, first=(st == 0)), reads(st, 1), 1)))
        a.e("s_waitcnt lgkmcnt(0)")
    a.e("s_barrier")
    stamp2(a, 2)
    tm = [ix + i for i in range(4)]
    last = mfkv(1) + mfq(1)
    names = ["T0", "T1", "T2", "T3", "T4A", "T4B"]
    k0 = [XF[0][i] for i in range(4)] + [WF[0][0], WF[0][1]]
    k1 = [WF[0][2], WF[0][3], WF[0][4], XF[1][0], XF[1][1], XF[1][2]]
    P = {n: [k0[i], k1[i]] for i, n in enumerate(names)}
    V = [f"v_cmp_gt_u32 vcc, 8, v{lr}", f"v_mov_b32 v{t0}, 0x3f803f80"]
    for rt in range(4):
        k, h = rt >> 1, rt & 1
        for t, n in ((2, "T2"), (3, "T3"), (4, "T4B")):
            r = ACC[rt][t]; d = P[n][k] + 2 * h
            V += [f"v_cvt_pk_bf16_f32 v{d}, v{r}, v{r+1}", f"v_cvt_pk_bf16_f32 v{d+1}, v{r+2}, v{r+3}"]
        d = P["T4B"][k] + 2 * h
        V += [f"v_cndmask_b32 v{d}, v{d}, v{t0}, vcc", f"v_cndmask_b32 v{d+1}, v{d+1}, v{t0}, vcc"]
        for t, n in ((0, "T0"), (1, "T1"), (4, "T4A")):
            r = [ACC[rt][t] + i for i in range(4)]; d = P[n][k] + 2 * h
            V += phi4(r, tm, sLOG, sEPS)
            V += [f"v_cvt_pk_bf16_f32 v{d}, v{r[0]}, v{r[1]}", f"v_cvt_pk_bf16_f32 v{d+1}, v{r[2]}, v{r[3]}"]
    prods = [("T0", "T2"), ("T0", "T4B"), ("T4A", "T2"), ("T1", "T3"), ("T1", "T4B"), ("T4A", "T3"), ("T4A", "T4B")]
    R = [ACC[0][0] + 4 * i for i in range(7)]
    kvm = lambda k: [f"{MF} {v(R[i],4)}, {v(P[x][k],4)}, {v(P[y][k],4)}, {'0' if k == 0 else v(R[i],4)}" for i, (x, y) in enumerate(prods)]
    half = 2 + (len(V) - 2) // 2
    a.e("\n".join(last[:10] + interleave2(last[10:], V[:half + 4], 2)))
    a.e("\n".join(interleave2(kvm(0), V[half + 4:], 8)))
    a.e("s_nop 1")
    a.e("\n".join(kvm(1)))
    a.e("s_nop 3")
    HBY = GB // 4
    def wr(i, addr, off, lo, hi):
        a.e(f"s_mov_b32 exec_lo, {lo:#x}\n s_mov_b32 exec_hi, {hi:#x}")
        a.e(f"ds_write_b128 v{addr}, {v(R[i],4)} offset:{off}")
    a.e(f"ds_write_b128 v{ad[0]}, {v(R[0],4)}")
    a.e(f"ds_write_b128 v{ad[0]}, {v(R[3],4)} offset:{HBY}")
    wr(1, ad[2], 0, 0x0f010f01, 0x0f010f01)
    wr(4, ad[4], HBY, 0xf001f001, 0xf001f001)
    wr(2, ad[1], 0, 0x0000ffff, 0)
    wr(5, ad[1], HBY, 0xffff0000, 0)
    wr(6, ad[3], 0, 0x00000f01, 0)
    wr(6, ad[5], HBY, 0xf0010000, 0)
    a.e("s_mov_b64 exec, -1\n s_waitcnt lgkmcnt(0)\n s_barrier")
    stamp2(a, 3)
    fr = ACC[0][0]
    for n in range(9):
        a.e(f"ds_read2st64_b32 {v(fr+2*n,2)}, v{at[3]} offset0:{4*n} offset1:{IMGP//256+4*n}")
    for n in range(9):
        a.e(f"s_waitcnt lgkmcnt({8-n if not STAMPS else 0})")
        a.e(f"v_add_f32 v{fr+2*n}, v{fr+2*n}, v{fr+2*n+1}")
        a.e(f"buffer_atomic_add_f32 v{fr+2*n}, v{at[n>>2]}, {srd(SRD_C)}, 0 offen offset:{1024*(n&3)}")
    EXT = XF[0][0]
    KF = [EXT + 4 * h for h in range(4)]
    KX = EXT + 16
    OB = [EXT + 28 + 4 * t for t in range(5)]
    OX = EXT + 48; rc = EXT + 52; LD = EXT + 56
    CT = [ACC[0][0] + 16 + 16 * h for h in range(4)]
    a.e(f"""
    s_lshl_b32 s{sT}, s{S_RT}, 2
    s_add_u32 s{sT}, s{sT}, s{S_WAVE}
    s_lshl_b32 s{sT}, s{sT}, 3
    s_add_u32 s{sT}, s{sT}, s{S_G}
    s_mul_i32 s{sSO}, s{sT}, 5120
    s_add_u32 s{sRH}, s{sSO}, 4096
    s_add_u32 s{sT}, s{sT}, 64
    s_mul_i32 s{sCH}, s{S_WAVE}, 880
    s_add_u32 s{sCH}, s{sCH}, {KVI}
    v_lshl_add_u32 v{t0}, v{L}, 3, s{sCH}
    """)
    for i in (2, 3, 8, 9): a.e(f"v_mov_b32 v{KX+i}, 0")
    a.e(f"s_mov_b64 exec, 31\n ds_write_b64 v{t0}, {v(KX+2,2)} offset:840\n s_mov_b64 exec, -1")
    def phiq(t):
        o = []; ob = OB[t]
        for h in range(2):
            r = [QA[h][t] + i for i in range(4)]
            o += phi4(r, tm, sLOG, sEPS)
            o += [f"v_cvt_pk_bf16_f32 v{ob+2*h}, v{r[0]}, v{r[1]}", f"v_cvt_pk_bf16_f32 v{ob+2*h+1}, v{r[2]}, v{r[3]}"]
        o += ["s_nop 1", f"v_permlane16_swap_b32 v{ob}, v{ob+2}", f"v_permlane16_swap_b32 v{ob+1}, v{ob+3}"]
        return o
    def omf(h):
        c = v(CT[h], 16)
        return [f"{M32} {c}, {v(KX+6*(h>>1)+2*(h&1),4)}, {v(OB[4],4)}, 0", "s_nop 0",
                f"{M32} {c}, {v(KF[h],4)}, {v(OB[h],4)}, {c}"]
    def norm(h):
        c = CT[h]; d = OB[h]
        o = [f"v_add_f32 v{rc}, s{sEPS}, v{c+10}", f"v_rcp_f32 v{rc}, v{rc}", "s_nop 0"]
        o += [f"v_mul_f32 v{c+i}, v{c+i}, v{rc}" for i in range(10)]
        o += [f"v_cvt_pk_bf16_f32 v{d+i}, v{c+2*i}, v{c+2*i+1}" for i in range(4)]
        o += [f"buffer_store_dwordx4 {v(d,4)}, v{l16}, {srd(SRD_B)}, s{sSO} offen offset:{1024*h} sc1"]
        o += [f"v_cvt_pk_bf16_f32 v{OX+h}, v{c+8}, v{c+9}"]
        return o
    def kvload():
        for n in range(3):
            a.e(f"buffer_load_dwordx4 {v(LD+4*n,4)}, v{l16}, {srd(SRD_A)}, 0 offen offset:{1024*n} sc1")
    KP = int(os.environ.get("KP", "6"))
    for i in range(5):
        if i == KP: kvload()
        a.e("\n".join(phiq(i)))
    stamp2(a, 4)
    lf, lv, ld = a.newlab("kvf"), a.newlab("kvv"), a.newlab("kvd")
    a.e(f"s_mov_b32 s69, {f32(16.0)}\n s_mov_b32 s70, 0x88888888\n s_mov_b32 s71, 0x88888888\n s_mov_b32 s74, {SPIN_MAX}")
    if KP < 5: a.e(f"s_branch {lv}")
    if KP == 6: a.e("s_waitcnt vmcnt(0)")
    a.lab(lf)
    kvload()
    a.lab(lv)
    a.e(f"""
    s_waitcnt vmcnt(0)
    v_min_f32 v{t0}, v{LD}, v{LD+4}
    v_cmp_neq_f32 s[4:5], s69, v{LD+8}
    v_cmp_neq_f32 vcc, s69, v{t0}
    s_sub_u32 s74, s74, 1
    s_cbranch_scc1 {ld}
    s_and_b32 s4, s4, 0x888
    s_and_b64 vcc, vcc, s[70:71]
    s_or_b32 vcc_lo, vcc_lo, s4
    s_cmp_eq_u64 vcc, 0
    s_cbranch_scc1 {ld}
    s_sleep {os.environ.get("KSL", "2")}
    s_branch {lf}
    """)
    a.lab(ld)
    for n in range(3):
        r = LD + 4 * n
        a.e(f"v_cvt_pk_bf16_f32 v{r}, v{r}, v{r+1}\n v_cvt_pk_bf16_f32 v{r+1}, v{r+2}, v{r+3}")
    a.e("s_mov_b32 exec_lo, 0x77777777\n s_mov_b32 exec_hi, 0x77777777")
    for n in range(3):
        if n == 2: a.e("s_mov_b64 exec, 0x777")
        a.e(f"ds_write_b64 v{la}, {v(LD+4*n,2)} offset:{384*n}")
    a.e("s_mov_b64 exec, -1\n s_waitcnt lgkmcnt(0)\n s_barrier")
    stamp2(a, 5)
    if STAMPS: a.e("s_waitcnt lgkmcnt(0)")
    for h in range(4):
        a.e(f"ds_read_b64 {v(KX+6*(h>>1)+4*(h&1),2)}, v{kx[h>>1]} offset:{880*h}")
        a.e(f"ds_read_b64 {v(KF[h],2)}, v{ka} offset:{880*h}\n ds_read_b64 {v(KF[h]+2,2)}, v{ka} offset:{880*h+8}")
    for h in range(3):
        a.e(f"s_waitcnt lgkmcnt({9-3*h})")
        a.e("\n".join(omf(h)))
    a.e("s_waitcnt lgkmcnt(0)\n s_nop 3")
    N0 = norm(0)
    a.e("\n".join(N0[:6] + omf(3)[:1] + N0[6:12] + omf(3)[2:] + N0[12:] + norm(1) + norm(2) + norm(3)))
    a.e(f"buffer_store_dwordx4 {v(OX,4)}, v{l16}, {srd(SRD_B)}, s{sRH} offen sc1")
    stamp2(a, 6)
    a.e("s_waitcnt vmcnt(0)")
    set_flag(a, sT, t0, t1, wave=None)
    a.e("s_branch L_G2")
    return ra.hi

PF0 = int(os.environ.get("PF0", "1")); AH = int(os.environ.get("AH", "0"))
def pf_lanes(a, vW, vX, t0, t1, sU, sC):
    for x in range(64): assert (x * 52) >> 8 == x // 5
    a.e(f"""
    v_min_u32 v{t0}, 59, v{L}
    v_mul_u32_u24 v{t1}, 52, v{t0}
    v_lshrrev_b32 v{t1}, 8, v{t1}
    v_mul_u32_u24 v{vX}, 5, v{t1}
    v_sub_u32 v{t0}, v{t0}, v{vX}
    v_lshlrev_b32 v{t0}, 7, v{t0}
    s_movk_i32 s{sU}, 1280
    v_mad_u32_u24 v{vW}, v{t1}, s{sU}, v{t0}
    v_mul_u32_u24 v{vX}, 1280, v{L}
    s_and_b32 s{sC}, s{S_XI}, 1
    s_mul_i32 s{sC}, s{sC}, 640
    """)
def pf_one(a, sT, sA, sB, sU, sC, vW, vX, dst):
    for x in range(300): assert (x * 2731) >> 16 == x // 24
    lx, le = a.newlab("px"), a.newlab("pe")
    a.e(f"""
    s_mul_i32 s{sA}, s{sT}, 2731
    s_lshr_b32 s{sA}, s{sA}, 16
    s_mul_i32 s{sB}, s{sA}, 24
    s_sub_u32 s{sB}, s{sT}, s{sB}
    s_add_u32 s{sA}, s{sA}, {PF0}
    s_cmp_lt_u32 s{sB}, 8
    s_cbranch_scc1 {lx}
    s_sub_u32 s{sB}, s{sB}, 8
    s_lshl_b32 s{sB}, s{sB}, 2
    s_lshl_b32 s{sA}, s{sA}, 6
    s_add_u32 s{sA}, s{sA}, s{sB}
    s_mul_i32 s{sA}, s{sA}, 3840
    s_add_u32 s{sA}, s{sA}, s{sC}
    buffer_load_dword v{dst}, v{vW}, {srd(SRD_B)}, s{sA} offen
    s_branch {le}
    """)
    a.lab(lx)
    a.e(f"""
    s_lshr_b32 s{sU}, s{S_XI}, 1
    s_lshl_b32 s{sU}, s{sU}, 3
    s_add_u32 s{sB}, s{sB}, s{sU}
    s_mul_i32 s{sB}, s{sB}, {64*1280}
    s_lshl_b32 s{sA}, s{sA}, 7
    s_add_u32 s{sA}, s{sA}, s{sB}
    buffer_load_dword v{dst}, v{vX}, {srd(SRD_A)}, s{sA} offen
    """)
    a.lab(le)

def a1(a):
    ra = RA(2)
    t0, t1, t2 = [ra.a() for _ in range(3)]
    vo = [ra.a() for _ in range(5)]
    lr, g, ad, adh, so_u, otap = [ra.a() for _ in range(6)]
    taps = [ra.a(2) for _ in range(5)]
    KR = [ra.a(6, 2) for _ in range(5)]; VR = [ra.a(4, 2) for _ in range(5)]
    W = [ra.a(5) for _ in range(5)]; U = ra.a(8); O = [ra.a(4, 4) for _ in range(2)]; X = ra.a(4)
    vz = ra.a()
    sTI, sCH, sSO, sM0, sT, sSH, sU, sCG = 60, 61, 62, 63, 64, 65, 66, 67
    a.c("A1: 32 rows x 320 channels")
    a.e(f"""
    s_sub_u32 s{sT}, s{S_J}, 24
    s_lshl_b32 s{sT}, s{sT}, 3
    s_add_u32 s{sT}, s{sT}, s{S_XI}
    s_lshr_b32 s{sTI}, s{sT}, 1
    s_and_b32 s{sCH}, s{sT}, 1
    s_lshl_b32 s{S_ASLOT}, s{sCH}, 5
    s_add_u32 s{S_ASLOT}, s{S_ASLOT}, s{sTI}
    s_lshr_b32 s{sCG}, s{S_WAVE}, 1
    s_lshl_b32 s{sT}, s{sTI}, 3
    s_add_u32 s{sT}, s{sT}, s{S_WAVE}
    s_mul_i32 s{sSO}, s{sT}, {8*1280}
    s_mul_i32 s{sT}, s{sCH}, 640
    s_add_u32 s{sSO}, s{sSO}, s{sT}
    s_mul_i32 s{sM0}, s{S_WAVE}, 5120
    s_and_b32 s{sT}, s{S_WAVE}, 1
    s_lshl_b32 s{sT}, s{sT}, 2
    """)
    for x in range(320): assert (x * 1639) >> 16 == x // 40
    a.e(f"s_movk_i32 s{sU}, 1280")
    def koff(j):
        sub = 1024 * j if j < 4 else 0
        o = []; src = L
        if j: o.append(f"v_add_u32 v{t0}, {64*j}, v{L}"); src = t0
        o += [f"v_mul_u32_u24 v{t1}, 1639, v{src}", f"v_lshrrev_b32 v{t1}, 16, v{t1}",
              f"v_mul_u32_u24 v{t2}, 40, v{t1}", f"v_sub_u32 v{t0}, v{src}, v{t2}",
              f"v_and_or_b32 v{t2}, v{t1}, 2, s{sT}", f"v_xor_b32 v{t0}, v{t0}, v{t2}", f"v_lshlrev_b32 v{t0}, 4, v{t0}"]
        if sub: o += [f"v_mad_u32_u24 v{t0}, v{t1}, s{sU}, v{t0}", f"v_subrev_u32 v{vo[j]}, {sub}, v{t0}"]
        else: o += [f"v_mad_u32_u24 v{vo[j]}, v{t1}, s{sU}, v{t0}"]
        a.e("\n".join(o))
    koff(0); koff(1)
    a.e("s_waitcnt lgkmcnt(0)")
    mk_srd(a, SRD_A, P_K, NB); mk_srd(a, SRD_B, P_V, NB)
    def dma1(srdn, lbase, so, j):
        a.e(f"s_add_u32 m0, s{sM0}, {lbase + (4096 if j == 4 else 0)}\n s_nop 0")
        a.e(f"buffer_load_dwordx4 v{vo[j]}, {srd(srdn)}, s{so} offen offset:{1024*(j&3)} lds")
    for j in range(5):
        if j >= 2: koff(j)
        dma1(SRD_A, A_KB, sSO, j); dma1(SRD_B, A_VB, sSO, j)
        if j == 1:
            mk_srd(a, SRD_D, P_SH, 640 * 8)
            a.e(f"""
            v_and_b32 v{lr}, 15, v{L}
            s_mul_i32 s{sSH}, s{sCH}, 320
            v_add_u32 v{so_u}, s{sSH}, v{lr}
            v_lshlrev_b32 v{otap}, 3, v{so_u}
            s_lshl_b32 s{sSH}, s{sCG}, 7
            """)
            for n in range(5):
                a.e(f"buffer_load_dwordx2 {v(taps[n],2)}, v{otap}, {srd(SRD_D)}, s{sSH} offen offset:{512*n}")
    lab = a.newlab("a1_nohalo")
    a.e(f"""
    s_cmp_lg_u32 s{S_WAVE}, 7
    s_cbranch_scc1 {lab}
    s_sub_u32 s{sSH}, s{sSO}, {64*1280}
    s_cmp_eq_u32 s{sTI}, 0
    s_cselect_b32 s{sSH}, {NB}, s{sSH}
    """)
    for j in (2, 3, 4): dma1(SRD_A, A_KB - 8 * 5120, sSH, j)
    a.lab(lab)
    NH = 0
    if AH:
        NH = 1
        nhp = a.newlab("nohelp")
        pf_lanes(a, 240, 241, t0, t1, 68, 69)
        mk_srd(a, SRD_A, P_X, NB); mk_srd(a, SRD_B, P_W, 640 * 3840)
        a.e(f"""
        s_lshl_b32 s70, s{S_WAVE}, 3
        s_add_u32 s70, s70, s{S_J}
        s_sub_u32 s70, s70, 24
        s_min_u32 s70, s70, {AH-1}
        s_add_u32 s70, s70, {24*(10-PF0)-AH}
        s_barrier
        s_cmp_lt_u32 s{S_WAVE}, {AH//8}
        s_cbranch_scc1 {nhp}
        s_mov_b64 exec, 1
        """)
        a.lab(nhp)
        pf_one(a, 70, 71, 72, 68, 69, 240, 241, 244)
        a.e("s_mov_b64 exec, -1")
    mk_srd(a, SRD_D, P_DBG, 256)
    a.e(f"v_and_b32 v{vz}, 7, v{L}\n v_lshlrev_b32 v{vz}, 2, v{vz}")
    mk_srd(a, SRD_C, P_WS, T_BYTES)
    mk_fl(a)
    conv_sload(a)
    a.e(f"""
    v_lshrrev_b32 v{g}, 4, v{L}
    v_lshrrev_b32 v{t0}, 2, v{lr}
    v_lshl_add_u32 v{t1}, v{g}, 3, v{t0}
    v_mul_u32_u24 v{ad}, 640, v{t1}
    v_and_b32 v{t2}, 3, v{lr}
    v_lshl_add_u32 v{ad}, v{t2}, 3, v{ad}
    s_and_b32 s{sSH}, s{S_WAVE}, 1
    s_mul_i32 s{sU}, s{sSH}, {32*640}
    s_add_u32 s{sU}, s{sU}, {A_KB}
    v_add_u32 v{ad}, s{sU}, v{ad}
    v_lshrrev_b32 v{t0}, 1, v{t0}
    v_and_b32 v{t1}, 1, v{g}
    v_lshl_or_b32 v{t0}, v{t1}, 1, v{t0}
    v_xor_b32 v{t0}, s{sCG}, v{t0}
    v_lshlrev_b32 v{t0}, 5, v{t0}
    v_xor_b32 v{t1}, 64, v{t0}
    v_add_u32 v{adh}, v{t1}, v{ad}
    v_subrev_u32 v{adh}, {4*640}, v{adh}
    v_add_u32 v{ad}, v{t0}, v{ad}
    v_lshlrev_b32 v{t0}, 12, v{so_u}
    s_lshl_b32 s{sT}, s{sTI}, 1
    s_add_u32 s{sT}, s{sT}, s{sSH}
    s_lshl_b32 s{sT}, s{sT}, 6
    v_lshlrev_b32 v{t1}, 4, v{g}
    v_add_u32 v{t1}, s{sT}, v{t1}
    v_sub_u32 v{so_u}, 4080, v{t1}
    v_add_u32 v{so_u}, v{so_u}, v{t0}
    s_lshl_b32 s{sU}, s{sCG}, 16
    """)
    def tapprep(n):
        tp, w = taps[n], W[n]
        a.e(f"""
        v_alignbit_b32 v{w}, v{tp}, v{tp}, 16
        v_alignbit_b32 v{w+1}, v{tp+1}, v{tp+1}, 16
        v_and_b32 v{w+2}, 0xffff0000, v{tp}
        v_and_b32 v{w+3}, 0xffff, v{tp}
        v_and_b32 v{w+4}, 0xffff, v{tp+1}
        v_or_b32 v{w+2}, v{w+2}, v{w+4}
        v_and_b32 v{w+4}, 0xffff0000, v{tp+1}
        """)
    a.e(f"s_waitcnt vmcnt({6+NH})")
    for n in range(5): tapprep(n)
    stamp(a, 1)
    a.e(f"s_waitcnt vmcnt({NH}) lgkmcnt(0)\n s_barrier")
    a.e(f"buffer_load_dword v{vz}, v{vz}, {srd(SRD_D)}, 0 offen sc1")
    stamp(a, 2)
    if STAMPS: a.e("s_waitcnt lgkmcnt(0)")
    def rd(n):
        o = 128 * n
        return [f"ds_read_b64_tr_b16 {v(KR[n],2)}, v{adh} offset:{o}",
                f"ds_read_b64_tr_b16 {v(KR[n]+2,2)}, v{ad} offset:{o}",
                f"ds_read_b64_tr_b16 {v(KR[n]+4,2)}, v{ad} offset:{o+2560}",
                f"ds_read_b64_tr_b16 {v(VR[n],2)}, v{ad} offset:{A_VB-A_KB+o}",
                f"ds_read_b64_tr_b16 {v(VR[n]+2,2)}, v{ad} offset:{A_VB-A_KB+o+2560}"]
    a.e("\n".join(rd(0) + rd(1) + rd(2)))
    for n in range(5):
        k, w, ob = KR[n], W[n], O[n & 1]
        a.e(f"s_waitcnt lgkmcnt({5*(min(4, n + 2) - n)})")
        if n + 3 < 5:
            a.e("\n".join(rd(n + 3)))
        for m in range(4):
            a.e(f"v_dot2_f32_bf16 v{U+2*m}, v{k+m}, v{w+4}, 0")
            a.e(f"v_dot2_f32_bf16 v{U+2*m+1}, v{k+m+1}, v{w+1}, 0")
        for m in range(4):
            a.e(f"v_dot2_f32_bf16 v{U+2*m}, v{k+m+1}, v{w+2}, v{U+2*m}")
            a.e(f"v_dot2_f32_bf16 v{U+2*m+1}, v{k+m+2}, v{w}, v{U+2*m+1}")
        for m in range(4):
            a.e(f"v_dot2_f32_bf16 v{U+2*m}, v{k+m+2}, v{w+3}, v{U+2*m}")
        for m in range(4):
            x = X + 2 * (m & 1)
            a.e(f"""
            v_lshlrev_b32 v{x}, 16, v{VR[n]+m}
            v_and_b32 v{x+1}, 0xffff0000, v{VR[n]+m}
            v_mul_f32 v{x+1}, v{x+1}, v{U+2*m+1}
            v_mul_f32 v{x}, v{x}, v{U+2*m}
            v_cvt_pk_bf16_f32 v{ob+3-m}, v{x+1}, v{x}
            """)
        a.e(f"buffer_store_dwordx4 {v(ob,4)}, v{so_u}, {srd(SRD_C)}, s{sU} offen sc1")
        if n < 4: a.e(f"s_add_u32 s{sU}, s{sU}, {4<<16}")
    stamp(a, 3)
    nz = a.newlab("a1_nz")
    a.e(f"s_waitcnt vmcnt(0)\n v_cmp_ne_u32 vcc, 1, v{vz}\n s_nop 1\n s_cmp_eq_u64 vcc, 0\n s_cbranch_scc1 {nz}")
    poll_z(a, t0, t1)
    a.lab(nz)
    a.e("s_barrier")
    stamp(a, 4)
    set_flag(a, S_ASLOT, t0, t1)
    return ra.hi

def prefetcher(a):
    vW, vX, vQ, vO, t0, t1, z4 = 2, 3, 4, 5, 6, 7, 8
    sN, sA, sB, sC, sT, sU = 60, 61, 62, 63, 64, 65
    a.c("L2 prefetch of this XCD's GEMM operands in K order (speed only) + housekeeping")
    pf_lanes(a, vW, vX, t0, t1, sU, sC)
    a.e(f"""
    s_lshl_b32 s{sN}, s{S_WAVE}, 3
    s_add_u32 s{sN}, s{sN}, s{S_J}
    s_sub_u32 s{sN}, s{sN}, 16
    s_waitcnt lgkmcnt(0)
    """)
    mk_fl(a)
    nz, nt, nc = a.newlab("nozero"), a.newlab("notlb"), a.newlab("nocode")
    a.e(f"s_cmp_lg_u32 s{sN}, 63\n s_cbranch_scc1 {nz}")
    a.e(f"s_mul_i32 s{sT}, s{S_XI}, {GB}\n s_add_u32 s{sT}, s{sT}, {WS_KV}")
    mk_srd(a, SRD_C, P_WS, GB, off_sreg=sT)
    mk_srd(a, SRD_D, P_DBG, 256)
    for i in range(4): a.e(f"v_mov_b32 v{z4+i}, 0")
    a.e(f"""
    v_lshlrev_b32 v{t0}, 4, v{L}
    v_lshlrev_b32 v{t1}, 7, v{L}
    s_lshl_b32 s{sT}, s{S_XI}, 13
    buffer_store_dword v{z4}, v{t1}, {srd(SRD_FL)}, s{sT} offen sc1
    s_add_u32 s{sT}, s{sT}, 0x10000
    buffer_store_dword v{z4}, v{t1}, {srd(SRD_FL)}, s{sT} offen sc1
    s_movk_i32 s{sT}, 4096
    s_movk_i32 s{sU}, 8192
    """)
    for n in range(9):
        a.e(f"buffer_store_dwordx4 {v(z4,4)}, v{t0}, {srd(SRD_C)}, {('0', 's%d' % sT, 's%d' % sU)[n>>2]} offen offset:{1024*(n&3)} sc1")
    a.e(f"""
    s_lshl_b32 s{sT}, s{S_XI}, 2
    v_mov_b32 v{t1}, 1
    s_waitcnt vmcnt(0)
    s_mov_b64 exec, 1
    buffer_store_dword v{t1}, v{t0}, {srd(SRD_D)}, s{sT} offen sc1
    s_mov_b64 exec, -1
    """)
    a.lab(nz)
    a.e(f"s_cmp_lg_u32 s{sN}, 62\n s_cbranch_scc1 {nt}")
    a.e(f"v_lshlrev_b32 v{t1}, 20, v{L}")
    for i, (ptr, nb) in enumerate([(P_WS, WS_END), (P_OUT, 2048 * 2560), (P_Q, NB), (P_WO, 640 * 1280), (P_DBG, 256), (P_H, T_BYTES)]):
        mk_srd(a, SRD_A, ptr, nb)
        a.e(f"buffer_load_dword v{236+i}, v{t1}, {srd(SRD_A)}, 0 offen")
    a.lab(nt)
    a.e(f"s_sub_u32 s{sT}, s{sN}, 56\n s_cmp_ge_u32 s{sT}, 6\n s_cbranch_scc1 {nc}\n s_getpc_b64 s[6:7]")
    a.lab("L_PC")
    a.e(f"""
    s_sub_u32 s6, s6, L_PC-{KN}
    s_subb_u32 s7, s7, 0
    s_lshl_b32 s{sT}, s{sT}, 13
    v_lshl_add_u32 v{t1}, v{L}, 7, s{sT}
    v_min_u32 v{t1}, L_END-{KN}-128, v{t1}
    global_load_dword v252, v{t1}, s[6:7]
    """)
    a.lab(nc)
    mk_srd(a, SRD_A, P_X, NB); mk_srd(a, SRD_B, P_W, 640 * 3840)
    done = a.newlab("pfd")
    NI = 24 * (10 - PF0) - AH
    for m in range((NI + 63) // 64):
        if m and "nopb" not in EX: a.e("s_barrier")
        a.e(f"s_add_u32 s{sT}, s{sN}, {64*m}")
        if 64 * m + 64 > NI: a.e(f"s_cmp_ge_u32 s{sT}, {NI}\n s_cbranch_scc1 {done}")
        pf_one(a, sT, sA, sB, sU, sC, vW, vX, 244 + m)
    a.lab(done)
    a.e("s_barrier")
    nh = a.newlab("pnh")
    mk_srd(a, SRD_B, P_H, T_BYTES)
    a.e(f"""
    s_cmp_ge_u32 s{sN}, 32
    s_cbranch_scc1 {nh}
    s_mul_i32 s{sA}, s{S_XI}, {80*4096}
    s_lshl_b32 s{sB}, s{sN}, 13
    s_add_u32 s{sA}, s{sA}, s{sB}
    v_lshlrev_b32 v{t0}, 7, v{L}
    buffer_load_dword v249, v{t0}, {srd(SRD_B)}, s{sA} offen
    """)
    a.lab(nh)
    mk_srd(a, SRD_A, P_WO, 640 * 1280)
    a.e(f"""
    s_mul_i32 s{sA}, s{sN}, {12*1280}
    s_add_u32 s{sA}, s{sA}, s{sC}
    buffer_load_dword v248, v{vW}, {srd(SRD_A)}, s{sA} offen
    """)
    nq = a.newlab("pnq")
    mk_srd(a, SRD_B, P_Q, NB)
    a.e(f"""
    s_cmp_ge_u32 s{S_J}, 20
    s_cbranch_scc1 {nq}
    s_barrier
    s_and_b32 s{sA}, s{S_J}, 3
    s_lshl_b32 s{sA}, s{sA}, 3
    s_add_u32 s{sA}, s{sA}, s{S_WAVE}
    s_xor_b32 s{sA}, s{sA}, 16
    s_mul_i32 s{sA}, s{sA}, {64*1280}
    s_mul_i32 s{sB}, s{S_XI}, 160
    s_add_u32 s{sA}, s{sA}, s{sB}
    buffer_load_dword v250, v{vX}, {srd(SRD_B)}, s{sA} offen
    buffer_load_dword v251, v{vX}, {srd(SRD_B)}, s{sA} offen offset:156
    """)
    a.lab(nq)
    conv_sload(a)
    stamp(a, 1)
    nz = a.newlab("pnz")
    a.e(f"s_cmp_lg_u32 s{S_WAVE}, 1\n s_cbranch_scc1 {nz}")
    poll_z(a, t0, t1)
    a.lab(nz)
    a.e("s_waitcnt lgkmcnt(0)")

def conv(a):
    ra = RA(2)
    lr, g, t0, t1, t2, aB, aT, vrow, vfl, vrow2, aR = [ra.a() for _ in range(11)]
    aA = [ra.a() for _ in range(4)]
    z4 = ra.a(4, 4); AD = ra.a(4, 4)
    Q = ra.a(16, 4)
    AF = [[ra.a(4, 4) for _ in range(8)] for _ in range(2)]
    BF = [[ra.a(4, 4) for _ in range(8)] for _ in range(2)]
    ACC = [ra.a(4, 4) for _ in range(8)]
    sD, sR, sSO, sT, sOO, sDV, sH, sQO = 60, 61, 62, 63, 64, 65, 66, 67
    fin, idle = a.newlab("conv_fin"), a.newlab("conv_idle")
    a.c("conv")
    if "noconv" in EX: a.e("s_branch L_FIN")
    mk_srd(a, SRD_A, P_WS, T_BYTES); mk_srd(a, SRD_B, P_Q, NB); mk_srd(a, SRD_C, P_OUT, 2048 * 2560)
    def qtouch():
        a.e(f"""
        s_sub_u32 s{sT}, s{S_J}, 20
        s_lshl_b32 s{sT}, s{sT}, 3
        s_add_u32 s{sT}, s{sT}, s{S_WAVE}
        s_mul_i32 s{sT}, s{sT}, {22*1280}
        s_mul_i32 s70, s{S_XI}, 160
        s_add_u32 s{sT}, s{sT}, s70
        v_and_b32 v{t2}, 31, v{L}
        v_min_u32 v{t2}, 21, v{t2}
        v_mul_u32_u24 v{t2}, 1280, v{t2}
        v_lshrrev_b32 v{t1}, 1, v{g}
        v_mul_u32_u24 v{t1}, 156, v{t1}
        v_add_u32 v{t2}, v{t2}, v{t1}
        buffer_load_dword v250, v{t2}, {srd(SRD_B)}, s{sT} offen
        """)
    def qg(slot, rowoff, nd):
        return [f"s_add_u32 s{sT}, s{sQO}, {rowoff*1280}",
                f"buffer_load_dwordx{nd} {v(Q+slot,nd)}, v{vrow}, {srd(SRD_B)}, s{sT} offen"]
    def qgather(n):
        l4, le = a.newlab("q4"), a.newlab("qe")
        ro = (1024 if n < 2 else 0) + 64 * (n & 1)
        a.e(f"s_cmp_lg_u32 s{S_P2}, 8\n s_cbranch_scc1 {l4}")
        a.e("\n".join(qg(4 * n, ro, 4)))
        if n >= 2:
            a.e(f"s_branch {le}")
        a.lab(l4)
        if n >= 2:
            a.e("\n".join(qg(4 * n, ro, 2)))
            a.lab(le)
    a.e(f"""
    v_and_b32 v{lr}, 15, v{L}
    v_lshrrev_b32 v{g}, 4, v{L}
    v_mul_u32_u24 v{vrow}, 1280, v{L}
    s_mul_i32 s{sQO}, s{S_WAVE}, {128*1280}
    s_lshl_b32 s{sOO}, s{sQO}, 1
    s_lshl_b32 s{sT}, s{S_CB}, 1
    s_add_u32 s{sQO}, s{sQO}, s{sT}
    s_add_u32 s{sOO}, s{sOO}, s{sT}
    v_lshlrev_b32 v{vrow2}, 1, v{vrow}
    v_lshrrev_b32 v{aR}, 2, v{lr}
    v_mul_u32_u24 v{aR}, {TP}, v{aR}
    v_and_b32 v{t1}, 3, v{lr}
    v_lshl_add_u32 v{aR}, v{t1}, 3, v{aR}
    v_lshl_add_u32 v{aR}, v{g}, 5, v{aR}
    s_lshl_b32 s{sT}, s{S_WAVE}, 8
    s_add_u32 s{sT}, s{sT}, {TB}
    v_add_u32 v{aR}, s{sT}, v{aR}
    s_cmp_ge_u32 s{S_WAVE}, s{S_P2}
    s_cbranch_scc1 {idle}
    s_add_u32 s{sD}, s{S_CB}, s{S_WAVE}
    s_lshl_b32 s{sSO}, s{sD}, 12
    v_lshlrev_b32 v{t0}, 4, v{L}
    """)
    HH, HG = AF[0][0], BF[0][0]
    mk_srd(a, SRD_D, P_H, T_BYTES)
    h_load(a, HH, t0, SRD_D, sSO)
    a.e(f"""
    s_mul_i32 s{sR}, s{S_WAVE}, {UP}
    s_add_u32 s{sR}, s{sR}, {UB}
    s_mul_i32 s{sH}, s{S_WAVE}, {HP}
    s_cmp_ge_u32 s{sD}, 320
    s_cselect_b32 s{sT}, 32, 0
    v_and_b32 v{vfl}, 31, v{L}
    v_add_u32 v{vfl}, s{sT}, v{vfl}
    v_lshlrev_b32 v{vfl}, 7, v{vfl}
    """)
    for i in range(4):
        a.e(f"v_mov_b32 v{z4+i}, 0")
    a.e(f"""
    v_and_b32 v{t1}, 1, v{lr}
    v_cmp_eq_u32 vcc, 1, v{t1}
    v_mov_b32 v{t1}, {HB+H_O}
    v_mov_b32 v{t2}, {HB+2}
    v_cndmask_b32 v{t1}, v{t1}, v{t2}, vcc
    v_lshl_add_u32 v{t1}, v{lr}, 1, v{t1}
    v_lshl_add_u32 v{t1}, v{g}, 4, v{t1}
    v_add_u32 v{aA[0]}, s{sH}, v{t1}
    v_add_u32 v{aA[1]}, 1024, v{aA[0]}
    v_add_u32 v{aA[2]}, 2048, v{aA[0]}
    v_add_u32 v{aA[3]}, 3072, v{aA[0]}
    v_lshlrev_b32 v{t0}, 4, v{L}
    v_add_u32 v{aT}, s{sR}, v{t0}
    s_and_b32 s{sT}, s{sD}, 1
    s_lshl_b32 s{sT}, s{sT}, 4
    s_lshr_b32 s{sDV}, s5, s{sT}
    s_and_b32 s{sDV}, s{sDV}, 0xffff
    v_lshl_add_u32 v{t1}, v{g}, 3, v{lr}
    v_sub_u32 v{t1}, 15, v{t1}
    v_and_b32 v{t2}, 1, v{t1}
    v_lshlrev_b32 v{t2}, 4, v{t2}
    v_lshlrev_b32 v{t2}, v{t2}, s{sDV}
    v_ashrrev_i32 v{t1}, 1, v{t1}
    """)
    for r in range(4):
        a.e(f"v_cmp_eq_u32 vcc, {r}, v{t1}\n s_nop 1\n v_cndmask_b32 v{AD+r}, 0, v{t2}, vcc")
    a.e(f"""
    v_lshlrev_b32 v{t1}, 5, v{lr}
    v_sub_u32 v{aB}, 480, v{t1}
    v_lshl_add_u32 v{aB}, v{g}, 4, v{aB}
    v_add_u32 v{aB}, s{sR}, v{aB}
    """)
    a.e("s_waitcnt vmcnt(0)")
    h_stage(a, HH, HG, S_WAVE, t0, t1, sT)
    a.e(f"s_mov_b32 exec_hi, 0\n ds_write_b128 v{aT}, {v(z4,4)} offset:4096\n s_mov_b64 exec, -1")
    stamp(a, 5)
    npl = a.newlab("nopoll")
    a.e(f"s_cmp_lg_u32 s{S_WAVE}, 1\n s_cbranch_scc1 {npl}")
    poll(a, SRD_FL, vfl, t1, slp=int(os.environ.get("ASL", "2")))
    a.lab(npl)
    a.e("s_barrier")
    stamp(a, 6)
    UR = AF[1][0]
    for j in range(4):
        a.e(f"buffer_load_dwordx4 {v(UR+4*j,4)}, v{t0}, {srd(SRD_A)}, s{sSO} offen offset:{1024*j} sc1")
    for j in range(4):
        a.e(f"s_waitcnt vmcnt({3-j})\n ds_write_b128 v{aT}, {v(UR+4*j,4)} offset:{1024*j}")
    a.e(f"""
    v_lshlrev_b32 v{t1}, 5, v{lr}
    v_lshl_add_u32 v{aT}, v{g}, 3, v{t1}
    s_mul_i32 s{sT}, s{S_WAVE}, {TP}
    s_add_u32 s{sT}, s{sT}, {TB}
    v_add_u32 v{aT}, s{sT}, v{aT}
    """)
    MF = "v_mfma_f32_16x16x32_bf16"
    def rd1(b, slot, i, r):
        o0 = 128 * (i & 1) + 16 * r
        return [f"ds_read_b128 {v(BF[b][slot],4)}, v{aB} offset:{3584 - 512*i + 64*r}",
                f"ds_read2_b32 {v(AF[b][slot],2)}, v{aA[i>>1]} offset0:{o0} offset1:{o0+1}",
                f"ds_read2_b32 {v(AF[b][slot]+2,2)}, v{aA[i>>1]} offset0:{o0+2} offset1:{o0+3}"]
    def reads(it):
        b = it & 1; o = []
        if it < 8:
            for i in range(8): o += rd1(b, i, i, it)
        elif it < 12:
            for k in range(2):
                for i in range(4): o += rd1(b, 4 * k + i, i, 2 * (it - 8) + k)
        return o
    def mf(it):
        b = it & 1; o = []
        if it < 8:
            if it == 0:
                o += [f"{MF} {v(ACC[c],4)}, {v(AD,4)}, {v(BF[b][c],4)}, 0" for c in range(8)]
            for q in range(8):
                for c in range(max(q, 4), 8):
                    o.append(f"{MF} {v(ACC[c],4)}, {v(AF[b][q],4)}, {v(BF[b][c-q],4)}, {v(ACC[c],4)}")
        else:
            for k in range(2):
                for q in range(4):
                    for c in range(q, 4):
                        o.append(f"{MF} {v(ACC[c],4)}, {v(AF[b][4*k+q],4)}, {v(BF[b][4*k+c-q],4)}, {v(ACC[c],4)}")
        return o
    def spread(M, F):
        out = []; n = len(M); fi = 0
        for i, m in enumerate(M):
            out.append(m)
            tgt = (len(F) * (i + 1) + n - 1) // n
            out += F[fi:tgt]; fi = tgt
        return out
    def twrite(half):
        a.e("s_nop 3")
        for c in range(4):
            r = ACC[4 * half + c]
            a.e(f"v_cvt_pk_bf16_f32 v{r}, v{r}, v{r+1}\n v_cvt_pk_bf16_f32 v{r+1}, v{r+2}, v{r+3}")
            a.e(f"ds_write_b64 v{aT}, {v(r,2)} offset:{(1-half)*8*TP + 512*c}")
    Y, X = ACC[4], ACC[6]
    def t_rd(n, nd, toff):
        return [f"ds_read_b64_tr_b16 {v(Y+4*(n&1)+2*k,2)}, v{aR} offset:{toff + 4*TP*k}" for k in range(nd // 2)]
    def t_mul(n, nd, qslot, rowoff):
        o = []
        for i in range(nd):
            y, q, x = Y + 4 * (n & 1) + i, Q + qslot + i, X + 4 * (i & 1)
            o += [f"v_lshlrev_b32 v{x}, 16, v{y}", f"v_and_b32 v{x+1}, 0xffff0000, v{y}",
                  f"v_lshlrev_b32 v{x+2}, 16, v{q}", f"v_and_b32 v{x+3}, 0xffff0000, v{q}",
                  f"v_mul_f32 v{x}, v{x}, v{x+2}", f"v_mul_f32 v{x+1}, v{x+1}, v{x+3}",
                  f"v_cvt_pk_bf16_f32 v{y}, v{x}, v{x+1}"]
        o += [f"s_add_u32 s{sT}, s{sOO}, {rowoff*2560}",
              f"buffer_store_dwordx{nd} {v(Y+4*(n&1),nd)}, v{vrow2}, {srd(SRD_C)}, s{sT} offen"]
        return o
    stamp(a, 7)
    a.e("s_waitcnt lgkmcnt(0)\n s_barrier")
    a.e("\n".join(reads(0)))
    for it in range(8):
        a.e("s_waitcnt lgkmcnt(0)")
        if "nocprio" not in EX: a.e(f"s_setprio {3 - it // 2}")
        if 3 <= it <= 6: qgather(it - 3)
        a.e("\n".join(interleave(mf(it), reads(it + 1))))
    twrite(1)
    a.e("s_waitcnt lgkmcnt(0)\n s_barrier")
    stamp(a, 8)
    lo4, lj = a.newlab("lo4"), a.newlab("loj")
    a.e(f"s_cmp_lg_u32 s{S_P2}, 8\n s_cbranch_scc1 {lo4}")
    for it in range(8, 12):
        if it > 8: a.e("s_waitcnt lgkmcnt(0)")
        if "nocprio" not in EX: a.e(f"s_setprio {11 - it}")
        F = reads(it + 1)
        if it == 8: F = t_rd(0, 4, 0) + t_rd(1, 4, 128) + F
        if it == 9:
            a.e("s_waitcnt vmcnt(2)")
            F = interleave2(F, t_mul(0, 4, 0, 1024), 1)
        if it == 10: F = interleave2(F, t_mul(1, 4, 4, 1024 + 64), 1)
        a.e("\n".join(spread(mf(it), F)))
    a.e(f"s_branch {lj}")
    a.lab(lo4)
    for it in range(8, 12):
        if it > 8: a.e("s_waitcnt lgkmcnt(0)")
        a.e("\n".join(spread(mf(it), reads(it + 1))))
    a.e("s_waitcnt vmcnt(0)")
    a.lab(lj)
    twrite(0)
    a.e(f"s_branch {fin}")
    a.lab(idle)
    a.e("s_barrier\n s_barrier")
    a.e(f"s_waitcnt vmcnt(0)\n s_sub_u32 s{sD}, s{S_WAVE}, 8\n s_mul_i32 s{sR}, s{sD}, {128*1280}\n s_add_u32 s{sQO}, s{sQO}, s{sR}")
    for n in range(4): a.e("\n".join(qg(2 * n, 1024 + 64 * n, 2)))
    a.e(f"s_sub_u32 s{sQO}, s{sQO}, s{sR}")
    for n in range(2): a.e("\n".join(qg(8 + 4 * n, 64 * n, 2)))
    a.e(f"s_lshl_b32 s{sR}, s{sR}, 1\n s_add_u32 s{sOO}, s{sOO}, s{sR}\n s_lshl_b32 s{sD}, s{sD}, 8\n v_add_u32 v{aR}, s{sD}, v{aR}")
    a.e("s_barrier")
    for h in range(2):
        a.e("\n".join(t_rd(0, 2, 256 * h) + t_rd(1, 2, 256 * h + 128)))
        a.e("s_waitcnt vmcnt(0) lgkmcnt(0)" if h == 0 else "s_waitcnt lgkmcnt(0)")
        a.e("\n".join(t_mul(0, 2, 4 * h, 1024 + 128 * h) + t_mul(1, 2, 4 * h + 2, 1024 + 128 * h + 64)))
    a.e(f"s_sub_u32 s{sOO}, s{sOO}, s{sR}\n v_subrev_u32 v{aR}, s{sD}, v{aR}")
    a.lab(fin)
    a.e("s_waitcnt lgkmcnt(0)\n s_barrier")
    stamp(a, 9)
    def tail(nd):
        a.e("\n".join(t_rd(0, nd, 8 * TP) + t_rd(1, nd, 8 * TP + 128)))
        a.e("s_waitcnt vmcnt(2) lgkmcnt(0)" if nd == 4 else "s_waitcnt lgkmcnt(0)")
        a.e("\n".join(t_mul(0, nd, 8, 0) + t_mul(1, nd, 12, 64)))
    l8 = a.newlab("t8")
    a.e(f"s_cmp_eq_u32 s{S_P2}, 8\n s_cbranch_scc1 {l8}")
    tail(2)
    a.e("s_branch L_FIN")
    a.lab(l8)
    tail(4)
    a.e("s_branch L_FIN")
    return ra.hi

def wo_dma(a):
    t0, t1, t2, vx = 228, 229, 230, [231, 232, 233, 234]
    sSX, sM, sT = 68, 69, 70
    mk_srd(a, SRD_A, P_WO, 640 * 1280)
    a.e(f"""
    v_lshrrev_b32 v{t0}, 3, v{L}
    v_mul_u32_u24 v{t0}, 1280, v{t0}
    v_and_b32 v{t1}, 7, v{L}
    v_bfe_u32 v{t2}, v{L}, 4, 1
    v_lshlrev_b32 v{t2}, 2, v{t2}
    v_xor_b32 v{t1}, v{t1}, v{t2}
    v_lshl_add_u32 v{vx[0]}, v{t1}, 4, v{t0}
    v_add_u32 v{vx[1]}, {1*(8*1280-1024)}, v{vx[0]}
    v_add_u32 v{vx[2]}, {2*(8*1280-1024)}, v{vx[0]}
    v_add_u32 v{vx[3]}, {3*(8*1280-1024)}, v{vx[0]}
    s_sub_u32 s{sM}, s{S_WAVE}, 4
    s_mul_i32 s{sSX}, s{sM}, {160*1280}
    s_lshl_b32 s{sT}, s{S_GC}, 7
    s_add_u32 s{sSX}, s{sSX}, s{sT}
    s_mul_i32 s{sM}, s{sM}, 20480
    """)
    for q in range(5):
        a.e(f"s_add_u32 m0, s{sM}, {4096*q}\n s_nop 0")
        for j in range(4):
            a.e(f"buffer_load_dwordx4 v{vx[j]}, {srd(SRD_A)}, s{sSX} offen offset:{1024*j} lds")
        a.e(f"s_add_u32 s{sSX}, s{sSX}, {32*1280}")
    mk_srd(a, SRD_B, P_WS, T_BYTES, off=WS_PQ)

def g2(a):
    ra = RA(10)
    t0, t1, t2, t3, v16, vfl = [ra.a() for _ in range(6)]
    wm, wx = [ra.a(), ra.a()], [ra.a(), ra.a()]
    O = [ra.a(4, 4) for _ in range(20)]
    NW = 4
    WF = [[ra.a(4, 4) for _ in range(2)] for _ in range(NW)]
    ACC = [ra.a(16, 4) for _ in range(2)]
    R = ra.a(16, 4); D = ra.a(8, 4)
    sKH, sRW, sT, sSO, sU = 60, 61, 62, 63, 65
    M32 = "v_mfma_f32_32x32x16_bf16"
    a.c("G2")
    a.e(f"""
    s_lshr_b32 s{sKH}, s{S_WAVE}, 2
    s_and_b32 s{sRW}, s{S_WAVE}, 3
    s_lshl_b32 s{sT}, s{S_RT}, 2
    s_add_u32 s{sT}, s{sT}, s{sRW}
    s_mul_i32 s{sSO}, s{sT}, {32*2560}
    s_lshl_b32 s{sT}, s{sT}, 3
    s_lshl_b32 s{sU}, s{sKH}, 2
    s_add_u32 s{sT}, s{sT}, s{sU}
    s_mul_i32 s{sU}, s{sT}, 5120
    s_add_u32 s{sT}, s{sT}, 64
    v_and_b32 v{t0}, 3, v{L}
    v_add_u32 v{vfl}, s{sT}, v{t0}
    v_lshlrev_b32 v{vfl}, 7, v{vfl}
    v_lshlrev_b32 v{v16}, 4, v{L}
    s_and_b32 s64, s{S_GC}, {0 if "norot2" in EX else 3}
    s_lshl_b32 s{sT}, s{sKH}, 2
    s_add_u32 s{sT}, s{sT}, s64
    s_mul_i32 s{sT}, s{sT}, {4*2560}
    s_movk_i32 s71, {4*2560}
    s_cmp_eq_u32 s64, 3
    s_cselect_b32 s68, {-12*2560}, s71
    s_cmp_eq_u32 s64, 2
    s_cselect_b32 s69, {-12*2560}, s71
    s_cmp_eq_u32 s64, 1
    s_cselect_b32 s70, {-12*2560}, s71
    v_lshrrev_b32 v{t2}, 5, v{L}
    v_lshl_add_u32 v{t0}, v{t0}, 3, s{sT}
    v_bfe_u32 v{t1}, v{L}, 4, 1
    v_lshl_add_u32 v{t0}, v{t1}, 5, v{t0}
    v_bfe_u32 v{t1}, v{L}, 2, 2
    v_lshl_add_u32 v{t3}, v{t2}, 2, v{t1}
    v_lshl_add_u32 v{wm[0]}, v{t3}, 7, v{t0}
    v_bfe_u32 v{t3}, v{L}, 3, 1
    v_lshl_add_u32 v{wm[0]}, v{t3}, 6, v{wm[0]}
    v_xor_b32 v{wm[1]}, 64, v{wm[0]}
    v_mul_u32_u24 v{t3}, 20, v{t3}
    v_and_b32 v{t1}, 1, v{t1}
    v_add3_u32 v{t3}, v{t3}, v{t1}, 16
    v_lshl_add_u32 v{t3}, v{t2}, 1, v{t3}
    v_lshl_add_u32 v{wx[0]}, v{t3}, 7, v{t0}
    v_lshl_add_u32 v{wx[0]}, v{t2}, 6, v{wx[0]}
    v_xor_b32 v{wx[1]}, 64, v{wx[0]}
    s_lshl_b32 s{sT}, s{S_GC}, 7
    s_add_u32 s{sSO}, s{sSO}, s{sT}
    s_lshl_b32 s{sT}, s{sKH}, 6
    s_add_u32 s{sSO}, s{sSO}, s{sT}
    s_add_u32 s{sSO}, s{sSO}, 1280
    """)
    mk_srd(a, SRD_D, P_OUT, 2048 * 2560)
    nw = a.newlab("g2nw")
    a.e(f"s_cmp_eq_u32 s{sKH}, 0\n s_cbranch_scc1 {nw}\n s_waitcnt vmcnt(0)")
    a.lab(nw)
    a.e("s_barrier")
    def wrd(k):
        p, j = divmod(k, 5); b = k % NW
        if j < 4:
            return [f"ds_read_b64_tr_b16 {v(WF[b][nt]+2*i,2)}, v{wm[nt]} offset:{2560*j+1024*i}" for nt in range(2) for i in range(2)]
        o = [f"ds_read_b64_tr_b16 {v(WF[b][nt]+2*i,2)}, v{wx[nt]} offset:{2560*2*i}" for nt in range(2) for i in range(2)]
        if p < 3:
            o[3] += "".join(f"\n v_add_u32 v{r}, s{68+p}, v{r}" for r in wm + wx)
        return o
    a.e("\n".join(wrd(0) + wrd(1) + wrd(2)))
    if "steps" not in EX: stamp(a, 7)
    poll(a, SRD_FL, vfl, t0, slp=int(os.environ.get("GSL", "2")))
    if "steps" not in EX: stamp(a, 8)
    for k in range(20):
        p, j = divmod(k, 5)
        if j == 0:
            a.e(f"s_add_u32 s{sT}, s64, {p}\n s_and_b32 s{sT}, s{sT}, 3\n s_mul_i32 s{sT}, s{sT}, 5120\n s_add_u32 s{sT}, s{sT}, s{sU}")
        if j == 4: a.e(f"s_add_u32 s{sT}, s{sT}, 4096")
        a.e(f"buffer_load_dwordx4 {v(O[k],4)}, v{v16}, {srd(SRD_B)}, s{sT} offen offset:{1024*(j&3)} sc1")
    if STAMPS: a.e("s_waitcnt lgkmcnt(0)")
    for k in range(20):
        a.e(f"s_waitcnt vmcnt({19-k}) lgkmcnt({4*min(2, 19-k)})")
        F = wrd(k + 3) if k + 3 < 20 else []
        for nt in range(2):
            a.e(f"{M32} {v(ACC[nt],16)}, {v(WF[k%NW][nt],4)}, {v(O[k],4)}, {'0' if k == 0 else v(ACC[nt],16)}")
            a.e("\n".join(F[2*nt:2*nt+2]))
    if "steps" not in EX: stamp(a, 9)
    lk1, lj = a.newlab("g2_k1"), a.newlab("g2_j")
    a.e(f"""
    s_lshl_b32 s{sT}, s{S_WAVE}, 12
    s_add_u32 s{sT}, s{sT}, {RED}
    v_add_u32 v{t0}, s{sT}, v{v16}
    s_xor_b32 s{sT}, s{S_WAVE}, 4
    s_lshl_b32 s{sT}, s{sT}, 12
    s_add_u32 s{sT}, s{sT}, {RED}
    v_add_u32 v{t1}, s{sT}, v{v16}
    v_and_b32 v{t2}, 15, v{L}
    v_mul_u32_u24 v{t2}, 2560, v{t2}
    v_bfe_u32 v{t3}, v{L}, 4, 1
    v_lshl_add_u32 v{t2}, v{t3}, 5, v{t2}
    v_lshrrev_b32 v{t3}, 5, v{L}
    v_lshl_add_u32 v{t2}, v{t3}, 4, v{t2}
    s_cmp_eq_u32 s{sKH}, 0
    s_cbranch_scc0 {lk1}
    """)
    for t in range(4):
        a.e(f"ds_write_b128 v{t0}, {v(ACC[1]+4*t,4)} offset:{1024*t}")
    a.e(f"s_branch {lj}")
    a.lab(lk1)
    for t in range(4):
        a.e(f"ds_write_b128 v{t0}, {v(ACC[0]+4*t,4)} offset:{1024*t}")
    a.e("s_nop 1")
    for i in range(16):
        a.e(f"v_mov_b32 v{ACC[0]+i}, v{ACC[1]+i}")
    a.lab(lj)
    a.e(f"s_add_u32 s{sT}, s{sSO}, {16*2560}\n s_waitcnt lgkmcnt(0)\n s_barrier")
    for t in range(4):
        a.e(f"ds_read_b128 {v(R+4*t,4)}, v{t1} offset:{1024*t}")
    for t in range(4):
        a.e(f"s_waitcnt lgkmcnt({3-t})")
        c = ACC[0] + 4 * t
        for i in range(4):
            a.e(f"v_add_f32 v{c+i}, v{c+i}, v{R+4*t+i}")
        a.e(f"v_cvt_pk_bf16_f32 v{D+2*t}, v{c}, v{c+1}\n v_cvt_pk_bf16_f32 v{D+2*t+1}, v{c+2}, v{c+3}")
    a.e("s_nop 1")
    for q in (0, 4):
        a.e(f"v_permlane32_swap_b32 v{D+q}, v{D+q+2}\n v_permlane32_swap_b32 v{D+q+1}, v{D+q+3}")
    a.e("s_nop 1")
    for i in range(4):
        a.e(f"v_permlane16_swap_b32 v{D+i}, v{D+4+i}")
    a.e(f"buffer_store_dwordx4 {v(D,4)}, v{t2}, {srd(SRD_D)}, s{sSO} offen {OSTB}")
    a.e(f"buffer_store_dwordx4 {v(D+4,4)}, v{t2}, {srd(SRD_D)}, s{sT} offen {OSTB}")
    return ra.hi

def build(path):
    hdr = open("cdna_kernels/%s.s.ref" % NAME).read().split("; Override")[0]
    a = Asm()
    a.raw('.amdgcn_target "amdgcn-amd-amdhsa--gfx950"\n.text')
    a.raw(f".globl {KN}\n.p2align 8\n.type {KN},@function"); a.lab(KN)
    a.e(f"s_cmp_ge_u32 s2, 256\n s_cbranch_scc1 L_END")
    stamp_init(a); stamp(a, 0)
    a.e(f"""
    s_load_dwordx16 s[8:23], s[0:1], 0
    s_load_dwordx8 s[24:31], s[0:1], 64
    v_lshrrev_b32 v2, 6, v0
    v_and_b32 v{L}, 63, v0
    v_readfirstlane_b32 s{S_WAVE}, v2
    s_and_b32 s{S_XI}, s2, 7
    s_lshr_b32 s{S_J}, s2, 3
    s_lshr_b32 s6, s{S_XI}, 1
    s_lshl_b32 s6, s6, 2
    s_and_b32 s7, s{S_J}, 3
    s_add_u32 s{S_RT}, s6, s7
    s_and_b32 s4, s{S_XI}, 1
    s_mul_i32 s{S_GC}, s4, 5
    s_cmp_ge_u32 s{S_J}, 16
    s_cbranch_scc1 L_A
    s_lshr_b32 s6, s{S_J}, 2
    s_add_u32 s{S_GC}, s{S_GC}, s6
    s_lshl_b32 s4, s4, 2
    s_add_u32 s{S_G}, s4, s6
    s_cmp_lt_u32 s{S_WAVE}, 4
    s_cbranch_scc1 L_BC
    """)
    b_loader(a)
    a.lab("L_A")
    a.e(f"""
    s_add_u32 s{S_GC}, s{S_GC}, 4
    s_mul_i32 s{S_CB}, s{S_XI}, 80
    s_sub_u32 s6, s{S_J}, 24
    s_lshl_b32 s6, s6, 3
    s_lshl_b32 s7, s7, 2
    s_add_u32 s7, s7, 64
    s_cmp_ge_u32 s{S_J}, 24
    s_cselect_b32 s{S_P2}, 8, 4
    s_cselect_b32 s6, s6, s7
    s_add_u32 s{S_CB}, s{S_CB}, s6
    s_cmp_ge_u32 s{S_J}, 24
    s_cbranch_scc1 L_A1
    """)
    prefetcher(a)
    a.e(f"s_cmp_ge_u32 s{S_J}, 20\n s_cbranch_scc1 L_CONV")
    mk_srd(a, SRD_B, P_WS, T_BYTES, off=WS_PQ)
    a.e(f"s_cmp_lt_u32 s{S_WAVE}, 4\n s_cbranch_scc1 L_G2\n s_waitcnt vmcnt(0)\n s_call_b64 s[72:73], L_WO\n s_branch L_G2")
    a.lab("L_A1")
    h3 = a1(a)
    a.lab("L_CONV")
    h5 = conv(a)
    a.lab("L_BC")
    h1 = b_compute(a)
    a.lab("L_WO")
    wo_dma(a)
    a.e("s_setpc_b64 s[72:73]")
    a.lab("L_G2")
    h4 = g2(a)
    a.lab("L_FIN")
    stamp_flush(a, 0)
    a.lab("L_END")
    a.e("s_endpgm")
    print("vgprs", h1, h3, h4, h5, file=sys.stderr)
    desc = f""".section .rodata,"a"
.p2align 6
.amdhsa_kernel {KN}
  .amdhsa_next_free_vgpr 256
  .amdhsa_next_free_sgpr 102
  .amdhsa_accum_offset 256
  .amdhsa_group_segment_fixed_size 0
  .amdhsa_kernarg_size 96
  .amdhsa_user_sgpr_count 2
  .amdhsa_user_sgpr_kernarg_segment_ptr 1
  .amdhsa_system_sgpr_workgroup_id_x 1
.end_amdhsa_kernel
"""
    open(path, "w").write(hdr + f"; @launch grid=(256,1,1) block=(512,1,1) lds={LDS_BYTES}\n" + a.text() + desc)
if __name__ == "__main__":
    build(sys.argv[1])
```

```python
import sys
from asmlib import *
NAME = "concat_heads__ssm_conv_h3__linear_attn_block__prompt"
KN = NAME + "_kernel"
EX = set(os.environ.get("EX", "").split(","))
ROTR = int(os.environ.get("ROTR", "0"), 16); ROTC = int(os.environ.get("ROTC", "0"), 16)
OST = os.environ.get("OSTA", "")
OSTB = os.environ.get("OSTB", "nt")

T_BYTES = 640 * 4096
WS_UT, WS_PQ = 0, T_BYTES
WS_KV = 2 * T_BYTES
GB = 8960
WS_FL = WS_KV + 8 * GB + 2048
assert WS_FL % 128 == 0
WS_END = WS_FL + 1024 * 128
S_WG, S_WAVE = 2, 3
P_Q, P_K, P_V, P_SH, P_H, P_D, P_X, P_W, P_WO, P_OUT, P_DBG, P_WS = 8, 10, 12, 14, 16, 18, 20, 22, 24, 26, 28, 30
SRD_A, SRD_B, SRD_C, SRD_D, SRD_FL = 32, 36, 40, 44, 48
S_RT, S_G, S_GC, S_CB, S_P2, S_ASLOT, S_XI, S_J = 52, 53, 54, 55, 56, 57, 58, 59
L = 1
NB = 2048 * 1280

XST, WBASE, WST, NST = 16384, 49152, 20480, 3
HI = WBASE + NST * WST
W2B = 2688
QBASE, QST = HI, 4 * W2B
IMG, IMGP = QBASE + NST * QST, 9216
HB, HP, H_O = 0, 8320, 4160
UB, UP = 8 * HP, 4672
A_KB, A_VB = UB + 5120, UB + 5120 + 40960
WOB = 2 * XST
KVI, RED = WOB + 81920, 0
ND = int(os.environ.get("ND", "2"))
xsl = lambda st: (st + 1) % NST
qsl = lambda st: (st + 2) % NST
assert KVI + 3520 <= QBASE + QST and ND <= 2
TB, TP = UB + 8 * UP, 2112
LDS_BYTES = max(A_VB + 40960, IMG + 2 * IMGP)
assert UB + 8 * UP <= HI and RED + 32768 <= LDS_BYTES <= 163840

def mk_srd(a, srd, ptr, nbytes, off=0, off_sreg=None):
    if off_sreg is not None:
        a.e(f"s_add_u32 s{srd}, s{ptr}, s{off_sreg}\n s_addc_u32 s{srd+1}, s{ptr+1}, 0")
    elif off:
        a.e(f"s_add_u32 s{srd}, s{ptr}, {off}\n s_addc_u32 s{srd+1}, s{ptr+1}, 0")
    else:
        a.e(f"s_mov_b32 s{srd}, s{ptr}\n s_mov_b32 s{srd+1}, s{ptr+1}")
    a.e(f"s_mov_b32 s{srd+2}, {nbytes}\n s_mov_b32 s{srd+3}, 0x20000")
def srd(x): return f"s[{x}:{x+3}]"
def mk_fl(a): mk_srd(a, SRD_FL, P_WS, 1024 * 128, off=WS_FL)

SPIN_MAX = 400000 if "noat" not in EX else 2
def poll(a, srdn, vo, t, scnt=74, slp=1):
    lp, dn = a.newlab("poll"), a.newlab("polld")
    a.e(f"s_mov_b32 s{scnt}, {SPIN_MAX}")
    a.lab(lp)
    a.e(f"""
    buffer_load_dword v{t}, v{vo}, {srd(srdn)}, 0 offen sc1
    s_waitcnt vmcnt(0)
    v_cmp_ne_u32 vcc, 1, v{t}
    s_sub_u32 s{scnt}, s{scnt}, 1
    s_cbranch_scc1 {dn}
    s_cmp_eq_u64 vcc, 0
    s_cbranch_scc1 {dn}
    s_sleep {slp}
    s_branch {lp}
    """)
    a.lab(dn)
def poll_z(a, vz, vt):
    mk_srd(a, SRD_D, P_DBG, 256)
    a.e(f"v_and_b32 v{vz}, 7, v{L}\n v_lshlrev_b32 v{vz}, 2, v{vz}")
    poll(a, SRD_D, vz, vt)
def set_flag(a, sslot, v0_, v1_, wave=0):
    sk = a.newlab("nofl")
    if wave is not None: a.e(f"s_cmp_lg_u32 s{S_WAVE}, {wave}\n s_cbranch_scc1 {sk}")
    a.e(f"""
    s_lshl_b32 s74, s{sslot}, 7
    v_mov_b32 v{v0_}, 0
    v_mov_b32 v{v1_}, 1
    s_mov_b64 exec, 1
    buffer_store_dword v{v1_}, v{v0_}, {srd(SRD_FL)}, s74 offen sc1
    s_mov_b64 exec, -1
    """)
    a.lab(sk)

def h_load(a, H, vl16, srdn, soff):
    for j in range(4):
        a.e(f"buffer_load_dwordx4 {v(H+4*j,4)}, v{vl16}, {srd(srdn)}, s{soff} offen offset:{1024*j}")
def h_stage(a, H, G, sslot, vl16, va, st):
    a.e(f"s_mul_i32 s{st}, s{sslot}, {HP}\n v_add_u32 v{va}, s{st}, v{vl16}")
    a.e(f"v_readfirstlane_b32 s{st}, v{H}")
    for j in range(4):
        a.e(f"ds_write_b128 v{va}, {v(H+4*j,4)} offset:{HB+32+1024*j}")
    for j in range(4):
        a.e(f"v_mov_b32_dpp v{G+4*j+3}, v{H+4*((j+1)&3)} wave_rol:1 row_mask:0xf bank_mask:0xf")
    for j in range(4):
        a.e(f"v_mov_b32_dpp v{G+4*j+3}, v{H+4*j} wave_shl:1 row_mask:0xf bank_mask:0xf")
    Z = G + 16
    for i in range(4): a.e(f"v_mov_b32 v{Z+i}, 0")
    a.e(f"s_lshl_b32 s{st}, s{st}, 16\n s_mov_b64 exec, 3\n ds_write_b128 v{va}, {v(Z,4)} offset:{HB}\n s_mov_b64 exec, -1")
    for j in range(4):
        h, g_ = H + 4 * j, G + 4 * j
        for i in range(3): a.e(f"v_alignbit_b32 v{g_+i}, v{h+i+1}, v{h+i}, 16")
        a.e(f"v_alignbit_b32 v{g_+3}, v{g_+3}, v{h+3}, 16")
        a.e(f"ds_write_b128 v{va}, {v(g_,4)} offset:{HB+H_O+32+1024*j}")
    a.e(f"v_writelane_b32 v{Z+3}, s{st}, 1\n s_mov_b64 exec, 3\n ds_write_b128 v{va}, {v(Z,4)} offset:{HB+H_O}\n s_mov_b64 exec, -1")
def conv_sload(a):
    a.e(f"""
    s_add_u32 s6, s{S_CB}, s{S_WAVE}
    s_min_u32 s6, s6, 639
    s_lshl_b32 s6, s6, 1
    s_and_b32 s6, s6, 0xfffffffc
    s_load_dword s5, s[{P_D}:{P_D+1}], s6
    """)

def b_loader(a):
    ra = RA(2)
    t0, t1, t2, t3 = [ra.a() for _ in range(4)]
    vx = [ra.a() for _ in range(4)]
    vw = [ra.a() for _ in range(5)]
    vq = [ra.a() for _ in range(3)]
    l16, la = ra.a(), ra.a()
    LD = ra.a(12, 4); Z = ra.a(2, 2)
    sLW, sSX, sSW, sM0X, sM0W, sM0Q, sSQ, sT, sK = 60, 61, 62, 63, 64, 65, 66, 67, 68
    a.c("B loader wave")
    a.e(f"""
    s_setprio 3
    v_lshrrev_b32 v{t0}, 3, v{L}
    v_lshrrev_b32 v{t1}, 4, v{L}
    v_and_b32 v{t2}, 7, v{L}
    v_mul_u32_u24 v{t0}, 1280, v{t0}
    v_xor_b32 v{t1}, v{t1}, v{t2}
    s_sub_u32 s{sLW}, s{S_WAVE}, 4
    s_lshl_b32 s{sT}, s{S_RT}, 2
    s_add_u32 s{sT}, s{sT}, s{sLW}
    s_mul_i32 s{sSX}, s{sT}, {32*1280}
    s_lshl_b32 s{sM0X}, s{sLW}, 12
    v_lshl_add_u32 v{vx[0]}, v{t1}, 4, v{t0}
    v_xor_b32 v{vx[1]}, 64, v{vx[0]}
    v_add_u32 v{vx[2]}, {2*(8*1280-1024)}, v{vx[0]}
    v_add_u32 v{vx[3]}, {3*(8*1280-1024)}, v{vx[1]}
    v_add_u32 v{vx[1]}, {1*(8*1280-1024)}, v{vx[1]}
    s_movk_i32 s4, 1200
    s_movk_i32 s5, -80
    s_movk_i32 s69, 3840
    """)
    for x in range(320): assert (x * 3277) >> 16 == x // 20
    for x in range(20): assert (x * 52) >> 8 == x // 5
    def woff(j):
        sub = 1024 * j if j < 4 else 0
        o = []; src = L
        if j: o.append(f"v_add_u32 v{t0}, {64*j}, v{L}"); src = t0
        o += [f"v_mul_u32_u24 v{t1}, 3277, v{src}", f"v_lshrrev_b32 v{t1}, 16, v{t1}",
              f"v_mul_u32_u24 v{t2}, 20, v{t1}", f"v_sub_u32 v{t0}, v{src}, v{t2}"]
        if j == 2: o += [f"v_lshrrev_b32 v{t2}, 2, v{t1}", f"v_and_b32 v{t2}, 2, v{t2}", f"v_xor_b32 v{t0}, v{t0}, v{t2}"]
        if j > 2: o += [f"v_xor_b32 v{t0}, 2, v{t0}"]
        o += [f"v_mul_u32_u24 v{t2}, 52, v{t0}", f"v_lshlrev_b32 v{t0}, 4, v{t0}",
              f"v_mad_u32_u24 v{t0}, v{t1}, s69, v{t0}", f"v_bfe_u32 v{t3}, v{t2}, 8, 1",
              f"v_lshrrev_b32 v{t2}, 9, v{t2}", f"v_mad_u32_u24 v{t0}, v{t3}, s4, v{t0}"]
        if sub: o += [f"v_mad_i32_i24 v{t0}, v{t2}, s5, v{t0}", f"v_subrev_u32 v{vw[j]}, {sub}, v{t0}"]
        else: o += [f"v_mad_i32_i24 v{vw[j]}, v{t2}, s5, v{t0}"]
        a.e("\n".join(o))
    def issue_x(st):
        a.e(f"s_add_u32 m0, s{sM0X}, {xsl(st) * XST}\n s_nop 0")
        for j in range(4):
            a.e(f"buffer_load_dwordx4 v{vx[j]}, {srd(SRD_A)}, s{sSX} offen offset:{1024*j} lds")
    def adv():
        a.e(f"s_add_u32 s{sSX}, s{sSX}, 128\n s_add_u32 s{sSW}, s{sSW}, {64*3840}")
    for x in range(80): assert (x * 205) >> 11 == x // 10
    def qoff(j):
        a.e(f"""
        v_add_u32 v{t0}, {64*j}, v{L}
        v_cmp_le_u32 vcc, 88, v{t0}
        v_subrev_u32 v{t1}, 88, v{t0}
        v_min_u32 v{t0}, 79, v{t0}
        v_min_u32 v{t1}, 79, v{t1}
        v_cndmask_b32 v{t0}, v{t0}, v{t1}, vcc
        v_cndmask_b32 v{t2}, 0, 8, vcc
        v_mul_u32_u24 v{t1}, 205, v{t0}
        v_lshrrev_b32 v{t1}, 11, v{t1}
        v_add_u32 v{t2}, v{t2}, v{t1}
        v_mul_u32_u24 v{t1}, 10, v{t1}
        v_sub_u32 v{t0}, v{t0}, v{t1}
        v_lshlrev_b32 v{t0}, 4, v{t0}
        v_mad_u32_u24 v{t0}, v{t2}, s69, v{t0}
        v_subrev_u32 v{vq[j]}, {1024*j}, v{t0}
        """)
    def issue_kv(st, first=99):
        a.e(f"s_add_u32 m0, s{sM0W}, {(st % NST) * WST}\n s_nop 0")
        for j in range(5):
            if j >= first: woff(j)
            if j == 4: a.e(f"s_add_u32 m0, s{sM0W}, {(st % NST) * WST + 4096}\n s_nop 0")
            a.e(f"buffer_load_dwordx4 v{vw[j]}, {srd(SRD_B)}, s{sSW} offen offset:{1024*(j&3)} lds")
    def issue_q(st, first=99):
        a.e(f"s_add_u32 m0, s{sM0Q}, {qsl(st) * QST}\n s_sub_u32 s{sSQ}, s{sSW}, 1280")
        for j in range(3):
            if j >= first: qoff(j)
            if j == 2: a.e("s_mov_b32 exec_hi, 0xff")
            a.e(f"buffer_load_dwordx4 v{vq[j]}, {srd(SRD_B)}, s{sSQ} offen offset:{1024*j} lds")
        a.e("s_mov_b32 exec_hi, -1")
    def issue(st):
        issue_x(st); issue_kv(st); issue_q(st); adv()
    a.e(f"""
    s_mul_i32 s{sSW}, s{S_G}, 160
    s_add_u32 s{sSW}, s{sSW}, 1280
    s_mul_i32 s{sT}, s{sLW}, {16*3840}
    s_add_u32 s{sSW}, s{sSW}, s{sT}
    s_mul_i32 s{sM0W}, s{sLW}, 5120
    s_add_u32 s{sM0W}, s{sM0W}, {WBASE}
    s_mul_i32 s{sM0Q}, s{sLW}, {W2B}
    s_add_u32 s{sM0Q}, s{sM0Q}, {QBASE}
    """)
    def srds():
        a.e("s_waitcnt lgkmcnt(0)")
        mk_srd(a, SRD_A, P_X, NB); mk_srd(a, SRD_B, P_W, 640 * 3840)
    lb, lj = a.newlab("ordB"), a.newlab("ordJ")
    if "noord" not in EX:
        a.e(f"s_add_u32 s{sT}, s{S_RT}, s{S_G}\n s_and_b32 s{sT}, s{sT}, 1\n s_cbranch_scc1 {lb}")
    qoff(0); srds(); issue_x(0); issue_q(0, 1); issue_kv(0, 0)
    a.e(f"s_branch {lj}")
    a.lab(lb)
    woff(0); srds(); issue_kv(0, 1); issue_x(0); issue_q(0, 0)
    a.lab(lj)
    adv()
    issue(1)
    stamp(a, 1)
    for nb in range(10):
        a.e(f"s_waitcnt vmcnt({12 if nb < 9 else 0})\n s_barrier")
        if nb == 5:
            mk_srd(a, SRD_D, P_DBG, 256)
            a.e(f"v_and_b32 v{l16}, 7, v{L}\n v_lshlrev_b32 v{l16}, 2, v{l16}")
            a.e(f"buffer_load_dword v{la}, v{l16}, {srd(SRD_D)}, 0 offen sc1")
        if nb < 8: issue(nb + 2)
        if nb == 4: mk_fl(a)
        if nb == 8:
            zok = a.newlab("zok")
            a.e(f"s_setprio 0\n v_cmp_ne_u32 vcc, 1, v{la}\n s_nop 1\n s_cmp_eq_u64 vcc, 0\n s_cbranch_scc1 {zok}")
            poll_z(a, t1, t2)
            a.lab(zok)
    stamp(a, 2)
    a.e("s_barrier")
    a.e("s_call_b64 s[72:73], L_WO")
    stamp(a, 3)
    a.e("s_barrier\n s_barrier\n s_branch L_G2")

def phi4(regs, tmps, sLOG, sEPS):
    o = []
    if "nopk" not in EX:
        r, t = regs[0], tmps[0]
        o += [f"v_pk_mul_f32 {v(t+i,2)}, {v(r+i,2)}, s[66:67]" for i in (0, 2)]
        o += [f"v_exp_f32_e64 v{t+i}, v{t+i} clamp" for i in range(4)]
        o += [f"v_max_f32 v{r+i}, s{sEPS}, v{r+i}" for i in range(4)]
        o += [f"v_pk_add_f32 {v(r+i,2)}, {v(r+i,2)}, {v(t+i,2)}" for i in (0, 2)]
        return o
    for r, t in zip(regs, tmps): o.append(f"v_mul_f32 v{t}, s{sLOG}, v{r}")
    for r, t in zip(regs, tmps): o.append(f"v_exp_f32_e64 v{t}, v{t} clamp")
    for r, t in zip(regs, tmps): o.append(f"v_max_f32 v{r}, s{sEPS}, v{r}")
    for r, t in zip(regs, tmps): o.append(f"v_add_f32 v{r}, v{r}, v{t}")
    return o

def b_compute(a):
    if "steps" in EX:
        def stamp2(a, i): pass
    else:
        stamp2 = stamp
    ra = RA(2)
    lr, g, t0, t1, t2 = [ra.a() for _ in range(5)]
    xa = [ra.a(), ra.a()]
    wa = [ra.a() for _ in range(5)]
    ad = [ra.a() for _ in range(6)]
    wb = [ra.a(), ra.a()]; xb = [ra.a(), ra.a()]
    ka, kx = ra.a(), [ra.a(), ra.a()]
    at = [ra.a() for _ in range(4)]
    l16, la = ra.a(), ra.a()
    ix = ra.a(4, 4)
    XF = [[ra.a(4, 4) for _ in range(4)] for _ in range(2)]
    WF = [[ra.a(4, 4) for _ in range(5)] for _ in range(2)]
    QF = [ra.a(4, 4) for _ in range(5)]
    ACC = [[ra.a(4, 4) for _ in range(5)] for _ in range(4)]
    QA = [[ra.a(4, 4) for _ in range(5)] for _ in range(2)]
    sRH, sCH, sT, sLOG, sEPS, sSO = 60, 61, 62, 63, 64, 65
    MF = "v_mfma_f32_16x16x32_bf16"; M32 = "v_mfma_f32_32x32x16_bf16"
    a.c("B compute wave")
    a.e(f"""
    s_lshr_b32 s{sRH}, s{S_WAVE}, 1
    s_and_b32 s{sCH}, s{S_WAVE}, 1
    s_mov_b32 s{sLOG}, {f32(1.4426950408889634)}
    s_mov_b32 s66, s{sLOG}
    s_mov_b32 s67, s{sLOG}
    s_mov_b32 s{sEPS}, {f32(1e-6)}
    v_and_b32 v{lr}, 15, v{L}
    v_lshrrev_b32 v{g}, 4, v{L}
    s_lshl_b32 s{sT}, s{S_WAVE}, 12
    v_lshrrev_b32 v{t0}, 1, v{lr}
    v_xor_b32 v{t0}, v{t0}, v{g}
    v_lshlrev_b32 v{t0}, 4, v{t0}
    v_lshl_add_u32 v{t0}, v{lr}, 7, v{t0}
    v_add_u32 v{xa[0]}, s{sT}, v{t0}
    v_xor_b32 v{xa[1]}, 64, v{xa[0]}
    v_xor_b32 v{xb[0]}, 0x1000, v{xa[0]}
    v_xor_b32 v{xb[1]}, 0x1000, v{xa[1]}
    v_lshrrev_b32 v{t0}, 2, v{lr}
    v_lshl_add_u32 v{t0}, v{g}, 3, v{t0}
    v_mul_u32_u24 v{t0}, 320, v{t0}
    v_add_u32 v{t0}, {WBASE}, v{t0}
    v_and_b32 v{t1}, 1, v{g}
    v_lshlrev_b32 v{t1}, 5, v{t1}
    s_mul_i32 s{sT}, s{sCH}, 160
    v_and_b32 v{t2}, 3, v{lr}
    """)
    for t in range(5):
        w = wa[t]
        if t < 4:
            a.e(f"v_lshl_add_u32 v{w}, v{t2}, 3, s{sT}\n v_add_u32 v{w}, {40*t}, v{w}")
        else:
            a.e(f"v_mul_u32_u24 v{w}, 40, v{t2}\n v_add_u32 v{w}, s{sT}, v{w}\n v_add_u32 v{w}, 32, v{w}")
        a.e(f"v_xor_b32 v{w}, v{w}, v{t1}\n v_add_u32 v{w}, v{w}, v{t0}")
    a.e(f"""
    v_lshrrev_b32 v{t0}, 1, v{g}
    v_mul_u32_u24 v{t0}, {W2B}, v{t0}
    v_and_b32 v{t1}, 1, v{g}
    v_mul_u32_u24 v{t1}, 1408, v{t1}
    v_add3_u32 v{t0}, v{t0}, v{t1}, 32
    v_lshrrev_b32 v{t1}, 2, v{lr}
    v_mul_u32_u24 v{t1}, 160, v{t1}
    v_add_u32 v{t0}, v{t0}, v{t1}
    v_add_u32 v{t0}, {QBASE-32}, v{t0}
    v_lshl_add_u32 v{wb[0]}, v{t2}, 3, v{t0}
    v_mul_u32_u24 v{t1}, 40, v{t2}
    v_add3_u32 v{wb[1]}, v{t0}, v{t1}, 32
    """)
    a.e(f"v_mov_b32 v{t0}, s{sEPS}\n v_cmp_gt_u32 vcc, 8, v{lr}")
    a.e(f"""
    s_mul_i32 s{sT}, s{sRH}, {IMGP}
    s_mul_i32 s{sSO}, s{sCH}, {GB//2}
    s_add_u32 s{sT}, s{sT}, s{sSO}
    s_add_u32 s{sT}, s{sT}, {IMG}
    """)
    for rt in range(4):
        for i in range(4):
            a.e(f"v_cndmask_b32 v{ACC[rt][4]+i}, 0, v{t0}, vcc")
        for i in range(8): a.e(f"v_mov_b32 v{ACC[rt][0]+i}, s{sEPS}")
    for i in range(40): a.e(f"v_mov_b32 v{QA[0][0]+i}, s{sEPS}")
    z4 = XF[0][0]
    a.e(f"v_mov_b32 v{z4}, 1.0")
    for i in range(1, 8): a.e(f"v_mov_b32 v{z4+i}, 0")
    a.e(f"""
    v_min_u32 v{t0}, 143, v0
    v_lshlrev_b32 v{t0}, 6, v{t0}
    v_add_u32 v{t0}, {IMG+48}, v{t0}
    ds_write_b128 v{t0}, {v(z4,4)}
    ds_write_b128 v{t0}, {v(z4+4,4)} offset:{IMGP}
    """)
    for x in range(128): assert (x * 171) >> 9 == x // 3
    a.e(f"""
    v_cmp_eq_u32 vcc, 0, v{lr}
    v_add_u32 v{t0}, 8, v{lr}
    v_add_u32 v{t1}, 4, v{lr}
    v_cndmask_b32 v{t0}, v{t0}, 20, vcc
    v_cndmask_b32 v{t1}, v{t1}, 20, vcc
    """)
    for i, row in enumerate((lr, t0, t1)):
        for k in range(2):
            d = ad[2 * i + k]
            a.e(f"v_mad_u32_u24 v{d}, v{row}, 5, {'v%d' % g if k == 0 else '4'}")
            a.e(f"v_mul_u32_u24 v{t2}, 171, v{d}\n v_lshrrev_b32 v{t2}, 9, v{t2}\n v_add_u32 v{d}, v{d}, v{t2}\n v_lshl_add_u32 v{d}, v{d}, 4, s{sT}")
    a.e(f"""
    v_lshlrev_b32 v{at[0]}, 2, v0
    v_add_u32 v{at[1]}, 4096, v{at[0]}
    v_add_u32 v{at[2]}, 8192, v{at[0]}
    v_add_u32 v{at[3]}, {IMG}, v{at[0]}
    v_lshlrev_b32 v{l16}, 4, v{L}
    v_and_b32 v{t0}, 31, v{L}
    v_lshlrev_b32 v{t1}, 2, v{lr}
    s_mov_b32 s{sT}, 0x54325410
    v_lshrrev_b32 v{t1}, v{t1}, s{sT}
    v_and_b32 v{t1}, 15, v{t1}
    v_add_u32 v{t1}, 16, v{t1}
    v_cmp_lt_u32 vcc, 23, v{t0}
    s_mov_b32 s{sT}, {KVI}
    s_nop 0
    v_cndmask_b32 v{t1}, v{t1}, 21, vcc
    v_cmp_gt_u32 vcc, 16, v{t0}
    v_lshrrev_b32 v{t2}, 5, v{L}
    s_nop 0
    v_cndmask_b32 v{t1}, v{t1}, v{t0}, vcc
    v_mad_u32_u24 v{t1}, v{t1}, 40, s{sT}
    v_lshl_add_u32 v{ka}, v{t2}, 4, v{t1}
    v_add_u32 v{t1}, 32, v{t1}
    v_cmp_eq_u32 vcc, 0, v{t2}
    v_mov_b32 v{t0}, {KVI+840}
    s_nop 0
    v_cndmask_b32 v{kx[0]}, v{t0}, v{t1}, vcc
    v_cndmask_b32 v{kx[1]}, v{t1}, v{t0}, vcc
    s_mul_i32 s{sT}, s{S_WAVE}, 880
    s_add_u32 s{sT}, s{sT}, {KVI}
    v_and_b32 v{t0}, 3, v{L}
    v_lshl_add_u32 v{t0}, v{t0}, 3, s{sT}
    v_lshrrev_b32 v{t1}, 2, v{L}
    v_mad_u32_u24 v{la}, v{t1}, 24, v{t0}
    s_mul_i32 s{sT}, s{S_G}, {GB}
    s_add_u32 s{sT}, s{sT}, {WS_KV}
    s_waitcnt lgkmcnt(0)
    """)
    mk_srd(a, SRD_C, P_WS, GB, off_sreg=sT)
    a.e(f"s_mul_i32 s{sSO}, s{S_WAVE}, {GB//4}\n s_add_u32 s{sT}, s{sT}, s{sSO}")
    mk_srd(a, SRD_A, P_WS, GB // 4, off_sreg=sT)
    mk_srd(a, SRD_B, P_WS, T_BYTES, off=WS_PQ)
    mk_fl(a)
    def reads(st, ks):
        sl = st % NST
        xs = [f"ds_read_b128 {v(XF[ks][rt],4)}, v{xa[ks] if rt < 2 else xb[ks]} offset:{xsl(st)*XST + (rt&1)*2048}" for rt in range(4)]
        ws = [f"ds_read_b64_tr_b16 {v(WF[ks][t]+2*h,2)}, v{wa[t]} offset:{sl*WST + ks*10240 + h*1280}" for t in range(5) for h in range(2)]
        qs = [f"ds_read_b64_tr_b16 {v(QF[t]+2*h,2)}, v{wb[t>>2]} offset:{qsl(st)*QST + ks*2*W2B + h*640 + 40*(t&3)}" for t in range(5) for h in range(2)]
        if st >= 10 - ND: qs = []
        return xs + ws[:6] + qs + ws[6:]
    def mfq(ks):
        return [f"{MF} {v(QA[rt][t],4)}, {v(QF[t],4)}, {v(XF[ks][rt],4)}, {v(QA[rt][t],4)}" for t in range(5) for rt in range(2)]
    def mfkv(ks, first=False):
        o = []
        for rt in range(4):
            for t in range(5):
                d = ACC[rt][t]
                o.append(f"{MF} {v(d,4)}, {v(XF[ks][rt],4)}, {v(WF[ks][t],4)}, {'0' if (first and t in (2, 3)) else v(d,4)}")
        return o
    def mfmas(st, ks): return (mfq(ks) if st < 10 - ND else []) + mfkv(ks, st == 0 and ks == 0)
    def spread(M, F):
        out = []; n = len(M); fi = 0
        for i, m in enumerate(M):
            out.append(m)
            tgt = (len(F) * (i + 1) + n - 1) // n
            out += F[fi:tgt]; fi = tgt
        return out
    for st in range(10):
        a.c(f"step {st}")
        a.e("s_barrier")
        if (st == 0 or "steps" in EX) and "steps2" not in EX: stamp(a, 1 + st)
        if st == 0:
            a.e("\n".join(reads(0, 0)))
        else:
            a.e("\n".join(interleave2(mfmas(st - 1, 1), reads(st, 0), 1)))
        a.e("s_waitcnt lgkmcnt(0)")
        a.e("\n".join(interleave2(mfmas(st, 0), reads(st, 1), 1)))
        a.e("s_waitcnt lgkmcnt(0)")
    a.e("s_barrier")
    stamp2(a, 2)
    tm = [ix + i for i in range(4)]
    last = mfkv(1) + (mfq(1) if ND == 0 else [])
    names = ["T0", "T1", "T2", "T3", "T4A", "T4B"]
    k0 = [XF[0][i] for i in range(4)] + [WF[0][0], WF[0][1]]
    k1 = [WF[0][2], WF[0][3], WF[0][4], XF[1][0], XF[1][1], XF[1][2]]
    P = {n: [k0[i], k1[i]] for i, n in enumerate(names)}
    V = [f"v_cmp_gt_u32 vcc, 8, v{lr}", f"v_mov_b32 v{t0}, 0x3f803f80"]
    for rt in range(4):
        k, h = rt >> 1, rt & 1
        for t, n in ((2, "T2"), (3, "T3"), (4, "T4B")):
            r = ACC[rt][t]; d = P[n][k] + 2 * h
            V += [f"v_cvt_pk_bf16_f32 v{d}, v{r}, v{r+1}", f"v_cvt_pk_bf16_f32 v{d+1}, v{r+2}, v{r+3}"]
        d = P["T4B"][k] + 2 * h
        V += [f"v_cndmask_b32 v{d}, v{d}, v{t0}, vcc", f"v_cndmask_b32 v{d+1}, v{d+1}, v{t0}, vcc"]
        for t, n in ((0, "T0"), (1, "T1"), (4, "T4A")):
            r = [ACC[rt][t] + i for i in range(4)]; d = P[n][k] + 2 * h
            V += phi4(r, tm, sLOG, sEPS)
            V += [f"v_cvt_pk_bf16_f32 v{d}, v{r[0]}, v{r[1]}", f"v_cvt_pk_bf16_f32 v{d+1}, v{r[2]}, v{r[3]}"]
    prods = [("T0", "T2"), ("T0", "T4B"), ("T4A", "T2"), ("T1", "T3"), ("T1", "T4B"), ("T4A", "T3"), ("T4A", "T4B")]
    R = [ACC[0][0] + 4 * i for i in range(7)]
    kvm = lambda k: [f"{MF} {v(R[i],4)}, {v(P[x][k],4)}, {v(P[y][k],4)}, {'0' if k == 0 else v(R[i],4)}" for i, (x, y) in enumerate(prods)]
    half = 2 + (len(V) - 2) // 2
    a.e("\n".join(last[:10] + interleave2(last[10:], V[:half + 4], 2)))
    a.e("\n".join(interleave2(kvm(0), V[half + 4:], 8)))
    a.e("s_nop 1")
    a.e("\n".join(kvm(1)))
    a.e("s_nop 3")
    HBY = GB // 4
    def wr(i, addr, off, lo, hi):
        a.e(f"s_mov_b32 exec_lo, {lo:#x}\n s_mov_b32 exec_hi, {hi:#x}")
        a.e(f"ds_write_b128 v{addr}, {v(R[i],4)} offset:{off}")
    a.e(f"ds_write_b128 v{ad[0]}, {v(R[0],4)}")
    a.e(f"ds_write_b128 v{ad[0]}, {v(R[3],4)} offset:{HBY}")
    wr(1, ad[2], 0, 0x0f010f01, 0x0f010f01)
    wr(4, ad[4], HBY, 0xf001f001, 0xf001f001)
    wr(2, ad[1], 0, 0x0000ffff, 0)
    wr(5, ad[1], HBY, 0xffff0000, 0)
    wr(6, ad[3], 0, 0x00000f01, 0)
    wr(6, ad[5], HBY, 0xf0010000, 0)
    a.e("s_mov_b64 exec, -1\n s_waitcnt lgkmcnt(0)\n s_barrier")
    stamp2(a, 3)
    fr = ACC[0][0]
    for n in range(9):
        a.e(f"ds_read2st64_b32 {v(fr+2*n,2)}, v{at[3]} offset0:{4*n} offset1:{IMGP//256+4*n}")
    AT = []
    for n in range(9):
        AT += [f"v_add_f32 v{fr+2*n}, v{fr+2*n}, v{fr+2*n+1}",
               f"buffer_atomic_add_f32 v{fr+2*n}, v{at[n>>2]}, {srd(SRD_C)}, 0 offen offset:{1024*(n&3)}"]
    DB = [(XF[0][0], WF[0][0]), (XF[1][0], WF[1][0]), (XF[0][2], QF[0]), (XF[1][2], ACC[3][0])]
    def drd(u):
        if u >= 2 * ND: return []
        st, ks = 10 - ND + u // 2, u & 1; xr, wr_ = DB[u]
        return ([f"ds_read_b128 {v(xr+4*rt,4)}, v{xa[ks]} offset:{xsl(st)*XST + rt*2048}" for rt in range(2)] +
                [f"ds_read_b64_tr_b16 {v(wr_+4*t+2*h,2)}, v{wb[t>>2]} offset:{qsl(st)*QST + ks*2*W2B + h*640 + 40*(t&3)}" for t in range(5) for h in range(2)])
    def dmf(u):
        xr, wr_ = DB[u]
        return [f"{MF} {v(QA[rt][t],4)}, {v(wr_+4*t,4)}, {v(xr+4*rt,4)}, {v(QA[rt][t],4)}" for t in range(5) for rt in range(2)]
    a.e("s_waitcnt lgkmcnt(0)")
    a.e("\n".join(spread(AT, drd(0) + drd(1))))
    for u in range(0, 2 * ND, 2):
        a.e("s_waitcnt lgkmcnt(0)")
        M = dmf(u) + dmf(u + 1)
        a.e("\n".join(spread(M[:14], drd(u + 2) + drd(u + 3)) + M[14:]))
    EXT = XF[0][0]
    KF = [EXT + 4 * h for h in range(4)]
    KX = EXT + 16
    OB = [EXT + 28 + 4 * t for t in range(5)]
    OX = EXT + 48; rc = EXT + 52; LD = EXT + 56
    CT = [ACC[0][0] + 16 + 16 * h for h in range(4)]
    a.e(f"""
    s_lshl_b32 s{sT}, s{S_RT}, 2
    s_add_u32 s{sT}, s{sT}, s{S_WAVE}
    s_lshl_b32 s{sT}, s{sT}, 3
    s_add_u32 s{sT}, s{sT}, s{S_G}
    s_mul_i32 s{sSO}, s{sT}, 5120
    s_add_u32 s{sRH}, s{sSO}, 4096
    s_add_u32 s{sT}, s{sT}, 64
    s_mul_i32 s{sCH}, s{S_WAVE}, 880
    s_add_u32 s{sCH}, s{sCH}, {KVI}
    v_lshl_add_u32 v{t0}, v{L}, 3, s{sCH}
    """)
    for i in (2, 3, 8, 9): a.e(f"v_mov_b32 v{KX+i}, 0")
    a.e(f"s_mov_b64 exec, 31\n ds_write_b64 v{t0}, {v(KX+2,2)} offset:840\n s_mov_b64 exec, -1")
    def phiq(t):
        o = []; ob = OB[t]
        for h in range(2):
            r = [QA[h][t] + i for i in range(4)]
            o += phi4(r, tm, sLOG, sEPS)
            o += [f"v_cvt_pk_bf16_f32 v{ob+2*h}, v{r[0]}, v{r[1]}", f"v_cvt_pk_bf16_f32 v{ob+2*h+1}, v{r[2]}, v{r[3]}"]
        o += ["s_nop 1", f"v_permlane16_swap_b32 v{ob}, v{ob+2}", f"v_permlane16_swap_b32 v{ob+1}, v{ob+3}"]
        return o
    def omf(h):
        c = v(CT[h], 16)
        return [f"{M32} {c}, {v(KX+6*(h>>1)+2*(h&1),4)}, {v(OB[4],4)}, 0", "s_nop 0",
                f"{M32} {c}, {v(KF[h],4)}, {v(OB[h],4)}, {c}"]
    def norm(h):
        c = CT[h]; d = OB[h]
        o = [f"v_add_f32 v{rc}, s{sEPS}, v{c+10}", f"v_rcp_f32 v{rc}, v{rc}", "s_nop 0"]
        o += [f"v_mul_f32 v{c+i}, v{c+i}, v{rc}" for i in range(10)]
        o += [f"v_cvt_pk_bf16_f32 v{d+i}, v{c+2*i}, v{c+2*i+1}" for i in range(4)]
        o += [f"buffer_store_dwordx4 {v(d,4)}, v{l16}, {srd(SRD_B)}, s{sSO} offen offset:{1024*h} sc1"]
        o += [f"v_cvt_pk_bf16_f32 v{OX+h}, v{c+8}, v{c+9}"]
        return o
    def kvload():
        for n in range(3):
            a.e(f"buffer_load_dwordx4 {v(LD+4*n,4)}, v{l16}, {srd(SRD_A)}, 0 offen offset:{1024*n} sc1")
    KP = int(os.environ.get("KP", "6"))
    for i in range(5):
        if i == KP: kvload()
        a.e("\n".join(phiq(i)))
    stamp2(a, 4)
    lf, lv, ld = a.newlab("kvf"), a.newlab("kvv"), a.newlab("kvd")
    a.e(f"s_mov_b32 s69, {f32(16.0)}\n s_mov_b32 s70, 0x88888888\n s_mov_b32 s71, 0x88888888\n s_mov_b32 s74, {SPIN_MAX}")
    if KP < 5: a.e(f"s_branch {lv}")
    if KP == 6: a.e("s_waitcnt vmcnt(0)")
    a.lab(lf)
    kvload()
    a.lab(lv)
    a.e(f"""
    s_waitcnt vmcnt(0)
    v_min_f32 v{t0}, v{LD}, v{LD+4}
    v_cmp_neq_f32 s[4:5], s69, v{LD+8}
    v_cmp_neq_f32 vcc, s69, v{t0}
    s_sub_u32 s74, s74, 1
    s_cbranch_scc1 {ld}
    s_and_b32 s4, s4, 0x888
    s_and_b64 vcc, vcc, s[70:71]
    s_or_b32 vcc_lo, vcc_lo, s4
    s_cmp_eq_u64 vcc, 0
    s_cbranch_scc1 {ld}
    s_sleep {os.environ.get("KSL", "2")}
    s_branch {lf}
    """)
    a.lab(ld)
    for n in range(3):
        r = LD + 4 * n
        a.e(f"v_cvt_pk_bf16_f32 v{r}, v{r}, v{r+1}\n v_cvt_pk_bf16_f32 v{r+1}, v{r+2}, v{r+3}")
    a.e("s_mov_b32 exec_lo, 0x77777777\n s_mov_b32 exec_hi, 0x77777777")
    for n in range(3):
        if n == 2: a.e("s_mov_b64 exec, 0x777")
        a.e(f"ds_write_b64 v{la}, {v(LD+4*n,2)} offset:{384*n}")
    a.e("s_mov_b64 exec, -1\n s_waitcnt lgkmcnt(0)\n s_barrier")
    stamp2(a, 5)
    if STAMPS: a.e("s_waitcnt lgkmcnt(0)")
    for h in range(4):
        a.e(f"ds_read_b64 {v(KX+6*(h>>1)+4*(h&1),2)}, v{kx[h>>1]} offset:{880*h}")
        a.e(f"ds_read_b64 {v(KF[h],2)}, v{ka} offset:{880*h}\n ds_read_b64 {v(KF[h]+2,2)}, v{ka} offset:{880*h+8}")
    for h in range(3):
        a.e(f"s_waitcnt lgkmcnt({9-3*h})")
        a.e("\n".join(omf(h)))
    a.e("s_waitcnt lgkmcnt(0)\n s_nop 3")
    N0 = norm(0)
    a.e("\n".join(N0[:6] + omf(3)[:1] + N0[6:12] + omf(3)[2:] + N0[12:] + norm(1) + norm(2) + norm(3)))
    a.e(f"buffer_store_dwordx4 {v(OX,4)}, v{l16}, {srd(SRD_B)}, s{sRH} offen sc1")
    stamp2(a, 6)
    a.e("s_waitcnt vmcnt(0)")
    set_flag(a, sT, t0, t1, wave=None)
    a.e("s_branch L_G2")
    return ra.hi

PF0 = int(os.environ.get("PF0", "1")); AH = int(os.environ.get("AH", "0"))
def pf_lanes(a, vW, vX, t0, t1, sU, sC):
    for x in range(64): assert (x * 52) >> 8 == x // 5
    a.e(f"""
    v_min_u32 v{t0}, 59, v{L}
    v_mul_u32_u24 v{t1}, 52, v{t0}
    v_lshrrev_b32 v{t1}, 8, v{t1}
    v_mul_u32_u24 v{vX}, 5, v{t1}
    v_sub_u32 v{t0}, v{t0}, v{vX}
    v_lshlrev_b32 v{t0}, 7, v{t0}
    s_movk_i32 s{sU}, 1280
    v_mad_u32_u24 v{vW}, v{t1}, s{sU}, v{t0}
    v_mul_u32_u24 v{vX}, 1280, v{L}
    s_and_b32 s{sC}, s{S_XI}, 1
    s_mul_i32 s{sC}, s{sC}, 640
    """)
def pf_one(a, sT, sA, sB, sU, sC, vW, vX, dst):
    for x in range(300): assert (x * 2731) >> 16 == x // 24
    lx, le = a.newlab("px"), a.newlab("pe")
    a.e(f"""
    s_mul_i32 s{sA}, s{sT}, 2731
    s_lshr_b32 s{sA}, s{sA}, 16
    s_mul_i32 s{sB}, s{sA}, 24
    s_sub_u32 s{sB}, s{sT}, s{sB}
    s_add_u32 s{sA}, s{sA}, {PF0}
    s_cmp_lt_u32 s{sB}, 8
    s_cbranch_scc1 {lx}
    s_sub_u32 s{sB}, s{sB}, 8
    s_lshl_b32 s{sB}, s{sB}, 2
    s_lshl_b32 s{sA}, s{sA}, 6
    s_add_u32 s{sA}, s{sA}, s{sB}
    s_mul_i32 s{sA}, s{sA}, 3840
    s_add_u32 s{sA}, s{sA}, s{sC}
    buffer_load_dword v{dst}, v{vW}, {srd(SRD_B)}, s{sA} offen
    s_branch {le}
    """)
    a.lab(lx)
    a.e(f"""
    s_lshr_b32 s{sU}, s{S_XI}, 1
    s_lshl_b32 s{sU}, s{sU}, 3
    s_add_u32 s{sB}, s{sB}, s{sU}
    s_mul_i32 s{sB}, s{sB}, {64*1280}
    s_lshl_b32 s{sA}, s{sA}, 7
    s_add_u32 s{sA}, s{sA}, s{sB}
    buffer_load_dword v{dst}, v{vX}, {srd(SRD_A)}, s{sA} offen
    """)
    a.lab(le)

def a1(a):
    ra = RA(2)
    t0, t1, t2 = [ra.a() for _ in range(3)]
    vo = [ra.a() for _ in range(5)]
    lr, g, ad, adh, so_u, otap = [ra.a() for _ in range(6)]
    taps = [ra.a(2) for _ in range(5)]
    KR = [ra.a(6, 2) for _ in range(5)]; VR = [ra.a(4, 2) for _ in range(5)]
    W = [ra.a(5) for _ in range(5)]; U = ra.a(8); O = [ra.a(4, 4) for _ in range(2)]; X = ra.a(4)
    vz = ra.a()
    sTI, sCH, sSO, sM0, sT, sSH, sU, sCG = 60, 61, 62, 63, 64, 65, 66, 67
    a.c("A1: 32 rows x 320 channels")
    a.e(f"""
    s_sub_u32 s{sT}, s{S_J}, 24
    s_lshl_b32 s{sT}, s{sT}, 3
    s_add_u32 s{sT}, s{sT}, s{S_XI}
    s_lshr_b32 s{sTI}, s{sT}, 1
    s_and_b32 s{sCH}, s{sT}, 1
    s_lshl_b32 s{S_ASLOT}, s{sCH}, 5
    s_add_u32 s{S_ASLOT}, s{S_ASLOT}, s{sTI}
    s_lshr_b32 s{sCG}, s{S_WAVE}, 1
    s_lshl_b32 s{sT}, s{sTI}, 3
    s_add_u32 s{sT}, s{sT}, s{S_WAVE}
    s_mul_i32 s{sSO}, s{sT}, {8*1280}
    s_mul_i32 s{sT}, s{sCH}, 640
    s_add_u32 s{sSO}, s{sSO}, s{sT}
    s_mul_i32 s{sM0}, s{S_WAVE}, 5120
    s_and_b32 s{sT}, s{S_WAVE}, 1
    s_lshl_b32 s{sT}, s{sT}, 2
    """)
    for x in range(320): assert (x * 1639) >> 16 == x // 40
    a.e(f"s_movk_i32 s{sU}, 1280")
    def koff(j):
        sub = 1024 * j if j < 4 else 0
        o = []; src = L
        if j: o.append(f"v_add_u32 v{t0}, {64*j}, v{L}"); src = t0
        o += [f"v_mul_u32_u24 v{t1}, 1639, v{src}", f"v_lshrrev_b32 v{t1}, 16, v{t1}",
              f"v_mul_u32_u24 v{t2}, 40, v{t1}", f"v_sub_u32 v{t0}, v{src}, v{t2}",
              f"v_and_or_b32 v{t2}, v{t1}, 2, s{sT}", f"v_xor_b32 v{t0}, v{t0}, v{t2}", f"v_lshlrev_b32 v{t0}, 4, v{t0}"]
        if sub: o += [f"v_mad_u32_u24 v{t0}, v{t1}, s{sU}, v{t0}", f"v_subrev_u32 v{vo[j]}, {sub}, v{t0}"]
        else: o += [f"v_mad_u32_u24 v{vo[j]}, v{t1}, s{sU}, v{t0}"]
        a.e("\n".join(o))
    koff(0); koff(1)
    a.e("s_waitcnt lgkmcnt(0)")
    mk_srd(a, SRD_A, P_K, NB); mk_srd(a, SRD_B, P_V, NB)
    def dma1(srdn, lbase, so, j):
        a.e(f"s_add_u32 m0, s{sM0}, {lbase + (4096 if j == 4 else 0)}\n s_nop 0")
        a.e(f"buffer_load_dwordx4 v{vo[j]}, {srd(srdn)}, s{so} offen offset:{1024*(j&3)} lds")
    for j in range(5):
        if j >= 2: koff(j)
        dma1(SRD_A, A_KB, sSO, j); dma1(SRD_B, A_VB, sSO, j)
        if j == 1:
            mk_srd(a, SRD_D, P_SH, 640 * 8)
            a.e(f"""
            v_and_b32 v{lr}, 15, v{L}
            s_mul_i32 s{sSH}, s{sCH}, 320
            v_add_u32 v{so_u}, s{sSH}, v{lr}
            v_lshlrev_b32 v{otap}, 3, v{so_u}
            s_lshl_b32 s{sSH}, s{sCG}, 7
            """)
            for n in range(5):
                a.e(f"buffer_load_dwordx2 {v(taps[n],2)}, v{otap}, {srd(SRD_D)}, s{sSH} offen offset:{512*n}")
    lab = a.newlab("a1_nohalo")
    a.e(f"""
    s_cmp_lg_u32 s{S_WAVE}, 7
    s_cbranch_scc1 {lab}
    s_sub_u32 s{sSH}, s{sSO}, {64*1280}
    s_cmp_eq_u32 s{sTI}, 0
    s_cselect_b32 s{sSH}, {NB}, s{sSH}
    """)
    for j in (2, 3, 4): dma1(SRD_A, A_KB - 8 * 5120, sSH, j)
    a.lab(lab)
    NH = 0
    if AH:
        NH = 1
        nhp = a.newlab("nohelp")
        pf_lanes(a, 240, 241, t0, t1, 68, 69)
        mk_srd(a, SRD_A, P_X, NB); mk_srd(a, SRD_B, P_W, 640 * 3840)
        a.e(f"""
        s_lshl_b32 s70, s{S_WAVE}, 3
        s_add_u32 s70, s70, s{S_J}
        s_sub_u32 s70, s70, 24
        s_min_u32 s70, s70, {AH-1}
        s_add_u32 s70, s70, {24*(10-PF0)-AH}
        s_barrier
        s_cmp_lt_u32 s{S_WAVE}, {AH//8}
        s_cbranch_scc1 {nhp}
        s_mov_b64 exec, 1
        """)
        a.lab(nhp)
        pf_one(a, 70, 71, 72, 68, 69, 240, 241, 244)
        a.e("s_mov_b64 exec, -1")
    mk_srd(a, SRD_D, P_DBG, 256)
    a.e(f"v_and_b32 v{vz}, 7, v{L}\n v_lshlrev_b32 v{vz}, 2, v{vz}")
    mk_srd(a, SRD_C, P_WS, T_BYTES)
    mk_fl(a)
    conv_sload(a)
    a.e(f"""
    v_lshrrev_b32 v{g}, 4, v{L}
    v_lshrrev_b32 v{t0}, 2, v{lr}
    v_lshl_add_u32 v{t1}, v{g}, 3, v{t0}
    v_mul_u32_u24 v{ad}, 640, v{t1}
    v_and_b32 v{t2}, 3, v{lr}
    v_lshl_add_u32 v{ad}, v{t2}, 3, v{ad}
    s_and_b32 s{sSH}, s{S_WAVE}, 1
    s_mul_i32 s{sU}, s{sSH}, {32*640}
    s_add_u32 s{sU}, s{sU}, {A_KB}
    v_add_u32 v{ad}, s{sU}, v{ad}
    v_lshrrev_b32 v{t0}, 1, v{t0}
    v_and_b32 v{t1}, 1, v{g}
    v_lshl_or_b32 v{t0}, v{t1}, 1, v{t0}
    v_xor_b32 v{t0}, s{sCG}, v{t0}
    v_lshlrev_b32 v{t0}, 5, v{t0}
    v_xor_b32 v{t1}, 64, v{t0}
    v_add_u32 v{adh}, v{t1}, v{ad}
    v_subrev_u32 v{adh}, {4*640}, v{adh}
    v_add_u32 v{ad}, v{t0}, v{ad}
    v_lshlrev_b32 v{t0}, 12, v{so_u}
    s_lshl_b32 s{sT}, s{sTI}, 1
    s_add_u32 s{sT}, s{sT}, s{sSH}
    s_lshl_b32 s{sT}, s{sT}, 6
    v_lshlrev_b32 v{t1}, 4, v{g}
    v_add_u32 v{t1}, s{sT}, v{t1}
    v_sub_u32 v{so_u}, 4080, v{t1}
    v_add_u32 v{so_u}, v{so_u}, v{t0}
    s_lshl_b32 s{sU}, s{sCG}, 16
    """)
    def tapprep(n):
        tp, w = taps[n], W[n]
        a.e(f"""
        v_alignbit_b32 v{w}, v{tp}, v{tp}, 16
        v_alignbit_b32 v{w+1}, v{tp+1}, v{tp+1}, 16
        v_and_b32 v{w+2}, 0xffff0000, v{tp}
        v_and_b32 v{w+3}, 0xffff, v{tp}
        v_and_b32 v{w+4}, 0xffff, v{tp+1}
        v_or_b32 v{w+2}, v{w+2}, v{w+4}
        v_and_b32 v{w+4}, 0xffff0000, v{tp+1}
        """)
    a.e(f"s_waitcnt vmcnt({6+NH})")
    for n in range(5): tapprep(n)
    stamp(a, 1)
    a.e(f"s_waitcnt vmcnt({NH}) lgkmcnt(0)\n s_barrier")
    a.e(f"buffer_load_dword v{vz}, v{vz}, {srd(SRD_D)}, 0 offen sc1")
    stamp(a, 2)
    if STAMPS: a.e("s_waitcnt lgkmcnt(0)")
    def rd(n):
        o = 128 * n
        return [f"ds_read_b64_tr_b16 {v(KR[n],2)}, v{adh} offset:{o}",
                f"ds_read_b64_tr_b16 {v(KR[n]+2,2)}, v{ad} offset:{o}",
                f"ds_read_b64_tr_b16 {v(KR[n]+4,2)}, v{ad} offset:{o+2560}",
                f"ds_read_b64_tr_b16 {v(VR[n],2)}, v{ad} offset:{A_VB-A_KB+o}",
                f"ds_read_b64_tr_b16 {v(VR[n]+2,2)}, v{ad} offset:{A_VB-A_KB+o+2560}"]
    a.e("\n".join(rd(0) + rd(1) + rd(2)))
    for n in range(5):
        k, w, ob = KR[n], W[n], O[n & 1]
        a.e(f"s_waitcnt lgkmcnt({5*(min(4, n + 2) - n)})")
        if n + 3 < 5:
            a.e("\n".join(rd(n + 3)))
        for m in range(4):
            a.e(f"v_dot2_f32_bf16 v{U+2*m}, v{k+m}, v{w+4}, 0")
            a.e(f"v_dot2_f32_bf16 v{U+2*m+1}, v{k+m+1}, v{w+1}, 0")
        for m in range(4):
            a.e(f"v_dot2_f32_bf16 v{U+2*m}, v{k+m+1}, v{w+2}, v{U+2*m}")
            a.e(f"v_dot2_f32_bf16 v{U+2*m+1}, v{k+m+2}, v{w}, v{U+2*m+1}")
        for m in range(4):
            a.e(f"v_dot2_f32_bf16 v{U+2*m}, v{k+m+2}, v{w+3}, v{U+2*m}")
        for m in range(4):
            x = X + 2 * (m & 1)
            a.e(f"""
            v_lshlrev_b32 v{x}, 16, v{VR[n]+m}
            v_and_b32 v{x+1}, 0xffff0000, v{VR[n]+m}
            v_mul_f32 v{x+1}, v{x+1}, v{U+2*m+1}
            v_mul_f32 v{x}, v{x}, v{U+2*m}
            v_cvt_pk_bf16_f32 v{ob+3-m}, v{x+1}, v{x}
            """)
        a.e(f"buffer_store_dwordx4 {v(ob,4)}, v{so_u}, {srd(SRD_C)}, s{sU} offen sc1")
        if n < 4: a.e(f"s_add_u32 s{sU}, s{sU}, {4<<16}")
    stamp(a, 3)
    nz = a.newlab("a1_nz")
    a.e(f"s_waitcnt vmcnt(0)\n v_cmp_ne_u32 vcc, 1, v{vz}\n s_nop 1\n s_cmp_eq_u64 vcc, 0\n s_cbranch_scc1 {nz}")
    poll_z(a, t0, t1)
    a.lab(nz)
    a.e("s_barrier")
    stamp(a, 4)
    set_flag(a, S_ASLOT, t0, t1)
    return ra.hi

def prefetcher(a):
    vW, vX, vQ, vO, t0, t1, z4 = 2, 3, 4, 5, 6, 7, 8
    sN, sA, sB, sC, sT, sU = 60, 61, 62, 63, 64, 65
    a.c("L2 prefetch of this XCD's GEMM operands in K order (speed only) + housekeeping")
    pf_lanes(a, vW, vX, t0, t1, sU, sC)
    a.e(f"""
    s_lshl_b32 s{sN}, s{S_WAVE}, 3
    s_add_u32 s{sN}, s{sN}, s{S_J}
    s_sub_u32 s{sN}, s{sN}, 16
    s_waitcnt lgkmcnt(0)
    """)
    mk_fl(a)
    nz, nt, nc = a.newlab("nozero"), a.newlab("notlb"), a.newlab("nocode")
    a.e(f"s_cmp_lg_u32 s{sN}, 63\n s_cbranch_scc1 {nz}")
    a.e(f"s_mul_i32 s{sT}, s{S_XI}, {GB}\n s_add_u32 s{sT}, s{sT}, {WS_KV}")
    mk_srd(a, SRD_C, P_WS, GB, off_sreg=sT)
    mk_srd(a, SRD_D, P_DBG, 256)
    for i in range(4): a.e(f"v_mov_b32 v{z4+i}, 0")
    a.e(f"""
    v_lshlrev_b32 v{t0}, 4, v{L}
    v_lshlrev_b32 v{t1}, 7, v{L}
    s_lshl_b32 s{sT}, s{S_XI}, 13
    buffer_store_dword v{z4}, v{t1}, {srd(SRD_FL)}, s{sT} offen sc1
    s_add_u32 s{sT}, s{sT}, 0x10000
    buffer_store_dword v{z4}, v{t1}, {srd(SRD_FL)}, s{sT} offen sc1
    s_movk_i32 s{sT}, 4096
    s_movk_i32 s{sU}, 8192
    """)
    for n in range(9):
        a.e(f"buffer_store_dwordx4 {v(z4,4)}, v{t0}, {srd(SRD_C)}, {('0', 's%d' % sT, 's%d' % sU)[n>>2]} offen offset:{1024*(n&3)} sc1")
    a.e(f"""
    s_lshl_b32 s{sT}, s{S_XI}, 2
    v_mov_b32 v{t1}, 1
    s_waitcnt vmcnt(0)
    s_mov_b64 exec, 1
    buffer_store_dword v{t1}, v{t0}, {srd(SRD_D)}, s{sT} offen sc1
    s_mov_b64 exec, -1
    """)
    a.lab(nz)
    a.e(f"s_cmp_lg_u32 s{sN}, 62\n s_cbranch_scc1 {nt}")
    a.e(f"v_lshlrev_b32 v{t1}, 20, v{L}")
    for i, (ptr, nb) in enumerate([(P_WS, WS_END), (P_OUT, 2048 * 2560), (P_Q, NB), (P_WO, 640 * 1280), (P_DBG, 256), (P_H, T_BYTES)]):
        mk_srd(a, SRD_A, ptr, nb)
        a.e(f"buffer_load_dword v{236+i}, v{t1}, {srd(SRD_A)}, 0 offen")
    a.lab(nt)
    a.e(f"s_sub_u32 s{sT}, s{sN}, 56\n s_cmp_ge_u32 s{sT}, 6\n s_cbranch_scc1 {nc}\n s_getpc_b64 s[6:7]")
    a.lab("L_PC")
    a.e(f"""
    s_sub_u32 s6, s6, L_PC-{KN}
    s_subb_u32 s7, s7, 0
    s_lshl_b32 s{sT}, s{sT}, 13
    v_lshl_add_u32 v{t1}, v{L}, 7, s{sT}
    v_min_u32 v{t1}, L_END-{KN}-128, v{t1}
    global_load_dword v252, v{t1}, s[6:7]
    """)
    a.lab(nc)
    mk_srd(a, SRD_A, P_X, NB); mk_srd(a, SRD_B, P_W, 640 * 3840)
    done = a.newlab("pfd")
    NI = 24 * (10 - PF0) - AH
    for m in range((NI + 63) // 64):
        if m and "nopb" not in EX: a.e("s_barrier")
        a.e(f"s_add_u32 s{sT}, s{sN}, {64*m}")
        if 64 * m + 64 > NI: a.e(f"s_cmp_ge_u32 s{sT}, {NI}\n s_cbranch_scc1 {done}")
        pf_one(a, sT, sA, sB, sU, sC, vW, vX, 244 + m)
    a.lab(done)
    a.e("s_barrier")
    nh = a.newlab("pnh")
    mk_srd(a, SRD_B, P_H, T_BYTES)
    a.e(f"""
    s_cmp_ge_u32 s{sN}, 32
    s_cbranch_scc1 {nh}
    s_mul_i32 s{sA}, s{S_XI}, {80*4096}
    s_lshl_b32 s{sB}, s{sN}, 13
    s_add_u32 s{sA}, s{sA}, s{sB}
    v_lshlrev_b32 v{t0}, 7, v{L}
    buffer_load_dword v249, v{t0}, {srd(SRD_B)}, s{sA} offen
    """)
    a.lab(nh)
    mk_srd(a, SRD_A, P_WO, 640 * 1280)
    a.e(f"""
    s_mul_i32 s{sA}, s{sN}, {12*1280}
    s_add_u32 s{sA}, s{sA}, s{sC}
    buffer_load_dword v248, v{vW}, {srd(SRD_A)}, s{sA} offen
    """)
    nq = a.newlab("pnq")
    mk_srd(a, SRD_B, P_Q, NB)
    a.e(f"""
    s_cmp_ge_u32 s{S_J}, 20
    s_cbranch_scc1 {nq}
    s_barrier
    s_and_b32 s{sA}, s{S_J}, 3
    s_lshl_b32 s{sA}, s{sA}, 3
    s_add_u32 s{sA}, s{sA}, s{S_WAVE}
    s_xor_b32 s{sA}, s{sA}, 16
    s_mul_i32 s{sA}, s{sA}, {64*1280}
    s_mul_i32 s{sB}, s{S_XI}, 160
    s_add_u32 s{sA}, s{sA}, s{sB}
    buffer_load_dword v250, v{vX}, {srd(SRD_B)}, s{sA} offen
    buffer_load_dword v251, v{vX}, {srd(SRD_B)}, s{sA} offen offset:156
    """)
    a.lab(nq)
    conv_sload(a)
    stamp(a, 1)
    nz = a.newlab("pnz")
    a.e(f"s_cmp_lg_u32 s{S_WAVE}, 1\n s_cbranch_scc1 {nz}")
    poll_z(a, t0, t1)
    a.lab(nz)
    a.e("s_waitcnt lgkmcnt(0)")

def conv(a):
    ra = RA(2)
    lr, g, t0, t1, t2, aB, aT, vrow, vfl, vrow2, aR = [ra.a() for _ in range(11)]
    aA = [ra.a() for _ in range(4)]
    z4 = ra.a(4, 4); AD = ra.a(4, 4)
    Q = ra.a(16, 4)
    AF = [[ra.a(4, 4) for _ in range(8)] for _ in range(2)]
    BF = [[ra.a(4, 4) for _ in range(8)] for _ in range(2)]
    ACC = [ra.a(4, 4) for _ in range(8)]
    sD, sR, sSO, sT, sOO, sDV, sH, sQO = 60, 61, 62, 63, 64, 65, 66, 67
    fin, idle = a.newlab("conv_fin"), a.newlab("conv_idle")
    a.c("conv")
    if "noconv" in EX: a.e("s_branch L_FIN")
    mk_srd(a, SRD_A, P_WS, T_BYTES); mk_srd(a, SRD_B, P_Q, NB); mk_srd(a, SRD_C, P_OUT, 2048 * 2560)
    def qtouch():
        a.e(f"""
        s_sub_u32 s{sT}, s{S_J}, 20
        s_lshl_b32 s{sT}, s{sT}, 3
        s_add_u32 s{sT}, s{sT}, s{S_WAVE}
        s_mul_i32 s{sT}, s{sT}, {22*1280}
        s_mul_i32 s70, s{S_XI}, 160
        s_add_u32 s{sT}, s{sT}, s70
        v_and_b32 v{t2}, 31, v{L}
        v_min_u32 v{t2}, 21, v{t2}
        v_mul_u32_u24 v{t2}, 1280, v{t2}
        v_lshrrev_b32 v{t1}, 1, v{g}
        v_mul_u32_u24 v{t1}, 156, v{t1}
        v_add_u32 v{t2}, v{t2}, v{t1}
        buffer_load_dword v250, v{t2}, {srd(SRD_B)}, s{sT} offen
        """)
    def qg(slot, rowoff, nd):
        return [f"s_add_u32 s{sT}, s{sQO}, {rowoff*1280}",
                f"buffer_load_dwordx{nd} {v(Q+slot,nd)}, v{vrow}, {srd(SRD_B)}, s{sT} offen"]
    def qgather(n):
        l4, le = a.newlab("q4"), a.newlab("qe")
        ro = (1024 if n < 2 else 0) + 64 * (n & 1)
        a.e(f"s_cmp_lg_u32 s{S_P2}, 8\n s_cbranch_scc1 {l4}")
        a.e("\n".join(qg(4 * n, ro, 4)))
        if n >= 2:
            a.e(f"s_branch {le}")
        a.lab(l4)
        if n >= 2:
            a.e("\n".join(qg(4 * n, ro, 2)))
            a.lab(le)
    a.e(f"""
    v_and_b32 v{lr}, 15, v{L}
    v_lshrrev_b32 v{g}, 4, v{L}
    v_mul_u32_u24 v{vrow}, 1280, v{L}
    s_mul_i32 s{sQO}, s{S_WAVE}, {128*1280}
    s_lshl_b32 s{sOO}, s{sQO}, 1
    s_lshl_b32 s{sT}, s{S_CB}, 1
    s_add_u32 s{sQO}, s{sQO}, s{sT}
    s_add_u32 s{sOO}, s{sOO}, s{sT}
    v_lshlrev_b32 v{vrow2}, 1, v{vrow}
    v_lshrrev_b32 v{aR}, 2, v{lr}
    v_mul_u32_u24 v{aR}, {TP}, v{aR}
    v_and_b32 v{t1}, 3, v{lr}
    v_lshl_add_u32 v{aR}, v{t1}, 3, v{aR}
    v_lshl_add_u32 v{aR}, v{g}, 5, v{aR}
    s_lshl_b32 s{sT}, s{S_WAVE}, 8
    s_add_u32 s{sT}, s{sT}, {TB}
    v_add_u32 v{aR}, s{sT}, v{aR}
    s_cmp_ge_u32 s{S_WAVE}, s{S_P2}
    s_cbranch_scc1 {idle}
    s_add_u32 s{sD}, s{S_CB}, s{S_WAVE}
    s_lshl_b32 s{sSO}, s{sD}, 12
    v_lshlrev_b32 v{t0}, 4, v{L}
    """)
    HH, HG = AF[0][0], BF[0][0]
    mk_srd(a, SRD_D, P_H, T_BYTES)
    h_load(a, HH, t0, SRD_D, sSO)
    a.e(f"""
    s_mul_i32 s{sR}, s{S_WAVE}, {UP}
    s_add_u32 s{sR}, s{sR}, {UB}
    s_mul_i32 s{sH}, s{S_WAVE}, {HP}
    s_cmp_ge_u32 s{sD}, 320
    s_cselect_b32 s{sT}, 32, 0
    v_and_b32 v{vfl}, 31, v{L}
    v_add_u32 v{vfl}, s{sT}, v{vfl}
    v_lshlrev_b32 v{vfl}, 7, v{vfl}
    """)
    for i in range(4):
        a.e(f"v_mov_b32 v{z4+i}, 0")
    a.e(f"""
    v_and_b32 v{t1}, 1, v{lr}
    v_cmp_eq_u32 vcc, 1, v{t1}
    v_mov_b32 v{t1}, {HB+H_O}
    v_mov_b32 v{t2}, {HB+2}
    v_cndmask_b32 v{t1}, v{t1}, v{t2}, vcc
    v_lshl_add_u32 v{t1}, v{lr}, 1, v{t1}
    v_lshl_add_u32 v{t1}, v{g}, 4, v{t1}
    v_add_u32 v{aA[0]}, s{sH}, v{t1}
    v_add_u32 v{aA[1]}, 1024, v{aA[0]}
    v_add_u32 v{aA[2]}, 2048, v{aA[0]}
    v_add_u32 v{aA[3]}, 3072, v{aA[0]}
    v_lshlrev_b32 v{t0}, 4, v{L}
    v_add_u32 v{aT}, s{sR}, v{t0}
    s_and_b32 s{sT}, s{sD}, 1
    s_lshl_b32 s{sT}, s{sT}, 4
    s_lshr_b32 s{sDV}, s5, s{sT}
    s_and_b32 s{sDV}, s{sDV}, 0xffff
    v_lshl_add_u32 v{t1}, v{g}, 3, v{lr}
    v_sub_u32 v{t1}, 15, v{t1}
    v_and_b32 v{t2}, 1, v{t1}
    v_lshlrev_b32 v{t2}, 4, v{t2}
    v_lshlrev_b32 v{t2}, v{t2}, s{sDV}
    v_ashrrev_i32 v{t1}, 1, v{t1}
    """)
    for r in range(4):
        a.e(f"v_cmp_eq_u32 vcc, {r}, v{t1}\n s_nop 1\n v_cndmask_b32 v{AD+r}, 0, v{t2}, vcc")
    a.e(f"""
    v_lshlrev_b32 v{t1}, 5, v{lr}
    v_sub_u32 v{aB}, 480, v{t1}
    v_lshl_add_u32 v{aB}, v{g}, 4, v{aB}
    v_add_u32 v{aB}, s{sR}, v{aB}
    """)
    a.e("s_waitcnt vmcnt(0)")
    h_stage(a, HH, HG, S_WAVE, t0, t1, sT)
    a.e(f"s_mov_b32 exec_hi, 0\n ds_write_b128 v{aT}, {v(z4,4)} offset:4096\n s_mov_b64 exec, -1")
    stamp(a, 5)
    npl = a.newlab("nopoll")
    a.e(f"s_cmp_lg_u32 s{S_WAVE}, 1\n s_cbranch_scc1 {npl}")
    poll(a, SRD_FL, vfl, t1, slp=int(os.environ.get("ASL", "2")))
    a.lab(npl)
    a.e("s_barrier")
    stamp(a, 6)
    UR = AF[1][0]
    for j in range(4):
        a.e(f"buffer_load_dwordx4 {v(UR+4*j,4)}, v{t0}, {srd(SRD_A)}, s{sSO} offen offset:{1024*j} sc1")
    for j in range(4):
        a.e(f"s_waitcnt vmcnt({3-j})\n ds_write_b128 v{aT}, {v(UR+4*j,4)} offset:{1024*j}")
    a.e(f"""
    v_lshlrev_b32 v{t1}, 5, v{lr}
    v_lshl_add_u32 v{aT}, v{g}, 3, v{t1}
    s_mul_i32 s{sT}, s{S_WAVE}, {TP}
    s_add_u32 s{sT}, s{sT}, {TB}
    v_add_u32 v{aT}, s{sT}, v{aT}
    """)
    MF = "v_mfma_f32_16x16x32_bf16"
    def rd1(b, slot, i, r):
        o0 = 128 * (i & 1) + 16 * r
        return [f"ds_read_b128 {v(BF[b][slot],4)}, v{aB} offset:{3584 - 512*i + 64*r}",
                f"ds_read2_b32 {v(AF[b][slot],2)}, v{aA[i>>1]} offset0:{o0} offset1:{o0+1}",
                f"ds_read2_b32 {v(AF[b][slot]+2,2)}, v{aA[i>>1]} offset0:{o0+2} offset1:{o0+3}"]
    def reads(it):
        b = it & 1; o = []
        if it < 8:
            for i in range(8): o += rd1(b, i, i, it)
        elif it < 12:
            for k in range(2):
                for i in range(4): o += rd1(b, 4 * k + i, i, 2 * (it - 8) + k)
        return o
    def mf(it):
        b = it & 1; o = []
        if it < 8:
            if it == 0:
                o += [f"{MF} {v(ACC[c],4)}, {v(AD,4)}, {v(BF[b][c],4)}, 0" for c in range(8)]
            for q in range(8):
                for c in range(max(q, 4), 8):
                    o.append(f"{MF} {v(ACC[c],4)}, {v(AF[b][q],4)}, {v(BF[b][c-q],4)}, {v(ACC[c],4)}")
        else:
            for k in range(2):
                for q in range(4):
                    for c in range(q, 4):
                        o.append(f"{MF} {v(ACC[c],4)}, {v(AF[b][4*k+q],4)}, {v(BF[b][4*k+c-q],4)}, {v(ACC[c],4)}")
        return o
    def spread(M, F):
        out = []; n = len(M); fi = 0
        for i, m in enumerate(M):
            out.append(m)
            tgt = (len(F) * (i + 1) + n - 1) // n
            out += F[fi:tgt]; fi = tgt
        return out
    def twrite(half):
        a.e("s_nop 3")
        for c in range(4):
            r = ACC[4 * half + c]
            a.e(f"v_cvt_pk_bf16_f32 v{r}, v{r}, v{r+1}\n v_cvt_pk_bf16_f32 v{r+1}, v{r+2}, v{r+3}")
            a.e(f"ds_write_b64 v{aT}, {v(r,2)} offset:{(1-half)*8*TP + 512*c}")
    Y, X = ACC[4], ACC[6]
    def t_rd(n, nd, toff):
        return [f"ds_read_b64_tr_b16 {v(Y+4*(n&1)+2*k,2)}, v{aR} offset:{toff + 4*TP*k}" for k in range(nd // 2)]
    def t_mul(n, nd, qslot, rowoff):
        o = []
        for i in range(nd):
            y, q, x = Y + 4 * (n & 1) + i, Q + qslot + i, X + 4 * (i & 1)
            o += [f"v_lshlrev_b32 v{x}, 16, v{y}", f"v_and_b32 v{x+1}, 0xffff0000, v{y}",
                  f"v_lshlrev_b32 v{x+2}, 16, v{q}", f"v_and_b32 v{x+3}, 0xffff0000, v{q}",
                  f"v_mul_f32 v{x}, v{x}, v{x+2}", f"v_mul_f32 v{x+1}, v{x+1}, v{x+3}",
                  f"v_cvt_pk_bf16_f32 v{y}, v{x}, v{x+1}"]
        o += [f"s_add_u32 s{sT}, s{sOO}, {rowoff*2560}",
              f"buffer_store_dwordx{nd} {v(Y+4*(n&1),nd)}, v{vrow2}, {srd(SRD_C)}, s{sT} offen"]
        return o
    stamp(a, 7)
    a.e("s_waitcnt lgkmcnt(0)\n s_barrier")
    a.e("\n".join(reads(0)))
    for it in range(8):
        a.e("s_waitcnt lgkmcnt(0)")
        if "nocprio" not in EX: a.e(f"s_setprio {3 - it // 2}")
        if 3 <= it <= 6: qgather(it - 3)
        a.e("\n".join(interleave(mf(it), reads(it + 1))))
    twrite(1)
    a.e("s_waitcnt lgkmcnt(0)\n s_barrier")
    stamp(a, 8)
    lo4, lj = a.newlab("lo4"), a.newlab("loj")
    a.e(f"s_cmp_lg_u32 s{S_P2}, 8\n s_cbranch_scc1 {lo4}")
    for it in range(8, 12):
        if it > 8: a.e("s_waitcnt lgkmcnt(0)")
        if "nocprio" not in EX: a.e(f"s_setprio {11 - it}")
        F = reads(it + 1)
        if it == 8: F = t_rd(0, 4, 0) + t_rd(1, 4, 128) + F
        if it == 9:
            a.e("s_waitcnt vmcnt(2)")
            F = interleave2(F, t_mul(0, 4, 0, 1024), 1)
        if it == 10: F = interleave2(F, t_mul(1, 4, 4, 1024 + 64), 1)
        a.e("\n".join(spread(mf(it), F)))
    a.e(f"s_branch {lj}")
    a.lab(lo4)
    for it in range(8, 12):
        if it > 8: a.e("s_waitcnt lgkmcnt(0)")
        a.e("\n".join(spread(mf(it), reads(it + 1))))
    a.e("s_waitcnt vmcnt(0)")
    a.lab(lj)
    twrite(0)
    a.e(f"s_branch {fin}")
    a.lab(idle)
    a.e("s_barrier\n s_barrier")
    a.e(f"s_waitcnt vmcnt(0)\n s_sub_u32 s{sD}, s{S_WAVE}, 8\n s_mul_i32 s{sR}, s{sD}, {128*1280}\n s_add_u32 s{sQO}, s{sQO}, s{sR}")
    for n in range(4): a.e("\n".join(qg(2 * n, 1024 + 64 * n, 2)))
    a.e(f"s_sub_u32 s{sQO}, s{sQO}, s{sR}")
    for n in range(2): a.e("\n".join(qg(8 + 4 * n, 64 * n, 2)))
    a.e(f"s_lshl_b32 s{sR}, s{sR}, 1\n s_add_u32 s{sOO}, s{sOO}, s{sR}\n s_lshl_b32 s{sD}, s{sD}, 8\n v_add_u32 v{aR}, s{sD}, v{aR}")
    a.e("s_barrier")
    for h in range(2):
        a.e("\n".join(t_rd(0, 2, 256 * h) + t_rd(1, 2, 256 * h + 128)))
        a.e("s_waitcnt vmcnt(0) lgkmcnt(0)" if h == 0 else "s_waitcnt lgkmcnt(0)")
        a.e("\n".join(t_mul(0, 2, 4 * h, 1024 + 128 * h) + t_mul(1, 2, 4 * h + 2, 1024 + 128 * h + 64)))
    a.e(f"s_sub_u32 s{sOO}, s{sOO}, s{sR}\n v_subrev_u32 v{aR}, s{sD}, v{aR}")
    a.lab(fin)
    a.e("s_waitcnt lgkmcnt(0)\n s_barrier")
    stamp(a, 9)
    def tail(nd):
        a.e("\n".join(t_rd(0, nd, 8 * TP) + t_rd(1, nd, 8 * TP + 128)))
        a.e("s_waitcnt vmcnt(2) lgkmcnt(0)" if nd == 4 else "s_waitcnt lgkmcnt(0)")
        a.e("\n".join(t_mul(0, nd, 8, 0) + t_mul(1, nd, 12, 64)))
    l8 = a.newlab("t8")
    a.e(f"s_cmp_eq_u32 s{S_P2}, 8\n s_cbranch_scc1 {l8}")
    tail(2)
    a.e("s_branch L_FIN")
    a.lab(l8)
    tail(4)
    a.e("s_branch L_FIN")
    return ra.hi

def wo_dma(a):
    t0, t1, t2, vx = 228, 229, 230, [231, 232, 233, 234]
    sSX, sM, sT = 68, 69, 70
    mk_srd(a, SRD_A, P_WO, 640 * 1280)
    a.e(f"""
    v_lshrrev_b32 v{t0}, 3, v{L}
    v_mul_u32_u24 v{t0}, 1280, v{t0}
    v_and_b32 v{t1}, 7, v{L}
    v_bfe_u32 v{t2}, v{L}, 4, 1
    v_lshlrev_b32 v{t2}, 2, v{t2}
    v_xor_b32 v{t1}, v{t1}, v{t2}
    v_lshl_add_u32 v{vx[0]}, v{t1}, 4, v{t0}
    v_add_u32 v{vx[1]}, {1*(8*1280-1024)}, v{vx[0]}
    v_add_u32 v{vx[2]}, {2*(8*1280-1024)}, v{vx[0]}
    v_add_u32 v{vx[3]}, {3*(8*1280-1024)}, v{vx[0]}
    s_sub_u32 s{sM}, s{S_WAVE}, 4
    s_mul_i32 s{sSX}, s{sM}, {160*1280}
    s_lshl_b32 s{sT}, s{S_GC}, 7
    s_add_u32 s{sSX}, s{sSX}, s{sT}
    s_mul_i32 s{sM}, s{sM}, 20480
    s_add_u32 s{sM}, s{sM}, {WOB}
    """)
    for q in range(5):
        a.e(f"s_add_u32 m0, s{sM}, {4096*q}\n s_nop 0")
        for j in range(4):
            a.e(f"buffer_load_dwordx4 v{vx[j]}, {srd(SRD_A)}, s{sSX} offen offset:{1024*j} lds")
        a.e(f"s_add_u32 s{sSX}, s{sSX}, {32*1280}")
    mk_srd(a, SRD_B, P_WS, T_BYTES, off=WS_PQ)

def g2(a):
    ra = RA(10)
    t0, t1, t2, t3, v16, vfl = [ra.a() for _ in range(6)]
    wm, wx = [ra.a(), ra.a()], [ra.a(), ra.a()]
    O = [ra.a(4, 4) for _ in range(20)]
    NW = 4
    WF = [[ra.a(4, 4) for _ in range(2)] for _ in range(NW)]
    ACC = [ra.a(16, 4) for _ in range(2)]
    R = ra.a(16, 4); D = ra.a(8, 4)
    sKH, sRW, sT, sSO, sU = 60, 61, 62, 63, 65
    M32 = "v_mfma_f32_32x32x16_bf16"
    a.c("G2")
    a.e(f"""
    s_lshr_b32 s{sKH}, s{S_WAVE}, 2
    s_and_b32 s{sRW}, s{S_WAVE}, 3
    s_lshl_b32 s{sT}, s{S_RT}, 2
    s_add_u32 s{sT}, s{sT}, s{sRW}
    s_mul_i32 s{sSO}, s{sT}, {32*2560}
    s_lshl_b32 s{sT}, s{sT}, 3
    s_lshl_b32 s{sU}, s{sKH}, 2
    s_add_u32 s{sT}, s{sT}, s{sU}
    s_mul_i32 s{sU}, s{sT}, 5120
    s_add_u32 s{sT}, s{sT}, 64
    v_and_b32 v{t0}, 3, v{L}
    v_add_u32 v{vfl}, s{sT}, v{t0}
    v_lshlrev_b32 v{vfl}, 7, v{vfl}
    v_lshlrev_b32 v{v16}, 4, v{L}
    s_and_b32 s64, s{S_GC}, {0 if "norot2" in EX else 3}
    s_lshl_b32 s{sT}, s{sKH}, 2
    s_add_u32 s{sT}, s{sT}, s64
    s_mul_i32 s{sT}, s{sT}, {4*2560}
    s_add_u32 s{sT}, s{sT}, {WOB}
    s_movk_i32 s71, {4*2560}
    s_cmp_eq_u32 s64, 3
    s_cselect_b32 s68, {-12*2560}, s71
    s_cmp_eq_u32 s64, 2
    s_cselect_b32 s69, {-12*2560}, s71
    s_cmp_eq_u32 s64, 1
    s_cselect_b32 s70, {-12*2560}, s71
    v_lshrrev_b32 v{t2}, 5, v{L}
    v_lshl_add_u32 v{t0}, v{t0}, 3, s{sT}
    v_bfe_u32 v{t1}, v{L}, 4, 1
    v_lshl_add_u32 v{t0}, v{t1}, 5, v{t0}
    v_bfe_u32 v{t1}, v{L}, 2, 2
    v_lshl_add_u32 v{t3}, v{t2}, 2, v{t1}
    v_lshl_add_u32 v{wm[0]}, v{t3}, 7, v{t0}
    v_bfe_u32 v{t3}, v{L}, 3, 1
    v_lshl_add_u32 v{wm[0]}, v{t3}, 6, v{wm[0]}
    v_xor_b32 v{wm[1]}, 64, v{wm[0]}
    v_mul_u32_u24 v{t3}, 20, v{t3}
    v_and_b32 v{t1}, 1, v{t1}
    v_add3_u32 v{t3}, v{t3}, v{t1}, 16
    v_lshl_add_u32 v{t3}, v{t2}, 1, v{t3}
    v_lshl_add_u32 v{wx[0]}, v{t3}, 7, v{t0}
    v_lshl_add_u32 v{wx[0]}, v{t2}, 6, v{wx[0]}
    v_xor_b32 v{wx[1]}, 64, v{wx[0]}
    s_lshl_b32 s{sT}, s{S_GC}, 7
    s_add_u32 s{sSO}, s{sSO}, s{sT}
    s_lshl_b32 s{sT}, s{sKH}, 6
    s_add_u32 s{sSO}, s{sSO}, s{sT}
    s_add_u32 s{sSO}, s{sSO}, 1280
    """)
    mk_srd(a, SRD_D, P_OUT, 2048 * 2560)
    nw = a.newlab("g2nw")
    a.e(f"s_cmp_eq_u32 s{sKH}, 0\n s_cbranch_scc1 {nw}\n s_waitcnt vmcnt(0)")
    a.lab(nw)
    a.e("s_barrier")
    def wrd(k):
        p, j = divmod(k, 5); b = k % NW
        if j < 4:
            return [f"ds_read_b64_tr_b16 {v(WF[b][nt]+2*i,2)}, v{wm[nt]} offset:{2560*j+1024*i}" for nt in range(2) for i in range(2)]
        o = [f"ds_read_b64_tr_b16 {v(WF[b][nt]+2*i,2)}, v{wx[nt]} offset:{2560*2*i}" for nt in range(2) for i in range(2)]
        if p < 3:
            o[3] += "".join(f"\n v_add_u32 v{r}, s{68+p}, v{r}" for r in wm + wx)
        return o
    a.e("\n".join(wrd(0) + wrd(1) + wrd(2)))
    a.e(f"""
    s_lshl_b32 s{sT}, s{S_WAVE}, 12
    s_add_u32 s{sT}, s{sT}, {RED}
    v_add_u32 v{t0}, s{sT}, v{v16}
    s_xor_b32 s{sT}, s{S_WAVE}, 4
    s_lshl_b32 s{sT}, s{sT}, 12
    s_add_u32 s{sT}, s{sT}, {RED}
    v_add_u32 v{t1}, s{sT}, v{v16}
    v_and_b32 v{t2}, 15, v{L}
    v_mul_u32_u24 v{t2}, 2560, v{t2}
    v_bfe_u32 v{t3}, v{L}, 4, 1
    v_lshl_add_u32 v{t2}, v{t3}, 5, v{t2}
    v_lshrrev_b32 v{t3}, 5, v{L}
    v_lshl_add_u32 v{t2}, v{t3}, 4, v{t2}
    """)
    if "steps" not in EX: stamp(a, 7)
    poll(a, SRD_FL, vfl, R, slp=int(os.environ.get("GSL", "2")))
    if "steps" not in EX: stamp(a, 8)
    for k in range(20):
        p, j = divmod(k, 5)
        if j == 0:
            a.e(f"s_add_u32 s{sT}, s64, {p}\n s_and_b32 s{sT}, s{sT}, 3\n s_mul_i32 s{sT}, s{sT}, 5120\n s_add_u32 s{sT}, s{sT}, s{sU}")
        if j == 4: a.e(f"s_add_u32 s{sT}, s{sT}, 4096")
        a.e(f"buffer_load_dwordx4 {v(O[k],4)}, v{v16}, {srd(SRD_B)}, s{sT} offen offset:{1024*(j&3)} sc1")
    if STAMPS: a.e("s_waitcnt lgkmcnt(0)")
    for k in range(20):
        a.e(f"s_waitcnt vmcnt({19-k}) lgkmcnt({4*min(2, 19-k)})")
        F = wrd(k + 3) if k + 3 < 20 else []
        for nt in range(2):
            a.e(f"{M32} {v(ACC[nt],16)}, {v(WF[k%NW][nt],4)}, {v(O[k],4)}, {'0' if k == 0 else v(ACC[nt],16)}")
            a.e("\n".join(F[2*nt:2*nt+2]))
    if "steps" not in EX: stamp(a, 9)
    lk1, lj = a.newlab("g2_k1"), a.newlab("g2_j")
    a.e(f"""
    s_nop 7
    s_nop 1
    s_cmp_eq_u32 s{sKH}, 0
    s_cbranch_scc0 {lk1}
    """)
    for t in range(4):
        a.e(f"ds_write_b128 v{t0}, {v(ACC[1]+4*t,4)} offset:{1024*t}")
    a.e(f"s_branch {lj}")
    a.lab(lk1)
    for t in range(4):
        a.e(f"ds_write_b128 v{t0}, {v(ACC[0]+4*t,4)} offset:{1024*t}")
    a.e("s_nop 1")
    for i in range(16):
        a.e(f"v_mov_b32 v{ACC[0]+i}, v{ACC[1]+i}")
    a.lab(lj)
    a.e(f"s_add_u32 s{sT}, s{sSO}, {16*2560}\n s_waitcnt lgkmcnt(0)\n s_barrier")
    for t in range(4):
        a.e(f"ds_read_b128 {v(R+4*t,4)}, v{t1} offset:{1024*t}")
    for t in range(4):
        a.e(f"s_waitcnt lgkmcnt({3-t})")
        c = ACC[0] + 4 * t
        for i in range(4):
            a.e(f"v_add_f32 v{c+i}, v{c+i}, v{R+4*t+i}")
        a.e(f"v_cvt_pk_bf16_f32 v{D+2*t}, v{c}, v{c+1}\n v_cvt_pk_bf16_f32 v{D+2*t+1}, v{c+2}, v{c+3}")
    a.e("s_nop 1")
    for q in (0, 4):
        a.e(f"v_permlane32_swap_b32 v{D+q}, v{D+q+2}\n v_permlane32_swap_b32 v{D+q+1}, v{D+q+3}")
    a.e("s_nop 1")
    for i in range(4):
        a.e(f"v_permlane16_swap_b32 v{D+i}, v{D+4+i}")
    a.e(f"buffer_store_dwordx4 {v(D,4)}, v{t2}, {srd(SRD_D)}, s{sSO} offen {OSTB}")
    a.e(f"buffer_store_dwordx4 {v(D+4,4)}, v{t2}, {srd(SRD_D)}, s{sT} offen {OSTB}")
    return ra.hi

def build(path):
    hdr = open("cdna_kernels/%s.s.ref" % NAME).read().split("; Override")[0]
    a = Asm()
    a.raw('.amdgcn_target "amdgcn-amd-amdhsa--gfx950"\n.text')
    a.raw(f".globl {KN}\n.p2align 8\n.type {KN},@function"); a.lab(KN)
    a.e(f"s_cmp_ge_u32 s2, 256\n s_cbranch_scc1 L_END")
    stamp_init(a); stamp(a, 0)
    a.e(f"""
    s_load_dwordx16 s[8:23], s[0:1], 0
    s_load_dwordx8 s[24:31], s[0:1], 64
    v_lshrrev_b32 v2, 6, v0
    v_and_b32 v{L}, 63, v0
    v_readfirstlane_b32 s{S_WAVE}, v2
    s_and_b32 s{S_XI}, s2, 7
    s_lshr_b32 s{S_J}, s2, 3
    s_lshr_b32 s6, s{S_XI}, 1
    s_lshl_b32 s6, s6, 2
    s_and_b32 s7, s{S_J}, 3
    s_add_u32 s{S_RT}, s6, s7
    s_and_b32 s4, s{S_XI}, 1
    s_mul_i32 s{S_GC}, s4, 5
    s_cmp_ge_u32 s{S_J}, 16
    s_cbranch_scc1 L_A
    s_lshr_b32 s6, s{S_J}, 2
    s_add_u32 s{S_GC}, s{S_GC}, s6
    s_lshl_b32 s4, s4, 2
    s_add_u32 s{S_G}, s4, s6
    s_cmp_lt_u32 s{S_WAVE}, 4
    s_cbranch_scc1 L_BC
    """)
    b_loader(a)
    a.lab("L_A")
    a.e(f"""
    s_add_u32 s{S_GC}, s{S_GC}, 4
    s_mul_i32 s{S_CB}, s{S_XI}, 80
    s_sub_u32 s6, s{S_J}, 24
    s_lshl_b32 s6, s6, 3
    s_lshl_b32 s7, s7, 2
    s_add_u32 s7, s7, 64
    s_cmp_ge_u32 s{S_J}, 24
    s_cselect_b32 s{S_P2}, 8, 4
    s_cselect_b32 s6, s6, s7
    s_add_u32 s{S_CB}, s{S_CB}, s6
    s_cmp_ge_u32 s{S_J}, 24
    s_cbranch_scc1 L_A1
    """)
    prefetcher(a)
    a.e(f"s_cmp_ge_u32 s{S_J}, 20\n s_cbranch_scc1 L_CONV")
    mk_srd(a, SRD_B, P_WS, T_BYTES, off=WS_PQ)
    a.e(f"s_cmp_lt_u32 s{S_WAVE}, 4\n s_cbranch_scc1 L_G2\n s_waitcnt vmcnt(0)\n s_call_b64 s[72:73], L_WO\n s_branch L_G2")
    a.lab("L_A1")
    h3 = a1(a)
    a.lab("L_CONV")
    h5 = conv(a)
    a.lab("L_BC")
    h1 = b_compute(a)
    a.lab("L_WO")
    wo_dma(a)
    a.e("s_setpc_b64 s[72:73]")
    a.lab("L_G2")
    h4 = g2(a)
    a.lab("L_FIN")
    stamp_flush(a, 0)
    a.lab("L_END")
    a.e("s_endpgm")
    print("vgprs", h1, h3, h4, h5, file=sys.stderr)
    desc = f""".section .rodata,"a"
.p2align 6
.amdhsa_kernel {KN}
  .amdhsa_next_free_vgpr 256
  .amdhsa_next_free_sgpr 102
  .amdhsa_accum_offset 256
  .amdhsa_group_segment_fixed_size 0
  .amdhsa_kernarg_size 96
  .amdhsa_user_sgpr_count 2
  .amdhsa_user_sgpr_kernarg_segment_ptr 1
  .amdhsa_system_sgpr_workgroup_id_x 1
.end_amdhsa_kernel
"""
    open(path, "w").write(hdr + f"; @launch grid=(256,1,1) block=(512,1,1) lds={LDS_BYTES}\n" + a.text() + desc)
if __name__ == "__main__":
    build(sys.argv[1])
```

```python
import sys
from asmlib import *
NAME = "concat_heads__ssm_conv_h3__linear_attn_block__prompt"
KN = NAME + "_kernel"
EX = set(os.environ.get("EX", "").split(","))
ROTR = int(os.environ.get("ROTR", "0"), 16); ROTC = int(os.environ.get("ROTC", "0"), 16)
OST = os.environ.get("OSTA", "")
OSTB = os.environ.get("OSTB", "nt")

T_BYTES = 640 * 4096
WS_UT, WS_PQ = 0, T_BYTES
WS_KV = 2 * T_BYTES
GB = 8960
WS_FL = WS_KV + 8 * GB + 2048
assert WS_FL % 128 == 0
WS_END = WS_FL + 1024 * 128
S_WG, S_WAVE = 2, 3
P_Q, P_K, P_V, P_SH, P_H, P_D, P_X, P_W, P_WO, P_OUT, P_DBG, P_WS = 8, 10, 12, 14, 16, 18, 20, 22, 24, 26, 28, 30
SRD_A, SRD_B, SRD_C, SRD_D, SRD_FL = 32, 36, 40, 44, 48
S_RT, S_G, S_GC, S_CB, S_P2, S_ASLOT, S_XI, S_J = 52, 53, 54, 55, 56, 57, 58, 59
L = 1
NB = 2048 * 1280

XST, WBASE, WST, NST = 16384, 49152, 20480, 3
HI = WBASE + NST * WST
W2B = 2688
QBASE, QST = HI, 4 * W2B
IMG, IMGP = QBASE + NST * QST, 9216
HB, HP, H_O = 0, 8320, 4160
UB, UP = 8 * HP, 4672
A_KB, A_VB = UB + 5120, UB + 5120 + 40960
WOB = 2 * XST
KVI, RED = WOB + 81920, 0
ND = int(os.environ.get("ND", "2"))
xsl = lambda st: (st + 1) % NST
qsl = lambda st: (st + 2) % NST
assert KVI + 3520 <= QBASE + QST and ND <= 2
TB, TP = UB + 8 * UP, 2112
LDS_BYTES = max(A_VB + 40960, IMG + 2 * IMGP)
assert UB + 8 * UP <= HI and RED + 32768 <= LDS_BYTES <= 163840

def mk_srd(a, srd, ptr, nbytes, off=0, off_sreg=None):
    if off_sreg is not None:
        a.e(f"s_add_u32 s{srd}, s{ptr}, s{off_sreg}\n s_addc_u32 s{srd+1}, s{ptr+1}, 0")
    elif off:
        a.e(f"s_add_u32 s{srd}, s{ptr}, {off}\n s_addc_u32 s{srd+1}, s{ptr+1}, 0")
    else:
        a.e(f"s_mov_b32 s{srd}, s{ptr}\n s_mov_b32 s{srd+1}, s{ptr+1}")
    a.e(f"s_mov_b32 s{srd+2}, {nbytes}\n s_mov_b32 s{srd+3}, 0x20000")
def srd(x): return f"s[{x}:{x+3}]"
def mk_fl(a): mk_srd(a, SRD_FL, P_WS, 1024 * 128, off=WS_FL)

SPIN_MAX = 400000 if "noat" not in EX else 2
def poll(a, srdn, vo, t, scnt=74, slp=1):
    lp, dn = a.newlab("poll"), a.newlab("polld")
    a.e(f"s_mov_b32 s{scnt}, {SPIN_MAX}")
    a.lab(lp)
    a.e(f"""
    buffer_load_dword v{t}, v{vo}, {srd(srdn)}, 0 offen sc1
    s_waitcnt vmcnt(0)
    v_cmp_ne_u32 vcc, 1, v{t}
    s_sub_u32 s{scnt}, s{scnt}, 1
    s_cbranch_scc1 {dn}
    s_cmp_eq_u64 vcc, 0
    s_cbranch_scc1 {dn}
    s_sleep {slp}
    s_branch {lp}
    """)
    a.lab(dn)
def poll_z(a, vz, vt):
    mk_srd(a, SRD_D, P_DBG, 256)
    a.e(f"v_and_b32 v{vz}, 7, v{L}\n v_lshlrev_b32 v{vz}, 2, v{vz}")
    poll(a, SRD_D, vz, vt)
def set_flag(a, sslot, v0_, v1_, wave=0):
    sk = a.newlab("nofl")
    if wave is not None: a.e(f"s_cmp_lg_u32 s{S_WAVE}, {wave}\n s_cbranch_scc1 {sk}")
    a.e(f"""
    s_lshl_b32 s74, s{sslot}, 7
    v_mov_b32 v{v0_}, 0
    v_mov_b32 v{v1_}, 1
    s_mov_b64 exec, 1
    buffer_store_dword v{v1_}, v{v0_}, {srd(SRD_FL)}, s74 offen sc1
    s_mov_b64 exec, -1
    """)
    a.lab(sk)

def h_load(a, H, vl16, srdn, soff):
    for j in range(4):
        a.e(f"buffer_load_dwordx4 {v(H+4*j,4)}, v{vl16}, {srd(srdn)}, s{soff} offen offset:{1024*j}")
def h_stage(a, H, G, sslot, vl16, va, st):
    a.e(f"s_mul_i32 s{st}, s{sslot}, {HP}\n v_add_u32 v{va}, s{st}, v{vl16}")
    a.e(f"v_readfirstlane_b32 s{st}, v{H}")
    for j in range(4):
        a.e(f"ds_write_b128 v{va}, {v(H+4*j,4)} offset:{HB+32+1024*j}")
    for j in range(4):
        a.e(f"v_mov_b32_dpp v{G+4*j+3}, v{H+4*((j+1)&3)} wave_rol:1 row_mask:0xf bank_mask:0xf")
    for j in range(4):
        a.e(f"v_mov_b32_dpp v{G+4*j+3}, v{H+4*j} wave_shl:1 row_mask:0xf bank_mask:0xf")
    Z = G + 16
    for i in range(4): a.e(f"v_mov_b32 v{Z+i}, 0")
    a.e(f"s_lshl_b32 s{st}, s{st}, 16\n s_mov_b64 exec, 3\n ds_write_b128 v{va}, {v(Z,4)} offset:{HB}\n s_mov_b64 exec, -1")
    for j in range(4):
        h, g_ = H + 4 * j, G + 4 * j
        for i in range(3): a.e(f"v_alignbit_b32 v{g_+i}, v{h+i+1}, v{h+i}, 16")
        a.e(f"v_alignbit_b32 v{g_+3}, v{g_+3}, v{h+3}, 16")
        a.e(f"ds_write_b128 v{va}, {v(g_,4)} offset:{HB+H_O+32+1024*j}")
    a.e(f"v_writelane_b32 v{Z+3}, s{st}, 1\n s_mov_b64 exec, 3\n ds_write_b128 v{va}, {v(Z,4)} offset:{HB+H_O}\n s_mov_b64 exec, -1")
def conv_sload(a):
    a.e(f"""
    s_add_u32 s6, s{S_CB}, s{S_WAVE}
    s_min_u32 s6, s6, 639
    s_lshl_b32 s6, s6, 1
    s_and_b32 s6, s6, 0xfffffffc
    s_load_dword s5, s[{P_D}:{P_D+1}], s6
    """)

def b_loader(a):
    ra = RA(2)
    t0, t1, t2, t3 = [ra.a() for _ in range(4)]
    vx = [ra.a() for _ in range(4)]
    vw = [ra.a() for _ in range(5)]
    vq = [ra.a() for _ in range(3)]
    l16, la = ra.a(), ra.a()
    LD = ra.a(12, 4); Z = ra.a(2, 2)
    sLW, sSX, sSW, sM0X, sM0W, sM0Q, sSQ, sT, sK = 60, 61, 62, 63, 64, 65, 66, 67, 68
    a.c("B loader wave")
    a.e(f"""
    s_setprio 3
    v_lshrrev_b32 v{t0}, 3, v{L}
    v_lshrrev_b32 v{t1}, 4, v{L}
    v_and_b32 v{t2}, 7, v{L}
    v_mul_u32_u24 v{t0}, 1280, v{t0}
    v_xor_b32 v{t1}, v{t1}, v{t2}
    s_sub_u32 s{sLW}, s{S_WAVE}, 4
    s_lshl_b32 s{sT}, s{S_RT}, 2
    s_add_u32 s{sT}, s{sT}, s{sLW}
    s_mul_i32 s{sSX}, s{sT}, {32*1280}
    s_lshl_b32 s{sM0X}, s{sLW}, 12
    v_lshl_add_u32 v{vx[0]}, v{t1}, 4, v{t0}
    v_xor_b32 v{vx[1]}, 64, v{vx[0]}
    v_add_u32 v{vx[2]}, {2*(8*1280-1024)}, v{vx[0]}
    v_add_u32 v{vx[3]}, {3*(8*1280-1024)}, v{vx[1]}
    v_add_u32 v{vx[1]}, {1*(8*1280-1024)}, v{vx[1]}
    s_movk_i32 s4, 1200
    s_movk_i32 s5, -80
    s_movk_i32 s69, 3840
    """)
    for x in range(320): assert (x * 3277) >> 16 == x // 20
    for x in range(20): assert (x * 52) >> 8 == x // 5
    def woff(j):
        sub = 1024 * j if j < 4 else 0
        o = []; src = L
        if j: o.append(f"v_add_u32 v{t0}, {64*j}, v{L}"); src = t0
        o += [f"v_mul_u32_u24 v{t1}, 3277, v{src}", f"v_lshrrev_b32 v{t1}, 16, v{t1}",
              f"v_mul_u32_u24 v{t2}, 20, v{t1}", f"v_sub_u32 v{t0}, v{src}, v{t2}"]
        if j == 2: o += [f"v_lshrrev_b32 v{t2}, 2, v{t1}", f"v_and_b32 v{t2}, 2, v{t2}", f"v_xor_b32 v{t0}, v{t0}, v{t2}"]
        if j > 2: o += [f"v_xor_b32 v{t0}, 2, v{t0}"]
        o += [f"v_mul_u32_u24 v{t2}, 52, v{t0}", f"v_lshlrev_b32 v{t0}, 4, v{t0}",
              f"v_mad_u32_u24 v{t0}, v{t1}, s69, v{t0}", f"v_bfe_u32 v{t3}, v{t2}, 8, 1",
              f"v_lshrrev_b32 v{t2}, 9, v{t2}", f"v_mad_u32_u24 v{t0}, v{t3}, s4, v{t0}"]
        if sub: o += [f"v_mad_i32_i24 v{t0}, v{t2}, s5, v{t0}", f"v_subrev_u32 v{vw[j]}, {sub}, v{t0}"]
        else: o += [f"v_mad_i32_i24 v{vw[j]}, v{t2}, s5, v{t0}"]
        a.e("\n".join(o))
    def issue_x(st):
        a.e(f"s_add_u32 m0, s{sM0X}, {xsl(st) * XST}\n s_nop 0")
        for j in range(4):
            a.e(f"buffer_load_dwordx4 v{vx[j]}, {srd(SRD_A)}, s{sSX} offen offset:{1024*j} lds")
    def adv():
        a.e(f"s_add_u32 s{sSX}, s{sSX}, 128\n s_add_u32 s{sSW}, s{sSW}, {64*3840}")
    for x in range(80): assert (x * 205) >> 11 == x // 10
    def qoff(j):
        a.e(f"""
        v_add_u32 v{t0}, {64*j}, v{L}
        v_cmp_le_u32 vcc, 88, v{t0}
        v_subrev_u32 v{t1}, 88, v{t0}
        v_min_u32 v{t0}, 79, v{t0}
        v_min_u32 v{t1}, 79, v{t1}
        v_cndmask_b32 v{t0}, v{t0}, v{t1}, vcc
        v_cndmask_b32 v{t2}, 0, 8, vcc
        v_mul_u32_u24 v{t1}, 205, v{t0}
        v_lshrrev_b32 v{t1}, 11, v{t1}
        v_add_u32 v{t2}, v{t2}, v{t1}
        v_mul_u32_u24 v{t1}, 10, v{t1}
        v_sub_u32 v{t0}, v{t0}, v{t1}
        v_lshlrev_b32 v{t0}, 4, v{t0}
        v_mad_u32_u24 v{t0}, v{t2}, s69, v{t0}
        v_subrev_u32 v{vq[j]}, {1024*j}, v{t0}
        """)
    def issue_kv(st, first=99):
        a.e(f"s_add_u32 m0, s{sM0W}, {(st % NST) * WST}\n s_nop 0")
        for j in range(5):
            if j >= first: woff(j)
            if j == 4: a.e(f"s_add_u32 m0, s{sM0W}, {(st % NST) * WST + 4096}\n s_nop 0")
            a.e(f"buffer_load_dwordx4 v{vw[j]}, {srd(SRD_B)}, s{sSW} offen offset:{1024*(j&3)} lds")
    def issue_q(st, first=99):
        a.e(f"s_add_u32 m0, s{sM0Q}, {qsl(st) * QST}\n s_sub_u32 s{sSQ}, s{sSW}, 1280")
        for j in range(3):
            if j >= first: qoff(j)
            if j == 2: a.e("s_mov_b32 exec_hi, 0xff")
            a.e(f"buffer_load_dwordx4 v{vq[j]}, {srd(SRD_B)}, s{sSQ} offen offset:{1024*j} lds")
        a.e("s_mov_b32 exec_hi, -1")
    def issue(st):
        issue_x(st); issue_kv(st); issue_q(st); adv()
    a.e(f"""
    s_mul_i32 s{sSW}, s{S_G}, 160
    s_add_u32 s{sSW}, s{sSW}, 1280
    s_mul_i32 s{sT}, s{sLW}, {16*3840}
    s_add_u32 s{sSW}, s{sSW}, s{sT}
    s_mul_i32 s{sM0W}, s{sLW}, 5120
    s_add_u32 s{sM0W}, s{sM0W}, {WBASE}
    s_mul_i32 s{sM0Q}, s{sLW}, {W2B}
    s_add_u32 s{sM0Q}, s{sM0Q}, {QBASE}
    """)
    def srds():
        a.e("s_waitcnt lgkmcnt(0)")
        mk_srd(a, SRD_A, P_X, NB); mk_srd(a, SRD_B, P_W, 640 * 3840)
    lb, lj = a.newlab("ordB"), a.newlab("ordJ")
    if "noord" not in EX:
        a.e(f"s_add_u32 s{sT}, s{S_RT}, s{S_G}\n s_and_b32 s{sT}, s{sT}, 1\n s_cbranch_scc1 {lb}")
    qoff(0); srds(); issue_x(0); issue_q(0, 1); issue_kv(0, 0)
    a.e(f"s_branch {lj}")
    a.lab(lb)
    woff(0); srds(); issue_kv(0, 1); issue_x(0); issue_q(0, 0)
    a.lab(lj)
    a.e(f"s_add_u32 s{sSX}, s{sSX}, 128\n s_add_u32 s{sSW}, s{sSW}, {64*3840}")
    PCS = [int(c) for c in os.environ.get("PCS", "133443333")]
    assert sum(PCS) == 27
    cnt = [4, 5, 3]
    pos = [3]
    def pieces(n, lim):
        for _ in range(n):
            st, k = divmod(pos[0], 3)
            assert st <= lim
            if k == 0: issue_x(st); a.e(f"s_add_u32 s{sSX}, s{sSX}, 128")
            if k == 1: issue_kv(st)
            if k == 2: issue_q(st); a.e(f"s_add_u32 s{sSW}, s{sSW}, {64*3840}")
            pos[0] += 1
    pieces(PCS[0], 2)
    stamp(a, 1)
    for nb in range(10):
        assert pos[0] >= 3 * (nb + 1)
        young = sum(cnt[i % 3] for i in range(3 * (nb + 1), pos[0]))
        a.e(f"s_waitcnt vmcnt({young})\n s_barrier")
        if nb == 5:
            mk_srd(a, SRD_D, P_DBG, 256)
            a.e(f"v_and_b32 v{l16}, 7, v{L}\n v_lshlrev_b32 v{l16}, 2, v{l16}")
            a.e(f"buffer_load_dword v{la}, v{l16}, {srd(SRD_D)}, 0 offen sc1")
            assert pos[0] == 21
        if nb + 1 < len(PCS): pieces(PCS[nb + 1], nb + 2)
        if nb == 4: mk_fl(a)
        if nb == 8:
            zok = a.newlab("zok")
            a.e(f"s_setprio 0\n v_cmp_ne_u32 vcc, 1, v{la}\n s_nop 1\n s_cmp_eq_u64 vcc, 0\n s_cbranch_scc1 {zok}")
            poll_z(a, t1, t2)
            a.lab(zok)
    stamp(a, 2)
    a.e("s_barrier")
    a.e("s_call_b64 s[72:73], L_WO")
    stamp(a, 3)
    a.e("s_barrier\n s_barrier\n s_branch L_G2")

def phi4(regs, tmps, sLOG, sEPS):
    o = []
    if "nopk" not in EX:
        r, t = regs[0], tmps[0]
        o += [f"v_pk_mul_f32 {v(t+i,2)}, {v(r+i,2)}, s[66:67]" for i in (0, 2)]
        o += [f"v_exp_f32_e64 v{t+i}, v{t+i} clamp" for i in range(4)]
        o += [f"v_max_f32 v{r+i}, s{sEPS}, v{r+i}" for i in range(4)]
        o += [f"v_pk_add_f32 {v(r+i,2)}, {v(r+i,2)}, {v(t+i,2)}" for i in (0, 2)]
        return o
    for r, t in zip(regs, tmps): o.append(f"v_mul_f32 v{t}, s{sLOG}, v{r}")
    for r, t in zip(regs, tmps): o.append(f"v_exp_f32_e64 v{t}, v{t} clamp")
    for r, t in zip(regs, tmps): o.append(f"v_max_f32 v{r}, s{sEPS}, v{r}")
    for r, t in zip(regs, tmps): o.append(f"v_add_f32 v{r}, v{r}, v{t}")
    return o

def b_compute(a):
    if "steps" in EX:
        def stamp2(a, i): pass
    else:
        stamp2 = stamp
    ra = RA(2)
    lr, g, t0, t1, t2 = [ra.a() for _ in range(5)]
    xa = [ra.a(), ra.a()]
    wa = [ra.a() for _ in range(5)]
    ad = [ra.a() for _ in range(6)]
    wb = [ra.a(), ra.a()]; xb = [ra.a(), ra.a()]
    ka, kx = ra.a(), [ra.a(), ra.a()]
    at = [ra.a() for _ in range(4)]
    l16, la = ra.a(), ra.a()
    ix = ra.a(4, 4)
    XF = [[ra.a(4, 4) for _ in range(4)] for _ in range(2)]
    WF = [[ra.a(4, 4) for _ in range(5)] for _ in range(2)]
    QF = [ra.a(4, 4) for _ in range(5)]
    ACC = [[ra.a(4, 4) for _ in range(5)] for _ in range(4)]
    QA = [[ra.a(4, 4) for _ in range(5)] for _ in range(2)]
    sRH, sCH, sT, sLOG, sEPS, sSO = 60, 61, 62, 63, 64, 65
    MF = "v_mfma_f32_16x16x32_bf16"; M32 = "v_mfma_f32_32x32x16_bf16"
    a.c("B compute wave")
    a.e(f"""
    s_lshr_b32 s{sRH}, s{S_WAVE}, 1
    s_and_b32 s{sCH}, s{S_WAVE}, 1
    s_mov_b32 s{sLOG}, {f32(1.4426950408889634)}
    s_mov_b32 s66, s{sLOG}
    s_mov_b32 s67, s{sLOG}
    s_mov_b32 s{sEPS}, {f32(1e-6)}
    v_and_b32 v{lr}, 15, v{L}
    v_lshrrev_b32 v{g}, 4, v{L}
    s_lshl_b32 s{sT}, s{S_WAVE}, 12
    v_lshrrev_b32 v{t0}, 1, v{lr}
    v_xor_b32 v{t0}, v{t0}, v{g}
    v_lshlrev_b32 v{t0}, 4, v{t0}
    v_lshl_add_u32 v{t0}, v{lr}, 7, v{t0}
    v_add_u32 v{xa[0]}, s{sT}, v{t0}
    v_xor_b32 v{xa[1]}, 64, v{xa[0]}
    v_xor_b32 v{xb[0]}, 0x1000, v{xa[0]}
    v_xor_b32 v{xb[1]}, 0x1000, v{xa[1]}
    v_lshrrev_b32 v{t0}, 2, v{lr}
    v_lshl_add_u32 v{t0}, v{g}, 3, v{t0}
    v_mul_u32_u24 v{t0}, 320, v{t0}
    v_add_u32 v{t0}, {WBASE}, v{t0}
    v_and_b32 v{t1}, 1, v{g}
    v_lshlrev_b32 v{t1}, 5, v{t1}
    s_mul_i32 s{sT}, s{sCH}, 160
    v_and_b32 v{t2}, 3, v{lr}
    """)
    for t in range(5):
        w = wa[t]
        if t < 4:
            a.e(f"v_lshl_add_u32 v{w}, v{t2}, 3, s{sT}\n v_add_u32 v{w}, {40*t}, v{w}")
        else:
            a.e(f"v_mul_u32_u24 v{w}, 40, v{t2}\n v_add_u32 v{w}, s{sT}, v{w}\n v_add_u32 v{w}, 32, v{w}")
        a.e(f"v_xor_b32 v{w}, v{w}, v{t1}\n v_add_u32 v{w}, v{w}, v{t0}")
    a.e(f"""
    v_lshrrev_b32 v{t0}, 1, v{g}
    v_mul_u32_u24 v{t0}, {W2B}, v{t0}
    v_and_b32 v{t1}, 1, v{g}
    v_mul_u32_u24 v{t1}, 1408, v{t1}
    v_add3_u32 v{t0}, v{t0}, v{t1}, 32
    v_lshrrev_b32 v{t1}, 2, v{lr}
    v_mul_u32_u24 v{t1}, 160, v{t1}
    v_add_u32 v{t0}, v{t0}, v{t1}
    v_add_u32 v{t0}, {QBASE-32}, v{t0}
    v_lshl_add_u32 v{wb[0]}, v{t2}, 3, v{t0}
    v_mul_u32_u24 v{t1}, 40, v{t2}
    v_add3_u32 v{wb[1]}, v{t0}, v{t1}, 32
    """)
    a.e(f"v_mov_b32 v{t0}, s{sEPS}\n v_cmp_gt_u32 vcc, 8, v{lr}")
    a.e(f"""
    s_mul_i32 s{sT}, s{sRH}, {IMGP}
    s_mul_i32 s{sSO}, s{sCH}, {GB//2}
    s_add_u32 s{sT}, s{sT}, s{sSO}
    s_add_u32 s{sT}, s{sT}, {IMG}
    """)
    for rt in range(4):
        for i in range(4):
            a.e(f"v_cndmask_b32 v{ACC[rt][4]+i}, 0, v{t0}, vcc")
        for i in range(8): a.e(f"v_mov_b32 v{ACC[rt][0]+i}, s{sEPS}")
    for i in range(40): a.e(f"v_mov_b32 v{QA[0][0]+i}, s{sEPS}")
    z4 = XF[0][0]
    a.e(f"v_mov_b32 v{z4}, 1.0")
    for i in range(1, 8): a.e(f"v_mov_b32 v{z4+i}, 0")
    a.e(f"""
    v_min_u32 v{t0}, 143, v0
    v_lshlrev_b32 v{t0}, 6, v{t0}
    v_add_u32 v{t0}, {IMG+48}, v{t0}
    ds_write_b128 v{t0}, {v(z4,4)}
    ds_write_b128 v{t0}, {v(z4+4,4)} offset:{IMGP}
    """)
    for x in range(128): assert (x * 171) >> 9 == x // 3
    a.e(f"""
    v_cmp_eq_u32 vcc, 0, v{lr}
    v_add_u32 v{t0}, 8, v{lr}
    v_add_u32 v{t1}, 4, v{lr}
    v_cndmask_b32 v{t0}, v{t0}, 20, vcc
    v_cndmask_b32 v{t1}, v{t1}, 20, vcc
    """)
    for i, row in enumerate((lr, t0, t1)):
        for k in range(2):
            d = ad[2 * i + k]
            a.e(f"v_mad_u32_u24 v{d}, v{row}, 5, {'v%d' % g if k == 0 else '4'}")
            a.e(f"v_mul_u32_u24 v{t2}, 171, v{d}\n v_lshrrev_b32 v{t2}, 9, v{t2}\n v_add_u32 v{d}, v{d}, v{t2}\n v_lshl_add_u32 v{d}, v{d}, 4, s{sT}")
    a.e(f"""
    v_lshlrev_b32 v{at[0]}, 2, v0
    v_add_u32 v{at[1]}, 4096, v{at[0]}
    v_add_u32 v{at[2]}, 8192, v{at[0]}
    v_add_u32 v{at[3]}, {IMG}, v{at[0]}
    v_lshlrev_b32 v{l16}, 4, v{L}
    v_and_b32 v{t0}, 31, v{L}
    v_lshlrev_b32 v{t1}, 2, v{lr}
    s_mov_b32 s{sT}, 0x54325410
    v_lshrrev_b32 v{t1}, v{t1}, s{sT}
    v_and_b32 v{t1}, 15, v{t1}
    v_add_u32 v{t1}, 16, v{t1}
    v_cmp_lt_u32 vcc, 23, v{t0}
    s_mov_b32 s{sT}, {KVI}
    s_nop 0
    v_cndmask_b32 v{t1}, v{t1}, 21, vcc
    v_cmp_gt_u32 vcc, 16, v{t0}
    v_lshrrev_b32 v{t2}, 5, v{L}
    s_nop 0
    v_cndmask_b32 v{t1}, v{t1}, v{t0}, vcc
    v_mad_u32_u24 v{t1}, v{t1}, 40, s{sT}
    v_lshl_add_u32 v{ka}, v{t2}, 4, v{t1}
    v_add_u32 v{t1}, 32, v{t1}
    v_cmp_eq_u32 vcc, 0, v{t2}
    v_mov_b32 v{t0}, {KVI+840}
    s_nop 0
    v_cndmask_b32 v{kx[0]}, v{t0}, v{t1}, vcc
    v_cndmask_b32 v{kx[1]}, v{t1}, v{t0}, vcc
    s_mul_i32 s{sT}, s{S_WAVE}, 880
    s_add_u32 s{sT}, s{sT}, {KVI}
    v_and_b32 v{t0}, 3, v{L}
    v_lshl_add_u32 v{t0}, v{t0}, 3, s{sT}
    v_lshrrev_b32 v{t1}, 2, v{L}
    v_mad_u32_u24 v{la}, v{t1}, 24, v{t0}
    s_mul_i32 s{sT}, s{S_G}, {GB}
    s_add_u32 s{sT}, s{sT}, {WS_KV}
    s_waitcnt lgkmcnt(0)
    """)
    mk_srd(a, SRD_C, P_WS, GB, off_sreg=sT)
    a.e(f"s_mul_i32 s{sSO}, s{S_WAVE}, {GB//4}\n s_add_u32 s{sT}, s{sT}, s{sSO}")
    mk_srd(a, SRD_A, P_WS, GB // 4, off_sreg=sT)
    mk_srd(a, SRD_B, P_WS, T_BYTES, off=WS_PQ)
    mk_fl(a)
    def reads(st, ks):
        sl = st % NST
        xs = [f"ds_read_b128 {v(XF[ks][rt],4)}, v{xa[ks] if rt < 2 else xb[ks]} offset:{xsl(st)*XST + (rt&1)*2048}" for rt in range(4)]
        ws = [f"ds_read_b64_tr_b16 {v(WF[ks][t]+2*h,2)}, v{wa[t]} offset:{sl*WST + ks*10240 + h*1280}" for t in range(5) for h in range(2)]
        qs = [f"ds_read_b64_tr_b16 {v(QF[t]+2*h,2)}, v{wb[t>>2]} offset:{qsl(st)*QST + ks*2*W2B + h*640 + 40*(t&3)}" for t in range(5) for h in range(2)]
        if st >= 10 - ND: qs = []
        return xs + ws[:6] + qs + ws[6:]
    def mfq(ks):
        return [f"{MF} {v(QA[rt][t],4)}, {v(QF[t],4)}, {v(XF[ks][rt],4)}, {v(QA[rt][t],4)}" for t in range(5) for rt in range(2)]
    def mfkv(ks, first=False):
        o = []
        for rt in range(4):
            for t in range(5):
                d = ACC[rt][t]
                o.append(f"{MF} {v(d,4)}, {v(XF[ks][rt],4)}, {v(WF[ks][t],4)}, {'0' if (first and t in (2, 3)) else v(d,4)}")
        return o
    def mfmas(st, ks): return (mfq(ks) if st < 10 - ND else []) + mfkv(ks, st == 0 and ks == 0)
    def spread(M, F):
        out = []; n = len(M); fi = 0
        for i, m in enumerate(M):
            out.append(m)
            tgt = (len(F) * (i + 1) + n - 1) // n
            out += F[fi:tgt]; fi = tgt
        return out
    for st in range(10):
        a.c(f"step {st}")
        a.e("s_barrier")
        if (st == 0 or "steps" in EX) and "steps2" not in EX: stamp(a, 1 + st)
        if st == 0:
            a.e("\n".join(reads(0, 0)))
        else:
            a.e("\n".join(interleave2(mfmas(st - 1, 1), reads(st, 0), 1)))
        a.e("s_waitcnt lgkmcnt(0)")
        a.e("\n".join(interleave2(mfmas(st, 0), reads(st, 1), 1)))
        a.e("s_waitcnt lgkmcnt(0)")
    a.e("s_barrier")
    stamp2(a, 2)
    tm = [ix + i for i in range(4)]
    last = mfkv(1) + (mfq(1) if ND == 0 else [])
    names = ["T0", "T1", "T2", "T3", "T4A", "T4B"]
    k0 = [XF[0][i] for i in range(4)] + [WF[0][0], WF[0][1]]
    k1 = [WF[0][2], WF[0][3], WF[0][4], XF[1][0], XF[1][1], XF[1][2]]
    P = {n: [k0[i], k1[i]] for i, n in enumerate(names)}
    V = [f"v_cmp_gt_u32 vcc, 8, v{lr}", f"v_mov_b32 v{t0}, 0x3f803f80"]
    for rt in range(4):
        k, h = rt >> 1, rt & 1
        for t, n in ((2, "T2"), (3, "T3"), (4, "T4B")):
            r = ACC[rt][t]; d = P[n][k] + 2 * h
            V += [f"v_cvt_pk_bf16_f32 v{d}, v{r}, v{r+1}", f"v_cvt_pk_bf16_f32 v{d+1}, v{r+2}, v{r+3}"]
        d = P["T4B"][k] + 2 * h
        V += [f"v_cndmask_b32 v{d}, v{d}, v{t0}, vcc", f"v_cndmask_b32 v{d+1}, v{d+1}, v{t0}, vcc"]
        for t, n in ((0, "T0"), (1, "T1"), (4, "T4A")):
            r = [ACC[rt][t] + i for i in range(4)]; d = P[n][k] + 2 * h
            V += phi4(r, tm, sLOG, sEPS)
            V += [f"v_cvt_pk_bf16_f32 v{d}, v{r[0]}, v{r[1]}", f"v_cvt_pk_bf16_f32 v{d+1}, v{r[2]}, v{r[3]}"]
    prods = [("T0", "T2"), ("T0", "T4B"), ("T4A", "T2"), ("T1", "T3"), ("T1", "T4B"), ("T4A", "T3"), ("T4A", "T4B")]
    R = [ACC[0][0] + 4 * i for i in range(7)]
    kvm = lambda k: [f"{MF} {v(R[i],4)}, {v(P[x][k],4)}, {v(P[y][k],4)}, {'0' if k == 0 else v(R[i],4)}" for i, (x, y) in enumerate(prods)]
    half = 2 + (len(V) - 2) // 2
    a.e("\n".join(last[:10] + interleave2(last[10:], V[:half + 4], 2)))
    a.e("\n".join(interleave2(kvm(0), V[half + 4:], 8)))
    a.e("s_nop 1")
    a.e("\n".join(kvm(1)))
    a.e("s_nop 3")
    HBY = GB // 4
    def wr(i, addr, off, lo, hi):
        a.e(f"s_mov_b32 exec_lo, {lo:#x}\n s_mov_b32 exec_hi, {hi:#x}")
        a.e(f"ds_write_b128 v{addr}, {v(R[i],4)} offset:{off}")
    a.e(f"ds_write_b128 v{ad[0]}, {v(R[0],4)}")
    a.e(f"ds_write_b128 v{ad[0]}, {v(R[3],4)} offset:{HBY}")
    wr(1, ad[2], 0, 0x0f010f01, 0x0f010f01)
    wr(4, ad[4], HBY, 0xf001f001, 0xf001f001)
    wr(2, ad[1], 0, 0x0000ffff, 0)
    wr(5, ad[1], HBY, 0xffff0000, 0)
    wr(6, ad[3], 0, 0x00000f01, 0)
    wr(6, ad[5], HBY, 0xf0010000, 0)
    a.e("s_mov_b64 exec, -1\n s_waitcnt lgkmcnt(0)\n s_barrier")
    stamp2(a, 3)
    fr = ACC[0][0]
    for n in range(9):
        a.e(f"ds_read2st64_b32 {v(fr+2*n,2)}, v{at[3]} offset0:{4*n} offset1:{IMGP//256+4*n}")
    AT = []
    for n in range(9):
        AT += [f"v_add_f32 v{fr+2*n}, v{fr+2*n}, v{fr+2*n+1}",
               f"buffer_atomic_add_f32 v{fr+2*n}, v{at[n>>2]}, {srd(SRD_C)}, 0 offen offset:{1024*(n&3)}"]
    DB = [(XF[0][0], WF[0][0]), (XF[1][0], WF[1][0]), (XF[0][2], QF[0]), (XF[1][2], ACC[3][0])]
    def drd(u):
        if u >= 2 * ND: return []
        st, ks = 10 - ND + u // 2, u & 1; xr, wr_ = DB[u]
        return ([f"ds_read_b128 {v(xr+4*rt,4)}, v{xa[ks]} offset:{xsl(st)*XST + rt*2048}" for rt in range(2)] +
                [f"ds_read_b64_tr_b16 {v(wr_+4*t+2*h,2)}, v{wb[t>>2]} offset:{qsl(st)*QST + ks*2*W2B + h*640 + 40*(t&3)}" for t in range(5) for h in range(2)])
    def dmf(u):
        xr, wr_ = DB[u]
        return [f"{MF} {v(QA[rt][t],4)}, {v(wr_+4*t,4)}, {v(xr+4*rt,4)}, {v(QA[rt][t],4)}" for t in range(5) for rt in range(2)]
    a.e("s_waitcnt lgkmcnt(0)")
    a.e("\n".join(spread(AT, drd(0) + drd(1))))
    for u in range(0, 2 * ND, 2):
        a.e("s_waitcnt lgkmcnt(0)")
        M = dmf(u) + dmf(u + 1)
        a.e("\n".join(spread(M[:14], drd(u + 2) + drd(u + 3)) + M[14:]))
    EXT = XF[0][0]
    KF = [EXT + 4 * h for h in range(4)]
    KX = EXT + 16
    OB = [EXT + 28 + 4 * t for t in range(5)]
    OX = EXT + 48; rc = EXT + 52; LD = EXT + 56
    CT = [ACC[0][0] + 16 + 16 * h for h in range(4)]
    a.e(f"""
    s_lshl_b32 s{sT}, s{S_RT}, 2
    s_add_u32 s{sT}, s{sT}, s{S_WAVE}
    s_lshl_b32 s{sT}, s{sT}, 3
    s_add_u32 s{sT}, s{sT}, s{S_G}
    s_mul_i32 s{sSO}, s{sT}, 5120
    s_add_u32 s{sRH}, s{sSO}, 4096
    s_add_u32 s{sT}, s{sT}, 64
    s_mul_i32 s{sCH}, s{S_WAVE}, 880
    s_add_u32 s{sCH}, s{sCH}, {KVI}
    v_lshl_add_u32 v{t0}, v{L}, 3, s{sCH}
    """)
    for i in (2, 3, 8, 9): a.e(f"v_mov_b32 v{KX+i}, 0")
    a.e(f"s_mov_b64 exec, 31\n ds_write_b64 v{t0}, {v(KX+2,2)} offset:840\n s_mov_b64 exec, -1")
    def phiq(t):
        o = []; ob = OB[t]
        for h in range(2):
            r = [QA[h][t] + i for i in range(4)]
            o += phi4(r, tm, sLOG, sEPS)
            o += [f"v_cvt_pk_bf16_f32 v{ob+2*h}, v{r[0]}, v{r[1]}", f"v_cvt_pk_bf16_f32 v{ob+2*h+1}, v{r[2]}, v{r[3]}"]
        o += ["s_nop 1", f"v_permlane16_swap_b32 v{ob}, v{ob+2}", f"v_permlane16_swap_b32 v{ob+1}, v{ob+3}"]
        return o
    def omf(h):
        c = v(CT[h], 16)
        return [f"{M32} {c}, {v(KX+6*(h>>1)+2*(h&1),4)}, {v(OB[4],4)}, 0", "s_nop 0",
                f"{M32} {c}, {v(KF[h],4)}, {v(OB[h],4)}, {c}"]
    def norm(h):
        c = CT[h]; d = OB[h]
        o = [f"v_add_f32 v{rc}, s{sEPS}, v{c+10}", f"v_rcp_f32 v{rc}, v{rc}", "s_nop 0"]
        o += [f"v_mul_f32 v{c+i}, v{c+i}, v{rc}" for i in range(10)]
        o += [f"v_cvt_pk_bf16_f32 v{d+i}, v{c+2*i}, v{c+2*i+1}" for i in range(4)]
        o += [f"buffer_store_dwordx4 {v(d,4)}, v{l16}, {srd(SRD_B)}, s{sSO} offen offset:{1024*h} sc1"]
        o += [f"v_cvt_pk_bf16_f32 v{OX+h}, v{c+8}, v{c+9}"]
        return o
    def kvload():
        for n in range(3):
            a.e(f"buffer_load_dwordx4 {v(LD+4*n,4)}, v{l16}, {srd(SRD_A)}, 0 offen offset:{1024*n} sc1")
    KP = int(os.environ.get("KP", "6"))
    for i in range(5):
        if i == KP: kvload()
        a.e("\n".join(phiq(i)))
    stamp2(a, 4)
    lf, lv, ld = a.newlab("kvf"), a.newlab("kvv"), a.newlab("kvd")
    a.e(f"s_mov_b32 s69, {f32(16.0)}\n s_mov_b32 s70, 0x88888888\n s_mov_b32 s71, 0x88888888\n s_mov_b32 s74, {SPIN_MAX}")
    if KP < 5: a.e(f"s_branch {lv}")
    if KP == 6: a.e("s_waitcnt vmcnt(0)")
    a.lab(lf)
    kvload()
    a.lab(lv)
    a.e(f"""
    s_waitcnt vmcnt(0)
    v_min_f32 v{t0}, v{LD}, v{LD+4}
    v_cmp_neq_f32 s[4:5], s69, v{LD+8}
    v_cmp_neq_f32 vcc, s69, v{t0}
    s_sub_u32 s74, s74, 1
    s_cbranch_scc1 {ld}
    s_and_b32 s4, s4, 0x888
    s_and_b64 vcc, vcc, s[70:71]
    s_or_b32 vcc_lo, vcc_lo, s4
    s_cmp_eq_u64 vcc, 0
    s_cbranch_scc1 {ld}
    s_sleep {os.environ.get("KSL", "2")}
    s_branch {lf}
    """)
    a.lab(ld)
    for n in range(3):
        r = LD + 4 * n
        a.e(f"v_cvt_pk_bf16_f32 v{r}, v{r}, v{r+1}\n v_cvt_pk_bf16_f32 v{r+1}, v{r+2}, v{r+3}")
    a.e("s_mov_b32 exec_lo, 0x77777777\n s_mov_b32 exec_hi, 0x77777777")
    for n in range(3):
        if n == 2: a.e("s_mov_b64 exec, 0x777")
        a.e(f"ds_write_b64 v{la}, {v(LD+4*n,2)} offset:{384*n}")
    a.e("s_mov_b64 exec, -1\n s_waitcnt lgkmcnt(0)\n s_barrier")
    stamp2(a, 5)
    if STAMPS: a.e("s_waitcnt lgkmcnt(0)")
    for h in range(4):
        a.e(f"ds_read_b64 {v(KX+6*(h>>1)+4*(h&1),2)}, v{kx[h>>1]} offset:{880*h}")
        a.e(f"ds_read_b64 {v(KF[h],2)}, v{ka} offset:{880*h}\n ds_read_b64 {v(KF[h]+2,2)}, v{ka} offset:{880*h+8}")
    for h in range(3):
        a.e(f"s_waitcnt lgkmcnt({9-3*h})")
        a.e("\n".join(omf(h)))
    a.e("s_waitcnt lgkmcnt(0)\n s_nop 3")
    N0 = norm(0)
    a.e("\n".join(N0[:6] + omf(3)[:1] + N0[6:12] + omf(3)[2:] + N0[12:] + norm(1) + norm(2) + norm(3)))
    a.e(f"buffer_store_dwordx4 {v(OX,4)}, v{l16}, {srd(SRD_B)}, s{sRH} offen sc1")
    stamp2(a, 6)
    a.e("s_waitcnt vmcnt(0)")
    set_flag(a, sT, t0, t1, wave=None)
    a.e("s_branch L_G2")
    return ra.hi

PF0 = int(os.environ.get("PF0", "1")); AH = int(os.environ.get("AH", "0"))
def pf_lanes(a, vW, vX, t0, t1, sU, sC):
    for x in range(64): assert (x * 52) >> 8 == x // 5
    a.e(f"""
    v_min_u32 v{t0}, 59, v{L}
    v_mul_u32_u24 v{t1}, 52, v{t0}
    v_lshrrev_b32 v{t1}, 8, v{t1}
    v_mul_u32_u24 v{vX}, 5, v{t1}
    v_sub_u32 v{t0}, v{t0}, v{vX}
    v_lshlrev_b32 v{t0}, 7, v{t0}
    s_movk_i32 s{sU}, 1280
    v_mad_u32_u24 v{vW}, v{t1}, s{sU}, v{t0}
    v_mul_u32_u24 v{vX}, 1280, v{L}
    s_and_b32 s{sC}, s{S_XI}, 1
    s_mul_i32 s{sC}, s{sC}, 640
    """)
def pf_one(a, sT, sA, sB, sU, sC, vW, vX, dst):
    for x in range(300): assert (x * 2731) >> 16 == x // 24
    lx, le = a.newlab("px"), a.newlab("pe")
    a.e(f"""
    s_mul_i32 s{sA}, s{sT}, 2731
    s_lshr_b32 s{sA}, s{sA}, 16
    s_mul_i32 s{sB}, s{sA}, 24
    s_sub_u32 s{sB}, s{sT}, s{sB}
    s_add_u32 s{sA}, s{sA}, {PF0}
    s_cmp_lt_u32 s{sB}, 8
    s_cbranch_scc1 {lx}
    s_sub_u32 s{sB}, s{sB}, 8
    s_lshl_b32 s{sB}, s{sB}, 2
    s_lshl_b32 s{sA}, s{sA}, 6
    s_add_u32 s{sA}, s{sA}, s{sB}
    s_mul_i32 s{sA}, s{sA}, 3840
    s_add_u32 s{sA}, s{sA}, s{sC}
    buffer_load_dword v{dst}, v{vW}, {srd(SRD_B)}, s{sA} offen
    s_branch {le}
    """)
    a.lab(lx)
    a.e(f"""
    s_lshr_b32 s{sU}, s{S_XI}, 1
    s_lshl_b32 s{sU}, s{sU}, 3
    s_add_u32 s{sB}, s{sB}, s{sU}
    s_mul_i32 s{sB}, s{sB}, {64*1280}
    s_lshl_b32 s{sA}, s{sA}, 7
    s_add_u32 s{sA}, s{sA}, s{sB}
    buffer_load_dword v{dst}, v{vX}, {srd(SRD_A)}, s{sA} offen
    """)
    a.lab(le)

def a1(a):
    ra = RA(2)
    t0, t1, t2 = [ra.a() for _ in range(3)]
    vo = [ra.a() for _ in range(5)]
    lr, g, ad, adh, so_u, otap = [ra.a() for _ in range(6)]
    taps = [ra.a(2) for _ in range(3)]
    KR = [ra.a(6, 2) for _ in range(6)]; VR = [ra.a(4, 2) for _ in range(6)]
    W = [ra.a(5) for _ in range(3)]; U = ra.a(8); O = [ra.a(4, 4) for _ in range(6)]; X = ra.a(4)
    vz = ra.a()
    sTI, sCH, sSO, sM0, sT, sSH, sU, sCG = 60, 61, 62, 63, 64, 65, 66, 67
    a.c("A1: 32 rows x 320 channels")
    a.e(f"""
    s_sub_u32 s{sT}, s{S_J}, 24
    s_lshl_b32 s{sT}, s{sT}, 3
    s_add_u32 s{sT}, s{sT}, s{S_XI}
    s_lshr_b32 s{sTI}, s{sT}, 1
    s_and_b32 s{sCH}, s{sT}, 1
    s_lshl_b32 s{S_ASLOT}, s{sCH}, 5
    s_add_u32 s{S_ASLOT}, s{S_ASLOT}, s{sTI}
    s_mov_b32 s{sCG}, s{S_WAVE}
    s_lshl_b32 s{sT}, s{sTI}, 3
    s_add_u32 s{sT}, s{sT}, s{S_WAVE}
    s_mul_i32 s{sSO}, s{sT}, {8*1280}
    s_mul_i32 s{sT}, s{sCH}, 640
    s_add_u32 s{sSO}, s{sSO}, s{sT}
    s_mul_i32 s{sM0}, s{S_WAVE}, 5120
    s_and_b32 s{sT}, s{S_WAVE}, 1
    s_lshl_b32 s{sT}, s{sT}, 2
    """)
    for x in range(320): assert (x * 1639) >> 16 == x // 40
    a.e(f"s_movk_i32 s{sU}, 1280")
    def koff(j):
        sub = 1024 * j if j < 4 else 0
        o = []; src = L
        if j: o.append(f"v_add_u32 v{t0}, {64*j}, v{L}"); src = t0
        o += [f"v_mul_u32_u24 v{t1}, 1639, v{src}", f"v_lshrrev_b32 v{t1}, 16, v{t1}",
              f"v_mul_u32_u24 v{t2}, 40, v{t1}", f"v_sub_u32 v{t0}, v{src}, v{t2}",
              f"v_and_or_b32 v{t2}, v{t1}, 2, s{sT}", f"v_xor_b32 v{t0}, v{t0}, v{t2}", f"v_lshlrev_b32 v{t0}, 4, v{t0}"]
        if sub: o += [f"v_mad_u32_u24 v{t0}, v{t1}, s{sU}, v{t0}", f"v_subrev_u32 v{vo[j]}, {sub}, v{t0}"]
        else: o += [f"v_mad_u32_u24 v{vo[j]}, v{t1}, s{sU}, v{t0}"]
        a.e("\n".join(o))
    koff(0); koff(1)
    a.e("s_waitcnt lgkmcnt(0)")
    mk_srd(a, SRD_A, P_K, NB); mk_srd(a, SRD_B, P_V, NB)
    def dma1(srdn, lbase, so, j):
        a.e(f"s_add_u32 m0, s{sM0}, {lbase + (4096 if j == 4 else 0)}\n s_nop 0")
        a.e(f"buffer_load_dwordx4 v{vo[j]}, {srd(srdn)}, s{so} offen offset:{1024*(j&3)} lds")
    for j in range(5):
        if j >= 2: koff(j)
        dma1(SRD_A, A_KB, sSO, j); dma1(SRD_B, A_VB, sSO, j)
        if j == 1:
            mk_srd(a, SRD_D, P_SH, 640 * 8)
            a.e(f"""
            v_and_b32 v{lr}, 15, v{L}
            s_mul_i32 s{sSH}, s{sCH}, 320
            v_add_u32 v{so_u}, s{sSH}, v{lr}
            v_lshlrev_b32 v{otap}, 3, v{so_u}
            s_lshl_b32 s{sSH}, s{sCG}, 7
            """)
            for n in range(3):
                a.e(f"buffer_load_dwordx2 {v(taps[n],2)}, v{otap}, {srd(SRD_D)}, s{sSH} offen offset:{1024*n}")
    lab = a.newlab("a1_nohalo")
    a.e(f"""
    s_cmp_lg_u32 s{S_WAVE}, 7
    s_cbranch_scc1 {lab}
    s_sub_u32 s{sSH}, s{sSO}, {64*1280}
    s_cmp_eq_u32 s{sTI}, 0
    s_cselect_b32 s{sSH}, {NB}, s{sSH}
    """)
    for j in (2, 3, 4): dma1(SRD_A, A_KB - 8 * 5120, sSH, j)
    a.lab(lab)
    NH = 0
    if AH:
        NH = 1
        nhp = a.newlab("nohelp")
        pf_lanes(a, 240, 241, t0, t1, 68, 69)
        mk_srd(a, SRD_A, P_X, NB); mk_srd(a, SRD_B, P_W, 640 * 3840)
        a.e(f"""
        s_lshl_b32 s70, s{S_WAVE}, 3
        s_add_u32 s70, s70, s{S_J}
        s_sub_u32 s70, s70, 24
        s_min_u32 s70, s70, {AH-1}
        s_add_u32 s70, s70, {24*(10-PF0)-AH}
        s_barrier
        s_cmp_lt_u32 s{S_WAVE}, {AH//8}
        s_cbranch_scc1 {nhp}
        s_mov_b64 exec, 1
        """)
        a.lab(nhp)
        pf_one(a, 70, 71, 72, 68, 69, 240, 241, 244)
        a.e("s_mov_b64 exec, -1")
    mk_srd(a, SRD_D, P_DBG, 256)
    a.e(f"v_and_b32 v{vz}, 7, v{L}\n v_lshlrev_b32 v{vz}, 2, v{vz}")
    mk_srd(a, SRD_C, P_WS, T_BYTES)
    mk_fl(a)
    conv_sload(a)
    a.e(f"""
    v_lshrrev_b32 v{g}, 4, v{L}
    v_lshrrev_b32 v{t0}, 2, v{lr}
    v_lshl_add_u32 v{t1}, v{g}, 3, v{t0}
    v_mul_u32_u24 v{ad}, 640, v{t1}
    v_and_b32 v{t2}, 3, v{lr}
    v_lshl_add_u32 v{ad}, v{t2}, 3, v{ad}
    v_add_u32 v{ad}, {A_KB}, v{ad}
    v_lshrrev_b32 v{t0}, 1, v{t0}
    v_and_b32 v{t1}, 1, v{g}
    v_lshl_or_b32 v{t0}, v{t1}, 1, v{t0}
    v_xor_b32 v{t0}, s{sCG}, v{t0}
    v_lshlrev_b32 v{t0}, 5, v{t0}
    v_xor_b32 v{t1}, 64, v{t0}
    v_add_u32 v{adh}, v{t1}, v{ad}
    v_subrev_u32 v{adh}, {4*640}, v{adh}
    v_add_u32 v{ad}, v{t0}, v{ad}
    v_and_b32 v{t0}, 0xfffffff7, v{so_u}
    v_lshlrev_b32 v{t0}, 12, v{t0}
    s_lshl_b32 s{sT}, s{sTI}, 7
    v_lshlrev_b32 v{t1}, 4, v{g}
    v_add_u32 v{t1}, s{sT}, v{t1}
    v_and_b32 v{t2}, 8, v{lr}
    v_lshl_add_u32 v{t1}, v{t2}, 3, v{t1}
    v_sub_u32 v{so_u}, 4080, v{t1}
    v_add_u32 v{so_u}, v{so_u}, v{t0}
    s_lshl_b32 s{sU}, s{sCG}, 16
    """)
    def tapprep(n):
        tp, w = taps[n], W[n]
        a.e(f"""
        v_alignbit_b32 v{w}, v{tp}, v{tp}, 16
        v_alignbit_b32 v{w+1}, v{tp+1}, v{tp+1}, 16
        v_and_b32 v{w+2}, 0xffff0000, v{tp}
        v_and_b32 v{w+3}, 0xffff, v{tp}
        v_and_b32 v{w+4}, 0xffff, v{tp+1}
        v_or_b32 v{w+2}, v{w+2}, v{w+4}
        v_and_b32 v{w+4}, 0xffff0000, v{tp+1}
        """)
    a.e(f"s_waitcnt vmcnt({6+NH})")
    for n in range(3): tapprep(n)
    stamp(a, 1)
    a.e(f"s_waitcnt vmcnt({NH}) lgkmcnt(0)\n s_barrier")
    a.e(f"buffer_load_dword v{vz}, v{vz}, {srd(SRD_D)}, 0 offen sc1")
    stamp(a, 2)
    if STAMPS: a.e("s_waitcnt lgkmcnt(0)")
    def rd(u):
        o = 256 * (u >> 1) + (u & 1) * 32 * 640
        return [f"ds_read_b64_tr_b16 {v(KR[u],2)}, v{adh} offset:{o}",
                f"ds_read_b64_tr_b16 {v(KR[u]+2,2)}, v{ad} offset:{o}",
                f"ds_read_b64_tr_b16 {v(KR[u]+4,2)}, v{ad} offset:{o+2560}",
                f"ds_read_b64_tr_b16 {v(VR[u],2)}, v{ad} offset:{A_VB-A_KB+o}",
                f"ds_read_b64_tr_b16 {v(VR[u]+2,2)}, v{ad} offset:{A_VB-A_KB+o+2560}"]
    a.e("\n".join(rd(0) + rd(1) + rd(2)))
    done = a.newlab("a1_done")
    for u in range(6):
        k, w, ob = KR[u], W[u >> 1], O[u]
        if u == 4: a.e(f"s_cmp_ge_u32 s{S_WAVE}, 4\n s_cbranch_scc1 {done}")
        a.e(f"s_waitcnt lgkmcnt({5*(min(5, u + 2) - u)})")
        if u + 3 < 6:
            a.e("\n".join(rd(u + 3)))
        for m in range(4):
            a.e(f"v_dot2_f32_bf16 v{U+2*m}, v{k+m}, v{w+4}, 0")
            a.e(f"v_dot2_f32_bf16 v{U+2*m+1}, v{k+m+1}, v{w+1}, 0")
        for m in range(4):
            a.e(f"v_dot2_f32_bf16 v{U+2*m}, v{k+m+1}, v{w+2}, v{U+2*m}")
            a.e(f"v_dot2_f32_bf16 v{U+2*m+1}, v{k+m+2}, v{w}, v{U+2*m+1}")
        for m in range(4):
            a.e(f"v_dot2_f32_bf16 v{U+2*m}, v{k+m+2}, v{w+3}, v{U+2*m}")
        for m in range(4):
            x = X + 2 * (m & 1)
            a.e(f"""
            v_lshlrev_b32 v{x}, 16, v{VR[u]+m}
            v_and_b32 v{x+1}, 0xffff0000, v{VR[u]+m}
            v_mul_f32 v{x+1}, v{x+1}, v{U+2*m+1}
            v_mul_f32 v{x}, v{x}, v{U+2*m}
            v_cvt_pk_bf16_f32 v{ob+3-m}, v{x+1}, v{x}
            """)
        if u & 1:
            lo, hi = O[u - 1], O[u]
            for i in range(4): a.e(f"v_mov_b32 v{X+i}, v{lo+i}")
            for i in (3, 2, 1, 0): a.e(f"v_mov_b32_dpp v{lo+i}, v{hi+i} row_ror:8 row_mask:0xf bank_mask:0xc")
            for i in range(4): a.e(f"v_mov_b32_dpp v{hi+i}, v{X+i} row_ror:8 row_mask:0xf bank_mask:0x3")
            a.e(f"buffer_store_dwordx4 {v(lo,4)}, v{so_u}, {srd(SRD_C)}, s{sU} offen sc1")
            a.e(f"s_add_u32 s{sT}, s{sU}, {8*4096}")
            a.e(f"buffer_store_dwordx4 {v(hi,4)}, v{so_u}, {srd(SRD_C)}, s{sT} offen sc1")
            a.e(f"s_add_u32 s{sU}, s{sU}, {8<<16}")
    a.lab(done)
    a.e("s_waitcnt lgkmcnt(0)")
    stamp(a, 3)
    nz = a.newlab("a1_nz")
    a.e(f"s_waitcnt vmcnt(0)\n v_cmp_ne_u32 vcc, 1, v{vz}\n s_nop 1\n s_cmp_eq_u64 vcc, 0\n s_cbranch_scc1 {nz}")
    poll_z(a, t0, t1)
    a.lab(nz)
    a.e("s_barrier")
    stamp(a, 4)
    set_flag(a, S_ASLOT, t0, t1)
    return ra.hi

def prefetcher(a):
    vW, vX, vQ, vO, t0, t1, z4 = 2, 3, 4, 5, 6, 7, 8
    sN, sA, sB, sC, sT, sU = 60, 61, 62, 63, 64, 65
    a.c("L2 prefetch of this XCD's GEMM operands in K order (speed only) + housekeeping")
    pf_lanes(a, vW, vX, t0, t1, sU, sC)
    a.e(f"""
    s_lshl_b32 s{sN}, s{S_WAVE}, 3
    s_add_u32 s{sN}, s{sN}, s{S_J}
    s_sub_u32 s{sN}, s{sN}, 16
    s_waitcnt lgkmcnt(0)
    """)
    mk_fl(a)
    nz, nt, nc = a.newlab("nozero"), a.newlab("notlb"), a.newlab("nocode")
    a.e(f"s_cmp_lg_u32 s{sN}, 63\n s_cbranch_scc1 {nz}")
    a.e(f"s_mul_i32 s{sT}, s{S_XI}, {GB}\n s_add_u32 s{sT}, s{sT}, {WS_KV}")
    mk_srd(a, SRD_C, P_WS, GB, off_sreg=sT)
    mk_srd(a, SRD_D, P_DBG, 256)
    for i in range(4): a.e(f"v_mov_b32 v{z4+i}, 0")
    a.e(f"""
    v_lshlrev_b32 v{t0}, 4, v{L}
    v_lshlrev_b32 v{t1}, 7, v{L}
    s_lshl_b32 s{sT}, s{S_XI}, 13
    buffer_store_dword v{z4}, v{t1}, {srd(SRD_FL)}, s{sT} offen sc1
    s_add_u32 s{sT}, s{sT}, 0x10000
    buffer_store_dword v{z4}, v{t1}, {srd(SRD_FL)}, s{sT} offen sc1
    s_movk_i32 s{sT}, 4096
    s_movk_i32 s{sU}, 8192
    """)
    for n in range(9):
        a.e(f"buffer_store_dwordx4 {v(z4,4)}, v{t0}, {srd(SRD_C)}, {('0', 's%d' % sT, 's%d' % sU)[n>>2]} offen offset:{1024*(n&3)} sc1")
    a.e(f"""
    s_lshl_b32 s{sT}, s{S_XI}, 2
    v_mov_b32 v{t1}, 1
    s_waitcnt vmcnt(0)
    s_mov_b64 exec, 1
    buffer_store_dword v{t1}, v{t0}, {srd(SRD_D)}, s{sT} offen sc1
    s_mov_b64 exec, -1
    """)
    a.lab(nz)
    a.e(f"s_cmp_lg_u32 s{sN}, 62\n s_cbranch_scc1 {nt}")
    a.e(f"v_lshlrev_b32 v{t1}, 20, v{L}")
    for i, (ptr, nb) in enumerate([(P_WS, WS_END), (P_OUT, 2048 * 2560), (P_Q, NB), (P_WO, 640 * 1280), (P_DBG, 256), (P_H, T_BYTES)]):
        mk_srd(a, SRD_A, ptr, nb)
        a.e(f"buffer_load_dword v{236+i}, v{t1}, {srd(SRD_A)}, 0 offen")
    a.lab(nt)
    a.e(f"s_sub_u32 s{sT}, s{sN}, 56\n s_cmp_ge_u32 s{sT}, 6\n s_cbranch_scc1 {nc}\n s_getpc_b64 s[6:7]")
    a.lab("L_PC")
    a.e(f"""
    s_sub_u32 s6, s6, L_PC-{KN}
    s_subb_u32 s7, s7, 0
    s_lshl_b32 s{sT}, s{sT}, 13
    v_lshl_add_u32 v{t1}, v{L}, 7, s{sT}
    v_min_u32 v{t1}, L_END-{KN}-128, v{t1}
    global_load_dword v252, v{t1}, s[6:7]
    """)
    a.lab(nc)
    mk_srd(a, SRD_A, P_X, NB); mk_srd(a, SRD_B, P_W, 640 * 3840)
    done = a.newlab("pfd")
    NI = 24 * (10 - PF0) - AH
    for m in range((NI + 63) // 64):
        if m and "nopb" not in EX: a.e("s_barrier")
        a.e(f"s_add_u32 s{sT}, s{sN}, {64*m}")
        if 64 * m + 64 > NI: a.e(f"s_cmp_ge_u32 s{sT}, {NI}\n s_cbranch_scc1 {done}")
        pf_one(a, sT, sA, sB, sU, sC, vW, vX, 244 + m)
    a.lab(done)
    a.e("s_barrier")
    nh = a.newlab("pnh")
    mk_srd(a, SRD_B, P_H, T_BYTES)
    a.e(f"""
    s_cmp_ge_u32 s{sN}, 32
    s_cbranch_scc1 {nh}
    s_mul_i32 s{sA}, s{S_XI}, {80*4096}
    s_lshl_b32 s{sB}, s{sN}, 13
    s_add_u32 s{sA}, s{sA}, s{sB}
    v_lshlrev_b32 v{t0}, 7, v{L}
    buffer_load_dword v249, v{t0}, {srd(SRD_B)}, s{sA} offen
    """)
    a.lab(nh)
    mk_srd(a, SRD_A, P_WO, 640 * 1280)
    a.e(f"""
    s_mul_i32 s{sA}, s{sN}, {12*1280}
    s_add_u32 s{sA}, s{sA}, s{sC}
    buffer_load_dword v248, v{vW}, {srd(SRD_A)}, s{sA} offen
    """)
    nq = a.newlab("pnq")
    mk_srd(a, SRD_B, P_Q, NB)
    a.e(f"""
    s_cmp_ge_u32 s{S_J}, 20
    s_cbranch_scc1 {nq}
    s_barrier
    s_and_b32 s{sA}, s{S_J}, 3
    s_lshl_b32 s{sA}, s{sA}, 3
    s_add_u32 s{sA}, s{sA}, s{S_WAVE}
    s_xor_b32 s{sA}, s{sA}, 16
    s_mul_i32 s{sA}, s{sA}, {64*1280}
    s_mul_i32 s{sB}, s{S_XI}, 160
    s_add_u32 s{sA}, s{sA}, s{sB}
    buffer_load_dword v250, v{vX}, {srd(SRD_B)}, s{sA} offen
    buffer_load_dword v251, v{vX}, {srd(SRD_B)}, s{sA} offen offset:156
    """)
    a.lab(nq)
    conv_sload(a)
    stamp(a, 1)
    nz = a.newlab("pnz")
    a.e(f"s_cmp_lg_u32 s{S_WAVE}, 1\n s_cbranch_scc1 {nz}")
    poll_z(a, t0, t1)
    a.lab(nz)
    a.e("s_waitcnt lgkmcnt(0)")

def conv(a):
    ra = RA(2)
    lr, g, t0, t1, t2, aB, aT, vrow, vfl, vrow2, aR = [ra.a() for _ in range(11)]
    aA = [ra.a() for _ in range(4)]
    z4 = ra.a(4, 4); AD = ra.a(4, 4)
    Q = ra.a(16, 4)
    AF = [[ra.a(4, 4) for _ in range(8)] for _ in range(2)]
    BF = [[ra.a(4, 4) for _ in range(8)] for _ in range(2)]
    ACC = [ra.a(4, 4) for _ in range(8)]
    sD, sR, sSO, sT, sOO, sDV, sH, sQO = 60, 61, 62, 63, 64, 65, 66, 67
    fin, idle = a.newlab("conv_fin"), a.newlab("conv_idle")
    a.c("conv")
    if "noconv" in EX: a.e("s_branch L_FIN")
    mk_srd(a, SRD_A, P_WS, T_BYTES); mk_srd(a, SRD_B, P_Q, NB); mk_srd(a, SRD_C, P_OUT, 2048 * 2560)
    def qtouch():
        a.e(f"""
        s_sub_u32 s{sT}, s{S_J}, 20
        s_lshl_b32 s{sT}, s{sT}, 3
        s_add_u32 s{sT}, s{sT}, s{S_WAVE}
        s_mul_i32 s{sT}, s{sT}, {22*1280}
        s_mul_i32 s70, s{S_XI}, 160
        s_add_u32 s{sT}, s{sT}, s70
        v_and_b32 v{t2}, 31, v{L}
        v_min_u32 v{t2}, 21, v{t2}
        v_mul_u32_u24 v{t2}, 1280, v{t2}
        v_lshrrev_b32 v{t1}, 1, v{g}
        v_mul_u32_u24 v{t1}, 156, v{t1}
        v_add_u32 v{t2}, v{t2}, v{t1}
        buffer_load_dword v250, v{t2}, {srd(SRD_B)}, s{sT} offen
        """)
    def qg(slot, rowoff, nd):
        return [f"s_add_u32 s{sT}, s{sQO}, {rowoff*1280}",
                f"buffer_load_dwordx{nd} {v(Q+slot,nd)}, v{vrow}, {srd(SRD_B)}, s{sT} offen"]
    def qgather(n):
        l4, le = a.newlab("q4"), a.newlab("qe")
        ro = (1024 if n < 2 else 0) + 64 * (n & 1)
        a.e(f"s_cmp_lg_u32 s{S_P2}, 8\n s_cbranch_scc1 {l4}")
        a.e("\n".join(qg(4 * n, ro, 4)))
        if n >= 2:
            a.e(f"s_branch {le}")
        a.lab(l4)
        if n >= 2:
            a.e("\n".join(qg(4 * n, ro, 2)))
            a.lab(le)
    a.e(f"""
    v_and_b32 v{lr}, 15, v{L}
    v_lshrrev_b32 v{g}, 4, v{L}
    v_mul_u32_u24 v{vrow}, 1280, v{L}
    s_mul_i32 s{sQO}, s{S_WAVE}, {128*1280}
    s_lshl_b32 s{sOO}, s{sQO}, 1
    s_lshl_b32 s{sT}, s{S_CB}, 1
    s_add_u32 s{sQO}, s{sQO}, s{sT}
    s_add_u32 s{sOO}, s{sOO}, s{sT}
    v_lshlrev_b32 v{vrow2}, 1, v{vrow}
    v_lshrrev_b32 v{aR}, 2, v{lr}
    v_mul_u32_u24 v{aR}, {TP}, v{aR}
    v_and_b32 v{t1}, 3, v{lr}
    v_lshl_add_u32 v{aR}, v{t1}, 3, v{aR}
    v_lshl_add_u32 v{aR}, v{g}, 5, v{aR}
    s_lshl_b32 s{sT}, s{S_WAVE}, 8
    s_add_u32 s{sT}, s{sT}, {TB}
    v_add_u32 v{aR}, s{sT}, v{aR}
    s_cmp_ge_u32 s{S_WAVE}, s{S_P2}
    s_cbranch_scc1 {idle}
    s_add_u32 s{sD}, s{S_CB}, s{S_WAVE}
    s_lshl_b32 s{sSO}, s{sD}, 12
    v_lshlrev_b32 v{t0}, 4, v{L}
    """)
    HH, HG = AF[0][0], BF[0][0]
    mk_srd(a, SRD_D, P_H, T_BYTES)
    h_load(a, HH, t0, SRD_D, sSO)
    a.e(f"""
    s_mul_i32 s{sR}, s{S_WAVE}, {UP}
    s_add_u32 s{sR}, s{sR}, {UB}
    s_mul_i32 s{sH}, s{S_WAVE}, {HP}
    s_cmp_ge_u32 s{sD}, 320
    s_cselect_b32 s{sT}, 32, 0
    v_and_b32 v{vfl}, 31, v{L}
    v_add_u32 v{vfl}, s{sT}, v{vfl}
    v_lshlrev_b32 v{vfl}, 7, v{vfl}
    """)
    for i in range(4):
        a.e(f"v_mov_b32 v{z4+i}, 0")
    a.e(f"""
    v_and_b32 v{t1}, 1, v{lr}
    v_cmp_eq_u32 vcc, 1, v{t1}
    v_mov_b32 v{t1}, {HB+H_O}
    v_mov_b32 v{t2}, {HB+2}
    v_cndmask_b32 v{t1}, v{t1}, v{t2}, vcc
    v_lshl_add_u32 v{t1}, v{lr}, 1, v{t1}
    v_lshl_add_u32 v{t1}, v{g}, 4, v{t1}
    v_add_u32 v{aA[0]}, s{sH}, v{t1}
    v_add_u32 v{aA[1]}, 1024, v{aA[0]}
    v_add_u32 v{aA[2]}, 2048, v{aA[0]}
    v_add_u32 v{aA[3]}, 3072, v{aA[0]}
    v_lshlrev_b32 v{t0}, 4, v{L}
    v_add_u32 v{aT}, s{sR}, v{t0}
    s_and_b32 s{sT}, s{sD}, 1
    s_lshl_b32 s{sT}, s{sT}, 4
    s_lshr_b32 s{sDV}, s5, s{sT}
    s_and_b32 s{sDV}, s{sDV}, 0xffff
    v_lshl_add_u32 v{t1}, v{g}, 3, v{lr}
    v_sub_u32 v{t1}, 15, v{t1}
    v_and_b32 v{t2}, 1, v{t1}
    v_lshlrev_b32 v{t2}, 4, v{t2}
    v_lshlrev_b32 v{t2}, v{t2}, s{sDV}
    v_ashrrev_i32 v{t1}, 1, v{t1}
    """)
    for r in range(4):
        a.e(f"v_cmp_eq_u32 vcc, {r}, v{t1}\n s_nop 1\n v_cndmask_b32 v{AD+r}, 0, v{t2}, vcc")
    a.e(f"""
    v_lshlrev_b32 v{t1}, 5, v{lr}
    v_sub_u32 v{aB}, 480, v{t1}
    v_lshl_add_u32 v{aB}, v{g}, 4, v{aB}
    v_add_u32 v{aB}, s{sR}, v{aB}
    """)
    a.e("s_waitcnt vmcnt(0)")
    h_stage(a, HH, HG, S_WAVE, t0, t1, sT)
    a.e(f"s_mov_b32 exec_hi, 0\n ds_write_b128 v{aT}, {v(z4,4)} offset:4096\n s_mov_b64 exec, -1")
    a.e("s_waitcnt lgkmcnt(0)")
    for i in range(8):
        o0 = 128 * (i & 1)
        a.e(f"ds_read2_b32 {v(AF[0][i],2)}, v{aA[i>>1]} offset0:{o0} offset1:{o0+1}")
        a.e(f"ds_read2_b32 {v(AF[0][i]+2,2)}, v{aA[i>>1]} offset0:{o0+2} offset1:{o0+3}")
    stamp(a, 5)
    npl = a.newlab("nopoll")
    a.e(f"s_cmp_lg_u32 s{S_WAVE}, 1\n s_cbranch_scc1 {npl}")
    poll(a, SRD_FL, vfl, t1, slp=int(os.environ.get("ASL", "2")))
    a.lab(npl)
    a.e("s_barrier")
    stamp(a, 6)
    UR = AF[1][0]
    for j in range(4):
        a.e(f"buffer_load_dwordx4 {v(UR+4*j,4)}, v{t0}, {srd(SRD_A)}, s{sSO} offen offset:{1024*j} sc1")
    for j in range(4):
        a.e(f"s_waitcnt vmcnt({3-j})\n ds_write_b128 v{aT}, {v(UR+4*j,4)} offset:{1024*j}")
    a.e(f"""
    v_lshlrev_b32 v{t1}, 5, v{lr}
    v_lshl_add_u32 v{aT}, v{g}, 3, v{t1}
    s_mul_i32 s{sT}, s{S_WAVE}, {TP}
    s_add_u32 s{sT}, s{sT}, {TB}
    v_add_u32 v{aT}, s{sT}, v{aT}
    """)
    MF = "v_mfma_f32_16x16x32_bf16"
    def rd1(b, slot, i, r):
        o0 = 128 * (i & 1) + 16 * r
        if "fakeA" in EX and i < 4:
            return [f"ds_read_b128 {v(BF[b][slot],4)}, v{aB} offset:{3584 - 512*i + 64*r}",
                    f"ds_read_b64 {v(AF[b][slot],2)}, v{vfl} offset:{512*i+64*r}",
                    f"ds_read_b64 {v(AF[b][slot]+2,2)}, v{vfl} offset:{512*i+64*r+512}"]
        return [f"ds_read_b128 {v(BF[b][slot],4)}, v{aB} offset:{3584 - 512*i + 64*r}",
                f"ds_read2_b32 {v(AF[b][slot],2)}, v{aA[i>>1]} offset0:{o0} offset1:{o0+1}",
                f"ds_read2_b32 {v(AF[b][slot]+2,2)}, v{aA[i>>1]} offset0:{o0+2} offset1:{o0+3}"]
    def reads(it):
        b = it & 1; o = []
        if it < 8:
            for i in range(8): o += rd1(b, i, i, it)
        elif it < 12:
            for k in range(2):
                for i in range(4): o += rd1(b, 4 * k + i, i, 2 * (it - 8) + k)
        return o
    def mf(it):
        b = it & 1; o = []
        if it < 8:
            if it == 0:
                o += [f"{MF} {v(ACC[c],4)}, {v(AD,4)}, {v(BF[b][c],4)}, 0" for c in range(8)]
            for q in range(8):
                for c in range(max(q, 4), 8):
                    o.append(f"{MF} {v(ACC[c],4)}, {v(AF[b][q],4)}, {v(BF[b][c-q],4)}, {v(ACC[c],4)}")
        else:
            for k in range(2):
                for q in range(4):
                    for c in range(q, 4):
                        o.append(f"{MF} {v(ACC[c],4)}, {v(AF[b][4*k+q],4)}, {v(BF[b][4*k+c-q],4)}, {v(ACC[c],4)}")
        return o
    def spread(M, F):
        out = []; n = len(M); fi = 0
        for i, m in enumerate(M):
            out.append(m)
            tgt = (len(F) * (i + 1) + n - 1) // n
            out += F[fi:tgt]; fi = tgt
        return out
    def twrite(half):
        a.e("s_nop 3")
        for c in range(4):
            r = ACC[4 * half + c]
            a.e(f"v_cvt_pk_bf16_f32 v{r}, v{r}, v{r+1}\n v_cvt_pk_bf16_f32 v{r+1}, v{r+2}, v{r+3}")
            a.e(f"ds_write_b64 v{aT}, {v(r,2)} offset:{(1-half)*8*TP + 512*c}")
    Y, X = ACC[4], ACC[6]
    def t_rd(n, nd, toff):
        return [f"ds_read_b64_tr_b16 {v(Y+4*(n&1)+2*k,2)}, v{aR} offset:{toff + 4*TP*k}" for k in range(nd // 2)]
    def t_mul(n, nd, qslot, rowoff):
        o = []
        for i in range(nd):
            y, q, x = Y + 4 * (n & 1) + i, Q + qslot + i, X + 4 * (i & 1)
            o += [f"v_lshlrev_b32 v{x}, 16, v{y}", f"v_and_b32 v{x+1}, 0xffff0000, v{y}",
                  f"v_lshlrev_b32 v{x+2}, 16, v{q}", f"v_and_b32 v{x+3}, 0xffff0000, v{q}",
                  f"v_mul_f32 v{x}, v{x}, v{x+2}", f"v_mul_f32 v{x+1}, v{x+1}, v{x+3}",
                  f"v_cvt_pk_bf16_f32 v{y}, v{x}, v{x+1}"]
        o += [f"s_add_u32 s{sT}, s{sOO}, {rowoff*2560}",
              f"buffer_store_dwordx{nd} {v(Y+4*(n&1),nd)}, v{vrow2}, {srd(SRD_C)}, s{sT} offen"]
        return o
    if "fakeA" in EX: a.e(f"v_lshl_add_u32 v{vfl}, v{L}, 3, s{sH}")
    stamp(a, 7)
    a.e("\n".join(x for x in reads(0) if "b128" in x))
    for it in range(8):
        a.e("s_waitcnt lgkmcnt(0)")
        if "nocprio" not in EX: a.e(f"s_setprio {3 - it // 2}")
        if 3 <= it <= 6 and "nog" not in EX: qgather(it - 3)
        a.e("\n".join(interleave(mf(it), reads(it + 1) if "nord" not in EX else [])))
    twrite(1)
    a.e("s_waitcnt lgkmcnt(0)\n s_barrier")
    stamp(a, 8)
    lo4, lj = a.newlab("lo4"), a.newlab("loj")
    a.e(f"s_cmp_lg_u32 s{S_P2}, 8\n s_cbranch_scc1 {lo4}")
    for it in range(8, 12):
        if it > 8: a.e("s_waitcnt lgkmcnt(0)")
        if "nocprio" not in EX: a.e(f"s_setprio {11 - it}")
        F = reads(it + 1)
        if it == 8: F = t_rd(0, 4, 0) + t_rd(1, 4, 128) + F
        if it == 9:
            a.e("s_waitcnt vmcnt(2)")
            F = interleave2(F, t_mul(0, 4, 0, 1024), 1)
        if it == 10: F = interleave2(F, t_mul(1, 4, 4, 1024 + 64), 1)
        a.e("\n".join(spread(mf(it), F)))
    a.e(f"s_branch {lj}")
    a.lab(lo4)
    for it in range(8, 12):
        if it > 8: a.e("s_waitcnt lgkmcnt(0)")
        a.e("\n".join(spread(mf(it), reads(it + 1))))
    a.e("s_waitcnt vmcnt(0)")
    a.lab(lj)
    twrite(0)
    a.e(f"s_branch {fin}")
    a.lab(idle)
    a.e("s_barrier")
    a.e(f"s_waitcnt vmcnt(0)\n s_sub_u32 s{sD}, s{S_WAVE}, 8\n s_mul_i32 s{sR}, s{sD}, {128*1280}\n s_add_u32 s{sQO}, s{sQO}, s{sR}")
    for n in range(4): a.e("\n".join(qg(2 * n, 1024 + 64 * n, 2)))
    a.e(f"s_sub_u32 s{sQO}, s{sQO}, s{sR}")
    for n in range(2): a.e("\n".join(qg(8 + 4 * n, 64 * n, 2)))
    a.e(f"s_lshl_b32 s{sR}, s{sR}, 1\n s_add_u32 s{sOO}, s{sOO}, s{sR}\n s_lshl_b32 s{sD}, s{sD}, 8\n v_add_u32 v{aR}, s{sD}, v{aR}")
    a.e("s_barrier")
    for h in range(2):
        a.e("\n".join(t_rd(0, 2, 256 * h) + t_rd(1, 2, 256 * h + 128)))
        a.e("s_waitcnt vmcnt(0) lgkmcnt(0)" if h == 0 else "s_waitcnt lgkmcnt(0)")
        a.e("\n".join(t_mul(0, 2, 4 * h, 1024 + 128 * h) + t_mul(1, 2, 4 * h + 2, 1024 + 128 * h + 64)))
    a.e(f"s_sub_u32 s{sOO}, s{sOO}, s{sR}\n v_subrev_u32 v{aR}, s{sD}, v{aR}")
    a.lab(fin)
    a.e("s_waitcnt lgkmcnt(0)\n s_barrier")
    stamp(a, 9)
    def tail(nd):
        a.e("\n".join(t_rd(0, nd, 8 * TP) + t_rd(1, nd, 8 * TP + 128)))
        a.e("s_waitcnt vmcnt(2) lgkmcnt(0)" if nd == 4 else "s_waitcnt lgkmcnt(0)")
        a.e("\n".join(t_mul(0, nd, 8, 0) + t_mul(1, nd, 12, 64)))
    l8 = a.newlab("t8")
    a.e(f"s_cmp_eq_u32 s{S_P2}, 8\n s_cbranch_scc1 {l8}")
    tail(2)
    a.e("s_branch L_FIN")
    a.lab(l8)
    tail(4)
    a.e("s_branch L_FIN")
    return ra.hi

def wo_dma(a):
    t0, t1, t2, vx = 228, 229, 230, [231, 232, 233, 234]
    sSX, sM, sT = 68, 69, 70
    mk_srd(a, SRD_A, P_WO, 640 * 1280)
    a.e(f"""
    v_lshrrev_b32 v{t0}, 3, v{L}
    v_mul_u32_u24 v{t0}, 1280, v{t0}
    v_and_b32 v{t1}, 7, v{L}
    v_lshrrev_b32 v{t2}, 4, v{L}
    v_lshlrev_b32 v{t2}, 1, v{t2}
    v_xor_b32 v{t1}, v{t1}, v{t2}
    v_lshl_add_u32 v{vx[0]}, v{t1}, 4, v{t0}
    v_add_u32 v{vx[1]}, {1*(8*1280-1024)}, v{vx[0]}
    v_add_u32 v{vx[2]}, {2*(8*1280-1024)}, v{vx[0]}
    v_add_u32 v{vx[3]}, {3*(8*1280-1024)}, v{vx[0]}
    s_sub_u32 s{sM}, s{S_WAVE}, 4
    s_mul_i32 s{sSX}, s{sM}, {160*1280}
    s_lshl_b32 s{sT}, s{S_GC}, 7
    s_add_u32 s{sSX}, s{sSX}, s{sT}
    s_mul_i32 s{sM}, s{sM}, 20480
    s_add_u32 s{sM}, s{sM}, {WOB}
    """)
    for q in range(5):
        a.e(f"s_add_u32 m0, s{sM}, {4096*q}\n s_nop 0")
        for j in range(4):
            a.e(f"buffer_load_dwordx4 v{vx[j]}, {srd(SRD_A)}, s{sSX} offen offset:{1024*j} lds")
        a.e(f"s_add_u32 s{sSX}, s{sSX}, {32*1280}")
    mk_srd(a, SRD_B, P_WS, T_BYTES, off=WS_PQ)

def g2(a):
    ra = RA(2)
    t0, t1, t2, t3, g, vo, vx, vfl, vst = [ra.a() for _ in range(9)]
    wm, wx = [ra.a() for _ in range(4)], [ra.a() for _ in range(4)]
    O = [ra.a(4, 4) for _ in range(20)]
    NW = 8
    WF = [[ra.a(4, 4) for _ in range(4)] for _ in range(NW)]
    ACC = [ra.a(4, 4) for _ in range(4)]
    D = O[0]
    sT, sSO, sU = 62, 63, 65
    MF = "v_mfma_f32_16x16x32_bf16"
    a.c("G2")
    a.e(f"""
    s_lshl_b32 s{sT}, s{S_RT}, 3
    s_add_u32 s{sT}, s{sT}, s{S_WAVE}
    s_mul_i32 s{sSO}, s{sT}, {16*2560}
    s_lshr_b32 s{sT}, s{sT}, 1
    s_lshl_b32 s{sT}, s{sT}, 3
    s_mul_i32 s{sU}, s{sT}, 5120
    s_add_u32 s{sT}, s{sT}, 64
    v_and_b32 v{t0}, 7, v{L}
    v_add_u32 v{vfl}, s{sT}, v{t0}
    v_lshlrev_b32 v{vfl}, 7, v{vfl}
    v_lshrrev_b32 v{g}, 4, v{L}
    v_and_b32 v{t0}, 15, v{L}
    v_and_b32 v{t1}, 1, v{g}
    v_lshrrev_b32 v{t2}, 1, v{g}
    v_mul_u32_u24 v{vst}, 2560, v{t0}
    v_lshl_add_u32 v{vst}, v{t1}, 5, v{vst}
    v_lshl_add_u32 v{vst}, v{t2}, 4, v{vst}
    s_and_b32 s{sT}, s{S_WAVE}, 1
    s_lshl_b32 s{sT}, s{sT}, 8
    v_lshl_add_u32 v{t3}, v{t0}, 4, s{sT}
    v_lshl_add_u32 v{t3}, v{t1}, 9, v{t3}
    v_lshl_add_u32 v{vo}, v{t2}, 10, v{t3}
    v_mul_u32_u24 v{vx}, 5120, v{t2}
    v_add_u32 v{vx}, v{vx}, v{t3}
    v_add_u32 v{vx}, 4096, v{vx}
    s_lshl_b32 s{sT}, s{S_GC}, 7
    s_add_u32 s{sSO}, s{sSO}, s{sT}
    s_add_u32 s{sSO}, s{sSO}, 1280
    v_and_b32 v{t3}, 3, v{L}
    v_lshlrev_b32 v{t3}, 3, v{t3}
    v_add_u32 v{t3}, {WOB}, v{t3}
    v_lshrrev_b32 v{t0}, 2, v{t0}
    v_mul_u32_u24 v{wm[1]}, 20, v{t2}
    v_lshl_add_u32 v{wm[1]}, v{t1}, 2, v{wm[1]}
    v_add_u32 v{wm[1]}, v{wm[1]}, v{t0}
    v_lshl_add_u32 v{wm[0]}, v{wm[1]}, 7, v{t3}
    v_bfe_u32 v{wm[1]}, v{wm[1]}, 1, 2
    v_lshl_add_u32 v{wm[0]}, v{wm[1]}, 5, v{wm[0]}
    v_mul_u32_u24 v{wx[1]}, 80, v{t2}
    v_lshl_add_u32 v{wx[1]}, v{t1}, 1, v{wx[1]}
    v_lshrrev_b32 v{wx[2]}, 1, v{t0}
    v_mul_u32_u24 v{wx[2]}, 20, v{wx[2]}
    v_and_b32 v{t0}, 1, v{t0}
    v_add3_u32 v{wx[1]}, v{wx[1]}, v{wx[2]}, v{t0}
    v_add_u32 v{wx[1]}, 16, v{wx[1]}
    v_lshl_add_u32 v{wx[0]}, v{wx[1]}, 7, v{t3}
    v_bfe_u32 v{wx[1]}, v{wx[1]}, 1, 2
    v_lshl_add_u32 v{wx[0]}, v{wx[1]}, 5, v{wx[0]}
    """)
    for nt in range(1, 4):
        a.e(f"v_xor_b32 v{wm[nt]}, {32*nt}, v{wm[0]}\n v_xor_b32 v{wx[nt]}, {32*nt}, v{wx[0]}")
    mk_srd(a, SRD_D, P_OUT, 2048 * 2560)
    nw = a.newlab("g2nw")
    a.e(f"s_cmp_lt_u32 s{S_WAVE}, 4\n s_cbranch_scc1 {nw}\n s_waitcnt vmcnt(0)")
    a.lab(nw)
    a.e("s_barrier")
    def wrd(k):
        P, j = divmod(k, 5); b = k % NW; base = 20480 * (P & 1)
        if j < 4:
            o = [f"ds_read_b64_tr_b16 {v(WF[b][nt]+2*i,2)}, v{wm[nt]} offset:{base+5120*j+1024*i}" for nt in range(4) for i in range(2)]
        else:
            o = [f"ds_read_b64_tr_b16 {v(WF[b][nt]+2*i,2)}, v{wx[nt]} offset:{base+5120*i}" for nt in range(4) for i in range(2)]
        if k == 9:
            o[7] += "".join(f"\n v_add_u32 v{r}, 40960, v{r}" for r in wm + wx)
        return o
    for k in range(NW - 1): a.e("\n".join(wrd(k)))
    if "steps" not in EX: stamp(a, 7)
    poll(a, SRD_FL, vfl, t0, slp=int(os.environ.get("GSL", "2")))
    if "steps" not in EX: stamp(a, 8)
    for k in range(20):
        P, j = divmod(k, 5)
        if j in (0, 2): a.e(f"s_add_u32 s{sT}, s{sU}, {10240*P + 5120*(j//2)}")
        if j < 4: a.e(f"buffer_load_dwordx4 {v(O[k],4)}, v{vo}, {srd(SRD_B)}, s{sT} offen offset:{2048*(j&1)} sc1")
        else: a.e(f"s_add_u32 s{sT}, s{sU}, {10240*P}\n buffer_load_dwordx4 {v(O[k],4)}, v{vx}, {srd(SRD_B)}, s{sT} offen sc1")
    a.e("s_waitcnt lgkmcnt(0)")
    for k in range(20):
        a.e(f"s_waitcnt vmcnt({19-k}) lgkmcnt({min(15, 8*(min(19, k+NW-2)-k))})")
        F = wrd(k + NW - 1) if k + NW - 1 < 20 else []
        for nt in range(4):
            a.e(f"{MF} {v(ACC[nt],4)}, {v(WF[k%NW][nt],4)}, {v(O[k],4)}, {'0' if k == 0 else v(ACC[nt],4)}")
            a.e("\n".join(F[2*nt:2*nt+2]))
    if "steps" not in EX: stamp(a, 9)
    a.e("s_nop 4")
    for nt in range(4):
        c = ACC[nt]
        a.e(f"v_cvt_pk_bf16_f32 v{D+2*nt}, v{c}, v{c+1}\n v_cvt_pk_bf16_f32 v{D+2*nt+1}, v{c+2}, v{c+3}")
    a.e("s_nop 1")
    for nt in (0, 2):
        a.e(f"v_permlane16_swap_b32 v{D+2*nt}, v{D+2*nt+2}\n v_permlane16_swap_b32 v{D+2*nt+1}, v{D+2*nt+3}")
    for nt in (0, 2):
        a.e(f"buffer_store_dwordx4 {v(D+2*nt,4)}, v{vst}, {srd(SRD_D)}, s{sSO} offen offset:{32*nt} {OSTB}")
    return ra.hi

def build(path):
    hdr = open("cdna_kernels/%s.s.ref" % NAME).read().split("; Override")[0]
    a = Asm()
    a.raw('.amdgcn_target "amdgcn-amd-amdhsa--gfx950"\n.text')
    a.raw(f".globl {KN}\n.p2align 8\n.type {KN},@function"); a.lab(KN)
    a.e(f"s_cmp_ge_u32 s2, 256\n s_cbranch_scc1 L_END")
    stamp_init(a); stamp(a, 0)
    a.e(f"""
    s_load_dwordx16 s[8:23], s[0:1], 0
    s_load_dwordx8 s[24:31], s[0:1], 64
    v_lshrrev_b32 v2, 6, v0
    v_and_b32 v{L}, 63, v0
    v_readfirstlane_b32 s{S_WAVE}, v2
    s_and_b32 s{S_XI}, s2, 7
    s_lshr_b32 s{S_J}, s2, 3
    s_lshr_b32 s6, s{S_XI}, 1
    s_lshl_b32 s6, s6, 2
    s_and_b32 s7, s{S_J}, 3
    s_add_u32 s{S_RT}, s6, s7
    s_and_b32 s4, s{S_XI}, 1
    s_mul_i32 s{S_GC}, s4, 5
    s_cmp_ge_u32 s{S_J}, 16
    s_cbranch_scc1 L_A
    s_lshr_b32 s6, s{S_J}, 2
    s_add_u32 s{S_GC}, s{S_GC}, s6
    s_lshl_b32 s4, s4, 2
    s_add_u32 s{S_G}, s4, s6
    s_cmp_lt_u32 s{S_WAVE}, 4
    s_cbranch_scc1 L_BC
    """)
    b_loader(a)
    a.lab("L_A")
    a.e(f"""
    s_add_u32 s{S_GC}, s{S_GC}, 4
    s_mul_i32 s{S_CB}, s{S_XI}, 80
    s_sub_u32 s6, s{S_J}, 24
    s_lshl_b32 s6, s6, 3
    s_lshl_b32 s7, s7, 2
    s_add_u32 s7, s7, 64
    s_cmp_ge_u32 s{S_J}, 24
    s_cselect_b32 s{S_P2}, 8, 4
    s_cselect_b32 s6, s6, s7
    s_add_u32 s{S_CB}, s{S_CB}, s6
    s_cmp_ge_u32 s{S_J}, 24
    s_cbranch_scc1 L_A1
    """)
    prefetcher(a)
    a.e(f"s_cmp_ge_u32 s{S_J}, 20\n s_cbranch_scc1 L_CONV")
    mk_srd(a, SRD_B, P_WS, T_BYTES, off=WS_PQ)
    a.e(f"s_cmp_lt_u32 s{S_WAVE}, 4\n s_cbranch_scc1 L_G2\n s_waitcnt vmcnt(0)\n s_call_b64 s[72:73], L_WO\n s_branch L_G2")
    a.lab("L_A1")
    h3 = a1(a)
    a.lab("L_CONV")
    h5 = conv(a)
    a.lab("L_BC")
    h1 = b_compute(a)
    a.lab("L_WO")
    wo_dma(a)
    a.e("s_setpc_b64 s[72:73]")
    a.lab("L_G2")
    h4 = g2(a)
    a.lab("L_FIN")
    stamp_flush(a, 0)
    a.lab("L_END")
    a.e("s_endpgm")
    print("vgprs", h1, h3, h4, h5, file=sys.stderr)
    desc = f""".section .rodata,"a"
.p2align 6
.amdhsa_kernel {KN}
  .amdhsa_next_free_vgpr 256
  .amdhsa_next_free_sgpr 102
  .amdhsa_accum_offset 256
  .amdhsa_group_segment_fixed_size 0
  .amdhsa_kernarg_size 96
  .amdhsa_user_sgpr_count 2
  .amdhsa_user_sgpr_kernarg_segment_ptr 1
  .amdhsa_system_sgpr_workgroup_id_x 1
.end_amdhsa_kernel
"""
    open(path, "w").write(hdr + f"; @launch grid=(256,1,1) block=(512,1,1) lds={LDS_BYTES}\n" + a.text() + desc)
if __name__ == "__main__":
    build(sys.argv[1])
```

```python
import sys
from asmlib import *
NAME = "concat_heads__ssm_conv_h3__linear_attn_block__prompt"
KN = NAME + "_kernel"
EX = set(os.environ.get("EX", "").split(","))
ROTR = int(os.environ.get("ROTR", "0"), 16); ROTC = int(os.environ.get("ROTC", "0"), 16)
OST = os.environ.get("OSTA", "")
OSTB = os.environ.get("OSTB", "nt")

T_BYTES = 640 * 4096
WS_UT, WS_PQ = 0, T_BYTES
WS_KV = 2 * T_BYTES
GB = 8960
WS_FL = WS_KV + 8 * GB + 2048
assert WS_FL % 128 == 0
WS_END = WS_FL + 1024 * 128
S_WG, S_WAVE = 2, 3
P_Q, P_K, P_V, P_SH, P_H, P_D, P_X, P_W, P_WO, P_OUT, P_DBG, P_WS = 8, 10, 12, 14, 16, 18, 20, 22, 24, 26, 28, 30
SRD_A, SRD_B, SRD_C, SRD_D, SRD_FL = 32, 36, 40, 44, 48
S_RT, S_G, S_GC, S_CB, S_P2, S_ASLOT, S_XI, S_J = 52, 53, 54, 55, 56, 57, 58, 59
L = 1
NB = 2048 * 1280

XST, WBASE, WST, NST = 16384, 49152, 20480, 3
HI = WBASE + NST * WST
W2B = 2688
QBASE, QST = HI, 4 * W2B
IMG, IMGP = QBASE + NST * QST, 9216
HB, HP, H_O = 0, 8320, 4160
UB, UP = 8 * HP, 4672
A_KB, A_VB = UB + 5120, UB + 5120 + 40960
WOB = 2 * XST
KVI, RED = WOB + 81920, 0
ND = int(os.environ.get("ND", "2"))
xsl = lambda st: (st + 1) % NST
qsl = lambda st: (st + 2) % NST
assert KVI + 3520 <= QBASE + QST and ND <= 2
TB, TP = UB + 8 * UP, 2112
LDS_BYTES = max(A_VB + 40960, IMG + 2 * IMGP)
assert UB + 8 * UP <= HI and RED + 32768 <= LDS_BYTES <= 163840

def mk_srd(a, srd, ptr, nbytes, off=0, off_sreg=None):
    if off_sreg is not None:
        a.e(f"s_add_u32 s{srd}, s{ptr}, s{off_sreg}\n s_addc_u32 s{srd+1}, s{ptr+1}, 0")
    elif off:
        a.e(f"s_add_u32 s{srd}, s{ptr}, {off}\n s_addc_u32 s{srd+1}, s{ptr+1}, 0")
    else:
        a.e(f"s_mov_b32 s{srd}, s{ptr}\n s_mov_b32 s{srd+1}, s{ptr+1}")
    a.e(f"s_mov_b32 s{srd+2}, {nbytes}\n s_mov_b32 s{srd+3}, 0x20000")
def srd(x): return f"s[{x}:{x+3}]"
def mk_fl(a): mk_srd(a, SRD_FL, P_WS, 1024 * 128, off=WS_FL)

SPIN_MAX = 400000 if "noat" not in EX else 2
def poll(a, srdn, vo, t, scnt=74, slp=1):
    lp, dn = a.newlab("poll"), a.newlab("polld")
    a.e(f"s_mov_b32 s{scnt}, {SPIN_MAX}")
    a.lab(lp)
    a.e(f"""
    buffer_load_dword v{t}, v{vo}, {srd(srdn)}, 0 offen sc1
    s_waitcnt vmcnt(0)
    v_cmp_ne_u32 vcc, 1, v{t}
    s_sub_u32 s{scnt}, s{scnt}, 1
    s_cbranch_scc1 {dn}
    s_cmp_eq_u64 vcc, 0
    s_cbranch_scc1 {dn}
    s_sleep {slp}
    s_branch {lp}
    """)
    a.lab(dn)
def poll_z(a, vz, vt):
    mk_srd(a, SRD_D, P_DBG, 256)
    a.e(f"v_and_b32 v{vz}, 7, v{L}\n v_lshlrev_b32 v{vz}, 2, v{vz}")
    poll(a, SRD_D, vz, vt)
def set_flag(a, sslot, v0_, v1_, wave=0):
    sk = a.newlab("nofl")
    if wave is not None: a.e(f"s_cmp_lg_u32 s{S_WAVE}, {wave}\n s_cbranch_scc1 {sk}")
    a.e(f"""
    s_lshl_b32 s74, s{sslot}, 7
    v_mov_b32 v{v0_}, 0
    v_mov_b32 v{v1_}, 1
    s_mov_b64 exec, 1
    buffer_store_dword v{v1_}, v{v0_}, {srd(SRD_FL)}, s74 offen sc1
    s_mov_b64 exec, -1
    """)
    a.lab(sk)

def h_load(a, H, vl16, srdn, soff):
    for j in range(4):
        a.e(f"buffer_load_dwordx4 {v(H+4*j,4)}, v{vl16}, {srd(srdn)}, s{soff} offen offset:{1024*j}")
def h_stage(a, H, G, sslot, vl16, va, st):
    a.e(f"s_mul_i32 s{st}, s{sslot}, {HP}\n v_add_u32 v{va}, s{st}, v{vl16}")
    a.e(f"v_readfirstlane_b32 s{st}, v{H}")
    for j in range(4):
        a.e(f"ds_write_b128 v{va}, {v(H+4*j,4)} offset:{HB+32+1024*j}")
    for j in range(4):
        a.e(f"v_mov_b32_dpp v{G+4*j+3}, v{H+4*((j+1)&3)} wave_rol:1 row_mask:0xf bank_mask:0xf")
    for j in range(4):
        a.e(f"v_mov_b32_dpp v{G+4*j+3}, v{H+4*j} wave_shl:1 row_mask:0xf bank_mask:0xf")
    Z = G + 16
    for i in range(4): a.e(f"v_mov_b32 v{Z+i}, 0")
    a.e(f"s_lshl_b32 s{st}, s{st}, 16\n s_mov_b64 exec, 3\n ds_write_b128 v{va}, {v(Z,4)} offset:{HB}\n s_mov_b64 exec, -1")
    for j in range(4):
        h, g_ = H + 4 * j, G + 4 * j
        for i in range(3): a.e(f"v_alignbit_b32 v{g_+i}, v{h+i+1}, v{h+i}, 16")
        a.e(f"v_alignbit_b32 v{g_+3}, v{g_+3}, v{h+3}, 16")
        a.e(f"ds_write_b128 v{va}, {v(g_,4)} offset:{HB+H_O+32+1024*j}")
    a.e(f"v_writelane_b32 v{Z+3}, s{st}, 1\n s_mov_b64 exec, 3\n ds_write_b128 v{va}, {v(Z,4)} offset:{HB+H_O}\n s_mov_b64 exec, -1")
def conv_sload(a):
    a.e(f"""
    s_add_u32 s6, s{S_CB}, s{S_WAVE}
    s_min_u32 s6, s6, 639
    s_lshl_b32 s6, s6, 1
    s_and_b32 s6, s6, 0xfffffffc
    s_load_dword s5, s[{P_D}:{P_D+1}], s6
    """)

def b_loader(a):
    ra = RA(2)
    t0, t1, t2, t3 = [ra.a() for _ in range(4)]
    vx = [ra.a() for _ in range(4)]
    vw = [ra.a() for _ in range(5)]
    vq = [ra.a() for _ in range(3)]
    l16, la = ra.a(), ra.a()
    LD = ra.a(12, 4); Z = ra.a(2, 2)
    sLW, sSX, sSW, sM0X, sM0W, sM0Q, sSQ, sT, sK = 60, 61, 62, 63, 64, 65, 66, 67, 68
    a.c("B loader wave")
    a.e(f"""
    s_setprio 3
    v_lshrrev_b32 v{t0}, 3, v{L}
    v_lshrrev_b32 v{t1}, 4, v{L}
    v_and_b32 v{t2}, 7, v{L}
    v_mul_u32_u24 v{t0}, 1280, v{t0}
    v_xor_b32 v{t1}, v{t1}, v{t2}
    s_sub_u32 s{sLW}, s{S_WAVE}, 4
    s_lshl_b32 s{sT}, s{S_RT}, 2
    s_add_u32 s{sT}, s{sT}, s{sLW}
    s_mul_i32 s{sSX}, s{sT}, {32*1280}
    s_lshl_b32 s{sM0X}, s{sLW}, 12
    v_lshl_add_u32 v{vx[0]}, v{t1}, 4, v{t0}
    v_xor_b32 v{vx[1]}, 64, v{vx[0]}
    v_add_u32 v{vx[2]}, {2*(8*1280-1024)}, v{vx[0]}
    v_add_u32 v{vx[3]}, {3*(8*1280-1024)}, v{vx[1]}
    v_add_u32 v{vx[1]}, {1*(8*1280-1024)}, v{vx[1]}
    s_movk_i32 s4, 1200
    s_movk_i32 s5, -80
    s_movk_i32 s69, 3840
    """)
    for x in range(320): assert (x * 3277) >> 16 == x // 20
    for x in range(20): assert (x * 52) >> 8 == x // 5
    def woff(j):
        sub = 1024 * j if j < 4 else 0
        o = []; src = L
        if j: o.append(f"v_add_u32 v{t0}, {64*j}, v{L}"); src = t0
        o += [f"v_mul_u32_u24 v{t1}, 3277, v{src}", f"v_lshrrev_b32 v{t1}, 16, v{t1}",
              f"v_mul_u32_u24 v{t2}, 20, v{t1}", f"v_sub_u32 v{t0}, v{src}, v{t2}"]
        if j == 2: o += [f"v_lshrrev_b32 v{t2}, 2, v{t1}", f"v_and_b32 v{t2}, 2, v{t2}", f"v_xor_b32 v{t0}, v{t0}, v{t2}"]
        if j > 2: o += [f"v_xor_b32 v{t0}, 2, v{t0}"]
        o += [f"v_mul_u32_u24 v{t2}, 52, v{t0}", f"v_lshlrev_b32 v{t0}, 4, v{t0}",
              f"v_mad_u32_u24 v{t0}, v{t1}, s69, v{t0}", f"v_bfe_u32 v{t3}, v{t2}, 8, 1",
              f"v_lshrrev_b32 v{t2}, 9, v{t2}", f"v_mad_u32_u24 v{t0}, v{t3}, s4, v{t0}"]
        if sub: o += [f"v_mad_i32_i24 v{t0}, v{t2}, s5, v{t0}", f"v_subrev_u32 v{vw[j]}, {sub}, v{t0}"]
        else: o += [f"v_mad_i32_i24 v{vw[j]}, v{t2}, s5, v{t0}"]
        a.e("\n".join(o))
    def issue_x(st):
        a.e(f"s_add_u32 m0, s{sM0X}, {xsl(st) * XST}\n s_nop 0")
        for j in range(4):
            a.e(f"buffer_load_dwordx4 v{vx[j]}, {srd(SRD_A)}, s{sSX} offen offset:{1024*j} lds")
    def adv():
        a.e(f"s_add_u32 s{sSX}, s{sSX}, 128\n s_add_u32 s{sSW}, s{sSW}, {64*3840}")
    for x in range(80): assert (x * 205) >> 11 == x // 10
    def qoff(j):
        a.e(f"""
        v_add_u32 v{t0}, {64*j}, v{L}
        v_cmp_le_u32 vcc, 88, v{t0}
        v_subrev_u32 v{t1}, 88, v{t0}
        v_min_u32 v{t0}, 79, v{t0}
        v_min_u32 v{t1}, 79, v{t1}
        v_cndmask_b32 v{t0}, v{t0}, v{t1}, vcc
        v_cndmask_b32 v{t2}, 0, 8, vcc
        v_mul_u32_u24 v{t1}, 205, v{t0}
        v_lshrrev_b32 v{t1}, 11, v{t1}
        v_add_u32 v{t2}, v{t2}, v{t1}
        v_mul_u32_u24 v{t1}, 10, v{t1}
        v_sub_u32 v{t0}, v{t0}, v{t1}
        v_lshlrev_b32 v{t0}, 4, v{t0}
        v_mad_u32_u24 v{t0}, v{t2}, s69, v{t0}
        v_subrev_u32 v{vq[j]}, {1024*j}, v{t0}
        """)
    def issue_kv(st, first=99):
        a.e(f"s_add_u32 m0, s{sM0W}, {(st % NST) * WST}\n s_nop 0")
        for j in range(5):
            if j >= first: woff(j)
            if j == 4: a.e(f"s_add_u32 m0, s{sM0W}, {(st % NST) * WST + 4096}\n s_nop 0")
            a.e(f"buffer_load_dwordx4 v{vw[j]}, {srd(SRD_B)}, s{sSW} offen offset:{1024*(j&3)} lds")
    def issue_q(st, first=99):
        a.e(f"s_add_u32 m0, s{sM0Q}, {qsl(st) * QST}\n s_sub_u32 s{sSQ}, s{sSW}, 1280")
        for j in range(3):
            if j >= first: qoff(j)
            if j == 2: a.e("s_mov_b32 exec_hi, 0xff")
            a.e(f"buffer_load_dwordx4 v{vq[j]}, {srd(SRD_B)}, s{sSQ} offen offset:{1024*j} lds")
        a.e("s_mov_b32 exec_hi, -1")
    def issue(st):
        issue_x(st); issue_kv(st); issue_q(st); adv()
    a.e(f"""
    s_mul_i32 s{sSW}, s{S_G}, 160
    s_add_u32 s{sSW}, s{sSW}, 1280
    s_mul_i32 s{sT}, s{sLW}, {16*3840}
    s_add_u32 s{sSW}, s{sSW}, s{sT}
    s_mul_i32 s{sM0W}, s{sLW}, 5120
    s_add_u32 s{sM0W}, s{sM0W}, {WBASE}
    s_mul_i32 s{sM0Q}, s{sLW}, {W2B}
    s_add_u32 s{sM0Q}, s{sM0Q}, {QBASE}
    """)
    def srds():
        a.e("s_waitcnt lgkmcnt(0)")
        mk_srd(a, SRD_A, P_X, NB); mk_srd(a, SRD_B, P_W, 640 * 3840)
    lb, lj = a.newlab("ordB"), a.newlab("ordJ")
    if "noord" not in EX:
        a.e(f"s_add_u32 s{sT}, s{S_RT}, s{S_G}\n s_and_b32 s{sT}, s{sT}, 1\n s_cbranch_scc1 {lb}")
    qoff(0); srds(); issue_x(0); issue_q(0, 1); issue_kv(0, 0)
    a.e(f"s_branch {lj}")
    a.lab(lb)
    woff(0); srds(); issue_kv(0, 1); issue_x(0); issue_q(0, 0)
    a.lab(lj)
    a.e(f"s_add_u32 s{sSX}, s{sSX}, 128\n s_add_u32 s{sSW}, s{sSW}, {64*3840}")
    PCS = [int(c) for c in os.environ.get("PCS", "133443333")]
    assert sum(PCS) == 27
    cnt = [4, 5, 3]
    pos = [3]
    def pieces(n, lim):
        for _ in range(n):
            st, k = divmod(pos[0], 3)
            assert st <= lim
            if k == 0: issue_x(st); a.e(f"s_add_u32 s{sSX}, s{sSX}, 128")
            if k == 1: issue_kv(st)
            if k == 2: issue_q(st); a.e(f"s_add_u32 s{sSW}, s{sSW}, {64*3840}")
            pos[0] += 1
    pieces(PCS[0], 2)
    stamp(a, 1)
    for nb in range(10):
        assert pos[0] >= 3 * (nb + 1)
        young = sum(cnt[i % 3] for i in range(3 * (nb + 1), pos[0]))
        a.e(f"s_waitcnt vmcnt({young})\n s_barrier")
        if nb == 5:
            mk_srd(a, SRD_D, P_DBG, 256)
            a.e(f"v_and_b32 v{l16}, 7, v{L}\n v_lshlrev_b32 v{l16}, 2, v{l16}")
            a.e(f"buffer_load_dword v{la}, v{l16}, {srd(SRD_D)}, 0 offen sc1")
            assert pos[0] == 21
        if nb + 1 < len(PCS): pieces(PCS[nb + 1], nb + 2)
        if nb == 4: mk_fl(a)
        if nb == 8:
            zok = a.newlab("zok")
            a.e(f"s_setprio 0\n v_cmp_ne_u32 vcc, 1, v{la}\n s_nop 1\n s_cmp_eq_u64 vcc, 0\n s_cbranch_scc1 {zok}")
            poll_z(a, t1, t2)
            a.lab(zok)
    stamp(a, 2)
    a.e("s_barrier")
    a.e("s_call_b64 s[72:73], L_WO")
    stamp(a, 3)
    a.e("s_barrier\n s_barrier\n s_branch L_G2")

def phi4(regs, tmps, sLOG, sEPS):
    o = []
    if "nopk" not in EX:
        r, t = regs[0], tmps[0]
        o += [f"v_pk_mul_f32 {v(t+i,2)}, {v(r+i,2)}, s[66:67]" for i in (0, 2)]
        o += [f"v_exp_f32_e64 v{t+i}, v{t+i} clamp" for i in range(4)]
        o += [f"v_max_f32 v{r+i}, s{sEPS}, v{r+i}" for i in range(4)]
        o += [f"v_pk_add_f32 {v(r+i,2)}, {v(r+i,2)}, {v(t+i,2)}" for i in (0, 2)]
        return o
    for r, t in zip(regs, tmps): o.append(f"v_mul_f32 v{t}, s{sLOG}, v{r}")
    for r, t in zip(regs, tmps): o.append(f"v_exp_f32_e64 v{t}, v{t} clamp")
    for r, t in zip(regs, tmps): o.append(f"v_max_f32 v{r}, s{sEPS}, v{r}")
    for r, t in zip(regs, tmps): o.append(f"v_add_f32 v{r}, v{r}, v{t}")
    return o

def b_compute(a):
    if "steps" in EX:
        def stamp2(a, i): pass
    else:
        stamp2 = stamp
    ra = RA(2)
    lr, g, t0, t1, t2 = [ra.a() for _ in range(5)]
    xa = [ra.a(), ra.a()]
    wa = [ra.a() for _ in range(5)]
    ad = [ra.a() for _ in range(6)]
    wb = [ra.a(), ra.a()]; xb = [ra.a(), ra.a()]
    ka, kx = ra.a(), [ra.a(), ra.a()]
    at = [ra.a() for _ in range(4)]
    l16, la = ra.a(), ra.a()
    ix = ra.a(4, 4)
    XF = [[ra.a(4, 4) for _ in range(4)] for _ in range(2)]
    WF = [[ra.a(4, 4) for _ in range(5)] for _ in range(2)]
    QF = [ra.a(4, 4) for _ in range(5)]
    ACC = [[ra.a(4, 4) for _ in range(5)] for _ in range(4)]
    QA = [[ra.a(4, 4) for _ in range(5)] for _ in range(2)]
    sRH, sCH, sT, sLOG, sEPS, sSO = 60, 61, 62, 63, 64, 65
    MF = "v_mfma_f32_16x16x32_bf16"; M32 = "v_mfma_f32_32x32x16_bf16"
    a.c("B compute wave")
    a.e(f"""
    s_lshr_b32 s{sRH}, s{S_WAVE}, 1
    s_and_b32 s{sCH}, s{S_WAVE}, 1
    s_mov_b32 s{sLOG}, {f32(1.4426950408889634)}
    s_mov_b32 s66, s{sLOG}
    s_mov_b32 s67, s{sLOG}
    s_mov_b32 s{sEPS}, {f32(1e-6)}
    v_and_b32 v{lr}, 15, v{L}
    v_lshrrev_b32 v{g}, 4, v{L}
    s_lshl_b32 s{sT}, s{S_WAVE}, 12
    v_lshrrev_b32 v{t0}, 1, v{lr}
    v_xor_b32 v{t0}, v{t0}, v{g}
    v_lshlrev_b32 v{t0}, 4, v{t0}
    v_lshl_add_u32 v{t0}, v{lr}, 7, v{t0}
    v_add_u32 v{xa[0]}, s{sT}, v{t0}
    v_xor_b32 v{xa[1]}, 64, v{xa[0]}
    v_xor_b32 v{xb[0]}, 0x1000, v{xa[0]}
    v_xor_b32 v{xb[1]}, 0x1000, v{xa[1]}
    v_lshrrev_b32 v{t0}, 2, v{lr}
    v_lshl_add_u32 v{t0}, v{g}, 3, v{t0}
    v_mul_u32_u24 v{t0}, 320, v{t0}
    v_add_u32 v{t0}, {WBASE}, v{t0}
    v_and_b32 v{t1}, 1, v{g}
    v_lshlrev_b32 v{t1}, 5, v{t1}
    s_mul_i32 s{sT}, s{sCH}, 160
    v_and_b32 v{t2}, 3, v{lr}
    """)
    for t in range(5):
        w = wa[t]
        if t < 4:
            a.e(f"v_lshl_add_u32 v{w}, v{t2}, 3, s{sT}\n v_add_u32 v{w}, {40*t}, v{w}")
        else:
            a.e(f"v_mul_u32_u24 v{w}, 40, v{t2}\n v_add_u32 v{w}, s{sT}, v{w}\n v_add_u32 v{w}, 32, v{w}")
        a.e(f"v_xor_b32 v{w}, v{w}, v{t1}\n v_add_u32 v{w}, v{w}, v{t0}")
    a.e(f"""
    v_lshrrev_b32 v{t0}, 1, v{g}
    v_mul_u32_u24 v{t0}, {W2B}, v{t0}
    v_and_b32 v{t1}, 1, v{g}
    v_mul_u32_u24 v{t1}, 1408, v{t1}
    v_add3_u32 v{t0}, v{t0}, v{t1}, 32
    v_lshrrev_b32 v{t1}, 2, v{lr}
    v_mul_u32_u24 v{t1}, 160, v{t1}
    v_add_u32 v{t0}, v{t0}, v{t1}
    v_add_u32 v{t0}, {QBASE-32}, v{t0}
    v_lshl_add_u32 v{wb[0]}, v{t2}, 3, v{t0}
    v_mul_u32_u24 v{t1}, 40, v{t2}
    v_add3_u32 v{wb[1]}, v{t0}, v{t1}, 32
    """)
    a.e(f"v_mov_b32 v{t0}, s{sEPS}\n v_cmp_gt_u32 vcc, 8, v{lr}")
    a.e(f"""
    s_mul_i32 s{sT}, s{sRH}, {IMGP}
    s_mul_i32 s{sSO}, s{sCH}, {GB//2}
    s_add_u32 s{sT}, s{sT}, s{sSO}
    s_add_u32 s{sT}, s{sT}, {IMG}
    """)
    for rt in range(4):
        for i in range(4):
            a.e(f"v_cndmask_b32 v{ACC[rt][4]+i}, 0, v{t0}, vcc")
        for i in range(8): a.e(f"v_mov_b32 v{ACC[rt][0]+i}, s{sEPS}")
    for i in range(40): a.e(f"v_mov_b32 v{QA[0][0]+i}, s{sEPS}")
    z4 = XF[0][0]
    a.e(f"v_mov_b32 v{z4}, 1.0")
    for i in range(1, 8): a.e(f"v_mov_b32 v{z4+i}, 0")
    a.e(f"""
    v_min_u32 v{t0}, 143, v0
    v_lshlrev_b32 v{t0}, 6, v{t0}
    v_add_u32 v{t0}, {IMG+48}, v{t0}
    ds_write_b128 v{t0}, {v(z4,4)}
    ds_write_b128 v{t0}, {v(z4+4,4)} offset:{IMGP}
    """)
    for x in range(128): assert (x * 171) >> 9 == x // 3
    a.e(f"""
    v_cmp_eq_u32 vcc, 0, v{lr}
    v_add_u32 v{t0}, 8, v{lr}
    v_add_u32 v{t1}, 4, v{lr}
    v_cndmask_b32 v{t0}, v{t0}, 20, vcc
    v_cndmask_b32 v{t1}, v{t1}, 20, vcc
    """)
    for i, row in enumerate((lr, t0, t1)):
        for k in range(2):
            d = ad[2 * i + k]
            a.e(f"v_mad_u32_u24 v{d}, v{row}, 5, {'v%d' % g if k == 0 else '4'}")
            a.e(f"v_mul_u32_u24 v{t2}, 171, v{d}\n v_lshrrev_b32 v{t2}, 9, v{t2}\n v_add_u32 v{d}, v{d}, v{t2}\n v_lshl_add_u32 v{d}, v{d}, 4, s{sT}")
    a.e(f"""
    v_lshlrev_b32 v{at[0]}, 2, v0
    v_add_u32 v{at[1]}, 4096, v{at[0]}
    v_add_u32 v{at[2]}, 8192, v{at[0]}
    v_add_u32 v{at[3]}, {IMG}, v{at[0]}
    v_lshlrev_b32 v{l16}, 4, v{L}
    v_and_b32 v{t0}, 31, v{L}
    v_lshlrev_b32 v{t1}, 2, v{lr}
    s_mov_b32 s{sT}, 0x54325410
    v_lshrrev_b32 v{t1}, v{t1}, s{sT}
    v_and_b32 v{t1}, 15, v{t1}
    v_add_u32 v{t1}, 16, v{t1}
    v_cmp_lt_u32 vcc, 23, v{t0}
    s_mov_b32 s{sT}, {KVI}
    s_nop 0
    v_cndmask_b32 v{t1}, v{t1}, 21, vcc
    v_cmp_gt_u32 vcc, 16, v{t0}
    v_lshrrev_b32 v{t2}, 5, v{L}
    s_nop 0
    v_cndmask_b32 v{t1}, v{t1}, v{t0}, vcc
    v_mad_u32_u24 v{t1}, v{t1}, 40, s{sT}
    v_lshl_add_u32 v{ka}, v{t2}, 4, v{t1}
    v_add_u32 v{t1}, 32, v{t1}
    v_cmp_eq_u32 vcc, 0, v{t2}
    v_mov_b32 v{t0}, {KVI+840}
    s_nop 0
    v_cndmask_b32 v{kx[0]}, v{t0}, v{t1}, vcc
    v_cndmask_b32 v{kx[1]}, v{t1}, v{t0}, vcc
    s_mul_i32 s{sT}, s{S_WAVE}, 880
    s_add_u32 s{sT}, s{sT}, {KVI}
    v_and_b32 v{t0}, 3, v{L}
    v_lshl_add_u32 v{t0}, v{t0}, 3, s{sT}
    v_lshrrev_b32 v{t1}, 2, v{L}
    v_mad_u32_u24 v{la}, v{t1}, 24, v{t0}
    s_mul_i32 s{sT}, s{S_G}, {GB}
    s_add_u32 s{sT}, s{sT}, {WS_KV}
    s_waitcnt lgkmcnt(0)
    """)
    mk_srd(a, SRD_C, P_WS, GB, off_sreg=sT)
    a.e(f"s_mul_i32 s{sSO}, s{S_WAVE}, {GB//4}\n s_add_u32 s{sT}, s{sT}, s{sSO}")
    mk_srd(a, SRD_A, P_WS, GB // 4, off_sreg=sT)
    mk_srd(a, SRD_B, P_WS, T_BYTES, off=WS_PQ)
    mk_fl(a)
    def reads(st, ks):
        sl = st % NST
        xs = [f"ds_read_b128 {v(XF[ks][rt],4)}, v{xa[ks] if rt < 2 else xb[ks]} offset:{xsl(st)*XST + (rt&1)*2048}" for rt in range(4)]
        ws = [f"ds_read_b64_tr_b16 {v(WF[ks][t]+2*h,2)}, v{wa[t]} offset:{sl*WST + ks*10240 + h*1280}" for t in range(5) for h in range(2)]
        qs = [f"ds_read_b64_tr_b16 {v(QF[t]+2*h,2)}, v{wb[t>>2]} offset:{qsl(st)*QST + ks*2*W2B + h*640 + 40*(t&3)}" for t in range(5) for h in range(2)]
        if st >= 10 - ND: qs = []
        return xs + ws[:6] + qs + ws[6:]
    def mfq(ks):
        return [f"{MF} {v(QA[rt][t],4)}, {v(QF[t],4)}, {v(XF[ks][rt],4)}, {v(QA[rt][t],4)}" for t in range(5) for rt in range(2)]
    def mfkv(ks, first=False):
        o = []
        for rt in range(4):
            for t in range(5):
                d = ACC[rt][t]
                o.append(f"{MF} {v(d,4)}, {v(XF[ks][rt],4)}, {v(WF[ks][t],4)}, {'0' if (first and t in (2, 3)) else v(d,4)}")
        return o
    def mfmas(st, ks): return (mfq(ks) if st < 10 - ND else []) + mfkv(ks, st == 0 and ks == 0)
    def spread(M, F):
        out = []; n = len(M); fi = 0
        for i, m in enumerate(M):
            out.append(m)
            tgt = (len(F) * (i + 1) + n - 1) // n
            out += F[fi:tgt]; fi = tgt
        return out
    for st in range(10):
        a.c(f"step {st}")
        a.e("s_barrier")
        if (st == 0 or "steps" in EX) and "steps2" not in EX: stamp(a, 1 + st)
        if st == 0:
            a.e("\n".join(reads(0, 0)))
        else:
            a.e("\n".join(interleave2(mfmas(st - 1, 1), reads(st, 0), 1)))
        a.e("s_waitcnt lgkmcnt(0)")
        a.e("\n".join(interleave2(mfmas(st, 0), reads(st, 1), 1)))
        a.e("s_waitcnt lgkmcnt(0)")
    a.e("s_barrier")
    stamp2(a, 2)
    tm = [ix + i for i in range(4)]
    last = mfkv(1) + (mfq(1) if ND == 0 else [])
    names = ["T0", "T1", "T2", "T3", "T4A", "T4B"]
    k0 = [XF[0][i] for i in range(4)] + [WF[0][0], WF[0][1]]
    k1 = [WF[0][2], WF[0][3], WF[0][4], XF[1][0], XF[1][1], XF[1][2]]
    P = {n: [k0[i], k1[i]] for i, n in enumerate(names)}
    V = [f"v_cmp_gt_u32 vcc, 8, v{lr}", f"v_mov_b32 v{t0}, 0x3f803f80"]
    for rt in range(4):
        k, h = rt >> 1, rt & 1
        for t, n in ((2, "T2"), (3, "T3"), (4, "T4B")):
            r = ACC[rt][t]; d = P[n][k] + 2 * h
            V += [f"v_cvt_pk_bf16_f32 v{d}, v{r}, v{r+1}", f"v_cvt_pk_bf16_f32 v{d+1}, v{r+2}, v{r+3}"]
        d = P["T4B"][k] + 2 * h
        V += [f"v_cndmask_b32 v{d}, v{d}, v{t0}, vcc", f"v_cndmask_b32 v{d+1}, v{d+1}, v{t0}, vcc"]
        for t, n in ((0, "T0"), (1, "T1"), (4, "T4A")):
            r = [ACC[rt][t] + i for i in range(4)]; d = P[n][k] + 2 * h
            V += phi4(r, tm, sLOG, sEPS)
            V += [f"v_cvt_pk_bf16_f32 v{d}, v{r[0]}, v{r[1]}", f"v_cvt_pk_bf16_f32 v{d+1}, v{r[2]}, v{r[3]}"]
    prods = [("T0", "T2"), ("T0", "T4B"), ("T4A", "T2"), ("T1", "T3"), ("T1", "T4B"), ("T4A", "T3"), ("T4A", "T4B")]
    R = [ACC[0][0] + 4 * i for i in range(7)]
    kvm = lambda k: [f"{MF} {v(R[i],4)}, {v(P[x][k],4)}, {v(P[y][k],4)}, {'0' if k == 0 else v(R[i],4)}" for i, (x, y) in enumerate(prods)]
    half = 2 + (len(V) - 2) // 2
    a.e("\n".join(last[:10] + interleave2(last[10:], V[:half + 4], 2)))
    a.e("\n".join(interleave2(kvm(0), V[half + 4:], 8)))
    a.e("s_nop 1")
    a.e("\n".join(kvm(1)))
    a.e("s_nop 3")
    HBY = GB // 4
    def wr(i, addr, off, lo, hi):
        a.e(f"s_mov_b32 exec_lo, {lo:#x}\n s_mov_b32 exec_hi, {hi:#x}")
        a.e(f"ds_write_b128 v{addr}, {v(R[i],4)} offset:{off}")
    a.e(f"ds_write_b128 v{ad[0]}, {v(R[0],4)}")
    a.e(f"ds_write_b128 v{ad[0]}, {v(R[3],4)} offset:{HBY}")
    wr(1, ad[2], 0, 0x0f010f01, 0x0f010f01)
    wr(4, ad[4], HBY, 0xf001f001, 0xf001f001)
    wr(2, ad[1], 0, 0x0000ffff, 0)
    wr(5, ad[1], HBY, 0xffff0000, 0)
    wr(6, ad[3], 0, 0x00000f01, 0)
    wr(6, ad[5], HBY, 0xf0010000, 0)
    a.e("s_mov_b64 exec, -1\n s_waitcnt lgkmcnt(0)\n s_barrier")
    stamp2(a, 3)
    fr = ACC[0][0]
    for n in range(9):
        a.e(f"ds_read2st64_b32 {v(fr+2*n,2)}, v{at[3]} offset0:{4*n} offset1:{IMGP//256+4*n}")
    AT = []
    for n in range(9):
        AT += [f"v_add_f32 v{fr+2*n}, v{fr+2*n}, v{fr+2*n+1}",
               f"buffer_atomic_add_f32 v{fr+2*n}, v{at[n>>2]}, {srd(SRD_C)}, 0 offen offset:{1024*(n&3)}"]
    DB = [(XF[0][0], WF[0][0]), (XF[1][0], WF[1][0]), (XF[0][2], QF[0]), (XF[1][2], ACC[3][0])]
    def drd(u):
        if u >= 2 * ND: return []
        st, ks = 10 - ND + u // 2, u & 1; xr, wr_ = DB[u]
        return ([f"ds_read_b128 {v(xr+4*rt,4)}, v{xa[ks]} offset:{xsl(st)*XST + rt*2048}" for rt in range(2)] +
                [f"ds_read_b64_tr_b16 {v(wr_+4*t+2*h,2)}, v{wb[t>>2]} offset:{qsl(st)*QST + ks*2*W2B + h*640 + 40*(t&3)}" for t in range(5) for h in range(2)])
    def dmf(u):
        xr, wr_ = DB[u]
        return [f"{MF} {v(QA[rt][t],4)}, {v(wr_+4*t,4)}, {v(xr+4*rt,4)}, {v(QA[rt][t],4)}" for t in range(5) for rt in range(2)]
    a.e("s_waitcnt lgkmcnt(0)")
    a.e("\n".join(spread(AT, drd(0) + drd(1))))
    for u in range(0, 2 * ND, 2):
        a.e("s_waitcnt lgkmcnt(0)")
        M = dmf(u) + dmf(u + 1)
        a.e("\n".join(spread(M[:14], drd(u + 2) + drd(u + 3)) + M[14:]))
    EXT = XF[0][0]
    KF = [EXT + 4 * h for h in range(4)]
    KX = EXT + 16
    OB = [EXT + 28 + 4 * t for t in range(5)]
    OX = EXT + 48; rc = EXT + 52; LD = EXT + 56
    CT = [ACC[0][0] + 16 + 16 * h for h in range(4)]
    a.e(f"""
    s_lshl_b32 s{sT}, s{S_RT}, 2
    s_add_u32 s{sT}, s{sT}, s{S_WAVE}
    s_lshl_b32 s{sT}, s{sT}, 3
    s_add_u32 s{sT}, s{sT}, s{S_G}
    s_mul_i32 s{sSO}, s{sT}, 5120
    s_add_u32 s{sRH}, s{sSO}, 4096
    s_add_u32 s{sT}, s{sT}, 64
    s_mul_i32 s{sCH}, s{S_WAVE}, 880
    s_add_u32 s{sCH}, s{sCH}, {KVI}
    v_lshl_add_u32 v{t0}, v{L}, 3, s{sCH}
    """)
    for i in (2, 3, 8, 9): a.e(f"v_mov_b32 v{KX+i}, 0")
    a.e(f"s_mov_b64 exec, 31\n ds_write_b64 v{t0}, {v(KX+2,2)} offset:840\n s_mov_b64 exec, -1")
    def phiq(t):
        o = []; ob = OB[t]
        for h in range(2):
            r = [QA[h][t] + i for i in range(4)]
            o += phi4(r, tm, sLOG, sEPS)
            o += [f"v_cvt_pk_bf16_f32 v{ob+2*h}, v{r[0]}, v{r[1]}", f"v_cvt_pk_bf16_f32 v{ob+2*h+1}, v{r[2]}, v{r[3]}"]
        o += ["s_nop 1", f"v_permlane16_swap_b32 v{ob}, v{ob+2}", f"v_permlane16_swap_b32 v{ob+1}, v{ob+3}"]
        return o
    def omf(h):
        c = v(CT[h], 16)
        return [f"{M32} {c}, {v(KX+6*(h>>1)+2*(h&1),4)}, {v(OB[4],4)}, 0", "s_nop 0",
                f"{M32} {c}, {v(KF[h],4)}, {v(OB[h],4)}, {c}"]
    def norm(h):
        c = CT[h]; d = OB[h]
        o = [f"v_add_f32 v{rc}, s{sEPS}, v{c+10}", f"v_rcp_f32 v{rc}, v{rc}", "s_nop 0"]
        o += [f"v_mul_f32 v{c+i}, v{c+i}, v{rc}" for i in range(10)]
        o += [f"v_cvt_pk_bf16_f32 v{d+i}, v{c+2*i}, v{c+2*i+1}" for i in range(4)]
        o += [f"buffer_store_dwordx4 {v(d,4)}, v{l16}, {srd(SRD_B)}, s{sSO} offen offset:{1024*h} sc1"]
        o += [f"v_cvt_pk_bf16_f32 v{OX+h}, v{c+8}, v{c+9}"]
        return o
    def kvload():
        for n in range(3):
            a.e(f"buffer_load_dwordx4 {v(LD+4*n,4)}, v{l16}, {srd(SRD_A)}, 0 offen offset:{1024*n} sc1")
    KP = int(os.environ.get("KP", "6"))
    for i in range(5):
        if i == KP: kvload()
        a.e("\n".join(phiq(i)))
    stamp2(a, 4)
    lf, lv, ld = a.newlab("kvf"), a.newlab("kvv"), a.newlab("kvd")
    a.e(f"s_mov_b32 s69, {f32(16.0)}\n s_mov_b32 s70, 0x88888888\n s_mov_b32 s71, 0x88888888\n s_mov_b32 s74, {SPIN_MAX}")
    if KP < 5: a.e(f"s_branch {lv}")
    if KP == 6: a.e("s_waitcnt vmcnt(0)")
    a.lab(lf)
    kvload()
    a.lab(lv)
    a.e(f"""
    s_waitcnt vmcnt(0)
    v_min_f32 v{t0}, v{LD}, v{LD+4}
    v_cmp_neq_f32 s[4:5], s69, v{LD+8}
    v_cmp_neq_f32 vcc, s69, v{t0}
    s_sub_u32 s74, s74, 1
    s_cbranch_scc1 {ld}
    s_and_b32 s4, s4, 0x888
    s_and_b64 vcc, vcc, s[70:71]
    s_or_b32 vcc_lo, vcc_lo, s4
    s_cmp_eq_u64 vcc, 0
    s_cbranch_scc1 {ld}
    s_sleep {os.environ.get("KSL", "2")}
    s_branch {lf}
    """)
    a.lab(ld)
    for n in range(3):
        r = LD + 4 * n
        a.e(f"v_cvt_pk_bf16_f32 v{r}, v{r}, v{r+1}\n v_cvt_pk_bf16_f32 v{r+1}, v{r+2}, v{r+3}")
    a.e("s_mov_b32 exec_lo, 0x77777777\n s_mov_b32 exec_hi, 0x77777777")
    for n in range(3):
        if n == 2: a.e("s_mov_b64 exec, 0x777")
        a.e(f"ds_write_b64 v{la}, {v(LD+4*n,2)} offset:{384*n}")
    a.e("s_mov_b64 exec, -1\n s_waitcnt lgkmcnt(0)\n s_barrier")
    stamp2(a, 5)
    if STAMPS: a.e("s_waitcnt lgkmcnt(0)")
    for h in range(4):
        a.e(f"ds_read_b64 {v(KX+6*(h>>1)+4*(h&1),2)}, v{kx[h>>1]} offset:{880*h}")
        a.e(f"ds_read_b64 {v(KF[h],2)}, v{ka} offset:{880*h}\n ds_read_b64 {v(KF[h]+2,2)}, v{ka} offset:{880*h+8}")
    for h in range(3):
        a.e(f"s_waitcnt lgkmcnt({9-3*h})")
        a.e("\n".join(omf(h)))
    a.e("s_waitcnt lgkmcnt(0)\n s_nop 3")
    N0 = norm(0)
    a.e("\n".join(N0[:6] + omf(3)[:1] + N0[6:12] + omf(3)[2:] + N0[12:] + norm(1) + norm(2) + norm(3)))
    a.e(f"buffer_store_dwordx4 {v(OX,4)}, v{l16}, {srd(SRD_B)}, s{sRH} offen sc1")
    stamp2(a, 6)
    a.e("s_waitcnt vmcnt(0)")
    set_flag(a, sT, t0, t1, wave=None)
    a.e("s_branch L_G2")
    return ra.hi

PF0 = int(os.environ.get("PF0", "1")); AH = int(os.environ.get("AH", "0"))
def pf_lanes(a, vW, vX, t0, t1, sU, sC):
    for x in range(64): assert (x * 52) >> 8 == x // 5
    a.e(f"""
    v_min_u32 v{t0}, 59, v{L}
    v_mul_u32_u24 v{t1}, 52, v{t0}
    v_lshrrev_b32 v{t1}, 8, v{t1}
    v_mul_u32_u24 v{vX}, 5, v{t1}
    v_sub_u32 v{t0}, v{t0}, v{vX}
    v_lshlrev_b32 v{t0}, 7, v{t0}
    s_movk_i32 s{sU}, 1280
    v_mad_u32_u24 v{vW}, v{t1}, s{sU}, v{t0}
    v_mul_u32_u24 v{vX}, 1280, v{L}
    s_and_b32 s{sC}, s{S_XI}, 1
    s_mul_i32 s{sC}, s{sC}, 640
    """)
def pf_one(a, sT, sA, sB, sU, sC, vW, vX, dst):
    for x in range(300): assert (x * 2731) >> 16 == x // 24
    lx, le = a.newlab("px"), a.newlab("pe")
    a.e(f"""
    s_mul_i32 s{sA}, s{sT}, 2731
    s_lshr_b32 s{sA}, s{sA}, 16
    s_mul_i32 s{sB}, s{sA}, 24
    s_sub_u32 s{sB}, s{sT}, s{sB}
    s_add_u32 s{sA}, s{sA}, {PF0}
    s_cmp_lt_u32 s{sB}, 8
    s_cbranch_scc1 {lx}
    s_sub_u32 s{sB}, s{sB}, 8
    s_lshl_b32 s{sB}, s{sB}, 2
    s_lshl_b32 s{sA}, s{sA}, 6
    s_add_u32 s{sA}, s{sA}, s{sB}
    s_mul_i32 s{sA}, s{sA}, 3840
    s_add_u32 s{sA}, s{sA}, s{sC}
    buffer_load_dword v{dst}, v{vW}, {srd(SRD_B)}, s{sA} offen
    s_branch {le}
    """)
    a.lab(lx)
    a.e(f"""
    s_lshr_b32 s{sU}, s{S_XI}, 1
    s_lshl_b32 s{sU}, s{sU}, 3
    s_add_u32 s{sB}, s{sB}, s{sU}
    s_mul_i32 s{sB}, s{sB}, {64*1280}
    s_lshl_b32 s{sA}, s{sA}, 7
    s_add_u32 s{sA}, s{sA}, s{sB}
    buffer_load_dword v{dst}, v{vX}, {srd(SRD_A)}, s{sA} offen
    """)
    a.lab(le)

def a1(a):
    ra = RA(2)
    t0, t1, t2 = [ra.a() for _ in range(3)]
    vo = [ra.a() for _ in range(5)]
    lr, g, ad, adh, so_u, otap = [ra.a() for _ in range(6)]
    taps = [ra.a(2) for _ in range(3)]
    KR = [ra.a(6, 2) for _ in range(6)]; VR = [ra.a(4, 2) for _ in range(6)]
    W = [ra.a(5) for _ in range(3)]; U = ra.a(8); O = [ra.a(4, 4) for _ in range(6)]; X = ra.a(4)
    vz = ra.a()
    sTI, sCH, sSO, sM0, sT, sSH, sU, sCG = 60, 61, 62, 63, 64, 65, 66, 67
    a.c("A1: 32 rows x 320 channels")
    a.e(f"""
    s_sub_u32 s{sT}, s{S_J}, 24
    s_lshl_b32 s{sT}, s{sT}, 3
    s_add_u32 s{sT}, s{sT}, s{S_XI}
    s_lshr_b32 s{sTI}, s{sT}, 1
    s_and_b32 s{sCH}, s{sT}, 1
    s_lshl_b32 s{S_ASLOT}, s{sCH}, 5
    s_add_u32 s{S_ASLOT}, s{S_ASLOT}, s{sTI}
    s_mov_b32 s{sCG}, s{S_WAVE}
    s_lshl_b32 s{sT}, s{sTI}, 3
    s_add_u32 s{sT}, s{sT}, s{S_WAVE}
    s_mul_i32 s{sSO}, s{sT}, {8*1280}
    s_mul_i32 s{sT}, s{sCH}, 640
    s_add_u32 s{sSO}, s{sSO}, s{sT}
    s_mul_i32 s{sM0}, s{S_WAVE}, 5120
    s_and_b32 s{sT}, s{S_WAVE}, 1
    s_lshl_b32 s{sT}, s{sT}, 2
    """)
    for x in range(320): assert (x * 1639) >> 16 == x // 40
    a.e(f"s_movk_i32 s{sU}, 1280")
    def koff(j):
        sub = 1024 * j if j < 4 else 0
        o = []; src = L
        if j: o.append(f"v_add_u32 v{t0}, {64*j}, v{L}"); src = t0
        o += [f"v_mul_u32_u24 v{t1}, 1639, v{src}", f"v_lshrrev_b32 v{t1}, 16, v{t1}",
              f"v_mul_u32_u24 v{t2}, 40, v{t1}", f"v_sub_u32 v{t0}, v{src}, v{t2}",
              f"v_and_or_b32 v{t2}, v{t1}, 2, s{sT}", f"v_xor_b32 v{t0}, v{t0}, v{t2}", f"v_lshlrev_b32 v{t0}, 4, v{t0}"]
        if sub: o += [f"v_mad_u32_u24 v{t0}, v{t1}, s{sU}, v{t0}", f"v_subrev_u32 v{vo[j]}, {sub}, v{t0}"]
        else: o += [f"v_mad_u32_u24 v{vo[j]}, v{t1}, s{sU}, v{t0}"]
        a.e("\n".join(o))
    koff(0); koff(1)
    a.e("s_waitcnt lgkmcnt(0)")
    mk_srd(a, SRD_A, P_K, NB); mk_srd(a, SRD_B, P_V, NB)
    def dma1(srdn, lbase, so, j):
        a.e(f"s_add_u32 m0, s{sM0}, {lbase + (4096 if j == 4 else 0)}\n s_nop 0")
        a.e(f"buffer_load_dwordx4 v{vo[j]}, {srd(srdn)}, s{so} offen offset:{1024*(j&3)} lds")
    for j in range(5):
        if j >= 2: koff(j)
        dma1(SRD_A, A_KB, sSO, j); dma1(SRD_B, A_VB, sSO, j)
        if j == 1:
            mk_srd(a, SRD_D, P_SH, 640 * 8)
            a.e(f"""
            v_and_b32 v{lr}, 15, v{L}
            s_mul_i32 s{sSH}, s{sCH}, 320
            v_add_u32 v{so_u}, s{sSH}, v{lr}
            v_lshlrev_b32 v{otap}, 3, v{so_u}
            s_lshl_b32 s{sSH}, s{sCG}, 7
            """)
            for n in range(3):
                a.e(f"buffer_load_dwordx2 {v(taps[n],2)}, v{otap}, {srd(SRD_D)}, s{sSH} offen offset:{1024*n}")
    lab = a.newlab("a1_nohalo")
    a.e(f"""
    s_cmp_lg_u32 s{S_WAVE}, 7
    s_cbranch_scc1 {lab}
    s_sub_u32 s{sSH}, s{sSO}, {64*1280}
    s_cmp_eq_u32 s{sTI}, 0
    s_cselect_b32 s{sSH}, {NB}, s{sSH}
    """)
    for j in (2, 3, 4): dma1(SRD_A, A_KB - 8 * 5120, sSH, j)
    a.lab(lab)
    NH = 0
    mk_srd(a, SRD_A, P_H, T_BYTES)
    a.e(f"s_add_u32 s68, s{S_CB}, s{S_WAVE}\n s_lshl_b32 s68, s68, 12\n v_lshlrev_b32 v244, 4, v{L}")
    assert AH == 0
    if AH:
        NH = 1
        nhp = a.newlab("nohelp")
        pf_lanes(a, 240, 241, t0, t1, 68, 69)
        mk_srd(a, SRD_A, P_X, NB); mk_srd(a, SRD_B, P_W, 640 * 3840)
        a.e(f"""
        s_lshl_b32 s70, s{S_WAVE}, 3
        s_add_u32 s70, s70, s{S_J}
        s_sub_u32 s70, s70, 24
        s_min_u32 s70, s70, {AH-1}
        s_add_u32 s70, s70, {24*(10-PF0)-AH}
        s_barrier
        s_cmp_lt_u32 s{S_WAVE}, {AH//8}
        s_cbranch_scc1 {nhp}
        s_mov_b64 exec, 1
        """)
        a.lab(nhp)
        pf_one(a, 70, 71, 72, 68, 69, 240, 241, 244)
        a.e("s_mov_b64 exec, -1")
    mk_srd(a, SRD_D, P_DBG, 256)
    a.e(f"v_and_b32 v{vz}, 7, v{L}\n v_lshlrev_b32 v{vz}, 2, v{vz}")
    mk_srd(a, SRD_C, P_WS, T_BYTES)
    mk_fl(a)
    conv_sload(a)
    a.e(f"""
    v_lshrrev_b32 v{g}, 4, v{L}
    v_lshrrev_b32 v{t0}, 2, v{lr}
    v_lshl_add_u32 v{t1}, v{g}, 3, v{t0}
    v_mul_u32_u24 v{ad}, 640, v{t1}
    v_and_b32 v{t2}, 3, v{lr}
    v_lshl_add_u32 v{ad}, v{t2}, 3, v{ad}
    v_add_u32 v{ad}, {A_KB}, v{ad}
    v_lshrrev_b32 v{t0}, 1, v{t0}
    v_and_b32 v{t1}, 1, v{g}
    v_lshl_or_b32 v{t0}, v{t1}, 1, v{t0}
    v_xor_b32 v{t0}, s{sCG}, v{t0}
    v_lshlrev_b32 v{t0}, 5, v{t0}
    v_xor_b32 v{t1}, 64, v{t0}
    v_add_u32 v{adh}, v{t1}, v{ad}
    v_subrev_u32 v{adh}, {4*640}, v{adh}
    v_add_u32 v{ad}, v{t0}, v{ad}
    v_and_b32 v{t0}, 0xfffffff7, v{so_u}
    v_lshlrev_b32 v{t0}, 12, v{t0}
    s_lshl_b32 s{sT}, s{sTI}, 7
    v_lshlrev_b32 v{t1}, 4, v{g}
    v_add_u32 v{t1}, s{sT}, v{t1}
    v_and_b32 v{t2}, 8, v{lr}
    v_lshl_add_u32 v{t1}, v{t2}, 3, v{t1}
    v_sub_u32 v{so_u}, 4080, v{t1}
    v_add_u32 v{so_u}, v{so_u}, v{t0}
    s_lshl_b32 s{sU}, s{sCG}, 16
    """)
    def tapprep(n):
        tp, w = taps[n], W[n]
        a.e(f"""
        v_alignbit_b32 v{w}, v{tp}, v{tp}, 16
        v_alignbit_b32 v{w+1}, v{tp+1}, v{tp+1}, 16
        v_and_b32 v{w+2}, 0xffff0000, v{tp}
        v_and_b32 v{w+3}, 0xffff, v{tp}
        v_and_b32 v{w+4}, 0xffff, v{tp+1}
        v_or_b32 v{w+2}, v{w+2}, v{w+4}
        v_and_b32 v{w+4}, 0xffff0000, v{tp+1}
        """)
    a.e(f"s_waitcnt vmcnt({6+NH})")
    for n in range(3): tapprep(n)
    stamp(a, 1)
    a.e(f"s_waitcnt vmcnt({NH}) lgkmcnt(0)\n s_barrier")
    a.e(f"buffer_load_dword v{vz}, v{vz}, {srd(SRD_D)}, 0 offen sc1")
    if "hlate" not in EX:
        h_load(a, 208, 244, SRD_A, 68)
        a.e("s_setprio 1")
    stamp(a, 2)
    if STAMPS: a.e("s_waitcnt lgkmcnt(0)")
    def rd(u):
        o = 256 * (u >> 1) + (u & 1) * 32 * 640
        return [f"ds_read_b64_tr_b16 {v(KR[u],2)}, v{adh} offset:{o}",
                f"ds_read_b64_tr_b16 {v(KR[u]+2,2)}, v{ad} offset:{o}",
                f"ds_read_b64_tr_b16 {v(KR[u]+4,2)}, v{ad} offset:{o+2560}",
                f"ds_read_b64_tr_b16 {v(VR[u],2)}, v{ad} offset:{A_VB-A_KB+o}",
                f"ds_read_b64_tr_b16 {v(VR[u]+2,2)}, v{ad} offset:{A_VB-A_KB+o+2560}"]
    a.e("\n".join(rd(0) + rd(1) + rd(2)))
    done = a.newlab("a1_done")
    for u in range(6):
        k, w, ob = KR[u], W[u >> 1], O[u]
        if u == 4: a.e(f"s_cmp_ge_u32 s{S_WAVE}, 4\n s_cbranch_scc1 {done}")
        a.e(f"s_waitcnt lgkmcnt({5*(min(5, u + 2) - u)})")
        if u + 3 < 6:
            a.e("\n".join(rd(u + 3)))
        for m in range(4):
            a.e(f"v_dot2_f32_bf16 v{U+2*m}, v{k+m}, v{w+4}, 0")
            a.e(f"v_dot2_f32_bf16 v{U+2*m+1}, v{k+m+1}, v{w+1}, 0")
        for m in range(4):
            a.e(f"v_dot2_f32_bf16 v{U+2*m}, v{k+m+1}, v{w+2}, v{U+2*m}")
            a.e(f"v_dot2_f32_bf16 v{U+2*m+1}, v{k+m+2}, v{w}, v{U+2*m+1}")
        for m in range(4):
            a.e(f"v_dot2_f32_bf16 v{U+2*m}, v{k+m+2}, v{w+3}, v{U+2*m}")
        for m in range(4):
            x = X + 2 * (m & 1)
            a.e(f"""
            v_lshlrev_b32 v{x}, 16, v{VR[u]+m}
            v_and_b32 v{x+1}, 0xffff0000, v{VR[u]+m}
            v_mul_f32 v{x+1}, v{x+1}, v{U+2*m+1}
            v_mul_f32 v{x}, v{x}, v{U+2*m}
            v_cvt_pk_bf16_f32 v{ob+3-m}, v{x+1}, v{x}
            """)
        if u & 1:
            lo, hi = O[u - 1], O[u]
            for i in range(4): a.e(f"v_mov_b32 v{X+i}, v{lo+i}")
            for i in (3, 2, 1, 0): a.e(f"v_mov_b32_dpp v{lo+i}, v{hi+i} row_ror:8 row_mask:0xf bank_mask:0xc")
            for i in range(4): a.e(f"v_mov_b32_dpp v{hi+i}, v{X+i} row_ror:8 row_mask:0xf bank_mask:0x3")
            a.e(f"buffer_store_dwordx4 {v(lo,4)}, v{so_u}, {srd(SRD_C)}, s{sU} offen sc1")
            a.e(f"s_add_u32 s{sT}, s{sU}, {8*4096}")
            a.e(f"buffer_store_dwordx4 {v(hi,4)}, v{so_u}, {srd(SRD_C)}, s{sT} offen sc1")
            a.e(f"s_add_u32 s{sU}, s{sU}, {8<<16}")
    a.lab(done)
    a.e("s_waitcnt lgkmcnt(0)")
    stamp(a, 3)
    if "hlate" not in EX:
        a.e("s_setprio 0\n s_waitcnt vmcnt(4)")
        h_stage(a, 208, 224, S_WAVE, 244, t2, sT)
    nz = a.newlab("a1_nz")
    a.e(f"s_waitcnt vmcnt(0)\n v_cmp_ne_u32 vcc, 1, v{vz}\n s_nop 1\n s_cmp_eq_u64 vcc, 0\n s_cbranch_scc1 {nz}")
    poll_z(a, t0, t1)
    a.lab(nz)
    a.e("s_barrier")
    stamp(a, 4)
    set_flag(a, S_ASLOT, t0, t1)
    return ra.hi

def prefetcher(a):
    vW, vX, vQ, vO, t0, t1, z4 = 2, 3, 4, 5, 6, 7, 8
    sN, sA, sB, sC, sT, sU = 60, 61, 62, 63, 64, 65
    a.c("L2 prefetch of this XCD's GEMM operands in K order (speed only) + housekeeping")
    pf_lanes(a, vW, vX, t0, t1, sU, sC)
    a.e(f"""
    s_lshl_b32 s{sN}, s{S_WAVE}, 3
    s_add_u32 s{sN}, s{sN}, s{S_J}
    s_sub_u32 s{sN}, s{sN}, 16
    s_waitcnt lgkmcnt(0)
    """)
    mk_fl(a)
    nz, nt, nc = a.newlab("nozero"), a.newlab("notlb"), a.newlab("nocode")
    a.e(f"s_cmp_lg_u32 s{sN}, 63\n s_cbranch_scc1 {nz}")
    a.e(f"s_mul_i32 s{sT}, s{S_XI}, {GB}\n s_add_u32 s{sT}, s{sT}, {WS_KV}")
    mk_srd(a, SRD_C, P_WS, GB, off_sreg=sT)
    mk_srd(a, SRD_D, P_DBG, 256)
    for i in range(4): a.e(f"v_mov_b32 v{z4+i}, 0")
    a.e(f"""
    v_lshlrev_b32 v{t0}, 4, v{L}
    v_lshlrev_b32 v{t1}, 7, v{L}
    s_lshl_b32 s{sT}, s{S_XI}, 13
    buffer_store_dword v{z4}, v{t1}, {srd(SRD_FL)}, s{sT} offen sc1
    s_add_u32 s{sT}, s{sT}, 0x10000
    buffer_store_dword v{z4}, v{t1}, {srd(SRD_FL)}, s{sT} offen sc1
    s_movk_i32 s{sT}, 4096
    s_movk_i32 s{sU}, 8192
    """)
    for n in range(9):
        a.e(f"buffer_store_dwordx4 {v(z4,4)}, v{t0}, {srd(SRD_C)}, {('0', 's%d' % sT, 's%d' % sU)[n>>2]} offen offset:{1024*(n&3)} sc1")
    a.e(f"""
    s_lshl_b32 s{sT}, s{S_XI}, 2
    v_mov_b32 v{t1}, 1
    s_waitcnt vmcnt(0)
    s_mov_b64 exec, 1
    buffer_store_dword v{t1}, v{t0}, {srd(SRD_D)}, s{sT} offen sc1
    s_mov_b64 exec, -1
    """)
    a.lab(nz)
    a.e(f"s_cmp_lg_u32 s{sN}, 62\n s_cbranch_scc1 {nt}")
    a.e(f"v_lshlrev_b32 v{t1}, 20, v{L}")
    for i, (ptr, nb) in enumerate([(P_WS, WS_END), (P_OUT, 2048 * 2560), (P_Q, NB), (P_WO, 640 * 1280), (P_DBG, 256), (P_H, T_BYTES)]):
        mk_srd(a, SRD_A, ptr, nb)
        a.e(f"buffer_load_dword v{236+i}, v{t1}, {srd(SRD_A)}, 0 offen")
    a.lab(nt)
    mk_srd(a, SRD_A, P_X, NB); mk_srd(a, SRD_B, P_W, 640 * 3840)
    done = a.newlab("pfd")
    NI = 24 * (10 - PF0) - AH
    for m in range((NI + 63) // 64):
        if m and "nopb" not in EX: a.e("s_barrier")
        a.e(f"s_add_u32 s{sT}, s{sN}, {64*m}")
        if 64 * m + 64 > NI: a.e(f"s_cmp_ge_u32 s{sT}, {NI}\n s_cbranch_scc1 {done}")
        pf_one(a, sT, sA, sB, sU, sC, vW, vX, 244 + m)
    a.lab(done)
    a.e("s_barrier")
    if "hlate" in EX:
        nh = a.newlab("pnh")
        mk_srd(a, SRD_B, P_H, T_BYTES)
        a.e(f"""
        s_cmp_ge_u32 s{sN}, 32
        s_cbranch_scc1 {nh}
        s_mul_i32 s{sA}, s{S_XI}, {80*4096}
        s_lshl_b32 s{sB}, s{sN}, 13
        s_add_u32 s{sA}, s{sA}, s{sB}
        v_lshlrev_b32 v{t0}, 7, v{L}
        buffer_load_dword v249, v{t0}, {srd(SRD_B)}, s{sA} offen
        """)
        a.lab(nh)
    mk_srd(a, SRD_A, P_WO, 640 * 1280)
    a.e(f"""
    s_mul_i32 s{sA}, s{sN}, {12*1280}
    s_add_u32 s{sA}, s{sA}, s{sC}
    buffer_load_dword v248, v{vW}, {srd(SRD_A)}, s{sA} offen
    """)
    nq = a.newlab("pnq")
    mk_srd(a, SRD_B, P_Q, NB)
    a.e(f"""
    s_cmp_ge_u32 s{S_J}, 20
    s_cbranch_scc1 {nq}
    s_barrier
    s_and_b32 s{sA}, s{S_J}, 3
    s_lshl_b32 s{sA}, s{sA}, 3
    s_add_u32 s{sA}, s{sA}, s{S_WAVE}
    s_xor_b32 s{sA}, s{sA}, 16
    s_mul_i32 s{sA}, s{sA}, {64*1280}
    s_mul_i32 s{sB}, s{S_XI}, 160
    s_add_u32 s{sA}, s{sA}, s{sB}
    buffer_load_dword v250, v{vX}, {srd(SRD_B)}, s{sA} offen
    buffer_load_dword v251, v{vX}, {srd(SRD_B)}, s{sA} offen offset:156
    """)
    a.lab(nq)
    conv_sload(a)
    stamp(a, 1)
    nz = a.newlab("pnz")
    a.e(f"s_cmp_lg_u32 s{S_WAVE}, 1\n s_cbranch_scc1 {nz}")
    poll_z(a, t0, t1)
    a.lab(nz)
    a.e("s_waitcnt lgkmcnt(0)")

def conv(a):
    ra = RA(2)
    lr, g, t0, t1, t2, aB, aT, vrow, vfl, vrow2, aR = [ra.a() for _ in range(11)]
    aA = [ra.a() for _ in range(4)]
    z4 = ra.a(4, 4); AD = ra.a(4, 4)
    Q = ra.a(16, 4)
    AF = [[ra.a(4, 4) for _ in range(8)] for _ in range(2)]
    BF = [[ra.a(4, 4) for _ in range(8)] for _ in range(2)]
    ACC = [ra.a(4, 4) for _ in range(8)]
    sD, sR, sSO, sT, sOO, sDV, sH, sQO = 60, 61, 62, 63, 64, 65, 66, 67
    fin, idle = a.newlab("conv_fin"), a.newlab("conv_idle")
    a.c("conv")
    if "noconv" in EX: a.e("s_branch L_FIN")
    mk_srd(a, SRD_A, P_WS, T_BYTES); mk_srd(a, SRD_B, P_Q, NB); mk_srd(a, SRD_C, P_OUT, 2048 * 2560)
    def qtouch():
        a.e(f"""
        s_sub_u32 s{sT}, s{S_J}, 20
        s_lshl_b32 s{sT}, s{sT}, 3
        s_add_u32 s{sT}, s{sT}, s{S_WAVE}
        s_mul_i32 s{sT}, s{sT}, {22*1280}
        s_mul_i32 s70, s{S_XI}, 160
        s_add_u32 s{sT}, s{sT}, s70
        v_and_b32 v{t2}, 31, v{L}
        v_min_u32 v{t2}, 21, v{t2}
        v_mul_u32_u24 v{t2}, 1280, v{t2}
        v_lshrrev_b32 v{t1}, 1, v{g}
        v_mul_u32_u24 v{t1}, 156, v{t1}
        v_add_u32 v{t2}, v{t2}, v{t1}
        buffer_load_dword v250, v{t2}, {srd(SRD_B)}, s{sT} offen
        """)
    def qg(slot, rowoff, nd):
        return [f"s_add_u32 s{sT}, s{sQO}, {rowoff*1280}",
                f"buffer_load_dwordx{nd} {v(Q+slot,nd)}, v{vrow}, {srd(SRD_B)}, s{sT} offen"]
    def qgather(n):
        l4, le = a.newlab("q4"), a.newlab("qe")
        ro = (1024 if n < 2 else 0) + 64 * (n & 1)
        a.e(f"s_cmp_lg_u32 s{S_P2}, 8\n s_cbranch_scc1 {l4}")
        a.e("\n".join(qg(4 * n, ro, 4)))
        if n >= 2:
            a.e(f"s_branch {le}")
        a.lab(l4)
        if n >= 2:
            a.e("\n".join(qg(4 * n, ro, 2)))
            a.lab(le)
    a.e(f"""
    v_and_b32 v{lr}, 15, v{L}
    v_lshrrev_b32 v{g}, 4, v{L}
    v_mul_u32_u24 v{vrow}, 1280, v{L}
    s_mul_i32 s{sQO}, s{S_WAVE}, {128*1280}
    s_lshl_b32 s{sOO}, s{sQO}, 1
    s_lshl_b32 s{sT}, s{S_CB}, 1
    s_add_u32 s{sQO}, s{sQO}, s{sT}
    s_add_u32 s{sOO}, s{sOO}, s{sT}
    v_lshlrev_b32 v{vrow2}, 1, v{vrow}
    v_lshrrev_b32 v{aR}, 2, v{lr}
    v_mul_u32_u24 v{aR}, {TP}, v{aR}
    v_and_b32 v{t1}, 3, v{lr}
    v_lshl_add_u32 v{aR}, v{t1}, 3, v{aR}
    v_lshl_add_u32 v{aR}, v{g}, 5, v{aR}
    s_lshl_b32 s{sT}, s{S_WAVE}, 8
    s_add_u32 s{sT}, s{sT}, {TB}
    v_add_u32 v{aR}, s{sT}, v{aR}
    s_cmp_ge_u32 s{S_WAVE}, s{S_P2}
    s_cbranch_scc1 {idle}
    s_add_u32 s{sD}, s{S_CB}, s{S_WAVE}
    s_lshl_b32 s{sSO}, s{sD}, 12
    v_lshlrev_b32 v{t0}, 4, v{L}
    """)
    HH, HG = AF[0][0], BF[0][0]
    mk_srd(a, SRD_D, P_H, T_BYTES)
    nh1, nh2 = a.newlab("nh1"), a.newlab("nh2")
    skip = "" if "hlate" in EX else f"s_cmp_eq_u32 s{S_P2}, 8\n s_cbranch_scc1 "
    if skip: a.e(skip + nh1)
    h_load(a, HH, t0, SRD_D, sSO)
    a.lab(nh1)
    a.e(f"""
    s_mul_i32 s{sR}, s{S_WAVE}, {UP}
    s_add_u32 s{sR}, s{sR}, {UB}
    s_mul_i32 s{sH}, s{S_WAVE}, {HP}
    s_cmp_ge_u32 s{sD}, 320
    s_cselect_b32 s{sT}, 32, 0
    v_and_b32 v{vfl}, 31, v{L}
    v_add_u32 v{vfl}, s{sT}, v{vfl}
    v_lshlrev_b32 v{vfl}, 7, v{vfl}
    """)
    for i in range(4):
        a.e(f"v_mov_b32 v{z4+i}, 0")
    a.e(f"""
    v_and_b32 v{t1}, 1, v{lr}
    v_cmp_eq_u32 vcc, 1, v{t1}
    v_mov_b32 v{t1}, {HB+H_O}
    v_mov_b32 v{t2}, {HB+2}
    v_cndmask_b32 v{t1}, v{t1}, v{t2}, vcc
    v_lshl_add_u32 v{t1}, v{lr}, 1, v{t1}
    v_lshl_add_u32 v{t1}, v{g}, 4, v{t1}
    v_add_u32 v{aA[0]}, s{sH}, v{t1}
    v_add_u32 v{aA[1]}, 1024, v{aA[0]}
    v_add_u32 v{aA[2]}, 2048, v{aA[0]}
    v_add_u32 v{aA[3]}, 3072, v{aA[0]}
    v_lshlrev_b32 v{t0}, 4, v{L}
    v_add_u32 v{aT}, s{sR}, v{t0}
    s_and_b32 s{sT}, s{sD}, 1
    s_lshl_b32 s{sT}, s{sT}, 4
    s_lshr_b32 s{sDV}, s5, s{sT}
    s_and_b32 s{sDV}, s{sDV}, 0xffff
    v_lshl_add_u32 v{t1}, v{g}, 3, v{lr}
    v_sub_u32 v{t1}, 15, v{t1}
    v_and_b32 v{t2}, 1, v{t1}
    v_lshlrev_b32 v{t2}, 4, v{t2}
    v_lshlrev_b32 v{t2}, v{t2}, s{sDV}
    v_ashrrev_i32 v{t1}, 1, v{t1}
    """)
    for r in range(4):
        a.e(f"v_cmp_eq_u32 vcc, {r}, v{t1}\n s_nop 1\n v_cndmask_b32 v{AD+r}, 0, v{t2}, vcc")
    a.e(f"""
    v_lshlrev_b32 v{t1}, 5, v{lr}
    v_sub_u32 v{aB}, 480, v{t1}
    v_lshl_add_u32 v{aB}, v{g}, 4, v{aB}
    v_add_u32 v{aB}, s{sR}, v{aB}
    """)
    if skip: a.e(skip + nh2)
    a.e("s_waitcnt vmcnt(0)")
    h_stage(a, HH, HG, S_WAVE, t0, t1, sT)
    a.lab(nh2)
    a.e(f"s_mov_b32 exec_hi, 0\n ds_write_b128 v{aT}, {v(z4,4)} offset:4096\n s_mov_b64 exec, -1")
    a.e("s_waitcnt lgkmcnt(0)")
    for i in range(8):
        o0 = 128 * (i & 1)
        a.e(f"ds_read2_b32 {v(AF[0][i],2)}, v{aA[i>>1]} offset0:{o0} offset1:{o0+1}")
        a.e(f"ds_read2_b32 {v(AF[0][i]+2,2)}, v{aA[i>>1]} offset0:{o0+2} offset1:{o0+3}")
    stamp(a, 5)
    npl = a.newlab("nopoll")
    a.e(f"s_cmp_lg_u32 s{S_WAVE}, 1\n s_cbranch_scc1 {npl}")
    poll(a, SRD_FL, vfl, t1, slp=int(os.environ.get("ASL", "2")))
    a.lab(npl)
    a.e("s_barrier")
    stamp(a, 6)
    UR = AF[1][0]
    for j in range(4):
        a.e(f"buffer_load_dwordx4 {v(UR+4*j,4)}, v{t0}, {srd(SRD_A)}, s{sSO} offen offset:{1024*j} sc1")
    for j in range(4):
        a.e(f"s_waitcnt vmcnt({3-j})\n ds_write_b128 v{aT}, {v(UR+4*j,4)} offset:{1024*j}")
    a.e(f"""
    v_lshlrev_b32 v{t1}, 5, v{lr}
    v_lshl_add_u32 v{aT}, v{g}, 3, v{t1}
    s_mul_i32 s{sT}, s{S_WAVE}, {TP}
    s_add_u32 s{sT}, s{sT}, {TB}
    v_add_u32 v{aT}, s{sT}, v{aT}
    """)
    MF = "v_mfma_f32_16x16x32_bf16"
    def rd1(b, slot, i, r):
        o0 = 128 * (i & 1) + 16 * r
        if "fakeA" in EX and i < 4:
            return [f"ds_read_b128 {v(BF[b][slot],4)}, v{aB} offset:{3584 - 512*i + 64*r}",
                    f"ds_read_b64 {v(AF[b][slot],2)}, v{vfl} offset:{512*i+64*r}",
                    f"ds_read_b64 {v(AF[b][slot]+2,2)}, v{vfl} offset:{512*i+64*r+512}"]
        return [f"ds_read_b128 {v(BF[b][slot],4)}, v{aB} offset:{3584 - 512*i + 64*r}",
                f"ds_read2_b32 {v(AF[b][slot],2)}, v{aA[i>>1]} offset0:{o0} offset1:{o0+1}",
                f"ds_read2_b32 {v(AF[b][slot]+2,2)}, v{aA[i>>1]} offset0:{o0+2} offset1:{o0+3}"]
    def reads(it):
        b = it & 1; o = []
        if it < 8:
            for i in range(8): o += rd1(b, i, i, it)
        elif it < 12:
            for k in range(2):
                for i in range(4): o += rd1(b, 4 * k + i, i, 2 * (it - 8) + k)
        return o
    def mf(it):
        b = it & 1; o = []
        if it < 8:
            if it == 0:
                o += [f"{MF} {v(ACC[c],4)}, {v(AD,4)}, {v(BF[b][c],4)}, 0" for c in range(8)]
            for q in range(8):
                for c in range(max(q, 4), 8):
                    o.append(f"{MF} {v(ACC[c],4)}, {v(AF[b][q],4)}, {v(BF[b][c-q],4)}, {v(ACC[c],4)}")
        else:
            for k in range(2):
                for q in range(4):
                    for c in range(q, 4):
                        o.append(f"{MF} {v(ACC[c],4)}, {v(AF[b][4*k+q],4)}, {v(BF[b][4*k+c-q],4)}, {v(ACC[c],4)}")
        return o
    def spread(M, F):
        out = []; n = len(M); fi = 0
        for i, m in enumerate(M):
            out.append(m)
            tgt = (len(F) * (i + 1) + n - 1) // n
            out += F[fi:tgt]; fi = tgt
        return out
    def twrite(half):
        a.e("s_nop 3")
        for c in range(4):
            r = ACC[4 * half + c]
            a.e(f"v_cvt_pk_bf16_f32 v{r}, v{r}, v{r+1}\n v_cvt_pk_bf16_f32 v{r+1}, v{r+2}, v{r+3}")
            a.e(f"ds_write_b64 v{aT}, {v(r,2)} offset:{(1-half)*8*TP + 512*c}")
    Y, X = ACC[4], ACC[6]
    def t_rd(n, nd, toff):
        return [f"ds_read_b64_tr_b16 {v(Y+4*(n&1)+2*k,2)}, v{aR} offset:{toff + 4*TP*k}" for k in range(nd // 2)]
    def t_mul(n, nd, qslot, rowoff):
        o = []
        for i in range(nd):
            y, q, x = Y + 4 * (n & 1) + i, Q + qslot + i, X + 4 * (i & 1)
            o += [f"v_lshlrev_b32 v{x}, 16, v{y}", f"v_and_b32 v{x+1}, 0xffff0000, v{y}",
                  f"v_lshlrev_b32 v{x+2}, 16, v{q}", f"v_and_b32 v{x+3}, 0xffff0000, v{q}",
                  f"v_mul_f32 v{x}, v{x}, v{x+2}", f"v_mul_f32 v{x+1}, v{x+1}, v{x+3}",
                  f"v_cvt_pk_bf16_f32 v{y}, v{x}, v{x+1}"]
        o += [f"s_add_u32 s{sT}, s{sOO}, {rowoff*2560}",
              f"buffer_store_dwordx{nd} {v(Y+4*(n&1),nd)}, v{vrow2}, {srd(SRD_C)}, s{sT} offen"]
        return o
    if "fakeA" in EX: a.e(f"v_lshl_add_u32 v{vfl}, v{L}, 3, s{sH}")
    stamp(a, 7)
    a.e("\n".join(x for x in reads(0) if "b128" in x))
    for it in range(8):
        a.e("s_waitcnt lgkmcnt(0)")
        if "nocprio" not in EX: a.e(f"s_setprio {3 - it // 2}")
        if 3 <= it <= 6 and "nog" not in EX: qgather(it - 3)
        a.e("\n".join(interleave(mf(it), reads(it + 1) if "nord" not in EX else [])))
    twrite(1)
    a.e("s_waitcnt lgkmcnt(0)\n s_barrier")
    stamp(a, 8)
    lo4, lj = a.newlab("lo4"), a.newlab("loj")
    a.e(f"s_cmp_lg_u32 s{S_P2}, 8\n s_cbranch_scc1 {lo4}")
    for it in range(8, 12):
        if it > 8: a.e("s_waitcnt lgkmcnt(0)")
        if "nocprio" not in EX: a.e(f"s_setprio {11 - it}")
        F = reads(it + 1)
        if it == 8: F = t_rd(0, 4, 0) + t_rd(1, 4, 128) + F
        if it == 9:
            a.e("s_waitcnt vmcnt(2)")
            F = interleave2(F, t_mul(0, 4, 0, 1024), 1)
        if it == 10: F = interleave2(F, t_mul(1, 4, 4, 1024 + 64), 1)
        a.e("\n".join(spread(mf(it), F)))
    a.e(f"s_branch {lj}")
    a.lab(lo4)
    for it in range(8, 12):
        if it > 8: a.e("s_waitcnt lgkmcnt(0)")
        a.e("\n".join(spread(mf(it), reads(it + 1))))
    a.e("s_waitcnt vmcnt(0)")
    a.lab(lj)
    twrite(0)
    a.e(f"s_branch {fin}")
    a.lab(idle)
    a.e("s_barrier")
    a.e(f"s_waitcnt vmcnt(0)\n s_sub_u32 s{sD}, s{S_WAVE}, 8\n s_mul_i32 s{sR}, s{sD}, {128*1280}\n s_add_u32 s{sQO}, s{sQO}, s{sR}")
    for n in range(4): a.e("\n".join(qg(2 * n, 1024 + 64 * n, 2)))
    a.e(f"s_sub_u32 s{sQO}, s{sQO}, s{sR}")
    for n in range(2): a.e("\n".join(qg(8 + 4 * n, 64 * n, 2)))
    a.e(f"s_lshl_b32 s{sR}, s{sR}, 1\n s_add_u32 s{sOO}, s{sOO}, s{sR}\n s_lshl_b32 s{sD}, s{sD}, 8\n v_add_u32 v{aR}, s{sD}, v{aR}")
    a.e("s_barrier")
    for h in range(2):
        a.e("\n".join(t_rd(0, 2, 256 * h) + t_rd(1, 2, 256 * h + 128)))
        a.e("s_waitcnt vmcnt(0) lgkmcnt(0)" if h == 0 else "s_waitcnt lgkmcnt(0)")
        a.e("\n".join(t_mul(0, 2, 4 * h, 1024 + 128 * h) + t_mul(1, 2, 4 * h + 2, 1024 + 128 * h + 64)))
    a.e(f"s_sub_u32 s{sOO}, s{sOO}, s{sR}\n v_subrev_u32 v{aR}, s{sD}, v{aR}")
    a.lab(fin)
    a.e("s_waitcnt lgkmcnt(0)\n s_barrier")
    stamp(a, 9)
    def tail(nd):
        a.e("\n".join(t_rd(0, nd, 8 * TP) + t_rd(1, nd, 8 * TP + 128)))
        a.e("s_waitcnt vmcnt(2) lgkmcnt(0)" if nd == 4 else "s_waitcnt lgkmcnt(0)")
        a.e("\n".join(t_mul(0, nd, 8, 0) + t_mul(1, nd, 12, 64)))
    l8 = a.newlab("t8")
    a.e(f"s_cmp_eq_u32 s{S_P2}, 8\n s_cbranch_scc1 {l8}")
    tail(2)
    a.e("s_branch L_FIN")
    a.lab(l8)
    tail(4)
    a.e("s_branch L_FIN")
    return ra.hi

def wo_dma(a):
    t0, t1, t2, vx = 228, 229, 230, [231, 232, 233, 234]
    sSX, sM, sT = 68, 69, 70
    mk_srd(a, SRD_A, P_WO, 640 * 1280)
    a.e(f"""
    v_lshrrev_b32 v{t0}, 3, v{L}
    v_mul_u32_u24 v{t0}, 1280, v{t0}
    v_and_b32 v{t1}, 7, v{L}
    v_lshrrev_b32 v{t2}, 4, v{L}
    v_lshlrev_b32 v{t2}, 1, v{t2}
    v_xor_b32 v{t1}, v{t1}, v{t2}
    v_lshl_add_u32 v{vx[0]}, v{t1}, 4, v{t0}
    v_add_u32 v{vx[1]}, {1*(8*1280-1024)}, v{vx[0]}
    v_add_u32 v{vx[2]}, {2*(8*1280-1024)}, v{vx[0]}
    v_add_u32 v{vx[3]}, {3*(8*1280-1024)}, v{vx[0]}
    s_sub_u32 s{sM}, s{S_WAVE}, 4
    s_mul_i32 s{sSX}, s{sM}, {160*1280}
    s_lshl_b32 s{sT}, s{S_GC}, 7
    s_add_u32 s{sSX}, s{sSX}, s{sT}
    s_mul_i32 s{sM}, s{sM}, 20480
    s_add_u32 s{sM}, s{sM}, {WOB}
    """)
    for q in range(5):
        a.e(f"s_add_u32 m0, s{sM}, {4096*q}\n s_nop 0")
        for j in range(4):
            a.e(f"buffer_load_dwordx4 v{vx[j]}, {srd(SRD_A)}, s{sSX} offen offset:{1024*j} lds")
        a.e(f"s_add_u32 s{sSX}, s{sSX}, {32*1280}")
    mk_srd(a, SRD_B, P_WS, T_BYTES, off=WS_PQ)

def g2(a):
    ra = RA(2)
    t0, t1, t2, t3, g, vo, vx, vfl, vst = [ra.a() for _ in range(9)]
    wm, wx = [ra.a() for _ in range(4)], [ra.a() for _ in range(4)]
    O = [ra.a(4, 4) for _ in range(20)]
    NW = 8
    WF = [[ra.a(4, 4) for _ in range(4)] for _ in range(NW)]
    ACC = [ra.a(4, 4) for _ in range(4)]
    D = O[0]
    sT, sSO, sU = 62, 63, 65
    MF = "v_mfma_f32_16x16x32_bf16"
    a.c("G2")
    a.e(f"""
    s_lshl_b32 s{sT}, s{S_RT}, 3
    s_add_u32 s{sT}, s{sT}, s{S_WAVE}
    s_mul_i32 s{sSO}, s{sT}, {16*2560}
    s_lshr_b32 s{sT}, s{sT}, 1
    s_lshl_b32 s{sT}, s{sT}, 3
    s_mul_i32 s{sU}, s{sT}, 5120
    s_add_u32 s{sT}, s{sT}, 64
    v_and_b32 v{t0}, 7, v{L}
    v_add_u32 v{vfl}, s{sT}, v{t0}
    v_lshlrev_b32 v{vfl}, 7, v{vfl}
    v_lshrrev_b32 v{g}, 4, v{L}
    v_and_b32 v{t0}, 15, v{L}
    v_and_b32 v{t1}, 1, v{g}
    v_lshrrev_b32 v{t2}, 1, v{g}
    v_mul_u32_u24 v{vst}, 2560, v{t0}
    v_lshl_add_u32 v{vst}, v{t1}, 5, v{vst}
    v_lshl_add_u32 v{vst}, v{t2}, 4, v{vst}
    s_and_b32 s{sT}, s{S_WAVE}, 1
    s_lshl_b32 s{sT}, s{sT}, 8
    v_lshl_add_u32 v{t3}, v{t0}, 4, s{sT}
    v_lshl_add_u32 v{t3}, v{t1}, 9, v{t3}
    v_lshl_add_u32 v{vo}, v{t2}, 10, v{t3}
    v_mul_u32_u24 v{vx}, 5120, v{t2}
    v_add_u32 v{vx}, v{vx}, v{t3}
    v_add_u32 v{vx}, 4096, v{vx}
    s_lshl_b32 s{sT}, s{S_GC}, 7
    s_add_u32 s{sSO}, s{sSO}, s{sT}
    s_add_u32 s{sSO}, s{sSO}, 1280
    v_and_b32 v{t3}, 3, v{L}
    v_lshlrev_b32 v{t3}, 3, v{t3}
    v_add_u32 v{t3}, {WOB}, v{t3}
    v_lshrrev_b32 v{t0}, 2, v{t0}
    v_mul_u32_u24 v{wm[1]}, 20, v{t2}
    v_lshl_add_u32 v{wm[1]}, v{t1}, 2, v{wm[1]}
    v_add_u32 v{wm[1]}, v{wm[1]}, v{t0}
    v_lshl_add_u32 v{wm[0]}, v{wm[1]}, 7, v{t3}
    v_bfe_u32 v{wm[1]}, v{wm[1]}, 1, 2
    v_lshl_add_u32 v{wm[0]}, v{wm[1]}, 5, v{wm[0]}
    v_mul_u32_u24 v{wx[1]}, 80, v{t2}
    v_lshl_add_u32 v{wx[1]}, v{t1}, 1, v{wx[1]}
    v_lshrrev_b32 v{wx[2]}, 1, v{t0}
    v_mul_u32_u24 v{wx[2]}, 20, v{wx[2]}
    v_and_b32 v{t0}, 1, v{t0}
    v_add3_u32 v{wx[1]}, v{wx[1]}, v{wx[2]}, v{t0}
    v_add_u32 v{wx[1]}, 16, v{wx[1]}
    v_lshl_add_u32 v{wx[0]}, v{wx[1]}, 7, v{t3}
    v_bfe_u32 v{wx[1]}, v{wx[1]}, 1, 2
    v_lshl_add_u32 v{wx[0]}, v{wx[1]}, 5, v{wx[0]}
    """)
    for nt in range(1, 4):
        a.e(f"v_xor_b32 v{wm[nt]}, {32*nt}, v{wm[0]}\n v_xor_b32 v{wx[nt]}, {32*nt}, v{wx[0]}")
    mk_srd(a, SRD_D, P_OUT, 2048 * 2560)
    nw = a.newlab("g2nw")
    a.e(f"s_cmp_lt_u32 s{S_WAVE}, 4\n s_cbranch_scc1 {nw}\n s_waitcnt vmcnt(0)")
    a.lab(nw)
    a.e("s_barrier")
    def wrd(k):
        P, j = divmod(k, 5); b = k % NW; base = 20480 * (P & 1)
        if j < 4:
            o = [f"ds_read_b64_tr_b16 {v(WF[b][nt]+2*i,2)}, v{wm[nt]} offset:{base+5120*j+1024*i}" for nt in range(4) for i in range(2)]
        else:
            o = [f"ds_read_b64_tr_b16 {v(WF[b][nt]+2*i,2)}, v{wx[nt]} offset:{base+5120*i}" for nt in range(4) for i in range(2)]
        if k == 9:
            o[7] += "".join(f"\n v_add_u32 v{r}, 40960, v{r}" for r in wm + wx)
        return o
    for k in range(NW - 1): a.e("\n".join(wrd(k)))
    if "steps" not in EX: stamp(a, 7)
    poll(a, SRD_FL, vfl, t0, slp=int(os.environ.get("GSL", "2")))
    if "steps" not in EX: stamp(a, 8)
    for k in range(20):
        P, j = divmod(k, 5)
        if j in (0, 2): a.e(f"s_add_u32 s{sT}, s{sU}, {10240*P + 5120*(j//2)}")
        if j < 4: a.e(f"buffer_load_dwordx4 {v(O[k],4)}, v{vo}, {srd(SRD_B)}, s{sT} offen offset:{2048*(j&1)} sc1")
        else: a.e(f"s_add_u32 s{sT}, s{sU}, {10240*P}\n buffer_load_dwordx4 {v(O[k],4)}, v{vx}, {srd(SRD_B)}, s{sT} offen sc1")
    a.e("s_waitcnt lgkmcnt(0)")
    for k in range(20):
        a.e(f"s_waitcnt vmcnt({19-k}) lgkmcnt({min(15, 8*(min(19, k+NW-2)-k))})")
        F = wrd(k + NW - 1) if k + NW - 1 < 20 else []
        for nt in range(4):
            a.e(f"{MF} {v(ACC[nt],4)}, {v(WF[k%NW][nt],4)}, {v(O[k],4)}, {'0' if k == 0 else v(ACC[nt],4)}")
            a.e("\n".join(F[2*nt:2*nt+2]))
    if "steps" not in EX: stamp(a, 9)
    a.e("s_nop 4")
    for nt in range(4):
        c = ACC[nt]
        a.e(f"v_cvt_pk_bf16_f32 v{D+2*nt}, v{c}, v{c+1}\n v_cvt_pk_bf16_f32 v{D+2*nt+1}, v{c+2}, v{c+3}")
    a.e("s_nop 1")
    for nt in (0, 2):
        a.e(f"v_permlane16_swap_b32 v{D+2*nt}, v{D+2*nt+2}\n v_permlane16_swap_b32 v{D+2*nt+1}, v{D+2*nt+3}")
    for nt in (0, 2):
        a.e(f"buffer_store_dwordx4 {v(D+2*nt,4)}, v{vst}, {srd(SRD_D)}, s{sSO} offen offset:{32*nt} {OSTB}")
    return ra.hi

def build(path):
    hdr = open("cdna_kernels/%s.s.ref" % NAME).read().split("; Override")[0]
    a = Asm()
    a.raw('.amdgcn_target "amdgcn-amd-amdhsa--gfx950"\n.text')
    a.raw(f".globl {KN}\n.p2align 8\n.type {KN},@function"); a.lab(KN)
    a.e(f"""
    s_and_b32 s3, s2, {os.environ.get("CPM", "0xf0")}
    s_cmp_lg_u32 s3, 0x80
    s_cbranch_scc1 L_NOPF
    s_getpc_b64 s[4:5]
    v_lshlrev_b32 v2, 7, v0
    v_min_u32 v2, L_END-{KN}-128, v2
    global_load_dword v252, v2, s[4:5]
    """)
    a.lab("L_NOPF")
    a.e(f"s_cmp_ge_u32 s2, 256\n s_cbranch_scc1 L_END")
    stamp_init(a); stamp(a, 0)
    a.e(f"""
    s_load_dwordx16 s[8:23], s[0:1], 0
    s_load_dwordx8 s[24:31], s[0:1], 64
    v_lshrrev_b32 v2, 6, v0
    v_and_b32 v{L}, 63, v0
    v_readfirstlane_b32 s{S_WAVE}, v2
    s_and_b32 s{S_XI}, s2, 7
    s_lshr_b32 s{S_J}, s2, 3
    s_lshr_b32 s6, s{S_XI}, 1
    s_lshl_b32 s6, s6, 2
    s_and_b32 s7, s{S_J}, 3
    s_add_u32 s{S_RT}, s6, s7
    s_and_b32 s4, s{S_XI}, 1
    s_mul_i32 s{S_GC}, s4, 5
    s_cmp_ge_u32 s{S_J}, 16
    s_cbranch_scc1 L_A
    s_lshr_b32 s6, s{S_J}, 2
    s_add_u32 s{S_GC}, s{S_GC}, s6
    s_lshl_b32 s4, s4, 2
    s_add_u32 s{S_G}, s4, s6
    s_cmp_lt_u32 s{S_WAVE}, 4
    s_cbranch_scc1 L_BC
    """)
    b_loader(a)
    a.lab("L_A")
    a.e(f"""
    s_add_u32 s{S_GC}, s{S_GC}, 4
    s_mul_i32 s{S_CB}, s{S_XI}, 80
    s_sub_u32 s6, s{S_J}, 24
    s_lshl_b32 s6, s6, 3
    s_lshl_b32 s7, s7, 2
    s_add_u32 s7, s7, 64
    s_cmp_ge_u32 s{S_J}, 24
    s_cselect_b32 s{S_P2}, 8, 4
    s_cselect_b32 s6, s6, s7
    s_add_u32 s{S_CB}, s{S_CB}, s6
    s_cmp_ge_u32 s{S_J}, 24
    s_cbranch_scc1 L_A1
    """)
    prefetcher(a)
    a.e(f"s_cmp_ge_u32 s{S_J}, 20\n s_cbranch_scc1 L_CONV")
    mk_srd(a, SRD_B, P_WS, T_BYTES, off=WS_PQ)
    a.e(f"s_cmp_lt_u32 s{S_WAVE}, 4\n s_cbranch_scc1 L_G2\n s_waitcnt vmcnt(0)\n s_call_b64 s[72:73], L_WO\n s_branch L_G2")
    a.lab("L_A1")
    h3 = a1(a)
    a.lab("L_CONV")
    h5 = conv(a)
    a.lab("L_BC")
    h1 = b_compute(a)
    a.lab("L_WO")
    wo_dma(a)
    a.e("s_setpc_b64 s[72:73]")
    a.lab("L_G2")
    h4 = g2(a)
    a.lab("L_FIN")
    stamp_flush(a, 0)
    a.lab("L_END")
    a.e("s_endpgm")
    print("vgprs", h1, h3, h4, h5, file=sys.stderr)
    desc = f""".section .rodata,"a"
.p2align 6
.amdhsa_kernel {KN}
  .amdhsa_next_free_vgpr 256
  .amdhsa_next_free_sgpr 102
  .amdhsa_accum_offset 256
  .amdhsa_group_segment_fixed_size 0
  .amdhsa_kernarg_size 96
  .amdhsa_user_sgpr_count 2
  .amdhsa_user_sgpr_kernarg_segment_ptr 1
  .amdhsa_system_sgpr_workgroup_id_x 1
.end_amdhsa_kernel
"""
    open(path, "w").write(hdr + f"; @launch grid=(256,1,1) block=(512,1,1) lds={LDS_BYTES}\n" + a.text() + desc)
if __name__ == "__main__":
    build(sys.argv[1])
```

```python
import sys
from asmlib import *
NAME = "concat_heads__ssm_conv_h3__linear_attn_block__prompt"
KN = NAME + "_kernel"
EX = set(os.environ.get("EX", "").split(","))
ROTR = int(os.environ.get("ROTR", "0"), 16); ROTC = int(os.environ.get("ROTC", "0"), 16)
OST = os.environ.get("OSTA", "")
OSTB = os.environ.get("OSTB", "nt")

T_BYTES = 640 * 4096
WS_UT, WS_PQ = 0, T_BYTES
WS_KV = 2 * T_BYTES
GB = 8960
WS_FL = WS_KV + 8 * GB + 2048
assert WS_FL % 128 == 0
WS_END = WS_FL + 1024 * 128
S_WG, S_WAVE = 2, 3
P_Q, P_K, P_V, P_SH, P_H, P_D, P_X, P_W, P_WO, P_OUT, P_DBG, P_WS = 8, 10, 12, 14, 16, 18, 20, 22, 24, 26, 28, 30
SRD_A, SRD_B, SRD_C, SRD_D, SRD_FL = 32, 36, 40, 44, 48
S_RT, S_G, S_GC, S_CB, S_P2, S_ASLOT, S_XI, S_J = 52, 53, 54, 55, 56, 57, 58, 59
L = 1
NB = 2048 * 1280

XST, WBASE, WST, NST = 16384, 49152, 20480, 3
HI = WBASE + NST * WST
W2B = 2688
QBASE, QST = HI, 4 * W2B
IMG, IMGP = QBASE + NST * QST, 9216
HB, HP, H_O = 0, 8320, 4160
UB, UP = 8 * HP, 4672
A_KB, A_VB = UB + 5120, UB + 5120 + 40960
WOB = 2 * XST
KVI, RED = WOB + 81920, 0
ND = int(os.environ.get("ND", "2"))
xsl = lambda st: (st + 1) % NST
qsl = lambda st: (st + 2) % NST
assert KVI + 3520 <= QBASE + QST and ND <= 2
TB, TP = UB + 8 * UP, 2112
LDS_BYTES = max(A_VB + 40960, IMG + 2 * IMGP)
assert UB + 8 * UP <= HI and RED + 32768 <= LDS_BYTES <= 163840

def mk_srd(a, srd, ptr, nbytes, off=0, off_sreg=None):
    if off_sreg is not None:
        a.e(f"s_add_u32 s{srd}, s{ptr}, s{off_sreg}\n s_addc_u32 s{srd+1}, s{ptr+1}, 0")
    elif off:
        a.e(f"s_add_u32 s{srd}, s{ptr}, {off}\n s_addc_u32 s{srd+1}, s{ptr+1}, 0")
    else:
        a.e(f"s_mov_b32 s{srd}, s{ptr}\n s_mov_b32 s{srd+1}, s{ptr+1}")
    a.e(f"s_mov_b32 s{srd+2}, {nbytes}\n s_mov_b32 s{srd+3}, 0x20000")
def srd(x): return f"s[{x}:{x+3}]"
def mk_fl(a): mk_srd(a, SRD_FL, P_WS, 1024 * 128, off=WS_FL)

SPIN_MAX = 400000 if "noat" not in EX else 2
def poll(a, srdn, vo, t, scnt=74, slp=1):
    lp, dn = a.newlab("poll"), a.newlab("polld")
    a.e(f"s_mov_b32 s{scnt}, {SPIN_MAX}")
    a.lab(lp)
    a.e(f"""
    buffer_load_dword v{t}, v{vo}, {srd(srdn)}, 0 offen sc1
    s_waitcnt vmcnt(0)
    v_cmp_ne_u32 vcc, 1, v{t}
    s_sub_u32 s{scnt}, s{scnt}, 1
    s_cbranch_scc1 {dn}
    s_cmp_eq_u64 vcc, 0
    s_cbranch_scc1 {dn}
    s_sleep {slp}
    s_branch {lp}
    """)
    a.lab(dn)
def poll_z(a, vz, vt):
    mk_srd(a, SRD_D, P_DBG, 256)
    a.e(f"v_and_b32 v{vz}, 7, v{L}\n v_lshlrev_b32 v{vz}, 2, v{vz}")
    poll(a, SRD_D, vz, vt)
def set_flag(a, sslot, v0_, v1_, wave=0):
    sk = a.newlab("nofl")
    if wave is not None: a.e(f"s_cmp_lg_u32 s{S_WAVE}, {wave}\n s_cbranch_scc1 {sk}")
    a.e(f"""
    s_lshl_b32 s74, s{sslot}, 7
    v_mov_b32 v{v0_}, 0
    v_mov_b32 v{v1_}, 1
    s_mov_b64 exec, 1
    buffer_store_dword v{v1_}, v{v0_}, {srd(SRD_FL)}, s74 offen sc1
    s_mov_b64 exec, -1
    """)
    a.lab(sk)

def h_load(a, H, vl16, srdn, soff):
    for j in range(4):
        a.e(f"buffer_load_dwordx4 {v(H+4*j,4)}, v{vl16}, {srd(srdn)}, s{soff} offen offset:{1024*j}")
def h_stage(a, H, G, sslot, vl16, va, st):
    a.e(f"s_mul_i32 s{st}, s{sslot}, {HP}\n v_add_u32 v{va}, s{st}, v{vl16}")
    a.e(f"v_readfirstlane_b32 s{st}, v{H}")
    for j in range(4):
        a.e(f"ds_write_b128 v{va}, {v(H+4*j,4)} offset:{HB+32+1024*j}")
    for j in range(4):
        a.e(f"v_mov_b32_dpp v{G+4*j+3}, v{H+4*((j+1)&3)} wave_rol:1 row_mask:0xf bank_mask:0xf")
    for j in range(4):
        a.e(f"v_mov_b32_dpp v{G+4*j+3}, v{H+4*j} wave_shl:1 row_mask:0xf bank_mask:0xf")
    Z = G + 16
    for i in range(4): a.e(f"v_mov_b32 v{Z+i}, 0")
    a.e(f"s_lshl_b32 s{st}, s{st}, 16\n s_mov_b64 exec, 3\n ds_write_b128 v{va}, {v(Z,4)} offset:{HB}\n s_mov_b64 exec, -1")
    for j in range(4):
        h, g_ = H + 4 * j, G + 4 * j
        for i in range(3): a.e(f"v_alignbit_b32 v{g_+i}, v{h+i+1}, v{h+i}, 16")
        a.e(f"v_alignbit_b32 v{g_+3}, v{g_+3}, v{h+3}, 16")
        a.e(f"ds_write_b128 v{va}, {v(g_,4)} offset:{HB+H_O+32+1024*j}")
    a.e(f"v_writelane_b32 v{Z+3}, s{st}, 1\n s_mov_b64 exec, 3\n ds_write_b128 v{va}, {v(Z,4)} offset:{HB+H_O}\n s_mov_b64 exec, -1")
def conv_sload(a):
    a.e(f"""
    s_add_u32 s6, s{S_CB}, s{S_WAVE}
    s_min_u32 s6, s6, 639
    s_lshl_b32 s6, s6, 1
    s_and_b32 s6, s6, 0xfffffffc
    s_load_dword s5, s[{P_D}:{P_D+1}], s6
    """)

def b_loader(a):
    ra = RA(2)
    t0, t1, t2, t3 = [ra.a() for _ in range(4)]
    vx = [ra.a() for _ in range(4)]
    vw = [ra.a() for _ in range(5)]
    vq = [ra.a() for _ in range(3)]
    l16, la = ra.a(), ra.a()
    LD = ra.a(12, 4); Z = ra.a(2, 2)
    sLW, sSX, sSW, sM0X, sM0W, sM0Q, sSQ, sT, sK = 60, 61, 62, 63, 64, 65, 66, 67, 68
    a.c("B loader wave")
    a.e(f"""
    s_setprio 3
    v_lshrrev_b32 v{t0}, 3, v{L}
    v_lshrrev_b32 v{t1}, 4, v{L}
    v_and_b32 v{t2}, 7, v{L}
    v_mul_u32_u24 v{t0}, 1280, v{t0}
    v_xor_b32 v{t1}, v{t1}, v{t2}
    s_sub_u32 s{sLW}, s{S_WAVE}, 4
    s_lshl_b32 s{sT}, s{S_RT}, 2
    s_add_u32 s{sT}, s{sT}, s{sLW}
    s_mul_i32 s{sSX}, s{sT}, {32*1280}
    s_lshl_b32 s{sM0X}, s{sLW}, 12
    v_lshl_add_u32 v{vx[0]}, v{t1}, 4, v{t0}
    v_xor_b32 v{vx[1]}, 64, v{vx[0]}
    v_add_u32 v{vx[2]}, {2*(8*1280-1024)}, v{vx[0]}
    v_add_u32 v{vx[3]}, {3*(8*1280-1024)}, v{vx[1]}
    v_add_u32 v{vx[1]}, {1*(8*1280-1024)}, v{vx[1]}
    s_movk_i32 s4, 1200
    s_movk_i32 s5, -80
    s_movk_i32 s69, 3840
    """)
    for x in range(320): assert (x * 3277) >> 16 == x // 20
    for x in range(20): assert (x * 52) >> 8 == x // 5
    def woff(j):
        sub = 1024 * j if j < 4 else 0
        o = []; src = L
        if j: o.append(f"v_add_u32 v{t0}, {64*j}, v{L}"); src = t0
        o += [f"v_mul_u32_u24 v{t1}, 3277, v{src}", f"v_lshrrev_b32 v{t1}, 16, v{t1}",
              f"v_mul_u32_u24 v{t2}, 20, v{t1}", f"v_sub_u32 v{t0}, v{src}, v{t2}"]
        if j == 2: o += [f"v_lshrrev_b32 v{t2}, 2, v{t1}", f"v_and_b32 v{t2}, 2, v{t2}", f"v_xor_b32 v{t0}, v{t0}, v{t2}"]
        if j > 2: o += [f"v_xor_b32 v{t0}, 2, v{t0}"]
        o += [f"v_mul_u32_u24 v{t2}, 52, v{t0}", f"v_lshlrev_b32 v{t0}, 4, v{t0}",
              f"v_mad_u32_u24 v{t0}, v{t1}, s69, v{t0}", f"v_bfe_u32 v{t3}, v{t2}, 8, 1",
              f"v_lshrrev_b32 v{t2}, 9, v{t2}", f"v_mad_u32_u24 v{t0}, v{t3}, s4, v{t0}"]
        if sub: o += [f"v_mad_i32_i24 v{t0}, v{t2}, s5, v{t0}", f"v_subrev_u32 v{vw[j]}, {sub}, v{t0}"]
        else: o += [f"v_mad_i32_i24 v{vw[j]}, v{t2}, s5, v{t0}"]
        a.e("\n".join(o))
    def issue_x(st):
        a.e(f"s_add_u32 m0, s{sM0X}, {xsl(st) * XST}\n s_nop 0")
        for j in range(4):
            a.e(f"buffer_load_dwordx4 v{vx[j]}, {srd(SRD_A)}, s{sSX} offen offset:{1024*j} lds")
    def adv():
        a.e(f"s_add_u32 s{sSX}, s{sSX}, 128\n s_add_u32 s{sSW}, s{sSW}, {64*3840}")
    for x in range(80): assert (x * 205) >> 11 == x // 10
    def qoff(j):
        a.e(f"""
        v_add_u32 v{t0}, {64*j}, v{L}
        v_cmp_le_u32 vcc, 88, v{t0}
        v_subrev_u32 v{t1}, 88, v{t0}
        v_min_u32 v{t0}, 79, v{t0}
        v_min_u32 v{t1}, 79, v{t1}
        v_cndmask_b32 v{t0}, v{t0}, v{t1}, vcc
        v_cndmask_b32 v{t2}, 0, 8, vcc
        v_mul_u32_u24 v{t1}, 205, v{t0}
        v_lshrrev_b32 v{t1}, 11, v{t1}
        v_add_u32 v{t2}, v{t2}, v{t1}
        v_mul_u32_u24 v{t1}, 10, v{t1}
        v_sub_u32 v{t0}, v{t0}, v{t1}
        v_lshlrev_b32 v{t0}, 4, v{t0}
        v_mad_u32_u24 v{t0}, v{t2}, s69, v{t0}
        v_subrev_u32 v{vq[j]}, {1024*j}, v{t0}
        """)
    def issue_kv(st, first=99):
        a.e(f"s_add_u32 m0, s{sM0W}, {(st % NST) * WST}\n s_nop 0")
        for j in range(5):
            if j >= first: woff(j)
            if j == 4: a.e(f"s_add_u32 m0, s{sM0W}, {(st % NST) * WST + 4096}\n s_nop 0")
            a.e(f"buffer_load_dwordx4 v{vw[j]}, {srd(SRD_B)}, s{sSW} offen offset:{1024*(j&3)} lds")
    def issue_q(st, first=99):
        a.e(f"s_add_u32 m0, s{sM0Q}, {qsl(st) * QST}\n s_sub_u32 s{sSQ}, s{sSW}, 1280")
        for j in range(3):
            if j >= first: qoff(j)
            if j == 2: a.e("s_mov_b32 exec_hi, 0xff")
            a.e(f"buffer_load_dwordx4 v{vq[j]}, {srd(SRD_B)}, s{sSQ} offen offset:{1024*j} lds")
        a.e("s_mov_b32 exec_hi, -1")
    def issue(st):
        issue_x(st); issue_kv(st); issue_q(st); adv()
    a.e(f"""
    s_mul_i32 s{sSW}, s{S_G}, 160
    s_add_u32 s{sSW}, s{sSW}, 1280
    s_mul_i32 s{sT}, s{sLW}, {16*3840}
    s_add_u32 s{sSW}, s{sSW}, s{sT}
    s_mul_i32 s{sM0W}, s{sLW}, 5120
    s_add_u32 s{sM0W}, s{sM0W}, {WBASE}
    s_mul_i32 s{sM0Q}, s{sLW}, {W2B}
    s_add_u32 s{sM0Q}, s{sM0Q}, {QBASE}
    """)
    def srds():
        a.e("s_waitcnt lgkmcnt(0)")
        mk_srd(a, SRD_A, P_X, NB); mk_srd(a, SRD_B, P_W, 640 * 3840)
    lb, lj = a.newlab("ordB"), a.newlab("ordJ")
    if "noord" not in EX:
        a.e(f"s_add_u32 s{sT}, s{S_RT}, s{S_G}\n s_and_b32 s{sT}, s{sT}, 1\n s_cbranch_scc1 {lb}")
    qoff(0); srds(); issue_x(0); issue_q(0, 1); issue_kv(0, 0)
    a.e(f"s_branch {lj}")
    a.lab(lb)
    woff(0); srds(); issue_kv(0, 1); issue_x(0); issue_q(0, 0)
    a.lab(lj)
    a.e(f"s_add_u32 s{sSX}, s{sSX}, 128\n s_add_u32 s{sSW}, s{sSW}, {64*3840}")
    PCS = [int(c) for c in os.environ.get("PCS", "133443333")]
    assert sum(PCS) == 27
    cnt = [4, 5, 3]
    pos = [3]
    def pieces(n, lim):
        for _ in range(n):
            st, k = divmod(pos[0], 3)
            assert st <= lim
            if k == 0: issue_x(st); a.e(f"s_add_u32 s{sSX}, s{sSX}, 128")
            if k == 1: issue_kv(st)
            if k == 2: issue_q(st); a.e(f"s_add_u32 s{sSW}, s{sSW}, {64*3840}")
            pos[0] += 1
    pieces(PCS[0], 2)
    stamp(a, 1)
    for nb in range(10):
        assert pos[0] >= 3 * (nb + 1)
        young = sum(cnt[i % 3] for i in range(3 * (nb + 1), pos[0]))
        a.e(f"s_waitcnt vmcnt({young})\n s_barrier")
        if nb == 5:
            mk_srd(a, SRD_D, P_DBG, 256)
            a.e(f"v_and_b32 v{l16}, 7, v{L}\n v_lshlrev_b32 v{l16}, 2, v{l16}")
            a.e(f"buffer_load_dword v{la}, v{l16}, {srd(SRD_D)}, 0 offen sc1")
            assert pos[0] == 21
        if nb + 1 < len(PCS): pieces(PCS[nb + 1], nb + 2)
        if nb == 4: mk_fl(a)
        if nb == 8:
            zok = a.newlab("zok")
            a.e(f"s_setprio 0\n v_cmp_ne_u32 vcc, 1, v{la}\n s_nop 1\n s_cmp_eq_u64 vcc, 0\n s_cbranch_scc1 {zok}")
            poll_z(a, t1, t2)
            a.lab(zok)
    stamp(a, 2)
    a.e("s_barrier")
    a.e("s_call_b64 s[72:73], L_WO")
    stamp(a, 3)
    a.e("s_barrier\n s_waitcnt vmcnt(0)\n s_barrier\n s_branch L_G2")

def phi4(regs, tmps, sLOG, sEPS):
    o = []
    if "nopk" not in EX:
        r, t = regs[0], tmps[0]
        o += [f"v_pk_mul_f32 {v(t+i,2)}, {v(r+i,2)}, s[66:67]" for i in (0, 2)]
        o += [f"v_exp_f32_e64 v{t+i}, v{t+i} clamp" for i in range(4)]
        o += [f"v_max_f32 v{r+i}, s{sEPS}, v{r+i}" for i in range(4)]
        o += [f"v_pk_add_f32 {v(r+i,2)}, {v(r+i,2)}, {v(t+i,2)}" for i in (0, 2)]
        return o
    for r, t in zip(regs, tmps): o.append(f"v_mul_f32 v{t}, s{sLOG}, v{r}")
    for r, t in zip(regs, tmps): o.append(f"v_exp_f32_e64 v{t}, v{t} clamp")
    for r, t in zip(regs, tmps): o.append(f"v_max_f32 v{r}, s{sEPS}, v{r}")
    for r, t in zip(regs, tmps): o.append(f"v_add_f32 v{r}, v{r}, v{t}")
    return o

def b_compute(a):
    if "steps" in EX:
        def stamp2(a, i): pass
    else:
        stamp2 = stamp
    ra = RA(2)
    lr, g, t0, t1, t2 = [ra.a() for _ in range(5)]
    xa = [ra.a(), ra.a()]
    wa = [ra.a() for _ in range(5)]
    ad = [ra.a() for _ in range(6)]
    wb = [ra.a(), ra.a()]; xb = [ra.a(), ra.a()]
    ka, kx = ra.a(), [ra.a(), ra.a()]
    at = [ra.a() for _ in range(4)]
    l16, la = ra.a(), ra.a()
    ix = ra.a(4, 4)
    XF = [[ra.a(4, 4) for _ in range(4)] for _ in range(2)]
    WF = [[ra.a(4, 4) for _ in range(5)] for _ in range(2)]
    QF = [ra.a(4, 4) for _ in range(5)]
    ACC = [[ra.a(4, 4) for _ in range(5)] for _ in range(4)]
    QA = [[ra.a(4, 4) for _ in range(5)] for _ in range(2)]
    sRH, sCH, sT, sLOG, sEPS, sSO = 60, 61, 62, 63, 64, 65
    MF = "v_mfma_f32_16x16x32_bf16"; M32 = "v_mfma_f32_32x32x16_bf16"
    a.c("B compute wave")
    a.e(f"""
    s_lshr_b32 s{sRH}, s{S_WAVE}, 1
    s_and_b32 s{sCH}, s{S_WAVE}, 1
    s_mov_b32 s{sLOG}, {f32(1.4426950408889634)}
    s_mov_b32 s66, s{sLOG}
    s_mov_b32 s67, s{sLOG}
    s_mov_b32 s{sEPS}, {f32(1e-6)}
    v_and_b32 v{lr}, 15, v{L}
    v_lshrrev_b32 v{g}, 4, v{L}
    s_lshl_b32 s{sT}, s{S_WAVE}, 12
    v_lshrrev_b32 v{t0}, 1, v{lr}
    v_xor_b32 v{t0}, v{t0}, v{g}
    v_lshlrev_b32 v{t0}, 4, v{t0}
    v_lshl_add_u32 v{t0}, v{lr}, 7, v{t0}
    v_add_u32 v{xa[0]}, s{sT}, v{t0}
    v_xor_b32 v{xa[1]}, 64, v{xa[0]}
    v_xor_b32 v{xb[0]}, 0x1000, v{xa[0]}
    v_xor_b32 v{xb[1]}, 0x1000, v{xa[1]}
    v_lshrrev_b32 v{t0}, 2, v{lr}
    v_lshl_add_u32 v{t0}, v{g}, 3, v{t0}
    v_mul_u32_u24 v{t0}, 320, v{t0}
    v_add_u32 v{t0}, {WBASE}, v{t0}
    v_and_b32 v{t1}, 1, v{g}
    v_lshlrev_b32 v{t1}, 5, v{t1}
    s_mul_i32 s{sT}, s{sCH}, 160
    v_and_b32 v{t2}, 3, v{lr}
    """)
    for t in range(5):
        w = wa[t]
        if t < 4:
            a.e(f"v_lshl_add_u32 v{w}, v{t2}, 3, s{sT}\n v_add_u32 v{w}, {40*t}, v{w}")
        else:
            a.e(f"v_mul_u32_u24 v{w}, 40, v{t2}\n v_add_u32 v{w}, s{sT}, v{w}\n v_add_u32 v{w}, 32, v{w}")
        a.e(f"v_xor_b32 v{w}, v{w}, v{t1}\n v_add_u32 v{w}, v{w}, v{t0}")
    a.e(f"""
    v_lshrrev_b32 v{t0}, 1, v{g}
    v_mul_u32_u24 v{t0}, {W2B}, v{t0}
    v_and_b32 v{t1}, 1, v{g}
    v_mul_u32_u24 v{t1}, 1408, v{t1}
    v_add3_u32 v{t0}, v{t0}, v{t1}, 32
    v_lshrrev_b32 v{t1}, 2, v{lr}
    v_mul_u32_u24 v{t1}, 160, v{t1}
    v_add_u32 v{t0}, v{t0}, v{t1}
    v_add_u32 v{t0}, {QBASE-32}, v{t0}
    v_lshl_add_u32 v{wb[0]}, v{t2}, 3, v{t0}
    v_mul_u32_u24 v{t1}, 40, v{t2}
    v_add3_u32 v{wb[1]}, v{t0}, v{t1}, 32
    """)
    a.e(f"v_mov_b32 v{t0}, s{sEPS}\n v_cmp_gt_u32 vcc, 8, v{lr}")
    a.e(f"""
    s_mul_i32 s{sT}, s{sRH}, {IMGP}
    s_mul_i32 s{sSO}, s{sCH}, {GB//2}
    s_add_u32 s{sT}, s{sT}, s{sSO}
    s_add_u32 s{sT}, s{sT}, {IMG}
    """)
    for rt in range(4):
        for i in range(4):
            a.e(f"v_cndmask_b32 v{ACC[rt][4]+i}, 0, v{t0}, vcc")
        for i in range(8): a.e(f"v_mov_b32 v{ACC[rt][0]+i}, s{sEPS}")
    for i in range(40): a.e(f"v_mov_b32 v{QA[0][0]+i}, s{sEPS}")
    z4 = XF[0][0]
    a.e(f"v_mov_b32 v{z4}, 1.0")
    for i in range(1, 8): a.e(f"v_mov_b32 v{z4+i}, 0")
    a.e(f"""
    v_min_u32 v{t0}, 143, v0
    v_lshlrev_b32 v{t0}, 6, v{t0}
    v_add_u32 v{t0}, {IMG+48}, v{t0}
    ds_write_b128 v{t0}, {v(z4,4)}
    ds_write_b128 v{t0}, {v(z4+4,4)} offset:{IMGP}
    """)
    for x in range(128): assert (x * 171) >> 9 == x // 3
    a.e(f"""
    v_cmp_eq_u32 vcc, 0, v{lr}
    v_add_u32 v{t0}, 8, v{lr}
    v_add_u32 v{t1}, 4, v{lr}
    v_cndmask_b32 v{t0}, v{t0}, 20, vcc
    v_cndmask_b32 v{t1}, v{t1}, 20, vcc
    """)
    for i, row in enumerate((lr, t0, t1)):
        for k in range(2):
            d = ad[2 * i + k]
            a.e(f"v_mad_u32_u24 v{d}, v{row}, 5, {'v%d' % g if k == 0 else '4'}")
            a.e(f"v_mul_u32_u24 v{t2}, 171, v{d}\n v_lshrrev_b32 v{t2}, 9, v{t2}\n v_add_u32 v{d}, v{d}, v{t2}\n v_lshl_add_u32 v{d}, v{d}, 4, s{sT}")
    a.e(f"""
    v_lshlrev_b32 v{at[0]}, 2, v0
    v_add_u32 v{at[1]}, 4096, v{at[0]}
    v_add_u32 v{at[2]}, 8192, v{at[0]}
    v_add_u32 v{at[3]}, {IMG}, v{at[0]}
    v_lshlrev_b32 v{l16}, 4, v{L}
    v_and_b32 v{t0}, 31, v{L}
    v_lshlrev_b32 v{t1}, 2, v{lr}
    s_mov_b32 s{sT}, 0x54325410
    v_lshrrev_b32 v{t1}, v{t1}, s{sT}
    v_and_b32 v{t1}, 15, v{t1}
    v_add_u32 v{t1}, 16, v{t1}
    v_cmp_lt_u32 vcc, 23, v{t0}
    s_mov_b32 s{sT}, {KVI}
    s_nop 0
    v_cndmask_b32 v{t1}, v{t1}, 21, vcc
    v_cmp_gt_u32 vcc, 16, v{t0}
    v_lshrrev_b32 v{t2}, 5, v{L}
    s_nop 0
    v_cndmask_b32 v{t1}, v{t1}, v{t0}, vcc
    v_mad_u32_u24 v{t1}, v{t1}, 40, s{sT}
    v_lshl_add_u32 v{ka}, v{t2}, 4, v{t1}
    v_add_u32 v{t1}, 32, v{t1}
    v_cmp_eq_u32 vcc, 0, v{t2}
    v_mov_b32 v{t0}, {KVI+840}
    s_nop 0
    v_cndmask_b32 v{kx[0]}, v{t0}, v{t1}, vcc
    v_cndmask_b32 v{kx[1]}, v{t1}, v{t0}, vcc
    s_mul_i32 s{sT}, s{S_WAVE}, 880
    s_add_u32 s{sT}, s{sT}, {KVI}
    v_and_b32 v{t0}, 3, v{L}
    v_lshl_add_u32 v{t0}, v{t0}, 3, s{sT}
    v_lshrrev_b32 v{t1}, 2, v{L}
    v_mad_u32_u24 v{la}, v{t1}, 24, v{t0}
    s_mul_i32 s{sT}, s{S_G}, {GB}
    s_add_u32 s{sT}, s{sT}, {WS_KV}
    s_waitcnt lgkmcnt(0)
    """)
    mk_srd(a, SRD_C, P_WS, GB, off_sreg=sT)
    a.e(f"s_mul_i32 s{sSO}, s{S_WAVE}, {GB//4}\n s_add_u32 s{sT}, s{sT}, s{sSO}")
    mk_srd(a, SRD_A, P_WS, GB // 4, off_sreg=sT)
    mk_srd(a, SRD_B, P_WS, T_BYTES, off=WS_PQ)
    mk_fl(a)
    def reads(st, ks):
        sl = st % NST
        xs = [f"ds_read_b128 {v(XF[ks][rt],4)}, v{xa[ks] if rt < 2 else xb[ks]} offset:{xsl(st)*XST + (rt&1)*2048}" for rt in range(4)]
        ws = [f"ds_read_b64_tr_b16 {v(WF[ks][t]+2*h,2)}, v{wa[t]} offset:{sl*WST + ks*10240 + h*1280}" for t in range(5) for h in range(2)]
        qs = [f"ds_read_b64_tr_b16 {v(QF[t]+2*h,2)}, v{wb[t>>2]} offset:{qsl(st)*QST + ks*2*W2B + h*640 + 40*(t&3)}" for t in range(5) for h in range(2)]
        if st >= 10 - ND: qs = []
        return xs + ws[:6] + qs + ws[6:]
    def mfq(ks):
        return [f"{MF} {v(QA[rt][t],4)}, {v(QF[t],4)}, {v(XF[ks][rt],4)}, {v(QA[rt][t],4)}" for t in range(5) for rt in range(2)]
    def mfkv(ks, first=False):
        o = []
        for rt in range(4):
            for t in range(5):
                d = ACC[rt][t]
                o.append(f"{MF} {v(d,4)}, {v(XF[ks][rt],4)}, {v(WF[ks][t],4)}, {'0' if (first and t in (2, 3)) else v(d,4)}")
        return o
    def mfmas(st, ks): return (mfq(ks) if st < 10 - ND else []) + mfkv(ks, st == 0 and ks == 0)
    def spread(M, F):
        out = []; n = len(M); fi = 0
        for i, m in enumerate(M):
            out.append(m)
            tgt = (len(F) * (i + 1) + n - 1) // n
            out += F[fi:tgt]; fi = tgt
        return out
    for st in range(10):
        a.c(f"step {st}")
        a.e("s_barrier")
        if (st == 0 or "steps" in EX) and "steps2" not in EX: stamp(a, 1 + st)
        if st == 0:
            a.e("\n".join(reads(0, 0)))
        else:
            a.e("\n".join(interleave2(mfmas(st - 1, 1), reads(st, 0), 1)))
        a.e("s_waitcnt lgkmcnt(0)")
        a.e("\n".join(interleave2(mfmas(st, 0), reads(st, 1), 1)))
        a.e("s_waitcnt lgkmcnt(0)")
    a.e("s_barrier")
    stamp2(a, 2)
    tm = [ix + i for i in range(4)]
    last = mfkv(1) + (mfq(1) if ND == 0 else [])
    names = ["T0", "T1", "T2", "T3", "T4A", "T4B"]
    k0 = [XF[0][i] for i in range(4)] + [WF[0][0], WF[0][1]]
    k1 = [WF[0][2], WF[0][3], WF[0][4], XF[1][0], XF[1][1], XF[1][2]]
    P = {n: [k0[i], k1[i]] for i, n in enumerate(names)}
    V = [f"v_cmp_gt_u32 vcc, 8, v{lr}", f"v_mov_b32 v{t0}, 0x3f803f80"]
    for rt in range(4):
        k, h = rt >> 1, rt & 1
        for t, n in ((2, "T2"), (3, "T3"), (4, "T4B")):
            r = ACC[rt][t]; d = P[n][k] + 2 * h
            V += [f"v_cvt_pk_bf16_f32 v{d}, v{r}, v{r+1}", f"v_cvt_pk_bf16_f32 v{d+1}, v{r+2}, v{r+3}"]
        d = P["T4B"][k] + 2 * h
        V += [f"v_cndmask_b32 v{d}, v{d}, v{t0}, vcc", f"v_cndmask_b32 v{d+1}, v{d+1}, v{t0}, vcc"]
        for t, n in ((0, "T0"), (1, "T1"), (4, "T4A")):
            r = [ACC[rt][t] + i for i in range(4)]; d = P[n][k] + 2 * h
            V += phi4(r, tm, sLOG, sEPS)
            V += [f"v_cvt_pk_bf16_f32 v{d}, v{r[0]}, v{r[1]}", f"v_cvt_pk_bf16_f32 v{d+1}, v{r[2]}, v{r[3]}"]
    prods = [("T0", "T2"), ("T0", "T4B"), ("T4A", "T2"), ("T1", "T3"), ("T1", "T4B"), ("T4A", "T3"), ("T4A", "T4B")]
    R = [ACC[0][0] + 4 * i for i in range(7)]
    kvm = lambda k: [f"{MF} {v(R[i],4)}, {v(P[x][k],4)}, {v(P[y][k],4)}, {'0' if k == 0 else v(R[i],4)}" for i, (x, y) in enumerate(prods)]
    half = 2 + (len(V) - 2) // 2
    a.e("\n".join(last[:10] + interleave2(last[10:], V[:half + 4], 2)))
    a.e("\n".join(interleave2(kvm(0), V[half + 4:], 8)))
    a.e("s_nop 1")
    a.e("\n".join(kvm(1)))
    a.e("s_nop 3")
    HBY = GB // 4
    def wr(i, addr, off, lo, hi):
        a.e(f"s_mov_b32 exec_lo, {lo:#x}\n s_mov_b32 exec_hi, {hi:#x}")
        a.e(f"ds_write_b128 v{addr}, {v(R[i],4)} offset:{off}")
    a.e(f"ds_write_b128 v{ad[0]}, {v(R[0],4)}")
    a.e(f"ds_write_b128 v{ad[0]}, {v(R[3],4)} offset:{HBY}")
    wr(1, ad[2], 0, 0x0f010f01, 0x0f010f01)
    wr(4, ad[4], HBY, 0xf001f001, 0xf001f001)
    wr(2, ad[1], 0, 0x0000ffff, 0)
    wr(5, ad[1], HBY, 0xffff0000, 0)
    wr(6, ad[3], 0, 0x00000f01, 0)
    wr(6, ad[5], HBY, 0xf0010000, 0)
    a.e("s_mov_b64 exec, -1\n s_waitcnt lgkmcnt(0)\n s_barrier")
    stamp2(a, 3)
    fr = ACC[0][0]
    for n in range(9):
        a.e(f"ds_read2st64_b32 {v(fr+2*n,2)}, v{at[3]} offset0:{4*n} offset1:{IMGP//256+4*n}")
    AT = []
    for n in range(9):
        AT += [f"v_add_f32 v{fr+2*n}, v{fr+2*n}, v{fr+2*n+1}",
               f"buffer_atomic_add_f32 v{fr+2*n}, v{at[n>>2]}, {srd(SRD_C)}, 0 offen offset:{1024*(n&3)}"]
    DB = [(XF[0][0], WF[0][0]), (XF[1][0], WF[1][0]), (XF[0][2], QF[0]), (XF[1][2], ACC[3][0])]
    def drd(u):
        if u >= 2 * ND: return []
        st, ks = 10 - ND + u // 2, u & 1; xr, wr_ = DB[u]
        return ([f"ds_read_b128 {v(xr+4*rt,4)}, v{xa[ks]} offset:{xsl(st)*XST + rt*2048}" for rt in range(2)] +
                [f"ds_read_b64_tr_b16 {v(wr_+4*t+2*h,2)}, v{wb[t>>2]} offset:{qsl(st)*QST + ks*2*W2B + h*640 + 40*(t&3)}" for t in range(5) for h in range(2)])
    def dmf(u):
        xr, wr_ = DB[u]
        return [f"{MF} {v(QA[rt][t],4)}, {v(wr_+4*t,4)}, {v(xr+4*rt,4)}, {v(QA[rt][t],4)}" for t in range(5) for rt in range(2)]
    a.e("s_waitcnt lgkmcnt(0)")
    a.e("\n".join(spread(AT, drd(0) + drd(1))))
    for u in range(0, 2 * ND, 2):
        a.e("s_waitcnt lgkmcnt(0)")
        M = dmf(u) + dmf(u + 1)
        a.e("\n".join(spread(M[:14], drd(u + 2) + drd(u + 3)) + M[14:]))
    EXT = XF[0][0]
    KF = [EXT + 4 * h for h in range(4)]
    KX = EXT + 16
    OB = [EXT + 28 + 4 * t for t in range(5)]
    OX = EXT + 48; rc = EXT + 52; LD = EXT + 56
    CT = [ACC[0][0] + 16 + 16 * h for h in range(4)]
    a.e(f"""
    s_lshl_b32 s{sT}, s{S_RT}, 2
    s_add_u32 s{sT}, s{sT}, s{S_WAVE}
    s_lshl_b32 s{sT}, s{sT}, 3
    s_add_u32 s{sT}, s{sT}, s{S_G}
    s_mul_i32 s{sSO}, s{sT}, 5120
    s_add_u32 s{sRH}, s{sSO}, 4096
    s_add_u32 s{sT}, s{sT}, 64
    s_mul_i32 s{sCH}, s{S_WAVE}, 880
    s_add_u32 s{sCH}, s{sCH}, {KVI}
    v_lshl_add_u32 v{t0}, v{L}, 3, s{sCH}
    """)
    for i in (2, 3, 8, 9): a.e(f"v_mov_b32 v{KX+i}, 0")
    a.e(f"s_mov_b64 exec, 31\n ds_write_b64 v{t0}, {v(KX+2,2)} offset:840\n s_mov_b64 exec, -1")
    def phiq(t):
        o = []; ob = OB[t]
        for h in range(2):
            r = [QA[h][t] + i for i in range(4)]
            o += phi4(r, tm, sLOG, sEPS)
            o += [f"v_cvt_pk_bf16_f32 v{ob+2*h}, v{r[0]}, v{r[1]}", f"v_cvt_pk_bf16_f32 v{ob+2*h+1}, v{r[2]}, v{r[3]}"]
        o += ["s_nop 1", f"v_permlane16_swap_b32 v{ob}, v{ob+2}", f"v_permlane16_swap_b32 v{ob+1}, v{ob+3}"]
        return o
    def omf(h):
        c = v(CT[h], 16)
        return [f"{M32} {c}, {v(KX+6*(h>>1)+2*(h&1),4)}, {v(OB[4],4)}, 0", "s_nop 0",
                f"{M32} {c}, {v(KF[h],4)}, {v(OB[h],4)}, {c}"]
    def norm(h):
        c = CT[h]; d = OB[h]
        o = [f"v_add_f32 v{rc}, s{sEPS}, v{c+10}", f"v_rcp_f32 v{rc}, v{rc}", "s_nop 0"]
        o += [f"v_mul_f32 v{c+i}, v{c+i}, v{rc}" for i in range(10)]
        o += [f"v_cvt_pk_bf16_f32 v{d+i}, v{c+2*i}, v{c+2*i+1}" for i in range(4)]
        o += [f"buffer_store_dwordx4 {v(d,4)}, v{l16}, {srd(SRD_B)}, s{sSO} offen offset:{1024*h} sc1"]
        o += [f"v_cvt_pk_bf16_f32 v{OX+h}, v{c+8}, v{c+9}"]
        return o
    def kvload():
        for n in range(3):
            a.e(f"buffer_load_dwordx4 {v(LD+4*n,4)}, v{l16}, {srd(SRD_A)}, 0 offen offset:{1024*n} sc1")
    KP = int(os.environ.get("KP", "6"))
    for i in range(5):
        if i == KP: kvload()
        a.e("\n".join(phiq(i)))
    stamp2(a, 4)
    lf, lv, ld = a.newlab("kvf"), a.newlab("kvv"), a.newlab("kvd")
    a.e(f"s_mov_b32 s69, {f32(16.0)}\n s_mov_b32 s70, 0x88888888\n s_mov_b32 s71, 0x88888888\n s_mov_b32 s74, {SPIN_MAX}")
    if KP < 5: a.e(f"s_branch {lv}")
    if KP == 6: a.e("s_waitcnt vmcnt(0)")
    a.lab(lf)
    kvload()
    a.lab(lv)
    a.e(f"""
    s_waitcnt vmcnt(0)
    v_min_f32 v{t0}, v{LD}, v{LD+4}
    v_cmp_neq_f32 s[4:5], s69, v{LD+8}
    v_cmp_neq_f32 vcc, s69, v{t0}
    s_sub_u32 s74, s74, 1
    s_cbranch_scc1 {ld}
    s_and_b32 s4, s4, 0x888
    s_and_b64 vcc, vcc, s[70:71]
    s_or_b32 vcc_lo, vcc_lo, s4
    s_cmp_eq_u64 vcc, 0
    s_cbranch_scc1 {ld}
    s_sleep {os.environ.get("KSL", "2")}
    s_branch {lf}
    """)
    a.lab(ld)
    for n in range(3):
        r = LD + 4 * n
        a.e(f"v_cvt_pk_bf16_f32 v{r}, v{r}, v{r+1}\n v_cvt_pk_bf16_f32 v{r+1}, v{r+2}, v{r+3}")
    a.e("s_mov_b32 exec_lo, 0x77777777\n s_mov_b32 exec_hi, 0x77777777")
    for n in range(3):
        if n == 2: a.e("s_mov_b64 exec, 0x777")
        a.e(f"ds_write_b64 v{la}, {v(LD+4*n,2)} offset:{384*n}")
    a.e("s_mov_b64 exec, -1\n s_waitcnt lgkmcnt(0)\n s_barrier")
    stamp2(a, 5)
    if STAMPS: a.e("s_waitcnt lgkmcnt(0)")
    for h in range(4):
        a.e(f"ds_read_b64 {v(KX+6*(h>>1)+4*(h&1),2)}, v{kx[h>>1]} offset:{880*h}")
        a.e(f"ds_read_b64 {v(KF[h],2)}, v{ka} offset:{880*h}\n ds_read_b64 {v(KF[h]+2,2)}, v{ka} offset:{880*h+8}")
    for h in range(3):
        a.e(f"s_waitcnt lgkmcnt({9-3*h})")
        a.e("\n".join(omf(h)))
    a.e("s_waitcnt lgkmcnt(0)\n s_nop 3")
    N0 = norm(0)
    a.e("\n".join(N0[:6] + omf(3)[:1] + N0[6:12] + omf(3)[2:] + N0[12:] + norm(1) + norm(2) + norm(3)))
    a.e(f"buffer_store_dwordx4 {v(OX,4)}, v{l16}, {srd(SRD_B)}, s{sRH} offen sc1")
    stamp2(a, 6)
    a.e("s_waitcnt vmcnt(0)")
    set_flag(a, sT, t0, t1, wave=None)
    a.e("s_branch L_G2")
    return ra.hi

PF0 = int(os.environ.get("PF0", "1")); AH = int(os.environ.get("AH", "0"))
def pf_lanes(a, vW, vX, t0, t1, sU, sC):
    for x in range(64): assert (x * 52) >> 8 == x // 5
    a.e(f"""
    v_min_u32 v{t0}, 59, v{L}
    v_mul_u32_u24 v{t1}, 52, v{t0}
    v_lshrrev_b32 v{t1}, 8, v{t1}
    v_mul_u32_u24 v{vX}, 5, v{t1}
    v_sub_u32 v{t0}, v{t0}, v{vX}
    v_lshlrev_b32 v{t0}, 7, v{t0}
    s_movk_i32 s{sU}, 1280
    v_mad_u32_u24 v{vW}, v{t1}, s{sU}, v{t0}
    v_mul_u32_u24 v{vX}, 1280, v{L}
    s_and_b32 s{sC}, s{S_XI}, 1
    s_mul_i32 s{sC}, s{sC}, 640
    """)
def pf_one(a, sT, sA, sB, sU, sC, vW, vX, dst):
    for x in range(300): assert (x * 2731) >> 16 == x // 24
    lx, le = a.newlab("px"), a.newlab("pe")
    a.e(f"""
    s_mul_i32 s{sA}, s{sT}, 2731
    s_lshr_b32 s{sA}, s{sA}, 16
    s_mul_i32 s{sB}, s{sA}, 24
    s_sub_u32 s{sB}, s{sT}, s{sB}
    s_add_u32 s{sA}, s{sA}, {PF0}
    s_cmp_lt_u32 s{sB}, 8
    s_cbranch_scc1 {lx}
    s_sub_u32 s{sB}, s{sB}, 8
    s_lshl_b32 s{sB}, s{sB}, 2
    s_lshl_b32 s{sA}, s{sA}, 6
    s_add_u32 s{sA}, s{sA}, s{sB}
    s_mul_i32 s{sA}, s{sA}, 3840
    s_add_u32 s{sA}, s{sA}, s{sC}
    buffer_load_dword v{dst}, v{vW}, {srd(SRD_B)}, s{sA} offen
    s_branch {le}
    """)
    a.lab(lx)
    a.e(f"""
    s_lshr_b32 s{sU}, s{S_XI}, 1
    s_lshl_b32 s{sU}, s{sU}, 3
    s_add_u32 s{sB}, s{sB}, s{sU}
    s_mul_i32 s{sB}, s{sB}, {64*1280}
    s_lshl_b32 s{sA}, s{sA}, 7
    s_add_u32 s{sA}, s{sA}, s{sB}
    buffer_load_dword v{dst}, v{vX}, {srd(SRD_A)}, s{sA} offen
    """)
    a.lab(le)

def a1(a):
    ra = RA(2)
    t0, t1, t2 = [ra.a() for _ in range(3)]
    vo = [ra.a() for _ in range(5)]
    lr, g, ad, adh, so_u, otap = [ra.a() for _ in range(6)]
    taps = [ra.a(2) for _ in range(3)]
    KR = [ra.a(6, 2) for _ in range(6)]; VR = [ra.a(4, 2) for _ in range(6)]
    W = [ra.a(5) for _ in range(3)]; U = ra.a(8); O = [ra.a(4, 4) for _ in range(6)]; X = ra.a(4)
    vz = ra.a()
    sTI, sCH, sSO, sM0, sT, sSH, sU, sCG = 60, 61, 62, 63, 64, 65, 66, 67
    a.c("A1: 32 rows x 320 channels")
    a.e(f"""
    s_sub_u32 s{sT}, s{S_J}, 24
    s_lshl_b32 s{sT}, s{sT}, 3
    s_add_u32 s{sT}, s{sT}, s{S_XI}
    s_lshr_b32 s{sTI}, s{sT}, 1
    s_and_b32 s{sCH}, s{sT}, 1
    s_lshl_b32 s{S_ASLOT}, s{sCH}, 5
    s_add_u32 s{S_ASLOT}, s{S_ASLOT}, s{sTI}
    s_mov_b32 s{sCG}, s{S_WAVE}
    s_lshl_b32 s{sT}, s{sTI}, 3
    s_add_u32 s{sT}, s{sT}, s{S_WAVE}
    s_mul_i32 s{sSO}, s{sT}, {8*1280}
    s_mul_i32 s{sT}, s{sCH}, 640
    s_add_u32 s{sSO}, s{sSO}, s{sT}
    s_mul_i32 s{sM0}, s{S_WAVE}, 5120
    s_and_b32 s{sT}, s{S_WAVE}, 1
    s_lshl_b32 s{sT}, s{sT}, 2
    """)
    for x in range(320): assert (x * 1639) >> 16 == x // 40
    a.e(f"s_movk_i32 s{sU}, 1280")
    def koff(j):
        sub = 1024 * j if j < 4 else 0
        o = []; src = L
        if j: o.append(f"v_add_u32 v{t0}, {64*j}, v{L}"); src = t0
        o += [f"v_mul_u32_u24 v{t1}, 1639, v{src}", f"v_lshrrev_b32 v{t1}, 16, v{t1}",
              f"v_mul_u32_u24 v{t2}, 40, v{t1}", f"v_sub_u32 v{t0}, v{src}, v{t2}",
              f"v_and_or_b32 v{t2}, v{t1}, 2, s{sT}", f"v_xor_b32 v{t0}, v{t0}, v{t2}", f"v_lshlrev_b32 v{t0}, 4, v{t0}"]
        if sub: o += [f"v_mad_u32_u24 v{t0}, v{t1}, s{sU}, v{t0}", f"v_subrev_u32 v{vo[j]}, {sub}, v{t0}"]
        else: o += [f"v_mad_u32_u24 v{vo[j]}, v{t1}, s{sU}, v{t0}"]
        a.e("\n".join(o))
    koff(0); koff(1)
    a.e("s_waitcnt lgkmcnt(0)")
    mk_srd(a, SRD_A, P_K, NB); mk_srd(a, SRD_B, P_V, NB)
    def dma1(srdn, lbase, so, j):
        a.e(f"s_add_u32 m0, s{sM0}, {lbase + (4096 if j == 4 else 0)}\n s_nop 0")
        a.e(f"buffer_load_dwordx4 v{vo[j]}, {srd(srdn)}, s{so} offen offset:{1024*(j&3)} lds")
    for j in range(5):
        if j >= 2: koff(j)
        dma1(SRD_A, A_KB, sSO, j); dma1(SRD_B, A_VB, sSO, j)
        if j == 1:
            mk_srd(a, SRD_D, P_SH, 640 * 8)
            a.e(f"""
            v_and_b32 v{lr}, 15, v{L}
            s_mul_i32 s{sSH}, s{sCH}, 320
            v_add_u32 v{so_u}, s{sSH}, v{lr}
            v_lshlrev_b32 v{otap}, 3, v{so_u}
            s_lshl_b32 s{sSH}, s{sCG}, 7
            """)
            for n in range(3):
                a.e(f"buffer_load_dwordx2 {v(taps[n],2)}, v{otap}, {srd(SRD_D)}, s{sSH} offen offset:{1024*n}")
    lab = a.newlab("a1_nohalo")
    a.e(f"""
    s_cmp_lg_u32 s{S_WAVE}, 7
    s_cbranch_scc1 {lab}
    s_sub_u32 s{sSH}, s{sSO}, {64*1280}
    s_cmp_eq_u32 s{sTI}, 0
    s_cselect_b32 s{sSH}, {NB}, s{sSH}
    """)
    for j in (2, 3, 4): dma1(SRD_A, A_KB - 8 * 5120, sSH, j)
    a.lab(lab)
    NH = 0
    mk_srd(a, SRD_A, P_H, T_BYTES)
    a.e(f"s_add_u32 s68, s{S_CB}, s{S_WAVE}\n s_lshl_b32 s68, s68, 12\n v_lshlrev_b32 v244, 4, v{L}")
    assert AH == 0
    if AH:
        NH = 1
        nhp = a.newlab("nohelp")
        pf_lanes(a, 240, 241, t0, t1, 68, 69)
        mk_srd(a, SRD_A, P_X, NB); mk_srd(a, SRD_B, P_W, 640 * 3840)
        a.e(f"""
        s_lshl_b32 s70, s{S_WAVE}, 3
        s_add_u32 s70, s70, s{S_J}
        s_sub_u32 s70, s70, 24
        s_min_u32 s70, s70, {AH-1}
        s_add_u32 s70, s70, {24*(10-PF0)-AH}
        s_barrier
        s_cmp_lt_u32 s{S_WAVE}, {AH//8}
        s_cbranch_scc1 {nhp}
        s_mov_b64 exec, 1
        """)
        a.lab(nhp)
        pf_one(a, 70, 71, 72, 68, 69, 240, 241, 244)
        a.e("s_mov_b64 exec, -1")
    mk_srd(a, SRD_D, P_DBG, 256)
    a.e(f"v_and_b32 v{vz}, 7, v{L}\n v_lshlrev_b32 v{vz}, 2, v{vz}")
    mk_srd(a, SRD_C, P_WS, T_BYTES)
    mk_fl(a)
    conv_sload(a)
    a.e(f"""
    v_lshrrev_b32 v{g}, 4, v{L}
    v_lshrrev_b32 v{t0}, 2, v{lr}
    v_lshl_add_u32 v{t1}, v{g}, 3, v{t0}
    v_mul_u32_u24 v{ad}, 640, v{t1}
    v_and_b32 v{t2}, 3, v{lr}
    v_lshl_add_u32 v{ad}, v{t2}, 3, v{ad}
    v_add_u32 v{ad}, {A_KB}, v{ad}
    v_lshrrev_b32 v{t0}, 1, v{t0}
    v_and_b32 v{t1}, 1, v{g}
    v_lshl_or_b32 v{t0}, v{t1}, 1, v{t0}
    v_xor_b32 v{t0}, s{sCG}, v{t0}
    v_lshlrev_b32 v{t0}, 5, v{t0}
    v_xor_b32 v{t1}, 64, v{t0}
    v_add_u32 v{adh}, v{t1}, v{ad}
    v_subrev_u32 v{adh}, {4*640}, v{adh}
    v_add_u32 v{ad}, v{t0}, v{ad}
    v_and_b32 v{t0}, 0xfffffff7, v{so_u}
    v_lshlrev_b32 v{t0}, 12, v{t0}
    s_lshl_b32 s{sT}, s{sTI}, 7
    v_lshlrev_b32 v{t1}, 4, v{g}
    v_add_u32 v{t1}, s{sT}, v{t1}
    v_and_b32 v{t2}, 8, v{lr}
    v_lshl_add_u32 v{t1}, v{t2}, 3, v{t1}
    v_sub_u32 v{so_u}, 4080, v{t1}
    v_add_u32 v{so_u}, v{so_u}, v{t0}
    s_lshl_b32 s{sU}, s{sCG}, 16
    """)
    def tapprep(n):
        tp, w = taps[n], W[n]
        a.e(f"""
        v_alignbit_b32 v{w}, v{tp}, v{tp}, 16
        v_alignbit_b32 v{w+1}, v{tp+1}, v{tp+1}, 16
        v_and_b32 v{w+2}, 0xffff0000, v{tp}
        v_and_b32 v{w+3}, 0xffff, v{tp}
        v_and_b32 v{w+4}, 0xffff, v{tp+1}
        v_or_b32 v{w+2}, v{w+2}, v{w+4}
        v_and_b32 v{w+4}, 0xffff0000, v{tp+1}
        """)
    a.e(f"s_waitcnt vmcnt({6+NH})")
    for n in range(3): tapprep(n)
    stamp(a, 1)
    a.e(f"s_waitcnt vmcnt({NH}) lgkmcnt(0)\n s_barrier")
    a.e(f"buffer_load_dword v{vz}, v{vz}, {srd(SRD_D)}, 0 offen sc1")
    if "hearly" in EX:
        h_load(a, 208, 244, SRD_A, 68)
        a.e("s_setprio 1")
    stamp(a, 2)
    if STAMPS: a.e("s_waitcnt lgkmcnt(0)")
    def rd(u):
        o = 256 * (u >> 1) + (u & 1) * 32 * 640
        return [f"ds_read_b64_tr_b16 {v(KR[u],2)}, v{adh} offset:{o}",
                f"ds_read_b64_tr_b16 {v(KR[u]+2,2)}, v{ad} offset:{o}",
                f"ds_read_b64_tr_b16 {v(KR[u]+4,2)}, v{ad} offset:{o+2560}",
                f"ds_read_b64_tr_b16 {v(VR[u],2)}, v{ad} offset:{A_VB-A_KB+o}",
                f"ds_read_b64_tr_b16 {v(VR[u]+2,2)}, v{ad} offset:{A_VB-A_KB+o+2560}"]
    a.e("\n".join(rd(0) + rd(1) + rd(2)))
    done = a.newlab("a1_done")
    for u in range(6):
        k, w, ob = KR[u], W[u >> 1], O[u]
        if u == 4: a.e(f"s_cmp_ge_u32 s{S_WAVE}, 4\n s_cbranch_scc1 {done}")
        a.e(f"s_waitcnt lgkmcnt({5*(min(5, u + 2) - u)})")
        if u + 3 < 6:
            a.e("\n".join(rd(u + 3)))
        for m in range(4):
            a.e(f"v_dot2_f32_bf16 v{U+2*m}, v{k+m}, v{w+4}, 0")
            a.e(f"v_dot2_f32_bf16 v{U+2*m+1}, v{k+m+1}, v{w+1}, 0")
        for m in range(4):
            a.e(f"v_dot2_f32_bf16 v{U+2*m}, v{k+m+1}, v{w+2}, v{U+2*m}")
            a.e(f"v_dot2_f32_bf16 v{U+2*m+1}, v{k+m+2}, v{w}, v{U+2*m+1}")
        for m in range(4):
            a.e(f"v_dot2_f32_bf16 v{U+2*m}, v{k+m+2}, v{w+3}, v{U+2*m}")
        for m in range(4):
            x = X + 2 * (m & 1)
            a.e(f"""
            v_lshlrev_b32 v{x}, 16, v{VR[u]+m}
            v_and_b32 v{x+1}, 0xffff0000, v{VR[u]+m}
            v_mul_f32 v{x+1}, v{x+1}, v{U+2*m+1}
            v_mul_f32 v{x}, v{x}, v{U+2*m}
            v_cvt_pk_bf16_f32 v{ob+3-m}, v{x+1}, v{x}
            """)
        if u & 1:
            lo, hi = O[u - 1], O[u]
            for i in range(4): a.e(f"v_mov_b32 v{X+i}, v{lo+i}")
            for i in (3, 2, 1, 0): a.e(f"v_mov_b32_dpp v{lo+i}, v{hi+i} row_ror:8 row_mask:0xf bank_mask:0xc")
            for i in range(4): a.e(f"v_mov_b32_dpp v{hi+i}, v{X+i} row_ror:8 row_mask:0xf bank_mask:0x3")
            a.e(f"buffer_store_dwordx4 {v(lo,4)}, v{so_u}, {srd(SRD_C)}, s{sU} offen sc1")
            a.e(f"s_add_u32 s{sT}, s{sU}, {8*4096}")
            a.e(f"buffer_store_dwordx4 {v(hi,4)}, v{so_u}, {srd(SRD_C)}, s{sT} offen sc1")
            a.e(f"s_add_u32 s{sU}, s{sU}, {8<<16}")
    a.lab(done)
    a.e("s_waitcnt lgkmcnt(0)")
    stamp(a, 3)
    if "hearly" in EX:
        a.e("s_setprio 0\n s_waitcnt vmcnt(4)")
        h_stage(a, 208, 224, S_WAVE, 244, t2, sT)
    nz = a.newlab("a1_nz")
    a.e(f"s_waitcnt vmcnt(0)\n v_cmp_ne_u32 vcc, 1, v{vz}\n s_nop 1\n s_cmp_eq_u64 vcc, 0\n s_cbranch_scc1 {nz}")
    poll_z(a, t0, t1)
    a.lab(nz)
    a.e("s_barrier")
    stamp(a, 4)
    set_flag(a, S_ASLOT, t0, t1)
    return ra.hi

def prefetcher(a):
    vW, vX, vQ, vO, t0, t1, z4 = 2, 3, 4, 5, 6, 7, 8
    sN, sA, sB, sC, sT, sU = 60, 61, 62, 63, 64, 65
    a.c("L2 prefetch of this XCD's GEMM operands in K order (speed only) + housekeeping")
    pf_lanes(a, vW, vX, t0, t1, sU, sC)
    a.e(f"""
    s_lshl_b32 s{sN}, s{S_WAVE}, 3
    s_add_u32 s{sN}, s{sN}, s{S_J}
    s_sub_u32 s{sN}, s{sN}, 16
    s_waitcnt lgkmcnt(0)
    """)
    mk_fl(a)
    nz, nt, nc = a.newlab("nozero"), a.newlab("notlb"), a.newlab("nocode")
    a.e(f"s_cmp_lg_u32 s{sN}, 63\n s_cbranch_scc1 {nz}")
    a.e(f"s_mul_i32 s{sT}, s{S_XI}, {GB}\n s_add_u32 s{sT}, s{sT}, {WS_KV}")
    mk_srd(a, SRD_C, P_WS, GB, off_sreg=sT)
    mk_srd(a, SRD_D, P_DBG, 256)
    for i in range(4): a.e(f"v_mov_b32 v{z4+i}, 0")
    a.e(f"""
    v_lshlrev_b32 v{t0}, 4, v{L}
    v_lshlrev_b32 v{t1}, 7, v{L}
    s_lshl_b32 s{sT}, s{S_XI}, 13
    buffer_store_dword v{z4}, v{t1}, {srd(SRD_FL)}, s{sT} offen sc1
    s_add_u32 s{sT}, s{sT}, 0x10000
    buffer_store_dword v{z4}, v{t1}, {srd(SRD_FL)}, s{sT} offen sc1
    s_movk_i32 s{sT}, 4096
    s_movk_i32 s{sU}, 8192
    """)
    for n in range(9):
        a.e(f"buffer_store_dwordx4 {v(z4,4)}, v{t0}, {srd(SRD_C)}, {('0', 's%d' % sT, 's%d' % sU)[n>>2]} offen offset:{1024*(n&3)} sc1")
    a.e(f"""
    s_lshl_b32 s{sT}, s{S_XI}, 2
    v_mov_b32 v{t1}, 1
    s_waitcnt vmcnt(0)
    s_mov_b64 exec, 1
    buffer_store_dword v{t1}, v{t0}, {srd(SRD_D)}, s{sT} offen sc1
    s_mov_b64 exec, -1
    """)
    a.lab(nz)
    a.e(f"s_cmp_lg_u32 s{sN}, 62\n s_cbranch_scc1 {nt}")
    a.e(f"v_lshlrev_b32 v{t1}, 20, v{L}")
    for i, (ptr, nb) in enumerate([(P_WS, WS_END), (P_OUT, 2048 * 2560), (P_Q, NB), (P_WO, 640 * 1280), (P_DBG, 256), (P_H, T_BYTES)]):
        mk_srd(a, SRD_A, ptr, nb)
        a.e(f"buffer_load_dword v{236+i}, v{t1}, {srd(SRD_A)}, 0 offen")
    a.lab(nt)
    mk_srd(a, SRD_A, P_X, NB); mk_srd(a, SRD_B, P_W, 640 * 3840)
    done = a.newlab("pfd")
    NI = 24 * (10 - PF0) - AH
    for m in range((NI + 63) // 64):
        if m and "nopb" not in EX: a.e("s_barrier")
        a.e(f"s_add_u32 s{sT}, s{sN}, {64*m}")
        if 64 * m + 64 > NI: a.e(f"s_cmp_ge_u32 s{sT}, {NI}\n s_cbranch_scc1 {done}")
        pf_one(a, sT, sA, sB, sU, sC, vW, vX, 244 + m)
    a.lab(done)
    a.e("s_barrier")
    if "hearly" not in EX:
        nh = a.newlab("pnh")
        mk_srd(a, SRD_B, P_H, T_BYTES)
        a.e(f"""
        s_cmp_ge_u32 s{sN}, 32
        s_cbranch_scc1 {nh}
        s_mul_i32 s{sA}, s{S_XI}, {64*4096}
        s_lshl_b32 s{sB}, s{sN}, 13
        s_add_u32 s{sA}, s{sA}, s{sB}
        v_lshlrev_b32 v{t0}, 7, v{L}
        buffer_load_dword v249, v{t0}, {srd(SRD_B)}, s{sA} offen
        """)
        a.lab(nh)
    mk_srd(a, SRD_A, P_WO, 640 * 1280)
    a.e(f"""
    s_mul_i32 s{sA}, s{sN}, {12*1280}
    s_add_u32 s{sA}, s{sA}, s{sC}
    buffer_load_dword v248, v{vW}, {srd(SRD_A)}, s{sA} offen
    """)
    nq = a.newlab("pnq")
    mk_srd(a, SRD_B, P_Q, NB)
    a.e(f"""
    s_cmp_ge_u32 s{S_J}, 20
    s_cbranch_scc1 {nq}
    s_barrier
    s_and_b32 s{sA}, s{S_J}, 3
    s_lshl_b32 s{sA}, s{sA}, 3
    s_add_u32 s{sA}, s{sA}, s{S_WAVE}
    s_xor_b32 s{sA}, s{sA}, 16
    s_mul_i32 s{sA}, s{sA}, {64*1280}
    s_lshl_b32 s{sB}, s{S_XI}, 7
    s_add_u32 s{sB}, s{sA}, s{sB}
    buffer_load_dword v250, v{vX}, {srd(SRD_B)}, s{sB} offen
    s_lshl_b32 s{sB}, s{S_XI}, 5
    s_add_u32 s{sB}, s{sA}, s{sB}
    buffer_load_dword v251, v{vX}, {srd(SRD_B)}, s{sB} offen offset:1024
    """)
    a.lab(nq)
    conv_sload(a)
    stamp(a, 1)
    nz = a.newlab("pnz")
    a.e(f"s_cmp_lg_u32 s{S_WAVE}, 1\n s_cbranch_scc1 {nz}")
    poll_z(a, t0, t1)
    a.lab(nz)
    a.e("s_waitcnt lgkmcnt(0)")

def conv(a):
    ra = RA(2)
    lr, g, t0, t1, t2, aB, aT, vrow, vfl, vrow2, aR = [ra.a() for _ in range(11)]
    aA = [ra.a() for _ in range(4)]
    z4 = ra.a(4, 4); AD = ra.a(4, 4)
    Q = ra.a(16, 4)
    AF = [[ra.a(4, 4) for _ in range(8)] for _ in range(2)]
    BF = [[ra.a(4, 4) for _ in range(8)] for _ in range(2)]
    ACC = [ra.a(4, 4) for _ in range(8)]
    sD, sR, sSO, sT, sOO, sDV, sH, sQO = 60, 61, 62, 63, 64, 65, 66, 67
    fin, idle = a.newlab("conv_fin"), a.newlab("conv_idle")
    a.c("conv")
    if "noconv" in EX: a.e("s_branch L_FIN")
    mk_srd(a, SRD_A, P_WS, T_BYTES); mk_srd(a, SRD_B, P_Q, NB); mk_srd(a, SRD_C, P_OUT, 2048 * 2560)
    def qtouch():
        a.e(f"""
        s_sub_u32 s{sT}, s{S_J}, 20
        s_lshl_b32 s{sT}, s{sT}, 3
        s_add_u32 s{sT}, s{sT}, s{S_WAVE}
        s_mul_i32 s{sT}, s{sT}, {22*1280}
        s_mul_i32 s70, s{S_XI}, 160
        s_add_u32 s{sT}, s{sT}, s70
        v_and_b32 v{t2}, 31, v{L}
        v_min_u32 v{t2}, 21, v{t2}
        v_mul_u32_u24 v{t2}, 1280, v{t2}
        v_lshrrev_b32 v{t1}, 1, v{g}
        v_mul_u32_u24 v{t1}, 156, v{t1}
        v_add_u32 v{t2}, v{t2}, v{t1}
        buffer_load_dword v250, v{t2}, {srd(SRD_B)}, s{sT} offen
        """)
    def qg(slot, rowoff, nd):
        return [f"s_add_u32 s{sT}, s{sQO}, {rowoff*1280}",
                f"buffer_load_dwordx{nd} {v(Q+slot,nd)}, v{vrow}, {srd(SRD_B)}, s{sT} offen"]
    def qgather(n):
        l4, le = a.newlab("q4"), a.newlab("qe")
        ro = (1024 if n < 2 else 0) + 64 * (n & 1)
        a.e(f"s_cmp_lg_u32 s{S_P2}, 8\n s_cbranch_scc1 {l4}")
        a.e("\n".join(qg(4 * n, ro, 4)))
        if n >= 2:
            a.e(f"s_branch {le}")
        a.lab(l4)
        if n >= 2:
            a.e("\n".join(qg(4 * n, ro, 2)))
            a.lab(le)
    a.e(f"""
    v_and_b32 v{lr}, 15, v{L}
    v_lshrrev_b32 v{g}, 4, v{L}
    v_mul_u32_u24 v{vrow}, 1280, v{L}
    s_mul_i32 s{sQO}, s{S_WAVE}, {128*1280}
    s_lshl_b32 s{sOO}, s{sQO}, 1
    s_lshl_b32 s{sT}, s{S_CB}, 1
    s_add_u32 s{sQO}, s{sQO}, s{sT}
    s_add_u32 s{sOO}, s{sOO}, s{sT}
    v_lshlrev_b32 v{vrow2}, 1, v{vrow}
    v_lshrrev_b32 v{aR}, 2, v{lr}
    v_mul_u32_u24 v{aR}, {TP}, v{aR}
    v_and_b32 v{t1}, 3, v{lr}
    v_lshl_add_u32 v{aR}, v{t1}, 3, v{aR}
    v_lshl_add_u32 v{aR}, v{g}, 5, v{aR}
    s_lshl_b32 s{sT}, s{S_WAVE}, 8
    s_add_u32 s{sT}, s{sT}, {TB}
    v_add_u32 v{aR}, s{sT}, v{aR}
    s_cmp_ge_u32 s{S_WAVE}, s{S_P2}
    s_cbranch_scc1 {idle}
    s_add_u32 s{sD}, s{S_CB}, s{S_WAVE}
    s_lshl_b32 s{sSO}, s{sD}, 12
    v_lshlrev_b32 v{t0}, 4, v{L}
    """)
    HH, HG = AF[0][0], BF[0][0]
    mk_srd(a, SRD_D, P_H, T_BYTES)
    nh1, nh2 = a.newlab("nh1"), a.newlab("nh2")
    skip = "" if "hearly" not in EX else f"s_cmp_eq_u32 s{S_P2}, 8\n s_cbranch_scc1 "
    if skip: a.e(skip + nh1)
    h_load(a, HH, t0, SRD_D, sSO)
    a.lab(nh1)
    a.e(f"""
    s_mul_i32 s{sR}, s{S_WAVE}, {UP}
    s_add_u32 s{sR}, s{sR}, {UB}
    s_mul_i32 s{sH}, s{S_WAVE}, {HP}
    s_cmp_ge_u32 s{sD}, 320
    s_cselect_b32 s{sT}, 32, 0
    v_and_b32 v{vfl}, 31, v{L}
    v_add_u32 v{vfl}, s{sT}, v{vfl}
    v_lshlrev_b32 v{vfl}, 7, v{vfl}
    """)
    for i in range(4):
        a.e(f"v_mov_b32 v{z4+i}, 0")
    a.e(f"""
    v_and_b32 v{t1}, 1, v{lr}
    v_cmp_eq_u32 vcc, 1, v{t1}
    v_mov_b32 v{t1}, {HB+H_O}
    v_mov_b32 v{t2}, {HB+2}
    v_cndmask_b32 v{t1}, v{t1}, v{t2}, vcc
    v_lshl_add_u32 v{t1}, v{lr}, 1, v{t1}
    v_lshl_add_u32 v{t1}, v{g}, 4, v{t1}
    v_add_u32 v{aA[0]}, s{sH}, v{t1}
    v_add_u32 v{aA[1]}, 1024, v{aA[0]}
    v_add_u32 v{aA[2]}, 2048, v{aA[0]}
    v_add_u32 v{aA[3]}, 3072, v{aA[0]}
    v_lshlrev_b32 v{t0}, 4, v{L}
    v_add_u32 v{aT}, s{sR}, v{t0}
    s_and_b32 s{sT}, s{sD}, 1
    s_lshl_b32 s{sT}, s{sT}, 4
    s_lshr_b32 s{sDV}, s5, s{sT}
    s_and_b32 s{sDV}, s{sDV}, 0xffff
    v_lshl_add_u32 v{t1}, v{g}, 3, v{lr}
    v_sub_u32 v{t1}, 15, v{t1}
    v_and_b32 v{t2}, 1, v{t1}
    v_lshlrev_b32 v{t2}, 4, v{t2}
    v_lshlrev_b32 v{t2}, v{t2}, s{sDV}
    v_ashrrev_i32 v{t1}, 1, v{t1}
    """)
    for r in range(4):
        a.e(f"v_cmp_eq_u32 vcc, {r}, v{t1}\n s_nop 1\n v_cndmask_b32 v{AD+r}, 0, v{t2}, vcc")
    a.e(f"""
    v_lshlrev_b32 v{t1}, 5, v{lr}
    v_sub_u32 v{aB}, 480, v{t1}
    v_lshl_add_u32 v{aB}, v{g}, 4, v{aB}
    v_add_u32 v{aB}, s{sR}, v{aB}
    """)
    if skip: a.e(skip + nh2)
    a.e("s_waitcnt vmcnt(0)")
    h_stage(a, HH, HG, S_WAVE, t0, t1, sT)
    a.lab(nh2)
    a.e(f"s_mov_b32 exec_hi, 0\n ds_write_b128 v{aT}, {v(z4,4)} offset:4096\n s_mov_b64 exec, -1")
    a.e("s_waitcnt lgkmcnt(0)")
    for i in range(8):
        o0 = 128 * (i & 1)
        a.e(f"ds_read2_b32 {v(AF[0][i],2)}, v{aA[i>>1]} offset0:{o0} offset1:{o0+1}")
        a.e(f"ds_read2_b32 {v(AF[0][i]+2,2)}, v{aA[i>>1]} offset0:{o0+2} offset1:{o0+3}")
    stamp(a, 5)
    npl = a.newlab("nopoll")
    a.e(f"s_cmp_lg_u32 s{S_WAVE}, 1\n s_cbranch_scc1 {npl}")
    poll(a, SRD_FL, vfl, t1, slp=int(os.environ.get("ASL", "2")))
    a.lab(npl)
    a.e("s_barrier")
    stamp(a, 6)
    UR = AF[1][0]
    for j in range(4):
        a.e(f"buffer_load_dwordx4 {v(UR+4*j,4)}, v{t0}, {srd(SRD_A)}, s{sSO} offen offset:{1024*j} sc1")
    for j in range(4):
        a.e(f"s_waitcnt vmcnt({3-j})\n ds_write_b128 v{aT}, {v(UR+4*j,4)} offset:{1024*j}")
    a.e(f"""
    v_lshlrev_b32 v{t1}, 5, v{lr}
    v_lshl_add_u32 v{aT}, v{g}, 3, v{t1}
    s_mul_i32 s{sT}, s{S_WAVE}, {TP}
    s_add_u32 s{sT}, s{sT}, {TB}
    v_add_u32 v{aT}, s{sT}, v{aT}
    """)
    MF = "v_mfma_f32_16x16x32_bf16"
    def rd1(b, slot, i, r):
        o0 = 128 * (i & 1) + 16 * r
        if "fakeA" in EX and i < 4:
            return [f"ds_read_b128 {v(BF[b][slot],4)}, v{aB} offset:{3584 - 512*i + 64*r}",
                    f"ds_read_b64 {v(AF[b][slot],2)}, v{vfl} offset:{512*i+64*r}",
                    f"ds_read_b64 {v(AF[b][slot]+2,2)}, v{vfl} offset:{512*i+64*r+512}"]
        return [f"ds_read_b128 {v(BF[b][slot],4)}, v{aB} offset:{3584 - 512*i + 64*r}",
                f"ds_read2_b32 {v(AF[b][slot],2)}, v{aA[i>>1]} offset0:{o0} offset1:{o0+1}",
                f"ds_read2_b32 {v(AF[b][slot]+2,2)}, v{aA[i>>1]} offset0:{o0+2} offset1:{o0+3}"]
    def reads(it):
        b = it & 1; o = []
        if it < 8:
            for i in range(8): o += rd1(b, i, i, it)
        elif it < 12:
            for k in range(2):
                for i in range(4): o += rd1(b, 4 * k + i, i, 2 * (it - 8) + k)
        return o
    def mf(it):
        b = it & 1; o = []
        if it < 8:
            if it == 0:
                o += [f"{MF} {v(ACC[c],4)}, {v(AD,4)}, {v(BF[b][c],4)}, 0" for c in range(8)]
            for q in range(8):
                for c in range(max(q, 4), 8):
                    o.append(f"{MF} {v(ACC[c],4)}, {v(AF[b][q],4)}, {v(BF[b][c-q],4)}, {v(ACC[c],4)}")
        else:
            for k in range(2):
                for q in range(4):
                    for c in range(q, 4):
                        o.append(f"{MF} {v(ACC[c],4)}, {v(AF[b][4*k+q],4)}, {v(BF[b][4*k+c-q],4)}, {v(ACC[c],4)}")
        return o
    def spread(M, F):
        out = []; n = len(M); fi = 0
        for i, m in enumerate(M):
            out.append(m)
            tgt = (len(F) * (i + 1) + n - 1) // n
            out += F[fi:tgt]; fi = tgt
        return out
    def twrite(half):
        a.e("s_nop 3")
        for c in range(4):
            r = ACC[4 * half + c]
            a.e(f"v_cvt_pk_bf16_f32 v{r}, v{r}, v{r+1}\n v_cvt_pk_bf16_f32 v{r+1}, v{r+2}, v{r+3}")
            a.e(f"ds_write_b64 v{aT}, {v(r,2)} offset:{(1-half)*8*TP + 512*c}")
    Y, X = ACC[4], ACC[6]
    def t_rd(n, nd, toff):
        return [f"ds_read_b64_tr_b16 {v(Y+4*(n&1)+2*k,2)}, v{aR} offset:{toff + 4*TP*k}" for k in range(nd // 2)]
    def t_mul(n, nd, qslot, rowoff):
        o = []
        for i in range(nd):
            y, q, x = Y + 4 * (n & 1) + i, Q + qslot + i, X + 4 * (i & 1)
            o += [f"v_lshlrev_b32 v{x}, 16, v{y}", f"v_and_b32 v{x+1}, 0xffff0000, v{y}",
                  f"v_lshlrev_b32 v{x+2}, 16, v{q}", f"v_and_b32 v{x+3}, 0xffff0000, v{q}",
                  f"v_mul_f32 v{x}, v{x}, v{x+2}", f"v_mul_f32 v{x+1}, v{x+1}, v{x+3}",
                  f"v_cvt_pk_bf16_f32 v{y}, v{x}, v{x+1}"]
        o += [f"s_add_u32 s{sT}, s{sOO}, {rowoff*2560}",
              f"buffer_store_dwordx{nd} {v(Y+4*(n&1),nd)}, v{vrow2}, {srd(SRD_C)}, s{sT} offen {os.environ.get('OSH' if rowoff >= 1024 else 'OSL', '')}"]
        return o
    if "fakeA" in EX: a.e(f"v_lshl_add_u32 v{vfl}, v{L}, 3, s{sH}")
    stamp(a, 7)
    a.e("\n".join(x for x in reads(0) if "b128" in x))
    for it in range(8):
        a.e("s_waitcnt lgkmcnt(0)")
        if "nocprio" not in EX: a.e(f"s_setprio {3 - it // 2}")
        if 3 <= it <= 6 and "nog" not in EX: qgather(it - 3)
        a.e("\n".join(interleave(mf(it), reads(it + 1) if "nord" not in EX else [])))
    twrite(1)
    a.e("s_waitcnt lgkmcnt(0)\n s_barrier")
    stamp(a, 8)
    lo4, lj = a.newlab("lo4"), a.newlab("loj")
    a.e(f"s_cmp_lg_u32 s{S_P2}, 8\n s_cbranch_scc1 {lo4}")
    for it in range(8, 12):
        if it > 8: a.e("s_waitcnt lgkmcnt(0)")
        if "nocprio" not in EX: a.e(f"s_setprio {11 - it}")
        F = reads(it + 1)
        if it == 8: F = t_rd(0, 4, 0) + t_rd(1, 4, 128) + F
        if it == 9:
            a.e("s_waitcnt vmcnt(2)")
            F = interleave2(F, t_mul(0, 4, 0, 1024), 1)
        if it == 10: F = interleave2(F, t_mul(1, 4, 4, 1024 + 64), 1)
        a.e("\n".join(spread(mf(it), F)))
    a.e(f"s_branch {lj}")
    a.lab(lo4)
    for it in range(8, 12):
        if it > 8: a.e("s_waitcnt lgkmcnt(0)")
        a.e("\n".join(spread(mf(it), reads(it + 1))))
    a.e("s_waitcnt vmcnt(0)")
    a.lab(lj)
    twrite(0)
    a.e(f"s_branch {fin}")
    a.lab(idle)
    a.e("s_barrier")
    a.e(f"s_waitcnt vmcnt(0)\n s_sub_u32 s{sD}, s{S_WAVE}, 8\n s_mul_i32 s{sR}, s{sD}, {128*1280}\n s_add_u32 s{sQO}, s{sQO}, s{sR}")
    for n in range(4): a.e("\n".join(qg(2 * n, 1024 + 64 * n, 2)))
    a.e(f"s_sub_u32 s{sQO}, s{sQO}, s{sR}")
    for n in range(2): a.e("\n".join(qg(8 + 4 * n, 64 * n, 2)))
    a.e(f"s_lshl_b32 s{sR}, s{sR}, 1\n s_add_u32 s{sOO}, s{sOO}, s{sR}\n s_lshl_b32 s{sD}, s{sD}, 8\n v_add_u32 v{aR}, s{sD}, v{aR}")
    a.e("s_barrier")
    for h in range(2):
        a.e("\n".join(t_rd(0, 2, 256 * h) + t_rd(1, 2, 256 * h + 128)))
        a.e("s_waitcnt vmcnt(0) lgkmcnt(0)" if h == 0 else "s_waitcnt lgkmcnt(0)")
        a.e("\n".join(t_mul(0, 2, 4 * h, 1024 + 128 * h) + t_mul(1, 2, 4 * h + 2, 1024 + 128 * h + 64)))
    a.e(f"s_sub_u32 s{sOO}, s{sOO}, s{sR}\n v_subrev_u32 v{aR}, s{sD}, v{aR}")
    a.lab(fin)
    a.e("s_waitcnt lgkmcnt(0)\n s_barrier")
    if "wb2" in EX:
        nwb = a.newlab("nwb")
        a.e(f"s_lshl_b32 s{sT}, s{S_WAVE}, 8\n s_or_b32 s{sT}, s{sT}, s{S_J}\n s_cmp_lg_u32 s{sT}, {7*256+24}\n s_cbranch_scc1 {nwb}\n s_waitcnt vmcnt(0)\n buffer_wbl2 sc1")
        a.lab(nwb)
    stamp(a, 9)
    def tail(nd):
        a.e("\n".join(t_rd(0, nd, 8 * TP) + t_rd(1, nd, 8 * TP + 128)))
        a.e("s_waitcnt vmcnt(2) lgkmcnt(0)" if nd == 4 else "s_waitcnt lgkmcnt(0)")
        a.e("\n".join(t_mul(0, nd, 8, 0) + t_mul(1, nd, 12, 64)))
    l8 = a.newlab("t8")
    a.e(f"s_cmp_eq_u32 s{S_P2}, 8\n s_cbranch_scc1 {l8}")
    tail(2)
    if "wb1" in EX:
        a.e(f"s_lshl_b32 s{sT}, s{S_WAVE}, 8\n s_or_b32 s{sT}, s{sT}, s{S_J}\n s_cmp_lg_u32 s{sT}, {256*int(os.environ.get('WBW','7'))+20}\n s_cbranch_scc1 L_FIN\n s_waitcnt vmcnt(0)\n buffer_wbl2 sc1")
    a.e("s_branch L_FIN")
    a.lab(l8)
    tail(4)
    a.e("s_branch L_FIN")
    return ra.hi

def wo_dma(a):
    t0, t1, t2, vx = 228, 229, 230, [231, 232, 233, 234]
    sSX, sM, sT = 68, 69, 70
    mk_srd(a, SRD_A, P_WO, 640 * 1280)
    a.e(f"""
    v_lshrrev_b32 v{t0}, 3, v{L}
    v_mul_u32_u24 v{t0}, 1280, v{t0}
    v_and_b32 v{t1}, 7, v{L}
    v_lshrrev_b32 v{t2}, 4, v{L}
    v_lshlrev_b32 v{t2}, 1, v{t2}
    v_xor_b32 v{t1}, v{t1}, v{t2}
    v_lshl_add_u32 v{vx[0]}, v{t1}, 4, v{t0}
    v_add_u32 v{vx[1]}, {1*(8*1280-1024)}, v{vx[0]}
    v_add_u32 v{vx[2]}, {2*(8*1280-1024)}, v{vx[0]}
    v_add_u32 v{vx[3]}, {3*(8*1280-1024)}, v{vx[0]}
    s_sub_u32 s{sM}, s{S_WAVE}, 4
    s_mul_i32 s{sSX}, s{sM}, {160*1280}
    s_lshl_b32 s{sT}, s{S_GC}, 7
    s_add_u32 s{sSX}, s{sSX}, s{sT}
    s_mul_i32 s{sM}, s{sM}, 20480
    s_add_u32 s{sM}, s{sM}, {WOB}
    """)
    for q in range(5):
        a.e(f"s_add_u32 m0, s{sM}, {4096*q}\n s_nop 0")
        for j in range(4):
            a.e(f"buffer_load_dwordx4 v{vx[j]}, {srd(SRD_A)}, s{sSX} offen offset:{1024*j} lds")
        a.e(f"s_add_u32 s{sSX}, s{sSX}, {32*1280}")
    mk_srd(a, SRD_B, P_WS, T_BYTES, off=WS_PQ)

def g2(a):
    ra = RA(2)
    t0, t1, t2, t3, g, vo, vx, vfl, vst = [ra.a() for _ in range(9)]
    wm, wx = [ra.a() for _ in range(4)], [ra.a() for _ in range(4)]
    LA = int(os.environ.get("LA", "6"))
    NO = min(20, LA + 2)
    O_ = [ra.a(4, 4) for _ in range(NO)]
    O = [O_[k % NO] for k in range(20)]
    NW = int(os.environ.get("NW", "11"))
    WF = [[ra.a(4, 4) for _ in range(4)] for _ in range(NW)]
    ACC = [ra.a(4, 4) for _ in range(4)]
    D = WF[0][0]
    sT, sSO, sU = 62, 63, 65
    MF = "v_mfma_f32_16x16x32_bf16"
    OLD = os.environ.get("OLD", "sc1")
    a.c("G2")
    a.e(f"""
    s_mul_i32 s60, s{S_GC}, {os.environ.get("WR", "0")}
    s_add_u32 s60, s60, s{S_WAVE}
    s_and_b32 s60, s60, 7
    s_lshl_b32 s{sT}, s{S_RT}, 3
    s_add_u32 s{sT}, s{sT}, s60
    s_mul_i32 s{sSO}, s{sT}, {16*2560}
    s_lshr_b32 s{sT}, s{sT}, 1
    s_lshl_b32 s{sT}, s{sT}, 3
    s_mul_i32 s{sU}, s{sT}, 5120
    s_add_u32 s{sT}, s{sT}, 64
    v_and_b32 v{t0}, 7, v{L}
    v_add_u32 v{vfl}, s{sT}, v{t0}
    v_lshlrev_b32 v{vfl}, 7, v{vfl}
    v_lshrrev_b32 v{g}, 4, v{L}
    v_and_b32 v{t0}, 15, v{L}
    v_and_b32 v{t1}, 1, v{g}
    v_lshrrev_b32 v{t2}, 1, v{g}
    v_mul_u32_u24 v{vst}, 2560, v{t0}
    v_lshl_add_u32 v{vst}, v{t1}, 5, v{vst}
    v_lshl_add_u32 v{vst}, v{t2}, 4, v{vst}
    s_and_b32 s{sT}, s60, 1
    s_lshl_b32 s{sT}, s{sT}, 8
    v_lshl_add_u32 v{t3}, v{t0}, 4, s{sT}
    v_lshl_add_u32 v{t3}, v{t1}, 9, v{t3}
    v_lshl_add_u32 v{vo}, v{t2}, 10, v{t3}
    v_mul_u32_u24 v{vx}, 5120, v{t2}
    v_add_u32 v{vx}, v{vx}, v{t3}
    v_add_u32 v{vx}, 4096, v{vx}
    s_lshl_b32 s{sT}, s{S_GC}, 7
    s_add_u32 s{sSO}, s{sSO}, s{sT}
    s_add_u32 s{sSO}, s{sSO}, 1280
    v_and_b32 v{t3}, 3, v{L}
    v_lshlrev_b32 v{t3}, 3, v{t3}
    s_and_b32 s64, s{S_GC}, {0 if "norot2" in EX else 3}
    s_mul_i32 s{sT}, s64, 20480
    s_add_u32 s{sT}, s{sT}, {WOB}
    v_add_u32 v{t3}, s{sT}, v{t3}
    s_movk_i32 s71, 20480
    s_cmp_eq_u32 s64, 3
    s_cselect_b32 s68, {-3*20480}, s71
    s_cmp_eq_u32 s64, 2
    s_cselect_b32 s69, {-3*20480}, s71
    s_cmp_eq_u32 s64, 1
    s_cselect_b32 s70, {-3*20480}, s71
    v_lshrrev_b32 v{t0}, 2, v{t0}
    v_mul_u32_u24 v{wm[1]}, 20, v{t2}
    v_lshl_add_u32 v{wm[1]}, v{t1}, 2, v{wm[1]}
    v_add_u32 v{wm[1]}, v{wm[1]}, v{t0}
    v_lshl_add_u32 v{wm[0]}, v{wm[1]}, 7, v{t3}
    v_bfe_u32 v{wm[1]}, v{wm[1]}, 1, 2
    v_lshl_add_u32 v{wm[0]}, v{wm[1]}, 5, v{wm[0]}
    v_mul_u32_u24 v{wx[1]}, 80, v{t2}
    v_lshl_add_u32 v{wx[1]}, v{t1}, 1, v{wx[1]}
    v_lshrrev_b32 v{wx[2]}, 1, v{t0}
    v_mul_u32_u24 v{wx[2]}, 20, v{wx[2]}
    v_and_b32 v{t0}, 1, v{t0}
    v_add3_u32 v{wx[1]}, v{wx[1]}, v{wx[2]}, v{t0}
    v_add_u32 v{wx[1]}, 16, v{wx[1]}
    v_lshl_add_u32 v{wx[0]}, v{wx[1]}, 7, v{t3}
    v_bfe_u32 v{wx[1]}, v{wx[1]}, 1, 2
    v_lshl_add_u32 v{wx[0]}, v{wx[1]}, 5, v{wx[0]}
    """)
    for nt in range(1, 4):
        a.e(f"v_xor_b32 v{wm[nt]}, {32*nt}, v{wm[0]}\n v_xor_b32 v{wx[nt]}, {32*nt}, v{wx[0]}")
    mk_srd(a, SRD_D, P_OUT, 2048 * 2560)
    def wrd(k):
        P, j = divmod(k, 5); b = k % NW
        if j < 4:
            o = [f"ds_read_b64_tr_b16 {v(WF[b][nt]+2*i,2)}, v{wm[nt]} offset:{5120*j+1024*i}" for nt in range(4) for i in range(2)]
        else:
            o = [f"ds_read_b64_tr_b16 {v(WF[b][nt]+2*i,2)}, v{wx[nt]} offset:{5120*i}" for nt in range(4) for i in range(2)]
            if P < 3: o[7] += "".join(f"\n v_add_u32 v{r}, s{68+P}, v{r}" for r in wm + wx)
        return o
    for k in range(NW - 1): a.e("\n".join(wrd(k)))
    if "steps" not in EX: stamp(a, 7)
    if "wpoll" in EX:
        poll(a, SRD_FL, vfl, t0, slp=int(os.environ.get("GSL", "2")))
    else:
        nw = a.newlab("g2nw")
        a.e(f"""
        s_cmp_lg_u32 s{S_WAVE}, {os.environ.get("PW", "4")}
        s_cbranch_scc1 {nw}
        s_lshl_b32 s{sT}, s{S_RT}, 5
        s_add_u32 s{sT}, s{sT}, 64
        v_and_b32 v{vfl}, 31, v{L}
        v_add_u32 v{vfl}, s{sT}, v{vfl}
        v_lshlrev_b32 v{vfl}, 7, v{vfl}
        """)
        poll(a, SRD_FL, vfl, t0, slp=int(os.environ.get("GSL", "1")))
        a.lab(nw)
        a.e("s_barrier")
    if "steps" not in EX: stamp(a, 8)
    def oload(k):
        if "g3nold" in EX: return
        P, j = divmod(k, 5)
        if j == 0: a.e(f"s_add_u32 s66, s64, {P}\n s_and_b32 s66, s66, 3\n s_mul_i32 s66, s66, 10240\n s_add_u32 s66, s66, s{sU}\n s_add_u32 s67, s66, 5120")
        if j < 4: a.e(f"buffer_load_dwordx4 {v(O[k],4)}, v{vo}, {srd(SRD_B)}, s{66 + j//2} offen offset:{2048*(j&1)} {OLD}")
        else: a.e(f"buffer_load_dwordx4 {v(O[k],4)}, v{vx}, {srd(SRD_B)}, s66 offen {OLD}")
    for k in range(LA): oload(k)
    a.e("s_waitcnt lgkmcnt(0)")
    for k in range(20):
        a.e(f"s_waitcnt vmcnt({min(19, k+LA-1)-k}) lgkmcnt({min(15, 8*(min(19, k+NW-2)-k))})")
        GP_ = os.environ.get("GPR", "5")
        if GP_ == "5" and k % 5 == 0: a.e(f"s_setprio {3 - k // 5}")
        if GP_ == "b" and k in (4, 8, 12, 16): a.e("s_barrier")
        if GP_ == "b2" and k in (2, 4, 6, 8, 10, 12, 14, 16, 18): a.e("s_barrier")
        F = wrd(k + NW - 1) if k + NW - 1 < 20 else []
        if "g3nods" in EX: F = []
        for nt in range(4):
            if "g3nomf" not in EX: a.e(f"{MF} {v(ACC[nt],4)}, {v(WF[k%NW][nt],4)}, {v(O[k],4)}, {'0' if k == 0 else v(ACC[nt],4)}")
            a.e("\n".join(F[2*nt:2*nt+2]))
        if k + LA < 20: oload(k + LA)
    if "steps" not in EX: stamp(a, 9)
    a.e("s_nop 4")
    for nt in range(4):
        c = ACC[nt]
        a.e(f"v_cvt_pk_bf16_f32 v{D+2*nt}, v{c}, v{c+1}\n v_cvt_pk_bf16_f32 v{D+2*nt+1}, v{c+2}, v{c+3}")
    a.e("s_nop 1")
    for nt in (0, 2):
        a.e(f"v_permlane16_swap_b32 v{D+2*nt}, v{D+2*nt+2}\n v_permlane16_swap_b32 v{D+2*nt+1}, v{D+2*nt+3}")
    for nt in (0, 2):
        a.e(f"buffer_store_dwordx4 {v(D+2*nt,4)}, v{vst}, {srd(SRD_D)}, s{sSO} offen offset:{32*nt} {OSTB}")
    return ra.hi

def build(path):
    hdr = open("cdna_kernels/%s.s.ref" % NAME).read().split("; Override")[0]
    a = Asm()
    a.raw('.amdgcn_target "amdgcn-amd-amdhsa--gfx950"\n.text')
    a.raw(f".globl {KN}\n.p2align 8\n.type {KN},@function"); a.lab(KN)
    a.e(f"""
    s_and_b32 s3, s2, {os.environ.get("CPM", "0xf0")}
    s_cmp_lg_u32 s3, 0x80
    s_cbranch_scc1 L_NOPF
    s_getpc_b64 s[4:5]
    v_lshlrev_b32 v2, 7, v0
    v_min_u32 v2, L_END-{KN}-128, v2
    global_load_dword v252, v2, s[4:5]
    """)
    a.lab("L_NOPF")
    a.e(f"s_cmp_ge_u32 s2, 256\n s_cbranch_scc1 L_END")
    stamp_init(a); stamp(a, 0)
    a.e(f"""
    s_load_dwordx16 s[8:23], s[0:1], 0
    s_load_dwordx8 s[24:31], s[0:1], 64
    v_lshrrev_b32 v2, 6, v0
    v_and_b32 v{L}, 63, v0
    v_readfirstlane_b32 s{S_WAVE}, v2
    s_and_b32 s{S_XI}, s2, 7
    s_lshr_b32 s{S_J}, s2, 3
    s_lshr_b32 s6, s{S_XI}, 1
    s_lshl_b32 s6, s6, 2
    s_and_b32 s7, s{S_J}, 3
    s_add_u32 s{S_RT}, s6, s7
    s_and_b32 s4, s{S_XI}, 1
    s_mul_i32 s{S_GC}, s4, 5
    s_cmp_ge_u32 s{S_J}, 16
    s_cbranch_scc1 L_A
    s_lshr_b32 s6, s{S_J}, 2
    s_add_u32 s{S_GC}, s{S_GC}, s6
    s_lshl_b32 s4, s4, 2
    s_add_u32 s{S_G}, s4, s6
    s_cmp_lt_u32 s{S_WAVE}, 4
    s_cbranch_scc1 L_BC
    """)
    b_loader(a)
    a.lab("L_A")
    a.e(f"""
    s_add_u32 s{S_GC}, s{S_GC}, 4
    s_sub_u32 s6, s{S_J}, 24
    s_lshl_b32 s6, s6, 3
    s_lshl_b32 s4, s{S_XI}, 6
    s_add_u32 s6, s6, s4
    s_lshl_b32 s7, s7, 2
    s_lshl_b32 s4, s{S_XI}, 4
    s_add_u32 s7, s7, s4
    s_add_u32 s7, s7, 512
    s_cmp_ge_u32 s{S_J}, 24
    s_cselect_b32 s{S_P2}, 8, 4
    s_cselect_b32 s{S_CB}, s6, s7
    s_cmp_ge_u32 s{S_J}, 24
    s_cbranch_scc1 L_A1
    """)
    prefetcher(a)
    a.e(f"s_cmp_ge_u32 s{S_J}, 20\n s_cbranch_scc1 L_CONV")
    mk_srd(a, SRD_B, P_WS, T_BYTES, off=WS_PQ)
    a.e(f"s_cmp_lt_u32 s{S_WAVE}, 4\n s_cbranch_scc1 L_JB\n s_waitcnt vmcnt(0)\n s_call_b64 s[72:73], L_WO")
    a.lab("L_JB")
    a.e("s_waitcnt vmcnt(0)\n s_barrier\n s_branch L_G2")
    a.lab("L_A1")
    h3 = a1(a)
    a.lab("L_CONV")
    h5 = conv(a)
    a.lab("L_BC")
    h1 = b_compute(a)
    a.lab("L_WO")
    wo_dma(a)
    a.e("s_setpc_b64 s[72:73]")
    a.lab("L_G2")
    h4 = g2(a)
    a.lab("L_FIN")
    stamp_flush(a, 0)
    a.lab("L_END")
    a.e("s_endpgm")
    print("vgprs", h1, h3, h4, h5, file=sys.stderr)
    desc = f""".section .rodata,"a"
.p2align 6
.amdhsa_kernel {KN}
  .amdhsa_next_free_vgpr 256
  .amdhsa_next_free_sgpr 102
  .amdhsa_accum_offset 256
  .amdhsa_group_segment_fixed_size 0
  .amdhsa_kernarg_size 96
  .amdhsa_user_sgpr_count 2
  .amdhsa_user_sgpr_kernarg_segment_ptr 1
  .amdhsa_system_sgpr_workgroup_id_x 1
.end_amdhsa_kernel
"""
    open(path, "w").write(hdr + f"; @launch grid=(256,1,1) block=(512,1,1) lds={LDS_BYTES}\n" + a.text() + desc)
if __name__ == "__main__":
    build(sys.argv[1])
```

```python
import sys
from asmlib import *
NAME = "concat_heads__ssm_conv_h3__linear_attn_block__prompt"
KN = NAME + "_kernel"
EX = set(os.environ.get("EX", "").split(","))
ROTR = int(os.environ.get("ROTR", "0"), 16); ROTC = int(os.environ.get("ROTC", "0"), 16)
OST = os.environ.get("OSTA", "")
OSTB = os.environ.get("OSTB", "sc1")

T_BYTES = 640 * 4096
WS_UT, WS_PQ = 0, T_BYTES
WS_KV = 2 * T_BYTES
GB = 8960
WS_FL = WS_KV + 8 * GB + 2048
assert WS_FL % 128 == 0
WS_END = WS_FL + 1024 * 128
S_WG, S_WAVE = 2, 3
P_Q, P_K, P_V, P_SH, P_H, P_D, P_X, P_W, P_WO, P_OUT, P_DBG, P_WS = 8, 10, 12, 14, 16, 18, 20, 22, 24, 26, 28, 30
SRD_A, SRD_B, SRD_C, SRD_D, SRD_FL = 32, 36, 40, 44, 48
S_RT, S_G, S_GC, S_CB, S_P2, S_ASLOT, S_XI, S_J = 52, 53, 54, 55, 56, 57, 58, 59
L = 1
NB = 2048 * 1280

XST, WBASE, WST, NST = 16384, 49152, 20480, 3
HI = WBASE + NST * WST
W2B = 2688
QBASE, QST = HI, 4 * W2B
IMG, IMGP = QBASE + NST * QST, 9216
HB, HP, H_O = 0, 8320, 4160
UB, UP = 8 * HP, 4672
A_KB, A_VB = UB + 5120, UB + 5120 + 40960
WOB = 2 * XST
KVI, RED = WOB + 81920, 0
ND = int(os.environ.get("ND", "2"))
xsl = lambda st: (st + 1) % NST
qsl = lambda st: (st + 2) % NST
assert KVI + 3520 <= QBASE + QST and ND <= 2
TB, TP = UB + 8 * UP, 2112
LDS_BYTES = max(A_VB + 40960, IMG + 2 * IMGP)
assert UB + 8 * UP <= HI and RED + 32768 <= LDS_BYTES <= 163840

def mk_srd(a, srd, ptr, nbytes, off=0, off_sreg=None):
    if off_sreg is not None:
        a.e(f"s_add_u32 s{srd}, s{ptr}, s{off_sreg}\n s_addc_u32 s{srd+1}, s{ptr+1}, 0")
    elif off:
        a.e(f"s_add_u32 s{srd}, s{ptr}, {off}\n s_addc_u32 s{srd+1}, s{ptr+1}, 0")
    else:
        a.e(f"s_mov_b32 s{srd}, s{ptr}\n s_mov_b32 s{srd+1}, s{ptr+1}")
    a.e(f"s_mov_b32 s{srd+2}, {nbytes}\n s_mov_b32 s{srd+3}, 0x20000")
def srd(x): return f"s[{x}:{x+3}]"
def mk_fl(a): mk_srd(a, SRD_FL, P_WS, 1024 * 128, off=WS_FL)

SPIN_MAX = 400000 if "noat" not in EX else 2
def poll(a, srdn, vo, t, scnt=74, slp=1):
    lp, dn = a.newlab("poll"), a.newlab("polld")
    a.e(f"s_mov_b32 s{scnt}, {SPIN_MAX}")
    a.lab(lp)
    a.e(f"""
    buffer_load_dword v{t}, v{vo}, {srd(srdn)}, 0 offen sc1
    s_waitcnt vmcnt(0)
    v_cmp_ne_u32 vcc, 1, v{t}
    s_sub_u32 s{scnt}, s{scnt}, 1
    s_cbranch_scc1 {dn}
    s_cmp_eq_u64 vcc, 0
    s_cbranch_scc1 {dn}
    s_sleep {slp}
    s_branch {lp}
    """)
    a.lab(dn)
def poll_z(a, vz, vt):
    mk_srd(a, SRD_D, P_DBG, 256)
    a.e(f"v_and_b32 v{vz}, 7, v{L}\n v_lshlrev_b32 v{vz}, 2, v{vz}")
    poll(a, SRD_D, vz, vt)
def set_flag(a, sslot, v0_, v1_, wave=0):
    sk = a.newlab("nofl")
    if wave is not None: a.e(f"s_cmp_lg_u32 s{S_WAVE}, {wave}\n s_cbranch_scc1 {sk}")
    a.e(f"""
    s_lshl_b32 s74, s{sslot}, 7
    v_mov_b32 v{v0_}, 0
    v_mov_b32 v{v1_}, 1
    s_mov_b64 exec, 1
    buffer_store_dword v{v1_}, v{v0_}, {srd(SRD_FL)}, s74 offen sc1
    s_mov_b64 exec, -1
    """)
    a.lab(sk)

def h_load(a, H, vl16, srdn, soff):
    for j in range(4):
        a.e(f"buffer_load_dwordx4 {v(H+4*j,4)}, v{vl16}, {srd(srdn)}, s{soff} offen offset:{1024*j}")
def h_stage(a, H, G, sslot, vl16, va, st):
    a.e(f"s_mul_i32 s{st}, s{sslot}, {HP}\n v_add_u32 v{va}, s{st}, v{vl16}")
    a.e(f"v_readfirstlane_b32 s{st}, v{H}")
    for j in range(4):
        a.e(f"ds_write_b128 v{va}, {v(H+4*j,4)} offset:{HB+32+1024*j}")
    for j in range(4):
        a.e(f"v_mov_b32_dpp v{G+4*j+3}, v{H+4*((j+1)&3)} wave_rol:1 row_mask:0xf bank_mask:0xf")
    for j in range(4):
        a.e(f"v_mov_b32_dpp v{G+4*j+3}, v{H+4*j} wave_shl:1 row_mask:0xf bank_mask:0xf")
    Z = G + 16
    for i in range(4): a.e(f"v_mov_b32 v{Z+i}, 0")
    a.e(f"s_lshl_b32 s{st}, s{st}, 16\n s_mov_b64 exec, 3\n ds_write_b128 v{va}, {v(Z,4)} offset:{HB}\n s_mov_b64 exec, -1")
    for j in range(4):
        h, g_ = H + 4 * j, G + 4 * j
        for i in range(3): a.e(f"v_alignbit_b32 v{g_+i}, v{h+i+1}, v{h+i}, 16")
        a.e(f"v_alignbit_b32 v{g_+3}, v{g_+3}, v{h+3}, 16")
        a.e(f"ds_write_b128 v{va}, {v(g_,4)} offset:{HB+H_O+32+1024*j}")
    a.e(f"v_writelane_b32 v{Z+3}, s{st}, 1\n s_mov_b64 exec, 3\n ds_write_b128 v{va}, {v(Z,4)} offset:{HB+H_O}\n s_mov_b64 exec, -1")
def conv_sload(a):
    a.e(f"""
    s_add_u32 s6, s{S_CB}, s{S_WAVE}
    s_min_u32 s6, s6, 639
    s_lshl_b32 s6, s6, 1
    s_and_b32 s6, s6, 0xfffffffc
    s_load_dword s5, s[{P_D}:{P_D+1}], s6
    """)

def b_loader(a):
    ra = RA(2)
    t0, t1, t2, t3 = [ra.a() for _ in range(4)]
    vx = [ra.a() for _ in range(4)]
    vw = [ra.a() for _ in range(5)]
    vq = [ra.a() for _ in range(3)]
    l16, la = ra.a(), ra.a()
    LD = ra.a(12, 4); Z = ra.a(2, 2)
    sLW, sSX, sSW, sM0X, sM0W, sM0Q, sSQ, sT, sK = 60, 61, 62, 63, 64, 65, 66, 67, 68
    a.c("B loader wave")
    a.e(f"""
    s_setprio 3
    v_lshrrev_b32 v{t0}, 3, v{L}
    v_lshrrev_b32 v{t1}, 4, v{L}
    v_and_b32 v{t2}, 7, v{L}
    v_mul_u32_u24 v{t0}, 1280, v{t0}
    v_xor_b32 v{t1}, v{t1}, v{t2}
    s_sub_u32 s{sLW}, s{S_WAVE}, 4
    s_lshl_b32 s{sT}, s{S_RT}, 2
    s_add_u32 s{sT}, s{sT}, s{sLW}
    s_mul_i32 s{sSX}, s{sT}, {32*1280}
    s_lshl_b32 s{sM0X}, s{sLW}, 12
    v_lshl_add_u32 v{vx[0]}, v{t1}, 4, v{t0}
    v_xor_b32 v{vx[1]}, 64, v{vx[0]}
    v_add_u32 v{vx[2]}, {2*(8*1280-1024)}, v{vx[0]}
    v_add_u32 v{vx[3]}, {3*(8*1280-1024)}, v{vx[1]}
    v_add_u32 v{vx[1]}, {1*(8*1280-1024)}, v{vx[1]}
    s_movk_i32 s4, 1200
    s_movk_i32 s5, -80
    s_movk_i32 s69, 3840
    """)
    for x in range(320): assert (x * 3277) >> 16 == x // 20
    for x in range(20): assert (x * 52) >> 8 == x // 5
    def woff(j):
        sub = 1024 * j if j < 4 else 0
        o = []; src = L
        if j: o.append(f"v_add_u32 v{t0}, {64*j}, v{L}"); src = t0
        o += [f"v_mul_u32_u24 v{t1}, 3277, v{src}", f"v_lshrrev_b32 v{t1}, 16, v{t1}",
              f"v_mul_u32_u24 v{t2}, 20, v{t1}", f"v_sub_u32 v{t0}, v{src}, v{t2}"]
        if j == 2: o += [f"v_lshrrev_b32 v{t2}, 2, v{t1}", f"v_and_b32 v{t2}, 2, v{t2}", f"v_xor_b32 v{t0}, v{t0}, v{t2}"]
        if j > 2: o += [f"v_xor_b32 v{t0}, 2, v{t0}"]
        o += [f"v_mul_u32_u24 v{t2}, 52, v{t0}", f"v_lshlrev_b32 v{t0}, 4, v{t0}",
              f"v_mad_u32_u24 v{t0}, v{t1}, s69, v{t0}", f"v_bfe_u32 v{t3}, v{t2}, 8, 1",
              f"v_lshrrev_b32 v{t2}, 9, v{t2}", f"v_mad_u32_u24 v{t0}, v{t3}, s4, v{t0}"]
        if sub: o += [f"v_mad_i32_i24 v{t0}, v{t2}, s5, v{t0}", f"v_subrev_u32 v{vw[j]}, {sub}, v{t0}"]
        else: o += [f"v_mad_i32_i24 v{vw[j]}, v{t2}, s5, v{t0}"]
        a.e("\n".join(o))
    def issue_x(st):
        a.e(f"s_add_u32 m0, s{sM0X}, {xsl(st) * XST}\n s_nop 0")
        for j in range(4):
            a.e(f"buffer_load_dwordx4 v{vx[j]}, {srd(SRD_A)}, s{sSX} offen offset:{1024*j} lds")
    def adv():
        a.e(f"s_add_u32 s{sSX}, s{sSX}, 128\n s_add_u32 s{sSW}, s{sSW}, {64*3840}")
    for x in range(80): assert (x * 205) >> 11 == x // 10
    def qoff(j):
        a.e(f"""
        v_add_u32 v{t0}, {64*j}, v{L}
        v_cmp_le_u32 vcc, 88, v{t0}
        v_subrev_u32 v{t1}, 88, v{t0}
        v_min_u32 v{t0}, 79, v{t0}
        v_min_u32 v{t1}, 79, v{t1}
        v_cndmask_b32 v{t0}, v{t0}, v{t1}, vcc
        v_cndmask_b32 v{t2}, 0, 8, vcc
        v_mul_u32_u24 v{t1}, 205, v{t0}
        v_lshrrev_b32 v{t1}, 11, v{t1}
        v_add_u32 v{t2}, v{t2}, v{t1}
        v_mul_u32_u24 v{t1}, 10, v{t1}
        v_sub_u32 v{t0}, v{t0}, v{t1}
        v_lshlrev_b32 v{t0}, 4, v{t0}
        v_mad_u32_u24 v{t0}, v{t2}, s69, v{t0}
        v_subrev_u32 v{vq[j]}, {1024*j}, v{t0}
        """)
    def issue_kv(st, first=99):
        a.e(f"s_add_u32 m0, s{sM0W}, {(st % NST) * WST}\n s_nop 0")
        for j in range(5):
            if j >= first: woff(j)
            if j == 4: a.e(f"s_add_u32 m0, s{sM0W}, {(st % NST) * WST + 4096}\n s_nop 0")
            a.e(f"buffer_load_dwordx4 v{vw[j]}, {srd(SRD_B)}, s{sSW} offen offset:{1024*(j&3)} lds")
    def issue_q(st, first=99):
        a.e(f"s_add_u32 m0, s{sM0Q}, {qsl(st) * QST}\n s_sub_u32 s{sSQ}, s{sSW}, 1280")
        for j in range(3):
            if j >= first: qoff(j)
            if j == 2: a.e("s_mov_b32 exec_hi, 0xff")
            a.e(f"buffer_load_dwordx4 v{vq[j]}, {srd(SRD_B)}, s{sSQ} offen offset:{1024*j} lds")
        a.e("s_mov_b32 exec_hi, -1")
    def issue(st):
        issue_x(st); issue_kv(st); issue_q(st); adv()
    a.e(f"""
    s_mul_i32 s{sSW}, s{S_G}, 160
    s_add_u32 s{sSW}, s{sSW}, 1280
    s_mul_i32 s{sT}, s{sLW}, {16*3840}
    s_add_u32 s{sSW}, s{sSW}, s{sT}
    s_mul_i32 s{sM0W}, s{sLW}, 5120
    s_add_u32 s{sM0W}, s{sM0W}, {WBASE}
    s_mul_i32 s{sM0Q}, s{sLW}, {W2B}
    s_add_u32 s{sM0Q}, s{sM0Q}, {QBASE}
    """)
    def srds():
        a.e("s_waitcnt lgkmcnt(0)")
        mk_srd(a, SRD_A, P_X, NB); mk_srd(a, SRD_B, P_W, 640 * 3840)
    lb, lj = a.newlab("ordB"), a.newlab("ordJ")
    if "noord" not in EX:
        a.e(f"s_add_u32 s{sT}, s{S_RT}, s{S_G}\n s_and_b32 s{sT}, s{sT}, 1\n s_cbranch_scc1 {lb}")
    qoff(0); srds(); issue_x(0); issue_q(0, 1); issue_kv(0, 0)
    a.e(f"s_branch {lj}")
    a.lab(lb)
    woff(0); srds(); issue_kv(0, 1); issue_x(0); issue_q(0, 0)
    a.lab(lj)
    a.e(f"s_add_u32 s{sSX}, s{sSX}, 128\n s_add_u32 s{sSW}, s{sSW}, {64*3840}")
    PCS = [int(c) for c in os.environ.get("PCS", "133443333")]
    assert sum(PCS) == 27
    cnt = [4, 5, 3]
    pos = [3]
    def pieces(n, lim):
        for _ in range(n):
            st, k = divmod(pos[0], 3)
            assert st <= lim
            if k == 0: issue_x(st); a.e(f"s_add_u32 s{sSX}, s{sSX}, 128")
            if k == 1: issue_kv(st)
            if k == 2: issue_q(st); a.e(f"s_add_u32 s{sSW}, s{sSW}, {64*3840}")
            pos[0] += 1
    pieces(PCS[0], 2)
    stamp(a, 1)
    for nb in range(10):
        assert pos[0] >= 3 * (nb + 1)
        young = sum(cnt[i % 3] for i in range(3 * (nb + 1), pos[0]))
        a.e(f"s_waitcnt vmcnt({young})\n s_barrier")
        if nb == 5:
            mk_srd(a, SRD_D, P_DBG, 256)
            a.e(f"v_and_b32 v{l16}, 7, v{L}\n v_lshlrev_b32 v{l16}, 2, v{l16}")
            a.e(f"buffer_load_dword v{la}, v{l16}, {srd(SRD_D)}, 0 offen sc1")
            assert pos[0] == 21
        if nb + 1 < len(PCS): pieces(PCS[nb + 1], nb + 2)
        if nb == 4: mk_fl(a)
        if nb == 8:
            zok = a.newlab("zok")
            a.e(f"s_setprio 0\n v_cmp_ne_u32 vcc, 1, v{la}\n s_nop 1\n s_cmp_eq_u64 vcc, 0\n s_cbranch_scc1 {zok}")
            poll_z(a, t1, t2)
            a.lab(zok)
    stamp(a, 2)
    a.e("s_barrier")
    a.e("s_call_b64 s[72:73], L_WO")
    stamp(a, 3)
    a.e("s_barrier\n s_waitcnt vmcnt(0)\n s_barrier\n s_branch L_G2")

def phi4(regs, tmps, sLOG, sEPS):
    o = []
    if "nopk" not in EX:
        r, t = regs[0], tmps[0]
        o += [f"v_pk_mul_f32 {v(t+i,2)}, {v(r+i,2)}, s[66:67]" for i in (0, 2)]
        o += [f"v_exp_f32_e64 v{t+i}, v{t+i} clamp" for i in range(4)]
        o += [f"v_max_f32 v{r+i}, s{sEPS}, v{r+i}" for i in range(4)]
        o += [f"v_pk_add_f32 {v(r+i,2)}, {v(r+i,2)}, {v(t+i,2)}" for i in (0, 2)]
        return o
    for r, t in zip(regs, tmps): o.append(f"v_mul_f32 v{t}, s{sLOG}, v{r}")
    for r, t in zip(regs, tmps): o.append(f"v_exp_f32_e64 v{t}, v{t} clamp")
    for r, t in zip(regs, tmps): o.append(f"v_max_f32 v{r}, s{sEPS}, v{r}")
    for r, t in zip(regs, tmps): o.append(f"v_add_f32 v{r}, v{r}, v{t}")
    return o

def b_compute(a):
    if "steps" in EX:
        def stamp2(a, i): pass
    else:
        stamp2 = stamp
    ra = RA(2)
    lr, g, t0, t1, t2 = [ra.a() for _ in range(5)]
    xa = [ra.a(), ra.a()]
    wa = [ra.a() for _ in range(5)]
    ad = [ra.a() for _ in range(6)]
    wb = [ra.a(), ra.a()]; xb = [ra.a(), ra.a()]
    ka, kx = ra.a(), [ra.a(), ra.a()]
    at = [ra.a() for _ in range(4)]
    l16, la = ra.a(), ra.a()
    ix = ra.a(4, 4)
    XF = [[ra.a(4, 4) for _ in range(4)] for _ in range(2)]
    WF = [[ra.a(4, 4) for _ in range(5)] for _ in range(2)]
    QF = [ra.a(4, 4) for _ in range(5)]
    ACC = [[ra.a(4, 4) for _ in range(5)] for _ in range(4)]
    QA = [[ra.a(4, 4) for _ in range(5)] for _ in range(2)]
    sRH, sCH, sT, sLOG, sEPS, sSO = 60, 61, 62, 63, 64, 65
    MF = "v_mfma_f32_16x16x32_bf16"; M32 = "v_mfma_f32_32x32x16_bf16"
    a.c("B compute wave")
    a.e(f"""
    s_lshr_b32 s{sRH}, s{S_WAVE}, 1
    s_and_b32 s{sCH}, s{S_WAVE}, 1
    s_mov_b32 s{sLOG}, {f32(1.4426950408889634)}
    s_mov_b32 s66, s{sLOG}
    s_mov_b32 s67, s{sLOG}
    s_mov_b32 s{sEPS}, {f32(1e-6)}
    v_and_b32 v{lr}, 15, v{L}
    v_lshrrev_b32 v{g}, 4, v{L}
    s_lshl_b32 s{sT}, s{S_WAVE}, 12
    v_lshrrev_b32 v{t0}, 1, v{lr}
    v_xor_b32 v{t0}, v{t0}, v{g}
    v_lshlrev_b32 v{t0}, 4, v{t0}
    v_lshl_add_u32 v{t0}, v{lr}, 7, v{t0}
    v_add_u32 v{xa[0]}, s{sT}, v{t0}
    v_xor_b32 v{xa[1]}, 64, v{xa[0]}
    v_xor_b32 v{xb[0]}, 0x1000, v{xa[0]}
    v_xor_b32 v{xb[1]}, 0x1000, v{xa[1]}
    v_lshrrev_b32 v{t0}, 2, v{lr}
    v_lshl_add_u32 v{t0}, v{g}, 3, v{t0}
    v_mul_u32_u24 v{t0}, 320, v{t0}
    v_add_u32 v{t0}, {WBASE}, v{t0}
    v_and_b32 v{t1}, 1, v{g}
    v_lshlrev_b32 v{t1}, 5, v{t1}
    s_mul_i32 s{sT}, s{sCH}, 160
    v_and_b32 v{t2}, 3, v{lr}
    """)
    for t in range(5):
        w = wa[t]
        if t < 4:
            a.e(f"v_lshl_add_u32 v{w}, v{t2}, 3, s{sT}\n v_add_u32 v{w}, {40*t}, v{w}")
        else:
            a.e(f"v_mul_u32_u24 v{w}, 40, v{t2}\n v_add_u32 v{w}, s{sT}, v{w}\n v_add_u32 v{w}, 32, v{w}")
        a.e(f"v_xor_b32 v{w}, v{w}, v{t1}\n v_add_u32 v{w}, v{w}, v{t0}")
    a.e(f"""
    v_lshrrev_b32 v{t0}, 1, v{g}
    v_mul_u32_u24 v{t0}, {W2B}, v{t0}
    v_and_b32 v{t1}, 1, v{g}
    v_mul_u32_u24 v{t1}, 1408, v{t1}
    v_add3_u32 v{t0}, v{t0}, v{t1}, 32
    v_lshrrev_b32 v{t1}, 2, v{lr}
    v_mul_u32_u24 v{t1}, 160, v{t1}
    v_add_u32 v{t0}, v{t0}, v{t1}
    v_add_u32 v{t0}, {QBASE-32}, v{t0}
    v_lshl_add_u32 v{wb[0]}, v{t2}, 3, v{t0}
    v_mul_u32_u24 v{t1}, 40, v{t2}
    v_add3_u32 v{wb[1]}, v{t0}, v{t1}, 32
    """)
    a.e(f"v_mov_b32 v{t0}, s{sEPS}\n v_cmp_gt_u32 vcc, 8, v{lr}")
    a.e(f"""
    s_mul_i32 s{sT}, s{sRH}, {IMGP}
    s_mul_i32 s{sSO}, s{sCH}, {GB//2}
    s_add_u32 s{sT}, s{sT}, s{sSO}
    s_add_u32 s{sT}, s{sT}, {IMG}
    """)
    for rt in range(4):
        for i in range(4):
            a.e(f"v_cndmask_b32 v{ACC[rt][4]+i}, 0, v{t0}, vcc")
        for i in range(8): a.e(f"v_mov_b32 v{ACC[rt][0]+i}, s{sEPS}")
    for i in range(40): a.e(f"v_mov_b32 v{QA[0][0]+i}, s{sEPS}")
    z4 = XF[0][0]
    a.e(f"v_mov_b32 v{z4}, 1.0")
    for i in range(1, 8): a.e(f"v_mov_b32 v{z4+i}, 0")
    a.e(f"""
    v_min_u32 v{t0}, 143, v0
    v_lshlrev_b32 v{t0}, 6, v{t0}
    v_add_u32 v{t0}, {IMG+48}, v{t0}
    ds_write_b128 v{t0}, {v(z4,4)}
    ds_write_b128 v{t0}, {v(z4+4,4)} offset:{IMGP}
    """)
    for x in range(128): assert (x * 171) >> 9 == x // 3
    a.e(f"""
    v_cmp_eq_u32 vcc, 0, v{lr}
    v_add_u32 v{t0}, 8, v{lr}
    v_add_u32 v{t1}, 4, v{lr}
    v_cndmask_b32 v{t0}, v{t0}, 20, vcc
    v_cndmask_b32 v{t1}, v{t1}, 20, vcc
    """)
    for i, row in enumerate((lr, t0, t1)):
        for k in range(2):
            d = ad[2 * i + k]
            a.e(f"v_mad_u32_u24 v{d}, v{row}, 5, {'v%d' % g if k == 0 else '4'}")
            a.e(f"v_mul_u32_u24 v{t2}, 171, v{d}\n v_lshrrev_b32 v{t2}, 9, v{t2}\n v_add_u32 v{d}, v{d}, v{t2}\n v_lshl_add_u32 v{d}, v{d}, 4, s{sT}")
    a.e(f"""
    v_lshlrev_b32 v{at[0]}, 2, v0
    v_add_u32 v{at[1]}, 4096, v{at[0]}
    v_add_u32 v{at[2]}, 8192, v{at[0]}
    v_add_u32 v{at[3]}, {IMG}, v{at[0]}
    v_lshlrev_b32 v{l16}, 4, v{L}
    v_and_b32 v{t0}, 31, v{L}
    v_lshlrev_b32 v{t1}, 2, v{lr}
    s_mov_b32 s{sT}, 0x54325410
    v_lshrrev_b32 v{t1}, v{t1}, s{sT}
    v_and_b32 v{t1}, 15, v{t1}
    v_add_u32 v{t1}, 16, v{t1}
    v_cmp_lt_u32 vcc, 23, v{t0}
    s_mov_b32 s{sT}, {KVI}
    s_nop 0
    v_cndmask_b32 v{t1}, v{t1}, 21, vcc
    v_cmp_gt_u32 vcc, 16, v{t0}
    v_lshrrev_b32 v{t2}, 5, v{L}
    s_nop 0
    v_cndmask_b32 v{t1}, v{t1}, v{t0}, vcc
    v_mad_u32_u24 v{t1}, v{t1}, 40, s{sT}
    v_lshl_add_u32 v{ka}, v{t2}, 4, v{t1}
    v_add_u32 v{t1}, 32, v{t1}
    v_cmp_eq_u32 vcc, 0, v{t2}
    v_mov_b32 v{t0}, {KVI+840}
    s_nop 0
    v_cndmask_b32 v{kx[0]}, v{t0}, v{t1}, vcc
    v_cndmask_b32 v{kx[1]}, v{t1}, v{t0}, vcc
    s_mul_i32 s{sT}, s{S_WAVE}, 880
    s_add_u32 s{sT}, s{sT}, {KVI}
    v_and_b32 v{t0}, 3, v{L}
    v_lshl_add_u32 v{t0}, v{t0}, 3, s{sT}
    v_lshrrev_b32 v{t1}, 2, v{L}
    v_mad_u32_u24 v{la}, v{t1}, 24, v{t0}
    s_mul_i32 s{sT}, s{S_G}, {GB}
    s_add_u32 s{sT}, s{sT}, {WS_KV}
    s_waitcnt lgkmcnt(0)
    """)
    mk_srd(a, SRD_C, P_WS, GB, off_sreg=sT)
    a.e(f"s_mul_i32 s{sSO}, s{S_WAVE}, {GB//4}\n s_add_u32 s{sT}, s{sT}, s{sSO}")
    mk_srd(a, SRD_A, P_WS, GB // 4, off_sreg=sT)
    mk_srd(a, SRD_B, P_WS, T_BYTES, off=WS_PQ)
    mk_fl(a)
    def reads(st, ks):
        sl = st % NST
        xs = [f"ds_read_b128 {v(XF[ks][rt],4)}, v{xa[ks] if rt < 2 else xb[ks]} offset:{xsl(st)*XST + (rt&1)*2048}" for rt in range(4)]
        ws = [f"ds_read_b64_tr_b16 {v(WF[ks][t]+2*h,2)}, v{wa[t]} offset:{sl*WST + ks*10240 + h*1280}" for t in range(5) for h in range(2)]
        qs = [f"ds_read_b64_tr_b16 {v(QF[t]+2*h,2)}, v{wb[t>>2]} offset:{qsl(st)*QST + ks*2*W2B + h*640 + 40*(t&3)}" for t in range(5) for h in range(2)]
        if st >= 10 - ND: qs = []
        return xs + ws[:6] + qs + ws[6:]
    def mfq(ks):
        return [f"{MF} {v(QA[rt][t],4)}, {v(QF[t],4)}, {v(XF[ks][rt],4)}, {v(QA[rt][t],4)}" for t in range(5) for rt in range(2)]
    def mfkv(ks, first=False):
        o = []
        for rt in range(4):
            for t in range(5):
                d = ACC[rt][t]
                o.append(f"{MF} {v(d,4)}, {v(XF[ks][rt],4)}, {v(WF[ks][t],4)}, {'0' if (first and t in (2, 3)) else v(d,4)}")
        return o
    def mfmas(st, ks): return (mfq(ks) if st < 10 - ND else []) + mfkv(ks, st == 0 and ks == 0)
    def spread(M, F):
        out = []; n = len(M); fi = 0
        for i, m in enumerate(M):
            out.append(m)
            tgt = (len(F) * (i + 1) + n - 1) // n
            out += F[fi:tgt]; fi = tgt
        return out
    for st in range(10):
        a.c(f"step {st}")
        a.e("s_barrier")
        if (st == 0 or "steps" in EX) and "steps2" not in EX: stamp(a, 1 + st)
        if st == 0:
            a.e("\n".join(reads(0, 0)))
        else:
            a.e("\n".join(interleave2(mfmas(st - 1, 1), reads(st, 0), 1)))
        a.e("s_waitcnt lgkmcnt(0)")
        a.e("\n".join(interleave2(mfmas(st, 0), reads(st, 1), 1)))
        a.e("s_waitcnt lgkmcnt(0)")
    a.e("s_barrier")
    stamp2(a, 2)
    tm = [ix + i for i in range(4)]
    last = mfkv(1) + (mfq(1) if ND == 0 else [])
    names = ["T0", "T1", "T2", "T3", "T4A", "T4B"]
    k0 = [XF[0][i] for i in range(4)] + [WF[0][0], WF[0][1]]
    k1 = [WF[0][2], WF[0][3], WF[0][4], XF[1][0], XF[1][1], XF[1][2]]
    P = {n: [k0[i], k1[i]] for i, n in enumerate(names)}
    V = [f"v_cmp_gt_u32 vcc, 8, v{lr}", f"v_mov_b32 v{t0}, 0x3f803f80"]
    for rt in range(4):
        k, h = rt >> 1, rt & 1
        for t, n in ((2, "T2"), (3, "T3"), (4, "T4B")):
            r = ACC[rt][t]; d = P[n][k] + 2 * h
            V += [f"v_cvt_pk_bf16_f32 v{d}, v{r}, v{r+1}", f"v_cvt_pk_bf16_f32 v{d+1}, v{r+2}, v{r+3}"]
        d = P["T4B"][k] + 2 * h
        V += [f"v_cndmask_b32 v{d}, v{d}, v{t0}, vcc", f"v_cndmask_b32 v{d+1}, v{d+1}, v{t0}, vcc"]
        for t, n in ((0, "T0"), (1, "T1"), (4, "T4A")):
            r = [ACC[rt][t] + i for i in range(4)]; d = P[n][k] + 2 * h
            V += phi4(r, tm, sLOG, sEPS)
            V += [f"v_cvt_pk_bf16_f32 v{d}, v{r[0]}, v{r[1]}", f"v_cvt_pk_bf16_f32 v{d+1}, v{r[2]}, v{r[3]}"]
    prods = [("T0", "T2"), ("T0", "T4B"), ("T4A", "T2"), ("T1", "T3"), ("T1", "T4B"), ("T4A", "T3"), ("T4A", "T4B")]
    R = [ACC[0][0] + 4 * i for i in range(7)]
    kvm = lambda k: [f"{MF} {v(R[i],4)}, {v(P[x][k],4)}, {v(P[y][k],4)}, {'0' if k == 0 else v(R[i],4)}" for i, (x, y) in enumerate(prods)]
    half = 2 + (len(V) - 2) // 2
    a.e("\n".join(last[:10] + interleave2(last[10:], V[:half + 4], 2)))
    a.e("\n".join(interleave2(kvm(0), V[half + 4:], 8)))
    a.e("s_nop 1")
    a.e("\n".join(kvm(1)))
    a.e("s_nop 3")
    HBY = GB // 4
    def wr(i, addr, off, lo, hi):
        a.e(f"s_mov_b32 exec_lo, {lo:#x}\n s_mov_b32 exec_hi, {hi:#x}")
        a.e(f"ds_write_b128 v{addr}, {v(R[i],4)} offset:{off}")
    a.e(f"ds_write_b128 v{ad[0]}, {v(R[0],4)}")
    a.e(f"ds_write_b128 v{ad[0]}, {v(R[3],4)} offset:{HBY}")
    wr(1, ad[2], 0, 0x0f010f01, 0x0f010f01)
    wr(4, ad[4], HBY, 0xf001f001, 0xf001f001)
    wr(2, ad[1], 0, 0x0000ffff, 0)
    wr(5, ad[1], HBY, 0xffff0000, 0)
    wr(6, ad[3], 0, 0x00000f01, 0)
    wr(6, ad[5], HBY, 0xf0010000, 0)
    a.e("s_mov_b64 exec, -1\n s_waitcnt lgkmcnt(0)\n s_barrier")
    stamp2(a, 3)
    fr = ACC[0][0]
    for n in range(9):
        a.e(f"ds_read2st64_b32 {v(fr+2*n,2)}, v{at[3]} offset0:{4*n} offset1:{IMGP//256+4*n}")
    AT = []
    for n in range(9):
        AT += [f"v_add_f32 v{fr+2*n}, v{fr+2*n}, v{fr+2*n+1}",
               f"buffer_atomic_add_f32 v{fr+2*n}, v{at[n>>2]}, {srd(SRD_C)}, 0 offen offset:{1024*(n&3)}"]
    DB = [(XF[0][0], WF[0][0]), (XF[1][0], WF[1][0]), (XF[0][2], QF[0]), (XF[1][2], ACC[3][0])]
    def drd(u):
        if u >= 2 * ND: return []
        st, ks = 10 - ND + u // 2, u & 1; xr, wr_ = DB[u]
        return ([f"ds_read_b128 {v(xr+4*rt,4)}, v{xa[ks]} offset:{xsl(st)*XST + rt*2048}" for rt in range(2)] +
                [f"ds_read_b64_tr_b16 {v(wr_+4*t+2*h,2)}, v{wb[t>>2]} offset:{qsl(st)*QST + ks*2*W2B + h*640 + 40*(t&3)}" for t in range(5) for h in range(2)])
    def dmf(u):
        xr, wr_ = DB[u]
        return [f"{MF} {v(QA[rt][t],4)}, {v(wr_+4*t,4)}, {v(xr+4*rt,4)}, {v(QA[rt][t],4)}" for t in range(5) for rt in range(2)]
    a.e("s_waitcnt lgkmcnt(0)")
    a.e("\n".join(spread(AT, drd(0) + drd(1))))
    for u in range(0, 2 * ND, 2):
        a.e("s_waitcnt lgkmcnt(0)")
        M = dmf(u) + dmf(u + 1)
        a.e("\n".join(spread(M[:14], drd(u + 2) + drd(u + 3)) + M[14:]))
    EXT = XF[0][0]
    KF = [EXT + 4 * h for h in range(4)]
    KX = EXT + 16
    OB = [EXT + 28 + 4 * t for t in range(5)]
    OX = EXT + 48; rc = EXT + 52; LD = EXT + 56
    CT = [ACC[0][0] + 16 + 16 * h for h in range(4)]
    a.e(f"""
    s_lshl_b32 s{sT}, s{S_RT}, 2
    s_add_u32 s{sT}, s{sT}, s{S_WAVE}
    s_lshl_b32 s{sT}, s{sT}, 3
    s_add_u32 s{sT}, s{sT}, s{S_G}
    s_mul_i32 s{sSO}, s{sT}, 5120
    s_add_u32 s{sRH}, s{sSO}, 4096
    s_add_u32 s{sT}, s{sT}, 64
    s_mul_i32 s{sCH}, s{S_WAVE}, 880
    s_add_u32 s{sCH}, s{sCH}, {KVI}
    v_lshl_add_u32 v{t0}, v{L}, 3, s{sCH}
    """)
    for i in (2, 3, 8, 9): a.e(f"v_mov_b32 v{KX+i}, 0")
    a.e(f"s_mov_b64 exec, 31\n ds_write_b64 v{t0}, {v(KX+2,2)} offset:840\n s_mov_b64 exec, -1")
    def phiq(t):
        o = []; ob = OB[t]
        for h in range(2):
            r = [QA[h][t] + i for i in range(4)]
            o += phi4(r, tm, sLOG, sEPS)
            o += [f"v_cvt_pk_bf16_f32 v{ob+2*h}, v{r[0]}, v{r[1]}", f"v_cvt_pk_bf16_f32 v{ob+2*h+1}, v{r[2]}, v{r[3]}"]
        o += ["s_nop 1", f"v_permlane16_swap_b32 v{ob}, v{ob+2}", f"v_permlane16_swap_b32 v{ob+1}, v{ob+3}"]
        return o
    def omf(h):
        c = v(CT[h], 16)
        return [f"{M32} {c}, {v(KX+6*(h>>1)+2*(h&1),4)}, {v(OB[4],4)}, 0", "s_nop 0",
                f"{M32} {c}, {v(KF[h],4)}, {v(OB[h],4)}, {c}"]
    def norm(h):
        c = CT[h]; d = OB[h]
        o = [f"v_add_f32 v{rc}, s{sEPS}, v{c+10}", f"v_rcp_f32 v{rc}, v{rc}", "s_nop 0"]
        o += [f"v_mul_f32 v{c+i}, v{c+i}, v{rc}" for i in range(10)]
        o += [f"v_cvt_pk_bf16_f32 v{d+i}, v{c+2*i}, v{c+2*i+1}" for i in range(4)]
        o += [f"buffer_store_dwordx4 {v(d,4)}, v{l16}, {srd(SRD_B)}, s{sSO} offen offset:{1024*h} sc1"]
        o += [f"v_cvt_pk_bf16_f32 v{OX+h}, v{c+8}, v{c+9}"]
        return o
    def kvload():
        for n in range(3):
            a.e(f"buffer_load_dwordx4 {v(LD+4*n,4)}, v{l16}, {srd(SRD_A)}, 0 offen offset:{1024*n} sc1")
    KP = int(os.environ.get("KP", "6"))
    for i in range(5):
        if i == KP: kvload()
        a.e("\n".join(phiq(i)))
    stamp2(a, 4)
    lf, lv, ld = a.newlab("kvf"), a.newlab("kvv"), a.newlab("kvd")
    a.e(f"s_mov_b32 s69, {f32(16.0)}\n s_mov_b32 s70, 0x88888888\n s_mov_b32 s71, 0x88888888\n s_mov_b32 s74, {SPIN_MAX}")
    if KP < 5: a.e(f"s_branch {lv}")
    if KP == 6: a.e("s_waitcnt vmcnt(0)")
    a.lab(lf)
    kvload()
    a.lab(lv)
    a.e(f"""
    s_waitcnt vmcnt(0)
    v_min_f32 v{t0}, v{LD}, v{LD+4}
    v_cmp_neq_f32 s[4:5], s69, v{LD+8}
    v_cmp_neq_f32 vcc, s69, v{t0}
    s_sub_u32 s74, s74, 1
    s_cbranch_scc1 {ld}
    s_and_b32 s4, s4, 0x888
    s_and_b64 vcc, vcc, s[70:71]
    s_or_b32 vcc_lo, vcc_lo, s4
    s_cmp_eq_u64 vcc, 0
    s_cbranch_scc1 {ld}
    s_sleep {os.environ.get("KSL", "2")}
    s_branch {lf}
    """)
    a.lab(ld)
    for n in range(3):
        r = LD + 4 * n
        a.e(f"v_cvt_pk_bf16_f32 v{r}, v{r}, v{r+1}\n v_cvt_pk_bf16_f32 v{r+1}, v{r+2}, v{r+3}")
    a.e("s_mov_b32 exec_lo, 0x77777777\n s_mov_b32 exec_hi, 0x77777777")
    for n in range(3):
        if n == 2: a.e("s_mov_b64 exec, 0x777")
        a.e(f"ds_write_b64 v{la}, {v(LD+4*n,2)} offset:{384*n}")
    a.e("s_mov_b64 exec, -1\n s_waitcnt lgkmcnt(0)\n s_barrier")
    stamp2(a, 5)
    if STAMPS: a.e("s_waitcnt lgkmcnt(0)")
    for h in range(4):
        a.e(f"ds_read_b64 {v(KX+6*(h>>1)+4*(h&1),2)}, v{kx[h>>1]} offset:{880*h}")
        a.e(f"ds_read_b64 {v(KF[h],2)}, v{ka} offset:{880*h}\n ds_read_b64 {v(KF[h]+2,2)}, v{ka} offset:{880*h+8}")
    for h in range(3):
        a.e(f"s_waitcnt lgkmcnt({9-3*h})")
        a.e("\n".join(omf(h)))
    a.e("s_waitcnt lgkmcnt(0)\n s_nop 3")
    N0 = norm(0)
    a.e("\n".join(N0[:6] + omf(3)[:1] + N0[6:12] + omf(3)[2:] + N0[12:] + norm(1) + norm(2) + norm(3)))
    a.e(f"buffer_store_dwordx4 {v(OX,4)}, v{l16}, {srd(SRD_B)}, s{sRH} offen sc1")
    stamp2(a, 6)
    a.e("s_waitcnt vmcnt(0)")
    set_flag(a, sT, t0, t1, wave=None)
    a.e("s_branch L_G2")
    return ra.hi

PF0 = int(os.environ.get("PF0", "1")); AH = int(os.environ.get("AH", "0"))
def pf_lanes(a, vW, vX, t0, t1, sU, sC):
    for x in range(64): assert (x * 52) >> 8 == x // 5
    a.e(f"""
    v_min_u32 v{t0}, 59, v{L}
    v_mul_u32_u24 v{t1}, 52, v{t0}
    v_lshrrev_b32 v{t1}, 8, v{t1}
    v_mul_u32_u24 v{vX}, 5, v{t1}
    v_sub_u32 v{t0}, v{t0}, v{vX}
    v_lshlrev_b32 v{t0}, 7, v{t0}
    s_movk_i32 s{sU}, 1280
    v_mad_u32_u24 v{vW}, v{t1}, s{sU}, v{t0}
    v_mul_u32_u24 v{vX}, 1280, v{L}
    s_and_b32 s{sC}, s{S_XI}, 1
    s_mul_i32 s{sC}, s{sC}, 640
    """)
def pf_one(a, sT, sA, sB, sU, sC, vW, vX, dst):
    for x in range(300): assert (x * 2731) >> 16 == x // 24
    lx, le = a.newlab("px"), a.newlab("pe")
    a.e(f"""
    s_mul_i32 s{sA}, s{sT}, 2731
    s_lshr_b32 s{sA}, s{sA}, 16
    s_mul_i32 s{sB}, s{sA}, 24
    s_sub_u32 s{sB}, s{sT}, s{sB}
    s_add_u32 s{sA}, s{sA}, {PF0}
    s_cmp_lt_u32 s{sB}, 8
    s_cbranch_scc1 {lx}
    s_sub_u32 s{sB}, s{sB}, 8
    s_lshl_b32 s{sB}, s{sB}, 2
    s_lshl_b32 s{sA}, s{sA}, 6
    s_add_u32 s{sA}, s{sA}, s{sB}
    s_mul_i32 s{sA}, s{sA}, 3840
    s_add_u32 s{sA}, s{sA}, s{sC}
    buffer_load_dword v{dst}, v{vW}, {srd(SRD_B)}, s{sA} offen
    s_branch {le}
    """)
    a.lab(lx)
    a.e(f"""
    s_lshr_b32 s{sU}, s{S_XI}, 1
    s_lshl_b32 s{sU}, s{sU}, 3
    s_add_u32 s{sB}, s{sB}, s{sU}
    s_mul_i32 s{sB}, s{sB}, {64*1280}
    s_lshl_b32 s{sA}, s{sA}, 7
    s_add_u32 s{sA}, s{sA}, s{sB}
    buffer_load_dword v{dst}, v{vX}, {srd(SRD_A)}, s{sA} offen
    """)
    a.lab(le)

def a1(a):
    ra = RA(2)
    t0, t1, t2 = [ra.a() for _ in range(3)]
    vo = [ra.a() for _ in range(5)]
    lr, g, ad, adh, so_u, otap = [ra.a() for _ in range(6)]
    taps = [ra.a(2) for _ in range(3)]
    KR = [ra.a(6, 2) for _ in range(6)]; VR = [ra.a(4, 2) for _ in range(6)]
    W = [ra.a(5) for _ in range(3)]; U = ra.a(8); O = [ra.a(4, 4) for _ in range(6)]; X = ra.a(4)
    vz = ra.a()
    sTI, sCH, sSO, sM0, sT, sSH, sU, sCG = 60, 61, 62, 63, 64, 65, 66, 67
    a.c("A1: 32 rows x 320 channels")
    a.e(f"""
    s_sub_u32 s{sT}, s{S_J}, 24
    s_lshl_b32 s{sT}, s{sT}, 3
    s_add_u32 s{sT}, s{sT}, s{S_XI}
    s_lshr_b32 s{sTI}, s{sT}, 1
    s_and_b32 s{sCH}, s{sT}, 1
    s_lshl_b32 s{S_ASLOT}, s{sCH}, 5
    s_add_u32 s{S_ASLOT}, s{S_ASLOT}, s{sTI}
    s_mov_b32 s{sCG}, s{S_WAVE}
    s_lshl_b32 s{sT}, s{sTI}, 3
    s_add_u32 s{sT}, s{sT}, s{S_WAVE}
    s_mul_i32 s{sSO}, s{sT}, {8*1280}
    s_mul_i32 s{sT}, s{sCH}, 640
    s_add_u32 s{sSO}, s{sSO}, s{sT}
    s_mul_i32 s{sM0}, s{S_WAVE}, 5120
    s_and_b32 s{sT}, s{S_WAVE}, 1
    s_lshl_b32 s{sT}, s{sT}, 2
    """)
    for x in range(320): assert (x * 1639) >> 16 == x // 40
    a.e(f"s_movk_i32 s{sU}, 1280")
    def koff(j):
        sub = 1024 * j if j < 4 else 0
        o = []; src = L
        if j: o.append(f"v_add_u32 v{t0}, {64*j}, v{L}"); src = t0
        o += [f"v_mul_u32_u24 v{t1}, 1639, v{src}", f"v_lshrrev_b32 v{t1}, 16, v{t1}",
              f"v_mul_u32_u24 v{t2}, 40, v{t1}", f"v_sub_u32 v{t0}, v{src}, v{t2}",
              f"v_and_or_b32 v{t2}, v{t1}, 2, s{sT}", f"v_xor_b32 v{t0}, v{t0}, v{t2}", f"v_lshlrev_b32 v{t0}, 4, v{t0}"]
        if sub: o += [f"v_mad_u32_u24 v{t0}, v{t1}, s{sU}, v{t0}", f"v_subrev_u32 v{vo[j]}, {sub}, v{t0}"]
        else: o += [f"v_mad_u32_u24 v{vo[j]}, v{t1}, s{sU}, v{t0}"]
        a.e("\n".join(o))
    koff(0); koff(1)
    a.e("s_waitcnt lgkmcnt(0)")
    mk_srd(a, SRD_A, P_K, NB); mk_srd(a, SRD_B, P_V, NB)
    def dma1(srdn, lbase, so, j):
        a.e(f"s_add_u32 m0, s{sM0}, {lbase + (4096 if j == 4 else 0)}\n s_nop 0")
        a.e(f"buffer_load_dwordx4 v{vo[j]}, {srd(srdn)}, s{so} offen offset:{1024*(j&3)} lds")
    for j in range(5):
        if j >= 2: koff(j)
        dma1(SRD_A, A_KB, sSO, j); dma1(SRD_B, A_VB, sSO, j)
        if j == 1:
            mk_srd(a, SRD_D, P_SH, 640 * 8)
            a.e(f"""
            v_and_b32 v{lr}, 15, v{L}
            s_mul_i32 s{sSH}, s{sCH}, 320
            v_add_u32 v{so_u}, s{sSH}, v{lr}
            v_lshlrev_b32 v{otap}, 3, v{so_u}
            s_lshl_b32 s{sSH}, s{sCG}, 7
            """)
            for n in range(3):
                a.e(f"buffer_load_dwordx2 {v(taps[n],2)}, v{otap}, {srd(SRD_D)}, s{sSH} offen offset:{1024*n}")
    lab = a.newlab("a1_nohalo")
    a.e(f"""
    s_cmp_lg_u32 s{S_WAVE}, 7
    s_cbranch_scc1 {lab}
    s_sub_u32 s{sSH}, s{sSO}, {64*1280}
    s_cmp_eq_u32 s{sTI}, 0
    s_cselect_b32 s{sSH}, {NB}, s{sSH}
    """)
    for j in (2, 3, 4): dma1(SRD_A, A_KB - 8 * 5120, sSH, j)
    a.lab(lab)
    NH = 0
    mk_srd(a, SRD_A, P_H, T_BYTES)
    a.e(f"s_add_u32 s68, s{S_CB}, s{S_WAVE}\n s_lshl_b32 s68, s68, 12\n v_lshlrev_b32 v244, 4, v{L}")
    assert AH == 0
    if AH:
        NH = 1
        nhp = a.newlab("nohelp")
        pf_lanes(a, 240, 241, t0, t1, 68, 69)
        mk_srd(a, SRD_A, P_X, NB); mk_srd(a, SRD_B, P_W, 640 * 3840)
        a.e(f"""
        s_lshl_b32 s70, s{S_WAVE}, 3
        s_add_u32 s70, s70, s{S_J}
        s_sub_u32 s70, s70, 24
        s_min_u32 s70, s70, {AH-1}
        s_add_u32 s70, s70, {24*(10-PF0)-AH}
        s_barrier
        s_cmp_lt_u32 s{S_WAVE}, {AH//8}
        s_cbranch_scc1 {nhp}
        s_mov_b64 exec, 1
        """)
        a.lab(nhp)
        pf_one(a, 70, 71, 72, 68, 69, 240, 241, 244)
        a.e("s_mov_b64 exec, -1")
    mk_srd(a, SRD_D, P_DBG, 256)
    a.e(f"v_and_b32 v{vz}, 7, v{L}\n v_lshlrev_b32 v{vz}, 2, v{vz}")
    mk_srd(a, SRD_C, P_WS, T_BYTES)
    mk_fl(a)
    conv_sload(a)
    a.e(f"""
    v_lshrrev_b32 v{g}, 4, v{L}
    v_lshrrev_b32 v{t0}, 2, v{lr}
    v_lshl_add_u32 v{t1}, v{g}, 3, v{t0}
    v_mul_u32_u24 v{ad}, 640, v{t1}
    v_and_b32 v{t2}, 3, v{lr}
    v_lshl_add_u32 v{ad}, v{t2}, 3, v{ad}
    v_add_u32 v{ad}, {A_KB}, v{ad}
    v_lshrrev_b32 v{t0}, 1, v{t0}
    v_and_b32 v{t1}, 1, v{g}
    v_lshl_or_b32 v{t0}, v{t1}, 1, v{t0}
    v_xor_b32 v{t0}, s{sCG}, v{t0}
    v_lshlrev_b32 v{t0}, 5, v{t0}
    v_xor_b32 v{t1}, 64, v{t0}
    v_add_u32 v{adh}, v{t1}, v{ad}
    v_subrev_u32 v{adh}, {4*640}, v{adh}
    v_add_u32 v{ad}, v{t0}, v{ad}
    v_and_b32 v{t0}, 0xfffffff7, v{so_u}
    v_lshlrev_b32 v{t0}, 12, v{t0}
    s_lshl_b32 s{sT}, s{sTI}, 7
    v_lshlrev_b32 v{t1}, 4, v{g}
    v_add_u32 v{t1}, s{sT}, v{t1}
    v_and_b32 v{t2}, 8, v{lr}
    v_lshl_add_u32 v{t1}, v{t2}, 3, v{t1}
    v_sub_u32 v{so_u}, 4080, v{t1}
    v_add_u32 v{so_u}, v{so_u}, v{t0}
    s_lshl_b32 s{sU}, s{sCG}, 16
    """)
    def tapprep(n):
        tp, w = taps[n], W[n]
        a.e(f"""
        v_alignbit_b32 v{w}, v{tp}, v{tp}, 16
        v_alignbit_b32 v{w+1}, v{tp+1}, v{tp+1}, 16
        v_and_b32 v{w+2}, 0xffff0000, v{tp}
        v_and_b32 v{w+3}, 0xffff, v{tp}
        v_and_b32 v{w+4}, 0xffff, v{tp+1}
        v_or_b32 v{w+2}, v{w+2}, v{w+4}
        v_and_b32 v{w+4}, 0xffff0000, v{tp+1}
        """)
    a.e(f"s_waitcnt vmcnt({6+NH})")
    for n in range(3): tapprep(n)
    stamp(a, 1)
    a.e(f"s_waitcnt vmcnt({NH}) lgkmcnt(0)\n s_barrier")
    a.e(f"buffer_load_dword v{vz}, v{vz}, {srd(SRD_D)}, 0 offen sc1")
    if "hearly" in EX:
        h_load(a, 208, 244, SRD_A, 68)
        a.e("s_setprio 1")
    stamp(a, 2)
    if STAMPS: a.e("s_waitcnt lgkmcnt(0)")
    def rd(u):
        o = 256 * (u >> 1) + (u & 1) * 32 * 640
        return [f"ds_read_b64_tr_b16 {v(KR[u],2)}, v{adh} offset:{o}",
                f"ds_read_b64_tr_b16 {v(KR[u]+2,2)}, v{ad} offset:{o}",
                f"ds_read_b64_tr_b16 {v(KR[u]+4,2)}, v{ad} offset:{o+2560}",
                f"ds_read_b64_tr_b16 {v(VR[u],2)}, v{ad} offset:{A_VB-A_KB+o}",
                f"ds_read_b64_tr_b16 {v(VR[u]+2,2)}, v{ad} offset:{A_VB-A_KB+o+2560}"]
    a.e("\n".join(rd(0) + rd(1) + rd(2)))
    done = a.newlab("a1_done")
    for u in range(6):
        k, w, ob = KR[u], W[u >> 1], O[u]
        if u == 4: a.e(f"s_cmp_ge_u32 s{S_WAVE}, 4\n s_cbranch_scc1 {done}")
        a.e(f"s_waitcnt lgkmcnt({5*(min(5, u + 2) - u)})")
        if u + 3 < 6:
            a.e("\n".join(rd(u + 3)))
        for m in range(4):
            a.e(f"v_dot2_f32_bf16 v{U+2*m}, v{k+m}, v{w+4}, 0")
            a.e(f"v_dot2_f32_bf16 v{U+2*m+1}, v{k+m+1}, v{w+1}, 0")
        for m in range(4):
            a.e(f"v_dot2_f32_bf16 v{U+2*m}, v{k+m+1}, v{w+2}, v{U+2*m}")
            a.e(f"v_dot2_f32_bf16 v{U+2*m+1}, v{k+m+2}, v{w}, v{U+2*m+1}")
        for m in range(4):
            a.e(f"v_dot2_f32_bf16 v{U+2*m}, v{k+m+2}, v{w+3}, v{U+2*m}")
        for m in range(4):
            x = X + 2 * (m & 1)
            a.e(f"""
            v_lshlrev_b32 v{x}, 16, v{VR[u]+m}
            v_and_b32 v{x+1}, 0xffff0000, v{VR[u]+m}
            v_mul_f32 v{x+1}, v{x+1}, v{U+2*m+1}
            v_mul_f32 v{x}, v{x}, v{U+2*m}
            v_cvt_pk_bf16_f32 v{ob+3-m}, v{x+1}, v{x}
            """)
        if u & 1:
            lo, hi = O[u - 1], O[u]
            for i in range(4): a.e(f"v_mov_b32 v{X+i}, v{lo+i}")
            for i in (3, 2, 1, 0): a.e(f"v_mov_b32_dpp v{lo+i}, v{hi+i} row_ror:8 row_mask:0xf bank_mask:0xc")
            for i in range(4): a.e(f"v_mov_b32_dpp v{hi+i}, v{X+i} row_ror:8 row_mask:0xf bank_mask:0x3")
            a.e(f"buffer_store_dwordx4 {v(lo,4)}, v{so_u}, {srd(SRD_C)}, s{sU} offen sc1")
            a.e(f"s_add_u32 s{sT}, s{sU}, {8*4096}")
            a.e(f"buffer_store_dwordx4 {v(hi,4)}, v{so_u}, {srd(SRD_C)}, s{sT} offen sc1")
            a.e(f"s_add_u32 s{sU}, s{sU}, {8<<16}")
    a.lab(done)
    a.e("s_waitcnt lgkmcnt(0)")
    stamp(a, 3)
    if "hearly" in EX:
        a.e("s_setprio 0\n s_waitcnt vmcnt(4)")
        h_stage(a, 208, 224, S_WAVE, 244, t2, sT)
    nz = a.newlab("a1_nz")
    a.e(f"s_waitcnt vmcnt(0)\n v_cmp_ne_u32 vcc, 1, v{vz}\n s_nop 1\n s_cmp_eq_u64 vcc, 0\n s_cbranch_scc1 {nz}")
    poll_z(a, t0, t1)
    a.lab(nz)
    a.e("s_barrier")
    stamp(a, 4)
    set_flag(a, S_ASLOT, t0, t1)
    return ra.hi

def q_touch(a, sN, sA, sB, vX):
    a.e(f"s_lshl_b32 s{sN}, s{S_WAVE}, 3\n s_add_u32 s{sN}, s{sN}, s{S_J}\n s_sub_u32 s{sN}, s{sN}, 16")
    nq, q2 = a.newlab("pnq"), a.newlab("pq2")
    a.e(f"""
    s_cmp_lt_u32 s{sN}, 32
    s_cbranch_scc1 {q2}
    s_xor_b32 s{sA}, s{sN}, 48
    s_mul_i32 s{sA}, s{sA}, {64*1280}
    s_lshl_b32 s{sB}, s{S_XI}, 7
    s_add_u32 s{sA}, s{sA}, s{sB}
    buffer_load_dword v250, v{vX}, {srd(SRD_B)}, s{sA} offen
    s_branch {nq}
    """)
    a.lab(q2)
    a.e(f"""
    s_and_b32 s{sA}, s{S_XI}, 1
    s_cbranch_scc1 {nq}
    s_cmp_lt_u32 s{sN}, 16
    s_cbranch_scc1 {nq}
    s_and_b32 s{sB}, s{S_P2}, 2
    s_lshl_b32 s{sB}, s{sB}, 3
    s_xor_b32 s{sA}, s{sN}, s{sB}
    s_mul_i32 s{sA}, s{sA}, {64*1280}
    s_lshl_b32 s{sB}, s{S_CB}, 1
    s_add_u32 s{sA}, s{sA}, s{sB}
    buffer_load_dword v250, v{vX}, {srd(SRD_B)}, s{sA} offen
    """)
    a.lab(nq)

def prefetcher(a):
    vW, vX, vQ, vO, t0, t1, z4 = 2, 3, 4, 5, 6, 7, 8
    sN, sA, sB, sC, sT, sU = 60, 61, 62, 63, 64, 65
    a.c("L2 prefetch of this XCD's GEMM operands in K order (speed only) + housekeeping")
    pf_lanes(a, vW, vX, t0, t1, sU, sC)
    a.e(f"""
    s_lshl_b32 s{sN}, s{S_WAVE}, 3
    s_add_u32 s{sN}, s{sN}, s{S_J}
    s_sub_u32 s{sN}, s{sN}, 16
    s_waitcnt lgkmcnt(0)
    """)
    mk_fl(a)
    nz, nt, nc = a.newlab("nozero"), a.newlab("notlb"), a.newlab("nocode")
    a.e(f"s_cmp_lg_u32 s{sN}, 63\n s_cbranch_scc1 {nz}")
    a.e(f"s_mul_i32 s{sT}, s{S_XI}, {GB}\n s_add_u32 s{sT}, s{sT}, {WS_KV}")
    mk_srd(a, SRD_C, P_WS, GB, off_sreg=sT)
    mk_srd(a, SRD_D, P_DBG, 256)
    for i in range(4): a.e(f"v_mov_b32 v{z4+i}, 0")
    a.e(f"""
    v_lshlrev_b32 v{t0}, 4, v{L}
    v_lshlrev_b32 v{t1}, 7, v{L}
    s_lshl_b32 s{sT}, s{S_XI}, 13
    buffer_store_dword v{z4}, v{t1}, {srd(SRD_FL)}, s{sT} offen sc1
    s_add_u32 s{sT}, s{sT}, 0x10000
    buffer_store_dword v{z4}, v{t1}, {srd(SRD_FL)}, s{sT} offen sc1
    s_movk_i32 s{sT}, 4096
    s_movk_i32 s{sU}, 8192
    """)
    for n in range(9):
        a.e(f"buffer_store_dwordx4 {v(z4,4)}, v{t0}, {srd(SRD_C)}, {('0', 's%d' % sT, 's%d' % sU)[n>>2]} offen offset:{1024*(n&3)} sc1")
    a.e(f"""
    s_lshl_b32 s{sT}, s{S_XI}, 2
    v_mov_b32 v{t1}, 1
    s_waitcnt vmcnt(0)
    s_mov_b64 exec, 1
    buffer_store_dword v{t1}, v{t0}, {srd(SRD_D)}, s{sT} offen sc1
    s_mov_b64 exec, -1
    """)
    a.lab(nz)
    a.e(f"s_cmp_lg_u32 s{sN}, 62\n s_cbranch_scc1 {nt}")
    a.e(f"v_lshlrev_b32 v{t1}, 20, v{L}")
    for i, (ptr, nb) in enumerate([(P_WS, WS_END), (P_OUT, 2048 * 2560), (P_Q, NB), (P_WO, 640 * 1280), (P_DBG, 256), (P_H, T_BYTES)]):
        mk_srd(a, SRD_A, ptr, nb)
        a.e(f"buffer_load_dword v{236+i}, v{t1}, {srd(SRD_A)}, 0 offen")
    a.lab(nt)
    mk_srd(a, SRD_A, P_X, NB); mk_srd(a, SRD_B, P_W, 640 * 3840)
    done = a.newlab("pfd")
    NI = 24 * (10 - PF0) - AH
    for m in range((NI + 63) // 64):
        if m and "nopb" not in EX: a.e("s_barrier")
        a.e(f"s_add_u32 s{sT}, s{sN}, {64*m}")
        if 64 * m + 64 > NI: a.e(f"s_cmp_ge_u32 s{sT}, {NI}\n s_cbranch_scc1 {done}")
        pf_one(a, sT, sA, sB, sU, sC, vW, vX, 244 + m)
    a.lab(done)
    a.e("s_barrier")
    if "hearly" not in EX:
        nh = a.newlab("pnh")
        mk_srd(a, SRD_B, P_H, T_BYTES)
        a.e(f"""
        s_cmp_ge_u32 s{sN}, 32
        s_cbranch_scc1 {nh}
        s_and_b32 s{sA}, s{S_XI}, {os.environ.get("HSK", "3")}
        s_cbranch_scc0 {nh}
        s_mul_i32 s{sA}, s{S_XI}, {64*4096}
        s_lshl_b32 s{sB}, s{sN}, 13
        s_add_u32 s{sA}, s{sA}, s{sB}
        v_lshlrev_b32 v{t0}, 7, v{L}
        buffer_load_dword v249, v{t0}, {srd(SRD_B)}, s{sA} offen
        """)
        a.lab(nh)
    mk_srd(a, SRD_A, P_WO, 640 * 1280)
    a.e(f"""
    s_mul_i32 s{sA}, s{sN}, {12*1280}
    s_add_u32 s{sA}, s{sA}, s{sC}
    buffer_load_dword v248, v{vW}, {srd(SRD_A)}, s{sA} offen
    """)
    nqq = a.newlab("pnqq")
    mk_srd(a, SRD_B, P_Q, NB)
    a.e(f"s_and_b32 s{sA}, s{S_XI}, 1\n s_cbranch_scc0 {nqq}")
    q_touch(a, sN, sA, sB, vX)
    a.lab(nqq)
    conv_sload(a)
    stamp(a, 1)
    nz = a.newlab("pnz")
    a.e(f"s_cmp_lg_u32 s{S_WAVE}, 1\n s_cbranch_scc1 {nz}")
    poll_z(a, t0, t1)
    a.lab(nz)
    a.e("s_waitcnt lgkmcnt(0)")

def conv(a):
    ra = RA(2)
    lr, g, t0, t1, t2, aB, aT, vrow, vfl, vrow2, aR = [ra.a() for _ in range(11)]
    aA = [ra.a() for _ in range(4)]
    z4 = ra.a(4, 4); AD = ra.a(4, 4)
    Q = ra.a(16, 4)
    AF = [[ra.a(4, 4) for _ in range(8)] for _ in range(2)]
    BF = [[ra.a(4, 4) for _ in range(8)] for _ in range(2)]
    ACC = [ra.a(4, 4) for _ in range(8)]
    sD, sR, sSO, sT, sOO, sDV, sH, sQO = 60, 61, 62, 63, 64, 65, 66, 67
    fin, idle = a.newlab("conv_fin"), a.newlab("conv_idle")
    a.c("conv")
    if "noconv" in EX: a.e("s_branch L_FIN")
    mk_srd(a, SRD_A, P_WS, T_BYTES); mk_srd(a, SRD_B, P_Q, NB); mk_srd(a, SRD_C, P_OUT, 2048 * 2560)
    def qg(slot, rowoff, nd):
        return [f"s_add_u32 s{sT}, s{sQO}, {rowoff*1280}",
                f"buffer_load_dwordx{nd} {v(Q+slot,nd)}, v{vrow}, {srd(SRD_B)}, s{sT} offen"]
    def qgather(n):
        sk = a.newlab("qs")
        if n >= 2: a.e(f"s_cmp_lg_u32 s{S_P2}, 0\n s_cbranch_scc1 {sk}")
        a.e("\n".join(qg(4 * n, (1024 if n < 2 else 0) + 64 * (n & 1), 4)))
        a.lab(sk)
    a.e(f"""
    v_and_b32 v{lr}, 15, v{L}
    v_lshrrev_b32 v{g}, 4, v{L}
    v_mul_u32_u24 v{vrow}, 1280, v{L}
    s_mul_i32 s{sQO}, s{S_WAVE}, {128*1280}
    s_lshl_b32 s{sOO}, s{sQO}, 1
    s_lshl_b32 s{sT}, s{S_CB}, 1
    s_add_u32 s{sQO}, s{sQO}, s{sT}
    s_add_u32 s{sOO}, s{sOO}, s{sT}
    v_lshlrev_b32 v{vrow2}, 1, v{vrow}
    v_lshrrev_b32 v{aR}, 2, v{lr}
    v_mul_u32_u24 v{aR}, {TP}, v{aR}
    v_and_b32 v{t1}, 3, v{lr}
    v_lshl_add_u32 v{aR}, v{t1}, 3, v{aR}
    v_lshl_add_u32 v{aR}, v{g}, 5, v{aR}
    s_lshl_b32 s{sT}, s{S_WAVE}, 8
    s_add_u32 s{sT}, s{sT}, {TB}
    v_add_u32 v{aR}, s{sT}, v{aR}
    s_add_u32 s{sD}, s{S_CB}, s{S_WAVE}
    s_lshl_b32 s{sSO}, s{sD}, 12
    v_lshlrev_b32 v{t0}, 4, v{L}
    """)
    HH, HG = AF[0][0], BF[0][0]
    mk_srd(a, SRD_D, P_H, T_BYTES)
    nh1, nh2 = a.newlab("nh1"), a.newlab("nh2")
    skip = "" if "hearly" not in EX else f"s_cmp_eq_u32 s{S_P2}, 0\n s_cbranch_scc1 "
    if skip: a.e(skip + nh1)
    h_load(a, HH, t0, SRD_D, sSO)
    a.lab(nh1)
    a.e(f"""
    s_mul_i32 s{sR}, s{S_WAVE}, {UP}
    s_add_u32 s{sR}, s{sR}, {UB}
    s_mul_i32 s{sH}, s{S_WAVE}, {HP}
    s_cmp_ge_u32 s{sD}, 320
    s_cselect_b32 s{sT}, 32, 0
    v_and_b32 v{vfl}, 31, v{L}
    v_add_u32 v{vfl}, s{sT}, v{vfl}
    v_lshlrev_b32 v{vfl}, 7, v{vfl}
    """)
    for i in range(4):
        a.e(f"v_mov_b32 v{z4+i}, 0")
    a.e(f"""
    v_and_b32 v{t1}, 1, v{lr}
    v_cmp_eq_u32 vcc, 1, v{t1}
    v_mov_b32 v{t1}, {HB+H_O}
    v_mov_b32 v{t2}, {HB+2}
    v_cndmask_b32 v{t1}, v{t1}, v{t2}, vcc
    v_lshl_add_u32 v{t1}, v{lr}, 1, v{t1}
    v_lshl_add_u32 v{t1}, v{g}, 4, v{t1}
    v_add_u32 v{aA[0]}, s{sH}, v{t1}
    v_add_u32 v{aA[1]}, 1024, v{aA[0]}
    v_add_u32 v{aA[2]}, 2048, v{aA[0]}
    v_add_u32 v{aA[3]}, 3072, v{aA[0]}
    v_lshlrev_b32 v{t0}, 4, v{L}
    v_add_u32 v{aT}, s{sR}, v{t0}
    s_and_b32 s{sT}, s{sD}, 1
    s_lshl_b32 s{sT}, s{sT}, 4
    s_lshr_b32 s{sDV}, s5, s{sT}
    s_and_b32 s{sDV}, s{sDV}, 0xffff
    v_lshl_add_u32 v{t1}, v{g}, 3, v{lr}
    v_sub_u32 v{t1}, 15, v{t1}
    v_and_b32 v{t2}, 1, v{t1}
    v_lshlrev_b32 v{t2}, 4, v{t2}
    v_lshlrev_b32 v{t2}, v{t2}, s{sDV}
    v_ashrrev_i32 v{t1}, 1, v{t1}
    """)
    for r in range(4):
        a.e(f"v_cmp_eq_u32 vcc, {r}, v{t1}\n s_nop 1\n v_cndmask_b32 v{AD+r}, 0, v{t2}, vcc")
    a.e(f"""
    v_lshlrev_b32 v{t1}, 5, v{lr}
    v_sub_u32 v{aB}, 480, v{t1}
    v_lshl_add_u32 v{aB}, v{g}, 4, v{aB}
    v_add_u32 v{aB}, s{sR}, v{aB}
    """)
    if skip: a.e(skip + nh2)
    a.e("s_waitcnt vmcnt(0)")
    h_stage(a, HH, HG, S_WAVE, t0, t1, sT)
    a.lab(nh2)
    a.e(f"s_mov_b32 exec_hi, 0\n ds_write_b128 v{aT}, {v(z4,4)} offset:4096\n s_mov_b64 exec, -1")
    a.e("s_waitcnt lgkmcnt(0)")
    for i in range(8):
        o0 = 128 * (i & 1)
        a.e(f"ds_read2_b32 {v(AF[0][i],2)}, v{aA[i>>1]} offset0:{o0} offset1:{o0+1}")
        a.e(f"ds_read2_b32 {v(AF[0][i]+2,2)}, v{aA[i>>1]} offset0:{o0+2} offset1:{o0+3}")
    stamp(a, 5)
    npl = a.newlab("nopoll")
    a.e(f"s_cmp_lg_u32 s{S_WAVE}, 1\n s_cbranch_scc1 {npl}")
    poll(a, SRD_FL, vfl, t1, slp=int(os.environ.get("ASL", "2")))
    a.lab(npl)
    a.e("s_barrier")
    stamp(a, 6)
    UR = AF[1][0]
    for j in range(4):
        a.e(f"buffer_load_dwordx4 {v(UR+4*j,4)}, v{t0}, {srd(SRD_A)}, s{sSO} offen offset:{1024*j} sc1")
    for j in range(4):
        a.e(f"s_waitcnt vmcnt({3-j})\n ds_write_b128 v{aT}, {v(UR+4*j,4)} offset:{1024*j}")
    a.e(f"""
    v_lshlrev_b32 v{t1}, 5, v{lr}
    v_lshl_add_u32 v{aT}, v{g}, 3, v{t1}
    s_mul_i32 s{sT}, s{S_WAVE}, {TP}
    s_add_u32 s{sT}, s{sT}, {TB}
    v_add_u32 v{aT}, s{sT}, v{aT}
    """)
    MF = "v_mfma_f32_16x16x32_bf16"
    def rd1(b, slot, i, r):
        o0 = 128 * (i & 1) + 16 * r
        if "fakeA" in EX and i < 4:
            return [f"ds_read_b128 {v(BF[b][slot],4)}, v{aB} offset:{3584 - 512*i + 64*r}",
                    f"ds_read_b64 {v(AF[b][slot],2)}, v{vfl} offset:{512*i+64*r}",
                    f"ds_read_b64 {v(AF[b][slot]+2,2)}, v{vfl} offset:{512*i+64*r+512}"]
        return [f"ds_read_b128 {v(BF[b][slot],4)}, v{aB} offset:{3584 - 512*i + 64*r}",
                f"ds_read2_b32 {v(AF[b][slot],2)}, v{aA[i>>1]} offset0:{o0} offset1:{o0+1}",
                f"ds_read2_b32 {v(AF[b][slot]+2,2)}, v{aA[i>>1]} offset0:{o0+2} offset1:{o0+3}"]
    def reads(it):
        b = it & 1; o = []
        if it < 8:
            for i in range(8): o += rd1(b, i, i, it)
        elif it < 12:
            for k in range(2):
                for i in range(4): o += rd1(b, 4 * k + i, i, 2 * (it - 8) + k)
        return o
    def mf(it):
        b = it & 1; o = []
        if it < 8:
            if it == 0:
                o += [f"{MF} {v(ACC[c],4)}, {v(AD,4)}, {v(BF[b][c],4)}, 0" for c in range(8)]
            for q in range(8):
                for c in range(max(q, 4), 8):
                    o.append(f"{MF} {v(ACC[c],4)}, {v(AF[b][q],4)}, {v(BF[b][c-q],4)}, {v(ACC[c],4)}")
        else:
            for k in range(2):
                for q in range(4):
                    for c in range(q, 4):
                        o.append(f"{MF} {v(ACC[c],4)}, {v(AF[b][4*k+q],4)}, {v(BF[b][4*k+c-q],4)}, {v(ACC[c],4)}")
        return o
    def spread(M, F):
        out = []; n = len(M); fi = 0
        for i, m in enumerate(M):
            out.append(m)
            tgt = (len(F) * (i + 1) + n - 1) // n
            out += F[fi:tgt]; fi = tgt
        return out
    def twrite(half):
        a.e("s_nop 3")
        for c in range(4):
            r = ACC[4 * half + c]
            a.e(f"v_cvt_pk_bf16_f32 v{r}, v{r}, v{r+1}\n v_cvt_pk_bf16_f32 v{r+1}, v{r+2}, v{r+3}")
            a.e(f"ds_write_b64 v{aT}, {v(r,2)} offset:{(1-half)*8*TP + 512*c}")
    Y, X = ACC[4], ACC[6]
    def t_rd(n, nd, toff):
        return [f"ds_read_b64_tr_b16 {v(Y+4*(n&1)+2*k,2)}, v{aR} offset:{toff + 4*TP*k}" for k in range(nd // 2)]
    def t_mul(n, nd, qslot, rowoff):
        o = []
        for i in range(nd):
            y, q, x = Y + 4 * (n & 1) + i, Q + qslot + i, X + 4 * (i & 1)
            o += [f"v_lshlrev_b32 v{x}, 16, v{y}", f"v_and_b32 v{x+1}, 0xffff0000, v{y}",
                  f"v_lshlrev_b32 v{x+2}, 16, v{q}", f"v_and_b32 v{x+3}, 0xffff0000, v{q}",
                  f"v_mul_f32 v{x}, v{x}, v{x+2}", f"v_mul_f32 v{x+1}, v{x+1}, v{x+3}",
                  f"v_cvt_pk_bf16_f32 v{y}, v{x}, v{x+1}"]
        o += [f"s_add_u32 s{sT}, s{sOO}, {rowoff*2560}",
              f"buffer_store_dwordx{nd} {v(Y+4*(n&1),nd)}, v{vrow2}, {srd(SRD_C)}, s{sT} offen {os.environ.get('OSH' if rowoff >= 1024 else 'OSL', '')}"]
        return o
    if "fakeA" in EX: a.e(f"v_lshl_add_u32 v{vfl}, v{L}, 3, s{sH}")
    nqt = a.newlab("nqt")
    a.e(f"s_cmp_eq_u32 s{S_P2}, 0\n s_cbranch_scc1 {nqt}\n s_barrier")
    q_touch(a, 68, 69, 70, vrow)
    a.lab(nqt)
    stamp(a, 7)
    lo4, lj = a.newlab("lo4"), a.newlab("loj")
    a.e(f"s_cmp_eq_u32 s{S_P2}, 2\n s_cbranch_scc1 {lo4}")
    a.e("\n".join(x for x in reads(0) if "b128" in x))
    for it in range(8):
        a.e("s_waitcnt lgkmcnt(0)")
        if "nocprio" not in EX: a.e(f"s_setprio {3 - it // 2}")
        if 3 <= it <= 6 and "nog" not in EX: qgather(it - 3)
        a.e("\n".join(interleave(mf(it), reads(it + 1) if "nord" not in EX else [])))
    twrite(1)
    a.e("s_waitcnt lgkmcnt(0)\n s_barrier")
    stamp(a, 8)
    full = a.newlab("full")
    a.e(f"s_cmp_eq_u32 s{S_P2}, 0\n s_cbranch_scc1 {full}")
    a.e("\n".join(t_rd(0, 4, 0) + t_rd(1, 4, 128)))
    a.e("s_waitcnt vmcnt(0) lgkmcnt(0)")
    a.e("\n".join(t_mul(0, 4, 0, 1024) + t_mul(1, 4, 4, 1024 + 64)))
    a.e("s_branch L_FIN")
    a.lab(full)
    for it in range(8, 12):
        if it > 8: a.e("s_waitcnt lgkmcnt(0)")
        if "nocprio" not in EX: a.e(f"s_setprio {11 - it}")
        F = reads(it + 1)
        if it == 8: F = t_rd(0, 4, 0) + t_rd(1, 4, 128) + F
        if it == 9:
            a.e("s_waitcnt vmcnt(2)")
            F = interleave2(F, t_mul(0, 4, 0, 1024), 1)
        if it == 10: F = interleave2(F, t_mul(1, 4, 4, 1024 + 64), 1)
        a.e("\n".join(spread(mf(it), F)))
    a.e(f"s_branch {lj}")
    a.lab(lo4)
    a.e("\n".join(reads(8)))
    for it in range(8, 12):
        a.e("s_waitcnt lgkmcnt(0)")
        if it >= 10: a.e("\n".join(qg(4 * (it - 8), 64 * (it & 1), 4)))
        M = mf(it)
        if it == 8: M = [f"{MF} {v(ACC[c_],4)}, {v(AD,4)}, {v(BF[0][c_],4)}, 0" for c_ in range(4)] + M
        a.e("\n".join(spread(M, reads(it + 1))))
    a.e("s_waitcnt vmcnt(0)")
    a.lab(lj)
    twrite(0)
    a.e("s_waitcnt lgkmcnt(0)\n s_barrier")
    stamp(a, 9)
    a.e("\n".join(t_rd(0, 4, 8 * TP) + t_rd(1, 4, 8 * TP + 128)))
    a.e("s_waitcnt vmcnt(2) lgkmcnt(0)")
    a.e("\n".join(t_mul(0, 4, 8, 0) + t_mul(1, 4, 12, 64)))
    a.e("s_branch L_FIN")
    return ra.hi

def wo_dma(a):
    t0, t1, t2, vx = 228, 229, 230, [231, 232, 233, 234]
    sSX, sM, sT = 68, 69, 70
    mk_srd(a, SRD_A, P_WO, 640 * 1280)
    a.e(f"""
    v_lshrrev_b32 v{t0}, 3, v{L}
    v_mul_u32_u24 v{t0}, 1280, v{t0}
    v_and_b32 v{t1}, 7, v{L}
    v_lshrrev_b32 v{t2}, 4, v{L}
    v_lshlrev_b32 v{t2}, 1, v{t2}
    v_xor_b32 v{t1}, v{t1}, v{t2}
    v_lshl_add_u32 v{vx[0]}, v{t1}, 4, v{t0}
    v_add_u32 v{vx[1]}, {1*(8*1280-1024)}, v{vx[0]}
    v_add_u32 v{vx[2]}, {2*(8*1280-1024)}, v{vx[0]}
    v_add_u32 v{vx[3]}, {3*(8*1280-1024)}, v{vx[0]}
    s_sub_u32 s{sM}, s{S_WAVE}, 4
    s_mul_i32 s{sSX}, s{sM}, {160*1280}
    s_lshl_b32 s{sT}, s{S_GC}, 7
    s_add_u32 s{sSX}, s{sSX}, s{sT}
    s_mul_i32 s{sM}, s{sM}, 20480
    s_add_u32 s{sM}, s{sM}, {WOB}
    """)
    for q in range(5):
        a.e(f"s_add_u32 m0, s{sM}, {4096*q}\n s_nop 0")
        for j in range(4):
            a.e(f"buffer_load_dwordx4 v{vx[j]}, {srd(SRD_A)}, s{sSX} offen offset:{1024*j} lds")
        a.e(f"s_add_u32 s{sSX}, s{sSX}, {32*1280}")
    mk_srd(a, SRD_B, P_WS, T_BYTES, off=WS_PQ)

def g2(a):
    ra = RA(2)
    t0, t1, t2, t3, g, vo, vx, vfl, vst = [ra.a() for _ in range(9)]
    wm, wx = [ra.a() for _ in range(4)], [ra.a() for _ in range(4)]
    LA = int(os.environ.get("LA", "6"))
    NO = min(20, LA + 2)
    O_ = [ra.a(4, 4) for _ in range(NO)]
    O = [O_[k % NO] for k in range(20)]
    NW = int(os.environ.get("NW", "11"))
    WF = [[ra.a(4, 4) for _ in range(4)] for _ in range(NW)]
    ACC = [ra.a(4, 4) for _ in range(4)]
    D = WF[0][0]
    sT, sSO, sU = 62, 63, 65
    MF = "v_mfma_f32_16x16x32_bf16"
    OLD = os.environ.get("OLD", "sc1")
    a.c("G2")
    a.e(f"""
    s_mul_i32 s60, s{S_GC}, {os.environ.get("WR", "0")}
    s_add_u32 s60, s60, s{S_WAVE}
    s_and_b32 s60, s60, 7
    s_lshl_b32 s{sT}, s{S_RT}, 3
    s_add_u32 s{sT}, s{sT}, s60
    s_mul_i32 s{sSO}, s{sT}, {16*2560}
    s_lshr_b32 s{sT}, s{sT}, 1
    s_lshl_b32 s{sT}, s{sT}, 3
    s_mul_i32 s{sU}, s{sT}, 5120
    s_add_u32 s{sT}, s{sT}, 64
    v_and_b32 v{t0}, 7, v{L}
    v_add_u32 v{vfl}, s{sT}, v{t0}
    v_lshlrev_b32 v{vfl}, 7, v{vfl}
    v_lshrrev_b32 v{g}, 4, v{L}
    v_and_b32 v{t0}, 15, v{L}
    v_and_b32 v{t1}, 1, v{g}
    v_lshrrev_b32 v{t2}, 1, v{g}
    v_and_b32 v{vst}, 7, v{t0}
    v_mul_u32_u24 v{vst}, 2560, v{vst}
    v_and_b32 v{t3}, 8, v{t0}
    v_lshl_add_u32 v{vst}, v{t3}, 3, v{vst}
    v_lshl_add_u32 v{vst}, v{t1}, 5, v{vst}
    v_lshl_add_u32 v{vst}, v{t2}, 4, v{vst}
    s_and_b32 s{sT}, s60, 1
    s_lshl_b32 s{sT}, s{sT}, 8
    v_lshl_add_u32 v{t3}, v{t0}, 4, s{sT}
    v_lshl_add_u32 v{t3}, v{t1}, 9, v{t3}
    v_lshl_add_u32 v{vo}, v{t2}, 10, v{t3}
    v_mul_u32_u24 v{vx}, 5120, v{t2}
    v_add_u32 v{vx}, v{vx}, v{t3}
    v_add_u32 v{vx}, 4096, v{vx}
    s_lshl_b32 s{sT}, s{S_GC}, 7
    s_add_u32 s{sSO}, s{sSO}, s{sT}
    s_add_u32 s{sSO}, s{sSO}, 1280
    v_and_b32 v{t3}, 3, v{L}
    v_lshlrev_b32 v{t3}, 3, v{t3}
    s_and_b32 s64, s{S_GC}, {0 if "norot2" in EX else 3}
    s_mul_i32 s{sT}, s64, 20480
    s_add_u32 s{sT}, s{sT}, {WOB}
    v_add_u32 v{t3}, s{sT}, v{t3}
    s_movk_i32 s71, 20480
    s_cmp_eq_u32 s64, 3
    s_cselect_b32 s68, {-3*20480}, s71
    s_cmp_eq_u32 s64, 2
    s_cselect_b32 s69, {-3*20480}, s71
    s_cmp_eq_u32 s64, 1
    s_cselect_b32 s70, {-3*20480}, s71
    v_lshrrev_b32 v{t0}, 2, v{t0}
    v_mul_u32_u24 v{wm[1]}, 20, v{t2}
    v_lshl_add_u32 v{wm[1]}, v{t1}, 2, v{wm[1]}
    v_add_u32 v{wm[1]}, v{wm[1]}, v{t0}
    v_lshl_add_u32 v{wm[0]}, v{wm[1]}, 7, v{t3}
    v_bfe_u32 v{wm[1]}, v{wm[1]}, 1, 2
    v_lshl_add_u32 v{wm[0]}, v{wm[1]}, 5, v{wm[0]}
    v_mul_u32_u24 v{wx[1]}, 80, v{t2}
    v_lshl_add_u32 v{wx[1]}, v{t1}, 1, v{wx[1]}
    v_lshrrev_b32 v{wx[2]}, 1, v{t0}
    v_mul_u32_u24 v{wx[2]}, 20, v{wx[2]}
    v_and_b32 v{t0}, 1, v{t0}
    v_add3_u32 v{wx[1]}, v{wx[1]}, v{wx[2]}, v{t0}
    v_add_u32 v{wx[1]}, 16, v{wx[1]}
    v_lshl_add_u32 v{wx[0]}, v{wx[1]}, 7, v{t3}
    v_bfe_u32 v{wx[1]}, v{wx[1]}, 1, 2
    v_lshl_add_u32 v{wx[0]}, v{wx[1]}, 5, v{wx[0]}
    """)
    for nt in range(1, 4):
        a.e(f"v_xor_b32 v{wm[nt]}, {32*nt}, v{wm[0]}\n v_xor_b32 v{wx[nt]}, {32*nt}, v{wx[0]}")
    mk_srd(a, SRD_D, P_OUT, 2048 * 2560)
    def wrd(k):
        P, j = divmod(k, 5); b = k % NW
        if j < 4:
            o = [f"ds_read_b64_tr_b16 {v(WF[b][nt]+2*i,2)}, v{wm[nt]} offset:{5120*j+1024*i}" for nt in range(4) for i in range(2)]
        else:
            o = [f"ds_read_b64_tr_b16 {v(WF[b][nt]+2*i,2)}, v{wx[nt]} offset:{5120*i}" for nt in range(4) for i in range(2)]
            if P < 3: o[7] += "".join(f"\n v_add_u32 v{r}, s{68+P}, v{r}" for r in wm + wx)
        return o
    for k in range(NW - 1): a.e("\n".join(wrd(k)))
    if "steps" not in EX: stamp(a, 7)
    if "wpoll" in EX:
        poll(a, SRD_FL, vfl, t0, slp=int(os.environ.get("GSL", "2")))
    else:
        nw = a.newlab("g2nw")
        a.e(f"""
        s_cmp_lg_u32 s{S_WAVE}, {os.environ.get("PW", "4")}
        s_cbranch_scc1 {nw}
        s_lshl_b32 s{sT}, s{S_RT}, 5
        s_add_u32 s{sT}, s{sT}, 64
        v_and_b32 v{vfl}, 31, v{L}
        v_add_u32 v{vfl}, s{sT}, v{vfl}
        v_lshlrev_b32 v{vfl}, 7, v{vfl}
        """)
        poll(a, SRD_FL, vfl, t0, slp=int(os.environ.get("GSL", "1")))
        a.lab(nw)
        a.e("s_barrier")
    if "steps" not in EX: stamp(a, 8)
    def oload(k):
        if "g3nold" in EX: return
        P, j = divmod(k, 5)
        if j == 0: a.e(f"s_add_u32 s66, s64, {P}\n s_and_b32 s66, s66, 3\n s_mul_i32 s66, s66, 10240\n s_add_u32 s66, s66, s{sU}\n s_add_u32 s67, s66, 5120")
        if j < 4: a.e(f"buffer_load_dwordx4 {v(O[k],4)}, v{vo}, {srd(SRD_B)}, s{66 + j//2} offen offset:{2048*(j&1)} {OLD}")
        else: a.e(f"buffer_load_dwordx4 {v(O[k],4)}, v{vx}, {srd(SRD_B)}, s66 offen {OLD}")
    for k in range(LA): oload(k)
    a.e("s_waitcnt lgkmcnt(0)")
    for k in range(20):
        a.e(f"s_waitcnt vmcnt({min(19, k+LA-1)-k}) lgkmcnt({min(15, 8*(min(19, k+NW-2)-k))})")
        GP_ = os.environ.get("GPR", "5")
        if GP_ == "5" and k % 5 == 0: a.e(f"s_setprio {3 - k // 5}")
        if GP_ == "b" and k in (4, 8, 12, 16): a.e("s_barrier")
        if GP_ == "b2" and k in (2, 4, 6, 8, 10, 12, 14, 16, 18): a.e("s_barrier")
        F = wrd(k + NW - 1) if k + NW - 1 < 20 else []
        if "g3nods" in EX: F = []
        for nt in range(4):
            if "g3nomf" not in EX: a.e(f"{MF} {v(ACC[nt],4)}, {v(WF[k%NW][nt],4)}, {v(O[k],4)}, {'0' if k == 0 else v(ACC[nt],4)}")
            a.e("\n".join(F[2*nt:2*nt+2]))
        if k + LA < 20: oload(k + LA)
    if "steps" not in EX: stamp(a, 9)
    a.e("s_nop 4")
    for nt in range(4):
        c = ACC[nt]
        a.e(f"v_cvt_pk_bf16_f32 v{D+2*nt}, v{c}, v{c+1}\n v_cvt_pk_bf16_f32 v{D+2*nt+1}, v{c+2}, v{c+3}")
    a.e("s_nop 1")
    for nt in (0, 2):
        a.e(f"v_permlane16_swap_b32 v{D+2*nt}, v{D+2*nt+2}\n v_permlane16_swap_b32 v{D+2*nt+1}, v{D+2*nt+3}")
    X = WF[1][0]
    for i in range(4): a.e(f"v_mov_b32 v{X+i}, v{D+i}")
    for i in range(4): a.e(f"v_mov_b32_dpp v{D+i}, v{D+4+i} row_ror:8 row_mask:0xf bank_mask:0xc")
    for i in range(4): a.e(f"v_mov_b32_dpp v{D+4+i}, v{X+i} row_ror:8 row_mask:0xf bank_mask:0x3")
    a.e(f"buffer_store_dwordx4 {v(D,4)}, v{vst}, {srd(SRD_D)}, s{sSO} offen {OSTB}")
    a.e(f"s_add_u32 s{sSO}, s{sSO}, {8*2560}")
    a.e(f"buffer_store_dwordx4 {v(D+4,4)}, v{vst}, {srd(SRD_D)}, s{sSO} offen {OSTB}")
    return ra.hi

def build(path):
    hdr = open("cdna_kernels/%s.s.ref" % NAME).read().split("; Override")[0]
    a = Asm()
    a.raw('.amdgcn_target "amdgcn-amd-amdhsa--gfx950"\n.text')
    a.raw(f".globl {KN}\n.p2align 8\n.type {KN},@function"); a.lab(KN)
    a.e(f"""
    s_and_b32 s3, s2, {os.environ.get("CPM", "0xf0")}
    s_cmp_lg_u32 s3, 0x80
    s_cbranch_scc1 L_NOPF
    s_getpc_b64 s[4:5]
    v_lshlrev_b32 v2, 7, v0
    v_min_u32 v2, L_END-{KN}-128, v2
    global_load_dword v252, v2, s[4:5]
    """)
    a.lab("L_NOPF")
    a.e(f"s_cmp_ge_u32 s2, 256\n s_cbranch_scc1 L_END")
    stamp_init(a); stamp(a, 0)
    a.e(f"""
    s_load_dwordx16 s[8:23], s[0:1], 0
    s_load_dwordx8 s[24:31], s[0:1], 64
    v_lshrrev_b32 v2, 6, v0
    v_and_b32 v{L}, 63, v0
    v_readfirstlane_b32 s{S_WAVE}, v2
    s_and_b32 s{S_XI}, s2, 7
    s_lshr_b32 s{S_J}, s2, 3
    s_lshr_b32 s6, s{S_XI}, 1
    s_lshl_b32 s6, s6, 2
    s_and_b32 s7, s{S_J}, 3
    s_add_u32 s{S_RT}, s6, s7
    s_and_b32 s4, s{S_XI}, 1
    s_mul_i32 s{S_GC}, s4, 5
    s_cmp_ge_u32 s{S_J}, 16
    s_cbranch_scc1 L_A
    s_lshr_b32 s6, s{S_J}, 2
    s_add_u32 s{S_GC}, s{S_GC}, s6
    s_lshl_b32 s4, s4, 2
    s_add_u32 s{S_G}, s4, s6
    s_cmp_lt_u32 s{S_WAVE}, 4
    s_cbranch_scc1 L_BC
    """)
    b_loader(a)
    a.lab("L_A")
    a.e(f"""
    s_bfe_u32 s{S_GC}, s{S_J}, 0x10002
    s_mul_i32 s{S_GC}, s{S_GC}, 5
    s_add_u32 s{S_GC}, s{S_GC}, 4
    s_lshr_b32 s4, s{S_XI}, 2
    s_add_u32 s4, s4, 8
    s_bfe_u32 s{S_P2}, s{S_XI}, 0x10001
    s_add_u32 s{S_P2}, s{S_P2}, 1
    s_cmp_ge_u32 s{S_J}, 24
    s_cselect_b32 s{S_P2}, 0, s{S_P2}
    s_cselect_b32 s4, s{S_XI}, s4
    s_lshl_b32 s4, s4, 6
    s_and_b32 s6, s{S_J}, 7
    s_lshl_b32 s6, s6, 3
    s_add_u32 s{S_CB}, s4, s6
    s_cmp_ge_u32 s{S_J}, 24
    s_cbranch_scc1 L_A1
    """)
    prefetcher(a)
    a.e(f"s_and_b32 s60, s{S_XI}, 1\n s_cbranch_scc0 L_CONV")
    mk_srd(a, SRD_B, P_WS, T_BYTES, off=WS_PQ)
    a.e(f"s_cmp_lt_u32 s{S_WAVE}, 4\n s_cbranch_scc1 L_JB\n s_waitcnt vmcnt(0)\n s_call_b64 s[72:73], L_WO")
    a.lab("L_JB")
    a.e("s_waitcnt vmcnt(0)\n s_barrier\n s_branch L_G2")
    a.lab("L_A1")
    h3 = a1(a)
    a.lab("L_CONV")
    h5 = conv(a)
    a.lab("L_BC")
    h1 = b_compute(a)
    a.lab("L_WO")
    wo_dma(a)
    a.e("s_setpc_b64 s[72:73]")
    a.lab("L_G2")
    h4 = g2(a)
    a.lab("L_FIN")
    stamp_flush(a, 0)
    a.lab("L_END")
    a.e("s_endpgm")
    print("vgprs", h1, h3, h4, h5, file=sys.stderr)
    desc = f""".section .rodata,"a"
.p2align 6
.amdhsa_kernel {KN}
  .amdhsa_next_free_vgpr 256
  .amdhsa_next_free_sgpr 102
  .amdhsa_accum_offset 256
  .amdhsa_group_segment_fixed_size 0
  .amdhsa_kernarg_size 96
  .amdhsa_user_sgpr_count 2
  .amdhsa_user_sgpr_kernarg_segment_ptr 1
  .amdhsa_system_sgpr_workgroup_id_x 1
.end_amdhsa_kernel
"""
    open(path, "w").write(hdr + f"; @launch grid=(256,1,1) block=(512,1,1) lds={LDS_BYTES}\n" + a.text() + desc)
if __name__ == "__main__":
    build(sys.argv[1])
```

```python
import sys
from asmlib import *
NAME = "concat_heads__ssm_conv_h3__linear_attn_block__prompt"
KN = NAME + "_kernel"
EX = set(os.environ.get("EX", "").split(","))
ROTR = int(os.environ.get("ROTR", "0"), 16); ROTC = int(os.environ.get("ROTC", "0"), 16)
OST = os.environ.get("OSTA", "")
OSTB = os.environ.get("OSTB", "sc1")

T_BYTES = 640 * 4096
WS_UT, WS_PQ = 0, T_BYTES
WS_KV = 2 * T_BYTES
GB = 8960
WS_FL = WS_KV + 8 * GB + 2048
assert WS_FL % 128 == 0
WS_END = WS_FL + 1024 * 128
S_WG, S_WAVE = 2, 3
P_Q, P_K, P_V, P_SH, P_H, P_D, P_X, P_W, P_WO, P_OUT, P_DBG, P_WS = 8, 10, 12, 14, 16, 18, 20, 22, 24, 26, 28, 30
SRD_A, SRD_B, SRD_C, SRD_D, SRD_FL = 32, 36, 40, 44, 48
S_RT, S_G, S_GC, S_CB, S_P2, S_ASLOT, S_XI, S_J = 52, 53, 54, 55, 56, 57, 58, 59
L = 1
NB = 2048 * 1280

XST, WBASE, WST, NST = 16384, 49152, 20480, 3
HI = WBASE + NST * WST
W2B = 2688
QBASE, QST = HI, 4 * W2B
IMG, IMGP = QBASE + NST * QST, 9216
HB, HP, H_O = 0, 8320, 4160
UB, UP = 8 * HP, 4672
A_KB, A_VB = UB + 5120, UB + 5120 + 40960
WOB = 2 * XST
KVI, RED = WOB + 81920, 0
ND = int(os.environ.get("ND", "2"))
xsl = lambda st: (st + 1) % NST
qsl = lambda st: (st + 2) % NST
assert KVI + 3520 <= QBASE + QST and ND <= 2
TB, TP = UB + 8 * UP, 2112
LDS_BYTES = max(A_VB + 40960, IMG + 2 * IMGP)
assert UB + 8 * UP <= HI and RED + 32768 <= LDS_BYTES <= 163840

def mk_srd(a, srd, ptr, nbytes, off=0, off_sreg=None):
    if off_sreg is not None:
        a.e(f"s_add_u32 s{srd}, s{ptr}, s{off_sreg}\n s_addc_u32 s{srd+1}, s{ptr+1}, 0")
    elif off:
        a.e(f"s_add_u32 s{srd}, s{ptr}, {off}\n s_addc_u32 s{srd+1}, s{ptr+1}, 0")
    else:
        a.e(f"s_mov_b32 s{srd}, s{ptr}\n s_mov_b32 s{srd+1}, s{ptr+1}")
    a.e(f"s_mov_b32 s{srd+2}, {nbytes}\n s_mov_b32 s{srd+3}, 0x20000")
def srd(x): return f"s[{x}:{x+3}]"
def mk_fl(a): mk_srd(a, SRD_FL, P_WS, 1024 * 128, off=WS_FL)

SPIN_MAX = 400000 if "noat" not in EX else 2
def poll(a, srdn, vo, t, scnt=74, slp=1):
    lp, dn = a.newlab("poll"), a.newlab("polld")
    a.e(f"s_mov_b32 s{scnt}, {SPIN_MAX}")
    a.lab(lp)
    a.e(f"""
    buffer_load_dword v{t}, v{vo}, {srd(srdn)}, 0 offen sc1
    s_waitcnt vmcnt(0)
    v_cmp_ne_u32 vcc, 1, v{t}
    s_sub_u32 s{scnt}, s{scnt}, 1
    s_cbranch_scc1 {dn}
    s_cmp_eq_u64 vcc, 0
    s_cbranch_scc1 {dn}
    s_sleep {slp}
    s_branch {lp}
    """)
    a.lab(dn)
def poll_z(a, vz, vt):
    mk_srd(a, SRD_D, P_DBG, 256)
    a.e(f"v_and_b32 v{vz}, 7, v{L}\n v_lshlrev_b32 v{vz}, 2, v{vz}")
    poll(a, SRD_D, vz, vt)
def set_flag(a, sslot, v0_, v1_, wave=0):
    sk = a.newlab("nofl")
    if wave is not None: a.e(f"s_cmp_lg_u32 s{S_WAVE}, {wave}\n s_cbranch_scc1 {sk}")
    a.e(f"""
    s_lshl_b32 s74, s{sslot}, 7
    v_mov_b32 v{v0_}, 0
    v_mov_b32 v{v1_}, 1
    s_mov_b64 exec, 1
    buffer_store_dword v{v1_}, v{v0_}, {srd(SRD_FL)}, s74 offen sc1
    s_mov_b64 exec, -1
    """)
    a.lab(sk)

def h_load(a, H, vl16, srdn, soff):
    for j in range(4):
        a.e(f"buffer_load_dwordx4 {v(H+4*j,4)}, v{vl16}, {srd(srdn)}, s{soff} offen offset:{1024*j}")
def h_stage(a, H, G, sslot, vl16, va, st):
    a.e(f"s_mul_i32 s{st}, s{sslot}, {HP}\n v_add_u32 v{va}, s{st}, v{vl16}")
    a.e(f"v_readfirstlane_b32 s{st}, v{H}")
    for j in range(4):
        a.e(f"ds_write_b128 v{va}, {v(H+4*j,4)} offset:{HB+32+1024*j}")
    for j in range(4):
        a.e(f"v_mov_b32_dpp v{G+4*j+3}, v{H+4*((j+1)&3)} wave_rol:1 row_mask:0xf bank_mask:0xf")
    for j in range(4):
        a.e(f"v_mov_b32_dpp v{G+4*j+3}, v{H+4*j} wave_shl:1 row_mask:0xf bank_mask:0xf")
    Z = G + 16
    for i in range(4): a.e(f"v_mov_b32 v{Z+i}, 0")
    a.e(f"s_lshl_b32 s{st}, s{st}, 16\n s_mov_b64 exec, 3\n ds_write_b128 v{va}, {v(Z,4)} offset:{HB}\n s_mov_b64 exec, -1")
    for j in range(4):
        h, g_ = H + 4 * j, G + 4 * j
        for i in range(3): a.e(f"v_alignbit_b32 v{g_+i}, v{h+i+1}, v{h+i}, 16")
        a.e(f"v_alignbit_b32 v{g_+3}, v{g_+3}, v{h+3}, 16")
        a.e(f"ds_write_b128 v{va}, {v(g_,4)} offset:{HB+H_O+32+1024*j}")
    a.e(f"v_writelane_b32 v{Z+3}, s{st}, 1\n s_mov_b64 exec, 3\n ds_write_b128 v{va}, {v(Z,4)} offset:{HB+H_O}\n s_mov_b64 exec, -1")
def conv_sload(a):
    a.e(f"""
    s_add_u32 s6, s{S_CB}, s{S_WAVE}
    s_min_u32 s6, s6, 639
    s_lshl_b32 s6, s6, 1
    s_and_b32 s6, s6, 0xfffffffc
    s_load_dword s5, s[{P_D}:{P_D+1}], s6
    """)

def b_loader(a):
    ra = RA(2)
    t0, t1, t2, t3 = [ra.a() for _ in range(4)]
    vx = [ra.a() for _ in range(4)]
    vw = [ra.a() for _ in range(5)]
    vq = [ra.a() for _ in range(3)]
    l16, la = ra.a(), ra.a()
    LD = ra.a(12, 4); Z = ra.a(2, 2)
    sLW, sSX, sSW, sM0X, sM0W, sM0Q, sSQ, sT, sK = 60, 61, 62, 63, 64, 65, 66, 67, 68
    a.c("B loader wave")
    a.e(f"""
    s_setprio 3
    v_lshrrev_b32 v{t0}, 3, v{L}
    v_lshrrev_b32 v{t1}, 4, v{L}
    v_and_b32 v{t2}, 7, v{L}
    v_mul_u32_u24 v{t0}, 1280, v{t0}
    v_xor_b32 v{t1}, v{t1}, v{t2}
    s_sub_u32 s{sLW}, s{S_WAVE}, 4
    s_lshl_b32 s{sT}, s{S_RT}, 2
    s_add_u32 s{sT}, s{sT}, s{sLW}
    s_mul_i32 s{sSX}, s{sT}, {32*1280}
    s_lshl_b32 s{sM0X}, s{sLW}, 12
    v_lshl_add_u32 v{vx[0]}, v{t1}, 4, v{t0}
    v_xor_b32 v{vx[1]}, 64, v{vx[0]}
    v_add_u32 v{vx[2]}, {2*(8*1280-1024)}, v{vx[0]}
    v_add_u32 v{vx[3]}, {3*(8*1280-1024)}, v{vx[1]}
    v_add_u32 v{vx[1]}, {1*(8*1280-1024)}, v{vx[1]}
    s_movk_i32 s4, 1200
    s_movk_i32 s5, -80
    s_movk_i32 s69, 3840
    """)
    for x in range(320): assert (x * 3277) >> 16 == x // 20
    for x in range(20): assert (x * 52) >> 8 == x // 5
    def woff(j):
        sub = 1024 * j if j < 4 else 0
        o = []; src = L
        if j: o.append(f"v_add_u32 v{t0}, {64*j}, v{L}"); src = t0
        o += [f"v_mul_u32_u24 v{t1}, 3277, v{src}", f"v_lshrrev_b32 v{t1}, 16, v{t1}",
              f"v_mul_u32_u24 v{t2}, 20, v{t1}", f"v_sub_u32 v{t0}, v{src}, v{t2}"]
        if j == 2: o += [f"v_lshrrev_b32 v{t2}, 2, v{t1}", f"v_and_b32 v{t2}, 2, v{t2}", f"v_xor_b32 v{t0}, v{t0}, v{t2}"]
        if j > 2: o += [f"v_xor_b32 v{t0}, 2, v{t0}"]
        o += [f"v_mul_u32_u24 v{t2}, 52, v{t0}", f"v_lshlrev_b32 v{t0}, 4, v{t0}",
              f"v_mad_u32_u24 v{t0}, v{t1}, s69, v{t0}", f"v_bfe_u32 v{t3}, v{t2}, 8, 1",
              f"v_lshrrev_b32 v{t2}, 9, v{t2}", f"v_mad_u32_u24 v{t0}, v{t3}, s4, v{t0}"]
        if sub: o += [f"v_mad_i32_i24 v{t0}, v{t2}, s5, v{t0}", f"v_subrev_u32 v{vw[j]}, {sub}, v{t0}"]
        else: o += [f"v_mad_i32_i24 v{vw[j]}, v{t2}, s5, v{t0}"]
        a.e("\n".join(o))
    def issue_x(st):
        a.e(f"s_add_u32 m0, s{sM0X}, {xsl(st) * XST}\n s_nop 0")
        for j in range(4):
            a.e(f"buffer_load_dwordx4 v{vx[j]}, {srd(SRD_A)}, s{sSX} offen offset:{1024*j} lds")
    def adv():
        a.e(f"s_add_u32 s{sSX}, s{sSX}, 128\n s_add_u32 s{sSW}, s{sSW}, {64*3840}")
    for x in range(80): assert (x * 205) >> 11 == x // 10
    def qoff(j):
        a.e(f"""
        v_add_u32 v{t0}, {64*j}, v{L}
        v_cmp_le_u32 vcc, 88, v{t0}
        v_subrev_u32 v{t1}, 88, v{t0}
        v_min_u32 v{t0}, 79, v{t0}
        v_min_u32 v{t1}, 79, v{t1}
        v_cndmask_b32 v{t0}, v{t0}, v{t1}, vcc
        v_cndmask_b32 v{t2}, 0, 8, vcc
        v_mul_u32_u24 v{t1}, 205, v{t0}
        v_lshrrev_b32 v{t1}, 11, v{t1}
        v_add_u32 v{t2}, v{t2}, v{t1}
        v_mul_u32_u24 v{t1}, 10, v{t1}
        v_sub_u32 v{t0}, v{t0}, v{t1}
        v_lshlrev_b32 v{t0}, 4, v{t0}
        v_mad_u32_u24 v{t0}, v{t2}, s69, v{t0}
        v_subrev_u32 v{vq[j]}, {1024*j}, v{t0}
        """)
    def issue_kv(st, first=99):
        a.e(f"s_add_u32 m0, s{sM0W}, {(st % NST) * WST}\n s_nop 0")
        for j in range(5):
            if j >= first: woff(j)
            if j == 4: a.e(f"s_add_u32 m0, s{sM0W}, {(st % NST) * WST + 4096}\n s_nop 0")
            a.e(f"buffer_load_dwordx4 v{vw[j]}, {srd(SRD_B)}, s{sSW} offen offset:{1024*(j&3)} lds")
    def issue_q(st, first=99):
        a.e(f"s_add_u32 m0, s{sM0Q}, {qsl(st) * QST}\n s_sub_u32 s{sSQ}, s{sSW}, 1280")
        for j in range(3):
            if j >= first: qoff(j)
            if j == 2: a.e("s_mov_b32 exec_hi, 0xff")
            a.e(f"buffer_load_dwordx4 v{vq[j]}, {srd(SRD_B)}, s{sSQ} offen offset:{1024*j} lds")
        a.e("s_mov_b32 exec_hi, -1")
    def issue(st):
        issue_x(st); issue_kv(st); issue_q(st); adv()
    a.e(f"""
    s_mul_i32 s{sSW}, s{S_G}, 160
    s_add_u32 s{sSW}, s{sSW}, 1280
    s_mul_i32 s{sT}, s{sLW}, {16*3840}
    s_add_u32 s{sSW}, s{sSW}, s{sT}
    s_mul_i32 s{sM0W}, s{sLW}, 5120
    s_add_u32 s{sM0W}, s{sM0W}, {WBASE}
    s_mul_i32 s{sM0Q}, s{sLW}, {W2B}
    s_add_u32 s{sM0Q}, s{sM0Q}, {QBASE}
    """)
    def srds():
        a.e("s_waitcnt lgkmcnt(0)")
        mk_srd(a, SRD_A, P_X, NB); mk_srd(a, SRD_B, P_W, 640 * 3840)
    lb, lj = a.newlab("ordB"), a.newlab("ordJ")
    if "noord" not in EX:
        a.e(f"s_add_u32 s{sT}, s{S_RT}, s{S_G}\n s_and_b32 s{sT}, s{sT}, 1\n s_cbranch_scc1 {lb}")
    qoff(0); srds(); issue_x(0); issue_q(0, 1); issue_kv(0, 0)
    a.e(f"s_branch {lj}")
    a.lab(lb)
    woff(0); srds(); issue_kv(0, 1); issue_x(0); issue_q(0, 0)
    a.lab(lj)
    a.e(f"s_add_u32 s{sSX}, s{sSX}, 128\n s_add_u32 s{sSW}, s{sSW}, {64*3840}")
    PCS = [int(c) for c in os.environ.get("PCS", "133443333")]
    assert sum(PCS) == 27
    cnt = [4, 5, 3]
    pos = [3]
    def pieces(n, lim):
        for _ in range(n):
            st, k = divmod(pos[0], 3)
            assert st <= lim
            if k == 0: issue_x(st); a.e(f"s_add_u32 s{sSX}, s{sSX}, 128")
            if k == 1: issue_kv(st)
            if k == 2: issue_q(st); a.e(f"s_add_u32 s{sSW}, s{sSW}, {64*3840}")
            pos[0] += 1
    pieces(PCS[0], 2)
    stamp(a, 1)
    for nb in range(10):
        assert pos[0] >= 3 * (nb + 1)
        young = sum(cnt[i % 3] for i in range(3 * (nb + 1), pos[0]))
        a.e(f"s_waitcnt vmcnt({young})\n s_barrier")
        if nb == 5:
            mk_srd(a, SRD_D, P_DBG, 256)
            a.e(f"v_and_b32 v{l16}, 7, v{L}\n v_lshlrev_b32 v{l16}, 2, v{l16}")
            a.e(f"buffer_load_dword v{la}, v{l16}, {srd(SRD_D)}, 0 offen sc1")
            assert pos[0] == 21
        if nb + 1 < len(PCS): pieces(PCS[nb + 1], nb + 2)
        if nb == 4: mk_fl(a)
        if nb == 8:
            zok = a.newlab("zok")
            a.e(f"s_setprio 0\n v_cmp_ne_u32 vcc, 1, v{la}\n s_nop 1\n s_cmp_eq_u64 vcc, 0\n s_cbranch_scc1 {zok}")
            poll_z(a, t1, t2)
            a.lab(zok)
    stamp(a, 2)
    a.e("s_barrier")
    a.e("s_call_b64 s[72:73], L_WO")
    stamp(a, 3)
    a.e("s_barrier\n s_waitcnt vmcnt(0)\n s_barrier\n s_branch L_G2")

def phi4(regs, tmps, sLOG, sEPS):
    o = []
    if "nopk" not in EX:
        r, t = regs[0], tmps[0]
        o += [f"v_pk_mul_f32 {v(t+i,2)}, {v(r+i,2)}, s[66:67]" for i in (0, 2)]
        o += [f"v_exp_f32_e64 v{t+i}, v{t+i} clamp" for i in range(4)]
        o += [f"v_max_f32 v{r+i}, s{sEPS}, v{r+i}" for i in range(4)]
        o += [f"v_pk_add_f32 {v(r+i,2)}, {v(r+i,2)}, {v(t+i,2)}" for i in (0, 2)]
        return o
    for r, t in zip(regs, tmps): o.append(f"v_mul_f32 v{t}, s{sLOG}, v{r}")
    for r, t in zip(regs, tmps): o.append(f"v_exp_f32_e64 v{t}, v{t} clamp")
    for r, t in zip(regs, tmps): o.append(f"v_max_f32 v{r}, s{sEPS}, v{r}")
    for r, t in zip(regs, tmps): o.append(f"v_add_f32 v{r}, v{r}, v{t}")
    return o

def b_compute(a):
    if "steps" in EX:
        def stamp2(a, i): pass
    else:
        stamp2 = stamp
    ra = RA(2)
    lr, g, t0, t1, t2 = [ra.a() for _ in range(5)]
    xa = [ra.a(), ra.a()]
    wa = [ra.a() for _ in range(5)]
    ad = [ra.a() for _ in range(6)]
    wb = [ra.a(), ra.a()]; xb = [ra.a(), ra.a()]
    ka, kx = ra.a(), [ra.a(), ra.a()]
    at = [ra.a() for _ in range(4)]
    l16, la = ra.a(), ra.a()
    ix = ra.a(4, 4)
    XF = [[ra.a(4, 4) for _ in range(4)] for _ in range(2)]
    WF = [[ra.a(4, 4) for _ in range(5)] for _ in range(2)]
    QF = [ra.a(4, 4) for _ in range(5)]
    ACC = [[ra.a(4, 4) for _ in range(5)] for _ in range(4)]
    QA = [[ra.a(4, 4) for _ in range(5)] for _ in range(2)]
    sRH, sCH, sT, sLOG, sEPS, sSO = 60, 61, 62, 63, 64, 65
    MF = "v_mfma_f32_16x16x32_bf16"; M32 = "v_mfma_f32_32x32x16_bf16"
    a.c("B compute wave")
    a.e(f"""
    s_lshr_b32 s{sRH}, s{S_WAVE}, 1
    s_and_b32 s{sCH}, s{S_WAVE}, 1
    s_mov_b32 s{sLOG}, {f32(1.4426950408889634)}
    s_mov_b32 s66, s{sLOG}
    s_mov_b32 s67, s{sLOG}
    s_mov_b32 s{sEPS}, {f32(1e-6)}
    v_and_b32 v{lr}, 15, v{L}
    v_lshrrev_b32 v{g}, 4, v{L}
    s_lshl_b32 s{sT}, s{S_WAVE}, 12
    v_lshrrev_b32 v{t0}, 1, v{lr}
    v_xor_b32 v{t0}, v{t0}, v{g}
    v_lshlrev_b32 v{t0}, 4, v{t0}
    v_lshl_add_u32 v{t0}, v{lr}, 7, v{t0}
    v_add_u32 v{xa[0]}, s{sT}, v{t0}
    v_xor_b32 v{xa[1]}, 64, v{xa[0]}
    v_xor_b32 v{xb[0]}, 0x1000, v{xa[0]}
    v_xor_b32 v{xb[1]}, 0x1000, v{xa[1]}
    v_lshrrev_b32 v{t0}, 2, v{lr}
    v_lshl_add_u32 v{t0}, v{g}, 3, v{t0}
    v_mul_u32_u24 v{t0}, 320, v{t0}
    v_add_u32 v{t0}, {WBASE}, v{t0}
    v_and_b32 v{t1}, 1, v{g}
    v_lshlrev_b32 v{t1}, 5, v{t1}
    s_mul_i32 s{sT}, s{sCH}, 160
    v_and_b32 v{t2}, 3, v{lr}
    """)
    for t in range(5):
        w = wa[t]
        if t < 4:
            a.e(f"v_lshl_add_u32 v{w}, v{t2}, 3, s{sT}\n v_add_u32 v{w}, {40*t}, v{w}")
        else:
            a.e(f"v_mul_u32_u24 v{w}, 40, v{t2}\n v_add_u32 v{w}, s{sT}, v{w}\n v_add_u32 v{w}, 32, v{w}")
        a.e(f"v_xor_b32 v{w}, v{w}, v{t1}\n v_add_u32 v{w}, v{w}, v{t0}")
    a.e(f"""
    v_lshrrev_b32 v{t0}, 1, v{g}
    v_mul_u32_u24 v{t0}, {W2B}, v{t0}
    v_and_b32 v{t1}, 1, v{g}
    v_mul_u32_u24 v{t1}, 1408, v{t1}
    v_add3_u32 v{t0}, v{t0}, v{t1}, 32
    v_lshrrev_b32 v{t1}, 2, v{lr}
    v_mul_u32_u24 v{t1}, 160, v{t1}
    v_add_u32 v{t0}, v{t0}, v{t1}
    v_add_u32 v{t0}, {QBASE-32}, v{t0}
    v_lshl_add_u32 v{wb[0]}, v{t2}, 3, v{t0}
    v_mul_u32_u24 v{t1}, 40, v{t2}
    v_add3_u32 v{wb[1]}, v{t0}, v{t1}, 32
    """)
    a.e(f"v_mov_b32 v{t0}, s{sEPS}\n v_cmp_gt_u32 vcc, 8, v{lr}")
    a.e(f"""
    s_mul_i32 s{sT}, s{sRH}, {IMGP}
    s_mul_i32 s{sSO}, s{sCH}, {GB//2}
    s_add_u32 s{sT}, s{sT}, s{sSO}
    s_add_u32 s{sT}, s{sT}, {IMG}
    """)
    for rt in range(4):
        for i in range(4):
            a.e(f"v_cndmask_b32 v{ACC[rt][4]+i}, 0, v{t0}, vcc")
        for i in range(8): a.e(f"v_mov_b32 v{ACC[rt][0]+i}, s{sEPS}")
    for i in range(40): a.e(f"v_mov_b32 v{QA[0][0]+i}, s{sEPS}")
    z4 = XF[0][0]
    a.e(f"v_mov_b32 v{z4}, 1.0")
    for i in range(1, 8): a.e(f"v_mov_b32 v{z4+i}, 0")
    a.e(f"""
    v_min_u32 v{t0}, 143, v0
    v_lshlrev_b32 v{t0}, 6, v{t0}
    v_add_u32 v{t0}, {IMG+48}, v{t0}
    ds_write_b128 v{t0}, {v(z4,4)}
    ds_write_b128 v{t0}, {v(z4+4,4)} offset:{IMGP}
    """)
    for x in range(128): assert (x * 171) >> 9 == x // 3
    a.e(f"""
    v_cmp_eq_u32 vcc, 0, v{lr}
    v_add_u32 v{t0}, 8, v{lr}
    v_add_u32 v{t1}, 4, v{lr}
    v_cndmask_b32 v{t0}, v{t0}, 20, vcc
    v_cndmask_b32 v{t1}, v{t1}, 20, vcc
    """)
    for i, row in enumerate((lr, t0, t1)):
        for k in range(2):
            d = ad[2 * i + k]
            a.e(f"v_mad_u32_u24 v{d}, v{row}, 5, {'v%d' % g if k == 0 else '4'}")
            a.e(f"v_mul_u32_u24 v{t2}, 171, v{d}\n v_lshrrev_b32 v{t2}, 9, v{t2}\n v_add_u32 v{d}, v{d}, v{t2}\n v_lshl_add_u32 v{d}, v{d}, 4, s{sT}")
    a.e(f"""
    v_lshlrev_b32 v{at[0]}, 2, v0
    v_add_u32 v{at[1]}, 4096, v{at[0]}
    v_add_u32 v{at[2]}, 8192, v{at[0]}
    v_add_u32 v{at[3]}, {IMG}, v{at[0]}
    v_lshlrev_b32 v{l16}, 4, v{L}
    v_and_b32 v{t0}, 31, v{L}
    v_lshlrev_b32 v{t1}, 2, v{lr}
    s_mov_b32 s{sT}, 0x54325410
    v_lshrrev_b32 v{t1}, v{t1}, s{sT}
    v_and_b32 v{t1}, 15, v{t1}
    v_add_u32 v{t1}, 16, v{t1}
    v_cmp_lt_u32 vcc, 23, v{t0}
    s_mov_b32 s{sT}, {KVI}
    s_nop 0
    v_cndmask_b32 v{t1}, v{t1}, 21, vcc
    v_cmp_gt_u32 vcc, 16, v{t0}
    v_lshrrev_b32 v{t2}, 5, v{L}
    s_nop 0
    v_cndmask_b32 v{t1}, v{t1}, v{t0}, vcc
    v_mad_u32_u24 v{t1}, v{t1}, 40, s{sT}
    v_lshl_add_u32 v{ka}, v{t2}, 4, v{t1}
    v_add_u32 v{t1}, 32, v{t1}
    v_cmp_eq_u32 vcc, 0, v{t2}
    v_mov_b32 v{t0}, {KVI+840}
    s_nop 0
    v_cndmask_b32 v{kx[0]}, v{t0}, v{t1}, vcc
    v_cndmask_b32 v{kx[1]}, v{t1}, v{t0}, vcc
    s_mul_i32 s{sT}, s{S_WAVE}, 880
    s_add_u32 s{sT}, s{sT}, {KVI}
    v_and_b32 v{t0}, 3, v{L}
    v_lshl_add_u32 v{t0}, v{t0}, 3, s{sT}
    v_lshrrev_b32 v{t1}, 2, v{L}
    v_mad_u32_u24 v{la}, v{t1}, 24, v{t0}
    s_mul_i32 s{sT}, s{S_G}, {GB}
    s_add_u32 s{sT}, s{sT}, {WS_KV}
    s_waitcnt lgkmcnt(0)
    """)
    mk_srd(a, SRD_C, P_WS, GB, off_sreg=sT)
    a.e(f"s_mul_i32 s{sSO}, s{S_WAVE}, {GB//4}\n s_add_u32 s{sT}, s{sT}, s{sSO}")
    mk_srd(a, SRD_A, P_WS, GB // 4, off_sreg=sT)
    mk_srd(a, SRD_B, P_WS, T_BYTES, off=WS_PQ)
    mk_fl(a)
    def reads(st, ks):
        sl = st % NST
        xs = [f"ds_read_b128 {v(XF[ks][rt],4)}, v{xa[ks] if rt < 2 else xb[ks]} offset:{xsl(st)*XST + (rt&1)*2048}" for rt in range(4)]
        ws = [f"ds_read_b64_tr_b16 {v(WF[ks][t]+2*h,2)}, v{wa[t]} offset:{sl*WST + ks*10240 + h*1280}" for t in range(5) for h in range(2)]
        qs = [f"ds_read_b64_tr_b16 {v(QF[t]+2*h,2)}, v{wb[t>>2]} offset:{qsl(st)*QST + ks*2*W2B + h*640 + 40*(t&3)}" for t in range(5) for h in range(2)]
        if st >= 10 - ND: qs = []
        return xs + ws[:6] + qs + ws[6:]
    def mfq(ks):
        return [f"{MF} {v(QA[rt][t],4)}, {v(QF[t],4)}, {v(XF[ks][rt],4)}, {v(QA[rt][t],4)}" for t in range(5) for rt in range(2)]
    def mfkv(ks, first=False):
        o = []
        for rt in range(4):
            for t in range(5):
                d = ACC[rt][t]
                o.append(f"{MF} {v(d,4)}, {v(XF[ks][rt],4)}, {v(WF[ks][t],4)}, {'0' if (first and t in (2, 3)) else v(d,4)}")
        return o
    def mfmas(st, ks): return (mfq(ks) if st < 10 - ND else []) + mfkv(ks, st == 0 and ks == 0)
    def spread(M, F):
        out = []; n = len(M); fi = 0
        for i, m in enumerate(M):
            out.append(m)
            tgt = (len(F) * (i + 1) + n - 1) // n
            out += F[fi:tgt]; fi = tgt
        return out
    for st in range(10):
        a.c(f"step {st}")
        a.e("s_barrier")
        if (st == 0 or "steps" in EX) and "steps2" not in EX: stamp(a, 1 + st)
        if st == 0:
            a.e("\n".join(reads(0, 0)))
        else:
            a.e("\n".join(interleave2(mfmas(st - 1, 1), reads(st, 0), 1)))
        a.e("s_waitcnt lgkmcnt(0)")
        a.e("\n".join(interleave2(mfmas(st, 0), reads(st, 1), 1)))
        a.e("s_waitcnt lgkmcnt(0)")
    a.e("s_barrier")
    stamp2(a, 2)
    tm = [ix + i for i in range(4)]
    last = mfkv(1) + (mfq(1) if ND == 0 else [])
    names = ["T0", "T1", "T2", "T3", "T4A", "T4B"]
    k0 = [XF[0][i] for i in range(4)] + [WF[0][0], WF[0][1]]
    k1 = [WF[0][2], WF[0][3], WF[0][4], XF[1][0], XF[1][1], XF[1][2]]
    P = {n: [k0[i], k1[i]] for i, n in enumerate(names)}
    V = [f"v_cmp_gt_u32 vcc, 8, v{lr}", f"v_mov_b32 v{t0}, 0x3f803f80"]
    for rt in range(4):
        k, h = rt >> 1, rt & 1
        for t, n in ((2, "T2"), (3, "T3"), (4, "T4B")):
            r = ACC[rt][t]; d = P[n][k] + 2 * h
            V += [f"v_cvt_pk_bf16_f32 v{d}, v{r}, v{r+1}", f"v_cvt_pk_bf16_f32 v{d+1}, v{r+2}, v{r+3}"]
        d = P["T4B"][k] + 2 * h
        V += [f"v_cndmask_b32 v{d}, v{d}, v{t0}, vcc", f"v_cndmask_b32 v{d+1}, v{d+1}, v{t0}, vcc"]
        for t, n in ((0, "T0"), (1, "T1"), (4, "T4A")):
            r = [ACC[rt][t] + i for i in range(4)]; d = P[n][k] + 2 * h
            V += phi4(r, tm, sLOG, sEPS)
            V += [f"v_cvt_pk_bf16_f32 v{d}, v{r[0]}, v{r[1]}", f"v_cvt_pk_bf16_f32 v{d+1}, v{r[2]}, v{r[3]}"]
    prods = [("T0", "T2"), ("T0", "T4B"), ("T4A", "T2"), ("T1", "T3"), ("T1", "T4B"), ("T4A", "T3"), ("T4A", "T4B")]
    R = [ACC[0][0] + 4 * i for i in range(7)]
    kvm = lambda k: [f"{MF} {v(R[i],4)}, {v(P[x][k],4)}, {v(P[y][k],4)}, {'0' if k == 0 else v(R[i],4)}" for i, (x, y) in enumerate(prods)]
    half = 2 + (len(V) - 2) // 2
    a.e("\n".join(last[:10] + interleave2(last[10:], V[:half + 4], 2)))
    a.e("\n".join(interleave2(kvm(0), V[half + 4:], 8)))
    a.e("s_nop 1")
    a.e("\n".join(kvm(1)))
    a.e("s_nop 3")
    HBY = GB // 4
    def wr(i, addr, off, lo, hi):
        a.e(f"s_mov_b32 exec_lo, {lo:#x}\n s_mov_b32 exec_hi, {hi:#x}")
        a.e(f"ds_write_b128 v{addr}, {v(R[i],4)} offset:{off}")
    a.e(f"ds_write_b128 v{ad[0]}, {v(R[0],4)}")
    a.e(f"ds_write_b128 v{ad[0]}, {v(R[3],4)} offset:{HBY}")
    wr(1, ad[2], 0, 0x0f010f01, 0x0f010f01)
    wr(4, ad[4], HBY, 0xf001f001, 0xf001f001)
    wr(2, ad[1], 0, 0x0000ffff, 0)
    wr(5, ad[1], HBY, 0xffff0000, 0)
    wr(6, ad[3], 0, 0x00000f01, 0)
    wr(6, ad[5], HBY, 0xf0010000, 0)
    a.e("s_mov_b64 exec, -1\n s_waitcnt lgkmcnt(0)\n s_barrier")
    stamp2(a, 3)
    fr = ACC[0][0]
    for n in range(9):
        a.e(f"ds_read2st64_b32 {v(fr+2*n,2)}, v{at[3]} offset0:{4*n} offset1:{IMGP//256+4*n}")
    AT = []
    for n in range(9):
        AT += [f"v_add_f32 v{fr+2*n}, v{fr+2*n}, v{fr+2*n+1}",
               f"buffer_atomic_add_f32 v{fr+2*n}, v{at[n>>2]}, {srd(SRD_C)}, 0 offen offset:{1024*(n&3)}"]
    DB = [(XF[0][0], WF[0][0]), (XF[1][0], WF[1][0]), (XF[0][2], QF[0]), (XF[1][2], ACC[3][0])]
    def drd(u):
        if u >= 2 * ND: return []
        st, ks = 10 - ND + u // 2, u & 1; xr, wr_ = DB[u]
        return ([f"ds_read_b128 {v(xr+4*rt,4)}, v{xa[ks]} offset:{xsl(st)*XST + rt*2048}" for rt in range(2)] +
                [f"ds_read_b64_tr_b16 {v(wr_+4*t+2*h,2)}, v{wb[t>>2]} offset:{qsl(st)*QST + ks*2*W2B + h*640 + 40*(t&3)}" for t in range(5) for h in range(2)])
    def dmf(u):
        xr, wr_ = DB[u]
        return [f"{MF} {v(QA[rt][t],4)}, {v(wr_+4*t,4)}, {v(xr+4*rt,4)}, {v(QA[rt][t],4)}" for t in range(5) for rt in range(2)]
    a.e("s_waitcnt lgkmcnt(0)")
    a.e("\n".join(spread(AT, drd(0) + drd(1))))
    for u in range(0, 2 * ND, 2):
        a.e("s_waitcnt lgkmcnt(0)")
        M = dmf(u) + dmf(u + 1)
        a.e("\n".join(spread(M[:14], drd(u + 2) + drd(u + 3)) + M[14:]))
    EXT = XF[0][0]
    KF = [EXT + 4 * h for h in range(4)]
    KX = EXT + 16
    OB = [EXT + 28 + 4 * t for t in range(5)]
    OX = EXT + 48; rc = EXT + 52; LD = EXT + 56
    CT = [ACC[0][0] + 16 + 16 * h for h in range(4)]
    a.e(f"""
    s_lshl_b32 s{sT}, s{S_RT}, 2
    s_add_u32 s{sT}, s{sT}, s{S_WAVE}
    s_lshl_b32 s{sT}, s{sT}, 3
    s_add_u32 s{sT}, s{sT}, s{S_G}
    s_mul_i32 s{sSO}, s{sT}, 5120
    s_add_u32 s{sRH}, s{sSO}, 4096
    s_add_u32 s{sT}, s{sT}, 64
    s_mul_i32 s{sCH}, s{S_WAVE}, 880
    s_add_u32 s{sCH}, s{sCH}, {KVI}
    v_lshl_add_u32 v{t0}, v{L}, 3, s{sCH}
    """)
    for i in (2, 3, 8, 9): a.e(f"v_mov_b32 v{KX+i}, 0")
    a.e(f"s_mov_b64 exec, 31\n ds_write_b64 v{t0}, {v(KX+2,2)} offset:840\n s_mov_b64 exec, -1")
    def phiq(t):
        o = []; ob = OB[t]
        for h in range(2):
            r = [QA[h][t] + i for i in range(4)]
            o += phi4(r, tm, sLOG, sEPS)
            o += [f"v_cvt_pk_bf16_f32 v{ob+2*h}, v{r[0]}, v{r[1]}", f"v_cvt_pk_bf16_f32 v{ob+2*h+1}, v{r[2]}, v{r[3]}"]
        o += ["s_nop 1", f"v_permlane16_swap_b32 v{ob}, v{ob+2}", f"v_permlane16_swap_b32 v{ob+1}, v{ob+3}"]
        return o
    def omf(h):
        c = v(CT[h], 16)
        return [f"{M32} {c}, {v(KX+6*(h>>1)+2*(h&1),4)}, {v(OB[4],4)}, 0", "s_nop 0",
                f"{M32} {c}, {v(KF[h],4)}, {v(OB[h],4)}, {c}"]
    def norm(h):
        c = CT[h]; d = OB[h]
        o = [f"v_add_f32 v{rc}, s{sEPS}, v{c+10}", f"v_rcp_f32 v{rc}, v{rc}", "s_nop 0"]
        o += [f"v_mul_f32 v{c+i}, v{c+i}, v{rc}" for i in range(10)]
        o += [f"v_cvt_pk_bf16_f32 v{d+i}, v{c+2*i}, v{c+2*i+1}" for i in range(4)]
        o += [f"buffer_store_dwordx4 {v(d,4)}, v{l16}, {srd(SRD_B)}, s{sSO} offen offset:{1024*h} sc1"]
        o += [f"v_cvt_pk_bf16_f32 v{OX+h}, v{c+8}, v{c+9}"]
        return o
    def kvload():
        for n in range(3):
            a.e(f"buffer_load_dwordx4 {v(LD+4*n,4)}, v{l16}, {srd(SRD_A)}, 0 offen offset:{1024*n} sc1")
    KP = int(os.environ.get("KP", "6"))
    for i in range(5):
        if i == KP: kvload()
        a.e("\n".join(phiq(i)))
    stamp2(a, 4)
    lf, lv, ld = a.newlab("kvf"), a.newlab("kvv"), a.newlab("kvd")
    a.e(f"s_mov_b32 s69, {f32(16.0)}\n s_mov_b32 s70, 0x88888888\n s_mov_b32 s71, 0x88888888\n s_mov_b32 s74, {SPIN_MAX}")
    if KP < 5: a.e(f"s_branch {lv}")
    if KP == 6: a.e("s_waitcnt vmcnt(0)")
    a.lab(lf)
    kvload()
    a.lab(lv)
    a.e(f"""
    s_waitcnt vmcnt(0)
    v_min_f32 v{t0}, v{LD}, v{LD+4}
    v_cmp_neq_f32 s[4:5], s69, v{LD+8}
    v_cmp_neq_f32 vcc, s69, v{t0}
    s_sub_u32 s74, s74, 1
    s_cbranch_scc1 {ld}
    s_and_b32 s4, s4, 0x888
    s_and_b64 vcc, vcc, s[70:71]
    s_or_b32 vcc_lo, vcc_lo, s4
    s_cmp_eq_u64 vcc, 0
    s_cbranch_scc1 {ld}
    s_sleep {os.environ.get("KSL", "2")}
    s_branch {lf}
    """)
    a.lab(ld)
    for n in range(3):
        r = LD + 4 * n
        a.e(f"v_cvt_pk_bf16_f32 v{r}, v{r}, v{r+1}\n v_cvt_pk_bf16_f32 v{r+1}, v{r+2}, v{r+3}")
    a.e("s_mov_b32 exec_lo, 0x77777777\n s_mov_b32 exec_hi, 0x77777777")
    for n in range(3):
        if n == 2: a.e("s_mov_b64 exec, 0x777")
        a.e(f"ds_write_b64 v{la}, {v(LD+4*n,2)} offset:{384*n}")
    a.e("s_mov_b64 exec, -1\n s_waitcnt lgkmcnt(0)\n s_barrier")
    stamp2(a, 5)
    if STAMPS: a.e("s_waitcnt lgkmcnt(0)")
    for h in range(4):
        a.e(f"ds_read_b64 {v(KX+6*(h>>1)+4*(h&1),2)}, v{kx[h>>1]} offset:{880*h}")
        a.e(f"ds_read_b64 {v(KF[h],2)}, v{ka} offset:{880*h}\n ds_read_b64 {v(KF[h]+2,2)}, v{ka} offset:{880*h+8}")
    for h in range(3):
        a.e(f"s_waitcnt lgkmcnt({9-3*h})")
        a.e("\n".join(omf(h)))
    a.e("s_waitcnt lgkmcnt(0)\n s_nop 3")
    N0 = norm(0)
    a.e("\n".join(N0[:6] + omf(3)[:1] + N0[6:12] + omf(3)[2:] + N0[12:] + norm(1) + norm(2) + norm(3)))
    a.e(f"buffer_store_dwordx4 {v(OX,4)}, v{l16}, {srd(SRD_B)}, s{sRH} offen sc1")
    stamp2(a, 6)
    a.e("s_branch L_G2")
    return ra.hi

PF0 = int(os.environ.get("PF0", "1")); AH = int(os.environ.get("AH", "0"))
def pf_lanes(a, vW, vX, t0, t1, sU, sC):
    for x in range(64): assert (x * 52) >> 8 == x // 5
    a.e(f"""
    v_min_u32 v{t0}, 59, v{L}
    v_mul_u32_u24 v{t1}, 52, v{t0}
    v_lshrrev_b32 v{t1}, 8, v{t1}
    v_mul_u32_u24 v{vX}, 5, v{t1}
    v_sub_u32 v{t0}, v{t0}, v{vX}
    v_lshlrev_b32 v{t0}, 7, v{t0}
    s_movk_i32 s{sU}, 1280
    v_mad_u32_u24 v{vW}, v{t1}, s{sU}, v{t0}
    v_mul_u32_u24 v{vX}, 1280, v{L}
    s_and_b32 s{sC}, s{S_XI}, 1
    s_mul_i32 s{sC}, s{sC}, 640
    """)
def pf_one(a, sT, sA, sB, sU, sC, vW, vX, dst):
    for x in range(300): assert (x * 2731) >> 16 == x // 24
    lx, le = a.newlab("px"), a.newlab("pe")
    a.e(f"""
    s_mul_i32 s{sA}, s{sT}, 2731
    s_lshr_b32 s{sA}, s{sA}, 16
    s_mul_i32 s{sB}, s{sA}, 24
    s_sub_u32 s{sB}, s{sT}, s{sB}
    s_add_u32 s{sA}, s{sA}, {PF0}
    s_cmp_lt_u32 s{sB}, 8
    s_cbranch_scc1 {lx}
    s_sub_u32 s{sB}, s{sB}, 8
    s_lshl_b32 s{sB}, s{sB}, 2
    s_lshl_b32 s{sA}, s{sA}, 6
    s_add_u32 s{sA}, s{sA}, s{sB}
    s_mul_i32 s{sA}, s{sA}, 3840
    s_add_u32 s{sA}, s{sA}, s{sC}
    buffer_load_dword v{dst}, v{vW}, {srd(SRD_B)}, s{sA} offen
    s_branch {le}
    """)
    a.lab(lx)
    a.e(f"""
    s_lshr_b32 s{sU}, s{S_XI}, 1
    s_lshl_b32 s{sU}, s{sU}, 3
    s_add_u32 s{sB}, s{sB}, s{sU}
    s_mul_i32 s{sB}, s{sB}, {64*1280}
    s_lshl_b32 s{sA}, s{sA}, 7
    s_add_u32 s{sA}, s{sA}, s{sB}
    buffer_load_dword v{dst}, v{vX}, {srd(SRD_A)}, s{sA} offen
    """)
    a.lab(le)

def a1(a):
    ra = RA(2)
    t0, t1, t2 = [ra.a() for _ in range(3)]
    vo = [ra.a() for _ in range(5)]
    lr, g, ad, adh, so_u, otap = [ra.a() for _ in range(6)]
    taps = [ra.a(2) for _ in range(3)]
    KR = [ra.a(6, 2) for _ in range(6)]; VR = [ra.a(4, 2) for _ in range(6)]
    W = [ra.a(5) for _ in range(3)]; U = ra.a(8); O = [ra.a(4, 4) for _ in range(6)]; X = ra.a(4)
    vz = ra.a()
    sTI, sCH, sSO, sM0, sT, sSH, sU, sCG = 60, 61, 62, 63, 64, 65, 66, 67
    a.c("A1: 32 rows x 320 channels")
    a.e(f"""
    s_sub_u32 s{sT}, s{S_J}, 24
    s_lshl_b32 s{sT}, s{sT}, 3
    s_add_u32 s{sT}, s{sT}, s{S_XI}
    s_lshr_b32 s{sTI}, s{sT}, 1
    s_and_b32 s{sCH}, s{sT}, 1
    s_lshl_b32 s{S_ASLOT}, s{sCH}, 5
    s_add_u32 s{S_ASLOT}, s{S_ASLOT}, s{sTI}
    s_mov_b32 s{sCG}, s{S_WAVE}
    s_lshl_b32 s{sT}, s{sTI}, 3
    s_add_u32 s{sT}, s{sT}, s{S_WAVE}
    s_mul_i32 s{sSO}, s{sT}, {8*1280}
    s_mul_i32 s{sT}, s{sCH}, 640
    s_add_u32 s{sSO}, s{sSO}, s{sT}
    s_mul_i32 s{sM0}, s{S_WAVE}, 5120
    s_and_b32 s{sT}, s{S_WAVE}, 1
    s_lshl_b32 s{sT}, s{sT}, 2
    """)
    for x in range(320): assert (x * 1639) >> 16 == x // 40
    a.e(f"s_movk_i32 s{sU}, 1280")
    def koff(j):
        sub = 1024 * j if j < 4 else 0
        o = []; src = L
        if j: o.append(f"v_add_u32 v{t0}, {64*j}, v{L}"); src = t0
        o += [f"v_mul_u32_u24 v{t1}, 1639, v{src}", f"v_lshrrev_b32 v{t1}, 16, v{t1}",
              f"v_mul_u32_u24 v{t2}, 40, v{t1}", f"v_sub_u32 v{t0}, v{src}, v{t2}",
              f"v_and_or_b32 v{t2}, v{t1}, 2, s{sT}", f"v_xor_b32 v{t0}, v{t0}, v{t2}", f"v_lshlrev_b32 v{t0}, 4, v{t0}"]
        if sub: o += [f"v_mad_u32_u24 v{t0}, v{t1}, s{sU}, v{t0}", f"v_subrev_u32 v{vo[j]}, {sub}, v{t0}"]
        else: o += [f"v_mad_u32_u24 v{vo[j]}, v{t1}, s{sU}, v{t0}"]
        a.e("\n".join(o))
    koff(0); koff(1)
    a.e("s_waitcnt lgkmcnt(0)")
    mk_srd(a, SRD_A, P_K, NB); mk_srd(a, SRD_B, P_V, NB)
    def dma1(srdn, lbase, so, j):
        a.e(f"s_add_u32 m0, s{sM0}, {lbase + (4096 if j == 4 else 0)}\n s_nop 0")
        a.e(f"buffer_load_dwordx4 v{vo[j]}, {srd(srdn)}, s{so} offen offset:{1024*(j&3)} lds")
    for j in range(5):
        if j >= 2: koff(j)
        dma1(SRD_A, A_KB, sSO, j); dma1(SRD_B, A_VB, sSO, j)
        if j == 1:
            mk_srd(a, SRD_D, P_SH, 640 * 8)
            a.e(f"""
            v_and_b32 v{lr}, 15, v{L}
            s_mul_i32 s{sSH}, s{sCH}, 320
            v_add_u32 v{so_u}, s{sSH}, v{lr}
            v_lshlrev_b32 v{otap}, 3, v{so_u}
            s_lshl_b32 s{sSH}, s{sCG}, 7
            """)
            for n in range(3):
                a.e(f"buffer_load_dwordx2 {v(taps[n],2)}, v{otap}, {srd(SRD_D)}, s{sSH} offen offset:{1024*n}")
    lab = a.newlab("a1_nohalo")
    a.e(f"""
    s_cmp_lg_u32 s{S_WAVE}, 7
    s_cbranch_scc1 {lab}
    s_sub_u32 s{sSH}, s{sSO}, {64*1280}
    s_cmp_eq_u32 s{sTI}, 0
    s_cselect_b32 s{sSH}, {NB}, s{sSH}
    """)
    for j in (2, 3, 4): dma1(SRD_A, A_KB - 8 * 5120, sSH, j)
    a.lab(lab)
    NH = 0
    mk_srd(a, SRD_A, P_H, T_BYTES)
    a.e(f"s_add_u32 s68, s{S_CB}, s{S_WAVE}\n s_lshl_b32 s68, s68, 12\n v_lshlrev_b32 v244, 4, v{L}")
    assert AH == 0
    if AH:
        NH = 1
        nhp = a.newlab("nohelp")
        pf_lanes(a, 240, 241, t0, t1, 68, 69)
        mk_srd(a, SRD_A, P_X, NB); mk_srd(a, SRD_B, P_W, 640 * 3840)
        a.e(f"""
        s_lshl_b32 s70, s{S_WAVE}, 3
        s_add_u32 s70, s70, s{S_J}
        s_sub_u32 s70, s70, 24
        s_min_u32 s70, s70, {AH-1}
        s_add_u32 s70, s70, {24*(10-PF0)-AH}
        s_barrier
        s_cmp_lt_u32 s{S_WAVE}, {AH//8}
        s_cbranch_scc1 {nhp}
        s_mov_b64 exec, 1
        """)
        a.lab(nhp)
        pf_one(a, 70, 71, 72, 68, 69, 240, 241, 244)
        a.e("s_mov_b64 exec, -1")
    mk_srd(a, SRD_D, P_DBG, 256)
    a.e(f"v_and_b32 v{vz}, 7, v{L}\n v_lshlrev_b32 v{vz}, 2, v{vz}")
    mk_srd(a, SRD_C, P_WS, T_BYTES)
    mk_fl(a)
    conv_sload(a)
    a.e(f"""
    v_lshrrev_b32 v{g}, 4, v{L}
    v_lshrrev_b32 v{t0}, 2, v{lr}
    v_lshl_add_u32 v{t1}, v{g}, 3, v{t0}
    v_mul_u32_u24 v{ad}, 640, v{t1}
    v_and_b32 v{t2}, 3, v{lr}
    v_lshl_add_u32 v{ad}, v{t2}, 3, v{ad}
    v_add_u32 v{ad}, {A_KB}, v{ad}
    v_lshrrev_b32 v{t0}, 1, v{t0}
    v_and_b32 v{t1}, 1, v{g}
    v_lshl_or_b32 v{t0}, v{t1}, 1, v{t0}
    v_xor_b32 v{t0}, s{sCG}, v{t0}
    v_lshlrev_b32 v{t0}, 5, v{t0}
    v_xor_b32 v{t1}, 64, v{t0}
    v_add_u32 v{adh}, v{t1}, v{ad}
    v_subrev_u32 v{adh}, {4*640}, v{adh}
    v_add_u32 v{ad}, v{t0}, v{ad}
    v_and_b32 v{t0}, 0xfffffff7, v{so_u}
    v_lshlrev_b32 v{t0}, 12, v{t0}
    s_lshl_b32 s{sT}, s{sTI}, 7
    v_lshlrev_b32 v{t1}, 4, v{g}
    v_add_u32 v{t1}, s{sT}, v{t1}
    v_and_b32 v{t2}, 8, v{lr}
    v_lshl_add_u32 v{t1}, v{t2}, 3, v{t1}
    v_sub_u32 v{so_u}, 4080, v{t1}
    v_add_u32 v{so_u}, v{so_u}, v{t0}
    s_lshl_b32 s{sU}, s{sCG}, 16
    """)
    def tapprep(n):
        tp, w = taps[n], W[n]
        a.e(f"""
        v_alignbit_b32 v{w}, v{tp}, v{tp}, 16
        v_alignbit_b32 v{w+1}, v{tp+1}, v{tp+1}, 16
        v_and_b32 v{w+2}, 0xffff0000, v{tp}
        v_and_b32 v{w+3}, 0xffff, v{tp}
        v_and_b32 v{w+4}, 0xffff, v{tp+1}
        v_or_b32 v{w+2}, v{w+2}, v{w+4}
        v_and_b32 v{w+4}, 0xffff0000, v{tp+1}
        """)
    a.e(f"s_waitcnt vmcnt({6+NH})")
    for n in range(3): tapprep(n)
    stamp(a, 1)
    a.e(f"s_waitcnt vmcnt({NH}) lgkmcnt(0)\n s_barrier")
    a.e(f"buffer_load_dword v{vz}, v{vz}, {srd(SRD_D)}, 0 offen sc1")
    if "hearly" in EX:
        h_load(a, 208, 244, SRD_A, 68)
        a.e("s_setprio 1")
    stamp(a, 2)
    if STAMPS: a.e("s_waitcnt lgkmcnt(0)")
    def rd(u):
        o = 256 * (u >> 1) + (u & 1) * 32 * 640
        return [f"ds_read_b64_tr_b16 {v(KR[u],2)}, v{adh} offset:{o}",
                f"ds_read_b64_tr_b16 {v(KR[u]+2,2)}, v{ad} offset:{o}",
                f"ds_read_b64_tr_b16 {v(KR[u]+4,2)}, v{ad} offset:{o+2560}",
                f"ds_read_b64_tr_b16 {v(VR[u],2)}, v{ad} offset:{A_VB-A_KB+o}",
                f"ds_read_b64_tr_b16 {v(VR[u]+2,2)}, v{ad} offset:{A_VB-A_KB+o+2560}"]
    a.e("\n".join(rd(0) + rd(1) + rd(2)))
    done = a.newlab("a1_done")
    for u in range(6):
        k, w, ob = KR[u], W[u >> 1], O[u]
        if u == 4: a.e(f"s_cmp_ge_u32 s{S_WAVE}, 4\n s_cbranch_scc1 {done}")
        a.e(f"s_waitcnt lgkmcnt({5*(min(5, u + 2) - u)})")
        if u + 3 < 6:
            a.e("\n".join(rd(u + 3)))
        for m in range(4):
            a.e(f"v_dot2_f32_bf16 v{U+2*m}, v{k+m}, v{w+4}, 0")
            a.e(f"v_dot2_f32_bf16 v{U+2*m+1}, v{k+m+1}, v{w+1}, 0")
        for m in range(4):
            a.e(f"v_dot2_f32_bf16 v{U+2*m}, v{k+m+1}, v{w+2}, v{U+2*m}")
            a.e(f"v_dot2_f32_bf16 v{U+2*m+1}, v{k+m+2}, v{w}, v{U+2*m+1}")
        for m in range(4):
            a.e(f"v_dot2_f32_bf16 v{U+2*m}, v{k+m+2}, v{w+3}, v{U+2*m}")
        for m in range(4):
            x = X + 2 * (m & 1)
            a.e(f"""
            v_lshlrev_b32 v{x}, 16, v{VR[u]+m}
            v_and_b32 v{x+1}, 0xffff0000, v{VR[u]+m}
            v_mul_f32 v{x+1}, v{x+1}, v{U+2*m+1}
            v_mul_f32 v{x}, v{x}, v{U+2*m}
            v_cvt_pk_bf16_f32 v{ob+3-m}, v{x+1}, v{x}
            """)
        if u & 1:
            lo, hi = O[u - 1], O[u]
            for i in range(4): a.e(f"v_mov_b32 v{X+i}, v{lo+i}")
            for i in (3, 2, 1, 0): a.e(f"v_mov_b32_dpp v{lo+i}, v{hi+i} row_ror:8 row_mask:0xf bank_mask:0xc")
            for i in range(4): a.e(f"v_mov_b32_dpp v{hi+i}, v{X+i} row_ror:8 row_mask:0xf bank_mask:0x3")
            a.e(f"buffer_store_dwordx4 {v(lo,4)}, v{so_u}, {srd(SRD_C)}, s{sU} offen sc1")
            a.e(f"s_add_u32 s{sT}, s{sU}, {8*4096}")
            a.e(f"buffer_store_dwordx4 {v(hi,4)}, v{so_u}, {srd(SRD_C)}, s{sT} offen sc1")
            a.e(f"s_add_u32 s{sU}, s{sU}, {8<<16}")
    a.lab(done)
    a.e("s_waitcnt lgkmcnt(0)")
    stamp(a, 3)
    if "hearly" in EX:
        a.e("s_setprio 0\n s_waitcnt vmcnt(4)")
        h_stage(a, 208, 224, S_WAVE, 244, t2, sT)
    nz = a.newlab("a1_nz")
    a.e(f"s_waitcnt vmcnt(0)\n v_cmp_ne_u32 vcc, 1, v{vz}\n s_nop 1\n s_cmp_eq_u64 vcc, 0\n s_cbranch_scc1 {nz}")
    poll_z(a, t0, t1)
    a.lab(nz)
    a.e("s_barrier")
    stamp(a, 4)
    set_flag(a, S_ASLOT, t0, t1)
    return ra.hi

def q_touch(a, sN, sA, sB, vX):
    a.e(f"s_lshl_b32 s{sN}, s{S_WAVE}, 3\n s_add_u32 s{sN}, s{sN}, s{S_J}\n s_sub_u32 s{sN}, s{sN}, 16")
    nq, q2 = a.newlab("pnq"), a.newlab("pq2")
    a.e(f"""
    s_cmp_lt_u32 s{sN}, 32
    s_cbranch_scc1 {q2}
    s_xor_b32 s{sA}, s{sN}, 48
    s_mul_i32 s{sA}, s{sA}, {64*1280}
    s_lshl_b32 s{sB}, s{S_XI}, 7
    s_add_u32 s{sA}, s{sA}, s{sB}
    buffer_load_dword v250, v{vX}, {srd(SRD_B)}, s{sA} offen
    s_branch {nq}
    """)
    a.lab(q2)
    a.e(f"""
    s_and_b32 s{sA}, s{S_XI}, 1
    s_cbranch_scc1 {nq}
    s_cmp_lt_u32 s{sN}, 16
    s_cbranch_scc1 {nq}
    s_and_b32 s{sB}, s{S_P2}, 2
    s_lshl_b32 s{sB}, s{sB}, 3
    s_xor_b32 s{sA}, s{sN}, s{sB}
    s_mul_i32 s{sA}, s{sA}, {64*1280}
    s_lshl_b32 s{sB}, s{S_CB}, 1
    s_add_u32 s{sA}, s{sA}, s{sB}
    buffer_load_dword v250, v{vX}, {srd(SRD_B)}, s{sA} offen
    """)
    a.lab(nq)

def prefetcher(a):
    vW, vX, vQ, vO, t0, t1, z4 = 2, 3, 4, 5, 6, 7, 8
    sN, sA, sB, sC, sT, sU = 60, 61, 62, 63, 64, 65
    a.c("L2 prefetch of this XCD's GEMM operands in K order (speed only) + housekeeping")
    pf_lanes(a, vW, vX, t0, t1, sU, sC)
    a.e(f"""
    s_lshl_b32 s{sN}, s{S_WAVE}, 3
    s_add_u32 s{sN}, s{sN}, s{S_J}
    s_sub_u32 s{sN}, s{sN}, 16
    s_waitcnt lgkmcnt(0)
    """)
    mk_fl(a)
    nz, nt, nc = a.newlab("nozero"), a.newlab("notlb"), a.newlab("nocode")
    a.e(f"s_cmp_lg_u32 s{sN}, 63\n s_cbranch_scc1 {nz}")
    a.e(f"s_mul_i32 s{sT}, s{S_XI}, {GB}\n s_add_u32 s{sT}, s{sT}, {WS_KV}")
    mk_srd(a, SRD_C, P_WS, GB, off_sreg=sT)
    mk_srd(a, SRD_D, P_DBG, 256)
    for i in range(4): a.e(f"v_mov_b32 v{z4+i}, 0")
    a.e(f"""
    v_lshlrev_b32 v{t0}, 4, v{L}
    v_lshlrev_b32 v{t1}, 7, v{L}
    s_lshl_b32 s{sT}, s{S_XI}, 13
    buffer_store_dword v{z4}, v{t1}, {srd(SRD_FL)}, s{sT} offen sc1
    s_add_u32 s{sT}, s{sT}, 0x10000
    buffer_store_dword v{z4}, v{t1}, {srd(SRD_FL)}, s{sT} offen sc1
    s_movk_i32 s{sT}, 4096
    s_movk_i32 s{sU}, 8192
    """)
    for n in range(9):
        a.e(f"buffer_store_dwordx4 {v(z4,4)}, v{t0}, {srd(SRD_C)}, {('0', 's%d' % sT, 's%d' % sU)[n>>2]} offen offset:{1024*(n&3)} sc1")
    a.e(f"""
    s_lshl_b32 s{sT}, s{S_XI}, 2
    v_mov_b32 v{t1}, 1
    s_waitcnt vmcnt(0)
    s_mov_b64 exec, 1
    buffer_store_dword v{t1}, v{t0}, {srd(SRD_D)}, s{sT} offen sc1
    s_mov_b64 exec, -1
    """)
    a.lab(nz)
    a.e(f"s_cmp_lg_u32 s{sN}, 62\n s_cbranch_scc1 {nt}")
    a.e(f"v_lshlrev_b32 v{t1}, 20, v{L}")
    for i, (ptr, nb) in enumerate([(P_WS, WS_END), (P_OUT, 2048 * 2560), (P_Q, NB), (P_WO, 640 * 1280), (P_DBG, 256), (P_H, T_BYTES)]):
        mk_srd(a, SRD_A, ptr, nb)
        a.e(f"buffer_load_dword v{236+i}, v{t1}, {srd(SRD_A)}, 0 offen")
    a.lab(nt)
    mk_srd(a, SRD_A, P_X, NB); mk_srd(a, SRD_B, P_W, 640 * 3840)
    done = a.newlab("pfd")
    NI = 24 * (10 - PF0) - AH
    for m in range((NI + 63) // 64):
        if m and "nopb" not in EX: a.e("s_barrier")
        a.e(f"s_add_u32 s{sT}, s{sN}, {64*m}")
        if 64 * m + 64 > NI: a.e(f"s_cmp_ge_u32 s{sT}, {NI}\n s_cbranch_scc1 {done}")
        pf_one(a, sT, sA, sB, sU, sC, vW, vX, 244 + m)
    a.lab(done)
    a.e("s_barrier")
    if "hearly" not in EX:
        nh = a.newlab("pnh")
        mk_srd(a, SRD_B, P_H, T_BYTES)
        a.e(f"""
        s_cmp_ge_u32 s{sN}, 32
        s_cbranch_scc1 {nh}
        s_and_b32 s{sA}, s{S_XI}, {os.environ.get("HSK", "3")}
        s_cbranch_scc0 {nh}
        s_mul_i32 s{sA}, s{S_XI}, {64*4096}
        s_lshl_b32 s{sB}, s{sN}, 13
        s_add_u32 s{sA}, s{sA}, s{sB}
        v_lshlrev_b32 v{t0}, 7, v{L}
        buffer_load_dword v249, v{t0}, {srd(SRD_B)}, s{sA} offen
        """)
        a.lab(nh)
    mk_srd(a, SRD_A, P_WO, 640 * 1280)
    a.e(f"""
    s_mul_i32 s{sA}, s{sN}, {12*1280}
    s_add_u32 s{sA}, s{sA}, s{sC}
    buffer_load_dword v248, v{vW}, {srd(SRD_A)}, s{sA} offen
    """)
    nqq = a.newlab("pnqq")
    mk_srd(a, SRD_B, P_Q, NB)
    a.e(f"s_and_b32 s{sA}, s{S_XI}, 1\n s_cbranch_scc0 {nqq}")
    q_touch(a, sN, sA, sB, vX)
    a.lab(nqq)
    conv_sload(a)
    stamp(a, 1)
    nz = a.newlab("pnz")
    a.e(f"s_cmp_lg_u32 s{S_WAVE}, 1\n s_cbranch_scc1 {nz}")
    poll_z(a, t0, t1)
    a.lab(nz)
    a.e("s_waitcnt lgkmcnt(0)")

def conv(a):
    ra = RA(2)
    lr, g, t0, t1, t2, aB, aT, vrow, vfl, vrow2, aR = [ra.a() for _ in range(11)]
    aA = [ra.a() for _ in range(4)]
    z4 = ra.a(4, 4); AD = ra.a(4, 4)
    Q = ra.a(16, 4)
    AF = [[ra.a(4, 4) for _ in range(8)] for _ in range(2)]
    BF = [[ra.a(4, 4) for _ in range(8)] for _ in range(2)]
    ACC = [ra.a(4, 4) for _ in range(8)]
    sD, sR, sSO, sT, sOO, sDV, sH, sQO = 60, 61, 62, 63, 64, 65, 66, 67
    fin, idle = a.newlab("conv_fin"), a.newlab("conv_idle")
    a.c("conv")
    if "noconv" in EX: a.e("s_branch L_FIN")
    mk_srd(a, SRD_A, P_WS, T_BYTES); mk_srd(a, SRD_B, P_Q, NB); mk_srd(a, SRD_C, P_OUT, 2048 * 2560)
    def qg(slot, rowoff, nd):
        return [f"s_add_u32 s{sT}, s{sQO}, {rowoff*1280}",
                f"buffer_load_dwordx{nd} {v(Q+slot,nd)}, v{vrow}, {srd(SRD_B)}, s{sT} offen"]
    def qgather(n):
        sk = a.newlab("qs")
        if n >= 2: a.e(f"s_cmp_lg_u32 s{S_P2}, 0\n s_cbranch_scc1 {sk}")
        a.e("\n".join(qg(4 * n, (1024 if n < 2 else 0) + 64 * (n & 1), 4)))
        a.lab(sk)
    a.e(f"""
    v_and_b32 v{lr}, 15, v{L}
    v_lshrrev_b32 v{g}, 4, v{L}
    v_mul_u32_u24 v{vrow}, 1280, v{L}
    s_mul_i32 s{sQO}, s{S_WAVE}, {128*1280}
    s_lshl_b32 s{sOO}, s{sQO}, 1
    s_lshl_b32 s{sT}, s{S_CB}, 1
    s_add_u32 s{sQO}, s{sQO}, s{sT}
    s_add_u32 s{sOO}, s{sOO}, s{sT}
    v_lshlrev_b32 v{vrow2}, 1, v{vrow}
    v_lshrrev_b32 v{aR}, 2, v{lr}
    v_mul_u32_u24 v{aR}, {TP}, v{aR}
    v_and_b32 v{t1}, 3, v{lr}
    v_lshl_add_u32 v{aR}, v{t1}, 3, v{aR}
    v_lshl_add_u32 v{aR}, v{g}, 5, v{aR}
    s_lshl_b32 s{sT}, s{S_WAVE}, 8
    s_add_u32 s{sT}, s{sT}, {TB}
    v_add_u32 v{aR}, s{sT}, v{aR}
    s_add_u32 s{sD}, s{S_CB}, s{S_WAVE}
    s_lshl_b32 s{sSO}, s{sD}, 12
    v_lshlrev_b32 v{t0}, 4, v{L}
    """)
    HH, HG = AF[0][0], BF[0][0]
    mk_srd(a, SRD_D, P_H, T_BYTES)
    nh1, nh2 = a.newlab("nh1"), a.newlab("nh2")
    skip = "" if "hearly" not in EX else f"s_cmp_eq_u32 s{S_P2}, 0\n s_cbranch_scc1 "
    if skip: a.e(skip + nh1)
    h_load(a, HH, t0, SRD_D, sSO)
    a.lab(nh1)
    a.e(f"""
    s_mul_i32 s{sR}, s{S_WAVE}, {UP}
    s_add_u32 s{sR}, s{sR}, {UB}
    s_mul_i32 s{sH}, s{S_WAVE}, {HP}
    s_cmp_ge_u32 s{sD}, 320
    s_cselect_b32 s{sT}, 32, 0
    v_and_b32 v{vfl}, 31, v{L}
    v_add_u32 v{vfl}, s{sT}, v{vfl}
    v_lshlrev_b32 v{vfl}, 7, v{vfl}
    """)
    for i in range(4):
        a.e(f"v_mov_b32 v{z4+i}, 0")
    a.e(f"""
    v_and_b32 v{t1}, 1, v{lr}
    v_cmp_eq_u32 vcc, 1, v{t1}
    v_mov_b32 v{t1}, {HB+H_O}
    v_mov_b32 v{t2}, {HB+2}
    v_cndmask_b32 v{t1}, v{t1}, v{t2}, vcc
    v_lshl_add_u32 v{t1}, v{lr}, 1, v{t1}
    v_lshl_add_u32 v{t1}, v{g}, 4, v{t1}
    v_add_u32 v{aA[0]}, s{sH}, v{t1}
    v_add_u32 v{aA[1]}, 1024, v{aA[0]}
    v_add_u32 v{aA[2]}, 2048, v{aA[0]}
    v_add_u32 v{aA[3]}, 3072, v{aA[0]}
    v_lshlrev_b32 v{t0}, 4, v{L}
    v_add_u32 v{aT}, s{sR}, v{t0}
    s_and_b32 s{sT}, s{sD}, 1
    s_lshl_b32 s{sT}, s{sT}, 4
    s_lshr_b32 s{sDV}, s5, s{sT}
    s_and_b32 s{sDV}, s{sDV}, 0xffff
    v_lshl_add_u32 v{t1}, v{g}, 3, v{lr}
    v_sub_u32 v{t1}, 15, v{t1}
    v_and_b32 v{t2}, 1, v{t1}
    v_lshlrev_b32 v{t2}, 4, v{t2}
    v_lshlrev_b32 v{t2}, v{t2}, s{sDV}
    v_ashrrev_i32 v{t1}, 1, v{t1}
    """)
    for r in range(4):
        a.e(f"v_cmp_eq_u32 vcc, {r}, v{t1}\n s_nop 1\n v_cndmask_b32 v{AD+r}, 0, v{t2}, vcc")
    a.e(f"""
    v_lshlrev_b32 v{t1}, 5, v{lr}
    v_sub_u32 v{aB}, 480, v{t1}
    v_lshl_add_u32 v{aB}, v{g}, 4, v{aB}
    v_add_u32 v{aB}, s{sR}, v{aB}
    """)
    if skip: a.e(skip + nh2)
    a.e("s_waitcnt vmcnt(0)")
    h_stage(a, HH, HG, S_WAVE, t0, t1, sT)
    a.lab(nh2)
    a.e(f"s_mov_b32 exec_hi, 0\n ds_write_b128 v{aT}, {v(z4,4)} offset:4096\n s_mov_b64 exec, -1")
    a.e("s_waitcnt lgkmcnt(0)")
    for i in range(8):
        o0 = 128 * (i & 1)
        a.e(f"ds_read2_b32 {v(AF[0][i],2)}, v{aA[i>>1]} offset0:{o0} offset1:{o0+1}")
        a.e(f"ds_read2_b32 {v(AF[0][i]+2,2)}, v{aA[i>>1]} offset0:{o0+2} offset1:{o0+3}")
    stamp(a, 5)
    npl = a.newlab("nopoll")
    a.e(f"s_cmp_lg_u32 s{S_WAVE}, 1\n s_cbranch_scc1 {npl}")
    poll(a, SRD_FL, vfl, t1, slp=int(os.environ.get("ASL", "2")))
    a.lab(npl)
    a.e("s_barrier")
    stamp(a, 6)
    UR = AF[1][0]
    for j in range(4):
        a.e(f"buffer_load_dwordx4 {v(UR+4*j,4)}, v{t0}, {srd(SRD_A)}, s{sSO} offen offset:{1024*j} sc1")
    for j in range(4):
        a.e(f"s_waitcnt vmcnt({3-j})\n ds_write_b128 v{aT}, {v(UR+4*j,4)} offset:{1024*j}")
    a.e(f"""
    v_lshlrev_b32 v{t1}, 5, v{lr}
    v_lshl_add_u32 v{aT}, v{g}, 3, v{t1}
    s_mul_i32 s{sT}, s{S_WAVE}, {TP}
    s_add_u32 s{sT}, s{sT}, {TB}
    v_add_u32 v{aT}, s{sT}, v{aT}
    """)
    MF = "v_mfma_f32_16x16x32_bf16"
    def rd1(b, slot, i, r):
        o0 = 128 * (i & 1) + 16 * r
        if "fakeA" in EX and i < 4:
            return [f"ds_read_b128 {v(BF[b][slot],4)}, v{aB} offset:{3584 - 512*i + 64*r}",
                    f"ds_read_b64 {v(AF[b][slot],2)}, v{vfl} offset:{512*i+64*r}",
                    f"ds_read_b64 {v(AF[b][slot]+2,2)}, v{vfl} offset:{512*i+64*r+512}"]
        return [f"ds_read_b128 {v(BF[b][slot],4)}, v{aB} offset:{3584 - 512*i + 64*r}",
                f"ds_read2_b32 {v(AF[b][slot],2)}, v{aA[i>>1]} offset0:{o0} offset1:{o0+1}",
                f"ds_read2_b32 {v(AF[b][slot]+2,2)}, v{aA[i>>1]} offset0:{o0+2} offset1:{o0+3}"]
    def reads(it):
        b = it & 1; o = []
        if it < 8:
            for i in range(8): o += rd1(b, i, i, it)
        elif it < 12:
            for k in range(2):
                for i in range(4): o += rd1(b, 4 * k + i, i, 2 * (it - 8) + k)
        return o
    def mf(it):
        b = it & 1; o = []
        if it < 8:
            if it == 0:
                o += [f"{MF} {v(ACC[c],4)}, {v(AD,4)}, {v(BF[b][c],4)}, 0" for c in range(8)]
            for q in range(8):
                for c in range(max(q, 4), 8):
                    o.append(f"{MF} {v(ACC[c],4)}, {v(AF[b][q],4)}, {v(BF[b][c-q],4)}, {v(ACC[c],4)}")
        else:
            for k in range(2):
                for q in range(4):
                    for c in range(q, 4):
                        o.append(f"{MF} {v(ACC[c],4)}, {v(AF[b][4*k+q],4)}, {v(BF[b][4*k+c-q],4)}, {v(ACC[c],4)}")
        return o
    def spread(M, F):
        out = []; n = len(M); fi = 0
        for i, m in enumerate(M):
            out.append(m)
            tgt = (len(F) * (i + 1) + n - 1) // n
            out += F[fi:tgt]; fi = tgt
        return out
    def twrite(half):
        a.e("s_nop 3")
        for c in range(4):
            r = ACC[4 * half + c]
            a.e(f"v_cvt_pk_bf16_f32 v{r}, v{r}, v{r+1}\n v_cvt_pk_bf16_f32 v{r+1}, v{r+2}, v{r+3}")
            a.e(f"ds_write_b64 v{aT}, {v(r,2)} offset:{(1-half)*8*TP + 512*c}")
    Y, X = ACC[4], ACC[6]
    def t_rd(n, nd, toff):
        return [f"ds_read_b64_tr_b16 {v(Y+4*(n&1)+2*k,2)}, v{aR} offset:{toff + 4*TP*k}" for k in range(nd // 2)]
    def t_mul(n, nd, qslot, rowoff):
        o = []
        for i in range(nd):
            y, q, x = Y + 4 * (n & 1) + i, Q + qslot + i, X + 4 * (i & 1)
            o += [f"v_lshlrev_b32 v{x}, 16, v{y}", f"v_and_b32 v{x+1}, 0xffff0000, v{y}",
                  f"v_lshlrev_b32 v{x+2}, 16, v{q}", f"v_and_b32 v{x+3}, 0xffff0000, v{q}",
                  f"v_mul_f32 v{x}, v{x}, v{x+2}", f"v_mul_f32 v{x+1}, v{x+1}, v{x+3}",
                  f"v_cvt_pk_bf16_f32 v{y}, v{x}, v{x+1}"]
        o += [f"s_add_u32 s{sT}, s{sOO}, {rowoff*2560}",
              f"buffer_store_dwordx{nd} {v(Y+4*(n&1),nd)}, v{vrow2}, {srd(SRD_C)}, s{sT} offen {os.environ.get('OSH' if rowoff >= 1024 else 'OSL', '')}"]
        return o
    if "fakeA" in EX: a.e(f"v_lshl_add_u32 v{vfl}, v{L}, 3, s{sH}")
    nqt = a.newlab("nqt")
    a.e(f"s_cmp_eq_u32 s{S_P2}, 0\n s_cbranch_scc1 {nqt}\n s_barrier")
    q_touch(a, 68, 69, 70, vrow)
    a.lab(nqt)
    stamp(a, 7)
    lo4, lj = a.newlab("lo4"), a.newlab("loj")
    a.e(f"s_cmp_eq_u32 s{S_P2}, 2\n s_cbranch_scc1 {lo4}")
    a.e("\n".join(x for x in reads(0) if "b128" in x))
    for it in range(8):
        a.e("s_waitcnt lgkmcnt(0)")
        if "nocprio" not in EX: a.e(f"s_setprio {3 - it // 2}")
        if 3 <= it <= 6 and "nog" not in EX: qgather(it - 3)
        a.e("\n".join(interleave(mf(it), reads(it + 1) if "nord" not in EX else [])))
    twrite(1)
    a.e("s_waitcnt lgkmcnt(0)\n s_barrier")
    stamp(a, 8)
    full = a.newlab("full")
    a.e(f"s_cmp_eq_u32 s{S_P2}, 0\n s_cbranch_scc1 {full}")
    a.e("\n".join(t_rd(0, 4, 0) + t_rd(1, 4, 128)))
    a.e("s_waitcnt vmcnt(0) lgkmcnt(0)")
    a.e("\n".join(t_mul(0, 4, 0, 1024) + t_mul(1, 4, 4, 1024 + 64)))
    a.e("s_branch L_FIN")
    a.lab(full)
    for it in range(8, 12):
        if it > 8: a.e("s_waitcnt lgkmcnt(0)")
        if "nocprio" not in EX: a.e(f"s_setprio {11 - it}")
        F = reads(it + 1)
        if it == 8: F = t_rd(0, 4, 0) + t_rd(1, 4, 128) + F
        if it == 9:
            a.e("s_waitcnt vmcnt(2)")
            F = interleave2(F, t_mul(0, 4, 0, 1024), 1)
        if it == 10: F = interleave2(F, t_mul(1, 4, 4, 1024 + 64), 1)
        a.e("\n".join(spread(mf(it), F)))
    if "wb2" in EX:
        nwb = a.newlab("nwb")
        a.e(f"s_lshl_b32 s{sT}, s{S_WAVE}, 8\n s_or_b32 s{sT}, s{sT}, s{S_J}\n s_cmp_lg_u32 s{sT}, {7*256+24}\n s_cbranch_scc1 {nwb}\n s_waitcnt vmcnt(0)\n buffer_wbl2 sc1")
        a.lab(nwb)
    a.e(f"s_branch {lj}")
    a.lab(lo4)
    a.e("\n".join(reads(8)))
    for it in range(8, 12):
        a.e("s_waitcnt lgkmcnt(0)")
        if it >= 10: a.e("\n".join(qg(4 * (it - 8), 64 * (it & 1), 4)))
        M = mf(it)
        if it == 8: M = [f"{MF} {v(ACC[c_],4)}, {v(AD,4)}, {v(BF[0][c_],4)}, 0" for c_ in range(4)] + M
        a.e("\n".join(spread(M, reads(it + 1))))
    a.e("s_waitcnt vmcnt(0)")
    a.lab(lj)
    twrite(0)
    a.e("s_waitcnt lgkmcnt(0)\n s_barrier")
    stamp(a, 9)
    a.e("\n".join(t_rd(0, 4, 8 * TP) + t_rd(1, 4, 8 * TP + 128)))
    a.e("s_waitcnt vmcnt(2) lgkmcnt(0)")
    a.e("\n".join(t_mul(0, 4, 8, 0) + t_mul(1, 4, 12, 64)))
    a.e("s_branch L_FIN")
    return ra.hi

def wo_dma(a):
    t0, t1, t2, vx = 228, 229, 230, [231, 232, 233, 234]
    sSX, sM, sT = 68, 69, 70
    mk_srd(a, SRD_A, P_WO, 640 * 1280)
    a.e(f"""
    v_lshrrev_b32 v{t0}, 3, v{L}
    v_mul_u32_u24 v{t0}, 1280, v{t0}
    v_and_b32 v{t1}, 7, v{L}
    v_lshrrev_b32 v{t2}, 4, v{L}
    v_lshlrev_b32 v{t2}, 1, v{t2}
    v_xor_b32 v{t1}, v{t1}, v{t2}
    v_lshl_add_u32 v{vx[0]}, v{t1}, 4, v{t0}
    v_add_u32 v{vx[1]}, {1*(8*1280-1024)}, v{vx[0]}
    v_add_u32 v{vx[2]}, {2*(8*1280-1024)}, v{vx[0]}
    v_add_u32 v{vx[3]}, {3*(8*1280-1024)}, v{vx[0]}
    s_sub_u32 s{sM}, s{S_WAVE}, 4
    s_mul_i32 s{sSX}, s{sM}, {160*1280}
    s_lshl_b32 s{sT}, s{S_GC}, 7
    s_add_u32 s{sSX}, s{sSX}, s{sT}
    s_mul_i32 s{sM}, s{sM}, 20480
    s_add_u32 s{sM}, s{sM}, {WOB}
    """)
    for q in range(5):
        a.e(f"s_add_u32 m0, s{sM}, {4096*q}\n s_nop 0")
        for j in range(4):
            a.e(f"buffer_load_dwordx4 v{vx[j]}, {srd(SRD_A)}, s{sSX} offen offset:{1024*j} lds")
        a.e(f"s_add_u32 s{sSX}, s{sSX}, {32*1280}")
    mk_srd(a, SRD_B, P_WS, T_BYTES, off=WS_PQ)

def g2(a):
    ra = RA(2)
    t0, t1, t2, t3, g, vo, vx, vfl, vst = [ra.a() for _ in range(9)]
    wm, wx = [ra.a() for _ in range(4)], [ra.a() for _ in range(4)]
    LA = int(os.environ.get("LA", "6"))
    NO = min(20, LA + 2)
    O_ = [ra.a(4, 4) for _ in range(NO)]
    O = [O_[k % NO] for k in range(20)]
    NW = int(os.environ.get("NW", "11"))
    WF = [[ra.a(4, 4) for _ in range(4)] for _ in range(NW)]
    ACC = [ra.a(4, 4) for _ in range(4)]
    D = WF[0][0]
    sT, sSO, sU = 62, 63, 65
    MF = "v_mfma_f32_16x16x32_bf16"
    OLD = os.environ.get("OLD", "sc1")
    a.c("G2")
    a.e(f"""
    s_mul_i32 s60, s{S_GC}, {os.environ.get("WR", "0")}
    s_add_u32 s60, s60, s{S_WAVE}
    s_and_b32 s60, s60, 7
    s_lshl_b32 s{sT}, s{S_RT}, 3
    s_add_u32 s{sT}, s{sT}, s60
    s_mul_i32 s{sSO}, s{sT}, {16*2560}
    s_lshr_b32 s{sT}, s{sT}, 1
    s_lshl_b32 s{sT}, s{sT}, 3
    s_mul_i32 s{sU}, s{sT}, 5120
    s_add_u32 s{sT}, s{sT}, 64
    v_and_b32 v{t0}, 7, v{L}
    v_add_u32 v{vfl}, s{sT}, v{t0}
    v_lshlrev_b32 v{vfl}, 7, v{vfl}
    v_lshrrev_b32 v{g}, 4, v{L}
    v_and_b32 v{t0}, 15, v{L}
    v_and_b32 v{t1}, 1, v{g}
    v_lshrrev_b32 v{t2}, 1, v{g}
    v_and_b32 v{vst}, 7, v{t0}
    v_mul_u32_u24 v{vst}, 2560, v{vst}
    v_and_b32 v{t3}, 8, v{t0}
    v_lshl_add_u32 v{vst}, v{t3}, 3, v{vst}
    v_lshl_add_u32 v{vst}, v{t1}, 5, v{vst}
    v_lshl_add_u32 v{vst}, v{t2}, 4, v{vst}
    s_and_b32 s{sT}, s60, 1
    s_lshl_b32 s{sT}, s{sT}, 8
    v_lshl_add_u32 v{t3}, v{t0}, 4, s{sT}
    v_lshl_add_u32 v{t3}, v{t1}, 9, v{t3}
    v_lshl_add_u32 v{vo}, v{t2}, 10, v{t3}
    v_mul_u32_u24 v{vx}, 5120, v{t2}
    v_add_u32 v{vx}, v{vx}, v{t3}
    v_add_u32 v{vx}, 4096, v{vx}
    s_lshl_b32 s{sT}, s{S_GC}, 7
    s_add_u32 s{sSO}, s{sSO}, s{sT}
    s_add_u32 s{sSO}, s{sSO}, 1280
    v_and_b32 v{t3}, 3, v{L}
    v_lshlrev_b32 v{t3}, 3, v{t3}
    s_and_b32 s64, s{S_GC}, {0 if "norot2" in EX else 3}
    s_mul_i32 s{sT}, s64, 20480
    s_add_u32 s{sT}, s{sT}, {WOB}
    v_add_u32 v{t3}, s{sT}, v{t3}
    s_movk_i32 s71, 20480
    s_cmp_eq_u32 s64, 3
    s_cselect_b32 s68, {-3*20480}, s71
    s_cmp_eq_u32 s64, 2
    s_cselect_b32 s69, {-3*20480}, s71
    s_cmp_eq_u32 s64, 1
    s_cselect_b32 s70, {-3*20480}, s71
    v_lshrrev_b32 v{t0}, 2, v{t0}
    v_mul_u32_u24 v{wm[1]}, 20, v{t2}
    v_lshl_add_u32 v{wm[1]}, v{t1}, 2, v{wm[1]}
    v_add_u32 v{wm[1]}, v{wm[1]}, v{t0}
    v_lshl_add_u32 v{wm[0]}, v{wm[1]}, 7, v{t3}
    v_bfe_u32 v{wm[1]}, v{wm[1]}, 1, 2
    v_lshl_add_u32 v{wm[0]}, v{wm[1]}, 5, v{wm[0]}
    v_mul_u32_u24 v{wx[1]}, 80, v{t2}
    v_lshl_add_u32 v{wx[1]}, v{t1}, 1, v{wx[1]}
    v_lshrrev_b32 v{wx[2]}, 1, v{t0}
    v_mul_u32_u24 v{wx[2]}, 20, v{wx[2]}
    v_and_b32 v{t0}, 1, v{t0}
    v_add3_u32 v{wx[1]}, v{wx[1]}, v{wx[2]}, v{t0}
    v_add_u32 v{wx[1]}, 16, v{wx[1]}
    v_lshl_add_u32 v{wx[0]}, v{wx[1]}, 7, v{t3}
    v_bfe_u32 v{wx[1]}, v{wx[1]}, 1, 2
    v_lshl_add_u32 v{wx[0]}, v{wx[1]}, 5, v{wx[0]}
    """)
    for nt in range(1, 4):
        a.e(f"v_xor_b32 v{wm[nt]}, {32*nt}, v{wm[0]}\n v_xor_b32 v{wx[nt]}, {32*nt}, v{wx[0]}")
    mk_srd(a, SRD_D, P_OUT, 2048 * 2560)
    def wrd(k):
        P, j = divmod(k, 5); b = k % NW
        if j < 4:
            o = [f"ds_read_b64_tr_b16 {v(WF[b][nt]+2*i,2)}, v{wm[nt]} offset:{5120*j+1024*i}" for nt in range(4) for i in range(2)]
        else:
            o = [f"ds_read_b64_tr_b16 {v(WF[b][nt]+2*i,2)}, v{wx[nt]} offset:{5120*i}" for nt in range(4) for i in range(2)]
            if P < 3: o[7] += "".join(f"\n v_add_u32 v{r}, s{68+P}, v{r}" for r in wm + wx)
        return o
    NB4 = int(os.environ.get("NB4", "4"))
    for k in range(NB4): a.e("\n".join(wrd(k)))
    npub = a.newlab("npub")
    a.e(f"s_cmp_ge_u32 s{S_J}, 16\n s_cbranch_scc1 {npub}\n s_lshl_b32 s60, s{S_RT}, 3\n s_add_u32 s60, s60, s{S_G}\n s_add_u32 s60, s60, 64\n s_waitcnt vmcnt(0)\n s_barrier")
    set_flag(a, 60, t0, t1, wave=5)
    a.lab(npub)
    for k in range(NB4, NW - 1): a.e("\n".join(wrd(k)))
    if "steps" not in EX: stamp(a, 7)
    nw = a.newlab("g2nw")
    a.e(f"""
    s_cmp_lg_u32 s{S_WAVE}, {os.environ.get("PW", "4")}
    s_cbranch_scc1 {nw}
    s_lshl_b32 s{sT}, s{S_RT}, 3
    s_add_u32 s{sT}, s{sT}, 64
    v_and_b32 v{vfl}, 7, v{L}
    v_add_u32 v{vfl}, s{sT}, v{vfl}
    v_lshlrev_b32 v{vfl}, 7, v{vfl}
    """)
    if "noj1" not in EX:
        nj = a.newlab("nj1")
        a.e(f"s_cmp_lt_u32 s{S_J}, 16\n s_cbranch_scc1 {nj}\n s_mov_b64 exec, 0x80")
        poll(a, SRD_FL, vfl, t0, slp=4)
        a.e("s_mov_b64 exec, -1")
        a.lab(nj)
    poll(a, SRD_FL, vfl, t0, slp=int(os.environ.get("GSL", "1")))
    a.lab(nw)
    a.e("s_barrier")
    if "steps" not in EX: stamp(a, 8)
    def oload(k):
        if "g3nold" in EX: return
        P, j = divmod(k, 5)
        if j == 0: a.e(f"s_add_u32 s66, s64, {P}\n s_and_b32 s66, s66, 3\n s_mul_i32 s66, s66, 10240\n s_add_u32 s66, s66, s{sU}\n s_add_u32 s67, s66, 5120")
        if j < 4: a.e(f"buffer_load_dwordx4 {v(O[k],4)}, v{vo}, {srd(SRD_B)}, s{66 + j//2} offen offset:{2048*(j&1)} {OLD}")
        else: a.e(f"buffer_load_dwordx4 {v(O[k],4)}, v{vx}, {srd(SRD_B)}, s66 offen {OLD}")
    for k in range(LA): oload(k)
    a.e("s_waitcnt lgkmcnt(0)")
    for k in range(20):
        a.e(f"s_waitcnt vmcnt({min(19, k+LA-1)-k}) lgkmcnt({min(15, 8*(min(19, k+NW-2)-k))})")
        GP_ = os.environ.get("GPR", "5")
        if GP_ == "5" and k % 5 == 0: a.e(f"s_setprio {3 - k // 5}")
        if GP_ == "b" and k in (4, 8, 12, 16): a.e("s_barrier")
        if GP_ == "b2" and k in (2, 4, 6, 8, 10, 12, 14, 16, 18): a.e("s_barrier")
        F = wrd(k + NW - 1) if k + NW - 1 < 20 else []
        if "g3nods" in EX: F = []
        for nt in range(4):
            if "g3nomf" not in EX: a.e(f"{MF} {v(ACC[nt],4)}, {v(WF[k%NW][nt],4)}, {v(O[k],4)}, {'0' if k == 0 else v(ACC[nt],4)}")
            a.e("\n".join(F[2*nt:2*nt+2]))
        if k + LA < 20: oload(k + LA)
    if "steps" not in EX: stamp(a, 9)
    a.e("s_nop 4")
    for nt in range(4):
        c = ACC[nt]
        a.e(f"v_cvt_pk_bf16_f32 v{D+2*nt}, v{c}, v{c+1}\n v_cvt_pk_bf16_f32 v{D+2*nt+1}, v{c+2}, v{c+3}")
    a.e("s_nop 1")
    for nt in (0, 2):
        a.e(f"v_permlane16_swap_b32 v{D+2*nt}, v{D+2*nt+2}\n v_permlane16_swap_b32 v{D+2*nt+1}, v{D+2*nt+3}")
    X = WF[1][0]
    for i in range(4): a.e(f"v_mov_b32 v{X+i}, v{D+i}")
    for i in range(4): a.e(f"v_mov_b32_dpp v{D+i}, v{D+4+i} row_ror:8 row_mask:0xf bank_mask:0xc")
    for i in range(4): a.e(f"v_mov_b32_dpp v{D+4+i}, v{X+i} row_ror:8 row_mask:0xf bank_mask:0x3")
    a.e(f"buffer_store_dwordx4 {v(D,4)}, v{vst}, {srd(SRD_D)}, s{sSO} offen {OSTB}")
    a.e(f"s_add_u32 s{sSO}, s{sSO}, {8*2560}")
    a.e(f"buffer_store_dwordx4 {v(D+4,4)}, v{vst}, {srd(SRD_D)}, s{sSO} offen {OSTB}")
    return ra.hi

def build(path):
    hdr = open("cdna_kernels/%s.s.ref" % NAME).read().split("; Override")[0]
    a = Asm()
    a.raw('.amdgcn_target "amdgcn-amd-amdhsa--gfx950"\n.text')
    a.raw(f".globl {KN}\n.p2align 8\n.type {KN},@function"); a.lab(KN)
    a.e(f"""
    s_and_b32 s3, s2, {os.environ.get("CPM", "0xf0")}
    s_cmp_lg_u32 s3, 0x80
    s_cbranch_scc1 L_NOPF
    s_getpc_b64 s[4:5]
    v_lshlrev_b32 v2, 7, v0
    v_min_u32 v2, L_END-{KN}-128, v2
    global_load_dword v252, v2, s[4:5]
    """)
    a.lab("L_NOPF")
    a.e(f"s_cmp_ge_u32 s2, 256\n s_cbranch_scc1 L_END")
    stamp_init(a); stamp(a, 0)
    a.e(f"""
    s_load_dwordx16 s[8:23], s[0:1], 0
    s_load_dwordx8 s[24:31], s[0:1], 64
    v_lshrrev_b32 v2, 6, v0
    v_and_b32 v{L}, 63, v0
    v_readfirstlane_b32 s{S_WAVE}, v2
    s_and_b32 s{S_XI}, s2, 7
    s_lshr_b32 s{S_J}, s2, 3
    s_lshr_b32 s6, s{S_XI}, 1
    s_lshl_b32 s6, s6, 2
    s_and_b32 s7, s{S_J}, 3
    s_add_u32 s{S_RT}, s6, s7
    s_and_b32 s4, s{S_XI}, 1
    s_mul_i32 s{S_GC}, s4, 5
    s_cmp_ge_u32 s{S_J}, 16
    s_cbranch_scc1 L_A
    s_lshr_b32 s6, s{S_J}, 2
    s_add_u32 s{S_GC}, s{S_GC}, s6
    s_lshl_b32 s4, s4, 2
    s_add_u32 s{S_G}, s4, s6
    s_cmp_lt_u32 s{S_WAVE}, 4
    s_cbranch_scc1 L_BC
    """)
    b_loader(a)
    a.lab("L_A")
    a.e(f"""
    s_bfe_u32 s{S_GC}, s{S_J}, 0x10002
    s_mul_i32 s{S_GC}, s{S_GC}, 5
    s_add_u32 s{S_GC}, s{S_GC}, 4
    s_lshr_b32 s4, s{S_XI}, 2
    s_add_u32 s4, s4, 8
    s_bfe_u32 s{S_P2}, s{S_XI}, 0x10001
    s_add_u32 s{S_P2}, s{S_P2}, 1
    s_cmp_ge_u32 s{S_J}, 24
    s_cselect_b32 s{S_P2}, 0, s{S_P2}
    s_cselect_b32 s4, s{S_XI}, s4
    s_lshl_b32 s4, s4, 6
    s_and_b32 s6, s{S_J}, 7
    s_lshl_b32 s6, s6, 3
    s_add_u32 s{S_CB}, s4, s6
    s_cmp_ge_u32 s{S_J}, 24
    s_cbranch_scc1 L_A1
    """)
    prefetcher(a)
    a.e(f"s_and_b32 s60, s{S_XI}, 1\n s_cbranch_scc0 L_CONV")
    mk_srd(a, SRD_B, P_WS, T_BYTES, off=WS_PQ)
    a.e(f"s_cmp_lt_u32 s{S_WAVE}, 4\n s_cbranch_scc1 L_JB\n s_waitcnt vmcnt(0)\n s_call_b64 s[72:73], L_WO")
    a.lab("L_JB")
    a.e("s_waitcnt vmcnt(0)\n s_barrier\n s_branch L_G2")
    a.lab("L_A1")
    h3 = a1(a)
    a.lab("L_CONV")
    h5 = conv(a)
    a.lab("L_BC")
    h1 = b_compute(a)
    a.lab("L_WO")
    wo_dma(a)
    a.e("s_setpc_b64 s[72:73]")
    a.lab("L_G2")
    h4 = g2(a)
    a.lab("L_FIN")
    stamp_flush(a, 0)
    a.lab("L_END")
    a.e("s_endpgm")
    print("vgprs", h1, h3, h4, h5, file=sys.stderr)
    desc = f""".section .rodata,"a"
.p2align 6
.amdhsa_kernel {KN}
  .amdhsa_next_free_vgpr 256
  .amdhsa_next_free_sgpr 102
  .amdhsa_accum_offset 256
  .amdhsa_group_segment_fixed_size 0
  .amdhsa_kernarg_size 96
  .amdhsa_user_sgpr_count 2
  .amdhsa_user_sgpr_kernarg_segment_ptr 1
  .amdhsa_system_sgpr_workgroup_id_x 1
.end_amdhsa_kernel
"""
    open(path, "w").write(hdr + f"; @launch grid=(256,1,1) block=(512,1,1) lds={LDS_BYTES}\n" + a.text() + desc)
if __name__ == "__main__":
    build(sys.argv[1])
```

```python
import sys
from asmlib import *
NAME = "concat_heads__ssm_conv_h3__linear_attn_block__prompt"
KN = NAME + "_kernel"
EX = set(os.environ.get("EX", "").split(","))
ROTR = int(os.environ.get("ROTR", "0"), 16); ROTC = int(os.environ.get("ROTC", "0"), 16)
OST = os.environ.get("OSTA", "")
OSTB = os.environ.get("OSTB", "sc1")

T_BYTES = 640 * 4096
WS_UT, WS_PQ = 0, T_BYTES
WS_KV = 2 * T_BYTES
GB = 8960
WS_FL = WS_KV + 8 * GB + 2048
assert WS_FL % 128 == 0
WS_END = WS_FL + 1024 * 128
S_WG, S_WAVE = 2, 3
P_Q, P_K, P_V, P_SH, P_H, P_D, P_X, P_W, P_WO, P_OUT, P_DBG, P_WS = 8, 10, 12, 14, 16, 18, 20, 22, 24, 26, 28, 30
SRD_A, SRD_B, SRD_C, SRD_D, SRD_FL = 32, 36, 40, 44, 48
S_RT, S_G, S_GC, S_CB, S_P2, S_ASLOT, S_XI, S_J = 52, 53, 54, 55, 56, 57, 58, 59
L = 1
NB = 2048 * 1280

XST, WBASE, WST, NST = 16384, 49152, 20480, 3
HI = WBASE + NST * WST
W2B = 2688
QBASE, QST = HI, 4 * W2B
IMG, IMGP = QBASE + NST * QST, 9216
HB, HP, H_O = 0, 8320, 4160
UB, UP = 8 * HP, 4672
A_KB, A_VB = UB + 5120, UB + 5120 + 40960
WOB = 2 * XST
KVI, RED = WOB + 81920, 0
ND = int(os.environ.get("ND", "2"))
xsl = lambda st: (st + 1) % NST
qsl = lambda st: (st + 2) % NST
assert KVI + 3520 <= QBASE + QST and ND <= 2
TB, TP = UB + 8 * UP, 2112
LDS_BYTES = max(A_VB + 40960, IMG + 2 * IMGP)
assert UB + 8 * UP <= HI and RED + 32768 <= LDS_BYTES <= 163840

def mk_srd(a, srd, ptr, nbytes, off=0, off_sreg=None):
    if off_sreg is not None:
        a.e(f"s_add_u32 s{srd}, s{ptr}, s{off_sreg}\n s_addc_u32 s{srd+1}, s{ptr+1}, 0")
    elif off:
        a.e(f"s_add_u32 s{srd}, s{ptr}, {off}\n s_addc_u32 s{srd+1}, s{ptr+1}, 0")
    else:
        a.e(f"s_mov_b32 s{srd}, s{ptr}\n s_mov_b32 s{srd+1}, s{ptr+1}")
    a.e(f"s_mov_b32 s{srd+2}, {nbytes}\n s_mov_b32 s{srd+3}, 0x20000")
def srd(x): return f"s[{x}:{x+3}]"
def mk_fl(a): mk_srd(a, SRD_FL, P_WS, 1024 * 128, off=WS_FL)

SPIN_MAX = 400000 if "noat" not in EX else 2
def poll(a, srdn, vo, t, scnt=74, slp=1):
    lp, dn = a.newlab("poll"), a.newlab("polld")
    a.e(f"s_mov_b32 s{scnt}, {SPIN_MAX}")
    a.lab(lp)
    a.e(f"""
    buffer_load_dword v{t}, v{vo}, {srd(srdn)}, 0 offen sc1
    s_waitcnt vmcnt(0)
    v_cmp_ne_u32 vcc, 1, v{t}
    s_sub_u32 s{scnt}, s{scnt}, 1
    s_cbranch_scc1 {dn}
    s_cmp_eq_u64 vcc, 0
    s_cbranch_scc1 {dn}
    s_sleep {slp}
    s_branch {lp}
    """)
    a.lab(dn)
def poll_z(a, vz, vt):
    mk_srd(a, SRD_D, P_DBG, 256)
    a.e(f"v_and_b32 v{vz}, 7, v{L}\n v_lshlrev_b32 v{vz}, 2, v{vz}")
    poll(a, SRD_D, vz, vt)
def set_flag(a, sslot, v0_, v1_, wave=0):
    sk = a.newlab("nofl")
    if wave is not None: a.e(f"s_cmp_lg_u32 s{S_WAVE}, {wave}\n s_cbranch_scc1 {sk}")
    a.e(f"""
    s_lshl_b32 s74, s{sslot}, 7
    v_mov_b32 v{v0_}, 0
    v_mov_b32 v{v1_}, 1
    s_mov_b64 exec, 1
    buffer_store_dword v{v1_}, v{v0_}, {srd(SRD_FL)}, s74 offen sc1
    s_mov_b64 exec, -1
    """)
    a.lab(sk)

def h_load(a, H, vl16, srdn, soff):
    for j in range(4):
        a.e(f"buffer_load_dwordx4 {v(H+4*j,4)}, v{vl16}, {srd(srdn)}, s{soff} offen offset:{1024*j}")
def h_stage(a, H, G, sslot, vl16, va, st):
    a.e(f"s_mul_i32 s{st}, s{sslot}, {HP}\n v_add_u32 v{va}, s{st}, v{vl16}")
    a.e(f"v_readfirstlane_b32 s{st}, v{H}")
    for j in range(4):
        a.e(f"ds_write_b128 v{va}, {v(H+4*j,4)} offset:{HB+32+1024*j}")
    for j in range(4):
        a.e(f"v_mov_b32_dpp v{G+4*j+3}, v{H+4*((j+1)&3)} wave_rol:1 row_mask:0xf bank_mask:0xf")
    for j in range(4):
        a.e(f"v_mov_b32_dpp v{G+4*j+3}, v{H+4*j} wave_shl:1 row_mask:0xf bank_mask:0xf")
    Z = G + 16
    for i in range(4): a.e(f"v_mov_b32 v{Z+i}, 0")
    a.e(f"s_lshl_b32 s{st}, s{st}, 16\n s_mov_b64 exec, 3\n ds_write_b128 v{va}, {v(Z,4)} offset:{HB}\n s_mov_b64 exec, -1")
    for j in range(4):
        h, g_ = H + 4 * j, G + 4 * j
        for i in range(3): a.e(f"v_alignbit_b32 v{g_+i}, v{h+i+1}, v{h+i}, 16")
        a.e(f"v_alignbit_b32 v{g_+3}, v{g_+3}, v{h+3}, 16")
        a.e(f"ds_write_b128 v{va}, {v(g_,4)} offset:{HB+H_O+32+1024*j}")
    a.e(f"v_writelane_b32 v{Z+3}, s{st}, 1\n s_mov_b64 exec, 3\n ds_write_b128 v{va}, {v(Z,4)} offset:{HB+H_O}\n s_mov_b64 exec, -1")
def conv_sload(a):
    a.e(f"""
    s_add_u32 s6, s{S_CB}, s{S_WAVE}
    s_min_u32 s6, s6, 639
    s_lshl_b32 s6, s6, 1
    s_and_b32 s6, s6, 0xfffffffc
    s_load_dword s5, s[{P_D}:{P_D+1}], s6
    """)

def b_loader(a):
    ra = RA(2)
    t0, t1, t2, t3 = [ra.a() for _ in range(4)]
    vx = [ra.a() for _ in range(4)]
    vw = [ra.a() for _ in range(5)]
    vq = [ra.a() for _ in range(3)]
    l16, la = ra.a(), ra.a()
    LD = ra.a(12, 4); Z = ra.a(2, 2)
    sLW, sSX, sSW, sM0X, sM0W, sM0Q, sSQ, sT, sK = 60, 61, 62, 63, 64, 65, 66, 67, 68
    a.c("B loader wave")
    a.e(f"""
    s_setprio 3
    v_lshrrev_b32 v{t0}, 3, v{L}
    v_lshrrev_b32 v{t1}, 4, v{L}
    v_and_b32 v{t2}, 7, v{L}
    v_mul_u32_u24 v{t0}, 1280, v{t0}
    v_xor_b32 v{t1}, v{t1}, v{t2}
    s_sub_u32 s{sLW}, s{S_WAVE}, 4
    s_lshl_b32 s{sT}, s{S_RT}, 2
    s_add_u32 s{sT}, s{sT}, s{sLW}
    s_mul_i32 s{sSX}, s{sT}, {32*1280}
    s_lshl_b32 s{sM0X}, s{sLW}, 12
    v_lshl_add_u32 v{vx[0]}, v{t1}, 4, v{t0}
    v_xor_b32 v{vx[1]}, 64, v{vx[0]}
    v_add_u32 v{vx[2]}, {2*(8*1280-1024)}, v{vx[0]}
    v_add_u32 v{vx[3]}, {3*(8*1280-1024)}, v{vx[1]}
    v_add_u32 v{vx[1]}, {1*(8*1280-1024)}, v{vx[1]}
    s_movk_i32 s4, 1200
    s_movk_i32 s5, -80
    s_movk_i32 s69, 3840
    """)
    for x in range(320): assert (x * 3277) >> 16 == x // 20
    for x in range(20): assert (x * 52) >> 8 == x // 5
    def woff(j):
        sub = 1024 * j if j < 4 else 0
        o = []; src = L
        if j: o.append(f"v_add_u32 v{t0}, {64*j}, v{L}"); src = t0
        o += [f"v_mul_u32_u24 v{t1}, 3277, v{src}", f"v_lshrrev_b32 v{t1}, 16, v{t1}",
              f"v_mul_u32_u24 v{t2}, 20, v{t1}", f"v_sub_u32 v{t0}, v{src}, v{t2}"]
        if j == 2: o += [f"v_lshrrev_b32 v{t2}, 2, v{t1}", f"v_and_b32 v{t2}, 2, v{t2}", f"v_xor_b32 v{t0}, v{t0}, v{t2}"]
        if j > 2: o += [f"v_xor_b32 v{t0}, 2, v{t0}"]
        o += [f"v_mul_u32_u24 v{t2}, 52, v{t0}", f"v_lshlrev_b32 v{t0}, 4, v{t0}",
              f"v_mad_u32_u24 v{t0}, v{t1}, s69, v{t0}", f"v_bfe_u32 v{t3}, v{t2}, 8, 1",
              f"v_lshrrev_b32 v{t2}, 9, v{t2}", f"v_mad_u32_u24 v{t0}, v{t3}, s4, v{t0}"]
        if sub: o += [f"v_mad_i32_i24 v{t0}, v{t2}, s5, v{t0}", f"v_subrev_u32 v{vw[j]}, {sub}, v{t0}"]
        else: o += [f"v_mad_i32_i24 v{vw[j]}, v{t2}, s5, v{t0}"]
        a.e("\n".join(o))
    def issue_x(st):
        a.e(f"s_add_u32 m0, s{sM0X}, {xsl(st) * XST}\n s_nop 0")
        for j in range(4):
            a.e(f"buffer_load_dwordx4 v{vx[j]}, {srd(SRD_A)}, s{sSX} offen offset:{1024*j} lds")
    def adv():
        a.e(f"s_add_u32 s{sSX}, s{sSX}, 128\n s_add_u32 s{sSW}, s{sSW}, {64*3840}")
    for x in range(80): assert (x * 205) >> 11 == x // 10
    def qoff(j):
        a.e(f"""
        v_add_u32 v{t0}, {64*j}, v{L}
        v_cmp_le_u32 vcc, 88, v{t0}
        v_subrev_u32 v{t1}, 88, v{t0}
        v_min_u32 v{t0}, 79, v{t0}
        v_min_u32 v{t1}, 79, v{t1}
        v_cndmask_b32 v{t0}, v{t0}, v{t1}, vcc
        v_cndmask_b32 v{t2}, 0, 8, vcc
        v_mul_u32_u24 v{t1}, 205, v{t0}
        v_lshrrev_b32 v{t1}, 11, v{t1}
        v_add_u32 v{t2}, v{t2}, v{t1}
        v_mul_u32_u24 v{t1}, 10, v{t1}
        v_sub_u32 v{t0}, v{t0}, v{t1}
        v_lshlrev_b32 v{t0}, 4, v{t0}
        v_mad_u32_u24 v{t0}, v{t2}, s69, v{t0}
        v_subrev_u32 v{vq[j]}, {1024*j}, v{t0}
        """)
    def issue_kv(st, first=99):
        a.e(f"s_add_u32 m0, s{sM0W}, {(st % NST) * WST}\n s_nop 0")
        for j in range(5):
            if j >= first: woff(j)
            if j == 4: a.e(f"s_add_u32 m0, s{sM0W}, {(st % NST) * WST + 4096}\n s_nop 0")
            a.e(f"buffer_load_dwordx4 v{vw[j]}, {srd(SRD_B)}, s{sSW} offen offset:{1024*(j&3)} lds")
    def issue_q(st, first=99):
        a.e(f"s_add_u32 m0, s{sM0Q}, {qsl(st) * QST}\n s_sub_u32 s{sSQ}, s{sSW}, 1280")
        for j in range(3):
            if j >= first: qoff(j)
            if j == 2: a.e("s_mov_b32 exec_hi, 0xff")
            a.e(f"buffer_load_dwordx4 v{vq[j]}, {srd(SRD_B)}, s{sSQ} offen offset:{1024*j} lds")
        a.e("s_mov_b32 exec_hi, -1")
    def issue(st):
        issue_x(st); issue_kv(st); issue_q(st); adv()
    a.e(f"""
    s_mul_i32 s{sSW}, s{S_G}, 160
    s_add_u32 s{sSW}, s{sSW}, 1280
    s_mul_i32 s{sT}, s{sLW}, {16*3840}
    s_add_u32 s{sSW}, s{sSW}, s{sT}
    s_mul_i32 s{sM0W}, s{sLW}, 5120
    s_add_u32 s{sM0W}, s{sM0W}, {WBASE}
    s_mul_i32 s{sM0Q}, s{sLW}, {W2B}
    s_add_u32 s{sM0Q}, s{sM0Q}, {QBASE}
    """)
    def srds():
        a.e("s_waitcnt lgkmcnt(0)")
        mk_srd(a, SRD_A, P_X, NB); mk_srd(a, SRD_B, P_W, 640 * 3840)
    lb, lj = a.newlab("ordB"), a.newlab("ordJ")
    if "noord" not in EX:
        a.e(f"s_add_u32 s{sT}, s{S_RT}, s{S_G}\n s_and_b32 s{sT}, s{sT}, 1\n s_cbranch_scc1 {lb}")
    qoff(0); srds(); issue_x(0); issue_q(0, 1); issue_kv(0, 0)
    a.e(f"s_branch {lj}")
    a.lab(lb)
    woff(0); srds(); issue_kv(0, 1); issue_x(0); issue_q(0, 0)
    a.lab(lj)
    a.e(f"s_add_u32 s{sSX}, s{sSX}, 128\n s_add_u32 s{sSW}, s{sSW}, {64*3840}")
    PCS = [int(c) for c in os.environ.get("PCS", "133443333")]
    assert sum(PCS) == 27
    cnt = [4, 5, 3]
    pos = [3]
    def pieces(n, lim):
        for _ in range(n):
            st, k = divmod(pos[0], 3)
            assert st <= lim
            if k == 0: issue_x(st); a.e(f"s_add_u32 s{sSX}, s{sSX}, 128")
            if k == 1: issue_kv(st)
            if k == 2: issue_q(st); a.e(f"s_add_u32 s{sSW}, s{sSW}, {64*3840}")
            pos[0] += 1
    pieces(PCS[0], 2)
    stamp(a, 1)
    for nb in range(10):
        assert pos[0] >= 3 * (nb + 1)
        young = sum(cnt[i % 3] for i in range(3 * (nb + 1), pos[0]))
        a.e(f"s_waitcnt vmcnt({young})\n s_barrier")
        if nb == 5:
            mk_srd(a, SRD_D, P_DBG, 256)
            a.e(f"v_and_b32 v{l16}, 7, v{L}\n v_lshlrev_b32 v{l16}, 2, v{l16}")
            a.e(f"buffer_load_dword v{la}, v{l16}, {srd(SRD_D)}, 0 offen sc1")
            assert pos[0] == 21
        if nb + 1 < len(PCS): pieces(PCS[nb + 1], nb + 2)
        if nb == 4: mk_fl(a)
        if nb == 8:
            zok = a.newlab("zok")
            a.e(f"s_setprio 0\n v_cmp_ne_u32 vcc, 1, v{la}\n s_nop 1\n s_cmp_eq_u64 vcc, 0\n s_cbranch_scc1 {zok}")
            poll_z(a, t1, t2)
            a.lab(zok)
    stamp(a, 2)
    a.e("s_barrier")
    a.e("s_call_b64 s[72:73], L_WO")
    stamp(a, 3)
    a.e("s_barrier\n s_waitcnt vmcnt(0)\n s_barrier\n s_branch L_G2")

def phi4(regs, tmps, sLOG, sEPS):
    o = []
    if "nopk" not in EX:
        r, t = regs[0], tmps[0]
        o += [f"v_pk_mul_f32 {v(t+i,2)}, {v(r+i,2)}, s[66:67]" for i in (0, 2)]
        o += [f"v_exp_f32_e64 v{t+i}, v{t+i} clamp" for i in range(4)]
        o += [f"v_max_f32 v{r+i}, s{sEPS}, v{r+i}" for i in range(4)]
        o += [f"v_pk_add_f32 {v(r+i,2)}, {v(r+i,2)}, {v(t+i,2)}" for i in (0, 2)]
        return o
    for r, t in zip(regs, tmps): o.append(f"v_mul_f32 v{t}, s{sLOG}, v{r}")
    for r, t in zip(regs, tmps): o.append(f"v_exp_f32_e64 v{t}, v{t} clamp")
    for r, t in zip(regs, tmps): o.append(f"v_max_f32 v{r}, s{sEPS}, v{r}")
    for r, t in zip(regs, tmps): o.append(f"v_add_f32 v{r}, v{r}, v{t}")
    return o

def b_compute(a):
    if "steps" in EX:
        def stamp2(a, i): pass
    else:
        stamp2 = stamp
    ra = RA(2)
    lr, g, t0, t1, t2 = [ra.a() for _ in range(5)]
    xa = [ra.a(), ra.a()]
    wa = [ra.a() for _ in range(5)]
    ad = [ra.a() for _ in range(6)]
    wb = [ra.a(), ra.a()]; xb = [ra.a(), ra.a()]
    ka, kx = ra.a(), [ra.a(), ra.a()]
    at = [ra.a() for _ in range(4)]
    l16, la = ra.a(), ra.a()
    ix = ra.a(4, 4)
    XF = [[ra.a(4, 4) for _ in range(4)] for _ in range(2)]
    WF = [[ra.a(4, 4) for _ in range(5)] for _ in range(2)]
    QF = [ra.a(4, 4) for _ in range(5)]
    ACC = [[ra.a(4, 4) for _ in range(5)] for _ in range(4)]
    QA = [[ra.a(4, 4) for _ in range(5)] for _ in range(2)]
    sRH, sCH, sT, sLOG, sEPS, sSO = 60, 61, 62, 63, 64, 65
    MF = "v_mfma_f32_16x16x32_bf16"; M32 = "v_mfma_f32_32x32x16_bf16"
    a.c("B compute wave")
    a.e(f"""
    s_lshr_b32 s{sRH}, s{S_WAVE}, 1
    s_and_b32 s{sCH}, s{S_WAVE}, 1
    s_mov_b32 s{sLOG}, {f32(1.4426950408889634)}
    s_mov_b32 s66, s{sLOG}
    s_mov_b32 s67, s{sLOG}
    s_mov_b32 s{sEPS}, {f32(1e-6)}
    v_and_b32 v{lr}, 15, v{L}
    v_lshrrev_b32 v{g}, 4, v{L}
    s_lshl_b32 s{sT}, s{S_WAVE}, 12
    v_lshrrev_b32 v{t0}, 1, v{lr}
    v_xor_b32 v{t0}, v{t0}, v{g}
    v_lshlrev_b32 v{t0}, 4, v{t0}
    v_lshl_add_u32 v{t0}, v{lr}, 7, v{t0}
    v_add_u32 v{xa[0]}, s{sT}, v{t0}
    v_xor_b32 v{xa[1]}, 64, v{xa[0]}
    v_xor_b32 v{xb[0]}, 0x1000, v{xa[0]}
    v_xor_b32 v{xb[1]}, 0x1000, v{xa[1]}
    v_lshrrev_b32 v{t0}, 2, v{lr}
    v_lshl_add_u32 v{t0}, v{g}, 3, v{t0}
    v_mul_u32_u24 v{t0}, 320, v{t0}
    v_add_u32 v{t0}, {WBASE}, v{t0}
    v_and_b32 v{t1}, 1, v{g}
    v_lshlrev_b32 v{t1}, 5, v{t1}
    s_mul_i32 s{sT}, s{sCH}, 160
    v_and_b32 v{t2}, 3, v{lr}
    """)
    for t in range(5):
        w = wa[t]
        if t < 4:
            a.e(f"v_lshl_add_u32 v{w}, v{t2}, 3, s{sT}\n v_add_u32 v{w}, {40*t}, v{w}")
        else:
            a.e(f"v_mul_u32_u24 v{w}, 40, v{t2}\n v_add_u32 v{w}, s{sT}, v{w}\n v_add_u32 v{w}, 32, v{w}")
        a.e(f"v_xor_b32 v{w}, v{w}, v{t1}\n v_add_u32 v{w}, v{w}, v{t0}")
    a.e(f"""
    v_lshrrev_b32 v{t0}, 1, v{g}
    v_mul_u32_u24 v{t0}, {W2B}, v{t0}
    v_and_b32 v{t1}, 1, v{g}
    v_mul_u32_u24 v{t1}, 1408, v{t1}
    v_add3_u32 v{t0}, v{t0}, v{t1}, 32
    v_lshrrev_b32 v{t1}, 2, v{lr}
    v_mul_u32_u24 v{t1}, 160, v{t1}
    v_add_u32 v{t0}, v{t0}, v{t1}
    v_add_u32 v{t0}, {QBASE-32}, v{t0}
    v_lshl_add_u32 v{wb[0]}, v{t2}, 3, v{t0}
    v_mul_u32_u24 v{t1}, 40, v{t2}
    v_add3_u32 v{wb[1]}, v{t0}, v{t1}, 32
    """)
    a.e(f"v_mov_b32 v{t0}, s{sEPS}\n v_cmp_gt_u32 vcc, 8, v{lr}")
    a.e(f"""
    s_mul_i32 s{sT}, s{sRH}, {IMGP}
    s_mul_i32 s{sSO}, s{sCH}, {GB//2}
    s_add_u32 s{sT}, s{sT}, s{sSO}
    s_add_u32 s{sT}, s{sT}, {IMG}
    """)
    for rt in range(4):
        for i in range(4):
            a.e(f"v_cndmask_b32 v{ACC[rt][4]+i}, 0, v{t0}, vcc")
        for i in range(8): a.e(f"v_mov_b32 v{ACC[rt][0]+i}, s{sEPS}")
    for i in range(40): a.e(f"v_mov_b32 v{QA[0][0]+i}, s{sEPS}")
    z4 = XF[0][0]
    a.e(f"v_mov_b32 v{z4}, 1.0")
    for i in range(1, 8): a.e(f"v_mov_b32 v{z4+i}, 0")
    a.e(f"""
    v_min_u32 v{t0}, 143, v0
    v_lshlrev_b32 v{t0}, 6, v{t0}
    v_add_u32 v{t0}, {IMG+48}, v{t0}
    ds_write_b128 v{t0}, {v(z4,4)}
    ds_write_b128 v{t0}, {v(z4+4,4)} offset:{IMGP}
    """)
    for x in range(128): assert (x * 171) >> 9 == x // 3
    a.e(f"""
    v_cmp_eq_u32 vcc, 0, v{lr}
    v_add_u32 v{t0}, 8, v{lr}
    v_add_u32 v{t1}, 4, v{lr}
    v_cndmask_b32 v{t0}, v{t0}, 20, vcc
    v_cndmask_b32 v{t1}, v{t1}, 20, vcc
    """)
    for i, row in enumerate((lr, t0, t1)):
        for k in range(2):
            d = ad[2 * i + k]
            a.e(f"v_mad_u32_u24 v{d}, v{row}, 5, {'v%d' % g if k == 0 else '4'}")
            a.e(f"v_mul_u32_u24 v{t2}, 171, v{d}\n v_lshrrev_b32 v{t2}, 9, v{t2}\n v_add_u32 v{d}, v{d}, v{t2}\n v_lshl_add_u32 v{d}, v{d}, 4, s{sT}")
    a.e(f"""
    v_lshlrev_b32 v{at[0]}, 2, v0
    v_add_u32 v{at[1]}, 4096, v{at[0]}
    v_add_u32 v{at[2]}, 8192, v{at[0]}
    v_add_u32 v{at[3]}, {IMG}, v{at[0]}
    v_lshlrev_b32 v{l16}, 4, v{L}
    v_and_b32 v{t0}, 31, v{L}
    v_lshlrev_b32 v{t1}, 2, v{lr}
    s_mov_b32 s{sT}, 0x54325410
    v_lshrrev_b32 v{t1}, v{t1}, s{sT}
    v_and_b32 v{t1}, 15, v{t1}
    v_add_u32 v{t1}, 16, v{t1}
    v_cmp_lt_u32 vcc, 23, v{t0}
    s_mov_b32 s{sT}, {KVI}
    s_nop 0
    v_cndmask_b32 v{t1}, v{t1}, 21, vcc
    v_cmp_gt_u32 vcc, 16, v{t0}
    v_lshrrev_b32 v{t2}, 5, v{L}
    s_nop 0
    v_cndmask_b32 v{t1}, v{t1}, v{t0}, vcc
    v_mad_u32_u24 v{t1}, v{t1}, 40, s{sT}
    v_lshl_add_u32 v{ka}, v{t2}, 4, v{t1}
    v_add_u32 v{t1}, 32, v{t1}
    v_cmp_eq_u32 vcc, 0, v{t2}
    v_mov_b32 v{t0}, {KVI+840}
    s_nop 0
    v_cndmask_b32 v{kx[0]}, v{t0}, v{t1}, vcc
    v_cndmask_b32 v{kx[1]}, v{t1}, v{t0}, vcc
    s_mul_i32 s{sT}, s{S_WAVE}, 880
    s_add_u32 s{sT}, s{sT}, {KVI}
    v_and_b32 v{t0}, 3, v{L}
    v_lshl_add_u32 v{t0}, v{t0}, 3, s{sT}
    v_lshrrev_b32 v{t1}, 2, v{L}
    v_mad_u32_u24 v{la}, v{t1}, 24, v{t0}
    s_mul_i32 s{sT}, s{S_G}, {GB}
    s_add_u32 s{sT}, s{sT}, {WS_KV}
    s_waitcnt lgkmcnt(0)
    """)
    mk_srd(a, SRD_C, P_WS, GB, off_sreg=sT)
    a.e(f"s_mul_i32 s{sSO}, s{S_WAVE}, {GB//4}\n s_add_u32 s{sT}, s{sT}, s{sSO}")
    mk_srd(a, SRD_A, P_WS, GB // 4, off_sreg=sT)
    mk_srd(a, SRD_B, P_WS, T_BYTES, off=WS_PQ)
    mk_fl(a)
    def reads(st, ks):
        sl = st % NST
        xs = [f"ds_read_b128 {v(XF[ks][rt],4)}, v{xa[ks] if rt < 2 else xb[ks]} offset:{xsl(st)*XST + (rt&1)*2048}" for rt in range(4)]
        ws = [f"ds_read_b64_tr_b16 {v(WF[ks][t]+2*h,2)}, v{wa[t]} offset:{sl*WST + ks*10240 + h*1280}" for t in range(5) for h in range(2)]
        qs = [f"ds_read_b64_tr_b16 {v(QF[t]+2*h,2)}, v{wb[t>>2]} offset:{qsl(st)*QST + ks*2*W2B + h*640 + 40*(t&3)}" for t in range(5) for h in range(2)]
        if st >= 10 - ND: qs = []
        return xs + ws[:6] + qs + ws[6:]
    def mfq(ks):
        return [f"{MF} {v(QA[rt][t],4)}, {v(QF[t],4)}, {v(XF[ks][rt],4)}, {v(QA[rt][t],4)}" for t in range(5) for rt in range(2)]
    def mfkv(ks, first=False):
        o = []
        for rt in range(4):
            for t in range(5):
                d = ACC[rt][t]
                o.append(f"{MF} {v(d,4)}, {v(XF[ks][rt],4)}, {v(WF[ks][t],4)}, {'0' if (first and t in (2, 3)) else v(d,4)}")
        return o
    def mfmas(st, ks): return (mfq(ks) if st < 10 - ND else []) + mfkv(ks, st == 0 and ks == 0)
    def spread(M, F):
        out = []; n = len(M); fi = 0
        for i, m in enumerate(M):
            out.append(m)
            tgt = (len(F) * (i + 1) + n - 1) // n
            out += F[fi:tgt]; fi = tgt
        return out
    for st in range(10):
        a.c(f"step {st}")
        a.e("s_barrier")
        if (st == 0 or "steps" in EX) and "steps2" not in EX: stamp(a, 1 + st)
        if st == 0:
            a.e("\n".join(reads(0, 0)))
        else:
            a.e("\n".join(interleave2(mfmas(st - 1, 1), reads(st, 0), 1)))
        a.e("s_waitcnt lgkmcnt(0)")
        a.e("\n".join(interleave2(mfmas(st, 0), reads(st, 1), 1)))
        a.e("s_waitcnt lgkmcnt(0)")
    a.e("s_barrier")
    stamp2(a, 2)
    tm = [ix + i for i in range(4)]
    last = mfkv(1) + (mfq(1) if ND == 0 else [])
    names = ["T0", "T1", "T2", "T3", "T4A", "T4B"]
    k0 = [XF[0][i] for i in range(4)] + [WF[0][0], WF[0][1]]
    k1 = [WF[0][2], WF[0][3], WF[0][4], XF[1][0], XF[1][1], XF[1][2]]
    P = {n: [k0[i], k1[i]] for i, n in enumerate(names)}
    V = [f"v_cmp_gt_u32 vcc, 8, v{lr}", f"v_mov_b32 v{t0}, 0x3f803f80"]
    for rt in range(4):
        k, h = rt >> 1, rt & 1
        for t, n in ((2, "T2"), (3, "T3"), (4, "T4B")):
            r = ACC[rt][t]; d = P[n][k] + 2 * h
            V += [f"v_cvt_pk_bf16_f32 v{d}, v{r}, v{r+1}", f"v_cvt_pk_bf16_f32 v{d+1}, v{r+2}, v{r+3}"]
        d = P["T4B"][k] + 2 * h
        V += [f"v_cndmask_b32 v{d}, v{d}, v{t0}, vcc", f"v_cndmask_b32 v{d+1}, v{d+1}, v{t0}, vcc"]
        for t, n in ((0, "T0"), (1, "T1"), (4, "T4A")):
            r = [ACC[rt][t] + i for i in range(4)]; d = P[n][k] + 2 * h
            V += phi4(r, tm, sLOG, sEPS)
            V += [f"v_cvt_pk_bf16_f32 v{d}, v{r[0]}, v{r[1]}", f"v_cvt_pk_bf16_f32 v{d+1}, v{r[2]}, v{r[3]}"]
    prods = [("T0", "T2"), ("T0", "T4B"), ("T4A", "T2"), ("T1", "T3"), ("T1", "T4B"), ("T4A", "T3"), ("T4A", "T4B")]
    R = [ACC[0][0] + 4 * i for i in range(7)]
    kvm = lambda k: [f"{MF} {v(R[i],4)}, {v(P[x][k],4)}, {v(P[y][k],4)}, {'0' if k == 0 else v(R[i],4)}" for i, (x, y) in enumerate(prods)]
    half = 2 + (len(V) - 2) // 2
    a.e("\n".join(last[:10] + interleave2(last[10:], V[:half + 4], 2)))
    a.e("\n".join(interleave2(kvm(0), V[half + 4:], 8)))
    a.e("s_nop 1")
    a.e("\n".join(kvm(1)))
    a.e("s_nop 3")
    HBY = GB // 4
    def wr(i, addr, off, lo, hi):
        a.e(f"s_mov_b32 exec_lo, {lo:#x}\n s_mov_b32 exec_hi, {hi:#x}")
        a.e(f"ds_write_b128 v{addr}, {v(R[i],4)} offset:{off}")
    a.e(f"ds_write_b128 v{ad[0]}, {v(R[0],4)}")
    a.e(f"ds_write_b128 v{ad[0]}, {v(R[3],4)} offset:{HBY}")
    wr(1, ad[2], 0, 0x0f010f01, 0x0f010f01)
    wr(4, ad[4], HBY, 0xf001f001, 0xf001f001)
    wr(2, ad[1], 0, 0x0000ffff, 0)
    wr(5, ad[1], HBY, 0xffff0000, 0)
    wr(6, ad[3], 0, 0x00000f01, 0)
    wr(6, ad[5], HBY, 0xf0010000, 0)
    a.e("s_mov_b64 exec, -1\n s_waitcnt lgkmcnt(0)\n s_barrier")
    stamp2(a, 3)
    fr = ACC[0][0]
    for n in range(9):
        a.e(f"ds_read2st64_b32 {v(fr+2*n,2)}, v{at[3]} offset0:{4*n} offset1:{IMGP//256+4*n}")
    AT = []
    for n in range(9):
        AT += [f"v_add_f32 v{fr+2*n}, v{fr+2*n}, v{fr+2*n+1}",
               f"buffer_atomic_add_f32 v{fr+2*n}, v{at[n>>2]}, {srd(SRD_C)}, 0 offen offset:{1024*(n&3)}"]
    DB = [(XF[0][0], WF[0][0]), (XF[1][0], WF[1][0]), (XF[0][2], QF[0]), (XF[1][2], ACC[3][0])]
    def drd(u):
        if u >= 2 * ND: return []
        st, ks = 10 - ND + u // 2, u & 1; xr, wr_ = DB[u]
        return ([f"ds_read_b128 {v(xr+4*rt,4)}, v{xa[ks]} offset:{xsl(st)*XST + rt*2048}" for rt in range(2)] +
                [f"ds_read_b64_tr_b16 {v(wr_+4*t+2*h,2)}, v{wb[t>>2]} offset:{qsl(st)*QST + ks*2*W2B + h*640 + 40*(t&3)}" for t in range(5) for h in range(2)])
    def dmf(u):
        xr, wr_ = DB[u]
        return [f"{MF} {v(QA[rt][t],4)}, {v(wr_+4*t,4)}, {v(xr+4*rt,4)}, {v(QA[rt][t],4)}" for t in range(5) for rt in range(2)]
    a.e("s_waitcnt lgkmcnt(0)")
    a.e("\n".join(spread(AT, drd(0) + drd(1))))
    for u in range(0, 2 * ND, 2):
        a.e("s_waitcnt lgkmcnt(0)")
        M = dmf(u) + dmf(u + 1)
        a.e("\n".join(spread(M[:14], drd(u + 2) + drd(u + 3)) + M[14:]))
    EXT = XF[0][0]
    KF = [EXT + 4 * h for h in range(4)]
    KX = EXT + 16
    OB = [EXT + 28 + 4 * t for t in range(5)]
    OX = EXT + 48; rc = EXT + 52; LD = EXT + 56
    CT = [ACC[0][0] + 16 + 16 * h for h in range(4)]
    a.e(f"""
    s_lshl_b32 s{sT}, s{S_RT}, 2
    s_add_u32 s{sT}, s{sT}, s{S_WAVE}
    s_lshl_b32 s{sT}, s{sT}, 3
    s_add_u32 s{sT}, s{sT}, s{S_G}
    s_mul_i32 s{sSO}, s{sT}, 5120
    s_add_u32 s{sRH}, s{sSO}, 4096
    s_add_u32 s{sT}, s{sT}, 64
    s_mul_i32 s{sCH}, s{S_WAVE}, 880
    s_add_u32 s{sCH}, s{sCH}, {KVI}
    v_lshl_add_u32 v{t0}, v{L}, 3, s{sCH}
    """)
    for i in (2, 3, 8, 9): a.e(f"v_mov_b32 v{KX+i}, 0")
    a.e(f"s_mov_b64 exec, 31\n ds_write_b64 v{t0}, {v(KX+2,2)} offset:840\n s_mov_b64 exec, -1")
    def phiq(t):
        o = []; ob = OB[t]
        for h in range(2):
            r = [QA[h][t] + i for i in range(4)]
            o += phi4(r, tm, sLOG, sEPS)
            o += [f"v_cvt_pk_bf16_f32 v{ob+2*h}, v{r[0]}, v{r[1]}", f"v_cvt_pk_bf16_f32 v{ob+2*h+1}, v{r[2]}, v{r[3]}"]
        o += ["s_nop 1", f"v_permlane16_swap_b32 v{ob}, v{ob+2}", f"v_permlane16_swap_b32 v{ob+1}, v{ob+3}"]
        return o
    def omf(h):
        c = v(CT[h], 16)
        return [f"{M32} {c}, {v(KX+6*(h>>1)+2*(h&1),4)}, {v(OB[4],4)}, 0", "s_nop 0",
                f"{M32} {c}, {v(KF[h],4)}, {v(OB[h],4)}, {c}"]
    def norm(h):
        c = CT[h]; d = OB[h]
        o = [f"v_add_f32 v{rc}, s{sEPS}, v{c+10}", f"v_rcp_f32 v{rc}, v{rc}", "s_nop 0"]
        o += [f"v_mul_f32 v{c+i}, v{c+i}, v{rc}" for i in range(10)]
        o += [f"v_cvt_pk_bf16_f32 v{d+i}, v{c+2*i}, v{c+2*i+1}" for i in range(4)]
        o += [f"buffer_store_dwordx4 {v(d,4)}, v{l16}, {srd(SRD_B)}, s{sSO} offen offset:{1024*h} sc1"]
        o += [f"v_cvt_pk_bf16_f32 v{OX+h}, v{c+8}, v{c+9}"]
        return o
    def kvload():
        for n in range(3):
            a.e(f"buffer_load_dwordx4 {v(LD+4*n,4)}, v{l16}, {srd(SRD_A)}, 0 offen offset:{1024*n} sc1")
    KP = int(os.environ.get("KP", "6"))
    for i in range(5):
        if i == KP: kvload()
        a.e("\n".join(phiq(i)))
    stamp2(a, 4)
    lf, lv, ld = a.newlab("kvf"), a.newlab("kvv"), a.newlab("kvd")
    a.e(f"s_mov_b32 s69, {f32(16.0)}\n s_mov_b32 s70, 0x88888888\n s_mov_b32 s71, 0x88888888\n s_mov_b32 s74, {SPIN_MAX}")
    if KP < 5: a.e(f"s_branch {lv}")
    if KP == 6: a.e("s_waitcnt vmcnt(0)")
    a.lab(lf)
    kvload()
    a.lab(lv)
    a.e(f"""
    s_waitcnt vmcnt(0)
    v_min_f32 v{t0}, v{LD}, v{LD+4}
    v_cmp_neq_f32 s[4:5], s69, v{LD+8}
    v_cmp_neq_f32 vcc, s69, v{t0}
    s_sub_u32 s74, s74, 1
    s_cbranch_scc1 {ld}
    s_and_b32 s4, s4, 0x888
    s_and_b64 vcc, vcc, s[70:71]
    s_or_b32 vcc_lo, vcc_lo, s4
    s_cmp_eq_u64 vcc, 0
    s_cbranch_scc1 {ld}
    s_sleep {os.environ.get("KSL", "2")}
    s_branch {lf}
    """)
    a.lab(ld)
    for n in range(3):
        r = LD + 4 * n
        a.e(f"v_cvt_pk_bf16_f32 v{r}, v{r}, v{r+1}\n v_cvt_pk_bf16_f32 v{r+1}, v{r+2}, v{r+3}")
    a.e("s_mov_b32 exec_lo, 0x77777777\n s_mov_b32 exec_hi, 0x77777777")
    for n in range(3):
        if n == 2: a.e("s_mov_b64 exec, 0x777")
        a.e(f"ds_write_b64 v{la}, {v(LD+4*n,2)} offset:{384*n}")
    a.e("s_mov_b64 exec, -1\n s_waitcnt lgkmcnt(0)\n s_barrier")
    stamp2(a, 5)
    if STAMPS: a.e("s_waitcnt lgkmcnt(0)")
    for h in range(4):
        a.e(f"ds_read_b64 {v(KX+6*(h>>1)+4*(h&1),2)}, v{kx[h>>1]} offset:{880*h}")
        a.e(f"ds_read_b64 {v(KF[h],2)}, v{ka} offset:{880*h}\n ds_read_b64 {v(KF[h]+2,2)}, v{ka} offset:{880*h+8}")
    for h in range(3):
        a.e(f"s_waitcnt lgkmcnt({9-3*h})")
        a.e("\n".join(omf(h)))
    a.e("s_waitcnt lgkmcnt(0)\n s_nop 3")
    N0 = norm(0)
    a.e("\n".join(N0[:6] + omf(3)[:1] + N0[6:12] + omf(3)[2:] + N0[12:] + norm(1) + norm(2) + norm(3)))
    a.e(f"buffer_store_dwordx4 {v(OX,4)}, v{l16}, {srd(SRD_B)}, s{sRH} offen sc1")
    stamp2(a, 6)
    a.e("s_branch L_G2")
    return ra.hi

PF0 = int(os.environ.get("PF0", "1")); AH = int(os.environ.get("AH", "0"))
def pf_lanes(a, vW, vX, t0, t1, sU, sC):
    for x in range(64): assert (x * 52) >> 8 == x // 5
    a.e(f"""
    v_min_u32 v{t0}, 59, v{L}
    v_mul_u32_u24 v{t1}, 52, v{t0}
    v_lshrrev_b32 v{t1}, 8, v{t1}
    v_mul_u32_u24 v{vX}, 5, v{t1}
    v_sub_u32 v{t0}, v{t0}, v{vX}
    v_lshlrev_b32 v{t0}, 7, v{t0}
    s_movk_i32 s{sU}, 1280
    v_mad_u32_u24 v{vW}, v{t1}, s{sU}, v{t0}
    v_mul_u32_u24 v{vX}, 1280, v{L}
    s_and_b32 s{sC}, s{S_XI}, 1
    s_mul_i32 s{sC}, s{sC}, 640
    """)
def pf_one(a, sT, sA, sB, sU, sC, vW, vX, dst):
    for x in range(300): assert (x * 2731) >> 16 == x // 24
    lx, le = a.newlab("px"), a.newlab("pe")
    a.e(f"""
    s_mul_i32 s{sA}, s{sT}, 2731
    s_lshr_b32 s{sA}, s{sA}, 16
    s_mul_i32 s{sB}, s{sA}, 24
    s_sub_u32 s{sB}, s{sT}, s{sB}
    s_add_u32 s{sA}, s{sA}, {PF0}
    s_cmp_lt_u32 s{sB}, 8
    s_cbranch_scc1 {lx}
    s_sub_u32 s{sB}, s{sB}, 8
    s_lshl_b32 s{sB}, s{sB}, 2
    s_lshl_b32 s{sA}, s{sA}, 6
    s_add_u32 s{sA}, s{sA}, s{sB}
    s_mul_i32 s{sA}, s{sA}, 3840
    s_add_u32 s{sA}, s{sA}, s{sC}
    buffer_load_dword v{dst}, v{vW}, {srd(SRD_B)}, s{sA} offen
    s_branch {le}
    """)
    a.lab(lx)
    a.e(f"""
    s_lshr_b32 s{sU}, s{S_XI}, 1
    s_lshl_b32 s{sU}, s{sU}, 3
    s_add_u32 s{sB}, s{sB}, s{sU}
    s_mul_i32 s{sB}, s{sB}, {64*1280}
    s_lshl_b32 s{sA}, s{sA}, 7
    s_add_u32 s{sA}, s{sA}, s{sB}
    buffer_load_dword v{dst}, v{vX}, {srd(SRD_A)}, s{sA} offen
    """)
    a.lab(le)

def a1(a):
    ra = RA(2)
    t0, t1, t2 = [ra.a() for _ in range(3)]
    vo = [ra.a() for _ in range(5)]
    lr, g, ad, adh, so_u, otap = [ra.a() for _ in range(6)]
    taps = [ra.a(2) for _ in range(3)]
    KR = [ra.a(6, 2) for _ in range(6)]; VR = [ra.a(4, 2) for _ in range(6)]
    W = [ra.a(5) for _ in range(3)]; U = ra.a(8); O = [ra.a(4, 4) for _ in range(6)]; X = ra.a(4)
    vz = ra.a()
    sTI, sCH, sSO, sM0, sT, sSH, sU, sCG = 60, 61, 62, 63, 64, 65, 66, 67
    a.c("A1: 64 rows x 320 channels")
    a.e(f"""
    s_sub_u32 s{sT}, s{S_J}, 24
    s_lshl_b32 s{sT}, s{sT}, 3
    s_add_u32 s{sT}, s{sT}, s{S_XI}
    s_lshr_b32 s{sTI}, s{sT}, 1
    s_and_b32 s{sCH}, s{sT}, 1
    s_lshl_b32 s{S_ASLOT}, s{sCH}, 5
    s_add_u32 s{S_ASLOT}, s{S_ASLOT}, s{sTI}
    s_mov_b32 s{sCG}, s{S_WAVE}
    s_lshl_b32 s{sT}, s{sTI}, 3
    s_add_u32 s{sT}, s{sT}, s{S_WAVE}
    s_mul_i32 s{sSO}, s{sT}, {8*1280}
    s_mul_i32 s{sT}, s{sCH}, 640
    s_add_u32 s{sSO}, s{sSO}, s{sT}
    s_mul_i32 s{sM0}, s{S_WAVE}, 5120
    s_and_b32 s{sT}, s{S_WAVE}, 1
    s_lshl_b32 s{sT}, s{sT}, 2
    """)
    for x in range(320): assert (x * 1639) >> 16 == x // 40
    a.e(f"s_movk_i32 s{sU}, 1280")
    def koff(j):
        sub = 1024 * j if j < 4 else 0
        o = []; src = L
        if j: o.append(f"v_add_u32 v{t0}, {64*j}, v{L}"); src = t0
        o += [f"v_mul_u32_u24 v{t1}, 1639, v{src}", f"v_lshrrev_b32 v{t1}, 16, v{t1}",
              f"v_mul_u32_u24 v{t2}, 40, v{t1}", f"v_sub_u32 v{t0}, v{src}, v{t2}",
              f"v_and_or_b32 v{t2}, v{t1}, 2, s{sT}", f"v_xor_b32 v{t0}, v{t0}, v{t2}", f"v_lshlrev_b32 v{t0}, 4, v{t0}"]
        if sub: o += [f"v_mad_u32_u24 v{t0}, v{t1}, s{sU}, v{t0}", f"v_subrev_u32 v{vo[j]}, {sub}, v{t0}"]
        else: o += [f"v_mad_u32_u24 v{vo[j]}, v{t1}, s{sU}, v{t0}"]
        a.e("\n".join(o))
    koff(0); koff(1)
    a.e("s_waitcnt lgkmcnt(0)")
    mk_srd(a, SRD_A, P_K, NB); mk_srd(a, SRD_B, P_V, NB)
    def dma1(srdn, lbase, so, j):
        a.e(f"s_add_u32 m0, s{sM0}, {lbase + (4096 if j == 4 else 0)}\n s_nop 0")
        a.e(f"buffer_load_dwordx4 v{vo[j]}, {srd(srdn)}, s{so} offen offset:{1024*(j&3)} lds")
    for j in range(5):
        if j >= 2: koff(j)
        dma1(SRD_A, A_KB, sSO, j); dma1(SRD_B, A_VB, sSO, j)
        if j == 1:
            mk_srd(a, SRD_D, P_SH, 640 * 8)
            a.e(f"""
            v_and_b32 v{lr}, 15, v{L}
            s_mul_i32 s{sSH}, s{sCH}, 320
            v_add_u32 v{so_u}, s{sSH}, v{lr}
            v_lshlrev_b32 v{otap}, 3, v{so_u}
            s_lshl_b32 s{sSH}, s{sCG}, 7
            """)
            for n in range(3):
                a.e(f"buffer_load_dwordx2 {v(taps[n],2)}, v{otap}, {srd(SRD_D)}, s{sSH} offen offset:{1024*n}")
    lab = a.newlab("a1_nohalo")
    a.e(f"""
    s_cmp_lg_u32 s{S_WAVE}, 7
    s_cbranch_scc1 {lab}
    s_sub_u32 s{sSH}, s{sSO}, {64*1280}
    s_cmp_eq_u32 s{sTI}, 0
    s_cselect_b32 s{sSH}, {NB}, s{sSH}
    """)
    for j in (2, 3, 4): dma1(SRD_A, A_KB - 8 * 5120, sSH, j)
    a.lab(lab)
    NH = 0
    mk_srd(a, SRD_A, P_H, T_BYTES)
    a.e(f"s_add_u32 s68, s{S_CB}, s{S_WAVE}\n s_lshl_b32 s68, s68, 12\n v_lshlrev_b32 v244, 4, v{L}")
    assert AH == 0
    if AH:
        NH = 1
        nhp = a.newlab("nohelp")
        pf_lanes(a, 240, 241, t0, t1, 68, 69)
        mk_srd(a, SRD_A, P_X, NB); mk_srd(a, SRD_B, P_W, 640 * 3840)
        a.e(f"""
        s_lshl_b32 s70, s{S_WAVE}, 3
        s_add_u32 s70, s70, s{S_J}
        s_sub_u32 s70, s70, 24
        s_min_u32 s70, s70, {AH-1}
        s_add_u32 s70, s70, {24*(10-PF0)-AH}
        s_barrier
        s_cmp_lt_u32 s{S_WAVE}, {AH//8}
        s_cbranch_scc1 {nhp}
        s_mov_b64 exec, 1
        """)
        a.lab(nhp)
        pf_one(a, 70, 71, 72, 68, 69, 240, 241, 244)
        a.e("s_mov_b64 exec, -1")
    mk_srd(a, SRD_D, P_DBG, 256)
    a.e(f"v_and_b32 v{vz}, 7, v{L}\n v_lshlrev_b32 v{vz}, 2, v{vz}")
    mk_srd(a, SRD_C, P_WS, T_BYTES)
    mk_fl(a)
    conv_sload(a)
    a.e(f"""
    v_lshrrev_b32 v{g}, 4, v{L}
    v_lshrrev_b32 v{t0}, 2, v{lr}
    v_lshl_add_u32 v{t1}, v{g}, 3, v{t0}
    v_mul_u32_u24 v{ad}, 640, v{t1}
    v_and_b32 v{t2}, 3, v{lr}
    v_lshl_add_u32 v{ad}, v{t2}, 3, v{ad}
    v_add_u32 v{ad}, {A_KB}, v{ad}
    v_lshrrev_b32 v{t0}, 1, v{t0}
    v_and_b32 v{t1}, 1, v{g}
    v_lshl_or_b32 v{t0}, v{t1}, 1, v{t0}
    v_xor_b32 v{t0}, s{sCG}, v{t0}
    v_lshlrev_b32 v{t0}, 5, v{t0}
    v_xor_b32 v{t1}, 64, v{t0}
    v_add_u32 v{adh}, v{t1}, v{ad}
    v_subrev_u32 v{adh}, {4*640}, v{adh}
    v_add_u32 v{ad}, v{t0}, v{ad}
    v_and_b32 v{t0}, 0xfffffff7, v{so_u}
    v_lshlrev_b32 v{t0}, 12, v{t0}
    s_lshl_b32 s{sT}, s{sTI}, 7
    v_lshlrev_b32 v{t1}, 4, v{g}
    v_add_u32 v{t1}, s{sT}, v{t1}
    v_and_b32 v{t2}, 8, v{lr}
    v_lshl_add_u32 v{t1}, v{t2}, 3, v{t1}
    v_sub_u32 v{so_u}, 4080, v{t1}
    v_add_u32 v{so_u}, v{so_u}, v{t0}
    s_lshl_b32 s{sU}, s{sCG}, 16
    """)
    def tapprep(n):
        tp, w = taps[n], W[n]
        a.e(f"""
        v_alignbit_b32 v{w}, v{tp}, v{tp}, 16
        v_alignbit_b32 v{w+1}, v{tp+1}, v{tp+1}, 16
        v_and_b32 v{w+2}, 0xffff0000, v{tp}
        v_and_b32 v{w+3}, 0xffff, v{tp}
        v_and_b32 v{w+4}, 0xffff, v{tp+1}
        v_or_b32 v{w+2}, v{w+2}, v{w+4}
        v_and_b32 v{w+4}, 0xffff0000, v{tp+1}
        """)
    a.e(f"s_waitcnt vmcnt({6+NH})")
    for n in range(3): tapprep(n)
    stamp(a, 1)
    a.e(f"s_waitcnt vmcnt({NH}) lgkmcnt(0)\n s_barrier")
    a.e(f"buffer_load_dword v{vz}, v{vz}, {srd(SRD_D)}, 0 offen sc1")
    if "hearly" in EX:
        h_load(a, 208, 244, SRD_A, 68)
        a.e("s_setprio 1")
    stamp(a, 2)
    if STAMPS: a.e("s_waitcnt lgkmcnt(0)")
    def rd(u):
        o = 256 * (u >> 1) + (u & 1) * 32 * 640
        return [f"ds_read_b64_tr_b16 {v(KR[u],2)}, v{adh} offset:{o}",
                f"ds_read_b64_tr_b16 {v(KR[u]+2,2)}, v{ad} offset:{o}",
                f"ds_read_b64_tr_b16 {v(KR[u]+4,2)}, v{ad} offset:{o+2560}",
                f"ds_read_b64_tr_b16 {v(VR[u],2)}, v{ad} offset:{A_VB-A_KB+o}",
                f"ds_read_b64_tr_b16 {v(VR[u]+2,2)}, v{ad} offset:{A_VB-A_KB+o+2560}"]
    a.e("\n".join(rd(0) + rd(1) + rd(2)))
    done = a.newlab("a1_done")
    for u in range(6):
        k, w, ob = KR[u], W[u >> 1], O[u]
        if u == 4: a.e(f"s_cmp_ge_u32 s{S_WAVE}, 4\n s_cbranch_scc1 {done}")
        a.e(f"s_waitcnt lgkmcnt({5*(min(5, u + 2) - u)})")
        if u + 3 < 6:
            a.e("\n".join(rd(u + 3)))
        for m in range(4):
            a.e(f"v_dot2_f32_bf16 v{U+2*m}, v{k+m}, v{w+4}, 0")
            a.e(f"v_dot2_f32_bf16 v{U+2*m+1}, v{k+m+1}, v{w+1}, 0")
        for m in range(4):
            a.e(f"v_dot2_f32_bf16 v{U+2*m}, v{k+m+1}, v{w+2}, v{U+2*m}")
            a.e(f"v_dot2_f32_bf16 v{U+2*m+1}, v{k+m+2}, v{w}, v{U+2*m+1}")
        for m in range(4):
            a.e(f"v_dot2_f32_bf16 v{U+2*m}, v{k+m+2}, v{w+3}, v{U+2*m}")
        for m in range(4):
            x = X + 2 * (m & 1)
            a.e(f"""
            v_lshlrev_b32 v{x}, 16, v{VR[u]+m}
            v_and_b32 v{x+1}, 0xffff0000, v{VR[u]+m}
            v_mul_f32 v{x+1}, v{x+1}, v{U+2*m+1}
            v_mul_f32 v{x}, v{x}, v{U+2*m}
            v_cvt_pk_bf16_f32 v{ob+3-m}, v{x+1}, v{x}
            """)
        if u & 1:
            lo, hi = O[u - 1], O[u]
            for i in range(4): a.e(f"v_mov_b32 v{X+i}, v{lo+i}")
            for i in (3, 2, 1, 0): a.e(f"v_mov_b32_dpp v{lo+i}, v{hi+i} row_ror:8 row_mask:0xf bank_mask:0xc")
            for i in range(4): a.e(f"v_mov_b32_dpp v{hi+i}, v{X+i} row_ror:8 row_mask:0xf bank_mask:0x3")
            a.e(f"buffer_store_dwordx4 {v(lo,4)}, v{so_u}, {srd(SRD_C)}, s{sU} offen sc1")
            a.e(f"s_add_u32 s{sT}, s{sU}, {8*4096}")
            a.e(f"buffer_store_dwordx4 {v(hi,4)}, v{so_u}, {srd(SRD_C)}, s{sT} offen sc1")
            a.e(f"s_add_u32 s{sU}, s{sU}, {8<<16}")
    a.lab(done)
    a.e("s_waitcnt lgkmcnt(0)")
    stamp(a, 3)
    if "hearly" in EX:
        a.e("s_setprio 0\n s_waitcnt vmcnt(4)")
        h_stage(a, 208, 224, S_WAVE, 244, t2, sT)
    nz = a.newlab("a1_nz")
    a.e(f"s_waitcnt vmcnt(0)\n v_cmp_ne_u32 vcc, 1, v{vz}\n s_nop 1\n s_cmp_eq_u64 vcc, 0\n s_cbranch_scc1 {nz}")
    poll_z(a, t0, t1)
    a.lab(nz)
    a.e("s_barrier")
    stamp(a, 4)
    set_flag(a, S_ASLOT, t0, t1)
    return ra.hi

def q_touch(a, sN, sA, sB, vX):
    a.e(f"s_lshl_b32 s{sN}, s{S_WAVE}, 3\n s_add_u32 s{sN}, s{sN}, s{S_J}\n s_sub_u32 s{sN}, s{sN}, 16")
    nq, q2 = a.newlab("pnq"), a.newlab("pq2")
    a.e(f"""
    s_cmp_lt_u32 s{sN}, 32
    s_cbranch_scc1 {q2}
    s_xor_b32 s{sA}, s{sN}, 48
    s_mul_i32 s{sA}, s{sA}, {64*1280}
    s_lshl_b32 s{sB}, s{S_XI}, 7
    s_add_u32 s{sA}, s{sA}, s{sB}
    buffer_load_dword v250, v{vX}, {srd(SRD_B)}, s{sA} offen
    s_branch {nq}
    """)
    a.lab(q2)
    a.e(f"""
    s_and_b32 s{sA}, s{S_XI}, 1
    s_cbranch_scc1 {nq}
    s_cmp_lt_u32 s{sN}, 16
    s_cbranch_scc1 {nq}
    s_and_b32 s{sB}, s{S_P2}, 2
    s_lshl_b32 s{sB}, s{sB}, 3
    s_xor_b32 s{sA}, s{sN}, s{sB}
    s_mul_i32 s{sA}, s{sA}, {64*1280}
    s_lshl_b32 s{sB}, s{S_CB}, 1
    s_add_u32 s{sA}, s{sA}, s{sB}
    buffer_load_dword v250, v{vX}, {srd(SRD_B)}, s{sA} offen
    """)
    a.lab(nq)

def prefetcher(a):
    vW, vX, vQ, vO, t0, t1, z4 = 2, 3, 4, 5, 6, 7, 8
    sN, sA, sB, sC, sT, sU = 60, 61, 62, 63, 64, 65
    a.c("L2 prefetch of this XCD's GEMM operands in K order (speed only) + housekeeping")
    pf_lanes(a, vW, vX, t0, t1, sU, sC)
    a.e(f"""
    s_lshl_b32 s{sN}, s{S_WAVE}, 3
    s_add_u32 s{sN}, s{sN}, s{S_J}
    s_sub_u32 s{sN}, s{sN}, 16
    s_waitcnt lgkmcnt(0)
    """)
    mk_fl(a)
    nz, nt, nc = a.newlab("nozero"), a.newlab("notlb"), a.newlab("nocode")
    a.e(f"s_cmp_lg_u32 s{sN}, 63\n s_cbranch_scc1 {nz}")
    a.e(f"s_mul_i32 s{sT}, s{S_XI}, {GB}\n s_add_u32 s{sT}, s{sT}, {WS_KV}")
    mk_srd(a, SRD_C, P_WS, GB, off_sreg=sT)
    mk_srd(a, SRD_D, P_DBG, 256)
    for i in range(4): a.e(f"v_mov_b32 v{z4+i}, 0")
    a.e(f"""
    v_lshlrev_b32 v{t0}, 4, v{L}
    v_lshlrev_b32 v{t1}, 7, v{L}
    s_lshl_b32 s{sT}, s{S_XI}, 13
    buffer_store_dword v{z4}, v{t1}, {srd(SRD_FL)}, s{sT} offen sc1
    s_add_u32 s{sT}, s{sT}, 0x10000
    buffer_store_dword v{z4}, v{t1}, {srd(SRD_FL)}, s{sT} offen sc1
    s_movk_i32 s{sT}, 4096
    s_movk_i32 s{sU}, 8192
    """)
    for n in range(9):
        a.e(f"buffer_store_dwordx4 {v(z4,4)}, v{t0}, {srd(SRD_C)}, {('0', 's%d' % sT, 's%d' % sU)[n>>2]} offen offset:{1024*(n&3)} sc1")
    a.e(f"""
    s_lshl_b32 s{sT}, s{S_XI}, 2
    v_mov_b32 v{t1}, 1
    s_waitcnt vmcnt(0)
    s_mov_b64 exec, 1
    buffer_store_dword v{t1}, v{t0}, {srd(SRD_D)}, s{sT} offen sc1
    s_mov_b64 exec, -1
    """)
    a.lab(nz)
    a.e(f"s_cmp_lg_u32 s{sN}, 62\n s_cbranch_scc1 {nt}")
    a.e(f"v_lshlrev_b32 v{t1}, 20, v{L}")
    for i, (ptr, nb) in enumerate([(P_WS, WS_END), (P_OUT, 2048 * 2560), (P_Q, NB), (P_WO, 640 * 1280), (P_DBG, 256), (P_H, T_BYTES)]):
        mk_srd(a, SRD_A, ptr, nb)
        a.e(f"buffer_load_dword v{236+i}, v{t1}, {srd(SRD_A)}, 0 offen")
    a.lab(nt)
    mk_srd(a, SRD_A, P_X, NB); mk_srd(a, SRD_B, P_W, 640 * 3840)
    done = a.newlab("pfd")
    NI = 24 * (10 - PF0) - AH
    for m in range((NI + 63) // 64):
        if m and "nopb" not in EX: a.e("s_barrier")
        a.e(f"s_add_u32 s{sT}, s{sN}, {64*m}")
        if 64 * m + 64 > NI: a.e(f"s_cmp_ge_u32 s{sT}, {NI}\n s_cbranch_scc1 {done}")
        pf_one(a, sT, sA, sB, sU, sC, vW, vX, 244 + m)
    a.lab(done)
    a.e("s_barrier")
    if "hearly" not in EX:
        nh = a.newlab("pnh")
        mk_srd(a, SRD_B, P_H, T_BYTES)
        a.e(f"""
        s_cmp_ge_u32 s{sN}, 32
        s_cbranch_scc1 {nh}
        s_and_b32 s{sA}, s{S_XI}, {os.environ.get("HSK", "3")}
        s_cbranch_scc0 {nh}
        s_mul_i32 s{sA}, s{S_XI}, {64*4096}
        s_lshl_b32 s{sB}, s{sN}, 13
        s_add_u32 s{sA}, s{sA}, s{sB}
        v_lshlrev_b32 v{t0}, 7, v{L}
        buffer_load_dword v249, v{t0}, {srd(SRD_B)}, s{sA} offen
        """)
        a.lab(nh)
    mk_srd(a, SRD_A, P_WO, 640 * 1280)
    a.e(f"""
    s_mul_i32 s{sA}, s{sN}, {12*1280}
    s_add_u32 s{sA}, s{sA}, s{sC}
    buffer_load_dword v248, v{vW}, {srd(SRD_A)}, s{sA} offen
    """)
    nqq = a.newlab("pnqq")
    mk_srd(a, SRD_B, P_Q, NB)
    a.e(f"s_and_b32 s{sA}, s{S_XI}, 1\n s_cbranch_scc0 {nqq}")
    q_touch(a, sN, sA, sB, vX)
    a.lab(nqq)
    conv_sload(a)
    stamp(a, 1)
    nz = a.newlab("pnz")
    a.e(f"s_cmp_lg_u32 s{S_WAVE}, 1\n s_cbranch_scc1 {nz}")
    poll_z(a, t0, t1)
    a.lab(nz)
    a.e("s_waitcnt lgkmcnt(0)")

def conv(a):
    ra = RA(2)
    lr, g, t0, t1, t2, aB, aT, vrow, vfl, vrow2, aR = [ra.a() for _ in range(11)]
    aA = [ra.a() for _ in range(4)]
    z4 = ra.a(4, 4); AD = ra.a(4, 4)
    Q = ra.a(16, 4)
    AF = [[ra.a(4, 4) for _ in range(8)] for _ in range(2)]
    BF = [[ra.a(4, 4) for _ in range(8)] for _ in range(2)]
    ACC = [ra.a(4, 4) for _ in range(8)]
    sD, sR, sSO, sT, sOO, sDV, sH, sQO = 60, 61, 62, 63, 64, 65, 66, 67
    fin, idle = a.newlab("conv_fin"), a.newlab("conv_idle")
    a.c("conv")
    if "noconv" in EX: a.e("s_branch L_FIN")
    mk_srd(a, SRD_A, P_WS, T_BYTES); mk_srd(a, SRD_B, P_Q, NB); mk_srd(a, SRD_C, P_OUT, 2048 * 2560)
    def qg(slot, rowoff, nd):
        return [f"s_add_u32 s{sT}, s{sQO}, {rowoff*1280}",
                f"buffer_load_dwordx{nd} {v(Q+slot,nd)}, v{vrow}, {srd(SRD_B)}, s{sT} offen"]
    def qgather(n):
        sk = a.newlab("qs")
        if n >= 2: a.e(f"s_cmp_lg_u32 s{S_P2}, 0\n s_cbranch_scc1 {sk}")
        a.e("\n".join(qg(4 * n, (1024 if n < 2 else 0) + 64 * (n & 1), 4)))
        a.lab(sk)
    a.e(f"""
    v_and_b32 v{lr}, 15, v{L}
    v_lshrrev_b32 v{g}, 4, v{L}
    v_mul_u32_u24 v{vrow}, 1280, v{L}
    s_mul_i32 s{sQO}, s{S_WAVE}, {128*1280}
    s_lshl_b32 s{sOO}, s{sQO}, 1
    s_lshl_b32 s{sT}, s{S_CB}, 1
    s_add_u32 s{sQO}, s{sQO}, s{sT}
    s_add_u32 s{sOO}, s{sOO}, s{sT}
    v_lshlrev_b32 v{vrow2}, 1, v{vrow}
    v_lshrrev_b32 v{aR}, 2, v{lr}
    v_mul_u32_u24 v{aR}, {TP}, v{aR}
    v_and_b32 v{t1}, 3, v{lr}
    v_lshl_add_u32 v{aR}, v{t1}, 3, v{aR}
    v_lshl_add_u32 v{aR}, v{g}, 5, v{aR}
    s_lshl_b32 s{sT}, s{S_WAVE}, 8
    s_add_u32 s{sT}, s{sT}, {TB}
    v_add_u32 v{aR}, s{sT}, v{aR}
    s_add_u32 s{sD}, s{S_CB}, s{S_WAVE}
    s_lshl_b32 s{sSO}, s{sD}, 12
    v_lshlrev_b32 v{t0}, 4, v{L}
    """)
    HH, HG = AF[0][0], BF[0][0]
    mk_srd(a, SRD_D, P_H, T_BYTES)
    nh1, nh2 = a.newlab("nh1"), a.newlab("nh2")
    skip = "" if "hearly" not in EX else f"s_cmp_eq_u32 s{S_P2}, 0\n s_cbranch_scc1 "
    if skip: a.e(skip + nh1)
    h_load(a, HH, t0, SRD_D, sSO)
    a.lab(nh1)
    a.e(f"""
    s_mul_i32 s{sR}, s{S_WAVE}, {UP}
    s_add_u32 s{sR}, s{sR}, {UB}
    s_mul_i32 s{sH}, s{S_WAVE}, {HP}
    s_cmp_ge_u32 s{sD}, 320
    s_cselect_b32 s{sT}, 32, 0
    v_and_b32 v{vfl}, 31, v{L}
    v_add_u32 v{vfl}, s{sT}, v{vfl}
    v_lshlrev_b32 v{vfl}, 7, v{vfl}
    """)
    for i in range(4):
        a.e(f"v_mov_b32 v{z4+i}, 0")
    a.e(f"""
    v_and_b32 v{t1}, 1, v{lr}
    v_cmp_eq_u32 vcc, 1, v{t1}
    v_mov_b32 v{t1}, {HB+H_O}
    v_mov_b32 v{t2}, {HB+2}
    v_cndmask_b32 v{t1}, v{t1}, v{t2}, vcc
    v_lshl_add_u32 v{t1}, v{lr}, 1, v{t1}
    v_lshl_add_u32 v{t1}, v{g}, 4, v{t1}
    v_add_u32 v{aA[0]}, s{sH}, v{t1}
    v_add_u32 v{aA[1]}, 1024, v{aA[0]}
    v_add_u32 v{aA[2]}, 2048, v{aA[0]}
    v_add_u32 v{aA[3]}, 3072, v{aA[0]}
    v_lshlrev_b32 v{t0}, 4, v{L}
    v_add_u32 v{aT}, s{sR}, v{t0}
    s_and_b32 s{sT}, s{sD}, 1
    s_lshl_b32 s{sT}, s{sT}, 4
    s_lshr_b32 s{sDV}, s5, s{sT}
    s_and_b32 s{sDV}, s{sDV}, 0xffff
    v_lshl_add_u32 v{t1}, v{g}, 3, v{lr}
    v_sub_u32 v{t1}, 15, v{t1}
    v_and_b32 v{t2}, 1, v{t1}
    v_lshlrev_b32 v{t2}, 4, v{t2}
    v_lshlrev_b32 v{t2}, v{t2}, s{sDV}
    v_ashrrev_i32 v{t1}, 1, v{t1}
    """)
    for r in range(4):
        a.e(f"v_cmp_eq_u32 vcc, {r}, v{t1}\n s_nop 1\n v_cndmask_b32 v{AD+r}, 0, v{t2}, vcc")
    a.e(f"""
    v_lshlrev_b32 v{t1}, 5, v{lr}
    v_sub_u32 v{aB}, 480, v{t1}
    v_lshl_add_u32 v{aB}, v{g}, 4, v{aB}
    v_add_u32 v{aB}, s{sR}, v{aB}
    """)
    if skip: a.e(skip + nh2)
    a.e("s_waitcnt vmcnt(0)")
    h_stage(a, HH, HG, S_WAVE, t0, t1, sT)
    a.lab(nh2)
    a.e(f"s_mov_b32 exec_hi, 0\n ds_write_b128 v{aT}, {v(z4,4)} offset:4096\n s_mov_b64 exec, -1")
    a.e("s_waitcnt lgkmcnt(0)")
    for i in range(8):
        o0 = 128 * (i & 1)
        a.e(f"ds_read2_b32 {v(AF[0][i],2)}, v{aA[i>>1]} offset0:{o0} offset1:{o0+1}")
        a.e(f"ds_read2_b32 {v(AF[0][i]+2,2)}, v{aA[i>>1]} offset0:{o0+2} offset1:{o0+3}")
    stamp(a, 5)
    npl = a.newlab("nopoll")
    a.e(f"s_cmp_lg_u32 s{S_WAVE}, 1\n s_cbranch_scc1 {npl}")
    poll(a, SRD_FL, vfl, t1, slp=int(os.environ.get("ASL", "2")))
    a.lab(npl)
    a.e("s_barrier")
    stamp(a, 6)
    UR = AF[1][0]
    for j in range(4):
        a.e(f"buffer_load_dwordx4 {v(UR+4*j,4)}, v{t0}, {srd(SRD_A)}, s{sSO} offen offset:{1024*j} sc1")
    for j in range(4):
        a.e(f"s_waitcnt vmcnt({3-j})\n ds_write_b128 v{aT}, {v(UR+4*j,4)} offset:{1024*j}")
    a.e(f"""
    v_lshlrev_b32 v{t1}, 5, v{lr}
    v_lshl_add_u32 v{aT}, v{g}, 3, v{t1}
    s_mul_i32 s{sT}, s{S_WAVE}, {TP}
    s_add_u32 s{sT}, s{sT}, {TB}
    v_add_u32 v{aT}, s{sT}, v{aT}
    """)
    MF = "v_mfma_f32_16x16x32_bf16"
    def rd1(b, slot, i, r):
        o0 = 128 * (i & 1) + 16 * r
        if "fakeA" in EX and i < 4:
            return [f"ds_read_b128 {v(BF[b][slot],4)}, v{aB} offset:{3584 - 512*i + 64*r}",
                    f"ds_read_b64 {v(AF[b][slot],2)}, v{vfl} offset:{512*i+64*r}",
                    f"ds_read_b64 {v(AF[b][slot]+2,2)}, v{vfl} offset:{512*i+64*r+512}"]
        return [f"ds_read_b128 {v(BF[b][slot],4)}, v{aB} offset:{3584 - 512*i + 64*r}",
                f"ds_read2_b32 {v(AF[b][slot],2)}, v{aA[i>>1]} offset0:{o0} offset1:{o0+1}",
                f"ds_read2_b32 {v(AF[b][slot]+2,2)}, v{aA[i>>1]} offset0:{o0+2} offset1:{o0+3}"]
    def reads(it):
        b = it & 1; o = []
        if it < 8:
            for i in range(8): o += rd1(b, i, i, it)
        elif it < 12:
            for k in range(2):
                for i in range(4): o += rd1(b, 4 * k + i, i, 2 * (it - 8) + k)
        return o
    def mf(it):
        b = it & 1; o = []
        if it < 8:
            if it == 0:
                o += [f"{MF} {v(ACC[c],4)}, {v(AD,4)}, {v(BF[b][c],4)}, 0" for c in range(8)]
            for q in range(8):
                for c in range(max(q, 4), 8):
                    o.append(f"{MF} {v(ACC[c],4)}, {v(AF[b][q],4)}, {v(BF[b][c-q],4)}, {v(ACC[c],4)}")
        else:
            for k in range(2):
                for q in range(4):
                    for c in range(q, 4):
                        o.append(f"{MF} {v(ACC[c],4)}, {v(AF[b][4*k+q],4)}, {v(BF[b][4*k+c-q],4)}, {v(ACC[c],4)}")
        return o
    def spread(M, F):
        out = []; n = len(M); fi = 0
        for i, m in enumerate(M):
            out.append(m)
            tgt = (len(F) * (i + 1) + n - 1) // n
            out += F[fi:tgt]; fi = tgt
        return out
    def twrite(half):
        a.e("s_nop 3")
        for c in range(4):
            r = ACC[4 * half + c]
            a.e(f"v_cvt_pk_bf16_f32 v{r}, v{r}, v{r+1}\n v_cvt_pk_bf16_f32 v{r+1}, v{r+2}, v{r+3}")
            a.e(f"ds_write_b64 v{aT}, {v(r,2)} offset:{(1-half)*8*TP + 512*c}")
    Y, X = ACC[4], ACC[6]
    def t_rd(n, nd, toff):
        return [f"ds_read_b64_tr_b16 {v(Y+4*(n&1)+2*k,2)}, v{aR} offset:{toff + 4*TP*k}" for k in range(nd // 2)]
    def t_mul(n, nd, qslot, rowoff):
        o = []
        for i in range(nd):
            y, q, x = Y + 4 * (n & 1) + i, Q + qslot + i, X + 4 * (i & 1)
            o += [f"v_lshlrev_b32 v{x}, 16, v{y}", f"v_and_b32 v{x+1}, 0xffff0000, v{y}",
                  f"v_lshlrev_b32 v{x+2}, 16, v{q}", f"v_and_b32 v{x+3}, 0xffff0000, v{q}",
                  f"v_mul_f32 v{x}, v{x}, v{x+2}", f"v_mul_f32 v{x+1}, v{x+1}, v{x+3}",
                  f"v_cvt_pk_bf16_f32 v{y}, v{x}, v{x+1}"]
        o += [f"s_add_u32 s{sT}, s{sOO}, {rowoff*2560}",
              f"buffer_store_dwordx{nd} {v(Y+4*(n&1),nd)}, v{vrow2}, {srd(SRD_C)}, s{sT} offen {os.environ.get('OSH' if rowoff >= 1024 else 'OSL', '')}"]
        return o
    if "fakeA" in EX: a.e(f"v_lshl_add_u32 v{vfl}, v{L}, 3, s{sH}")
    nqt = a.newlab("nqt")
    a.e(f"s_cmp_eq_u32 s{S_P2}, 0\n s_cbranch_scc1 {nqt}\n s_barrier")
    q_touch(a, 68, 69, 70, vrow)
    a.lab(nqt)
    stamp(a, 7)
    lo4, lj = a.newlab("lo4"), a.newlab("loj")
    a.e(f"s_cmp_eq_u32 s{S_P2}, 2\n s_cbranch_scc1 {lo4}")
    a.e("\n".join(x for x in reads(0) if "b128" in x))
    for it in range(8):
        a.e("s_waitcnt lgkmcnt(0)")
        if "nocprio" not in EX: a.e(f"s_setprio {3 - it // 2}")
        if 3 <= it <= 6 and "nog" not in EX: qgather(it - 3)
        a.e("\n".join(interleave(mf(it), reads(it + 1) if "nord" not in EX else [])))
    twrite(1)
    a.e("s_waitcnt lgkmcnt(0)\n s_barrier")
    stamp(a, 8)
    full = a.newlab("full")
    a.e(f"s_cmp_eq_u32 s{S_P2}, 0\n s_cbranch_scc1 {full}")
    a.e("\n".join(t_rd(0, 4, 0) + t_rd(1, 4, 128)))
    a.e("s_waitcnt vmcnt(0) lgkmcnt(0)")
    a.e("\n".join(t_mul(0, 4, 0, 1024) + t_mul(1, 4, 4, 1024 + 64)))
    a.e("s_branch L_FIN")
    a.lab(full)
    for it in range(8, 12):
        if it > 8: a.e("s_waitcnt lgkmcnt(0)")
        if "nocprio" not in EX: a.e(f"s_setprio {11 - it}")
        F = reads(it + 1)
        if it == 8: F = t_rd(0, 4, 0) + t_rd(1, 4, 128) + F
        if it == 9:
            a.e("s_waitcnt vmcnt(2)")
            F = interleave2(F, t_mul(0, 4, 0, 1024), 1)
        if it == 10: F = interleave2(F, t_mul(1, 4, 4, 1024 + 64), 1)
        a.e("\n".join(spread(mf(it), F)))
    if "wb2" in EX:
        nwb = a.newlab("nwb")
        a.e(f"s_lshl_b32 s{sT}, s{S_WAVE}, 8\n s_or_b32 s{sT}, s{sT}, s{S_J}\n s_cmp_lg_u32 s{sT}, {7*256+24}\n s_cbranch_scc1 {nwb}\n s_waitcnt vmcnt(0)\n buffer_wbl2 sc1")
        a.lab(nwb)
    a.e(f"s_branch {lj}")
    a.lab(lo4)
    a.e("\n".join(reads(8)))
    for it in range(8, 12):
        a.e("s_waitcnt lgkmcnt(0)")
        if it >= 10: a.e("\n".join(qg(4 * (it - 8), 64 * (it & 1), 4)))
        M = mf(it)
        if it == 8: M = [f"{MF} {v(ACC[c_],4)}, {v(AD,4)}, {v(BF[0][c_],4)}, 0" for c_ in range(4)] + M
        a.e("\n".join(spread(M, reads(it + 1))))
    a.e("s_waitcnt vmcnt(0)")
    a.lab(lj)
    twrite(0)
    a.e("s_waitcnt lgkmcnt(0)\n s_barrier")
    stamp(a, 9)
    a.e("\n".join(t_rd(0, 4, 8 * TP) + t_rd(1, 4, 8 * TP + 128)))
    a.e("s_waitcnt vmcnt(2) lgkmcnt(0)")
    a.e("\n".join(t_mul(0, 4, 8, 0) + t_mul(1, 4, 12, 64)))
    a.e("s_branch L_FIN")
    return ra.hi

def wo_dma(a):
    t0, t1, t2, vx = 228, 229, 230, [231, 232, 233, 234]
    sSX, sM, sT = 68, 69, 70
    mk_srd(a, SRD_A, P_WO, 640 * 1280)
    a.e(f"""
    v_lshrrev_b32 v{t0}, 3, v{L}
    v_mul_u32_u24 v{t0}, 1280, v{t0}
    v_and_b32 v{t1}, 7, v{L}
    v_lshrrev_b32 v{t2}, 4, v{L}
    v_lshlrev_b32 v{t2}, 1, v{t2}
    v_xor_b32 v{t1}, v{t1}, v{t2}
    v_lshl_add_u32 v{vx[0]}, v{t1}, 4, v{t0}
    v_add_u32 v{vx[1]}, {1*(8*1280-1024)}, v{vx[0]}
    v_add_u32 v{vx[2]}, {2*(8*1280-1024)}, v{vx[0]}
    v_add_u32 v{vx[3]}, {3*(8*1280-1024)}, v{vx[0]}
    s_sub_u32 s{sM}, s{S_WAVE}, 4
    s_mul_i32 s{sSX}, s{sM}, {160*1280}
    s_lshl_b32 s{sT}, s{S_GC}, 7
    s_add_u32 s{sSX}, s{sSX}, s{sT}
    s_mul_i32 s{sM}, s{sM}, 20480
    s_add_u32 s{sM}, s{sM}, {WOB}
    """)
    for q in range(5):
        a.e(f"s_add_u32 m0, s{sM}, {4096*q}\n s_nop 0")
        for j in range(4):
            a.e(f"buffer_load_dwordx4 v{vx[j]}, {srd(SRD_A)}, s{sSX} offen offset:{1024*j} lds")
        a.e(f"s_add_u32 s{sSX}, s{sSX}, {32*1280}")
    mk_srd(a, SRD_B, P_WS, T_BYTES, off=WS_PQ)

def g2(a):
    ra = RA(2)
    t0, t1, t2, t3, g, vo, vx, vfl, vst = [ra.a() for _ in range(9)]
    wm, wx = [ra.a() for _ in range(4)], [ra.a() for _ in range(4)]
    LA = int(os.environ.get("LA", "6"))
    NO = min(20, LA + 2)
    O_ = [ra.a(4, 4) for _ in range(NO)]
    O = [O_[k % NO] for k in range(20)]
    NW = int(os.environ.get("NW", "11"))
    WF = [[ra.a(4, 4) for _ in range(4)] for _ in range(NW)]
    ACC = [ra.a(4, 4) for _ in range(4)]
    D = WF[0][0]
    sT, sSO, sU = 62, 63, 65
    MF = "v_mfma_f32_16x16x32_bf16"
    OLD = os.environ.get("OLD", "sc1")
    a.c("G2")
    a.e(f"""
    s_mul_i32 s60, s{S_GC}, {os.environ.get("WR", "0")}
    s_add_u32 s60, s60, s{S_WAVE}
    s_and_b32 s60, s60, 7
    s_lshl_b32 s{sT}, s{S_RT}, 3
    s_add_u32 s{sT}, s{sT}, s60
    s_mul_i32 s{sSO}, s{sT}, {16*2560}
    s_lshr_b32 s{sT}, s{sT}, 1
    s_lshl_b32 s{sT}, s{sT}, 3
    s_mul_i32 s{sU}, s{sT}, 5120
    s_add_u32 s{sT}, s{sT}, 64
    v_and_b32 v{t0}, 7, v{L}
    v_add_u32 v{vfl}, s{sT}, v{t0}
    v_lshlrev_b32 v{vfl}, 7, v{vfl}
    v_lshrrev_b32 v{g}, 4, v{L}
    v_and_b32 v{t0}, 15, v{L}
    v_and_b32 v{t1}, 1, v{g}
    v_lshrrev_b32 v{t2}, 1, v{g}
    v_and_b32 v{vst}, 7, v{t0}
    v_mul_u32_u24 v{vst}, 2560, v{vst}
    v_and_b32 v{t3}, 8, v{t0}
    v_lshl_add_u32 v{vst}, v{t3}, 3, v{vst}
    v_lshl_add_u32 v{vst}, v{t1}, 5, v{vst}
    v_lshl_add_u32 v{vst}, v{t2}, 4, v{vst}
    s_and_b32 s{sT}, s60, 1
    s_lshl_b32 s{sT}, s{sT}, 8
    v_lshl_add_u32 v{t3}, v{t0}, 4, s{sT}
    v_lshl_add_u32 v{t3}, v{t1}, 9, v{t3}
    v_lshl_add_u32 v{vo}, v{t2}, 10, v{t3}
    v_mul_u32_u24 v{vx}, 5120, v{t2}
    v_add_u32 v{vx}, v{vx}, v{t3}
    v_add_u32 v{vx}, 4096, v{vx}
    s_lshl_b32 s{sT}, s{S_GC}, 7
    s_add_u32 s{sSO}, s{sSO}, s{sT}
    s_add_u32 s{sSO}, s{sSO}, 1280
    v_and_b32 v{t3}, 3, v{L}
    v_lshlrev_b32 v{t3}, 3, v{t3}
    s_and_b32 s64, s{S_GC}, {0 if "norot2" in EX else 3}
    s_mul_i32 s{sT}, s64, 20480
    s_add_u32 s{sT}, s{sT}, {WOB}
    v_add_u32 v{t3}, s{sT}, v{t3}
    s_movk_i32 s71, 20480
    s_cmp_eq_u32 s64, 3
    s_cselect_b32 s68, {-3*20480}, s71
    s_cmp_eq_u32 s64, 2
    s_cselect_b32 s69, {-3*20480}, s71
    s_cmp_eq_u32 s64, 1
    s_cselect_b32 s70, {-3*20480}, s71
    v_lshrrev_b32 v{t0}, 2, v{t0}
    v_mul_u32_u24 v{wm[1]}, 20, v{t2}
    v_lshl_add_u32 v{wm[1]}, v{t1}, 2, v{wm[1]}
    v_add_u32 v{wm[1]}, v{wm[1]}, v{t0}
    v_lshl_add_u32 v{wm[0]}, v{wm[1]}, 7, v{t3}
    v_bfe_u32 v{wm[1]}, v{wm[1]}, 1, 2
    v_lshl_add_u32 v{wm[0]}, v{wm[1]}, 5, v{wm[0]}
    v_mul_u32_u24 v{wx[1]}, 80, v{t2}
    v_lshl_add_u32 v{wx[1]}, v{t1}, 1, v{wx[1]}
    v_lshrrev_b32 v{wx[2]}, 1, v{t0}
    v_mul_u32_u24 v{wx[2]}, 20, v{wx[2]}
    v_and_b32 v{t0}, 1, v{t0}
    v_add3_u32 v{wx[1]}, v{wx[1]}, v{wx[2]}, v{t0}
    v_add_u32 v{wx[1]}, 16, v{wx[1]}
    v_lshl_add_u32 v{wx[0]}, v{wx[1]}, 7, v{t3}
    v_bfe_u32 v{wx[1]}, v{wx[1]}, 1, 2
    v_lshl_add_u32 v{wx[0]}, v{wx[1]}, 5, v{wx[0]}
    """)
    for nt in range(1, 4):
        a.e(f"v_xor_b32 v{wm[nt]}, {32*nt}, v{wm[0]}\n v_xor_b32 v{wx[nt]}, {32*nt}, v{wx[0]}")
    mk_srd(a, SRD_D, P_OUT, 2048 * 2560)
    def wrd(k):
        P, j = divmod(k, 5); b = k % NW
        if j < 4:
            o = [f"ds_read_b64_tr_b16 {v(WF[b][nt]+2*i,2)}, v{wm[nt]} offset:{5120*j+1024*i}" for nt in range(4) for i in range(2)]
        else:
            o = [f"ds_read_b64_tr_b16 {v(WF[b][nt]+2*i,2)}, v{wx[nt]} offset:{5120*i}" for nt in range(4) for i in range(2)]
            if P < 3: o[7] += "".join(f"\n v_add_u32 v{r}, s{68+P}, v{r}" for r in wm + wx)
        return o
    NB4 = int(os.environ.get("NB4", "4"))
    for k in range(NB4): a.e("\n".join(wrd(k)))
    npub = a.newlab("npub")
    a.e(f"s_cmp_ge_u32 s{S_J}, 16\n s_cbranch_scc1 {npub}\n s_lshl_b32 s60, s{S_RT}, 3\n s_add_u32 s60, s60, s{S_G}\n s_add_u32 s60, s60, 64\n s_waitcnt vmcnt(0)\n s_barrier")
    set_flag(a, 60, t0, t1, wave=5)
    a.lab(npub)
    for k in range(NB4, NW - 1): a.e("\n".join(wrd(k)))
    if "steps" not in EX: stamp(a, 7)
    nw = a.newlab("g2nw")
    a.e(f"""
    s_cmp_lg_u32 s{S_WAVE}, {os.environ.get("PW", "4")}
    s_cbranch_scc1 {nw}
    s_lshl_b32 s{sT}, s{S_RT}, 3
    s_add_u32 s{sT}, s{sT}, 64
    v_and_b32 v{vfl}, 7, v{L}
    v_add_u32 v{vfl}, s{sT}, v{vfl}
    v_lshlrev_b32 v{vfl}, 7, v{vfl}
    """)
    if "noj1" not in EX:
        nj = a.newlab("nj1")
        a.e(f"s_cmp_lt_u32 s{S_J}, 16\n s_cbranch_scc1 {nj}\n s_mov_b64 exec, 0x80")
        poll(a, SRD_FL, vfl, t0, slp=4)
        a.e("s_mov_b64 exec, -1")
        a.lab(nj)
    poll(a, SRD_FL, vfl, t0, slp=int(os.environ.get("GSL", "1")))
    a.lab(nw)
    a.e("s_barrier")
    if "steps" not in EX: stamp(a, 8)
    def oload(k):
        if "g3nold" in EX: return
        P, j = divmod(k, 5)
        if j == 0: a.e(f"s_add_u32 s66, s64, {P}\n s_and_b32 s66, s66, 3\n s_mul_i32 s66, s66, 10240\n s_add_u32 s66, s66, s{sU}\n s_add_u32 s67, s66, 5120")
        if j < 4: a.e(f"buffer_load_dwordx4 {v(O[k],4)}, v{vo}, {srd(SRD_B)}, s{66 + j//2} offen offset:{2048*(j&1)} {OLD}")
        else: a.e(f"buffer_load_dwordx4 {v(O[k],4)}, v{vx}, {srd(SRD_B)}, s66 offen {OLD}")
    for k in range(LA): oload(k)
    a.e("s_waitcnt lgkmcnt(0)")
    for k in range(20):
        a.e(f"s_waitcnt vmcnt({min(19, k+LA-1)-k}) lgkmcnt({min(15, 8*(min(19, k+NW-2)-k))})")
        GP_ = os.environ.get("GPR", "5")
        if GP_ == "5" and k % 5 == 0: a.e(f"s_setprio {3 - k // 5}")
        if GP_ == "b" and k in (4, 8, 12, 16): a.e("s_barrier")
        if GP_ == "b2" and k in (2, 4, 6, 8, 10, 12, 14, 16, 18): a.e("s_barrier")
        F = wrd(k + NW - 1) if k + NW - 1 < 20 else []
        if "g3nods" in EX: F = []
        for nt in range(4):
            if "g3nomf" not in EX: a.e(f"{MF} {v(ACC[nt],4)}, {v(WF[k%NW][nt],4)}, {v(O[k],4)}, {'0' if k == 0 else v(ACC[nt],4)}")
            a.e("\n".join(F[2*nt:2*nt+2]))
        if k + LA < 20: oload(k + LA)
    if "steps" not in EX: stamp(a, 9)
    a.e("s_nop 4")
    for nt in range(4):
        c = ACC[nt]
        a.e(f"v_cvt_pk_bf16_f32 v{D+2*nt}, v{c}, v{c+1}\n v_cvt_pk_bf16_f32 v{D+2*nt+1}, v{c+2}, v{c+3}")
    a.e("s_nop 1")
    for nt in (0, 2):
        a.e(f"v_permlane16_swap_b32 v{D+2*nt}, v{D+2*nt+2}\n v_permlane16_swap_b32 v{D+2*nt+1}, v{D+2*nt+3}")
    X = WF[1][0]
    for i in range(4): a.e(f"v_mov_b32 v{X+i}, v{D+i}")
    for i in range(4): a.e(f"v_mov_b32_dpp v{D+i}, v{D+4+i} row_ror:8 row_mask:0xf bank_mask:0xc")
    for i in range(4): a.e(f"v_mov_b32_dpp v{D+4+i}, v{X+i} row_ror:8 row_mask:0xf bank_mask:0x3")
    a.e(f"buffer_store_dwordx4 {v(D,4)}, v{vst}, {srd(SRD_D)}, s{sSO} offen {OSTB}")
    a.e(f"s_add_u32 s{sSO}, s{sSO}, {8*2560}")
    a.e(f"buffer_store_dwordx4 {v(D+4,4)}, v{vst}, {srd(SRD_D)}, s{sSO} offen {OSTB}")
    return ra.hi

DOC = """;
"""
def build(path):
    hdr = open("cdna_kernels/%s.s.ref" % NAME).read().split("; Override")[0]
    a = Asm()
    a.raw('.amdgcn_target "amdgcn-amd-amdhsa--gfx950"\n.text')
    a.raw(f".globl {KN}\n.p2align 8\n.type {KN},@function"); a.lab(KN)
    a.e(f"""
    s_and_b32 s3, s2, {os.environ.get("CPM", "0xf0")}
    s_cmp_lg_u32 s3, 0x80
    s_cbranch_scc1 L_NOPF
    s_getpc_b64 s[4:5]
    v_lshlrev_b32 v2, 7, v0
    v_min_u32 v2, L_END-{KN}-128, v2
    global_load_dword v252, v2, s[4:5]
    """)
    a.lab("L_NOPF")
    a.e(f"s_cmp_ge_u32 s2, 256\n s_cbranch_scc1 L_END")
    stamp_init(a); stamp(a, 0)
    a.e(f"""
    s_load_dwordx16 s[8:23], s[0:1], 0
    s_load_dwordx8 s[24:31], s[0:1], 64
    v_lshrrev_b32 v2, 6, v0
    v_and_b32 v{L}, 63, v0
    v_readfirstlane_b32 s{S_WAVE}, v2
    s_and_b32 s{S_XI}, s2, 7
    s_lshr_b32 s{S_J}, s2, 3
    s_lshr_b32 s6, s{S_XI}, 1
    s_lshl_b32 s6, s6, 2
    s_and_b32 s7, s{S_J}, 3
    s_add_u32 s{S_RT}, s6, s7
    s_and_b32 s4, s{S_XI}, 1
    s_mul_i32 s{S_GC}, s4, 5
    s_cmp_ge_u32 s{S_J}, 16
    s_cbranch_scc1 L_A
    s_lshr_b32 s6, s{S_J}, 2
    s_add_u32 s{S_GC}, s{S_GC}, s6
    s_lshl_b32 s4, s4, 2
    s_add_u32 s{S_G}, s4, s6
    s_cmp_lt_u32 s{S_WAVE}, 4
    s_cbranch_scc1 L_BC
    """)
    b_loader(a)
    a.lab("L_A")
    a.e(f"""
    s_bfe_u32 s{S_GC}, s{S_J}, 0x10002
    s_mul_i32 s{S_GC}, s{S_GC}, 5
    s_add_u32 s{S_GC}, s{S_GC}, 4
    s_lshr_b32 s4, s{S_XI}, 2
    s_add_u32 s4, s4, 8
    s_bfe_u32 s{S_P2}, s{S_XI}, 0x10001
    s_add_u32 s{S_P2}, s{S_P2}, 1
    s_cmp_ge_u32 s{S_J}, 24
    s_cselect_b32 s{S_P2}, 0, s{S_P2}
    s_cselect_b32 s4, s{S_XI}, s4
    s_lshl_b32 s4, s4, 6
    s_and_b32 s6, s{S_J}, 7
    s_lshl_b32 s6, s6, 3
    s_add_u32 s{S_CB}, s4, s6
    s_cmp_ge_u32 s{S_J}, 24
    s_cbranch_scc1 L_A1
    """)
    prefetcher(a)
    a.e(f"s_and_b32 s60, s{S_XI}, 1\n s_cbranch_scc0 L_CONV")
    mk_srd(a, SRD_B, P_WS, T_BYTES, off=WS_PQ)
    a.e(f"s_cmp_lt_u32 s{S_WAVE}, 4\n s_cbranch_scc1 L_JB\n s_waitcnt vmcnt(0)\n s_call_b64 s[72:73], L_WO")
    a.lab("L_JB")
    a.e("s_waitcnt vmcnt(0)\n s_barrier\n s_branch L_G2")
    a.lab("L_A1")
    h3 = a1(a)
    a.lab("L_CONV")
    h5 = conv(a)
    a.lab("L_BC")
    h1 = b_compute(a)
    a.lab("L_WO")
    wo_dma(a)
    a.e("s_setpc_b64 s[72:73]")
    a.lab("L_G2")
    h4 = g2(a)
    a.lab("L_FIN")
    stamp_flush(a, 0)
    a.lab("L_END")
    a.e("s_endpgm")
    print("vgprs", h1, h3, h4, h5, file=sys.stderr)
    desc = f""".section .rodata,"a"
.p2align 6
.amdhsa_kernel {KN}
  .amdhsa_next_free_vgpr 256
  .amdhsa_next_free_sgpr 102
  .amdhsa_accum_offset 256
  .amdhsa_group_segment_fixed_size 0
  .amdhsa_kernarg_size 96
  .amdhsa_user_sgpr_count 2
  .amdhsa_user_sgpr_kernarg_segment_ptr 1
  .amdhsa_system_sgpr_workgroup_id_x 1
.end_amdhsa_kernel
"""
    open(path, "w").write(hdr + f"; @launch grid=(256,1,1) block=(512,1,1) lds={LDS_BYTES}\n" + DOC + a.text() + desc)
if __name__ == "__main__":
    build(sys.argv[1])
```
